```python
import torch

def _softmax(x, axis=-1):
    return torch.softmax(x, dim=axis)
def _gelu(x):
    return torch.nn.functional.gelu(x, approximate="tanh")
def _silu(x):
    return torch.nn.functional.silu(x)
def _sigmoid(x):
    return torch.sigmoid(x)
def _layernorm(x, axis=-1, eps=1e-5):
    m = x.mean(dim=axis, keepdim=True)
    v = x.var(dim=axis, keepdim=True, unbiased=False)
    return (x - m) / torch.sqrt(v + eps)
def _scatter_add(tgt, idx, src, axis=0):
    return tgt.clone().index_add_(axis, idx, src)
def _segment_sum(src, seg, n):
    out = torch.zeros((n,) + src.shape[1:], dtype=src.dtype)
    return out.index_add_(0, seg, src)
def _pad(x, pw):
    flat = tuple(v for pair in reversed(pw) for v in pair)
    return torch.nn.functional.pad(x, flat)

kernel_name = 'sequential_preLN__grouped_kv_mqa__mixer_s_mlp__prompt'

def setup_inputs():

    _w = (lambda a: (lambda t: t.to(torch.bfloat16) if t.is_floating_point() else t)(torch.as_tensor(a)))
    def _A_setup():
        B, S, D, H = 1, 2048, 512, 32
        Dh = D // H
        return {
            "x": _w((lambda *s: torch.randn(*s, dtype=torch.bfloat16) * 0.05)(B, S, D)),
            "wq": _w((lambda *s: torch.randn(*s, dtype=torch.bfloat16) * 0.05)(D, H * Dh)),
            "wk": _w((lambda *s: torch.randn(*s, dtype=torch.bfloat16) * 0.05)(D, Dh)),
            "wv": _w((lambda *s: torch.randn(*s, dtype=torch.bfloat16) * 0.05)(D, Dh)),
            "wo": _w((lambda *s: torch.randn(*s, dtype=torch.bfloat16) * 0.05)(H * Dh, D)),
        }
    _A_in = _A_setup()

    def _B_setup():
        B, S, D, F = 1, 2048, 512, 1792
        return {
            "x":  _w((lambda *s: torch.randn(*s, dtype=torch.bfloat16) * 0.05)(B, S, D)),
            "w1": _w((lambda *s: torch.randn(*s, dtype=torch.bfloat16) * 3.2)(D, D) * (D ** -0.5)),
            "w2": _w((lambda *s: torch.randn(*s, dtype=torch.bfloat16) * 3.2)(D, D) * (D ** -0.5)),
            "w3": _w((lambda *s: torch.randn(*s, dtype=torch.bfloat16) * 3.2)(D, F) * (D ** -0.5)),
            "w4": _w((lambda *s: torch.randn(*s, dtype=torch.bfloat16) * 1.6)(F, D) * (F ** -0.5)),
        }
    _B_in = _B_setup()

    return {
        "A_x": _A_in["x"],
        "A_wq": _A_in["wq"],
        "A_wk": _A_in["wk"],
        "A_wv": _A_in["wv"],
        "A_wo": _A_in["wo"],
        "B_x": _B_in["x"],
        "B_w1": _B_in["w1"],
        "B_w2": _B_in["w2"],
        "B_w3": _B_in["w3"],
        "B_w4": _B_in["w4"],
    }

def reference(A_x, A_wq, A_wk, A_wv, A_wo, B_x, B_w1, B_w2, B_w3, B_w4):
    def _A_ref(x, wq, wk, wv, wo):
        B, S, D = x.shape
        H = 32
        Dh = D // H
        q = (lambda x, *d: x.permute(*d))((x @ wq).reshape(B, S, H, Dh), 0, 2, 1, 3)
        k = x @ wk
        v = x @ wv
        scores = torch.einsum("bhqd,bkd->bhqk", q, k) * (Dh ** -0.5)
        p = _softmax(scores, axis=-1)
        o = torch.einsum("bhqk,bkd->bhqd", p, v)
        return (lambda x, *d: x.permute(*d))(o, 0, 2, 1, 3).reshape(B, S, H * Dh) @ wo

    def _B_ref(x, w1, w2, w3, w4):
        B, S, D = x.shape
        h = _gelu(_layernorm(x, axis=-1) @ w1)
        c = D // 4
        g0 = _pad(h[:, :, 0*c:1*c], ((0, 0), (1, 0), (0, 0)))[:, :S, :]
        g1 = _pad(h[:, :, 1*c:2*c], ((0, 0), (0, 1), (0, 0)))[:, 1:, :]
        g2 = _pad(h[:, :, 2*c:3*c], ((0, 0), (2, 0), (0, 0)))[:, :S, :]
        g3 = _pad(h[:, :, 3*c:   ], ((0, 0), (0, 2), (0, 0)))[:, 2:, :]
        hs = torch.concatenate([g0, g1, g2, g3], axis=-1) @ w2
        x1 = x + hs
        h2 = _gelu(_layernorm(x1, axis=-1) @ w3) @ w4
        return x1 + h2

    x = A_x
    h = x + _A_ref(_layernorm(x, axis=-1), A_wq, A_wk, A_wv, A_wo)
    h2 = h + _B_ref(_layernorm(h, axis=-1), B_w1, B_w2, B_w3, B_w4)
    return h2
```

```python
import re

def _regs(tok):
    tok = tok.strip()
    if tok.startswith('-'): tok = tok[1:]
    m = re.fullmatch(r'abs\((.*)\)', tok) or re.fullmatch(r'\|(.*)\|', tok)
    if m: tok = m.group(1)
    m = re.fullmatch(r'([vas])(\d+)', tok)
    if m: return [(m.group(1), int(m.group(2)))]
    m = re.fullmatch(r'([vas])\[(\d+):(\d+)\]', tok)
    if m: return [(m.group(1), i) for i in range(int(m.group(2)), int(m.group(3)) + 1)]
    if tok in ('vcc', 'vcc_lo', 'vcc_hi'): return [('x', 'vcc')]
    if tok in ('exec', 'exec_lo', 'exec_hi'): return [('x', 'exec')]
    if tok == 'm0': return [('x', 'm0')]
    return []

TRANS = ('v_exp_', 'v_log_', 'v_rcp_', 'v_rsq_', 'v_sqrt_', 'v_sin_', 'v_cos_')

class Ins:
    def __init__(self, text):
        self.text = text
        body = text.split(';')[0].strip()
        parts = body.split(None, 1)
        self.op = parts[0]
        rest = parts[1] if len(parts) > 1 else ''
        ops, depth, cur = [], 0, ''
        for ch in rest:
            if ch in '[(': depth += 1
            if ch in '])': depth -= 1
            if ch == ',' and depth == 0:
                ops.append(cur.strip()); cur = ''
            else: cur += ch
        if cur.strip(): ops.append(cur.strip())
        self.mods = ''
        if ops:
            lp = ops[-1].split(None, 1)
            ops[-1] = lp[0]
            self.mods = lp[1] if len(lp) > 1 else ''
        self.ops = ops
        op = self.op
        R = [_regs(o) for o in ops]
        self.kind = 'other'
        self.wr, self.rd = [], []
        self.A = self.B = self.C = self.D = []
        self.passes = 0
        self.stdata = []
        if op.startswith('v_mfma') or op.startswith('v_smfmac'):
            self.kind = 'mfma'
            self.D, self.A, self.B = R[0], R[1], R[2]
            if op.startswith('v_smfmac'):
                self.C = R[0]; self.B = R[2] + R[3]
            else:
                self.C = R[3]
            self.passes = 8 if '32x32' in op else 4
            self.wr = self.D; self.rd = self.A + self.B + self.C
        elif op.startswith('v_'):
            self.kind = 'valu'
            if op.startswith('v_permlane') and 'swap' in op:
                self.wr = R[0] + R[1]; self.rd = R[0] + R[1]
            elif op.startswith('v_cmp'):
                self.wr = R[0]; self.rd = sum(R[1:], [])
            elif op.startswith(('v_add_co', 'v_sub_co', 'v_addc_co', 'v_subb_co')):
                self.wr = R[0] + R[1]; self.rd = sum(R[2:], [])
            else:
                self.wr = R[0]; self.rd = sum(R[1:], [])
                if op.startswith(('v_fmac', 'v_dot2c', 'v_pk_fmac')) or 'UNUSED_PRESERVE' in self.mods or '_dpp' in op:
                    self.rd = self.rd + R[0]
        elif op.startswith('ds_'):
            self.kind = 'ds'
            if op.startswith(('ds_read', 'ds_bpermute', 'ds_permute', 'ds_swizzle')):
                self.wr = R[0]; self.rd = sum(R[1:], [])
            else:
                self.rd = sum(R, [])
        elif op.startswith(('buffer_', 'global_')):
            self.kind = 'vmem'
            if ' lds' in (' ' + self.mods) or op.startswith('global_load_lds'):
                self.rd = sum(R, []) + [('x', 'm0')]
            elif op.startswith(('buffer_load', 'global_load')):
                self.wr = R[0]; self.rd = sum(R[1:], [])
            elif op.startswith('buffer_store'):
                self.rd = sum(R, [])
                if op.endswith(('x3', 'x4')): self.stdata = R[0]
            elif op.startswith('global_store'):
                self.rd = sum(R, [])
                if op.endswith(('x3', 'x4')): self.stdata = R[1]
            else:
                self.rd = sum(R, [])
        elif op.startswith('s_'):
            self.kind = 'salu'
            if op.startswith(('s_cmp', 's_cbranch', 's_branch', 's_waitcnt', 's_nop', 's_barrier', 's_endpgm', 's_setprio', 's_sleep')):
                self.rd = sum(R, [])
            else:
                self.wr = R[0] if R else []; self.rd = sum(R[1:], [])
                if 'saveexec' in op: self.wr = self.wr + [('x', 'exec')]
        self.trans = op.startswith(TRANS)
        self.dot = op.startswith('v_dot')
        self.states = 1
        if op == 's_nop': self.states = int(ops[0], 0) + 1

def need(p, c):
    n = 0
    pw, cr, cw = set(p.wr), set(c.rd), set(c.wr)
    if p.kind == 'valu':
        vw = {r for r in pw if r[0] in 'va'}
        sw = {r for r in pw if r[0] == 's' or r == ('x', 'vcc')}
        if c.kind == 'mfma' and vw & cr: n = max(n, 3 if p.dot else 2)
        if c.kind == 'valu':
            if p.trans and not c.trans and vw & cr: n = max(n, 1)
            if p.dot and (vw & (cr | cw)):
                same = p.op == c.op and not (vw & set(sum((_regs(o) for o in c.ops[1:3]), [])))
                if not same: n = max(n, 3)
            if c.op.startswith('v_permlane') and vw & cr: n = max(n, 2)
            if '_dpp' in c.op and vw & cr: n = max(n, 2)
            if c.op.startswith(('v_readlane', 'v_readfirstlane')) and vw & cr: n = max(n, 1)
            if sw & cr: n = max(n, 2)
            if c.op.startswith(('v_readlane', 'v_writelane')) and sw & cr: n = max(n, 4)
            if ('sdwa' in p.op or 'op_sel' in p.mods) and vw & (cr | cw): n = max(n, 1)
        if p.dot and c.kind in ('vmem', 'ds') and vw & cr: n = max(n, 3)
        if c.kind == 'vmem' and sw & cr: n = max(n, 5)
        if c.kind == 'salu' and sw & cr: n = max(n, 1)
        if c.op.startswith('s_cbranch_vcc') and ('x', 'vcc') in pw: n = max(n, 2)
        if ('x', 'exec') in pw: n = max(n, 5)
    if p.kind == 'mfma':
        D = set(p.D)
        big = {4: 8, 8: 12}[p.passes]
        if c.kind == 'mfma':
            if D & (set(c.A) | set(c.B)): n = max(n, big)
            if D & set(c.C):
                if not (c.C == p.D and c.passes == p.passes): n = max(n, {4: 6, 8: 10}[p.passes])
            elif D & set(c.D): n = max(n, big)
        elif c.kind in ('valu', 'vmem', 'ds'):
            if D & (cr | cw): n = max(n, big)
        if c.kind == 'valu' and set(p.C) & cw: n = max(n, {4: 3, 8: 7}[p.passes])
    if p.kind == 'vmem' and p.stdata and set(p.stdata) & cw: n = max(n, 2)
    if p.kind == 'salu':
        if ('x', 'm0') in pw and ('x', 'm0') in cr and c.kind in ('vmem', 'ds'): n = max(n, 1)
    return n

class Asm:
    def __init__(self):
        self.lines = []
    def __call__(self, text):
        for l in text.split('\n'):
            l = l.rstrip()
            if l.strip(): self.lines.append(l)
    def label(self, name): self.lines.append(name + ':')
    def finish(self):
        out, hist = [], []
        for l in self.lines:
            s = l.strip()
            if s.startswith(';') or s.startswith('.') or s.endswith(':'):
                out.append(l); continue
            ins = Ins(s)
            req, dist = 0, 0
            for p in reversed(hist):
                n = need(p, ins)
                if n - dist > req: req = n - dist
                dist += p.states
                if dist > 16: break
            while req > 0:
                k = min(req, 16)
                nop = Ins(f's_nop {k-1}')
                out.append(f'    s_nop {k-1}')
                hist.append(nop); req -= k
            out.append('    ' + s)
            hist.append(ins)
            if len(hist) > 40: hist = hist[-40:]
        return '\n'.join(out) + '\n'
```

```python
from asmlib import Asm
from layout import *

def srd(a, base, lo, size):
    a(f"""
    s_mov_b32 s{base}, s{lo}
    s_and_b32 s{base+1}, s{lo+1}, 0xffff
    s_mov_b32 s{base+2}, {size:#x}
    s_mov_b32 s{base+3}, 0x20000""")

NLN = 128
NPREP = 32
K1_GRID = NLN + NPREP
K1_LDS = 40960

def gen_k1(dbg=False, opt={}):
    PS = ' sc1' if opt.get('psc1') else (' nt' if opt.get('pnt') else '')
    XSC = ' sc1' if opt.get('xsc1') else ''
    a = Asm()
    def fin():
        if dbg:
            a(f"""
    s_memrealtime s[60:61]
    s_waitcnt vmcnt(0)
    s_memrealtime s[52:53]
    s_lshl_b32 s54, s2, 2
    s_add_u32 s54, s54, s3
    s_lshl_b32 s54, s54, 5
    s_add_u32 s54, s54, {DBG + 0x40000:#x}
    s_waitcnt lgkmcnt(0)
    v_mov_b32 v88, s50
    v_mov_b32 v89, s52
    v_mov_b32 v90, s56
    v_mov_b32 v91, s58
    v_mov_b32 v93, s60
    v_mov_b32 v92, 0
    s_mov_b64 exec, 1
    buffer_store_dwordx4 v[88:91], v92, s[32:35], s54 offen
    buffer_store_dword v93, v92, s[32:35], s54 offen offset:16""")
        a("s_endpgm")
    a(f"""
.text
.globl prep_kernel
.p2align 8
.type prep_kernel,@function""")
    a.label("prep_kernel")
    a(f"""
    s_cmp_ge_u32 s2, {K1_GRID}
    s_cbranch_scc1 K1_end
    {'s_memrealtime s[50:51]' if dbg else ''}
    s_load_dwordx2 s[4:5], s[0:1], 96         ; ws
    v_lshrrev_b32 v1, 6, v0
    v_and_b32 v2, 63, v0                      ; lane
    s_cmp_lt_u32 s2, {NLN}
    v_readfirstlane_b32 s3, v1                ; wave
    s_cbranch_scc0 K1_prep
    s_load_dwordx2 s[6:7], s[0:1], 0          ; x
    s_load_dwordx4 s[8:11], s[0:1], 16
    s_and_b32 s12, s2, 7
    s_lshr_b32 s13, s2, 3
    s_lshl_b32 s12, s12, 4
    s_add_u32 s12, s12, s13
    v_and_b32 v3, 15, v2                      ; t
    v_lshrrev_b32 v4, 4, v2                   ; g
    v_lshlrev_b32 v5, 10, v3                  ; t*1024
    v_lshl_add_u32 v5, v4, 4, v5              ; + g*16
    s_lshl_b32 s14, s12, 14                   ; tb*16*1024
    s_lshl_b32 s15, s3, 8                     ; w*256
    s_add_u32 s14, s14, s15
    v_lshlrev_b32 v6, 4, v2                   ; lane*16
    s_lshl_b32 s15, s3, 12                    ; w*4096
    s_lshl_b32 s16, s3, 13                    ; w*8192
    s_waitcnt lgkmcnt(0)
    {'s_memrealtime s[56:57]' if dbg else ''}""")
    srd(a, 20, 6, 2048*512*2)
    srd(a, 24, 8, 512*16*2)
    srd(a, 28, 10, 512*16*2)
    srd(a, 32, 4, WS_USED)
    for i in range(4):
        a(f"buffer_load_dwordx4 v[{16+4*i}:{19+4*i}], v5, s[20:23], s14 offen offset:{64*i}")
    a("s_mov_b32 m0, s16")
    for i in range(4):
        a(f"buffer_load_dwordx4 v6, s[24:27], s15 offen offset:{1024*i} lds")
    a("s_add_u32 m0, s16, 4096")
    for i in range(4):
        a(f"buffer_load_dwordx4 v6, s[28:31], s15 offen offset:{1024*i} lds")
    a(f"""
    s_cmp_eq_u32 s3, 2
    s_cbranch_scc0 K1_nohalo
    s_mov_b32 s17, -1
    s_and_b32 s18, s2, 0xfffffffd
    s_cmp_eq_u32 s18, 0
    s_cselect_b32 s17, 0, s17
    s_cmp_eq_u32 s18, 125
    s_cselect_b32 s17, 0, s17
    v_mov_b32 v8, s17
    v_mov_b32 v9, s17
    v_mov_b32 v10, s17
    v_mov_b32 v11, s17
    s_lshr_b32 s18, s2, 2
    s_mul_i32 s18, s18, {GA:#x}
    s_and_b32 s19, s2, 3
    s_lshl_b32 s19, s19, 9
    s_add_u32 s18, s18, s19
    s_add_u32 s18, s18, {HALO:#x}
    s_mov_b32 exec_hi, 0
    buffer_store_dwordx4 v[8:11], v6, s[32:35], s18 offen
    s_mov_b64 exec, -1""")
    a.label("K1_nohalo")
    a(f"""
    s_cmp_eq_u32 s3, 0
    s_cbranch_scc0 K1_nost
    v_mov_b32 v8, -1
    v_mov_b32 v9, -1
    v_mov_b32 v10, -1
    v_mov_b32 v11, -1
    s_lshr_b32 s18, s2, 2
    s_mul_i32 s18, s18, {GA:#x}
    s_and_b32 s19, s2, 3
    s_lshl_b32 s19, s19, 11
    s_add_u32 s18, s18, s19
    s_add_u32 s18, s18, {ST1:#x}
    buffer_store_dwordx4 v[8:11], v6, s[32:35], s18 offen
    buffer_store_dwordx4 v[8:11], v6, s[32:35], s18 offen offset:1024""")
    a.label("K1_nost")
    a(f"""
    s_cmp_eq_u32 s3, 3
    s_cbranch_scc0 K1_noflag
    v_mov_b32 v8, 0
    v_mov_b32 v9, 0
    v_mov_b32 v10, 0
    v_mov_b32 v11, 0
    s_mul_i32 s18, s2, 400
    s_add_u32 s18, s18, {FLAGS:#x}
    s_mov_b64 exec, 0x1ffffff
    buffer_store_dwordx4 v[8:11], v6, s[32:35], s18 offen
    s_mov_b64 exec, -1""")
    a.label("K1_noflag")
    a(f"""
    s_cmp_eq_u32 s3, 1
    s_cbranch_scc0 K1_nopf
    s_getpc_b64 s[36:37]""")
    a.label("K1_pc")
    a(f"""
    s_add_u32 s36, s36, main_kernel-K1_pc
    s_addc_u32 s37, s37, 0
    s_lshl_b32 s18, s13, 13
    v_lshlrev_b32 v8, 7, v2
    v_add_u32 v8, s18, v8
    v_cmp_gt_u32 vcc, main_end-main_kernel, v8
    s_and_saveexec_b64 s[38:39], vcc
    s_cbranch_execz K1_pfskip
    global_load_dword v9, v8, s[36:37]""")
    a.label("K1_pfskip")
    a("s_mov_b64 exec, -1")
    a.label("K1_nopf")
    a(f"""
    v_mov_b32 v12, 0
    v_mov_b32 v13, 0
    v_mov_b32 v14, 0x3f803f80
    s_waitcnt vmcnt(0)
    {'s_memrealtime s[58:59]' if dbg else ''}""")
    for i in range(16):
        a(f"v_dot2_f32_bf16 v12, v{16+i}, v14, v12")
    for i in range(16):
        a(f"v_dot2_f32_bf16 v13, v{16+i}, v{16+i}, v13")
    a(f"""
    v_permlane32_swap_b32 v12, v13
    v_add_f32 v12, v12, v13
    v_mov_b32 v13, v12
    v_permlane16_swap_b32 v12, v13
    v_add_f32 v12, v12, v13
    v_lshrrev_b32 v8, 5, v2
    v_lshlrev_b32 v8, 4, v8
    v_lshl_add_u32 v8, v3, 5, v8              ; t*32 + sq*16
    s_lshl_b32 s17, s3, 2
    v_add_u32 v9, s17, v8
    ds_write_b32 v9, v12 offset:32768
    v_lshlrev_b32 v9, 5, v3
    s_waitcnt lgkmcnt(0)
    s_barrier
    ds_read_b128 v[32:35], v9 offset:32768
    ds_read_b128 v[36:39], v9 offset:32784
    v_bfe_u32 v10, v2, 2, 2
    v_lshl_add_u32 v10, v4, 3, v10
    v_lshlrev_b32 v10, 5, v10
    v_and_b32 v11, 3, v2
    v_lshl_add_u32 v10, v11, 3, v10
    v_add_u32 v10, s16, v10""")
    for m in range(2):
        for s in range(4):
            b = 64 + 16*m + 4*s
            a(f"ds_read_b64_tr_b16 v[{b}:{b+1}], v10 offset:{4096*m + 1024*s}")
            a(f"ds_read_b64_tr_b16 v[{b+2}:{b+3}], v10 offset:{4096*m + 1024*s + 128}")
    a(f"""
    s_waitcnt lgkmcnt(15)
    v_add_f32 v32, v32, v33
    v_add_f32 v34, v34, v35
    v_add_f32 v36, v36, v37
    v_add_f32 v38, v38, v39
    v_add_f32 v32, v32, v34                   ; sum
    v_add_f32 v36, v36, v38                   ; sumsq
    v_mul_f32 v32, 0x3b000000, v32            ; mean
    v_mul_f32 v36, 0x3b000000, v36
    v_fma_f32 v36, -v32, v32, v36             ; var
    v_max_f32 v36, 0, v36
    v_add_f32 v36, 0x3727c5ac, v36            ; + 1e-5
    v_rsq_f32 v36, v36
    v_mul_f32 v32, v32, v36
    v_sub_f32 v32, 0, v32                     ; -mean*rstd""")
    for i in range(16):
        a(f"""
    v_lshlrev_b32 v40, 16, v{16+i}
    v_and_b32 v41, 0xffff0000, v{16+i}
    v_fma_f32 v40, v40, v36, v32
    v_fma_f32 v41, v41, v36, v32
    v_cvt_pk_bf16_f32 v{16+i}, v40, v41""")
    a(f"""
    s_lshr_b32 s17, s12, 2
    s_mul_i32 s17, s17, {GA:#x}
    s_and_b32 s18, s12, 3
    s_lshl_b32 s18, s18, 8
    s_add_u32 s17, s17, s18
    s_lshl_b32 s18, s3, 14
    s_add_u32 s17, s17, s18
    v_lshlrev_b32 v8, 10, v4
    v_lshl_add_u32 v8, v3, 4, v8
    s_waitcnt lgkmcnt(0)""")
    for s in range(4):
        a(f"v_mfma_f32_16x16x32_bf16 v[44:47], v[{64+4*s}:{67+4*s}], v[{16+4*s}:{19+4*s}], {'0' if s == 0 else 'v[44:47]'}")
        a(f"v_mfma_f32_16x16x32_bf16 v[48:51], v[{16+4*s}:{19+4*s}], v[{80+4*s}:{83+4*s}], {'0' if s == 0 else 'v[48:51]'}")
        a(f"buffer_store_dwordx4 v[{16+4*s}:{19+4*s}], v8, s[32:35], s17 offen{XSC}")
        if s < 3: a(f"s_add_u32 s17, s17, 4096")
    a(f"""
    s_barrier
    s_lshl_b32 s17, s3, 10
    v_add_u32 v9, s17, v6
    ds_write_b128 v9, v[44:47]
    ds_write_b128 v9, v[48:51] offset:4096
    s_waitcnt lgkmcnt(0)
    s_barrier
    s_cmp_ge_u32 s3, 2
    s_cbranch_scc1 K1_end
    s_lshl_b32 s17, s3, 12
    v_add_u32 v9, s17, v6
    ds_read_b128 v[44:47], v9
    ds_read_b128 v[48:51], v9 offset:1024
    ds_read_b128 v[52:55], v9 offset:2048
    ds_read_b128 v[56:59], v9 offset:3072
    s_lshr_b32 s17, s12, 1
    s_lshl_b32 s17, s17, 11
    s_add_u32 s17, s17, {KV:#x}
    s_and_b32 s18, s12, 1
    v_lshrrev_b32 v10, 1, v4                  ; hA = g>>1
    v_and_b32 v11, 1, v4
    v_lshlrev_b32 v11, 3, v11
    v_lshl_add_u32 v11, v3, 4, v11            ; (t or d)*16 + (g&1)*8
    s_waitcnt lgkmcnt(0)""")
    for r in range(4):
        a(f"""
    v_add_f32 v{44+r}, v{44+r}, v{48+r}
    v_add_f32 v{52+r}, v{52+r}, v{56+r}
    v_add_f32 v{44+r}, v{44+r}, v{52+r}""")
    a(f"""
    v_cvt_pk_bf16_f32 v48, v44, v45
    v_cvt_pk_bf16_f32 v49, v46, v47
    s_cmp_eq_u32 s3, 0
    s_cbranch_scc0 K1_vstore
    s_lshl_b32 s18, s18, 8
    s_add_u32 s17, s17, s18
    v_lshl_add_u32 v11, v10, 9, v11
    buffer_store_dwordx2 v[48:49], v11, s[32:35], s17 offen
    v_mov_b32 v50, 0
    v_dot2_f32_bf16 v50, v48, v48, v50
    v_dot2_f32_bf16 v50, v49, v49, v50
    v_mov_b32 v51, v50
    v_permlane32_swap_b32 v50, v51
    v_add_f32 v50, v50, v51
    v_mov_b32 v51, v50
    v_permlane16_swap_b32 v50, v51
    v_add_f32 v50, v50, v51
    v_max_f32_dpp v50, v50, v50 row_ror:8 row_mask:0xf bank_mask:0xf
    v_max_f32_dpp v50, v50, v50 row_ror:4 row_mask:0xf bank_mask:0xf
    v_max_f32_dpp v50, v50, v50 row_ror:2 row_mask:0xf bank_mask:0xf
    v_max_f32_dpp v50, v50, v50 row_ror:1 row_mask:0xf bank_mask:0xf
    s_lshl_b32 s18, s12, 2
    s_add_u32 s18, s18, {KMAX:#x}
    v_mov_b32 v51, 0
    s_mov_b64 exec, 1
    buffer_store_dword v50, v51, s[32:35], s18 offen""")
    fin()
    a.label("K1_vstore")
    a(f"""
    s_lshl_b32 s18, s18, 9
    s_add_u32 s17, s17, s18
    v_lshl_add_u32 v11, v10, 8, v11
    buffer_store_dwordx2 v[48:49], v11, s[32:35], s17 offen offset:1024""")
    fin()
    a.label("K1_prep")
    a(f"""
    s_load_dwordx2 s[6:7], s[0:1], 8          ; wq
    s_load_dwordx2 s[8:9], s[0:1], 32         ; wo
    s_load_dwordx8 s[12:19], s[0:1], 48       ; w1 w2 w3 w4
    s_sub_u32 s20, s2, {NLN}                  ; p
    v_lshrrev_b32 v3, 3, v2
    v_and_b32 v4, 7, v2
    v_lshlrev_b32 v4, 4, v4
    v_lshrrev_b32 v7, 4, v2                   ; g
    s_waitcnt lgkmcnt(0)
    {'s_memrealtime s[56:57]' if dbg else ''}
    s_lshr_b32 s21, s20, 5
    s_and_b32 s22, s20, 31                    ; q
    s_mov_b32 s23, 1024
    s_mov_b32 s24, 16                         ; KS
    s_mov_b32 s26, 0x80000
    s_lshl_b32 s25, s21, 19
    s_add_u32 s25, s25, {WQ:#x}               ; dst
    s_cmp_eq_u32 s21, 1
    s_cselect_b64 s[6:7], s[8:9], s[6:7]
    s_cmp_eq_u32 s21, 2
    s_cselect_b64 s[6:7], s[12:13], s[6:7]
    s_cmp_eq_u32 s21, 3
    s_cselect_b64 s[6:7], s[14:15], s[6:7]
    s_cmp_ge_u32 s20, 240
    s_cbranch_scc0 K1_notw4
    s_mov_b64 s[6:7], s[18:19]
    s_sub_u32 s22, s20, 240
    s_mov_b32 s24, 56
    s_mov_b32 s25, {W4:#x}
    s_mov_b32 s26, 0x1c0000""")
    a.label("K1_notw4")
    a(f"""
    s_lshr_b32 s27, s22, 1                    ; ks
    s_and_b32 s28, s22, 1                     ; nq
    s_sub_u32 s29, s20, 128
    s_cmp_lt_u32 s29, 112
    s_cbranch_scc0 K1_notw3
    s_mov_b64 s[6:7], s[16:17]
    s_mov_b32 s23, 3584
    s_mov_b32 s25, {W3:#x}
    s_mov_b32 s26, 0x1c0000
    s_mul_i32 s27, s29, 9363
    s_lshr_b32 s27, s27, 16                   ; q/7
    s_mul_i32 s28, s27, 7
    s_sub_u32 s28, s29, s28""")
    a.label("K1_notw3")
    a(f"""
    s_mov_b32 s40, s6
    s_and_b32 s41, s7, 0xffff
    s_mov_b32 s42, s26
    s_mov_b32 s43, 0x20000""")
    srd(a, 32, 4, WS_USED)
    a(f"""
    v_mul_lo_u32 v5, v3, s23
    v_add_u32 v5, v5, v4
    s_lshl_b32 s30, s27, 5
    s_mul_i32 s30, s30, s23                   ; 32*ks*rowbytes
    s_lshl_b32 s31, s28, 9
    s_add_u32 s30, s30, s31
    s_lshl_b32 s31, s3, 7
    s_add_u32 s30, s30, s31                   ; + nq*512 + w*128
    s_lshl_b32 s31, s23, 3                    ; 8 rows
    s_lshl_b32 s36, s3, 12
    s_mov_b32 m0, s36""")
    for i in range(4):
        a(f"buffer_load_dwordx4 v5, s[40:43], s30 offen lds")
        if i < 3:
            a(f"s_add_u32 s30, s30, s31\n s_add_u32 m0, s36, {1024*(i+1)}")
    a(f"""
    v_lshlrev_b32 v8, 3, v7
    v_lshrrev_b32 v9, 1, v7
    v_lshlrev_b32 v9, 4, v9
    v_and_b32 v10, 1, v7
    v_lshl_add_u32 v9, v10, 2, v9
    s_cmp_eq_u32 s21, 1
    s_cselect_b64 vcc, -1, 0
    s_cselect_b32 s37, 2, 1
    s_lshl_b32 s37, s37, 9
    v_cndmask_b32 v8, v8, v9, vcc
    v_bfe_u32 v9, v2, 2, 2
    v_add_u32 v8, v8, v9
    v_lshlrev_b32 v8, 7, v8
    v_and_b32 v9, 3, v2
    v_lshl_add_u32 v8, v9, 3, v8
    v_add_u32 v8, s36, v8
    v_add_u32 v9, s37, v8
    s_lshl_b32 s38, s28, 2
    s_add_u32 s38, s38, s3                    ; j
    s_mul_i32 s39, s38, s24
    s_add_u32 s39, s39, s27
    s_lshl_b32 s39, s39, 12
    s_lshl_b32 s38, s38, 6
    s_add_u32 s38, s38, s27
    s_lshl_b32 s38, s38, 10                   ; (4j*16 + ks)*1024
    s_lshr_b32 s44, s27, 2
    s_mul_i32 s45, s27, 4682
    s_lshr_b32 s45, s45, 16
    s_cmp_eq_u32 s24, 56
    s_cselect_b32 s44, s45, s44
    s_cmp_lg_u32 s24, 56
    s_cselect_b32 s38, s38, s39
    s_cselect_b32 s44, 0, s44
    s_cselect_b32 s45, 14, 10
    s_add_u32 s38, s38, s25
    v_lshlrev_b32 v6, 4, v2
    s_waitcnt vmcnt(0)
    {'s_memrealtime s[58:59]' if dbg else ''}""")
    for j in range(4):
        a(f"ds_read_b64_tr_b16 v[{16+4*j}:{17+4*j}], v8 offset:{32*j}")
        a(f"ds_read_b64_tr_b16 v[{18+4*j}:{19+4*j}], v9 offset:{32*j}")
    for j in range(4):
        a(f"s_sub_u32 s39, {j}, s44\n s_and_b32 s39, s39, 3\n s_lshl_b32 s39, s39, s45\n s_add_u32 s39, s39, s38")
        a(f"s_waitcnt lgkmcnt({6-2*j})")
        a(f"buffer_store_dwordx4 v[{16+4*j}:{19+4*j}], v6, s[32:35], s39 offen{PS}")
    fin()
    a.label("K1_end")
    a("s_endpgm")
    txt = a.finish()
    txt += f"""
.section .rodata,"a"
.p2align 6
.amdhsa_kernel prep_kernel
  .amdhsa_next_free_vgpr 96
  .amdhsa_next_free_sgpr 64
  .amdhsa_accum_offset 96
  .amdhsa_group_segment_fixed_size 0
  .amdhsa_kernarg_size 104
  .amdhsa_user_sgpr_count 2
  .amdhsa_user_sgpr_kernarg_segment_ptr 1
  .amdhsa_system_sgpr_workgroup_id_x 1
.end_amdhsa_kernel
"""
    return txt
```

```python
from asmlib import Asm
from layout import *
import struct

def f32(x):
    return "0x%08x" % struct.unpack('<I', struct.pack('<f', x))[0]

K2_LDS = 163840
LOG2E = 1.4426950408889634
QSCALE = 0.25 * LOG2E
GC1 = -2.0 * 0.7978845608028654 * LOG2E
SPIN = 0x40000
ACT = 65536
XST = ACT + 5*8192 + 256
HI = 131072
LA = 5

sW, sGRP, sMEM, sSLOW, sXCC, sW8 = 3, 16, 17, 18, 45, 44
WS, XS, OS = "s[4:7]", "s[8:11]", "s[12:15]"
sT0, sT1, sT2, sT3, sT4, sT5 = 20, 21, 22, 23, 24, 25
sG, sL, sPF, sCNT, sFLG, sAR = 26, 27, 28, 29, 30, 31
sU0, sU1 = 32, 33
sB = 34
sTCH = 35
sNT, sORD = 38, 39
sVM = "s[40:41]"
sPL, sW4 = 42, 43
sPP, sPR, sPS, sPD = 46, 56, 60, 65
def tsreg(i): return 70 + 2*i if i < 16 else 46 + 2*(i-16)
vLANE, vL16, vB, vD, vMYF, vXO = 0, 1, 2, 3, 4, 5

def vr(b, n=4): return f"v[{b}:{b+n-1}]"
def V(b): return lambda ks: vr(b+4*ks)
def P(r): return f"v[{r}:{r+1}]"

class Stream:
    uid = 0
    def __init__(self, name, dbg, tags):
        self.name, self.dbg, self.tags = name, dbg, tags
        self.a = Asm(); self.nvm = self.nld = self.nts = self.nbar = 0
        self.ool = []
    def vm(self, text):
        self.a(text); self.nvm += 1; return self.nvm - 1
    def wait_vm(self, seq): self.a(f"s_waitcnt vmcnt({min(self.nvm - 1 - seq, 63)})")
    def ld(self, text):
        self.a(text); self.nld += 1; return self.nld - 1
    def wait_ld(self, seq): self.a(f"s_waitcnt lgkmcnt({min(self.nld - 1 - seq, 15)})")
    def bar(self): self.a("s_barrier"); self.nbar += 1
    def ts(self, tag="main"):
        if self.dbg and tag in self.tags:
            self.a(f"{'s_memtime' if self.dbg == 'cyc' else 's_memrealtime'} s[{tsreg(self.nts)}:{tsreg(self.nts)+1}]")
            self.nts += 1
    def lab(self, p):
        Stream.uid += 1; return f"L_{p}_{Stream.uid}"
    def E(self, text): return [(lambda x=x: self.a(x)) for x in text.split("\n") if x.strip()]
    def set_wbase(self, base, ks, dst=sPF):
        self.a(f"s_mul_i32 s{dst}, s{sNT}, {ks*1024}\n s_add_u32 s{dst}, s{dst}, {base:#x}")
    def set_w3(self, slot):
        if slot < 3: self.a(f"s_mul_i32 s{sPF}, s{sW}, 3\n s_add_u32 s{sPF}, s{sPF}, {slot}")
        else: self.a(f"s_lshr_b32 s{sPF}, s{sW}, 1\n s_add_u32 s{sPF}, s{sPF}, 12")
        self.a(f"s_mul_i32 s{sT5}, s{sMEM}, 14\n s_add_u32 s{sPF}, s{sPF}, s{sT5}\n s_lshl_b32 s{sPF}, s{sPF}, 14\n s_add_u32 s{sPF}, s{sPF}, {W3:#x}")
    def set_act(self, base):
        self.a(f"s_lshl_b32 s{sL}, s{sW}, 11\n s_add_u32 s{sG}, s{sAR}, s{sL}\n s_add_u32 s{sG}, s{sG}, {base:#x}\n s_add_u32 s{sL}, s{sL}, {ACT}")
    def tile_soff(self, s, base):
        self.a(f"s_lshl_b32 s{s}, s{sNT}, 11\n s_add_u32 s{s}, s{s}, s{sAR}\n s_add_u32 s{s}, s{s}, {base:#x}")
    def xo_soff(self, s):
        self.a(f"s_lshl_b32 s{s}, s{sNT}, 5\n s_lshl_b32 s{sT5}, s{sGRP}, 16\n s_add_u32 s{s}, s{s}, s{sT5}")
    def act_issue(self, sc="sc1", pre=None, post=None):
        def issue(c):
            self.a(f"s_mov_b32 m0, s{sL}")
            if pre: pre(c)
            self.vm(f"buffer_load_dwordx4 v{vL16}, {WS}, s{sG} offen {sc} lds")
            last = self.vm(f"buffer_load_dwordx4 v{vL16}, {WS}, s{sG} offen offset:1024 {sc} lds")
            if post: post(c)
            self.a(f"s_add_u32 s{sG}, s{sG}, 8192\n s_add_u32 s{sL}, s{sL}, 8192")
            return last
        return issue
    def frags(self, n, sreg, dst=None, lds=None, sc="sc1"):
        def mk(i):
            def f():
                if dst is not None:
                    r = self.vm(f"buffer_load_dwordx4 {dst(i)}, v{vL16}, {WS}, s{sreg} offen offset:{1024*(i&3)} {sc}")
                else:
                    self.a(f"s_mov_b32 m0, s{lds}")
                    r = self.vm(f"buffer_load_dwordx4 v{vL16}, {WS}, s{sreg} offen offset:{1024*(i&3)} {sc} lds")
                if i & 3 == 3:
                    self.a(f"s_add_u32 s{sreg}, s{sreg}, 4096")
                    if lds is not None: self.a(f"s_add_u32 s{lds}, s{lds}, 4096")
                self.lastf = r
                return r
            return f
        return [mk(i) for i in range(n)]
    def run(self, items):
        for f in items: f()
    def setvcc(self): self.a(f"s_mov_b64 vcc, s[{sSLOW}:{sSLOW+1}]")
    def cstore(self, st):
        Ls, Le = self.lab("cs"), self.lab("ce")
        self.a(f"s_cbranch_vccnz {Ls}")
        for x in st: self.vm(x)
        self.a.label(Le)
        self.ool.append((Ls, [x + " sc1" for x in st] + [f"s_branch {Le}"]))
    def flag(self, stage, t, vf=vMYF):
        self.a(f"s_add_u32 s{sT0}, s{sFLG}, {stage*8192}\n v_mov_b32 v{t}, 1\n s_waitcnt vmcnt(0)\n s_mov_b64 exec, 1")
        self.cstore([f"buffer_store_dword v{t}, v{vf}, {WS}, s{sT0} offen"])
        self.a("s_mov_b64 exec, -1")
    def poll(self, stage, vf, p0, mid=()):
        a = self.a; L, Ld = self.lab("poll"), self.lab("pdone"); p1 = p0 + 1
        a(f"s_add_u32 s{sT0}, s{sFLG}, {stage*8192}\n s_mov_b32 s{sCNT}, 0")
        q = self.vm(f"buffer_load_dword v{p0}, v{vf}, {WS}, s{sT0} offen sc1")
        self.run(mid)
        self.vm(f"buffer_load_dword v{p1}, v{vf}, {WS}, s{sT0} offen sc1")
        self.wait_vm(q)
        a(f"v_cmp_ne_u32 vcc, 1, v{p0}\n s_cbranch_vccz {Ld}")
        a.label(L)
        a(f"""
    buffer_load_dword v{p0}, v{vf}, {WS}, s{sT0} offen sc1
    s_waitcnt vmcnt(1)
    v_cmp_ne_u32 vcc, 1, v{p1}
    s_add_u32 s{sCNT}, s{sCNT}, 1
    s_cbranch_vccz {Ld}
    buffer_load_dword v{p1}, v{vf}, {WS}, s{sT0} offen sc1
    s_cmp_gt_u32 s{sCNT}, {SPIN}
    s_cbranch_scc1 main_exit
    s_waitcnt vmcnt(1)
    v_cmp_ne_u32 vcc, 1, v{p0}
    s_cbranch_vccnz {L}""")
        a.label(Ld)
        self.setvcc()
    def regcheck(self, r, z):
        a = self.a; L, L0 = self.lab("reg"), self.lab("reg0")
        a(f"s_mov_b32 s{sCNT}, 0")
        a.label(L0)
        a(f"""
    v_readfirstlane_b32 s{sT1}, v{r}
    s_and_b32 s{sT2}, s{sT1}, 0x0f0f0f0f
    s_lshr_b32 s{sT3}, s{sT1}, 4
    s_and_b32 s{sT3}, s{sT3}, 0x0f0f0f0f
    s_add_u32 s{sT2}, s{sT2}, s{sT3}
    s_mul_i32 s{sT2}, s{sT2}, 0x01010101
    s_lshr_b32 s{sT2}, s{sT2}, 24
    s_cmp_lg_u32 s{sT2}, 8
    s_cbranch_scc1 {L}
    s_lshl_b32 s{sT2}, s{sXCC}, 2
    s_lshl_b32 s{sT2}, 8, s{sT2}
    s_cmp_lg_u32 s{sT1}, s{sT2}
    s_cselect_b64 s[{sSLOW}:{sSLOW+1}], -1, 0""")
        self.ool.append((L, [f"s_add_u32 s{sT0}, s{sFLG}, {5*8192}", f"buffer_load_dword v{r}, v{z}, {WS}, s{sT0} offen sc1",
                             f"s_add_u32 s{sCNT}, s{sCNT}, 1", f"s_cmp_gt_u32 s{sCNT}, {SPIN}", "s_cbranch_scc1 main_exit",
                             "s_waitcnt vmcnt(0)", f"s_branch {L0}"]))
    def regload(self, r, z):
        self.a(f"s_add_u32 s{sT0}, s{sFLG}, {5*8192}\n v_mov_b32 v{z}, 0")
        return self.vm(f"buffer_load_dword v{r}, v{z}, {WS}, s{sT0} offen sc1")
    def load_gemm(self, issue, la=LA, side=None, tag=None):
        side = side or {}
        seqs = {}
        if tag: self.ts(tag)
        ni = 3
        for c in range(ni): seqs[c] = issue(c)
        self.run(side.get(-1, []))
        if tag: self.ts(tag)
        for c in range(8):
            self.wait_vm(seqs[c])
            self.run(side.get((c, 'pre'), []))
            if tag: self.ts(tag)
            self.bar()
            for _ in range(2 if c < 2 else 1):
                if ni < 8: seqs[ni] = issue(ni); ni += 1
            self.run(side.get(c, []))
    def cons_gemm(self, areg, ACC, BP, side=None, prewait=None, defer=None, tag=None):
        a = self.a
        side = {k: list(v) for k, v in (side or {}).items()}
        work = [[(2*c+s, jt) for s in range(2) for jt in range(4) if not (defer and defer(2*c+s) == jt)] for c in range(8)]
        if defer: work += [[(ks, defer(ks)) for ks in range(8)], [(ks, defer(ks)) for ks in range(8, 16)]]
        nch = len(work); rs = {}; started = set()
        def read(c, i):
            ks, jt = work[c][i]
            rs[(c, i)] = self.ld(f"ds_read_b128 {vr(BP+4*i)}, v{vB} offset:{4096*ks + 256*jt}")
        if tag: self.ts(tag)
        self.bar()
        for i in range(len(work[0])): read(0, i)
        if tag: self.ts(tag)
        for c in range(nch):
            nxt = c + 1 < nch
            if c + 1 < 8 or (c + 1 == 8 and defer): self.bar()
            if prewait: prewait(c)
            items = side.pop(c, [])
            n = len(work[c]); nn = len(work[c+1]) if nxt else 0
            per = -(-len(items) // n)
            for i in range(n, nn): read(c+1, i)
            for i in range(n):
                ks, jt = work[c][i]
                if i % 2 == 0: self.wait_ld(rs[(c, min(i+1, n-1))])
                cc = vr(ACC+4*jt) if jt in started else "0"
                started.add(jt)
                a(f"v_mfma_f32_16x16x32_bf16 {vr(ACC+4*jt)}, {areg(ks)}, {vr(BP+4*i)}, {cc}")
                if i < nn: read(c+1, i)
                for _ in range(per):
                    if items: items.pop(0)()
            if tag: self.ts(tag)
        assert not side
    def gelu(self, acc, cs, S, out, t, pk):
        I = []
        if pk:
            for i in (0, 2): I.append(f"v_pk_fma_f32 {P(acc+i)}, {P(S)}, {P(cs+i)}, {P(acc+i)} op_sel_hi:[0,1,1] neg_lo:[1,0,0] neg_hi:[1,0,0]")
            for i in (0, 2): I.append(f"v_pk_mul_f32 {P(t+i)}, {P(acc+i)}, {P(acc+i)}")
            for i in (0, 2): I.append(f"v_pk_fma_f32 {P(t+i)}, {P(t+i)}, {P(S+2)}, {P(S+2)} op_sel:[0,1,0] op_sel_hi:[1,1,0]")
            for i in (0, 2): I.append(f"v_pk_mul_f32 {P(t+i)}, {P(t+i)}, {P(acc+i)}")
            for i in range(4): I.append(f"v_exp_f32 v{t+i}, v{t+i}")
            for i in (0, 2): I.append(f"v_pk_fma_f32 {P(t+i)}, {P(t+i)}, {P(S)}, {P(S)} op_sel:[0,1,1] op_sel_hi:[1,1,1]")
            for i in range(4): I.append(f"v_rcp_f32 v{t+i}, v{t+i}")
            for i in (0, 2): I.append(f"v_pk_mul_f32 {P(acc+i)}, {P(acc+i)}, {P(t+i)}")
        else:
            for i in range(4): I.append(f"v_fma_f32 v{acc+i}, -v{S}, v{cs+i}, v{acc+i}")
            for i in range(4): I.append(f"v_mul_f32 v{t+i}, v{acc+i}, v{acc+i}")
            for i in range(4): I.append(f"v_fma_f32 v{t+i}, v{t+i}, v{S+3}, v{S+2}")
            for i in range(4): I.append(f"v_mul_f32 v{t+i}, v{t+i}, v{acc+i}")
            for i in range(4): I.append(f"v_exp_f32 v{t+i}, v{t+i}")
            for i in range(4): I.append(f"v_fma_f32 v{t+i}, v{t+i}, v{S+1}, v{S+1}")
            for i in range(4): I.append(f"v_rcp_f32 v{t+i}, v{t+i}")
            for i in range(4): I.append(f"v_mul_f32 v{acc+i}, v{acc+i}, v{t+i}")
        return I + [f"v_cvt_pk_bf16_f32 v{out}, v{acc}, v{acc+1}", f"v_cvt_pk_bf16_f32 v{out+1}, v{acc+2}, v{acc+3}"]
    def gelu2(self, x, y, t, pk):
        p, q = self.gelu(*x, t, pk), self.gelu(*y, t+4, pk)
        return [z for pair in zip(p, q) for z in pair]
    def colsum(self, areg, dst, ones):
        for i in range(4): self.a(f"v_mov_b32 v{ones+i}, 0x3f803f80")
        for ks in range(16):
            self.a(f"v_mfma_f32_16x16x32_bf16 {vr(dst)}, {areg(ks)}, {vr(ones)}, {'0' if ks == 0 else vr(dst)}")
    def unpack(self, src, dst): self.a(f"v_lshlrev_b32 v{dst}, 16, v{src}\n v_and_b32 v{dst+1}, 0xffff0000, v{src}")
    def lds2reg(self, dst, n, va):
        for i in range(n): self.ld(f"ds_read_b128 {dst(i)}, v{va} offset:{1024*i}")
    def stat_reads(self, STAT, va, order, R1=None):
        it = []
        for jt in range(4):
            if order: x = f"ds_read_b128 {vr(STAT+4*jt)}, v{va+(jt>>1)} offset:{256*(jt&1)}"
            else: x = f"ds_read_b128 {vr(STAT+4*jt)}, v{va} offset:{256*jt}"
            it.append(lambda x=x: setattr(self, 'stseq', self.ld(x)))
        if R1 is not None:
            for jt in range(4):
                it.append(lambda jt=jt: setattr(self, 'stseq', self.ld(f"ds_read_b32 v{R1+jt}, v{va} offset:{1024 + 256*jt}")))
        return it

class Main:
    def __init__(self, dbg=False, tags=('main',), opt=None):
        self.dbg = dbg; self.opt = opt or {}
        self.C = Stream('C', dbg, tags); self.H = Stream('H', dbg, tags)
    def sync_check(self): assert self.C.nbar == self.H.nbar, (self.C.nbar, self.H.nbar)

    def prologue(self):
        C, H = self.C, self.H; a = C.a
        a(".text\n.globl main_kernel\n.p2align 12\n.type main_kernel,@function")
        a.label("main_kernel")
        a(f"""
    s_cmp_ge_u32 s2, 256
    s_cbranch_scc1 main_exit
    s_load_dwordx2 s[4:5], s[0:1], 96
    s_load_dwordx2 s[8:9], s[0:1], 0
    s_load_dwordx2 s[12:13], s[0:1], 80
    s_load_dwordx2 s[{sPP}:{sPP+1}], s[0:1], 32
    s_load_dwordx8 s[{sPP+2}:{sPP+9}], s[0:1], 48""")
        if self.dbg:
            a(f"{'s_memtime' if self.dbg == 'cyc' else 's_memrealtime'} s[70:71]"); C.nts = H.nts = 1
        a(f"""
    v_lshrrev_b32 v1, 6, v0
    v_and_b32 v{vLANE}, 63, v0
    v_readfirstlane_b32 s{sW8}, v1
    s_and_b32 s{sT0}, s2, 7
    s_lshr_b32 s{sT1}, s2, 3
    s_lshl_b32 s{sGRP}, s{sT0}, 2
    s_lshr_b32 s{sT2}, s{sT1}, 3
    s_add_u32 s{sGRP}, s{sGRP}, s{sT2}
    s_and_b32 s{sMEM}, s{sT1}, 7
    s_and_b32 s{sW}, s{sW8}, 3
    s_mul_i32 s{sAR}, s{sGRP}, {GA:#x}
    s_lshl_b32 s{sNT}, s{sMEM}, 2
    s_add_u32 s{sNT}, s{sNT}, s{sW}
    v_lshlrev_b32 v{vL16}, 4, v{vLANE}
    s_mov_b32 s6, {WS_USED:#x}
    s_mov_b32 s7, 0x20000""")
        C.set_act(XN); C.set_wbase(WQ, 16)
        a(f"""
    s_cmp_ge_u32 s{sW8}, 4
    s_cbranch_scc1 H_entry
    s_waitcnt lgkmcnt(0)
    s_and_b32 s5, s5, 0xffff""")
        H.a(".p2align 8"); H.a.label("H_entry")
        self.prep_setup()
        H.a("s_waitcnt lgkmcnt(0)\n s_and_b32 s5, s5, 0xffff")
    def setup_common(self, S, t):
        S.a(f"""
    s_and_b32 s9, s9, 0xffff
    s_mov_b32 s10, {2048*1024:#x}
    s_mov_b32 s11, 0x20000
    s_and_b32 s13, s13, 0xffff
    s_mov_b32 s14, {2048*1024:#x}
    s_mov_b32 s15, 0x20000
    s_getreg_b32 s{sXCC}, hwreg(HW_REG_XCC_ID, 0, 3)
    v_and_b32 v{t}, 15, v{vLANE}                  ; t
    v_lshrrev_b32 v{t+1}, 4, v{vLANE}             ; g
    v_lshlrev_b32 v{vB}, 10, v{t+1}
    v_lshl_add_u32 v{vB}, v{t}, 4, v{vB}
    v_add_u32 v{vB}, {ACT}, v{vB}                 ; ACT + g*1024 + t*16
    v_lshrrev_b32 v{vD}, 1, v{t+1}
    v_lshlrev_b32 v{vD}, 10, v{vD}
    v_lshl_add_u32 v{vD}, v{t}, 4, v{vD}
    v_and_b32 v{t+2}, 1, v{t+1}
    v_lshl_add_u32 v{vD}, v{t+2}, 3, v{vD}        ; (g>>1)*1024 + t*16 + (g&1)*8
    s_lshl_b32 s{sT0}, s{sNT}, 2
    v_mov_b32 v{vMYF}, s{sT0}
    s_lshl_b32 s{sFLG}, s{sGRP}, 8
    s_add_u32 s{sFLG}, s{sFLG}, {FLAGS:#x}
    v_lshlrev_b32 v{t+2}, 10, v{t}
    v_lshl_add_u32 v{vXO}, v{t+1}, 3, v{t+2}      ; t*1024 + g*8
    s_and_b32 s{sORD}, s{sW}, 1
    s_lshl_b32 s{sORD}, s{sORD}, 9""")

    cT = 6
    S0, S1, NEGM, OA, OB, QA, QB, vIDX, vKA, vVA, vREG = 24, 40, 56, 72, 88, 16, 20, 13, 14, 15, 11
    KVR = 104
    NB = 1
    def qstage(self):
        C, H = self.C, self.H; a = C.a; t = self.cT
        WQR, QACC, QBP = 192, 24, 40
        wq = [f() for f in C.frags(16, sPF, dst=V(WQR), sc="")]
        a(f"v_lshlrev_b32 v{t+4}, 3, v{vLANE}\n s_mov_b32 s{sT0}, {KMAX:#x}")
        kseq = C.vm(f"buffer_load_dwordx2 v[128:129], v{t+4}, {WS}, s{sT0} offen")
        self.setup_common(C, t)
        a(f"""
    s_mov_b32 s40, 0xffff
    s_mov_b32 s41, 0xffff
    v_mov_b32 v{self.vIDX}, 0xdddddddd
    v_mov_b32 v{self.vKA}, v{vL16}
    v_lshrrev_b32 v{t+1}, 5, v{vLANE}
    v_lshlrev_b32 v{t+1}, 8, v{t+1}
    v_lshl_add_u32 v{self.vVA}, v{t}, 4, v{t+1}   ; hA*256 + d*16""")
        for i in range(32): a(f"v_mov_b32 v{self.OA+i}, 0")
        for b in range(2*self.NB):
            if self.KVR + 12*b + 12 <= WQR:
                for i in range(8): a(f"v_mov_b32 v{self.KVR+12*b+4+i}, 0x3f803f80")
        k = 128
        C.wait_vm(kseq)
        a(f"v_max_f32 v{k}, v{k}, v{k+1}")
        for r in (8, 4, 2, 1): a(f"v_max_f32_dpp v{k}, v{k}, v{k} row_ror:{r} row_mask:0xf bank_mask:0xf")
        a(f"""
    v_mov_b32 v{k+1}, v{k}
    v_permlane16_swap_b32 v{k}, v{k+1}
    v_max_f32 v{k}, v{k}, v{k+1}
    v_mov_b32 v{k+1}, v{k}
    v_permlane32_swap_b32 v{k}, v{k+1}
    v_max_f32 v{k}, v{k}, v{k+1}
    v_sqrt_f32 v{k}, v{k}
    v_mul_f32 v{k}, {f32(-1.001)}, v{k}
    s_mov_b32 s{sT0}, {f32(QSCALE)}
    s_mov_b32 s{sT1}, {f32(QSCALE)}""")
        C.cons_gemm(V(WQR), QACC, QBP, tag="q")
        C.ts()
        QA, QB = self.QA, self.QB
        for i in range(8): a(f"v_pk_mul_f32 {P(QACC+2*i)}, {P(QACC+2*i)}, s[{sT0}:{sT1}]")
        for jt in range(4):
            a(f"v_cvt_pk_bf16_f32 v{QA+2*jt}, v{QACC+4*jt}, v{QACC+4*jt+1}")
            a(f"v_cvt_pk_bf16_f32 v{QA+2*jt+1}, v{QACC+4*jt+2}, v{QACC+4*jt+3}")
        a(f"v_mov_b32 v{t}, 0\n v_mov_b32 v{t+1}, 0")
        for q in (QA, QB): a(f"v_permlane16_swap_b32 v{q}, v{q+2}\n v_permlane16_swap_b32 v{q+1}, v{q+3}")
        for i in range(4): a(f"v_dot2_f32_bf16 v{t}, v{QA+i}, v{QA+i}, v{t}\n v_dot2_f32_bf16 v{t+1}, v{QB+i}, v{QB+i}, v{t+1}")
        for b in range(2*self.NB):
            if self.KVR + 12*b + 12 > WQR:
                for i in range(8): a(f"v_mov_b32 v{self.KVR+12*b+4+i}, 0x3f803f80")
        a(f"""
    v_permlane32_swap_b32 v{t}, v{t+1}
    v_add_f32 v{t}, v{t}, v{t+1}
    v_mov_b32 v{t+1}, v{t}
    v_permlane32_swap_b32 v{t}, v{t+1}
    v_max_f32 v{t}, v{t}, v{t+1}
    v_sqrt_f32 v{t}, v{t}
    v_mul_f32 v{self.NEGM}, v{t}, v{k}""")
        for i in range(1, 16): a(f"v_mov_b32 v{self.NEGM+i}, v{self.NEGM}")
        def first():
            self.setup_common(H, 16)
            H.a(f"s_lshl_b32 s{sPL}, s{sW}, 12\n s_add_u32 s{sW4}, s{sPL}, {KV:#x}")
            H.a(f"v_mov_b32 v{self.PV+7}, {HI + 32764}\n v_mov_b32 v7, 0\n ds_write_b32 v{self.PV+7}, v7\n s_waitcnt lgkmcnt(0)")
        H.load_gemm(H.act_issue(sc=""), side={-1: [first], 2: [lambda: self.kv(1)], 3: [lambda: self.kv(1)], 4: [self.prep_load]})
        self.kv01 = self.kvseq
        self.sync_check()
    def kv(self, n):
        H = self.H
        for r in range(n):
            H.a(f"s_mov_b32 m0, s{sPL}")
            for i in range(4): self.kvseq = H.vm(f"buffer_load_dwordx4 v{vL16}, {WS}, s{sW4} offen offset:{1024*i} lds")
            H.a(f"s_add_u32 s{sW4}, s{sW4}, 16384\n s_add_u32 s{sPL}, s{sPL}, 16384")

    PV = 20
    def prep_setup(self):
        H = self.H; a = H.a; v = self.PV
        T0, T1, T2, T3 = sT0, sT1, sT2, sT3
        def std(q, dst, base, o):
            a(f"""
    s_lshr_b32 s{T1}, s{q}, 3
    s_and_b32 s{T2}, s{q}, 7
    s_lshl_b32 s{o}, s{T1}, 15
    s_lshl_b32 s{T3}, s{T2}, 7
    s_add_u32 s{o}, s{o}, s{T3}
    s_lshl_b32 s{T3}, s{sW}, 13
    s_add_u32 s{o}, s{o}, s{T3}""")
            if dst is not None:
                a(f"""
    s_lshl_b32 s{T2}, s{T2}, 2
    s_add_u32 s{T2}, s{T2}, s{sW}
    s_lshl_b32 s{T2}, s{T2}, 4
    s_add_u32 s{T2}, s{T2}, s{T1}
    s_lshl_b32 s{dst}, s{T2}, 10
    s_add_u32 s{dst}, s{dst}, {base}""")
        def w4t(q, i):
            std(q, None, None, sPS+i)
            a(f"""
    s_mul_i32 s{T2}, s{T2}, 56
    s_add_u32 s{T2}, s{T2}, s{T1}
    s_lshl_b32 s{T2}, s{T2}, 2
    s_mul_i32 s{T1}, s{T1}, 9363
    s_lshr_b32 s{T1}, s{T1}, 16
    s_sub_u32 s{T1}, s{sW}, s{T1}
    s_and_b32 s{T1}, s{T1}, 3
    s_add_u32 s{T2}, s{T2}, s{T1}
    s_lshl_b32 s{sPD+i}, s{T2}, 10
    s_add_u32 s{sPD+i}, s{sPD+i}, {W4:#x}""")
        def w3t(q, i):
            a(f"""
    s_mul_i32 s{T1}, s{q}, 2341
    s_lshr_b32 s{T1}, s{T1}, 16                   ; ks = q/28
    s_mul_i32 s{T2}, s{T1}, 28
    s_sub_u32 s{T2}, s{q}, s{T2}                  ; nb
    s_lshl_b32 s{T3}, s{T1}, 2
    s_add_u32 s{T3}, s{T3}, s{sW}
    s_mul_i32 s{sPS+i}, s{T3}, {8*3584}
    s_lshl_b32 s{T3}, s{T2}, 7
    s_add_u32 s{sPS+i}, s{sPS+i}, s{T3}
    s_lshl_b32 s{T2}, s{T2}, 2
    s_add_u32 s{T2}, s{T2}, s{sW}
    s_lshl_b32 s{T2}, s{T2}, 4
    s_add_u32 s{T2}, s{T2}, s{T1}
    s_lshl_b32 s{sPD+i}, s{T2}, 10
    s_add_u32 s{sPD+i}, s{sPD+i}, {W3:#x}""")
        w3t(2, 0); w4t(2, 1)
        L, Le = H.lab("pwo"), H.lab("pend")
        a(f"""
    v_lshrrev_b32 v{v+3}, 3, v{vLANE}
    v_and_b32 v{v+4}, 7, v{vLANE}
    v_lshlrev_b32 v{v+4}, 4, v{v+4}
    v_lshl_add_u32 v{v}, v{v+3}, 10, v{v+4}
    v_mul_u32_u24 v{v+1}, 3584, v{v+3}
    v_add_u32 v{v+1}, v{v+1}, v{v+4}
    v_bfe_u32 v{v+3}, v{vLANE}, 2, 2
    v_lshlrev_b32 v{v+3}, 7, v{v+3}
    v_and_b32 v{v+4}, 3, v{vLANE}
    v_lshl_add_u32 v{v+3}, v{v+4}, 3, v{v+3}
    s_lshl_b32 s{T0}, s{sW}, 5
    s_add_u32 s{T0}, s{T0}, {HI}
    v_add_u32 v{v+6}, s{T0}, v{v+3}
    v_lshrrev_b32 v{v+4}, 4, v{vLANE}
    v_lshl_add_u32 v{v+3}, v{v+4}, 10, v{v+6}
    s_cmp_ge_u32 s2, 192
    s_cbranch_scc1 {L}
    s_add_u32 s{T0}, s2, 256""")
        w3t(T0, 2); w4t(T0, 3)
        a(f"v_mov_b32 v{v+2}, v{v+1}\n v_mov_b32 v{v+4}, v{v+3}\n v_add_u32 v{v+5}, 512, v{v+3}\n s_branch {Le}")
        a.label(L)
        a(f"s_sub_u32 s{T0}, s2, 192"); std(T0, sPD+2, WO, sPS+2)
        a(f"s_sub_u32 s{T0}, s2, 128"); std(T0, sPD+3, WO, sPS+3)
        a(f"""
    v_mov_b32 v{v+2}, v{v}
    v_lshrrev_b32 v{v+5}, 1, v{v+4}
    v_lshl_add_u32 v{v+6}, v{v+5}, 11, v{v+6}
    v_and_b32 v{v+5}, 1, v{v+4}
    v_lshl_add_u32 v{v+4}, v{v+5}, 9, v{v+6}
    v_add_u32 v{v+5}, 1024, v{v+4}""")
        a.label(Le)
        a(f"s_and_b32 s{T0}, s2, 127"); std(T0, sPD+4, W1, sPS+4)
        a(f"s_lshr_b32 s{T0}, s2, 7\n s_lshl_b32 s{T0}, s{T0}, 19\n s_add_u32 s{sPD+4}, s{sPD+4}, s{T0}")
    def prep_load(self):
        H = self.H; a = H.a; v = self.PV
        PR = f"s[{sPR}:{sPR+3}]"
        wo, w1, w2, w3, w4 = (f"s[{sPP+2*i}:{sPP+2*i+1}]" for i in range(5))
        big, small = 0x1c0000, 0x80000
        a(f"s_mov_b32 s{sPR+3}, 0x20000\n s_lshl_b32 s{sT0}, s{sW}, 10\n s_add_u32 s{sT0}, s{sT0}, {HI}")
        for i in range(5):
            if i < 2: a(f"s_mov_b64 s[{sPR}:{sPR+1}], {(w3, w4)[i]}\n s_mov_b32 s{sPR+2}, {big:#x}")
            elif i < 4:
                a(f"s_mov_b32 s{sT1}, {small:#x}\n s_cmp_ge_u32 s2, 192\n s_cselect_b64 s[{sPR}:{sPR+1}], {wo}, {(w3, w4)[i-2]}\n s_cselect_b32 s{sPR+2}, s{sT1}, {big:#x}")
            else: a(f"s_cmp_ge_u32 s2, 128\n s_cselect_b64 s[{sPR}:{sPR+1}], {w2}, {w1}\n s_mov_b32 s{sPR+2}, {small:#x}")
            a(f"s_and_b32 s{sPR+1}, s{sPR+1}, 0xffff\n s_add_u32 m0, s{sT0}, {4096*i}")
            self.prepseq = H.vm(f"buffer_load_dwordx4 v{(v+1, v, v+2, v, v)[i]}, {PR}, s{sPS+i} offen lds")

    hXT, hACC, hBP = 8, 16, 32
    hRES, hSTAT, hCS1, hR1, hTMP, hCS3, hX = 64, 80, 96, 100, 104, 112, 120
    UB = (28, 68, 82, 96)
    def attention(self):
        C, H = self.C, self.H; a = C.a
        S0, S1, NEGM, OA, OB, QA, QB, vIDX, vKA, vVA = self.S0, self.S1, self.NEGM, self.OA, self.OB, self.QA, self.QB, self.vIDX, self.vKA, self.vVA
        kf = lambda t: self.KVR + 12*(t & 1)
        C.ts("at"); C.bar(); C.ts("at")
        a("s_setprio 1")
        def rdK(t): a(f"ds_read_b128 {vr(kf(t))}, v{vKA} offset:{(t&31)*2048}")
        def rdV(t):
            a(f"s_mov_b64 exec, {sVM}")
            a(f"ds_read_b128 {vr(kf(t)+4)}, v{vVA} offset:{(t&31)*2048+1024}")
            a(f"ds_read_b128 {vr(kf(t)+8)}, v{vVA} offset:{(t&31)*2048+1536}")
            a("s_mov_b64 exec, -1")
        def qk(u): a(f"v_mfma_f32_32x32x16_bf16 {vr((S0,S1)[u&1],16)}, {vr(kf(u>>1))}, {vr((QA,QB)[u&1])}, {vr(NEGM,16)}")
        def pv(u, h): a(f"v_smfmac_f32_32x32x32_bf16 {vr((OA,OB)[u&1],16)}, {vr(kf(u>>1)+4+4*h)}, {vr((S0,S1)[u&1]+8*h,8)}, v{vIDX}")
        def ex(u, lo, hi):
            for i in range(lo, hi): a(f"v_exp_f32 v{(S0,S1)[u&1]+i}, v{(S0,S1)[u&1]+i}")
        x = self.cT
        a(f"s_lshl_b32 s{sT0}, s{sW}, 13\n s_add_u32 s{sT0}, s{sT0}, {HI}\n v_add_u32 v{x}, s{sT0}, v{vL16}\n s_lshl_b32 s{sT0}, s{sW}, 14\n v_add_u32 v{x+1}, s{sT0}, v{vL16}")
        plan = {}
        for ub, f0, n, va in ((self.UB[1], 0, 8, x), (self.UB[2], 8, 16, x+1), (self.UB[3], 24, 8, x)):
            for i in range(n): plan.setdefault(ub + 1 + 2*(i // 4), []).append(f"ds_read_b128 {vr(128+4*(f0+i))}, v{va} offset:{1024*i}")
        rdK(0); rdV(0); rdK(1)
        a("s_waitcnt lgkmcnt(3)")
        qk(0)
        for u in range(128):
            t, q = u >> 1, u & 1
            if u % 8 == 0: C.ts("at")
            ex(u, 0, 2)
            if u > 0: pv(u-1, 1)
            ex(u, 2, 5)
            if u + 1 < 128: qk(u+1)
            if u in self.UB: C.bar()
            if q == 0:
                if t + 1 < 64:
                    if t + 1 == 32: a(f"v_add_u32 v{vVA}, 0x10000, v{vVA}")
                    rdV(t+1)
                if t + 2 < 64:
                    if t + 2 == 32: a(f"v_add_u32 v{vKA}, 0x10000, v{vKA}")
                    rdK(t+2)
            for y in plan.pop(u, []): a(y)
            if u == 40: rseq = C.regload(self.vREG, self.cT+6)
            ex(u, 5, 10)
            if q == 0: a(f"s_waitcnt lgkmcnt({3 if t + 2 < 64 else (2 if t + 1 < 64 else 0)})")
            pv(u, 0)
            ex(u, 10, 16)
        assert not plan
        pv(127, 1)
        C.ts(); C.ts("at")
        t = self.cT
        C.wait_vm(rseq); C.regcheck(self.vREG, t+6)
        a(f"""
    v_lshrrev_b32 v{t+1}, 5, v{vLANE}
    v_lshlrev_b32 v{t+1}, 10, v{t+1}
    v_and_b32 v{t+2}, 31, v{vLANE}
    v_lshl_add_u32 v{t+4}, v{t+2}, 4, v{t+1}""")
        C.tile_soff(sT1, O_)
        a(f"v_min_f32 v{t}, v{OA+8}, v{OB+8}\n v_cmp_nle_f32 vcc, {f32(2.0**-60)}, v{t}\n s_cbranch_vccnz attn_redo")
        a.label("attn_done")
        a(f"v_rcp_f32 v{t+2}, v{OA+8}\n v_rcp_f32 v{t+6}, v{OB+8}")
        for o, r in ((OA, t+2), (OB, t+6)):
            for i in range(4): a(f"v_pk_mul_f32 {P(o+2*i)}, {P(o+2*i)}, {P(r)} op_sel_hi:[1,0]")
            for i in range(4): a(f"v_cvt_pk_bf16_f32 v{o+i}, v{o+2*i}, v{o+2*i+1}")
        C.setvcc()
        C.cstore([f"buffer_store_dwordx4 {vr(OA)}, v{t+4}, {WS}, s{sT1} offen", f"buffer_store_dwordx4 {vr(OB)}, v{t+4}, {WS}, s{sT1} offen offset:512"])
        a("s_setprio 0")
        C.set_act(O_)
        a(f"v_and_b32 v{self.cF}, 31, v{vLANE}\n v_lshlrev_b32 v{self.cF}, 2, v{self.cF}")
        C.flag(0, t)
        C.ts()
        a = H.a; v = self.PV; d = v + 8
        H.wait_vm(self.kv01); H.bar()
        L = H.lab("noreg")
        a(f"""
    s_cmp_lg_u32 s{sW}, 0
    s_cbranch_scc1 {L}
    s_lshl_b32 s{sT0}, s{sXCC}, 2
    s_lshl_b32 s{sT0}, 1, s{sT0}
    v_mov_b32 v6, s{sT0}
    s_add_u32 s{sT0}, s{sFLG}, {5*8192}
    s_mov_b64 exec, 1
    buffer_atomic_add v6, v7, {WS}, s{sT0} offen sc1
    s_mov_b64 exec, -1""")
        a.label(L)
        self.kv(2)
        CW = v + 7
        def spin(n):
            L = H.lab("hs")
            a(f"s_mov_b32 s{sCNT}, 0")
            a.label(L)
            a(f"""
    s_sleep 1
    ds_read_b32 v6, v{CW}
    s_add_u32 s{sCNT}, s{sCNT}, 1
    s_cmp_gt_u32 s{sCNT}, {SPIN*16}
    s_cbranch_scc1 main_exit
    s_waitcnt lgkmcnt(0)
    v_cmp_gt_u32 vcc, {n}, v6
    s_cbranch_vccnz {L}""")
        def count(n): a(f"v_mov_b32 v6, {n}\n s_mov_b64 exec, 1\n ds_add_u32 v{CW}, v6\n s_mov_b64 exec, -1")
        H.wait_vm(self.prepseq); count(1); spin(4)
        for i in range(5):
            if i in (2, 3):
                a(f"ds_read_b64_tr_b16 {P(d+4*i)}, v{v+4} offset:{4096*i}\n ds_read_b64_tr_b16 {P(d+4*i+2)}, v{v+5} offset:{4096*i}")
            else:
                a(f"ds_read_b64_tr_b16 {P(d+4*i)}, v{v+3} offset:{4096*i}\n ds_read_b64_tr_b16 {P(d+4*i+2)}, v{v+3} offset:{4096*i+512}")
        for i in range(5):
            a(f"s_waitcnt lgkmcnt({8-2*i})")
            pst = H.vm(f"buffer_store_dwordx4 {vr(d+4*i)}, v{vL16}, {WS}, s{sPD+i} offen sc1")
        self.kv(4)
        H.wait_vm(pst); count(1)
        TA, TD = v, v+1
        a(f"v_lshlrev_b32 v{TA}, 7, v{vLANE}")
        L = H.lab("nopf")
        a(f"s_cmp_lg_u32 s{sW}, 3\n s_cbranch_scc1 {L}")
        spin(8)
        a(f"""
    s_lshl_b32 s{sT0}, s2, 2
    s_add_u32 s{sT0}, s{sT0}, {PFLAG:#x}
    v_mov_b32 v6, 1
    s_mov_b64 exec, 1
    buffer_store_dword v6, v7, {WS}, s{sT0} offen sc1
    s_mov_b64 exec, -1""")
        a.label(L)
        H.ts("h")
        H.wait_vm(self.kvseq); H.bar()
        L0, L1, L2 = H.lab("pchk"), H.lab("pwait"), H.lab("pok")
        a(f"s_mov_b32 s{sPS}, {PFLAG:#x}\n s_mov_b32 s{sCNT}, 0\n s_cmp_lg_u32 s{sW}, 3\n s_cbranch_scc1 {L1}")
        a.label(L0)
        a(f"""
    buffer_load_dwordx4 {vr(d)}, v{vL16}, {WS}, s{sPS} offen sc1
    s_add_u32 s{sCNT}, s{sCNT}, 1
    s_cmp_gt_u32 s{sCNT}, {SPIN}
    s_cbranch_scc1 main_exit
    s_waitcnt vmcnt(0)
    v_min3_u32 v{d}, v{d}, v{d+1}, v{d+2}
    v_min_u32 v{d}, v{d}, v{d+3}
    v_cmp_ne_u32 vcc, 1, v{d}
    s_sleep 4
    s_cbranch_vccnz {L0}""")
        count(16); spin(27)
        a(f"s_branch {L2}")
        a.label(L1)
        spin(24); count(1)
        a.label(L2)
        def code_touch():
            L = H.lab("pc")
            a(f"s_getpc_b64 s[36:37]")
            a.label(L)
            a(f"""
    s_sub_u32 s36, s36, {L}-main_kernel
    s_subb_u32 s37, s37, 0
    s_and_b32 s{sT1}, s{sGRP}, 3
    s_lshl_b32 s{sT1}, s{sT1}, 5
    s_add_u32 s{sT1}, s{sT1}, s{sNT}
    s_lshl_b32 s{sT1}, s{sT1}, 9
    v_and_b32 v{v+2}, 0x1ff, v{TA}
    v_add_u32 v{v+2}, s{sT1}, v{v+2}
    v_min_u32 v{v+2}, main_end-main_kernel-4, v{v+2}""")
            H.vm(f"global_load_dword v{TD}, v{v+2}, s[36:37]")
        code_touch()
        H.ts("h")
        hi = f"s_lshl_b32 s{sPL}, s{sW}, 13\n s_add_u32 s{sPL}, s{sPL}, {HI}"
        lo = f"s_lshl_b32 s{sPL}, s{sW}, 14"
        for base, reg in ((WO, 64), (W1, 128)):
            H.set_wbase(base, 16, sW4); H.run(H.frags(16, sW4, dst=V(reg)))
        H.set_w3(0); a(hi)
        H.run(H.frags(8, sPF, lds=sPL)); r1 = H.lastf
        H.set_wbase(W2, 16, sW4); H.run(H.frags(16, sW4, dst=V(192)))
        H.ts("h")
        H.wait_vm(r1); H.bar()
        a(lo); H.run(H.frags(16, sPF, lds=sPL)); r2 = H.lastf
        H.xo_soff(sT1)
        for jt in range(4):
            H.vm(f"buffer_load_dwordx2 {P(self.hXT+2*jt)}, v{vXO}, {XS}, s{sT1} offen")
            if jt < 3: a(f"s_add_u32 s{sT1}, s{sT1}, 16384")
        code_touch()
        H.wait_vm(r2); H.ts("h"); H.bar()
        a(hi); H.run(H.frags(8, sPF, lds=sPL)); r3 = H.lastf
        a(f"""
    s_and_b32 s{sT1}, s{sGRP}, 3
    s_lshl_b32 s{sTCH}, s{sT1}, 5
    s_add_u32 s{sTCH}, s{sTCH}, s{sNT}
    s_mul_i32 s{sTCH}, s{sTCH}, 14336
    s_add_u32 s{sTCH}, s{sTCH}, {W4:#x}""")
        H.vm(f"buffer_load_dword v{TD}, v{TA}, {WS}, s{sTCH} offen")
        H.wait_vm(r3); H.ts("h"); H.bar()
        a(lo); H.run(H.frags(16, sPF, lds=sPL))
        a(f"s_add_u32 s{sTCH}, s{sTCH}, 6144")
        H.vm(f"buffer_load_dword v{TD}, v{TA}, {WS}, s{sTCH} offen")
        H.set_w3(3)
        a(f"s_lshl_b32 s{sT5}, s{sORD}, 4\n s_add_u32 s{sPF}, s{sPF}, s{sT5}\n s_lshl_b32 s{sT1}, s{sT1}, 11\n s_add_u32 s{sPF}, s{sPF}, s{sT1}\n s_mov_b32 exec_lo, 0xffff\n s_mov_b32 exec_hi, 0")
        H.vm(f"buffer_load_dword v{TD}, v{TA}, {WS}, s{sPF} offen")
        a("s_mov_b64 exec, -1")
        a(f"s_mul_i32 s{sTCH}, s{sNT}, {TOUCHN*128}\n s_add_u32 s{sTCH}, s{sTCH}, s{sAR}\n s_add_u32 s{sTCH}, s{sTCH}, {TOUCH0:#x}")
        H.vm(f"buffer_load_dword v{TD}, v{TA}, {WS}, s{sTCH} offen")
        a(f"s_mov_b32 exec_lo, 0x7ff\n s_mov_b32 exec_hi, 0\n s_add_u32 s{sTCH}, s{sTCH}, 8192")
        H.vm(f"buffer_load_dword v{TD}, v{TA}, {WS}, s{sTCH} offen")
        a("s_mov_b64 exec, -1")
        code_touch()
        H.regload(6, 7)
        a("s_waitcnt vmcnt(0)")
        H.regcheck(6, 7)
        H.setvcc()
        H.tile_soff(sT4, H_)
        a("s_setprio 1")
        H.ts("h")
        self.sync_check()

    def fallback(self):
        C = self.C; a = C.a; t = self.cT
        S0, NEGM, KF, VF, vVA, vIDX = self.S0, self.NEGM, self.KVR, self.KVR+4, self.vVA, self.vIDX
        a.label("attn_redo")
        a(f"v_and_b32 v{vVA}, 0x3ff, v{vVA}")
        for (Q, O) in ((self.QA, self.OA), (self.QB, self.OB)):
            L1, L2 = C.lab("fb1"), C.lab("fb2")
            a(f"v_mov_b32 v{t}, 0xff800000\n s_mov_b32 s{sT2}, {KV:#x}")
            a.label(L1)
            a(f"""
    buffer_load_dwordx4 {vr(KF)}, v{vL16}, {WS}, s{sT2} offen
    s_add_u32 s{sT2}, s{sT2}, 2048
    s_waitcnt vmcnt(0)
    v_mfma_f32_32x32x16_bf16 {vr(S0,16)}, {vr(KF)}, {vr(Q)}, 0""")
            for i in range(8): a(f"v_max3_f32 v{t}, v{t}, v{S0+2*i}, v{S0+2*i+1}")
            a(f"""
    s_cmp_lt_u32 s{sT2}, {KV+131072:#x}
    s_cbranch_scc1 {L1}
    v_mov_b32 v{t+1}, v{t}
    v_permlane32_swap_b32 v{t}, v{t+1}
    v_max_f32 v{t}, v{t}, v{t+1}
    v_sub_f32 v{t}, 0, v{t}""")
            for i in range(16): a(f"v_mov_b32 v{NEGM+i}, v{t}")
            for i in range(16): a(f"v_mov_b32 v{O+i}, 0")
            a(f"s_mov_b32 s{sT2}, {KV:#x}")
            a.label(L2)
            a(f"""
    buffer_load_dwordx4 {vr(KF)}, v{vL16}, {WS}, s{sT2} offen
    s_mov_b64 exec, {sVM}
    buffer_load_dwordx4 {vr(VF)}, v{vVA}, {WS}, s{sT2} offen offset:1024
    buffer_load_dwordx4 {vr(VF+4)}, v{vVA}, {WS}, s{sT2} offen offset:1536
    s_mov_b64 exec, -1
    s_add_u32 s{sT2}, s{sT2}, 2048
    s_waitcnt vmcnt(0)
    v_mfma_f32_32x32x16_bf16 {vr(S0,16)}, {vr(KF)}, {vr(Q)}, {vr(NEGM,16)}""")
            for i in range(16): a(f"v_exp_f32 v{S0+i}, v{S0+i}")
            a(f"""
    v_smfmac_f32_32x32x32_bf16 {vr(O,16)}, {vr(VF)}, {vr(S0,8)}, v{vIDX}
    v_smfmac_f32_32x32x32_bf16 {vr(O,16)}, {vr(VF+4)}, {vr(S0+8,8)}, v{vIDX}
    s_nop 15
    s_cmp_lt_u32 s{sT2}, {KV+131072:#x}
    s_cbranch_scc1 {L2}""")
        a("s_nop 15\n s_branch attn_done")

    cF, cP = 120, 122
    cACC, cBP, cSTAT, cCS3, cTMP, cOUT = 16, 48, 80, 96, 104, 112
    def prod_stats(self, vals):
        H = self.H; a = H.a; t = self.hTMP; x = self.hBP
        for jt in range(4): a(f"v_pk_add_f32 {P(x+2*jt)}, {P(vals+4*jt)}, {P(vals+4*jt+2)}")
        for jt in range(4): a(f"v_pk_mul_f32 {P(x+8+2*jt)}, {P(vals+4*jt)}, {P(vals+4*jt)}")
        for jt in range(4): a(f"v_pk_fma_f32 {P(x+8+2*jt)}, {P(vals+4*jt+2)}, {P(vals+4*jt+2)}, {P(x+8+2*jt)}")
        for jt in range(8): a(f"v_add_f32 v{t+jt}, v{x+2*jt}, v{x+2*jt+1}")
        a(f"""
    s_lshl_b32 s{sT5}, s{sW}, 10
    s_add_u32 s{sT5}, s{sT5}, {XST}
    v_permlane32_swap_b32 v{t}, v{t+2}
    v_permlane32_swap_b32 v{t+1}, v{t+3}
    v_permlane32_swap_b32 v{t+4}, v{t+6}
    v_permlane32_swap_b32 v{t+5}, v{t+7}
    v_pk_add_f32 {P(t)}, {P(t)}, {P(t+2)}
    v_pk_add_f32 {P(t+4)}, {P(t+4)}, {P(t+6)}
    v_lshl_add_u32 v{x}, v{vLANE}, 3, s{sT5}
    v_permlane16_swap_b32 v{t}, v{t+1}
    v_permlane16_swap_b32 v{t+4}, v{t+5}
    v_add_f32 v{t}, v{t}, v{t+1}
    v_add_f32 v{t+1}, v{t+4}, v{t+5}
    ds_write_b64 v{x}, {P(t)}""")
    def stat_publish(self, base):
        C = self.C; a = C.a; t = self.cTMP; x = self.cT
        a(f"""
    v_lshlrev_b32 v{x}, 3, v{vLANE}
    v_add_u32 v{x}, {XST}, v{x}
    s_lshl_b32 s{sT2}, s{sMEM}, 3
    s_add_u32 s{sT2}, s{sT2}, s{sAR}
    s_add_u32 s{sT2}, s{sT2}, {base:#x}
    v_lshlrev_b32 v{x+1}, 6, v{vLANE}
    s_lshl_b32 s{sT5}, s{sW}, 4
    s_lshl_b64 s[36:37], 0xffff, s{sT5}""")
        C.bar()
        for p in range(4): a(f"ds_read_b64 {P(t+2*p)}, v{x} offset:{1024*p}")
        def fin():
            a(f"""
    s_waitcnt lgkmcnt(0)
    v_pk_add_f32 {P(t)}, {P(t)}, {P(t+2)}
    v_pk_add_f32 {P(t+4)}, {P(t+4)}, {P(t+6)}
    v_pk_add_f32 {P(t)}, {P(t)}, {P(t+4)}
    s_mov_b64 exec, s[36:37]""")
            C.cstore([f"buffer_store_dwordx2 {P(t)}, v{x+1}, {WS}, s{sT2} offen"])
            a("s_mov_b64 exec, -1")
        self.pubfin = fin
    def cons_stats(self, gbase, scr, double):
        C = self.C; a = C.a; x = self.cT; o = self.cSTAT; S = o + 8
        st = {}
        ltxt = f"buffer_load_dwordx4 {vr(o)}, v{x+1}, {WS}, s{sT1} offen sc1"
        def load():
            a(f"""
    s_lshl_b32 s{sT1}, s{sW}, 10
    s_add_u32 s{sT1}, s{sT1}, s{sAR}
    s_add_u32 s{sT1}, s{sT1}, {gbase:#x}
    v_and_b32 v{x+3}, 0xff, v{vL16}
    v_and_b32 v{x+1}, 0x30, v{vLANE}
    v_lshl_add_u32 v{x+1}, v{x+3}, 2, v{x+1}
    s_lshl_b32 s{sT5}, s{sW}, 8
    s_add_u32 s{sT5}, s{sT5}, {scr}
    v_add_u32 v{x+2}, s{sT5}, v{x+3}""")
            st['g'] = C.vm(ltxt)
        def check():
            L0, Lr, L2 = C.lab("schk"), C.lab("sre"), C.lab("sok")
            C.wait_vm(st['g'])
            a.label(L0)
            a(f"v_max_u32 v{o+4}, v{o+1}, v{o+3}\n v_cmp_eq_u32 vcc, -1, v{o+4}\n s_cbranch_vccnz {Lr}")
            a.label(L2)
            C.ool.append((Lr, [f"s_add_u32 s{sCNT}, s{sCNT}, 1", f"s_cmp_gt_u32 s{sCNT}, {SPIN}", f"s_cbranch_scc1 {L2}",
                               ltxt, "s_waitcnt vmcnt(0)", f"s_branch {L0}"]))
            C.setvcc()
        txt = f"""
    v_add_f32 v{o}, v{o}, v{o+2}
    v_add_f32 v{o+1}, v{o+1}, v{o+3}
    v_permlane32_swap_b32 v{o}, v{o+1}
    v_add_f32 v{o}, v{o}, v{o+1}
    v_mov_b32 v{o+1}, v{o}
    v_permlane16_swap_b32 v{o}, v{o+1}
    v_add_f32 v{o}, v{o}, v{o+1}
    v_mul_f32 v{o}, 0x3b000000, v{o}
    v_mov_b32 v{o+1}, v{o}
    v_permlane32_swap_b32 v{o}, v{o+1}
    v_mov_b32 v{S}, v{o}
    v_fma_f32 v{o+1}, -v{o}, v{o}, v{o+1}
    v_max_f32 v{o+1}, 0, v{o+1}
    v_add_f32 v{o+2}, 0x3727c5ac, v{o+1}
    v_rsq_f32 v{o+3}, v{o+2}"""
        R = o+3
        if double:
            txt += f"""
    v_mul_f32 v{o+4}, v{o+3}, v{o+3}
    ds_write_b32 v{x+2}, v{o+3} offset:1024
    v_mul_f32 v{o+4}, v{o+4}, v{o+1}
    v_add_f32 v{o+4}, 0x3727c5ac, v{o+4}
    v_rsq_f32 v{o+4}, v{o+4}
    v_mul_f32 v{o+5}, v{o+3}, v{o+4}"""
            R = o+5
        txt += f"""
    v_rcp_f32 v{S+1}, v{R}
    v_mul_f32 v{S+2}, {f32(GC1)}, v{R}
    v_mul_f32 v{o+6}, v{R}, v{R}
    v_mul_f32 v{o+6}, {f32(0.044715)}, v{o+6}
    v_mul_f32 v{S+3}, v{S+2}, v{o+6}
    ds_write_b128 v{x+2}, {vr(S)}"""
        comp = [check]
        for y in txt.split("\n"):
            y = y.strip()
            if not y: continue
            if y.startswith("ds_"): comp.append(lambda y=y: setattr(C, 'wseq', C.ld(y)))
            else: comp.append(lambda y=y: a(y))
        return load, comp
    def tile_store(self, jt):
        return f"buffer_store_dwordx2 {P(self.hXT+2*jt)}, v{vD}, {WS}, s{sT4} offen offset:{256*jt}"
    def add_pack(self, jt, src):
        a = self.H.a; A_ = self.hACC
        for h in (0, 2): a(f"v_pk_add_f32 {P(A_+4*jt+h)}, {P(A_+4*jt+h)}, {P(src+h)}")
        for h in (0, 1): a(f"v_cvt_pk_bf16_f32 v{self.hXT+2*jt+h}, v{A_+4*jt+2*h}, v{A_+4*jt+2*h+1}")

    def s3(self):
        C, H = self.C, self.H
        C.set_w3(3)
        C.a(f"s_lshl_b32 s{sT5}, s{sORD}, 4\n s_add_u32 s{sPF}, s{sPF}, s{sT5}\n s_lshl_b32 s{sPL}, s{sW}, 13\n s_add_u32 s{sPL}, s{sPL}, {HI}")
        C.colsum(V(128), self.cCS3, self.cOUT)
        C.poll(0, self.cF, self.cP, mid=[lambda: C.colsum(V(192), self.cCS3+4, self.cOUT)]); C.ts()
        st3 = C.frags(8, sPF, lds=sPL)
        C.load_gemm(C.act_issue(), side={3: st3[:2], 4: st3[2:4], 5: st3[4:6], 6: st3[6:]}, tag='s3')
        C.set_act(H_)
        self.stat_publish(ST1)
        H.cons_gemm(V(64), self.hACC, self.hBP, tag="s3"); H.ts()
        for i in range(8): H.unpack(self.hXT+i, self.hRES+2*i)
        for jt in range(4): self.add_pack(jt, self.hRES+4*jt)
        H.cstore([self.tile_store(jt) for jt in range(4)])
        self.prod_stats(self.hACC)
        for i in range(8): H.unpack(self.hXT+i, self.hRES+2*i)
        H.flag(1, 6); H.ts()
        H.a("s_waitcnt lgkmcnt(0)"); H.bar()
        self.sync_check()
    def s4(self):
        C, H = self.C, self.H; a = H.a
        C.poll(1, self.cF, self.cP, mid=[self.pubfin]); C.ts()
        load, comp = self.cons_stats(ST1, ACT, True)
        C.load_gemm(C.act_issue(), side={-1: [load], 3: comp[:7], 4: comp[7:14], 5: comp[14:21], 6: comp[21:],
                                         (7, 'pre'): [lambda: C.wait_ld(C.wseq)]}, tag='s4')
        H.colsum(V(128), self.hCS1, self.hX)
        H.tile_soff(sT4, T_)
        a(f"""
    v_lshrrev_b32 v6, 5, v{vLANE}
    v_lshlrev_b32 v6, 5, v6
    v_and_b32 v7, 0x1f, v{vD}
    v_add_u32 v{self.hX+4}, v6, v7                ; halo: (g>>1)*32 + (t&1)*16 + (g&1)*8
    s_lshl_b32 s{sT3}, s{sNT}, 6
    s_add_u32 s{sT3}, s{sT3}, s{sAR}
    v_and_b32 v7, 0xff, v{vL16}
    v_add_u32 v7, {ACT}, v7""")
        sr = H.stat_reads(self.hSTAT, 7, False, self.hR1)
        H.cons_gemm(V(128), self.hACC, self.hBP, side={6: sr[:4], 7: sr[4:]}, tag="s4"); H.ts()
        A_, XT, ST = self.hACC, self.hXT, self.hSTAT
        H.wait_ld(H.stseq)
        for x in H.gelu2((A_, self.hCS1, ST, XT), (A_+12, self.hCS1, ST+12, XT+6), self.hTMP, True): a(x)
        Lh, L1 = H.lab("nohalo"), H.lab("side1")
        a(f"""
    s_bitcmp1_b32 s{sMEM}, 1
    s_cbranch_scc1 {L1}
    s_cmp_eq_u32 s{sGRP}, 31
    s_cbranch_scc1 {Lh}
    s_add_u32 s{sT3}, s{sT3}, {HALO+GA:#x}
    s_mov_b32 exec_lo, 0xc000c000
    s_mov_b32 exec_hi, 0xc000c000
    buffer_store_dwordx2 {P(XT+6)}, v{self.hX+4}, {WS}, s{sT3} offen sc1
    s_branch {Lh}""")
        a.label(L1)
        a(f"""
    s_cmp_eq_u32 s{sGRP}, 0
    s_cbranch_scc1 {Lh}
    s_sub_u32 s{sT3}, s{sT3}, {GA-HALO:#x}
    s_mov_b32 exec_lo, 0x00030003
    s_mov_b32 exec_hi, 0x00030003
    buffer_store_dwordx2 {P(XT)}, v{self.hX+4}, {WS}, s{sT3} offen sc1""")
        a.label(Lh)
        a("s_mov_b64 exec, -1")
        H.cstore([self.tile_store(0), self.tile_store(3)])
        for x in H.gelu2((A_+4, self.hCS1, ST+4, XT+2), (A_+8, self.hCS1, ST+8, XT+4), self.hTMP, True): a(x)
        H.cstore([self.tile_store(1), self.tile_store(2)])
        H.flag(2, 6); H.ts()
        self.sync_check()
    def s5(self):
        C, H = self.C, self.H; a = C.a; x = self.cT; T = self.cTMP
        C.set_act(T_)
        a(f"""
    s_lshl_b32 s{sT1}, s{sW}, 9
    s_add_u32 s{sT1}, s{sT1}, s{sAR}
    s_add_u32 s{sT1}, s{sT1}, {HALO:#x}
    v_and_b32 v{x+2}, 0x1ff, v{vL16}
    s_cmp_eq_u32 s{sW}, 0
    s_cselect_b32 s{sT3}, -16, 0
    s_cselect_b32 s{sT4}, 0xaaaaaaaa, -1
    s_cmp_eq_u32 s{sW}, 1
    s_cselect_b32 s{sT3}, {63*16}, s{sT3}
    s_cselect_b32 s{sT4}, 0x55555555, s{sT4}
    s_cmp_eq_u32 s{sW}, 3
    s_cselect_b32 s{sT3}, {62*16}, s{sT3}
    s_lshl_b32 s{sT2}, s{sW}, 14
    s_add_u32 s{sT3}, s{sT3}, s{sT2}
    s_add_u32 s{sT3}, s{sT3}, {ACT}
    v_lshrrev_b32 v{x+1}, 1, v{vLANE}
    v_lshlrev_b32 v{x+1}, 10, v{x+1}
    v_and_b32 v{x+3}, 1, v{vLANE}
    v_lshl_add_u32 v{x+1}, v{x+3}, 4, v{x+1}
    v_add_u32 v{x+1}, s{sT3}, v{x+1}
    s_lshl_b32 s{sPF}, s{sMEM}, 3
    s_add_u32 s{sPF}, s{sPF}, s{sW}
    s_mul_i32 s{sPF}, s{sPF}, {28*1024}
    s_add_u32 s{sPF}, s{sPF}, {W4 + 20*1024:#x}
    s_lshl_b32 s{sPL}, s{sW}, 13""")
        C.poll(2, self.cF, self.cP, mid=[]); C.ts()
        shifts = (1, -1, 2, -2)
        masks = ((0xfffffffe, 0xffffffff), (0xffffffff, 0x7fffffff), (0xfffffffc, 0xffffffff), (0xffffffff, 0x3fffffff))
        def pre(c):
            g = c >> 1
            if c & 1 == 0: a(f"s_add_i32 s{sG}, s{sG}, {-16*shifts[g] + (16*shifts[g-1] if g else 0)}")
            a(f"s_mov_b32 exec_lo, {masks[g][0]:#x}" if masks[g][0] != 0xffffffff else f"s_mov_b32 exec_hi, {masks[g][1]:#x}")
        hs = {}
        hload = f"buffer_load_dwordx4 {vr(T)}, v{x+2}, {WS}, s{sT1} offen sc1"
        stg = C.frags(8, sPF, lds=sPL)
        C.load_gemm(C.act_issue(pre=pre, post=lambda c: a("s_mov_b64 exec, -1")),
                    side={2: [lambda: hs.__setitem__(0, C.vm(hload))], 3: stg[:2], 4: stg[2:4], 5: stg[4:6], 6: stg[6:]}, tag='s5')
        L0, Lr, L2 = C.lab("hchk"), C.lab("hre"), C.lab("hok")
        C.wait_vm(hs[0])
        a.label(L0)
        a(f"v_max_u32 v{x}, v{T}, v{T+1}\n v_max3_u32 v{x}, v{x}, v{T+2}, v{T+3}\n v_cmp_eq_u32 vcc, -1, v{x}\n s_cbranch_vccnz {Lr}")
        a.label(L2)
        C.ool.append((Lr, [f"s_add_u32 s{sCNT}, s{sCNT}, 1", f"s_cmp_gt_u32 s{sCNT}, {SPIN}", f"s_cbranch_scc1 {L2}",
                           hload, "s_waitcnt vmcnt(0)", f"s_branch {L0}"]))
        C.setvcc()
        a(f"s_mov_b32 exec_lo, s{sT4}\n s_mov_b32 exec_hi, 0\n ds_write_b128 v{x+1}, {vr(T)}\n s_mov_b64 exec, -1\n s_waitcnt lgkmcnt(0)")
        C.bar()
        C.set_act(X1)
        self.stat_publish(ST3)
        a = H.a; ST, RES, R1 = self.hSTAT, self.hRES, self.hR1
        a(f"s_lshl_b32 s{sT1}, s{sW}, 14\n v_add_u32 v7, s{sT1}, v{vL16}")
        H.lds2reg(V(128), 16, 7)
        for jt in range(4):
            a(f"v_mul_f32 v6, v{ST+4*jt}, v{R1+jt}")
            for i in range(4): a(f"v_fma_f32 v{ST+4*jt+i}, v{RES+4*jt+i}, v{R1+jt}, -v6")
        H.tile_soff(sT4, X1)
        a("s_waitcnt lgkmcnt(0)")
        H.colsum(V(128), self.hCS3, self.hX)
        H.cons_gemm(V(192), self.hACC, self.hBP, defer=lambda ks: 3 if (ks >> 2) & 1 else 0, tag="s5"); H.ts()
        for jt in range(4): self.add_pack(jt, ST+4*jt)
        H.cstore([self.tile_store(jt) for jt in range(4)])
        self.prod_stats(self.hACC)
        for i in range(8): H.unpack(self.hXT+i, self.hACC+2*i)
        H.flag(3, 6)
        a("s_waitcnt lgkmcnt(0)"); H.bar()
        for i in range(8): a(f"v_pk_add_f32 {P(RES+2*i)}, {P(RES+2*i)}, {P(self.hACC+2*i)}")
        H.ts()
        self.sync_check()

    def s6(self):
        C, H = self.C, self.H
        PK = bool(self.opt.get("s6pk"))
        for S in (C, H):
            isC = S is C; a = S.a
            vBa, vBb, vDa, vDb, vS = (124, 125, 126, 127, 14) if isC else (self.hCS1, self.hCS1+1, self.hCS1+2, self.hCS1+3, self.hR1)
            ACCS = [self.cACC + 4*i for i in range(8)] if isC else [self.hACC + 4*i for i in range(4)] + [self.hX, self.hX+4]
            BP = self.cBP if isC else self.hBP
            ST, CS, TMP, OUT = (self.cSTAT, self.cCS3, self.cTMP, self.cOUT) if isC else (self.hSTAT, self.hCS3, self.hTMP, self.hXT)
            W = (V(128), V(192))
            def setup():
                a(f"""
    v_xor_b32 v{vBa}, s{sORD}, v{vB}
    v_xor_b32 v{vBb}, 512, v{vBa}
    v_xor_b32 v{vDa}, s{sORD}, v{vD}
    v_xor_b32 v{vDb}, 512, v{vDa}
    v_and_b32 v{vS}, 0xff, v{vL16}
    v_add_u32 v{vS}, {HI}, v{vS}
    v_xor_b32 v{vS}, s{sORD}, v{vS}
    v_xor_b32 v{vS+1}, 512, v{vS}
    s_mul_i32 s{sU0}, s{sMEM}, {14*2048}
    s_add_u32 s{sU0}, s{sU0}, s{sAR}
    s_add_u32 s{sU0}, s{sU0}, {U_:#x}
    s_lshr_b32 s{sU1}, s{sW}, 1
    s_add_u32 s{sU1}, s{sU1}, 12
    s_lshl_b32 s{sU1}, s{sU1}, 11
    s_add_u32 s{sU1}, s{sU1}, s{sU0}
    s_mul_i32 s{sT3}, s{sW}, {3*2048}
    s_add_u32 s{sU0}, s{sU0}, s{sT3}
    s_lshl_b32 s{sW4}, s{sMEM}, 3
    s_add_u32 s{sW4}, s{sW4}, s{sW8}
    s_lshl_b32 s{sT3}, s{sW4}, 2
    v_mov_b32 v{vMYF}, s{sT3}
    s_mul_i32 s{sW4}, s{sW4}, {28*1024}
    s_add_u32 s{sW4}, s{sW4}, {W4:#x}
    s_add_u32 s{sPF}, s{sW4}, {20*1024}
    s_lshl_b32 s{sPL}, s{sW8}, 13""")
                if isC: a(f"s_add_u32 s{sU1}, s{sU0}, 2048")
                else: a(f"s_add_u32 s{sU0}, s{sU0}, 4096")
            tilesA = [(j, n) for j in (0, 1) for n in (0, 1)]
            tilesB = [(j, n) for j in (2, 3) for n in ((0, 1) if isC else (0,))]
            acc = {t: ACCS[i] for i, t in enumerate(tilesA + tilesB)}
            rs = {}
            if isC: slot = lambda s, j: BP + 16*(s & 1) + 4*j
            else: slot = lambda s, j: BP + 4*((2*s + (j & 1)) % 8)
            def rd(s, j): rs[(s, j)] = S.ld(f"ds_read_b128 {vr(slot(s, j))}, v{vBa if j < 2 else vBb} offset:{4096*s + 256*(j&1)}")
            def mf(s, j, n): a(f"v_mfma_f32_16x16x32_bf16 {vr(acc[(j, n)])}, {W[n](s)}, {vr(slot(s, j))}, {'0' if s == 0 else vr(acc[(j, n)])}")
            if isC: wreg = lambda f: vr(128 + 4*(f >> 1) + 64*(f & 1))
            else: wreg = lambda f: vr(192 + 4*f) if f < 16 else vr(128 + 4*(f - 16))
            S.wreg = wreg
            w4 = S.frags(20, sW4, dst=wreg)
            stg = [] if isC else S.frags(8, sPF, lds=sPL)
            sr = S.stat_reads(ST, vS, True)
            def ustore(j, n, r):
                return f"buffer_store_dwordx2 {P(r)}, v{vDa if j < 2 else vDb}, {WS}, s{(sU0, sU1)[n]} offen offset:{256*(j&1)}"
            k2 = [0]
            def gel(t0, t1, pk, extra=()):
                o = OUT + 4*(k2[0] & 1); k2[0] += 1
                z = S.gelu2((acc[t0], CS+4*t0[1], ST+4*t0[0], o), (acc[t1], CS+4*t1[1], ST+4*t1[0], o+2), TMP, pk)
                extra = list(extra)
                for i, y in enumerate(z):
                    a(y)
                    if extra and i % 10 == 5: extra.pop(0)()
                S.run(extra)
                S.cstore([ustore(*t0, o), ustore(*t1, o+2)])
            if isC:
                S.poll(3, self.cF, self.cP, mid=[self.pubfin]); S.ts()
                issue = S.act_issue(); seqs = {}
                for c in range(LA): seqs[c] = issue(c)
                load, comp = self.cons_stats(ST3, HI, False)
                load(); setup()
                S.wait_vm(seqs[0]); S.bar()
                for j in range(4): rd(0, j)
                tiles = tilesA + tilesB
                nb = 1
                for s in range(16):
                    items = {}
                    if s == 1: light = comp[:11]
                    elif s == 2: light = comp[11:]
                    elif s == 4: light = sr
                    else: light = []
                    vmi = []
                    if 4 <= s < 14: vmi += [w4.pop(0), w4.pop(0)]
                    for i, (j, n) in enumerate(tiles):
                        if i % 4 == 0 and nb < 8:
                            S.wait_vm(seqs[nb])
                            if nb == 7: S.wait_ld(S.wseq)
                            S.bar()
                            if nb + LA - 1 < 8: seqs[nb+LA-1] = issue(nb+LA-1)
                            nb += 1
                        if n == 0: S.wait_ld(rs[(s, j)])
                        mf(s, j, n)
                        if n == 1 and s + 1 < 16: rd(s+1, j)
                        S.run(light[i*len(light)//8:(i+1)*len(light)//8])
                        if i % 2 == 0 and vmi: vmi.pop(0)()
                    if s % 4 == 3: S.ts("s6")
                S.wait_ld(S.stseq)
                gel(tiles[0], tiles[1], True); gel(tiles[2], tiles[3], True)
                gel(tiles[4], tiles[5], True); S.ts(); gel(tiles[6], tiles[7], True)
            else:
                a(f"s_and_b32 s{sT1}, s{sW}, 2\n s_lshl_b32 s{sT1}, s{sT1}, 13\n s_add_u32 s{sT1}, s{sT1}, {HI}\n v_add_u32 v7, s{sT1}, v{vL16}")
                S.lds2reg(V(192), 16, 7)
                setup()
                a("s_waitcnt lgkmcnt(0)")
                S.colsum(V(192), CS+4, self.hX)
                S.bar()
                for s in (0, 1):
                    for j in (0, 1): rd(s, j)
                for c in range(8):
                    if c + 1 < 8:
                        S.bar()
                        for s in (2*c+2, 2*c+3):
                            for j in (0, 1): rd(s, j)
                    items = []
                    if c >= 4: items += [w4.pop(0) for _ in range(1)]
                    if c == 7: items += sr
                    for s in (2*c, 2*c+1):
                        for (j, n) in tilesA:
                            if n == 0: S.wait_ld(rs[(s, j)])
                            mf(s, j, n)
                            if items: items.pop(0)()
                S.ts("s6")
                S.wait_ld(S.stseq)
                gel(tilesA[0], tilesA[1], PK, [w4.pop(0) for _ in range(6)]); gel(tilesA[2], tilesA[3], PK, [w4.pop(0) for _ in range(6)])
                S.ts("s6")
                for s in range(3):
                    for j in (2, 3): rd(s, j)
                for s in range(16):
                    if s + 3 < 16:
                        for j in (2, 3): rd(s+3, j)
                    for (j, n) in tilesB:
                        S.wait_ld(rs[(s, j)]); mf(s, j, n)
                    if s % 2 == 0: stg.pop(0)()
                S.ts()
                gel(tilesB[0], tilesB[1], PK, [w4.pop(0) for _ in range(4)])
                a("s_setprio 0")
            assert not w4 and not stg
            S.flag(4, 6); S.ts()
        self.sync_check()

    def s7(self):
        C, H = self.C, self.H
        for S in (C, H):
            isC = S is C; a = S.a
            wreg = S.wreg
            vWr = [8, 9, 10, 11] if isC else [self.hX+4+i for i in range(4)]
            vF8, vPp, vRD = (self.cF, self.cP, 12) if isC else (6, self.hX+2, 7)
            ring = [self.cBP + 4*i for i in range(8)] + ([80 + 4*i for i in range(4)] if isC else [240 + 4*i for i in range(0)])
            if isC: accx = lambda p, m: self.cACC + 16*(p & 1) + 4*m
            else: accx = lambda p, m: (self.hACC + 4*p) if m == 0 else (self.hSTAT + 12*(p & 1) + 4*(m-1))
            if not isC: ring = [self.hBP + 4*i for i in range(8)] + [176 + 4*i for i in range(4)]
            NR = len(ring)
            a(f"s_lshl_b32 s{sT1}, s{sW8}, 13\n v_add_u32 v{vRD}, s{sT1}, v{vL16}")
            S.lds2reg(lambda i: wreg(20+i), 8, vRD)
            a(f"""
    s_mul_i32 s{sB}, s{sW8}, {7*4096}
    s_add_u32 s{sB}, s{sB}, s{sAR}
    s_add_u32 s{sB}, s{sB}, {U_ - ACT:#x}
    v_and_b32 v{vF8}, 7, v{vLANE}
    v_lshlrev_b32 v{vF8}, 2, v{vF8}
    s_lshl_b32 s{sT1}, s{sW8}, 5
    v_add_u32 v{vF8}, s{sT1}, v{vF8}""")
            for m in range(0 if isC else 1, 4):
                a(f"""
    s_add_u32 s{sT1}, s{sW}, {m}
    s_and_b32 s{sT1}, s{sT1}, 3
    s_mul_i32 s{sT1}, s{sT1}, 28672
    s_add_u32 s{sT1}, s{sT1}, {1024*(3+m if isC else m-1)}
    v_add_u32 v{vWr[m]}, s{sT1}, v{vL16}""")
            if not isC:
                S.xo_soff(sT4)
                a(f"s_mul_i32 s{sT1}, s{sW}, 28672")
            a("s_waitcnt lgkmcnt(0)")
            if not isC: a(f"v_add_u32 v{vRD}, s{sT1}, v{vL16}")
            S.bar()
            S.poll(4, vF8, vPp); S.ts()
            seq = {}
            def load(u):
                p, i = u // 7, u % 7
                seq[u] = S.vm(f"buffer_load_dwordx4 {vr(ring[u % NR])}, v{vB}, {WS}, s{sB} offen offset:{256*p} sc1")
                a(f"s_add_u32 s{sB}, s{sB}, 4096" if i < 6 else f"s_sub_u32 s{sB}, s{sB}, {6*4096}")
            Wr = lambda p: [(lambda m=m: S.ld(f"ds_write_b128 v{vWr[m]}, {vr(accx(p, m))} offset:{7168*p}")) for m in range(0 if isC else 1, 4)]
            bar = [lambda: (a("s_waitcnt lgkmcnt(0)"), S.bar())]
            st = {}
            rbuf = lambda p: [self.hSTAT + 12*(p & 1) + 4*k for k in range(3)] + [self.hTMP + 4*k for k in range(4)]
            def Rd(p): return [(lambda k=k: st.__setitem__(p, S.ld(f"ds_read_b128 {vr(rbuf(p)[k])}, v{vRD} offset:{7168*p + 1024*k}"))) for k in range(7)]
            def Ad(p, pk):
                o, r = self.hACC + 4*p, rbuf(p)
                pairs = [(r[0], r[1]), (r[2], r[3]), (r[4], r[5]), (o, r[6]), (r[0], r[2]), (o, r[4]), (o, r[0])]
                ins = []
                for x, y in pairs:
                    if pk: ins += [f"v_pk_add_f32 {P(x+h)}, {P(x+h)}, {P(y+h)}" for h in (0, 2)]
                    else: ins += [f"v_add_f32 v{x+h}, v{x+h}, v{y+h}" for h in range(4)]
                return [lambda: S.wait_ld(st[p])] + [(lambda z=z: a(z)) for z in ins]
            side = {}
            for p in range(3):
                b = 7*(p+1)
                side[b+1] = Wr(p); side[b+2] = bar
                if not isC:
                    side[b+3] = Rd(p); ad = Ad(p, False); side[b+5] = ad[:15]; side[b+6] = ad[15:]
            la = NR - 2
            for u in range(la): load(u)
            for u in range(28):
                p, i = u // 7, u % 7
                S.wait_vm(seq[u])
                items = list(side.get(u, []))
                per = -(-len(items) // 3)
                for m in range(4):
                    a(f"v_mfma_f32_16x16x32_bf16 {vr(accx(p, m))}, {wreg(4*i+m)}, {vr(ring[u % NR])}, {'0' if i == 0 else vr(accx(p, m))}")
                    if m == 0:
                        if u + la < 28: load(u + la)
                    else:
                        for _ in range(per):
                            if items: items.pop(0)()
                if u % 7 == 6: S.ts("s7")
            S.run(Wr(3) + bar)
            S.ts()
            if not isC:
                S.run(Rd(3))
                def epi(jt):
                    self.add_pack(jt, self.hRES+4*jt)
                    a(f"buffer_store_dwordx2 {P(self.hXT+2*jt)}, v{vXO}, {OS}, s{sT4} offen")
                    if jt < 3: a(f"s_add_u32 s{sT4}, s{sT4}, 16384")
                for jt in range(3): epi(jt)
                S.run(Ad(3, True)); epi(3)
        self.sync_check()

    def dump_ts(self, S):
        a = S.a
        a("s_waitcnt vmcnt(0)")
        S.ts()
        a(f"""
    s_waitcnt lgkmcnt(0)
    s_lshl_b32 s{sT0}, s2, 3
    s_add_u32 s{sT0}, s{sT0}, s{sW8}
    s_lshl_b32 s{sT0}, s{sT0}, 7
    s_add_u32 s{sT0}, s{sT0}, {DBG:#x}
    v_mov_b32 v7, 0
    s_mov_b64 exec, 1""")
        assert S.nts <= 28
        for i in range(S.nts):
            a(f"v_mov_b32 v6, s{tsreg(i)}\n buffer_store_dword v6, v7, {WS}, s{sT0} offen offset:{4*i}")
        a(f"v_mov_b32 v6, s{sSLOW}\n buffer_store_dword v6, v7, {WS}, s{sT0} offen offset:124")
        a(f"v_mov_b32 v6, s{sXCC}\n buffer_store_dword v6, v7, {WS}, s{sT0} offen offset:120")

    def gen(self):
        C, H = self.C, self.H
        self.prologue(); self.qstage(); self.attention()
        for name in ("s3", "s4", "s5", "s6", "s7"): getattr(self, name)()
        for S in (C, H):
            if self.dbg: self.dump_ts(S)
            if S is C: S.a.label("main_exit")
            S.a("s_endpgm")
        tail = Asm()
        self.fallback()
        for S in (C, H):
            for L, body in S.ool:
                S.a.label(L)
                for x in body: S.a(x)
        H.a.label("main_end")
        txt = C.a.finish() + H.a.finish()
        txt += """
.section .rodata,"a"
.p2align 6
.amdhsa_kernel main_kernel
  .amdhsa_next_free_vgpr 256
  .amdhsa_next_free_sgpr 102
  .amdhsa_accum_offset 256
  .amdhsa_group_segment_fixed_size 0
  .amdhsa_kernarg_size 104
  .amdhsa_user_sgpr_count 2
  .amdhsa_user_sgpr_kernarg_segment_ptr 1
  .amdhsa_system_sgpr_workgroup_id_x 1
.end_amdhsa_kernel
"""
        return txt
```

```python
import os
SEP = os.environ.get("SEP", "0") == "1"
if SEP:
    GA = 0xA0000
    XN, O_, H_, T_, X1, U_, ST1, ST3 = 0x0, 0x10000, 0x20000, 0x30000, 0x40000, 0x50000, 0x91000, 0x92000
    HALO = 0x90000
    TOUCH0, TOUCHN = 0x10000, 64
else:
    GA = 0x50000
    XN = H_ = X1 = 0x0
    O_ = T_ = U_ = 0x10000
    HALO = 0x48000
    ST1, ST3 = 0x49000, 0x4A000
    TOUCH0, TOUCHN = 0x0, 75
WQ   = 0x1400000
WO   = 0x1480000
W1   = 0x1500000
W2   = 0x1580000
W3   = 0x1600000
W4   = 0x17C0000
KV   = 0x1980000
FLAGS= 0x19A0000
PFLAG = FLAGS + 0x10000
KFLAG = 0x19B8000
TAGW = FLAGS + 0xF000
QST  = 0x19BC000
KMAX = 0x19B8000
DBG  = 0x19C0000
WS_USED = 0x1A40000
SENT = 0xFFFFFFFF
NAME = "sequential_preLN__grouped_kv_mqa__mixer_s_mlp__prompt"
```

```python
import sys
from layout import *
from k1 import gen_k1, K1_GRID, K1_LDS
from k3 import Main as K2, K2_LDS
dbg = "cyc" if "--cyc" in sys.argv else ("--dbg" in sys.argv)
tags = [x[6:] for x in sys.argv if x.startswith('--tag=')] or ['main']
opt = {x[6:]: 1 for x in sys.argv if x.startswith('--opt=')}
out = [x for x in sys.argv[1:] if not x.startswith("--")]
out = out[0] if out else f"cdna_kernels/{NAME}.s"
ref = open(f"cdna_kernels/{NAME}.s.ref").read().split("\n")
hdr = [l for l in ref if l.startswith(";") and "@launch" not in l and "Override" not in l and "grid=ceil" not in l]
hdr = hdr[:14]
txt = "\n".join(hdr) + "\n"
txt += f"; @launch kernel=prep_kernel grid=({opt.get('k1grid') and 160 or K1_GRID},1,1) block=(256,1,1) lds={K1_LDS}\n"
txt += f"; @launch kernel=main_kernel grid=(256,1,1) block=(512,1,1) lds={K2_LDS}\n"
txt += '.amdgcn_target "amdgcn-amd-amdhsa--gfx950"\n'
txt += gen_k1(dbg is True, opt)
txt += K2(dbg=dbg, tags=tags, opt=opt).gen()
open(out, "w").write(txt)
print("wrote", out, len(txt))
```

```python
from asmlib import Asm
from layout import *

def srd(a, base, lo, size):
    a(f"""
    s_mov_b32 s{base}, s{lo}
    s_and_b32 s{base+1}, s{lo+1}, 0xffff
    s_mov_b32 s{base+2}, {size:#x}
    s_mov_b32 s{base+3}, 0x20000""")

NLN = 128
NPREP = 352
K1_GRID = NLN + NPREP
K1_LDS = 40960

def gen_k1(dbg=False, opt={}):
    PS = ' sc1' if opt.get('psc1') else (' nt' if opt.get('pnt') else '')
    XSC = ' sc1' if opt.get('xsc1') else ''
    a = Asm()
    def fin():
        if dbg:
            a(f"""
    s_memrealtime s[60:61]
    s_waitcnt vmcnt(0)
    s_memrealtime s[52:53]
    s_lshl_b32 s54, s2, 2
    s_add_u32 s54, s54, s3
    s_lshl_b32 s54, s54, 5
    s_add_u32 s54, s54, {DBG + 0x40000:#x}
    s_waitcnt lgkmcnt(0)
    v_mov_b32 v88, s50
    v_mov_b32 v89, s52
    v_mov_b32 v90, s56
    v_mov_b32 v91, s58
    v_mov_b32 v93, s60
    v_mov_b32 v92, 0
    s_mov_b64 exec, 1
    buffer_store_dwordx4 v[88:91], v92, s[32:35], s54 offen
    buffer_store_dword v93, v92, s[32:35], s54 offen offset:16""")
        a("s_endpgm")
    a(f"""
.text
.globl prep_kernel
.p2align 8
.type prep_kernel,@function""")
    a.label("prep_kernel")
    a(f"""
    s_cmp_ge_u32 s2, {K1_GRID}
    s_cbranch_scc1 K1_end
    {'s_memrealtime s[50:51]' if dbg else ''}
    s_load_dwordx2 s[4:5], s[0:1], 96         ; ws
    v_lshrrev_b32 v1, 6, v0
    v_and_b32 v2, 63, v0                      ; lane
    s_cmp_lt_u32 s2, {NLN}
    v_readfirstlane_b32 s3, v1                ; wave
    s_cbranch_scc0 K1_prep
    s_load_dwordx2 s[6:7], s[0:1], 0          ; x
    s_load_dwordx4 s[8:11], s[0:1], 16
    s_and_b32 s12, s2, 7
    s_lshr_b32 s13, s2, 3
    s_lshl_b32 s12, s12, 4
    s_add_u32 s12, s12, s13
    v_and_b32 v3, 15, v2                      ; t
    v_lshrrev_b32 v4, 4, v2                   ; g
    v_lshlrev_b32 v5, 10, v3                  ; t*1024
    v_lshl_add_u32 v5, v4, 4, v5              ; + g*16
    s_lshl_b32 s14, s12, 14                   ; tb*16*1024
    s_lshl_b32 s15, s3, 8                     ; w*256
    s_add_u32 s14, s14, s15
    v_lshlrev_b32 v6, 4, v2                   ; lane*16
    s_lshl_b32 s15, s3, 12                    ; w*4096
    s_lshl_b32 s16, s3, 13                    ; w*8192
    s_waitcnt lgkmcnt(0)
    {'s_memrealtime s[56:57]' if dbg else ''}""")
    srd(a, 20, 6, 2048*512*2)
    srd(a, 24, 8, 512*16*2)
    srd(a, 28, 10, 512*16*2)
    srd(a, 32, 4, WS_USED)
    for i in range(4):
        a(f"buffer_load_dwordx4 v[{16+4*i}:{19+4*i}], v5, s[20:23], s14 offen offset:{64*i}")
    a("s_mov_b32 m0, s16")
    for i in range(4):
        a(f"buffer_load_dwordx4 v6, s[24:27], s15 offen offset:{1024*i} lds")
    a("s_add_u32 m0, s16, 4096")
    for i in range(4):
        a(f"buffer_load_dwordx4 v6, s[28:31], s15 offen offset:{1024*i} lds")
    a(f"""
    s_cmp_eq_u32 s3, 2
    s_cbranch_scc0 K1_nohalo
    s_mov_b32 s17, -1
    s_and_b32 s18, s2, 0xfffffffd
    s_cmp_eq_u32 s18, 0
    s_cselect_b32 s17, 0, s17
    s_cmp_eq_u32 s18, 125
    s_cselect_b32 s17, 0, s17
    v_mov_b32 v8, s17
    v_mov_b32 v9, s17
    v_mov_b32 v10, s17
    v_mov_b32 v11, s17
    s_lshr_b32 s18, s2, 2
    s_mul_i32 s18, s18, {GA:#x}
    s_and_b32 s19, s2, 3
    s_lshl_b32 s19, s19, 9
    s_add_u32 s18, s18, s19
    s_add_u32 s18, s18, {HALO:#x}
    s_mov_b32 exec_hi, 0
    buffer_store_dwordx4 v[8:11], v6, s[32:35], s18 offen
    s_mov_b64 exec, -1""")
    a.label("K1_nohalo")
    a(f"""
    s_cmp_eq_u32 s3, 0
    s_cbranch_scc0 K1_nost
    v_mov_b32 v8, -1
    v_mov_b32 v9, -1
    v_mov_b32 v10, -1
    v_mov_b32 v11, -1
    s_lshr_b32 s18, s2, 2
    s_mul_i32 s18, s18, {GA:#x}
    s_and_b32 s19, s2, 3
    s_lshl_b32 s19, s19, 11
    s_add_u32 s18, s18, s19
    s_add_u32 s18, s18, {ST1:#x}
    buffer_store_dwordx4 v[8:11], v6, s[32:35], s18 offen
    buffer_store_dwordx4 v[8:11], v6, s[32:35], s18 offen offset:1024""")
    a.label("K1_nost")
    a(f"""
    s_cmp_eq_u32 s3, 3
    s_cbranch_scc0 K1_noflag
    v_mov_b32 v8, 0
    v_mov_b32 v9, 0
    v_mov_b32 v10, 0
    v_mov_b32 v11, 0
    s_mul_i32 s18, s2, 400
    s_add_u32 s18, s18, {FLAGS:#x}
    s_mov_b64 exec, 0x1ffffff
    buffer_store_dwordx4 v[8:11], v6, s[32:35], s18 offen
    s_mov_b64 exec, -1""")
    a.label("K1_noflag")
    a(f"""
    s_cmp_eq_u32 s3, 1
    s_cbranch_scc0 K1_nopf
    s_getpc_b64 s[36:37]""")
    a.label("K1_pc")
    a(f"""
    s_add_u32 s36, s36, main_kernel-K1_pc
    s_addc_u32 s37, s37, 0
    s_lshl_b32 s18, s13, 13
    v_lshlrev_b32 v8, 7, v2
    v_add_u32 v8, s18, v8
    v_cmp_gt_u32 vcc, main_end-main_kernel, v8
    s_and_saveexec_b64 s[38:39], vcc
    s_cbranch_execz K1_pfskip
    global_load_dword v9, v8, s[36:37]""")
    a.label("K1_pfskip")
    a("s_mov_b64 exec, -1")
    a.label("K1_nopf")
    a(f"""
    v_mov_b32 v12, 0
    v_mov_b32 v13, 0
    v_mov_b32 v14, 0x3f803f80
    s_waitcnt vmcnt(0)
    {'s_memrealtime s[58:59]' if dbg else ''}""")
    for i in range(16):
        a(f"v_dot2_f32_bf16 v12, v{16+i}, v14, v12")
    for i in range(16):
        a(f"v_dot2_f32_bf16 v13, v{16+i}, v{16+i}, v13")
    a(f"""
    v_permlane32_swap_b32 v12, v13
    v_add_f32 v12, v12, v13
    v_mov_b32 v13, v12
    v_permlane16_swap_b32 v12, v13
    v_add_f32 v12, v12, v13
    v_lshrrev_b32 v8, 5, v2
    v_lshlrev_b32 v8, 4, v8
    v_lshl_add_u32 v8, v3, 5, v8              ; t*32 + sq*16
    s_lshl_b32 s17, s3, 2
    v_add_u32 v9, s17, v8
    ds_write_b32 v9, v12 offset:32768
    v_lshlrev_b32 v9, 5, v3
    s_waitcnt lgkmcnt(0)
    s_barrier
    ds_read_b128 v[32:35], v9 offset:32768
    ds_read_b128 v[36:39], v9 offset:32784
    v_bfe_u32 v10, v2, 2, 2
    v_lshl_add_u32 v10, v4, 3, v10
    v_lshlrev_b32 v10, 5, v10
    v_and_b32 v11, 3, v2
    v_lshl_add_u32 v10, v11, 3, v10
    v_add_u32 v10, s16, v10""")
    for m in range(2):
        for s in range(4):
            b = 64 + 16*m + 4*s
            a(f"ds_read_b64_tr_b16 v[{b}:{b+1}], v10 offset:{4096*m + 1024*s}")
            a(f"ds_read_b64_tr_b16 v[{b+2}:{b+3}], v10 offset:{4096*m + 1024*s + 128}")
    a(f"""
    s_waitcnt lgkmcnt(15)
    v_add_f32 v32, v32, v33
    v_add_f32 v34, v34, v35
    v_add_f32 v36, v36, v37
    v_add_f32 v38, v38, v39
    v_add_f32 v32, v32, v34                   ; sum
    v_add_f32 v36, v36, v38                   ; sumsq
    v_mul_f32 v32, 0x3b000000, v32            ; mean
    v_mul_f32 v36, 0x3b000000, v36
    v_fma_f32 v36, -v32, v32, v36             ; var
    v_max_f32 v36, 0, v36
    v_add_f32 v36, 0x3727c5ac, v36            ; + 1e-5
    v_rsq_f32 v36, v36
    v_mul_f32 v32, v32, v36
    v_sub_f32 v32, 0, v32                     ; -mean*rstd""")
    for i in range(16):
        a(f"""
    v_lshlrev_b32 v40, 16, v{16+i}
    v_and_b32 v41, 0xffff0000, v{16+i}
    v_fma_f32 v40, v40, v36, v32
    v_fma_f32 v41, v41, v36, v32
    v_cvt_pk_bf16_f32 v{16+i}, v40, v41""")
    a(f"""
    s_lshr_b32 s17, s12, 2
    s_mul_i32 s17, s17, {GA:#x}
    s_and_b32 s18, s12, 3
    s_lshl_b32 s18, s18, 8
    s_add_u32 s17, s17, s18
    s_lshl_b32 s18, s3, 14
    s_add_u32 s17, s17, s18
    v_lshlrev_b32 v8, 10, v4
    v_lshl_add_u32 v8, v3, 4, v8
    s_waitcnt lgkmcnt(0)""")
    for s in range(4):
        a(f"v_mfma_f32_16x16x32_bf16 v[44:47], v[{64+4*s}:{67+4*s}], v[{16+4*s}:{19+4*s}], {'0' if s == 0 else 'v[44:47]'}")
        a(f"v_mfma_f32_16x16x32_bf16 v[48:51], v[{16+4*s}:{19+4*s}], v[{80+4*s}:{83+4*s}], {'0' if s == 0 else 'v[48:51]'}")
        a(f"buffer_store_dwordx4 v[{16+4*s}:{19+4*s}], v8, s[32:35], s17 offen{XSC}")
        if s < 3: a(f"s_add_u32 s17, s17, 4096")
    a(f"""
    s_barrier
    s_lshl_b32 s17, s3, 10
    v_add_u32 v9, s17, v6
    ds_write_b128 v9, v[44:47]
    ds_write_b128 v9, v[48:51] offset:4096
    s_waitcnt lgkmcnt(0)
    s_barrier
    s_cmp_ge_u32 s3, 2
    s_cbranch_scc1 K1_end
    s_lshl_b32 s17, s3, 12
    v_add_u32 v9, s17, v6
    ds_read_b128 v[44:47], v9
    ds_read_b128 v[48:51], v9 offset:1024
    ds_read_b128 v[52:55], v9 offset:2048
    ds_read_b128 v[56:59], v9 offset:3072
    s_lshr_b32 s17, s12, 1
    s_lshl_b32 s17, s17, 11
    s_add_u32 s17, s17, {KV:#x}
    s_and_b32 s18, s12, 1
    v_lshrrev_b32 v10, 1, v4                  ; hA = g>>1
    v_and_b32 v11, 1, v4
    v_lshlrev_b32 v11, 3, v11
    v_lshl_add_u32 v11, v3, 4, v11            ; (t or d)*16 + (g&1)*8
    s_waitcnt lgkmcnt(0)""")
    for r in range(4):
        a(f"""
    v_add_f32 v{44+r}, v{44+r}, v{48+r}
    v_add_f32 v{52+r}, v{52+r}, v{56+r}
    v_add_f32 v{44+r}, v{44+r}, v{52+r}""")
    a(f"""
    v_cvt_pk_bf16_f32 v48, v44, v45
    v_cvt_pk_bf16_f32 v49, v46, v47
    s_cmp_eq_u32 s3, 0
    s_cbranch_scc0 K1_vstore
    s_lshl_b32 s18, s18, 8
    s_add_u32 s17, s17, s18
    v_lshl_add_u32 v11, v10, 9, v11
    buffer_store_dwordx2 v[48:49], v11, s[32:35], s17 offen
    v_mov_b32 v50, 0
    v_dot2_f32_bf16 v50, v48, v48, v50
    v_dot2_f32_bf16 v50, v49, v49, v50
    v_mov_b32 v51, v50
    v_permlane32_swap_b32 v50, v51
    v_add_f32 v50, v50, v51
    v_mov_b32 v51, v50
    v_permlane16_swap_b32 v50, v51
    v_add_f32 v50, v50, v51
    v_max_f32_dpp v50, v50, v50 row_ror:8 row_mask:0xf bank_mask:0xf
    v_max_f32_dpp v50, v50, v50 row_ror:4 row_mask:0xf bank_mask:0xf
    v_max_f32_dpp v50, v50, v50 row_ror:2 row_mask:0xf bank_mask:0xf
    v_max_f32_dpp v50, v50, v50 row_ror:1 row_mask:0xf bank_mask:0xf
    s_lshl_b32 s18, s12, 2
    s_add_u32 s18, s18, {KMAX:#x}
    v_mov_b32 v51, 0
    s_mov_b64 exec, 1
    buffer_store_dword v50, v51, s[32:35], s18 offen""")
    fin()
    a.label("K1_vstore")
    a(f"""
    s_lshl_b32 s18, s18, 9
    s_add_u32 s17, s17, s18
    v_lshl_add_u32 v11, v10, 8, v11
    buffer_store_dwordx2 v[48:49], v11, s[32:35], s17 offen offset:1024""")
    fin()
    a.label("K1_prep")
    a(f"""
    s_load_dwordx2 s[6:7], s[0:1], 8          ; wq
    s_load_dwordx2 s[8:9], s[0:1], 32         ; wo
    s_load_dwordx8 s[12:19], s[0:1], 48       ; w1 w2 w3 w4
    s_sub_u32 s20, s2, {NLN}                  ; p
    v_lshrrev_b32 v3, 3, v2
    v_and_b32 v4, 7, v2
    v_lshlrev_b32 v4, 4, v4
    v_lshrrev_b32 v7, 4, v2                   ; g
    s_waitcnt lgkmcnt(0)
    {'s_memrealtime s[56:57]' if dbg else ''}
    s_lshr_b32 s21, s20, 5
    s_and_b32 s22, s20, 31                    ; q
    s_mov_b32 s23, 1024
    s_mov_b32 s24, 16                         ; KS
    s_mov_b32 s26, 0x80000
    s_lshl_b32 s25, s21, 19
    s_add_u32 s25, s25, {WQ:#x}               ; dst
    s_cmp_eq_u32 s21, 1
    s_cselect_b64 s[6:7], s[8:9], s[6:7]
    s_cmp_eq_u32 s21, 2
    s_cselect_b64 s[6:7], s[12:13], s[6:7]
    s_cmp_eq_u32 s21, 3
    s_cselect_b64 s[6:7], s[14:15], s[6:7]
    s_cmp_ge_u32 s20, 240
    s_cbranch_scc0 K1_notw4
    s_mov_b64 s[6:7], s[18:19]
    s_sub_u32 s22, s20, 240
    s_mov_b32 s24, 56
    s_mov_b32 s25, {W4:#x}
    s_mov_b32 s26, 0x1c0000""")
    a.label("K1_notw4")
    a(f"""
    s_lshr_b32 s27, s22, 1                    ; ks
    s_and_b32 s28, s22, 1                     ; nq
    s_sub_u32 s29, s20, 128
    s_cmp_lt_u32 s29, 112
    s_cbranch_scc0 K1_notw3
    s_mov_b64 s[6:7], s[16:17]
    s_mov_b32 s23, 3584
    s_mov_b32 s25, {W3:#x}
    s_mov_b32 s26, 0x1c0000
    s_mul_i32 s27, s29, 9363
    s_lshr_b32 s27, s27, 16                   ; q/7
    s_mul_i32 s28, s27, 7
    s_sub_u32 s28, s29, s28""")
    a.label("K1_notw3")
    a(f"""
    s_mov_b32 s40, s6
    s_and_b32 s41, s7, 0xffff
    s_mov_b32 s42, s26
    s_mov_b32 s43, 0x20000""")
    srd(a, 32, 4, WS_USED)
    a(f"""
    v_mul_lo_u32 v5, v3, s23
    v_add_u32 v5, v5, v4
    s_lshl_b32 s30, s27, 5
    s_mul_i32 s30, s30, s23                   ; 32*ks*rowbytes
    s_lshl_b32 s31, s28, 9
    s_add_u32 s30, s30, s31
    s_lshl_b32 s31, s3, 7
    s_add_u32 s30, s30, s31                   ; + nq*512 + w*128
    s_lshl_b32 s31, s23, 3                    ; 8 rows
    s_lshl_b32 s36, s3, 12
    s_mov_b32 m0, s36""")
    for i in range(4):
        a(f"buffer_load_dwordx4 v5, s[40:43], s30 offen lds")
        if i < 3:
            a(f"s_add_u32 s30, s30, s31\n s_add_u32 m0, s36, {1024*(i+1)}")
    a(f"""
    v_lshlrev_b32 v8, 3, v7
    v_lshrrev_b32 v9, 1, v7
    v_lshlrev_b32 v9, 4, v9
    v_and_b32 v10, 1, v7
    v_lshl_add_u32 v9, v10, 2, v9
    s_cmp_eq_u32 s21, 1
    s_cselect_b64 vcc, -1, 0
    s_cselect_b32 s37, 2, 1
    s_lshl_b32 s37, s37, 9
    v_cndmask_b32 v8, v8, v9, vcc
    v_bfe_u32 v9, v2, 2, 2
    v_add_u32 v8, v8, v9
    v_lshlrev_b32 v8, 7, v8
    v_and_b32 v9, 3, v2
    v_lshl_add_u32 v8, v9, 3, v8
    v_add_u32 v8, s36, v8
    v_add_u32 v9, s37, v8
    s_lshl_b32 s38, s28, 2
    s_add_u32 s38, s38, s3                    ; j
    s_mul_i32 s39, s38, s24
    s_add_u32 s39, s39, s27
    s_lshl_b32 s39, s39, 12
    s_lshl_b32 s38, s38, 6
    s_add_u32 s38, s38, s27
    s_lshl_b32 s38, s38, 10                   ; (4j*16 + ks)*1024
    s_lshr_b32 s44, s27, 2
    s_mul_i32 s45, s27, 9363
    s_lshr_b32 s45, s45, 16
    s_cmp_eq_u32 s24, 56
    s_cselect_b32 s44, s45, s44
    s_cmp_lg_u32 s24, 56
    s_cselect_b32 s38, s38, s39
    s_cselect_b32 s44, 0, s44
    s_cselect_b32 s45, 14, 10
    s_add_u32 s38, s38, s25
    v_lshlrev_b32 v6, 4, v2
    s_waitcnt vmcnt(0)
    {'s_memrealtime s[58:59]' if dbg else ''}""")
    for j in range(4):
        a(f"ds_read_b64_tr_b16 v[{16+4*j}:{17+4*j}], v8 offset:{32*j}")
        a(f"ds_read_b64_tr_b16 v[{18+4*j}:{19+4*j}], v9 offset:{32*j}")
    def stores(fl):
        for j in range(4):
            a(f"s_sub_u32 s39, {j}, s44\n s_and_b32 s39, s39, 3\n s_lshl_b32 s39, s39, s45\n s_add_u32 s39, s39, s38")
            a(f"s_waitcnt lgkmcnt({6-2*j})")
            a(f"buffer_store_dwordx4 v[{16+4*j}:{19+4*j}], v6, s[32:35], s39 offen{fl}")
    if PS:
        a("s_cmp_eq_u32 s21, 0\n s_cbranch_scc1 K1_wq")
        stores(PS)
        fin()
        a.label("K1_wq")
    stores("")
    fin()
    a.label("K1_end")
    a("s_endpgm")
    txt = a.finish()
    txt += f"""
.section .rodata,"a"
.p2align 6
.amdhsa_kernel prep_kernel
  .amdhsa_next_free_vgpr 96
  .amdhsa_next_free_sgpr 64
  .amdhsa_accum_offset 96
  .amdhsa_group_segment_fixed_size 0
  .amdhsa_kernarg_size 104
  .amdhsa_user_sgpr_count 2
  .amdhsa_user_sgpr_kernarg_segment_ptr 1
  .amdhsa_system_sgpr_workgroup_id_x 1
.end_amdhsa_kernel
"""
    return txt
```

```python
from asmlib import Asm
from layout import *
import struct

def f32(x):
    return "0x%08x" % struct.unpack('<I', struct.pack('<f', x))[0]

K2_LDS = 163840
LOG2E = 1.4426950408889634
QSCALE = 0.25 * LOG2E
GC1 = -2.0 * 0.7978845608028654 * LOG2E
SPIN = 0x40000
ACT = 65536
XST = ACT + 5*8192 + 256
HI = 131072
LA = 5

sW, sGRP, sMEM, sSLOW, sXCC, sW8 = 3, 16, 17, 18, 45, 44
WS, XS, OS = "s[4:7]", "s[8:11]", "s[12:15]"
sT0, sT1, sT2, sT3, sT4, sT5 = 20, 21, 22, 23, 24, 25
sG, sL, sPF, sCNT, sFLG, sAR = 26, 27, 28, 29, 30, 31
sU0, sU1 = 32, 33
sB = 34
sTCH = 35
sNT, sORD = 38, 39
sVM = "s[40:41]"
sPL, sW4 = 42, 43
sPP, sPR, sPS, sPD = 46, 56, 60, 65
def tsreg(i): return 70 + 2*i if i < 16 else 46 + 2*(i-16)
vLANE, vL16, vB, vD, vMYF, vXO = 0, 1, 2, 3, 4, 5

def vr(b, n=4): return f"v[{b}:{b+n-1}]"
def V(b): return lambda ks: vr(b+4*ks)
def P(r): return f"v[{r}:{r+1}]"

class Stream:
    uid = 0
    def __init__(self, name, dbg, tags):
        self.name, self.dbg, self.tags = name, dbg, tags
        self.a = Asm(); self.nvm = self.nld = self.nts = self.nbar = 0
        self.ool = []; self.nmark = 0; self.seclen = {}
    def vm(self, text):
        self.a(text); self.nvm += 1; return self.nvm - 1
    def wait_vm(self, seq): self.a(f"s_waitcnt vmcnt({min(self.nvm - 1 - seq, 63)})")
    def ld(self, text):
        self.a(text); self.nld += 1; return self.nld - 1
    def wait_ld(self, seq): self.a(f"s_waitcnt lgkmcnt({min(self.nld - 1 - seq, 15)})")
    def bar(self): self.a("s_barrier"); self.nbar += 1
    def ts(self, tag="main"):
        if self.dbg and tag in self.tags:
            self.a(f"{'s_memtime' if self.dbg == 'cyc' else 's_memrealtime'} s[{tsreg(self.nts)}:{tsreg(self.nts)+1}]")
            self.nts += 1
    def lab(self, p):
        Stream.uid += 1; return f"L_{p}_{Stream.uid}"
    def mark(self):
        i = self.nmark; self.nmark += 1
        L = f"M_{self.name}_{i}"
        n = self.seclen.get(L)
        if n is not None and n < 4000:
            self.a(f"s_branch {L}"); self.a(f".p2align 12,,{n + 64}")
        self.a.label(L)
    def E(self, text): return [(lambda x=x: self.a(x)) for x in text.split("\n") if x.strip()]
    def set_wbase(self, base, ks, dst=sPF):
        self.a(f"s_mul_i32 s{dst}, s{sNT}, {ks*1024}\n s_add_u32 s{dst}, s{dst}, {base:#x}")
    def set_w3(self, slot):
        if slot < 3: self.a(f"s_mul_i32 s{sPF}, s{sW}, 3\n s_add_u32 s{sPF}, s{sPF}, {slot}")
        else: self.a(f"s_lshr_b32 s{sPF}, s{sW}, 1\n s_add_u32 s{sPF}, s{sPF}, 12")
        self.a(f"s_mul_i32 s{sT5}, s{sMEM}, 14\n s_add_u32 s{sPF}, s{sPF}, s{sT5}\n s_lshl_b32 s{sPF}, s{sPF}, 14\n s_add_u32 s{sPF}, s{sPF}, {W3:#x}")
    def set_act(self, base):
        self.a(f"s_lshl_b32 s{sL}, s{sW}, 11\n s_add_u32 s{sG}, s{sAR}, s{sL}\n s_add_u32 s{sG}, s{sG}, {base:#x}\n s_add_u32 s{sL}, s{sL}, {ACT}")
    def tile_soff(self, s, base):
        self.a(f"s_lshl_b32 s{s}, s{sNT}, 11\n s_add_u32 s{s}, s{s}, s{sAR}\n s_add_u32 s{s}, s{s}, {base:#x}")
    def xo_soff(self, s):
        self.a(f"s_lshl_b32 s{s}, s{sNT}, 5\n s_lshl_b32 s{sT5}, s{sGRP}, 16\n s_add_u32 s{s}, s{s}, s{sT5}")
    def act_issue(self, sc="sc1", pre=None, post=None):
        def issue(c):
            self.a(f"s_mov_b32 m0, s{sL}")
            if pre: pre(c)
            self.vm(f"buffer_load_dwordx4 v{vL16}, {WS}, s{sG} offen {sc} lds")
            last = self.vm(f"buffer_load_dwordx4 v{vL16}, {WS}, s{sG} offen offset:1024 {sc} lds")
            if post: post(c)
            self.a(f"s_add_u32 s{sG}, s{sG}, 8192\n s_add_u32 s{sL}, s{sL}, 8192")
            return last
        return issue
    def frags(self, n, sreg, dst=None, lds=None, sc="sc1"):
        def mk(i):
            def f():
                if dst is not None:
                    r = self.vm(f"buffer_load_dwordx4 {dst(i)}, v{vL16}, {WS}, s{sreg} offen offset:{1024*(i&3)} {sc}")
                else:
                    self.a(f"s_mov_b32 m0, s{lds}")
                    r = self.vm(f"buffer_load_dwordx4 v{vL16}, {WS}, s{sreg} offen offset:{1024*(i&3)} {sc} lds")
                if i & 3 == 3:
                    self.a(f"s_add_u32 s{sreg}, s{sreg}, 4096")
                    if lds is not None: self.a(f"s_add_u32 s{lds}, s{lds}, 4096")
                self.lastf = r
                return r
            return f
        return [mk(i) for i in range(n)]
    def run(self, items):
        for f in items: f()
    def setvcc(self): self.a(f"s_mov_b64 vcc, s[{sSLOW}:{sSLOW+1}]")
    NT = True
    def cstore(self, st, nt=True):
        Ls, Le = self.lab("cs"), self.lab("ce")
        self.a(f"s_cbranch_vccnz {Ls}")
        for x in st: self.vm(x + (" nt" if nt and self.NT else ""))
        self.a.label(Le)
        self.ool.append((Ls, [x + " sc1" for x in st] + [f"s_branch {Le}"]))
    def flag(self, stage, t, vf=vMYF):
        self.a(f"s_add_u32 s{sT0}, s{sFLG}, {stage*8192}\n v_mov_b32 v{t}, 1\n s_waitcnt vmcnt(0)\n s_mov_b64 exec, 1")
        self.cstore([f"buffer_store_dword v{t}, v{vf}, {WS}, s{sT0} offen"], nt=False)
        self.a("s_mov_b64 exec, -1")
    def poll(self, stage, vf, p0, mid=()):
        a = self.a; L, Ld = self.lab("poll"), self.lab("pdone"); p1 = p0 + 1
        a(f"s_add_u32 s{sT0}, s{sFLG}, {stage*8192}\n s_mov_b32 s{sCNT}, 0")
        q = self.vm(f"buffer_load_dword v{p0}, v{vf}, {WS}, s{sT0} offen sc1")
        self.run(mid)
        self.vm(f"buffer_load_dword v{p1}, v{vf}, {WS}, s{sT0} offen sc1")
        self.wait_vm(q)
        a(f"v_cmp_ne_u32 vcc, 1, v{p0}\n s_cbranch_vccz {Ld}")
        a.label(L)
        a(f"""
    buffer_load_dword v{p0}, v{vf}, {WS}, s{sT0} offen sc1
    s_waitcnt vmcnt(1)
    v_cmp_ne_u32 vcc, 1, v{p1}
    s_add_u32 s{sCNT}, s{sCNT}, 1
    s_cbranch_vccz {Ld}
    buffer_load_dword v{p1}, v{vf}, {WS}, s{sT0} offen sc1
    s_cmp_gt_u32 s{sCNT}, {SPIN}
    s_cbranch_scc1 main_exit
    s_waitcnt vmcnt(1)
    v_cmp_ne_u32 vcc, 1, v{p0}
    s_cbranch_vccnz {L}""")
        a.label(Ld)
        self.setvcc()
    def regcheck(self, r, z):
        a = self.a; L, L0 = self.lab("reg"), self.lab("reg0")
        a(f"s_mov_b32 s{sCNT}, 0")
        a.label(L0)
        a(f"""
    v_readfirstlane_b32 s{sT1}, v{r}
    s_and_b32 s{sT2}, s{sT1}, 0x0f0f0f0f
    s_lshr_b32 s{sT3}, s{sT1}, 4
    s_and_b32 s{sT3}, s{sT3}, 0x0f0f0f0f
    s_add_u32 s{sT2}, s{sT2}, s{sT3}
    s_mul_i32 s{sT2}, s{sT2}, 0x01010101
    s_lshr_b32 s{sT2}, s{sT2}, 24
    s_cmp_lg_u32 s{sT2}, 8
    s_cbranch_scc1 {L}
    s_lshl_b32 s{sT2}, s{sXCC}, 2
    s_lshl_b32 s{sT2}, 8, s{sT2}
    s_cmp_lg_u32 s{sT1}, s{sT2}
    s_cselect_b64 s[{sSLOW}:{sSLOW+1}], -1, 0""")
        self.ool.append((L, [f"s_add_u32 s{sT0}, s{sFLG}, {5*8192}", f"buffer_load_dword v{r}, v{z}, {WS}, s{sT0} offen sc1",
                             f"s_add_u32 s{sCNT}, s{sCNT}, 1", f"s_cmp_gt_u32 s{sCNT}, {SPIN}", "s_cbranch_scc1 main_exit",
                             "s_waitcnt vmcnt(0)", f"s_branch {L0}"]))
    def regload(self, r, z):
        self.a(f"s_add_u32 s{sT0}, s{sFLG}, {5*8192}\n v_mov_b32 v{z}, 0")
        return self.vm(f"buffer_load_dword v{r}, v{z}, {WS}, s{sT0} offen sc1")
    def load_gemm(self, issue, la=LA, side=None, tag=None):
        side = side or {}
        seqs = {}
        if tag: self.ts(tag)
        ni = 3
        for c in range(ni): seqs[c] = issue(c)
        self.run(side.get(-1, []))
        if tag: self.ts(tag)
        for c in range(8):
            self.wait_vm(seqs[c])
            self.run(side.get((c, 'pre'), []))
            if tag: self.ts(tag)
            self.bar()
            for _ in range(2 if c < 2 else 1):
                if ni < 8: seqs[ni] = issue(ni); ni += 1
            self.run(side.get(c, []))
    def cons_gemm(self, areg, ACC, BP, side=None, prewait=None, defer=None, tag=None):
        a = self.a
        side = {k: list(v) for k, v in (side or {}).items()}
        work = [[(2*c+s, jt) for s in range(2) for jt in range(4) if not (defer and defer(2*c+s) == jt)] for c in range(8)]
        if defer: work += [[(ks, defer(ks)) for ks in range(8)], [(ks, defer(ks)) for ks in range(8, 16)]]
        nch = len(work); rs = {}; started = set()
        def read(c, i):
            ks, jt = work[c][i]
            rs[(c, i)] = self.ld(f"ds_read_b128 {vr(BP+4*i)}, v{vB} offset:{4096*ks + 256*jt}")
        if tag: self.ts(tag)
        self.bar()
        for i in range(len(work[0])): read(0, i)
        if tag: self.ts(tag)
        for c in range(nch):
            nxt = c + 1 < nch
            if c + 1 < 8 or (c + 1 == 8 and defer): self.bar()
            if prewait: prewait(c)
            items = side.pop(c, [])
            n = len(work[c]); nn = len(work[c+1]) if nxt else 0
            per = -(-len(items) // n)
            for i in range(n, nn): read(c+1, i)
            for i in range(n):
                ks, jt = work[c][i]
                if i % 2 == 0: self.wait_ld(rs[(c, min(i+1, n-1))])
                cc = vr(ACC+4*jt) if jt in started else "0"
                started.add(jt)
                a(f"v_mfma_f32_16x16x32_bf16 {vr(ACC+4*jt)}, {areg(ks)}, {vr(BP+4*i)}, {cc}")
                if i < nn: read(c+1, i)
                for _ in range(per):
                    if items: items.pop(0)()
            if tag: self.ts(tag)
        assert not side
    def gelu(self, acc, cs, S, out, t, pk):
        I = []
        if pk:
            for i in (0, 2): I.append(f"v_pk_fma_f32 {P(acc+i)}, {P(S)}, {P(cs+i)}, {P(acc+i)} op_sel_hi:[0,1,1] neg_lo:[1,0,0] neg_hi:[1,0,0]")
            for i in (0, 2): I.append(f"v_pk_mul_f32 {P(t+i)}, {P(acc+i)}, {P(acc+i)}")
            for i in (0, 2): I.append(f"v_pk_fma_f32 {P(t+i)}, {P(S+2)}, {P(t+i)}, {P(S+2)} op_sel:[1,0,0] op_sel_hi:[1,1,0]")
            for i in (0, 2): I.append(f"v_pk_mul_f32 {P(t+i)}, {P(t+i)}, {P(acc+i)}")
            for i in range(4): I.append(f"v_exp_f32 v{t+i}, v{t+i}")
            for i in (0, 2): I.append(f"v_pk_fma_f32 {P(t+i)}, {P(S)}, {P(t+i)}, {P(S)} op_sel:[1,0,1] op_sel_hi:[1,1,1]")
            for i in range(4): I.append(f"v_rcp_f32 v{t+i}, v{t+i}")
            for i in (0, 2): I.append(f"v_pk_mul_f32 {P(acc+i)}, {P(acc+i)}, {P(t+i)}")
        else:
            for i in range(4): I.append(f"v_fma_f32 v{acc+i}, -v{S}, v{cs+i}, v{acc+i}")
            for i in range(4): I.append(f"v_mul_f32 v{t+i}, v{acc+i}, v{acc+i}")
            for i in range(4): I.append(f"v_fma_f32 v{t+i}, v{t+i}, v{S+3}, v{S+2}")
            for i in range(4): I.append(f"v_mul_f32 v{t+i}, v{t+i}, v{acc+i}")
            for i in range(4): I.append(f"v_exp_f32 v{t+i}, v{t+i}")
            for i in range(4): I.append(f"v_fma_f32 v{t+i}, v{t+i}, v{S+1}, v{S+1}")
            for i in range(4): I.append(f"v_rcp_f32 v{t+i}, v{t+i}")
            for i in range(4): I.append(f"v_mul_f32 v{acc+i}, v{acc+i}, v{t+i}")
        return I + [f"v_cvt_pk_bf16_f32 v{out}, v{acc}, v{acc+1}", f"v_cvt_pk_bf16_f32 v{out+1}, v{acc+2}, v{acc+3}"]
    def gelu2(self, x, y, t, pk):
        p, q = self.gelu(*x, t, pk), self.gelu(*y, t+4, pk)
        return [z for pair in zip(p, q) for z in pair]
    def colsum(self, areg, dst, ones):
        for i in range(4): self.a(f"v_mov_b32 v{ones+i}, 0x3f803f80")
        for ks in range(16):
            self.a(f"v_mfma_f32_16x16x32_bf16 {vr(dst)}, {areg(ks)}, {vr(ones)}, {'0' if ks == 0 else vr(dst)}")
    def unpack(self, src, dst): self.a(f"v_lshlrev_b32 v{dst}, 16, v{src}\n v_and_b32 v{dst+1}, 0xffff0000, v{src}")
    def lds2reg(self, dst, n, va):
        for i in range(n): self.ld(f"ds_read_b128 {dst(i)}, v{va} offset:{1024*i}")
    def stat_reads(self, STAT, va, order, R1=None):
        it = []
        for jt in range(4):
            if order: x = f"ds_read_b128 {vr(STAT+4*jt)}, v{va+(jt>>1)} offset:{256*(jt&1)}"
            else: x = f"ds_read_b128 {vr(STAT+4*jt)}, v{va} offset:{256*jt}"
            it.append(lambda x=x: setattr(self, 'stseq', self.ld(x)))
        if R1 is not None:
            for jt in range(4):
                it.append(lambda jt=jt: setattr(self, 'stseq', self.ld(f"ds_read_b32 v{R1+jt}, v{va} offset:{1024 + 256*jt}")))
        return it

class Main:
    def __init__(self, dbg=False, tags=('main',), opt=None, seclen=None):
        self.dbg = dbg; self.opt = opt or {}
        Stream.uid = 0; Stream.NT = not self.opt.get('nont')
        self.C = Stream('C', dbg, tags); self.H = Stream('H', dbg, tags)
        self.C.seclen = self.H.seclen = seclen or {}
    def sync_check(self): assert self.C.nbar == self.H.nbar, (self.C.nbar, self.H.nbar)

    def prologue(self):
        C, H = self.C, self.H; a = C.a
        a(".text\n.globl main_kernel\n.p2align 12\n.type main_kernel,@function")
        a.label("main_kernel")
        a(f"""
    s_cmp_ge_u32 s2, 256
    s_cbranch_scc1 main_exit
    s_load_dwordx2 s[4:5], s[0:1], 96
    s_load_dwordx2 s[8:9], s[0:1], 0
    s_load_dwordx2 s[12:13], s[0:1], 80
""")
        if self.dbg:
            a(f"{'s_memtime' if self.dbg == 'cyc' else 's_memrealtime'} s[70:71]"); C.nts = H.nts = 1
        a(f"""
    v_lshrrev_b32 v1, 6, v0
    v_and_b32 v{vLANE}, 63, v0
    v_readfirstlane_b32 s{sW8}, v1
    s_and_b32 s{sT0}, s2, 7
    s_lshr_b32 s{sT1}, s2, 3
    s_lshl_b32 s{sGRP}, s{sT0}, 2
    s_lshr_b32 s{sT2}, s{sT1}, 3
    s_add_u32 s{sGRP}, s{sGRP}, s{sT2}
    s_and_b32 s{sMEM}, s{sT1}, 7
    s_and_b32 s{sW}, s{sW8}, 3
    s_mul_i32 s{sAR}, s{sGRP}, {GA:#x}
    s_lshl_b32 s{sNT}, s{sMEM}, 2
    s_add_u32 s{sNT}, s{sNT}, s{sW}
    v_lshlrev_b32 v{vL16}, 4, v{vLANE}
    s_mov_b32 s6, {WS_USED:#x}
    s_mov_b32 s7, 0x20000""")
        C.set_act(XN); C.set_wbase(WQ, 16)
        a(f"""
    s_cmp_ge_u32 s{sW8}, 4
    s_cbranch_scc1 H_entry
    s_waitcnt lgkmcnt(0)
    s_and_b32 s5, s5, 0xffff""")
        H.a(".p2align 8"); H.a.label("H_entry")
        H.a("s_waitcnt lgkmcnt(0)\n s_and_b32 s5, s5, 0xffff")
    def setup_common(self, S, t):
        S.a(f"""
    s_and_b32 s9, s9, 0xffff
    s_mov_b32 s10, {2048*1024:#x}
    s_mov_b32 s11, 0x20000
    s_and_b32 s13, s13, 0xffff
    s_mov_b32 s14, {2048*1024:#x}
    s_mov_b32 s15, 0x20000
    s_getreg_b32 s{sXCC}, hwreg(HW_REG_XCC_ID, 0, 3)
    v_and_b32 v{t}, 15, v{vLANE}                  ; t
    v_lshrrev_b32 v{t+1}, 4, v{vLANE}             ; g
    v_lshlrev_b32 v{vB}, 10, v{t+1}
    v_lshl_add_u32 v{vB}, v{t}, 4, v{vB}
    v_add_u32 v{vB}, {ACT}, v{vB}                 ; ACT + g*1024 + t*16
    v_lshrrev_b32 v{vD}, 1, v{t+1}
    v_lshlrev_b32 v{vD}, 10, v{vD}
    v_lshl_add_u32 v{vD}, v{t}, 4, v{vD}
    v_and_b32 v{t+2}, 1, v{t+1}
    v_lshl_add_u32 v{vD}, v{t+2}, 3, v{vD}        ; (g>>1)*1024 + t*16 + (g&1)*8
    s_lshl_b32 s{sT0}, s{sNT}, 2
    v_mov_b32 v{vMYF}, s{sT0}
    s_lshl_b32 s{sFLG}, s{sGRP}, 8
    s_add_u32 s{sFLG}, s{sFLG}, {FLAGS:#x}
    v_lshlrev_b32 v{t+2}, 10, v{t}
    v_lshl_add_u32 v{vXO}, v{t+1}, 3, v{t+2}      ; t*1024 + g*8
    s_and_b32 s{sORD}, s{sW}, 1
    s_lshl_b32 s{sORD}, s{sORD}, 9""")

    cT = 6
    S0, S1, NEGM, OA, OB, QA, QB, vIDX, vKA, vVA, vREG = 24, 40, 56, 72, 88, 16, 20, 13, 14, 15, 11
    KVR = 104
    NB = 1
    def qstage(self):
        C, H = self.C, self.H; a = C.a; t = self.cT
        WQR, QACC, QBP = 192, 24, 40
        a(f"v_lshlrev_b32 v{t+4}, 3, v{vLANE}\n s_mov_b32 s{sT0}, {KMAX:#x}")
        kseq = C.vm(f"buffer_load_dwordx2 v[128:129], v{t+4}, {WS}, s{sT0} offen")
        wqf = C.frags(16, sPF, dst=V(WQR), sc="")
        wq = [f() for f in wqf[:8]]
        self.setup_common(C, t)
        a(f"""
    s_mov_b32 s40, 0xffff
    s_mov_b32 s41, 0xffff
    v_mov_b32 v{self.vIDX}, 0xdddddddd
    v_mov_b32 v{self.vKA}, v{vL16}
    v_lshrrev_b32 v{t+1}, 5, v{vLANE}
    v_lshlrev_b32 v{t+1}, 8, v{t+1}
    v_lshl_add_u32 v{self.vVA}, v{t}, 4, v{t+1}   ; hA*256 + d*16""")
        for i in range(32): a(f"v_mov_b32 v{self.OA+i}, 0")
        for b in range(2*self.NB):
            if self.KVR + 12*b + 12 <= WQR:
                for i in range(8): a(f"v_mov_b32 v{self.KVR+12*b+4+i}, 0x3f803f80")
        k = 128
        C.wait_vm(kseq)
        a(f"v_max_f32 v{k}, v{k}, v{k+1}")
        for r in (8, 4, 2, 1): a(f"v_max_f32_dpp v{k}, v{k}, v{k} row_ror:{r} row_mask:0xf bank_mask:0xf")
        a(f"""
    v_mov_b32 v{k+1}, v{k}
    v_permlane16_swap_b32 v{k}, v{k+1}
    v_max_f32 v{k}, v{k}, v{k+1}
    v_mov_b32 v{k+1}, v{k}
    v_permlane32_swap_b32 v{k}, v{k+1}
    v_max_f32 v{k}, v{k}, v{k+1}
    v_sqrt_f32 v{k}, v{k}
    v_mul_f32 v{k}, {f32(-1.001)}, v{k}
    s_mov_b32 s{sT0}, {f32(QSCALE)}
    s_mov_b32 s{sT1}, {f32(QSCALE)}""")
        wq += [f() for f in wqf[8:]]
        C.cons_gemm(V(WQR), QACC, QBP, prewait=lambda c: C.wait_vm(wq[2*c+1]), tag="q")
        C.ts()
        QA, QB = self.QA, self.QB
        for i in range(8): a(f"v_pk_mul_f32 {P(QACC+2*i)}, {P(QACC+2*i)}, s[{sT0}:{sT1}]")
        for jt in range(4):
            a(f"v_cvt_pk_bf16_f32 v{QA+2*jt}, v{QACC+4*jt}, v{QACC+4*jt+1}")
            a(f"v_cvt_pk_bf16_f32 v{QA+2*jt+1}, v{QACC+4*jt+2}, v{QACC+4*jt+3}")
        a(f"v_mov_b32 v{t}, 0\n v_mov_b32 v{t+1}, 0")
        for q in (QA, QB): a(f"v_permlane16_swap_b32 v{q}, v{q+2}\n v_permlane16_swap_b32 v{q+1}, v{q+3}")
        for i in range(4): a(f"v_dot2_f32_bf16 v{t}, v{QA+i}, v{QA+i}, v{t}\n v_dot2_f32_bf16 v{t+1}, v{QB+i}, v{QB+i}, v{t+1}")
        for b in range(2*self.NB):
            if self.KVR + 12*b + 12 > WQR:
                for i in range(8): a(f"v_mov_b32 v{self.KVR+12*b+4+i}, 0x3f803f80")
        a(f"""
    v_permlane32_swap_b32 v{t}, v{t+1}
    v_add_f32 v{t}, v{t}, v{t+1}
    v_mov_b32 v{t+1}, v{t}
    v_permlane32_swap_b32 v{t}, v{t+1}
    v_max_f32 v{t}, v{t}, v{t+1}
    v_sqrt_f32 v{t}, v{t}
    v_mul_f32 v{self.NEGM}, v{t}, v{k}""")
        for i in range(1, 16): a(f"v_mov_b32 v{self.NEGM+i}, v{self.NEGM}")
        def first():
            self.setup_common(H, 16)
            H.a(f"s_lshl_b32 s{sPL}, s{sW}, 12\n s_add_u32 s{sW4}, s{sPL}, {KV:#x}")
            H.a("v_mov_b32 v7, 0")
        H.load_gemm(H.act_issue(sc=""), side={-1: [first], 4: [lambda: self.kv(1)], 7: [lambda: self.kv(1)]})
        self.kv01 = self.kvseq
        self.sync_check()
    def kv(self, n):
        H = self.H
        for r in range(n):
            H.a(f"s_mov_b32 m0, s{sPL}")
            for i in range(4): self.kvseq = H.vm(f"buffer_load_dwordx4 v{vL16}, {WS}, s{sW4} offen offset:{1024*i} lds")
            H.a(f"s_add_u32 s{sW4}, s{sW4}, 16384\n s_add_u32 s{sPL}, s{sPL}, 16384")

    PV = 20
    hXT, hACC, hBP = 8, 16, 32
    hRES, hSTAT, hCS1, hR1, hTMP, hCS3, hX = 64, 80, 96, 100, 104, 112, 120
    UB = (24, 66, 80, 94, 100)
    def attention(self):
        C, H = self.C, self.H; a = C.a
        S0, S1, NEGM, OA, OB, QA, QB, vIDX, vKA, vVA = self.S0, self.S1, self.NEGM, self.OA, self.OB, self.QA, self.QB, self.vIDX, self.vKA, self.vVA
        kf = lambda t: self.KVR + 12*(t & 1)
        C.ts("at"); C.bar(); C.ts("at")
        a("s_setprio 1")
        def rdK(t): a(f"ds_read_b128 {vr(kf(t))}, v{vKA} offset:{(t&31)*2048}")
        def rdV(t):
            a(f"s_mov_b64 exec, {sVM}")
            a(f"ds_read_b128 {vr(kf(t)+4)}, v{vVA} offset:{(t&31)*2048+1024}")
            a(f"ds_read_b128 {vr(kf(t)+8)}, v{vVA} offset:{(t&31)*2048+1536}")
            a("s_mov_b64 exec, -1")
        def qk(u): a(f"v_mfma_f32_32x32x16_bf16 {vr((S0,S1)[u&1],16)}, {vr(kf(u>>1))}, {vr((QA,QB)[u&1])}, {vr(NEGM,16)}")
        def pv(u, h): a(f"v_smfmac_f32_32x32x32_bf16 {vr((OA,OB)[u&1],16)}, {vr(kf(u>>1)+4+4*h)}, {vr((S0,S1)[u&1]+8*h,8)}, v{vIDX}")
        def ex(u, lo, hi):
            for i in range(lo, hi): a(f"v_exp_f32 v{(S0,S1)[u&1]+i}, v{(S0,S1)[u&1]+i}")
        x = self.cT
        a(f"s_lshl_b32 s{sT0}, s{sW}, 13\n s_add_u32 s{sT0}, s{sT0}, {HI}\n v_add_u32 v{x}, s{sT0}, v{vL16}\n s_lshl_b32 s{sT0}, s{sW}, 14\n v_add_u32 v{x+1}, s{sT0}, v{vL16}")
        plan = {}
        for ub, f0, n, va in ((self.UB[1], 0, 8, x), (self.UB[2], 8, 16, x+1), (self.UB[3], 24, 8, x)):
            for i in range(n): plan.setdefault(ub + 1 + 2*(i // 4), []).append(f"ds_read_b128 {vr(128+4*(f0+i))}, v{va} offset:{1024*i}")
        rdK(0); rdV(0); rdK(1)
        a("s_waitcnt lgkmcnt(3)")
        qk(0)
        for u in range(128):
            t, q = u >> 1, u & 1
            if u % 8 == 0: C.ts("at")
            ex(u, 0, 2)
            if u > 0: pv(u-1, 1)
            ex(u, 2, 5)
            if u + 1 < 128: qk(u+1)
            if u in self.UB: C.bar()
            if q == 0:
                if t + 1 < 64:
                    if t + 1 == 32: a(f"v_add_u32 v{vVA}, 0x10000, v{vVA}")
                    rdV(t+1)
                if t + 2 < 64:
                    if t + 2 == 32: a(f"v_add_u32 v{vKA}, 0x10000, v{vKA}")
                    rdK(t+2)
            for y in plan.pop(u, []): a(y)
            if u == 40: rseq = C.regload(self.vREG, self.cT+6)
            ex(u, 5, 10)
            if q == 0: a(f"s_waitcnt lgkmcnt({3 if t + 2 < 64 else (2 if t + 1 < 64 else 0)})")
            pv(u, 0)
            ex(u, 10, 16)
        assert not plan
        pv(127, 1)
        C.ts(); C.ts("at")
        t = self.cT
        C.wait_vm(rseq); C.regcheck(self.vREG, t+6)
        a(f"""
    v_lshrrev_b32 v{t+1}, 5, v{vLANE}
    v_lshlrev_b32 v{t+1}, 10, v{t+1}
    v_and_b32 v{t+2}, 31, v{vLANE}
    v_lshl_add_u32 v{t+4}, v{t+2}, 4, v{t+1}""")
        C.tile_soff(sT1, O_)
        a(f"v_min_f32 v{t}, v{OA+8}, v{OB+8}\n v_cmp_nle_f32 vcc, {f32(2.0**-60)}, v{t}\n s_cbranch_vccnz attn_redo")
        a.label("attn_done")
        a(f"v_rcp_f32 v{t+2}, v{OA+8}\n v_rcp_f32 v{t+6}, v{OB+8}")
        for o, r in ((OA, t+2), (OB, t+6)):
            for i in range(4): a(f"v_pk_mul_f32 {P(o+2*i)}, {P(o+2*i)}, {P(r)} op_sel_hi:[1,0]")
            for i in range(4): a(f"v_cvt_pk_bf16_f32 v{o+i}, v{o+2*i}, v{o+2*i+1}")
        C.setvcc()
        C.cstore([f"buffer_store_dwordx4 {vr(OA)}, v{t+4}, {WS}, s{sT1} offen", f"buffer_store_dwordx4 {vr(OB)}, v{t+4}, {WS}, s{sT1} offen offset:512"])
        a("s_setprio 0")
        C.set_act(O_)
        a(f"v_and_b32 v{self.cF}, 31, v{vLANE}\n v_lshlrev_b32 v{self.cF}, 2, v{self.cF}")
        C.flag(0, t)
        C.ts()
        a = H.a; v = self.PV; d = v + 8
        H.wait_vm(self.kv01); H.bar()
        L = H.lab("noreg")
        a(f"""
    s_cmp_lg_u32 s{sW}, 0
    s_cbranch_scc1 {L}
    s_lshl_b32 s{sT0}, s{sXCC}, 2
    s_lshl_b32 s{sT0}, 1, s{sT0}
    v_mov_b32 v6, s{sT0}
    s_add_u32 s{sT0}, s{sFLG}, {5*8192}
    s_mov_b64 exec, 1
    buffer_atomic_add v6, v7, {WS}, s{sT0} offen sc1
    s_mov_b64 exec, -1""")
        a.label(L)
        self.kv(6)
        TA, TD = v, v+1
        a(f"v_lshlrev_b32 v{TA}, 7, v{vLANE}")
        def code_touch():
            L = H.lab("pc")
            a(f"s_getpc_b64 s[36:37]")
            a.label(L)
            a(f"""
    s_sub_u32 s36, s36, {L}-main_kernel
    s_subb_u32 s37, s37, 0
    s_and_b32 s{sT1}, s{sGRP}, 3
    s_lshl_b32 s{sT1}, s{sT1}, 5
    s_add_u32 s{sT1}, s{sT1}, s{sNT}
    s_lshl_b32 s{sT1}, s{sT1}, 9
    v_and_b32 v{v+2}, 0x1ff, v{TA}
    v_add_u32 v{v+2}, s{sT1}, v{v+2}
    v_min_u32 v{v+2}, main_end-main_kernel-4, v{v+2}""")
            H.vm(f"global_load_dword v{TD}, v{v+2}, s[36:37]")
        def arena_touch():
            a(f"s_mul_i32 s{sTCH}, s{sNT}, {TOUCHN*128}\n s_add_u32 s{sTCH}, s{sTCH}, s{sAR}\n s_add_u32 s{sTCH}, s{sTCH}, {TOUCH0:#x}")
            H.vm(f"buffer_load_dword v{TD}, v{TA}, {WS}, s{sTCH} offen")
            a(f"s_mov_b32 exec_lo, 0x7ff\n s_mov_b32 exec_hi, 0\n s_add_u32 s{sTCH}, s{sTCH}, 8192")
            H.vm(f"buffer_load_dword v{TD}, v{TA}, {WS}, s{sTCH} offen")
            a("s_mov_b64 exec, -1")
        hi = f"s_lshl_b32 s{sPL}, s{sW}, 13\n s_add_u32 s{sPL}, s{sPL}, {HI}"
        lo = f"s_lshl_b32 s{sPL}, s{sW}, 14"
        F = lambda *x, **k: H.run(H.frags(*x, sc="", **k))
        H.set_wbase(WO, 16, sW4); F(16, sW4, dst=V(64))
        H.wait_vm(self.kvseq); H.ts("h"); H.bar()
        for base, reg in ((W1, 128), (W2, 192)):
            H.set_wbase(base, 16, sW4); F(16, sW4, dst=V(reg))
        H.set_w3(0); a(hi)
        F(8, sPF, lds=sPL); r1 = H.lastf
        code_touch()
        H.xo_soff(sT1)
        for jt in range(4):
            H.vm(f"buffer_load_dwordx2 {P(self.hXT+2*jt)}, v{vXO}, {XS}, s{sT1} offen")
            if jt < 3: a(f"s_add_u32 s{sT1}, s{sT1}, 16384")
        arena_touch()
        H.wait_vm(r1); H.ts("h"); H.bar()
        a(lo); F(16, sPF, lds=sPL); r2 = H.lastf
        code_touch()
        a(f"""
    s_and_b32 s{sT1}, s{sGRP}, 3
    s_lshl_b32 s{sTCH}, s{sT1}, 5
    s_add_u32 s{sTCH}, s{sTCH}, s{sNT}
    s_mul_i32 s{sTCH}, s{sTCH}, 14336
    s_add_u32 s{sTCH}, s{sTCH}, {W4:#x}""")
        H.vm(f"buffer_load_dword v{TD}, v{TA}, {WS}, s{sTCH} offen")
        H.wait_vm(r2); H.ts("h"); H.bar()
        a(hi); F(8, sPF, lds=sPL); r3 = H.lastf
        a(f"s_add_u32 s{sTCH}, s{sTCH}, 6144")
        H.vm(f"buffer_load_dword v{TD}, v{TA}, {WS}, s{sTCH} offen")
        H.wait_vm(r3); H.ts("h"); H.bar()
        H.bar()
        a(lo); F(16, sPF, lds=sPL)
        H.set_w3(3)
        a(f"s_lshl_b32 s{sT5}, s{sORD}, 4\n s_add_u32 s{sPF}, s{sPF}, s{sT5}"); a(hi)
        F(8, sPF, lds=sPL)
        arena_touch()
        code_touch()
        H.regload(6, 7)
        a("s_waitcnt vmcnt(0)")
        H.regcheck(6, 7)
        H.setvcc()
        H.tile_soff(sT4, H_)
        a("s_setprio 1")
        H.ts("h")
        self.sync_check()

    def fallback(self):
        C = self.C; a = C.a; t = self.cT
        S0, NEGM, KF, VF, vVA, vIDX = self.S0, self.NEGM, self.KVR, self.KVR+4, self.vVA, self.vIDX
        a.label("attn_redo")
        a(f"v_and_b32 v{vVA}, 0x3ff, v{vVA}")
        for (Q, O) in ((self.QA, self.OA), (self.QB, self.OB)):
            L1, L2 = C.lab("fb1"), C.lab("fb2")
            a(f"v_mov_b32 v{t}, 0xff800000\n s_mov_b32 s{sT2}, {KV:#x}")
            a.label(L1)
            a(f"""
    buffer_load_dwordx4 {vr(KF)}, v{vL16}, {WS}, s{sT2} offen
    s_add_u32 s{sT2}, s{sT2}, 2048
    s_waitcnt vmcnt(0)
    v_mfma_f32_32x32x16_bf16 {vr(S0,16)}, {vr(KF)}, {vr(Q)}, 0""")
            for i in range(8): a(f"v_max3_f32 v{t}, v{t}, v{S0+2*i}, v{S0+2*i+1}")
            a(f"""
    s_cmp_lt_u32 s{sT2}, {KV+131072:#x}
    s_cbranch_scc1 {L1}
    v_mov_b32 v{t+1}, v{t}
    v_permlane32_swap_b32 v{t}, v{t+1}
    v_max_f32 v{t}, v{t}, v{t+1}
    v_sub_f32 v{t}, 0, v{t}""")
            for i in range(16): a(f"v_mov_b32 v{NEGM+i}, v{t}")
            for i in range(16): a(f"v_mov_b32 v{O+i}, 0")
            a(f"s_mov_b32 s{sT2}, {KV:#x}")
            a.label(L2)
            a(f"""
    buffer_load_dwordx4 {vr(KF)}, v{vL16}, {WS}, s{sT2} offen
    s_mov_b64 exec, {sVM}
    buffer_load_dwordx4 {vr(VF)}, v{vVA}, {WS}, s{sT2} offen offset:1024
    buffer_load_dwordx4 {vr(VF+4)}, v{vVA}, {WS}, s{sT2} offen offset:1536
    s_mov_b64 exec, -1
    s_add_u32 s{sT2}, s{sT2}, 2048
    s_waitcnt vmcnt(0)
    v_mfma_f32_32x32x16_bf16 {vr(S0,16)}, {vr(KF)}, {vr(Q)}, {vr(NEGM,16)}""")
            for i in range(16): a(f"v_exp_f32 v{S0+i}, v{S0+i}")
            a(f"""
    v_smfmac_f32_32x32x32_bf16 {vr(O,16)}, {vr(VF)}, {vr(S0,8)}, v{vIDX}
    v_smfmac_f32_32x32x32_bf16 {vr(O,16)}, {vr(VF+4)}, {vr(S0+8,8)}, v{vIDX}
    s_nop 15
    s_cmp_lt_u32 s{sT2}, {KV+131072:#x}
    s_cbranch_scc1 {L2}""")
        a("s_nop 15\n s_branch attn_done")

    cF, cP = 120, 122
    cACC, cBP, cSTAT, cCS3, cTMP, cOUT = 16, 48, 80, 96, 104, 112
    def prod_stats(self, vals):
        H = self.H; a = H.a; t = self.hTMP; x = self.hBP
        for jt in range(4): a(f"v_pk_add_f32 {P(x+2*jt)}, {P(vals+4*jt)}, {P(vals+4*jt+2)}")
        for jt in range(4): a(f"v_pk_mul_f32 {P(x+8+2*jt)}, {P(vals+4*jt)}, {P(vals+4*jt)}")
        for jt in range(4): a(f"v_pk_fma_f32 {P(x+8+2*jt)}, {P(vals+4*jt+2)}, {P(vals+4*jt+2)}, {P(x+8+2*jt)}")
        for jt in range(8): a(f"v_add_f32 v{t+jt}, v{x+2*jt}, v{x+2*jt+1}")
        a(f"""
    s_lshl_b32 s{sT5}, s{sW}, 10
    s_add_u32 s{sT5}, s{sT5}, {XST}
    v_permlane32_swap_b32 v{t}, v{t+2}
    v_permlane32_swap_b32 v{t+1}, v{t+3}
    v_permlane32_swap_b32 v{t+4}, v{t+6}
    v_permlane32_swap_b32 v{t+5}, v{t+7}
    v_pk_add_f32 {P(t)}, {P(t)}, {P(t+2)}
    v_pk_add_f32 {P(t+4)}, {P(t+4)}, {P(t+6)}
    v_lshl_add_u32 v{x}, v{vLANE}, 3, s{sT5}
    v_permlane16_swap_b32 v{t}, v{t+1}
    v_permlane16_swap_b32 v{t+4}, v{t+5}
    v_add_f32 v{t}, v{t}, v{t+1}
    v_add_f32 v{t+1}, v{t+4}, v{t+5}
    ds_write_b64 v{x}, {P(t)}""")
    def stat_publish(self, base):
        C = self.C; a = C.a; t = self.cTMP; x = self.cT
        a(f"""
    v_lshlrev_b32 v{x}, 3, v{vLANE}
    v_add_u32 v{x}, {XST}, v{x}
    s_lshl_b32 s{sT2}, s{sMEM}, 3
    s_add_u32 s{sT2}, s{sT2}, s{sAR}
    s_add_u32 s{sT2}, s{sT2}, {base:#x}
    v_lshlrev_b32 v{x+1}, 6, v{vLANE}
    s_lshl_b32 s{sT5}, s{sW}, 4
    s_lshl_b64 s[36:37], 0xffff, s{sT5}""")
        C.bar()
        for p in range(4): a(f"ds_read_b64 {P(t+2*p)}, v{x} offset:{1024*p}")
        def fin():
            a(f"""
    s_waitcnt lgkmcnt(0)
    v_pk_add_f32 {P(t)}, {P(t)}, {P(t+2)}
    v_pk_add_f32 {P(t+4)}, {P(t+4)}, {P(t+6)}
    v_pk_add_f32 {P(t)}, {P(t)}, {P(t+4)}
    s_mov_b64 exec, s[36:37]""")
            C.cstore([f"buffer_store_dwordx2 {P(t)}, v{x+1}, {WS}, s{sT2} offen"], nt=False)
            a("s_mov_b64 exec, -1")
        self.pubfin = fin
    def cons_stats(self, gbase, scr, double):
        C = self.C; a = C.a; x = self.cT; o = self.cSTAT; S = o + 8
        st = {}
        ltxt = f"buffer_load_dwordx4 {vr(o)}, v{x+1}, {WS}, s{sT1} offen sc1"
        def load():
            a(f"""
    s_lshl_b32 s{sT1}, s{sW}, 10
    s_add_u32 s{sT1}, s{sT1}, s{sAR}
    s_add_u32 s{sT1}, s{sT1}, {gbase:#x}
    v_and_b32 v{x+3}, 0xff, v{vL16}
    v_and_b32 v{x+1}, 0x30, v{vLANE}
    v_lshl_add_u32 v{x+1}, v{x+3}, 2, v{x+1}
    s_lshl_b32 s{sT5}, s{sW}, 8
    s_add_u32 s{sT5}, s{sT5}, {scr}
    v_add_u32 v{x+2}, s{sT5}, v{x+3}""")
            st['g'] = C.vm(ltxt)
        def check():
            L0, Lr, L2 = C.lab("schk"), C.lab("sre"), C.lab("sok")
            C.wait_vm(st['g'])
            a.label(L0)
            a(f"v_max_u32 v{o+4}, v{o+1}, v{o+3}\n v_cmp_eq_u32 vcc, -1, v{o+4}\n s_cbranch_vccnz {Lr}")
            a.label(L2)
            C.ool.append((Lr, [f"s_add_u32 s{sCNT}, s{sCNT}, 1", f"s_cmp_gt_u32 s{sCNT}, {SPIN}", f"s_cbranch_scc1 {L2}",
                               ltxt, "s_waitcnt vmcnt(0)", f"s_branch {L0}"]))
            C.setvcc()
        txt = f"""
    v_add_f32 v{o}, v{o}, v{o+2}
    v_add_f32 v{o+1}, v{o+1}, v{o+3}
    v_permlane32_swap_b32 v{o}, v{o+1}
    v_add_f32 v{o}, v{o}, v{o+1}
    v_mov_b32 v{o+1}, v{o}
    v_permlane16_swap_b32 v{o}, v{o+1}
    v_add_f32 v{o}, v{o}, v{o+1}
    v_mul_f32 v{o}, 0x3b000000, v{o}
    v_mov_b32 v{o+1}, v{o}
    v_permlane32_swap_b32 v{o}, v{o+1}
    v_mov_b32 v{S}, v{o}
    v_fma_f32 v{o+1}, -v{o}, v{o}, v{o+1}
    v_max_f32 v{o+1}, 0, v{o+1}
    v_add_f32 v{o+2}, 0x3727c5ac, v{o+1}
    v_rsq_f32 v{o+3}, v{o+2}"""
        R = o+3
        if double:
            txt += f"""
    v_mul_f32 v{o+4}, v{o+3}, v{o+3}
    ds_write_b32 v{x+2}, v{o+3} offset:1024
    v_mul_f32 v{o+4}, v{o+4}, v{o+1}
    v_add_f32 v{o+4}, 0x3727c5ac, v{o+4}
    v_rsq_f32 v{o+4}, v{o+4}
    v_mul_f32 v{o+5}, v{o+3}, v{o+4}"""
            R = o+5
        txt += f"""
    v_rcp_f32 v{S+1}, v{R}
    v_mul_f32 v{S+2}, {f32(GC1)}, v{R}
    v_mul_f32 v{o+6}, v{R}, v{R}
    v_mul_f32 v{o+6}, {f32(0.044715)}, v{o+6}
    v_mul_f32 v{S+3}, v{S+2}, v{o+6}
    ds_write_b128 v{x+2}, {vr(S)}"""
        comp = [check]
        for y in txt.split("\n"):
            y = y.strip()
            if not y: continue
            if y.startswith("ds_"): comp.append(lambda y=y: setattr(C, 'wseq', C.ld(y)))
            else: comp.append(lambda y=y: a(y))
        return load, comp
    def tile_store(self, jt):
        return f"buffer_store_dwordx2 {P(self.hXT+2*jt)}, v{vD}, {WS}, s{sT4} offen offset:{256*jt}"
    def add_pack(self, jt, src):
        a = self.H.a; A_ = self.hACC
        for h in (0, 2): a(f"v_pk_add_f32 {P(A_+4*jt+h)}, {P(A_+4*jt+h)}, {P(src+h)}")
        for h in (0, 1): a(f"v_cvt_pk_bf16_f32 v{self.hXT+2*jt+h}, v{A_+4*jt+2*h}, v{A_+4*jt+2*h+1}")

    def s3(self):
        self.C.mark(); self.H.mark()
        C, H = self.C, self.H
        C.colsum(V(128), self.cCS3, self.cOUT)
        C.poll(0, self.cF, self.cP, mid=[lambda: C.colsum(V(192), self.cCS3+4, self.cOUT)]); C.ts()
        C.load_gemm(C.act_issue(), tag='s3')
        C.set_act(H_)
        self.stat_publish(ST1)
        H.cons_gemm(V(64), self.hACC, self.hBP, tag="s3"); H.ts()
        for i in range(8): H.unpack(self.hXT+i, self.hRES+2*i)
        for jt in range(4): self.add_pack(jt, self.hRES+4*jt)
        H.cstore([self.tile_store(jt) for jt in range(4)])
        self.prod_stats(self.hACC)
        for i in range(8): H.unpack(self.hXT+i, self.hRES+2*i)
        H.flag(1, 6); H.ts()
        H.a("s_waitcnt lgkmcnt(0)"); H.bar()
        self.sync_check()
    def s4(self):
        self.C.mark(); self.H.mark()
        C, H = self.C, self.H; a = H.a
        C.poll(1, self.cF, self.cP, mid=[self.pubfin]); C.ts()
        load, comp = self.cons_stats(ST1, ACT, True)
        C.load_gemm(C.act_issue(), side={-1: [load], 3: comp[:7], 4: comp[7:14], 5: comp[14:21], 6: comp[21:],
                                         (7, 'pre'): [lambda: C.wait_ld(C.wseq)]}, tag='s4')
        H.colsum(V(128), self.hCS1, self.hX)
        H.tile_soff(sT4, T_)
        a(f"""
    v_lshrrev_b32 v6, 5, v{vLANE}
    v_lshlrev_b32 v6, 5, v6
    v_and_b32 v7, 0x1f, v{vD}
    v_add_u32 v{self.hX+4}, v6, v7                ; halo: (g>>1)*32 + (t&1)*16 + (g&1)*8
    s_lshl_b32 s{sT3}, s{sNT}, 6
    s_add_u32 s{sT3}, s{sT3}, s{sAR}
    v_and_b32 v7, 0xff, v{vL16}
    v_add_u32 v7, {ACT}, v7""")
        sr = H.stat_reads(self.hSTAT, 7, False, self.hR1)
        H.cons_gemm(V(128), self.hACC, self.hBP, side={6: sr[:4], 7: sr[4:]}, tag="s4"); H.ts()
        A_, XT, ST = self.hACC, self.hXT, self.hSTAT
        H.wait_ld(H.stseq)
        for x in H.gelu2((A_, self.hCS1, ST, XT), (A_+12, self.hCS1, ST+12, XT+6), self.hTMP, True): a(x)
        Lh, L1 = H.lab("nohalo"), H.lab("side1")
        a(f"""
    s_bitcmp1_b32 s{sMEM}, 1
    s_cbranch_scc1 {L1}
    s_cmp_eq_u32 s{sGRP}, 31
    s_cbranch_scc1 {Lh}
    s_add_u32 s{sT3}, s{sT3}, {HALO+GA:#x}
    s_mov_b32 exec_lo, 0xc000c000
    s_mov_b32 exec_hi, 0xc000c000
    buffer_store_dwordx2 {P(XT+6)}, v{self.hX+4}, {WS}, s{sT3} offen sc1
    s_branch {Lh}""")
        a.label(L1)
        a(f"""
    s_cmp_eq_u32 s{sGRP}, 0
    s_cbranch_scc1 {Lh}
    s_sub_u32 s{sT3}, s{sT3}, {GA-HALO:#x}
    s_mov_b32 exec_lo, 0x00030003
    s_mov_b32 exec_hi, 0x00030003
    buffer_store_dwordx2 {P(XT)}, v{self.hX+4}, {WS}, s{sT3} offen sc1""")
        a.label(Lh)
        a("s_mov_b64 exec, -1")
        H.cstore([self.tile_store(0), self.tile_store(3)])
        for x in H.gelu2((A_+4, self.hCS1, ST+4, XT+2), (A_+8, self.hCS1, ST+8, XT+4), self.hTMP, True): a(x)
        H.cstore([self.tile_store(1), self.tile_store(2)])
        H.flag(2, 6); H.ts()
        self.sync_check()
    def s5(self):
        self.C.mark(); self.H.mark()
        C, H = self.C, self.H; a = C.a; x = self.cT; T = self.cTMP
        C.set_act(T_)
        a(f"""
    s_lshl_b32 s{sT1}, s{sW}, 9
    s_add_u32 s{sT1}, s{sT1}, s{sAR}
    s_add_u32 s{sT1}, s{sT1}, {HALO:#x}
    v_and_b32 v{x+2}, 0x1ff, v{vL16}
    s_cmp_eq_u32 s{sW}, 0
    s_cselect_b32 s{sT3}, -16, 0
    s_cselect_b32 s{sT4}, 0xaaaaaaaa, -1
    s_cmp_eq_u32 s{sW}, 1
    s_cselect_b32 s{sT3}, {63*16}, s{sT3}
    s_cselect_b32 s{sT4}, 0x55555555, s{sT4}
    s_cmp_eq_u32 s{sW}, 3
    s_cselect_b32 s{sT3}, {62*16}, s{sT3}
    s_lshl_b32 s{sT2}, s{sW}, 14
    s_add_u32 s{sT3}, s{sT3}, s{sT2}
    s_add_u32 s{sT3}, s{sT3}, {ACT}
    v_lshrrev_b32 v{x+1}, 1, v{vLANE}
    v_lshlrev_b32 v{x+1}, 10, v{x+1}
    v_and_b32 v{x+3}, 1, v{vLANE}
    v_lshl_add_u32 v{x+1}, v{x+3}, 4, v{x+1}
    v_add_u32 v{x+1}, s{sT3}, v{x+1}
    s_lshl_b32 s{sPF}, s{sMEM}, 3
    s_add_u32 s{sPF}, s{sPF}, s{sW}
    s_mul_i32 s{sPF}, s{sPF}, {28*1024}
    s_add_u32 s{sPF}, s{sPF}, {W4 + 20*1024:#x}
    s_lshl_b32 s{sPL}, s{sW}, 13""")
        C.poll(2, self.cF, self.cP, mid=[]); C.ts()
        shifts = (1, -1, 2, -2)
        masks = ((0xfffffffe, 0xffffffff), (0xffffffff, 0x7fffffff), (0xfffffffc, 0xffffffff), (0xffffffff, 0x3fffffff))
        def pre(c):
            g = c >> 1
            if c & 1 == 0: a(f"s_add_i32 s{sG}, s{sG}, {-16*shifts[g] + (16*shifts[g-1] if g else 0)}")
            a(f"s_mov_b32 exec_lo, {masks[g][0]:#x}" if masks[g][0] != 0xffffffff else f"s_mov_b32 exec_hi, {masks[g][1]:#x}")
        hs = {}
        hload = f"buffer_load_dwordx4 {vr(T)}, v{x+2}, {WS}, s{sT1} offen sc1"
        stg = C.frags(8, sPF, lds=sPL) + C.E(f"s_add_u32 s{sPF}, s{sPF}, {4*28*1024 - 8192}\n s_add_u32 s{sPL}, s{sPL}, {32768 - 8192}") + C.frags(8, sPF, lds=sPL)
        C.load_gemm(C.act_issue(pre=pre, post=lambda c: a("s_mov_b64 exec, -1")),
                    side={2: [lambda: hs.__setitem__(0, C.vm(hload))], 3: stg[:2], 4: stg[2:4], 5: stg[4:6], 6: stg[6:10]}, tag='s5')
        L0, Lr, L2 = C.lab("hchk"), C.lab("hre"), C.lab("hok")
        C.wait_vm(hs[0])
        a.label(L0)
        a(f"v_max_u32 v{x}, v{T}, v{T+1}\n v_max3_u32 v{x}, v{x}, v{T+2}, v{T+3}\n v_cmp_eq_u32 vcc, -1, v{x}\n s_cbranch_vccnz {Lr}")
        a.label(L2)
        C.ool.append((Lr, [f"s_add_u32 s{sCNT}, s{sCNT}, 1", f"s_cmp_gt_u32 s{sCNT}, {SPIN}", f"s_cbranch_scc1 {L2}",
                           hload, "s_waitcnt vmcnt(0)", f"s_branch {L0}"]))
        C.setvcc()
        a(f"s_mov_b32 exec_lo, s{sT4}\n s_mov_b32 exec_hi, 0\n ds_write_b128 v{x+1}, {vr(T)}\n s_mov_b64 exec, -1\n s_waitcnt lgkmcnt(0)")
        C.bar()
        C.run(stg[10:14]); self.stg_rest = stg[14:]
        C.set_act(X1)
        self.stat_publish(ST3)
        a = H.a; ST, RES, R1 = self.hSTAT, self.hRES, self.hR1
        a(f"s_lshl_b32 s{sT1}, s{sW}, 14\n v_add_u32 v7, s{sT1}, v{vL16}")
        H.lds2reg(V(128), 16, 7)
        for jt in range(4):
            a(f"v_mul_f32 v6, v{ST+4*jt}, v{R1+jt}")
            for i in range(4): a(f"v_fma_f32 v{ST+4*jt+i}, v{RES+4*jt+i}, v{R1+jt}, -v6")
        H.tile_soff(sT4, X1)
        a("s_waitcnt lgkmcnt(0)")
        H.colsum(V(128), self.hCS3, self.hX)
        H.cons_gemm(V(192), self.hACC, self.hBP, defer=lambda ks: 3 if (ks >> 2) & 1 else 0, tag="s5"); H.ts()
        for jt in range(4): self.add_pack(jt, ST+4*jt)
        H.cstore([self.tile_store(jt) for jt in range(4)])
        self.prod_stats(self.hACC)
        for i in range(8): H.unpack(self.hXT+i, self.hACC+2*i)
        H.flag(3, 6)
        a("s_waitcnt lgkmcnt(0)"); H.bar()
        for i in range(8): a(f"v_pk_add_f32 {P(RES+2*i)}, {P(RES+2*i)}, {P(self.hACC+2*i)}")
        H.ts()
        self.sync_check()

    def capture(self, S, fn):
        keep = S.a.lines; S.a.lines = []
        fn()
        got = S.a.lines; S.a.lines = keep
        return [(lambda x=x: S.a(x)) for x in got]
    def s6(self):
        self.C.mark(); self.H.mark()
        C, H = self.C, self.H
        PK = bool(self.opt.get("s6pk"))
        for S in (C, H):
            isC = S is C; a = S.a
            vBa, vBb, vDa, vDb, vS = (124, 125, 126, 127, 14) if isC else (self.hCS1, self.hCS1+1, self.hCS1+2, self.hCS1+3, self.hR1)
            ACCS = [self.cACC + 4*i for i in range(8)] if isC else [self.hACC + 4*i for i in range(4)] + [self.hX, self.hX+4]
            BP = self.cBP if isC else self.hBP
            ST, CS, TMP, OUT = (self.cSTAT, self.cCS3, self.cTMP, self.cOUT) if isC else (self.hSTAT, self.hCS3, self.hTMP, self.hXT)
            W = (V(128), V(192))
            def setup():
                a(f"""
    v_xor_b32 v{vBa}, s{sORD}, v{vB}
    v_xor_b32 v{vBb}, 512, v{vBa}
    v_xor_b32 v{vDa}, s{sORD}, v{vD}
    v_xor_b32 v{vDb}, 512, v{vDa}
    v_and_b32 v{vS}, 0xff, v{vL16}
    v_add_u32 v{vS}, {HI}, v{vS}
    v_xor_b32 v{vS}, s{sORD}, v{vS}
    v_xor_b32 v{vS+1}, 512, v{vS}
    s_mul_i32 s{sU0}, s{sMEM}, {14*2048}
    s_add_u32 s{sU0}, s{sU0}, s{sAR}
    s_add_u32 s{sU0}, s{sU0}, {U_:#x}
    s_lshr_b32 s{sU1}, s{sW}, 1
    s_add_u32 s{sU1}, s{sU1}, 12
    s_lshl_b32 s{sU1}, s{sU1}, 11
    s_add_u32 s{sU1}, s{sU1}, s{sU0}
    s_mul_i32 s{sT3}, s{sW}, {3*2048}
    s_add_u32 s{sU0}, s{sU0}, s{sT3}
    s_lshl_b32 s{sW4}, s{sMEM}, 3
    s_add_u32 s{sW4}, s{sW4}, s{sW8}
    s_lshl_b32 s{sT3}, s{sW4}, 2
    v_mov_b32 v{vMYF}, s{sT3}
    s_mul_i32 s{sW4}, s{sW4}, {28*1024}
    s_add_u32 s{sW4}, s{sW4}, {W4:#x}
""")
                if isC: a(f"s_add_u32 s{sU1}, s{sU0}, 2048")
                else: a(f"s_add_u32 s{sU0}, s{sU0}, 4096")
            tilesA = [(j, n) for j in (0, 1) for n in (0, 1)]
            tilesB = [(j, n) for j in (2, 3) for n in ((0, 1) if isC else (0,))]
            acc = {t: ACCS[i] for i, t in enumerate(tilesA + tilesB)}
            rs = {}
            slot = lambda s, j: BP + 16*(s & 1) + 4*j
            def rd(s, j): rs[(s, j)] = S.ld(f"ds_read_b128 {vr(slot(s, j))}, v{vBa if j < 2 else vBb} offset:{4096*s + 256*(j&1)}")
            def mf(s, j, n): a(f"v_mfma_f32_16x16x32_bf16 {vr(acc[(j, n)])}, {W[n](s)}, {vr(slot(s, j))}, {'0' if s == 0 else vr(acc[(j, n)])}")
            wreg = lambda f: vr(128 + 4*(f >> 1) + 64*(f & 1))
            S.wreg = wreg
            w4 = S.frags(20, sW4, dst=wreg)
            stg = []
            sr = S.stat_reads(ST, vS, True)
            def ustore(j, n, r):
                return f"buffer_store_dwordx2 {P(r)}, v{vDa if j < 2 else vDb}, {WS}, s{(sU0, sU1)[n]} offen offset:{256*(j&1)}"
            k2 = [0]
            def gel(t0, t1, pk, extra=()):
                o = OUT + 4*(k2[0] & 1); k2[0] += 1
                z = S.gelu2((acc[t0], CS+4*t0[1], ST+4*t0[0], o), (acc[t1], CS+4*t1[1], ST+4*t1[0], o+2), TMP, pk)
                extra = list(extra)
                for i, y in enumerate(z):
                    a(y)
                    if extra and i % 10 == 5: extra.pop(0)()
                S.run(extra)
                S.cstore([ustore(*t0, o), ustore(*t1, o+2)])
            tiles = tilesA + tilesB
            if isC:
                S.poll(3, self.cF, self.cP, mid=[self.pubfin]); S.ts()
                load, comp = self.cons_stats(ST3, HI, False)
                issue = S.act_issue(); seqs = {}
                for c in range(3): seqs[c] = issue(c)
                load(); setup()
                S.wait_vm(seqs[0])
            else:
                a(f"s_and_b32 s{sT1}, s{sW}, 2\n s_lshl_b32 s{sT1}, s{sT1}, 13\n s_add_u32 s{sT1}, s{sT1}, {HI}\n v_add_u32 v7, s{sT1}, v{vL16}")
                S.lds2reg(V(192), 16, 7)
                setup()
                a("s_waitcnt lgkmcnt(0)")
                S.colsum(V(192), CS+4, self.hX)
                a("s_setprio 0")
            S.bar()
            for j in range(4): rd(0, j)
            BAR = {1: 1, 3: 3, 7: 7}
            nt = len(tiles)
            for s in range(16):
                items = []
                if isC:
                    if s == 0: items = [(lambda c=c: seqs.__setitem__(c, issue(c))) for c in (3, 4, 5)]
                    if s == 1: items = [(lambda c=c: seqs.__setitem__(c, issue(c))) for c in (6, 7)]
                    if s == 2: items = self.stg_rest
                    items = items + {3: comp[:7], 4: comp[7:14], 5: comp[14:]}.get(s, [])
                if s == 8: items = items + sr
                if 3 <= s < 13: items = [w4.pop(0)] + items[:len(items)//2] + [w4.pop(0)] + items[len(items)//2:]
                if s in BAR:
                    if isC:
                        S.wait_vm(seqs[BAR[s]])
                        if s == 7: S.wait_ld(S.wseq)
                    S.bar()
                for i, (j, n) in enumerate(tiles):
                    if n == 0: S.wait_ld(rs[(s, j)])
                    mf(s, j, n)
                    if n == 0 and s + 1 < 16: rd(s+1, j)
                    S.run(items[i*len(items)//nt:(i+1)*len(items)//nt])
                if s % 4 == 3: S.ts("s6")
            S.wait_ld(S.stseq)
            for i in range(0, nt, 2):
                if i == nt - 2: S.ts()
                gel(tiles[i], tiles[i+1], True)
            assert not w4 and not stg
            S.flag(4, 6); S.ts()
        self.sync_check()

    def s7(self):
        self.C.mark(); self.H.mark()
        C, H = self.C, self.H
        for S in (C, H):
            isC = S is C; a = S.a
            wreg = S.wreg
            if isC:
                vWr, vF8, vPp, vRD, vO = [8, 9, 10, 11], self.cF, self.cP, 12, 13
                ring = [self.cBP + 4*i for i in range(8)]
                accx = lambda p, m: self.cACC + 16*(p & 1) + 4*m
                rb = [80 + 4*k for k in range(8)]
            else:
                vWr, vF8, vPp, vRD, vO = [self.hX+4+i for i in range(4)], 6, self.hX+2, 7, vXO
                ring = [self.hBP + 4*i for i in range(8)]
                accx = lambda p, m: self.hACC + 4*m if p & 1 else (184, 188, 248, 252)[m]
                rb = [80 + 4*k for k in range(8)]
            NR = len(ring); x = rb[0]
            a(f"s_lshl_b32 s{sT1}, s{sW8}, 13\n v_add_u32 v{vRD}, s{sT1}, v{vL16}")
            S.lds2reg(lambda i: wreg(20+i), 8, vRD)
            a(f"""
    s_mul_i32 s{sB}, s{sW8}, {7*4096}
    s_add_u32 s{sB}, s{sB}, s{sAR}
    s_add_u32 s{sB}, s{sB}, {U_ - ACT:#x}
    v_and_b32 v{vF8}, 7, v{vLANE}
    v_lshlrev_b32 v{vF8}, 2, v{vF8}
    s_lshl_b32 s{sT1}, s{sW8}, 5
    v_add_u32 v{vF8}, s{sT1}, v{vF8}
    v_and_b32 v{x}, 15, v{vLANE}
    v_lshrrev_b32 v{x+1}, 4, v{vLANE}
    v_xor_b32 v{x+2}, v{x}, v{x+1}                ; t ^ g""")
            for m in range(4):
                a(f"""
    s_add_u32 s{sT1}, s{sW}, {m}
    s_and_b32 s{sT1}, s{sT1}, 3
    s_lshl_b32 s{sT2}, s{sT1}, 2
    v_xor_b32 v{vWr[m]}, s{sT2}, v{x+2}
    v_lshlrev_b32 v{vWr[m]}, 4, v{vWr[m]}
    v_lshl_add_u32 v{vWr[m]}, v{x+1}, 8, v{vWr[m]}
    s_lshl_b32 s{sT1}, s{sT1}, 10
    s_lshl_b32 s{sT2}, s{sW8}, 12
    s_add_u32 s{sT1}, s{sT1}, s{sT2}
    v_add_u32 v{vWr[m]}, s{sT1}, v{vWr[m]}""")
            a(f"""
    s_waitcnt lgkmcnt(0)
    s_lshl_b32 s{sT1}, s{sW}, 2
    v_add_u32 v{x+1}, s{sT1}, v{x+1}
    v_xor_b32 v{vRD}, v{x+1}, v{x}
    v_lshlrev_b32 v{vRD}, 4, v{vRD}
    v_lshl_add_u32 v{vRD}, v{x}, 8, v{vRD}
    v_lshlrev_b32 v{vO}, 10, v{x+1}
    v_lshl_add_u32 v{vO}, v{x}, 3, v{vO}
    s_lshl_b32 s{sT4}, s{sGRP}, 16
    s_lshl_b32 s{sT1}, s{sMEM}, 7
    s_add_u32 s{sT4}, s{sT4}, s{sT1}""")
            if not isC: a(f"s_add_u32 s{sT4}, s{sT4}, 16384\n v_add_u32 v{vRD}, 32768, v{vRD}")
            S.bar()
            S.poll(4, vF8, vPp); S.ts()
            seq = {}
            def load(u):
                p, i = u // 7, u % 7
                seq[u] = S.vm(f"buffer_load_dwordx4 {vr(ring[u % NR])}, v{vB}, {WS}, s{sB} offen offset:{256*p} sc1")
                a(f"s_add_u32 s{sB}, s{sB}, 4096" if i < 6 else f"s_sub_u32 s{sB}, s{sB}, {6*4096}")
            def Wr(p):
                it = []
                for m in range(4):
                    if p == 2: it.append(lambda m=m: a(f"v_add_u32 v{vWr[m]}, 0x10000, v{vWr[m]}"))
                    it.append(lambda m=m: S.ld(f"ds_write_b128 v{vWr[m]}, {vr(accx(p, m))} offset:{32768*(p&1)}"))
                return it
            bar = [lambda: (a("s_waitcnt lgkmcnt(0)"), S.bar())]
            st = {}
            def Rd(p):
                it = [lambda: a(f"v_add_u32 v{vRD}, 0x10000, v{vRD}")] if p >= 2 else []
                return it + [(lambda k=k: st.__setitem__(p, S.ld(f"ds_read_b128 {vr(rb[k])}, v{vRD} offset:{4096*k}"))) for k in range(8)]
            def Ad(p, pk):
                r = rb
                pairs = [(r[0], r[1]), (r[2], r[3]), (r[4], r[5]), (r[6], r[7]), (r[0], r[2]), (r[4], r[6]), (r[0], r[4])]
                ins = []
                for y, z in pairs:
                    if pk: ins += [f"v_pk_add_f32 {P(y+h)}, {P(y+h)}, {P(z+h)}" for h in (0, 2)]
                    else: ins += [f"v_add_f32 v{y+h}, v{y+h}, v{z+h}" for h in range(4)]
                ins += [f"v_cvt_pk_bf16_f32 v{r[1]+h}, v{r[0]+2*h}, v{r[0]+2*h+1}" for h in (0, 1)]
                return [lambda: S.wait_ld(st[p])] + [(lambda z=z: a(z)) for z in ins] + \
                       [lambda: S.vm(f"buffer_store_dwordx2 {P(r[1])}, v{vO}, {OS}, s{sT4} offen {self.opt.get('osc', 'nt')}"), lambda: a(f"s_add_u32 s{sT4}, s{sT4}, 32768")]
            side = {}
            for p in range(3):
                b = 7*(p+1)
                side[b+1] = Wr(p); side[b+2] = bar
                if (p & 1) != isC:
                    side[b+3] = Rd(p); ad = Ad(p, False); side[b+4] = ad[:11]; side[b+5] = ad[11:22]; side[b+6] = ad[22:]
            la = int(self.opt.get('la7', 4))
            for u in range(la): load(u)
            for u in range(28):
                p, i = u // 7, u % 7
                S.wait_vm(seq[u])
                items = list(side.get(u, []))
                per = -(-len(items) // 3)
                for m in range(4):
                    c0 = vr(self.hRES+4*p) if (m == 0 and not isC) else '0'
                    a(f"v_mfma_f32_16x16x32_bf16 {vr(accx(p, m))}, {wreg(4*i+m)}, {vr(ring[u % NR])}, {c0 if i == 0 else vr(accx(p, m))}")
                    if m == 0:
                        if u + la < 28: load(u + la)
                    else:
                        for _ in range(per):
                            if items: items.pop(0)()
                if u % 7 == 6: S.ts("s7")
            S.run(Wr(3) + bar)
            S.ts()
            if not isC:
                S.run(Rd(3) + Ad(3, True))
                S.ts("s7")
        self.sync_check()

    def dump_ts(self, S):
        a = S.a
        a("s_waitcnt vmcnt(0)")
        S.ts()
        a(f"""
    s_waitcnt lgkmcnt(0)
    s_lshl_b32 s{sT0}, s2, 3
    s_add_u32 s{sT0}, s{sT0}, s{sW8}
    s_lshl_b32 s{sT0}, s{sT0}, 7
    s_add_u32 s{sT0}, s{sT0}, {DBG:#x}
    v_mov_b32 v7, 0
    s_mov_b64 exec, 1""")
        assert S.nts <= 28
        for i in range(S.nts):
            a(f"v_mov_b32 v6, s{tsreg(i)}\n buffer_store_dword v6, v7, {WS}, s{sT0} offen offset:{4*i}")
        a(f"v_mov_b32 v6, s{sSLOW}\n buffer_store_dword v6, v7, {WS}, s{sT0} offen offset:124")
        a(f"v_mov_b32 v6, s{sXCC}\n buffer_store_dword v6, v7, {WS}, s{sT0} offen offset:120")

    def gen(self):
        C, H = self.C, self.H
        self.prologue(); self.qstage(); self.attention()
        for name in ("s3", "s4", "s5", "s6", "s7"): getattr(self, name)()
        for S in (C, H):
            S.a.label(f"M_{S.name}_{S.nmark}")
            if self.dbg: self.dump_ts(S)
            if S is C: S.a.label("main_exit")
            S.a("s_endpgm")
        tail = Asm()
        self.fallback()
        for S in (C, H):
            for L, body in S.ool:
                S.a.label(L)
                for x in body: S.a(x)
        H.a.label("main_end")
        txt = C.a.finish() + H.a.finish()
        txt += """
.section .rodata,"a"
.p2align 6
.amdhsa_kernel main_kernel
  .amdhsa_next_free_vgpr 256
  .amdhsa_next_free_sgpr 102
  .amdhsa_accum_offset 256
  .amdhsa_group_segment_fixed_size 0
  .amdhsa_kernarg_size 104
  .amdhsa_user_sgpr_count 2
  .amdhsa_user_sgpr_kernarg_segment_ptr 1
  .amdhsa_system_sgpr_workgroup_id_x 1
.end_amdhsa_kernel
"""
        return txt
```

```python
from asmlib import Asm
from layout import *

def srd(a, base, lo, size):
    a(f"""
    s_mov_b32 s{base}, s{lo}
    s_and_b32 s{base+1}, s{lo+1}, 0xffff
    s_mov_b32 s{base+2}, {size:#x}
    s_mov_b32 s{base+3}, 0x20000""")

NLN = 128
NPREP = 320
K1_GRID = NLN + NPREP
K1_LDS = 40960

def gen_k1(dbg=False, opt={}):
    PS = ' sc1' if opt.get('psc1') else (' nt' if opt.get('pnt') else '')
    XSC = ' sc1' if opt.get('xsc1') else ''
    a = Asm()
    def fin():
        if dbg:
            a(f"""
    s_memrealtime s[60:61]
    s_waitcnt vmcnt(0)
    s_memrealtime s[52:53]
    s_lshl_b32 s54, s2, 2
    s_add_u32 s54, s54, s3
    s_lshl_b32 s54, s54, 5
    s_add_u32 s54, s54, {DBG + 0x40000:#x}
    s_waitcnt lgkmcnt(0)
    v_mov_b32 v88, s50
    v_mov_b32 v89, s52
    v_mov_b32 v90, s56
    v_mov_b32 v91, s58
    v_mov_b32 v93, s60
    v_mov_b32 v92, 0
    s_mov_b64 exec, 1
    buffer_store_dwordx4 v[88:91], v92, s[32:35], s54 offen
    buffer_store_dword v93, v92, s[32:35], s54 offen offset:16""")
        a("s_endpgm")
    a(f"""
.text
.globl prep_kernel
.p2align 8
.type prep_kernel,@function""")
    a.label("prep_kernel")
    a(f"""
    s_cmp_ge_u32 s2, {K1_GRID}
    s_cbranch_scc1 K1_end
    {'s_memrealtime s[50:51]' if dbg else ''}
    s_load_dwordx2 s[4:5], s[0:1], 96         ; ws
    v_lshrrev_b32 v1, 6, v0
    v_and_b32 v2, 63, v0                      ; lane
    s_cmp_lt_u32 s2, {NLN}
    v_readfirstlane_b32 s3, v1                ; wave
    s_cbranch_scc0 K1_prep
    s_load_dwordx2 s[6:7], s[0:1], 0          ; x
    s_load_dwordx4 s[8:11], s[0:1], 16
    s_load_dwordx2 s[40:41], s[0:1], 8        ; wq
    s_and_b32 s12, s2, 7
    s_lshr_b32 s13, s2, 3
    s_lshl_b32 s12, s12, 4
    s_add_u32 s12, s12, s13
    v_and_b32 v3, 15, v2                      ; t
    v_lshrrev_b32 v4, 4, v2                   ; g
    v_lshlrev_b32 v5, 10, v3                  ; t*1024
    v_lshl_add_u32 v5, v4, 4, v5              ; + g*16
    s_lshl_b32 s14, s12, 14                   ; tb*16*1024
    s_lshl_b32 s15, s3, 8                     ; w*256
    s_add_u32 s14, s14, s15
    v_lshlrev_b32 v6, 4, v2                   ; lane*16
    s_lshl_b32 s15, s3, 12                    ; w*4096
    s_lshl_b32 s16, s3, 13                    ; w*8192
    s_waitcnt lgkmcnt(0)
    {'s_memrealtime s[56:57]' if dbg else ''}""")
    srd(a, 20, 6, 2048*512*2)
    srd(a, 24, 8, 512*16*2)
    srd(a, 28, 10, 512*16*2)
    srd(a, 32, 4, WS_USED)
    for i in range(4):
        a(f"buffer_load_dwordx4 v[{16+4*i}:{19+4*i}], v5, s[20:23], s14 offen offset:{64*i}")
    a("s_mov_b32 m0, s16")
    for i in range(4):
        a(f"buffer_load_dwordx4 v6, s[24:27], s15 offen offset:{1024*i} lds")
    a("s_add_u32 m0, s16, 4096")
    for i in range(4):
        a(f"buffer_load_dwordx4 v6, s[28:31], s15 offen offset:{1024*i} lds")
    a(f"""
    s_cmp_eq_u32 s3, 2
    s_cbranch_scc0 K1_nohalo
    s_mov_b32 s17, -1
    s_and_b32 s18, s2, 0xfffffffd
    s_cmp_eq_u32 s18, 0
    s_cselect_b32 s17, 0, s17
    s_cmp_eq_u32 s18, 125
    s_cselect_b32 s17, 0, s17
    v_mov_b32 v8, s17
    v_mov_b32 v9, s17
    v_mov_b32 v10, s17
    v_mov_b32 v11, s17
    s_lshr_b32 s18, s2, 2
    s_mul_i32 s18, s18, {GA:#x}
    s_and_b32 s19, s2, 3
    s_lshl_b32 s19, s19, 9
    s_add_u32 s18, s18, s19
    s_add_u32 s18, s18, {HALO:#x}
    s_mov_b32 exec_hi, 0
    buffer_store_dwordx4 v[8:11], v6, s[32:35], s18 offen
    s_mov_b64 exec, -1""")
    a.label("K1_nohalo")
    a(f"""
    s_cmp_eq_u32 s3, 0
    s_cbranch_scc0 K1_nost
    v_mov_b32 v8, -1
    v_mov_b32 v9, -1
    v_mov_b32 v10, -1
    v_mov_b32 v11, -1
    s_lshr_b32 s18, s2, 2
    s_mul_i32 s18, s18, {GA:#x}
    s_and_b32 s19, s2, 3
    s_lshl_b32 s19, s19, 11
    s_add_u32 s18, s18, s19
    s_add_u32 s18, s18, {ST1:#x}
    buffer_store_dwordx4 v[8:11], v6, s[32:35], s18 offen
    buffer_store_dwordx4 v[8:11], v6, s[32:35], s18 offen offset:1024""")
    a.label("K1_nost")
    a(f"""
    s_cmp_eq_u32 s3, 3
    s_cbranch_scc0 K1_noflag
    v_mov_b32 v8, 0
    v_mov_b32 v9, 0
    v_mov_b32 v10, 0
    v_mov_b32 v11, 0
    s_mul_i32 s18, s2, 448
    s_add_u32 s18, s18, {FLAGS:#x}
    s_mov_b64 exec, 0xfffffff
    buffer_store_dwordx4 v[8:11], v6, s[32:35], s18 offen
    s_mov_b64 exec, -1""")
    a.label("K1_noflag")
    a(f"""
    s_cmp_eq_u32 s3, 1
    s_cbranch_scc0 K1_nopf
    s_getpc_b64 s[36:37]""")
    a.label("K1_pc")
    a(f"""
    s_add_u32 s36, s36, main_kernel-K1_pc
    s_addc_u32 s37, s37, 0
    s_lshl_b32 s18, s13, 13
    v_lshlrev_b32 v8, 7, v2
    v_add_u32 v8, s18, v8
    v_cmp_gt_u32 vcc, main_end-main_kernel, v8
    s_and_saveexec_b64 s[38:39], vcc
    s_cbranch_execz K1_pfskip
    global_load_dword v9, v8, s[36:37]""")
    a.label("K1_pfskip")
    a("s_mov_b64 exec, -1")
    a.label("K1_nopf")
    a(f"""
    v_mov_b32 v12, 0
    v_mov_b32 v13, 0
    v_mov_b32 v14, 0x3f803f80
    s_and_b32 s41, s41, 0xffff
    s_mov_b32 s42, 0x80000
    s_mov_b32 s43, 0x20000
    s_lshl_b32 s17, s13, 15
    v_lshlrev_b32 v7, 7, v0
    buffer_load_dword v15, v7, s[40:43], s17 offen
    s_waitcnt vmcnt(1)
    {'s_memrealtime s[58:59]' if dbg else ''}""")
    for i in range(16):
        a(f"v_dot2_f32_bf16 v12, v{16+i}, v14, v12")
    for i in range(16):
        a(f"v_dot2_f32_bf16 v13, v{16+i}, v{16+i}, v13")
    a(f"""
    v_permlane32_swap_b32 v12, v13
    v_add_f32 v12, v12, v13
    v_mov_b32 v13, v12
    v_permlane16_swap_b32 v12, v13
    v_add_f32 v12, v12, v13
    v_lshrrev_b32 v8, 5, v2
    v_lshlrev_b32 v8, 4, v8
    v_lshl_add_u32 v8, v3, 5, v8              ; t*32 + sq*16
    s_lshl_b32 s17, s3, 2
    v_add_u32 v9, s17, v8
    ds_write_b32 v9, v12 offset:32768
    v_lshlrev_b32 v9, 5, v3
    s_waitcnt lgkmcnt(0)
    s_barrier
    ds_read_b128 v[32:35], v9 offset:32768
    ds_read_b128 v[36:39], v9 offset:32784
    v_bfe_u32 v10, v2, 2, 2
    v_lshl_add_u32 v10, v4, 3, v10
    v_lshlrev_b32 v10, 5, v10
    v_and_b32 v11, 3, v2
    v_lshl_add_u32 v10, v11, 3, v10
    v_add_u32 v10, s16, v10""")
    for m in range(2):
        for s in range(4):
            b = 64 + 16*m + 4*s
            a(f"ds_read_b64_tr_b16 v[{b}:{b+1}], v10 offset:{4096*m + 1024*s}")
            a(f"ds_read_b64_tr_b16 v[{b+2}:{b+3}], v10 offset:{4096*m + 1024*s + 128}")
    a(f"""
    s_waitcnt lgkmcnt(15)
    v_add_f32 v32, v32, v33
    v_add_f32 v34, v34, v35
    v_add_f32 v36, v36, v37
    v_add_f32 v38, v38, v39
    v_add_f32 v32, v32, v34                   ; sum
    v_add_f32 v36, v36, v38                   ; sumsq
    v_mul_f32 v32, 0x3b000000, v32            ; mean
    v_mul_f32 v36, 0x3b000000, v36
    v_fma_f32 v36, -v32, v32, v36             ; var
    v_max_f32 v36, 0, v36
    v_add_f32 v36, 0x3727c5ac, v36            ; + 1e-5
    v_rsq_f32 v36, v36
    v_mov_b32 v42, v32
    v_mov_b32 v43, v36
    v_mul_f32 v32, v32, v36
    v_sub_f32 v32, 0, v32                     ; -mean*rstd""")
    for i in range(16):
        a(f"""
    v_lshlrev_b32 v40, 16, v{16+i}
    v_and_b32 v41, 0xffff0000, v{16+i}
    v_fma_f32 v40, v40, v36, v32
    v_fma_f32 v41, v41, v36, v32
    v_cvt_pk_bf16_f32 v{16+i}, v40, v41""")
    a(f"""
    s_lshl_b32 s17, s12, 7
    s_add_u32 s17, s17, {QST:#x}
    v_lshlrev_b32 v8, 3, v3
    s_cmp_lg_u32 s3, 2
    s_cbranch_scc1 K1_nostat
    s_mov_b64 exec, 0xffff
    buffer_store_dwordx2 v[42:43], v8, s[32:35], s17 offen
    s_mov_b64 exec, -1""")
    a.label("K1_nostat")
    a("s_waitcnt lgkmcnt(0)")
    for s in range(4):
        a(f"v_mfma_f32_16x16x32_bf16 v[44:47], v[{64+4*s}:{67+4*s}], v[{16+4*s}:{19+4*s}], {'0' if s == 0 else 'v[44:47]'}")
        a(f"v_mfma_f32_16x16x32_bf16 v[48:51], v[{16+4*s}:{19+4*s}], v[{80+4*s}:{83+4*s}], {'0' if s == 0 else 'v[48:51]'}")
    a(f"""
    s_barrier
    s_lshl_b32 s17, s3, 10
    v_add_u32 v9, s17, v6
    ds_write_b128 v9, v[44:47]
    ds_write_b128 v9, v[48:51] offset:4096
    s_waitcnt lgkmcnt(0)
    s_barrier
    s_cmp_ge_u32 s3, 2
    s_cbranch_scc1 K1_end
    s_lshl_b32 s17, s3, 12
    v_add_u32 v9, s17, v6
    ds_read_b128 v[44:47], v9
    ds_read_b128 v[48:51], v9 offset:1024
    ds_read_b128 v[52:55], v9 offset:2048
    ds_read_b128 v[56:59], v9 offset:3072
    s_lshr_b32 s17, s12, 1
    s_lshl_b32 s17, s17, 11
    s_add_u32 s17, s17, {KV:#x}
    s_and_b32 s18, s12, 1
    v_lshrrev_b32 v10, 1, v4                  ; hA = g>>1
    v_and_b32 v11, 1, v4
    v_lshlrev_b32 v11, 3, v11
    v_lshl_add_u32 v11, v3, 4, v11            ; (t or d)*16 + (g&1)*8
    s_waitcnt lgkmcnt(0)""")
    for r in range(4):
        a(f"""
    v_add_f32 v{44+r}, v{44+r}, v{48+r}
    v_add_f32 v{52+r}, v{52+r}, v{56+r}
    v_add_f32 v{44+r}, v{44+r}, v{52+r}""")
    a(f"""
    v_cvt_pk_bf16_f32 v48, v44, v45
    v_cvt_pk_bf16_f32 v49, v46, v47
    s_cmp_eq_u32 s3, 0
    s_cbranch_scc0 K1_vstore
    s_lshl_b32 s18, s18, 8
    s_add_u32 s17, s17, s18
    v_lshl_add_u32 v11, v10, 9, v11
    buffer_store_dwordx2 v[48:49], v11, s[32:35], s17 offen
    v_mov_b32 v50, 0
    v_dot2_f32_bf16 v50, v48, v48, v50
    v_dot2_f32_bf16 v50, v49, v49, v50
    v_mov_b32 v51, v50
    v_permlane32_swap_b32 v50, v51
    v_add_f32 v50, v50, v51
    v_mov_b32 v51, v50
    v_permlane16_swap_b32 v50, v51
    v_add_f32 v50, v50, v51
    v_max_f32_dpp v50, v50, v50 row_ror:8 row_mask:0xf bank_mask:0xf
    v_max_f32_dpp v50, v50, v50 row_ror:4 row_mask:0xf bank_mask:0xf
    v_max_f32_dpp v50, v50, v50 row_ror:2 row_mask:0xf bank_mask:0xf
    v_max_f32_dpp v50, v50, v50 row_ror:1 row_mask:0xf bank_mask:0xf
    s_lshl_b32 s18, s12, 2
    s_add_u32 s18, s18, {KMAX:#x}
    v_mov_b32 v51, 0
    s_mov_b64 exec, 1
    buffer_store_dword v50, v51, s[32:35], s18 offen""")
    fin()
    a.label("K1_vstore")
    a(f"""
    s_lshl_b32 s18, s18, 9
    s_add_u32 s17, s17, s18
    v_lshl_add_u32 v11, v10, 8, v11
    buffer_store_dwordx2 v[48:49], v11, s[32:35], s17 offen offset:1024""")
    fin()
    a.label("K1_prep")
    a(f"""
    s_load_dwordx2 s[6:7], s[0:1], 8          ; wq
    s_load_dwordx2 s[8:9], s[0:1], 32         ; wo
    s_load_dwordx8 s[12:19], s[0:1], 48       ; w1 w2 w3 w4
    s_sub_u32 s20, s2, {NLN - 32}
    v_lshrrev_b32 v3, 3, v2
    v_and_b32 v4, 7, v2
    v_lshlrev_b32 v4, 4, v4
    v_lshrrev_b32 v7, 4, v2                   ; g
    s_waitcnt lgkmcnt(0)
    {'s_memrealtime s[56:57]' if dbg else ''}
    s_lshr_b32 s21, s20, 5
    s_and_b32 s22, s20, 31                    ; q
    s_mov_b32 s23, 1024
    s_mov_b32 s24, 16                         ; KS
    s_mov_b32 s26, 0x80000
    s_lshl_b32 s25, s21, 19
    s_add_u32 s25, s25, {WQ:#x}               ; dst
    s_cmp_eq_u32 s21, 1
    s_cselect_b64 s[6:7], s[8:9], s[6:7]
    s_cmp_eq_u32 s21, 2
    s_cselect_b64 s[6:7], s[12:13], s[6:7]
    s_cmp_eq_u32 s21, 3
    s_cselect_b64 s[6:7], s[14:15], s[6:7]
    s_cmp_ge_u32 s20, 240
    s_cbranch_scc0 K1_notw4
    s_mov_b64 s[6:7], s[18:19]
    s_sub_u32 s22, s20, 240
    s_mov_b32 s24, 56
    s_mov_b32 s25, {W4:#x}
    s_mov_b32 s26, 0x1c0000""")
    a.label("K1_notw4")
    a(f"""
    s_lshr_b32 s27, s22, 1                    ; ks
    s_and_b32 s28, s22, 1                     ; nq
    s_sub_u32 s29, s20, 128
    s_cmp_lt_u32 s29, 112
    s_cbranch_scc0 K1_notw3
    s_mov_b64 s[6:7], s[16:17]
    s_mov_b32 s23, 3584
    s_mov_b32 s25, {W3:#x}
    s_mov_b32 s26, 0x1c0000
    s_mul_i32 s27, s29, 9363
    s_lshr_b32 s27, s27, 16                   ; q/7
    s_mul_i32 s28, s27, 7
    s_sub_u32 s28, s29, s28""")
    a.label("K1_notw3")
    a(f"""
    s_mov_b32 s40, s6
    s_and_b32 s41, s7, 0xffff
    s_mov_b32 s42, s26
    s_mov_b32 s43, 0x20000""")
    srd(a, 32, 4, WS_USED)
    a(f"""
    v_mul_lo_u32 v5, v3, s23
    v_add_u32 v5, v5, v4
    s_lshl_b32 s30, s27, 5
    s_mul_i32 s30, s30, s23                   ; 32*ks*rowbytes
    s_lshl_b32 s31, s28, 9
    s_add_u32 s30, s30, s31
    s_lshl_b32 s31, s3, 7
    s_add_u32 s30, s30, s31                   ; + nq*512 + w*128
    s_lshl_b32 s31, s23, 3                    ; 8 rows
    s_lshl_b32 s36, s3, 12
    s_mov_b32 m0, s36""")
    for i in range(4):
        a(f"buffer_load_dwordx4 v5, s[40:43], s30 offen lds")
        if i < 3:
            a(f"s_add_u32 s30, s30, s31\n s_add_u32 m0, s36, {1024*(i+1)}")
    a(f"""
    v_lshlrev_b32 v8, 3, v7
    v_lshrrev_b32 v9, 1, v7
    v_lshlrev_b32 v9, 4, v9
    v_and_b32 v10, 1, v7
    v_lshl_add_u32 v9, v10, 2, v9
    s_cmp_eq_u32 s21, 1
    s_cselect_b64 vcc, -1, 0
    s_cselect_b32 s37, 2, 1
    s_lshl_b32 s37, s37, 9
    v_cndmask_b32 v8, v8, v9, vcc
    v_bfe_u32 v9, v2, 2, 2
    v_add_u32 v8, v8, v9
    v_lshlrev_b32 v8, 7, v8
    v_and_b32 v9, 3, v2
    v_lshl_add_u32 v8, v9, 3, v8
    v_add_u32 v8, s36, v8
    v_add_u32 v9, s37, v8
    s_lshl_b32 s38, s28, 2
    s_add_u32 s38, s38, s3                    ; j
    s_mul_i32 s39, s38, s24
    s_add_u32 s39, s39, s27
    s_lshl_b32 s39, s39, 12
    s_lshl_b32 s38, s38, 6
    s_add_u32 s38, s38, s27
    s_lshl_b32 s38, s38, 10                   ; (4j*16 + ks)*1024
    s_lshr_b32 s44, s27, 2
    s_mul_i32 s45, s27, 9363
    s_lshr_b32 s45, s45, 16
    s_cmp_eq_u32 s24, 56
    s_cselect_b32 s44, s45, s44
    s_cmp_lg_u32 s24, 56
    s_cselect_b32 s38, s38, s39
    s_cselect_b32 s44, 0, s44
    s_cselect_b32 s45, 14, 10
    s_add_u32 s38, s38, s25
    v_lshlrev_b32 v6, 4, v2
    s_waitcnt vmcnt(0)
    {'s_memrealtime s[58:59]' if dbg else ''}""")
    for j in range(4):
        a(f"ds_read_b64_tr_b16 v[{16+4*j}:{17+4*j}], v8 offset:{32*j}")
        a(f"ds_read_b64_tr_b16 v[{18+4*j}:{19+4*j}], v9 offset:{32*j}")
    def stores(fl):
        for j in range(4):
            a(f"s_sub_u32 s39, {j}, s44\n s_and_b32 s39, s39, 3\n s_lshl_b32 s39, s39, s45\n s_add_u32 s39, s39, s38")
            a(f"s_waitcnt lgkmcnt({6-2*j})")
            a(f"buffer_store_dwordx4 v[{16+4*j}:{19+4*j}], v6, s[32:35], s39 offen{fl}")
    if PS:
        a("s_cmp_eq_u32 s21, 0\n s_cbranch_scc1 K1_wq")
        stores(PS)
        fin()
        a.label("K1_wq")
    stores("")
    fin()
    a.label("K1_end")
    a("s_endpgm")
    txt = a.finish()
    txt += f"""
.section .rodata,"a"
.p2align 6
.amdhsa_kernel prep_kernel
  .amdhsa_next_free_vgpr 96
  .amdhsa_next_free_sgpr 64
  .amdhsa_accum_offset 96
  .amdhsa_group_segment_fixed_size 0
  .amdhsa_kernarg_size 104
  .amdhsa_user_sgpr_count 2
  .amdhsa_user_sgpr_kernarg_segment_ptr 1
  .amdhsa_system_sgpr_workgroup_id_x 1
.end_amdhsa_kernel
"""
    return txt
```

```python
from asmlib import Asm
from layout import *
import struct, os

def f32(x):
    return "0x%08x" % struct.unpack('<I', struct.pack('<f', x))[0]

K2_LDS = 163840
LOG2E = 1.4426950408889634
QSCALE = 0.25 * LOG2E
GC1 = -2.0 * 0.7978845608028654 * LOG2E
SPIN = 0x40000
ACT = 65536
XST = ACT + 5*8192 + 256
HI = 131072
LA = 5

sW, sGRP, sMEM, sSLOW, sXCC, sW8 = 3, 16, 17, 18, 45, 44
WS, XS, OS = "s[4:7]", "s[8:11]", "s[12:15]"
sT0, sT1, sT2, sT3, sT4, sT5 = 20, 21, 22, 23, 24, 25
sG, sL, sPF, sCNT, sFLG, sAR = 26, 27, 28, 29, 30, 31
sU0, sU1 = 32, 33
sB = 34
sKVW, sTAG, sRND = 40, 41, 33
sTCH = 35
sNT, sORD = 38, 39
sVM = "s[40:41]"
sPL, sW4 = 42, 43
sPP, sPR, sPS, sPD = 46, 56, 60, 65
def tsreg(i): return 70 + 2*i if i < 16 else 46 + 2*(i-16)
vLANE, vL16, vB, vD, vMYF, vXO = 0, 1, 2, 3, 4, 5

def vr(b, n=4): return f"v[{b}:{b+n-1}]"
def V(b): return lambda ks: vr(b+4*ks)
def P(r): return f"v[{r}:{r+1}]"

class Stream:
    uid = 0
    def __init__(self, name, dbg, tags):
        self.name, self.dbg, self.tags = name, dbg, tags
        self.a = Asm(); self.nvm = self.nld = self.nts = self.nbar = 0
        self.ool = []; self.nmark = 0; self.seclen = {}
    def vm(self, text):
        self.a(text); self.nvm += 1; return self.nvm - 1
    def wait_vm(self, seq): self.a(f"s_waitcnt vmcnt({min(self.nvm - 1 - seq, 63)})")
    def ld(self, text):
        self.a(text); self.nld += 1; return self.nld - 1
    def wait_ld(self, seq): self.a(f"s_waitcnt lgkmcnt({min(self.nld - 1 - seq, 15)})")
    def bar(self): self.a("s_barrier"); self.nbar += 1
    def ts(self, tag="main"):
        if self.dbg and tag in self.tags:
            self.a(f"{'s_memtime' if self.dbg == 'cyc' else 's_memrealtime'} s[{tsreg(self.nts)}:{tsreg(self.nts)+1}]")
            self.nts += 1
    def lab(self, p):
        Stream.uid += 1; return f"L_{p}_{Stream.uid}"
    def mark(self):
        i = self.nmark; self.nmark += 1
        L = f"M_{self.name}_{i}"
        n = self.seclen.get(L)
        if n is not None and n < 4000:
            self.a(f"s_branch {L}"); self.a(f".p2align 12,,{n + 64}")
        self.a.label(L)
    def E(self, text): return [(lambda x=x: self.a(x)) for x in text.split("\n") if x.strip()]
    def set_wbase(self, base, ks, dst=sPF):
        self.a(f"s_mul_i32 s{dst}, s{sNT}, {ks*1024}\n s_add_u32 s{dst}, s{dst}, {base:#x}")
    def set_w3(self, slot):
        if slot < 3: self.a(f"s_mul_i32 s{sPF}, s{sW}, 3\n s_add_u32 s{sPF}, s{sPF}, {slot}")
        else: self.a(f"s_lshr_b32 s{sPF}, s{sW}, 1\n s_add_u32 s{sPF}, s{sPF}, 12")
        self.a(f"s_mul_i32 s{sT5}, s{sMEM}, 14\n s_add_u32 s{sPF}, s{sPF}, s{sT5}\n s_lshl_b32 s{sPF}, s{sPF}, 14\n s_add_u32 s{sPF}, s{sPF}, {W3:#x}")
    def set_act(self, base):
        self.a(f"s_lshl_b32 s{sL}, s{sW}, 11\n s_add_u32 s{sG}, s{sAR}, s{sL}\n s_add_u32 s{sG}, s{sG}, {base:#x}\n s_add_u32 s{sL}, s{sL}, {ACT}")
    def tile_soff(self, s, base):
        self.a(f"s_lshl_b32 s{s}, s{sNT}, 11\n s_add_u32 s{s}, s{s}, s{sAR}\n s_add_u32 s{s}, s{s}, {base:#x}")
    def xo_soff(self, s):
        self.a(f"s_lshl_b32 s{s}, s{sNT}, 5\n s_lshl_b32 s{sT5}, s{sGRP}, 16\n s_add_u32 s{s}, s{s}, s{sT5}")
    def act_issue(self, sc="sc1", pre=None, post=None):
        def issue(c):
            self.a(f"s_mov_b32 m0, s{sL}")
            if pre: pre(c)
            self.vm(f"buffer_load_dwordx4 v{vL16}, {WS}, s{sG} offen {sc} lds")
            last = self.vm(f"buffer_load_dwordx4 v{vL16}, {WS}, s{sG} offen offset:1024 {sc} lds")
            if post: post(c)
            self.a(f"s_add_u32 s{sG}, s{sG}, 8192\n s_add_u32 s{sL}, s{sL}, 8192")
            return last
        return issue
    def frags(self, n, sreg, dst=None, lds=None, sc="sc1"):
        def mk(i):
            def f():
                if dst is not None:
                    r = self.vm(f"buffer_load_dwordx4 {dst(i)}, v{vL16}, {WS}, s{sreg} offen offset:{1024*(i&3)} {sc}")
                else:
                    self.a(f"s_mov_b32 m0, s{lds}")
                    r = self.vm(f"buffer_load_dwordx4 v{vL16}, {WS}, s{sreg} offen offset:{1024*(i&3)} {sc} lds")
                if i & 3 == 3:
                    self.a(f"s_add_u32 s{sreg}, s{sreg}, 4096")
                    if lds is not None: self.a(f"s_add_u32 s{lds}, s{lds}, 4096")
                self.lastf = r
                return r
            return f
        return [mk(i) for i in range(n)]
    def run(self, items):
        for f in items: f()
    def setvcc(self): self.a(f"s_mov_b64 vcc, s[{sSLOW}:{sSLOW+1}]")
    NT = True
    def cstore(self, st, nt=True):
        Ls, Le = self.lab("cs"), self.lab("ce")
        self.a(f"s_cbranch_vccnz {Ls}")
        for x in st: self.vm(x + (" nt" if nt and self.NT else ""))
        self.a.label(Le)
        self.ool.append((Ls, [x + " sc1" for x in st] + [f"s_branch {Le}"]))
    def flag(self, stage, t, vf=vMYF, seq=None):
        self.a(f"s_add_u32 s{sT0}, s{sFLG}, {stage*8192}\n v_mov_b32 v{t}, 1")
        if seq is None: self.a("s_waitcnt vmcnt(0)")
        else: self.wait_vm(seq)
        self.a("s_mov_b64 exec, 1")
        self.cstore([f"buffer_store_dword v{t}, v{vf}, {WS}, s{sT0} offen"], nt=False)
        self.a("s_mov_b64 exec, -1")
    def poll(self, stage, vf, p0, mid=()):
        a = self.a; L, Ld = self.lab("poll"), self.lab("pdone"); p1 = p0 + 1
        a(f"s_add_u32 s{sT0}, s{sFLG}, {stage*8192}\n s_mov_b32 s{sCNT}, 0")
        q = self.vm(f"buffer_load_dword v{p0}, v{vf}, {WS}, s{sT0} offen sc1")
        self.run(mid)
        self.vm(f"buffer_load_dword v{p1}, v{vf}, {WS}, s{sT0} offen sc1")
        self.wait_vm(q)
        a(f"v_cmp_ne_u32 vcc, 1, v{p0}\n s_cbranch_vccz {Ld}")
        a.label(L)
        a(f"""
    buffer_load_dword v{p0}, v{vf}, {WS}, s{sT0} offen sc1
    s_waitcnt vmcnt(1)
    v_cmp_ne_u32 vcc, 1, v{p1}
    s_add_u32 s{sCNT}, s{sCNT}, 1
    s_cbranch_vccz {Ld}
    buffer_load_dword v{p1}, v{vf}, {WS}, s{sT0} offen sc1
    s_cmp_gt_u32 s{sCNT}, {SPIN}
    s_cbranch_scc1 main_exit
    s_waitcnt vmcnt(1)
    v_cmp_ne_u32 vcc, 1, v{p0}
    s_cbranch_vccnz {L}""")
        a.label(Ld)
        self.setvcc()
    def regcheck(self, r, z):
        a = self.a; L, L0 = self.lab("reg"), self.lab("reg0")
        a(f"s_mov_b32 s{sCNT}, 0")
        a.label(L0)
        a(f"""
    v_readfirstlane_b32 s{sT1}, v{r}
    s_and_b32 s{sT2}, s{sT1}, 0x0f0f0f0f
    s_lshr_b32 s{sT3}, s{sT1}, 4
    s_and_b32 s{sT3}, s{sT3}, 0x0f0f0f0f
    s_add_u32 s{sT2}, s{sT2}, s{sT3}
    s_mul_i32 s{sT2}, s{sT2}, 0x01010101
    s_lshr_b32 s{sT2}, s{sT2}, 24
    s_cmp_lg_u32 s{sT2}, 8
    s_cbranch_scc1 {L}
    s_lshl_b32 s{sT2}, s{sXCC}, 2
    s_lshl_b32 s{sT2}, 8, s{sT2}
    s_cmp_lg_u32 s{sT1}, s{sT2}
    s_cselect_b64 s[{sSLOW}:{sSLOW+1}], -1, 0""")
        self.ool.append((L, [f"s_add_u32 s{sT0}, s{sFLG}, {5*8192}", f"buffer_load_dword v{r}, v{z}, {WS}, s{sT0} offen sc1",
                             f"s_add_u32 s{sCNT}, s{sCNT}, 1", f"s_cmp_gt_u32 s{sCNT}, {SPIN}", "s_cbranch_scc1 main_exit",
                             "s_waitcnt vmcnt(0)", f"s_branch {L0}"]))
    def regload(self, r, z):
        self.a(f"s_add_u32 s{sT0}, s{sFLG}, {5*8192}\n v_mov_b32 v{z}, 0")
        return self.vm(f"buffer_load_dword v{r}, v{z}, {WS}, s{sT0} offen sc1")
    def load_gemm(self, issue, la=LA, side=None, tag=None, ramp=True):
        side = side or {}
        seqs = {}
        if tag: self.ts(tag)
        ni = 3
        for c in range(ni): seqs[c] = issue(c)
        self.run(side.get(-1, []))
        if tag: self.ts(tag)
        for c in range(8):
            self.wait_vm(seqs[c])
            self.run(side.get((c, 'pre'), []))
            if tag: self.ts(tag)
            self.bar()
            for _ in range(2 if (c < 2 and ramp) else 1):
                if ni < 8: seqs[ni] = issue(ni); ni += 1
            self.run(side.get(c, []))
    def cons_gemm(self, areg, ACC, BP, side=None, prewait=None, defer=None, tag=None, baddr=None, prebar=None, postbar=None, onebar=False):
        a = self.a
        side = {k: list(v) for k, v in (side or {}).items()}
        work = [[(2*c+s, jt) for s in range(2) for jt in range(4) if not (defer and defer(2*c+s) == jt)] for c in range(8)]
        if defer: work += [[(ks, defer(ks)) for ks in range(8)], [(ks, defer(ks)) for ks in range(8, 16)]]
        nch = len(work); rs = {}; started = set()
        def read(c, i):
            ks, jt = work[c][i]
            r, off = baddr(ks, jt) if baddr else (vB, 4096*ks + 256*jt)
            rs[(c, i)] = self.ld(f"ds_read_b128 {vr(BP+4*i)}, v{r} offset:{off}")
        if tag: self.ts(tag)
        if prebar: prebar(0)
        self.bar()
        if postbar: postbar(0)
        for i in range(len(work[0])): read(0, i)
        if tag: self.ts(tag)
        for c in range(nch):
            nxt = c + 1 < nch
            if c + 1 < 8 and prebar: prebar(c+1)
            if (c + 1 < 8 or (c + 1 == 8 and defer)) and not onebar: self.bar()
            if c + 1 < 8 and postbar: postbar(c+1)
            if prewait: prewait(c)
            items = side.pop(c, [])
            n = len(work[c]); nn = len(work[c+1]) if nxt else 0
            per = -(-len(items) // n)
            for i in range(n, nn): read(c+1, i)
            for i in range(n):
                ks, jt = work[c][i]
                if i % 2 == 0: self.wait_ld(rs[(c, min(i+1, n-1))])
                cc = vr(ACC+4*jt) if jt in started else "0"
                started.add(jt)
                a(f"v_mfma_f32_16x16x32_bf16 {vr(ACC+4*jt)}, {areg(ks)}, {vr(BP+4*i)}, {cc}")
                if i < nn: read(c+1, i)
                for _ in range(per):
                    if items: items.pop(0)()
            if tag: self.ts(tag)
        assert not side
    def gelu(self, acc, cs, S, out, t, pk):
        I = []
        if pk:
            for i in (0, 2): I.append(f"v_pk_fma_f32 {P(acc+i)}, {P(S)}, {P(cs+i)}, {P(acc+i)} op_sel_hi:[0,1,1] neg_lo:[1,0,0] neg_hi:[1,0,0]")
            for i in (0, 2): I.append(f"v_pk_mul_f32 {P(t+i)}, {P(acc+i)}, {P(acc+i)}")
            for i in (0, 2): I.append(f"v_pk_fma_f32 {P(t+i)}, {P(S+2)}, {P(t+i)}, {P(S+2)} op_sel:[1,0,0] op_sel_hi:[1,1,0]")
            for i in (0, 2): I.append(f"v_pk_mul_f32 {P(t+i)}, {P(t+i)}, {P(acc+i)}")
            for i in range(4): I.append(f"v_exp_f32 v{t+i}, v{t+i}")
            for i in (0, 2): I.append(f"v_pk_fma_f32 {P(t+i)}, {P(S)}, {P(t+i)}, {P(S)} op_sel:[1,0,1] op_sel_hi:[1,1,1]")
            for i in range(4): I.append(f"v_rcp_f32 v{t+i}, v{t+i}")
            for i in (0, 2): I.append(f"v_pk_mul_f32 {P(acc+i)}, {P(acc+i)}, {P(t+i)}")
        else:
            for i in range(4): I.append(f"v_fma_f32 v{acc+i}, -v{S}, v{cs+i}, v{acc+i}")
            for i in range(4): I.append(f"v_mul_f32 v{t+i}, v{acc+i}, v{acc+i}")
            for i in range(4): I.append(f"v_fma_f32 v{t+i}, v{t+i}, v{S+3}, v{S+2}")
            for i in range(4): I.append(f"v_mul_f32 v{t+i}, v{t+i}, v{acc+i}")
            for i in range(4): I.append(f"v_exp_f32 v{t+i}, v{t+i}")
            for i in range(4): I.append(f"v_fma_f32 v{t+i}, v{t+i}, v{S+1}, v{S+1}")
            for i in range(4): I.append(f"v_rcp_f32 v{t+i}, v{t+i}")
            for i in range(4): I.append(f"v_mul_f32 v{acc+i}, v{acc+i}, v{t+i}")
        return I + [f"v_cvt_pk_bf16_f32 v{out}, v{acc}, v{acc+1}", f"v_cvt_pk_bf16_f32 v{out+1}, v{acc+2}, v{acc+3}"]
    def gelu2(self, x, y, t, pk):
        p, q = self.gelu(*x, t, pk), self.gelu(*y, t+4, pk)
        return [z for pair in zip(p, q) for z in pair]
    def colsum(self, areg, dst, ones):
        for i in range(4): self.a(f"v_mov_b32 v{ones+i}, 0x3f803f80")
        for ks in range(16):
            self.a(f"v_mfma_f32_16x16x32_bf16 {vr(dst)}, {areg(ks)}, {vr(ones)}, {'0' if ks == 0 else vr(dst)}")
    def unpack(self, src, dst): self.a(f"v_lshlrev_b32 v{dst}, 16, v{src}\n v_and_b32 v{dst+1}, 0xffff0000, v{src}")
    def lds2reg(self, dst, n, va):
        for i in range(n): self.ld(f"ds_read_b128 {dst(i)}, v{va} offset:{1024*i}")
    def stat_reads(self, STAT, va, order, R1=None):
        it = []
        for jt in range(4):
            if order: x = f"ds_read_b128 {vr(STAT+4*jt)}, v{va+(jt&1)} offset:{512*(jt>>1)}"
            else: x = f"ds_read_b128 {vr(STAT+4*jt)}, v{va} offset:{256*jt}"
            it.append(lambda x=x: setattr(self, 'stseq', self.ld(x)))
        if R1 is not None:
            for jt in range(4):
                it.append(lambda jt=jt: setattr(self, 'stseq', self.ld(f"ds_read_b32 v{R1+jt}, v{va} offset:{1024 + 256*jt}")))
        return it

class Main:
    def __init__(self, dbg=False, tags=('main',), opt=None, seclen=None):
        self.dbg = dbg; self.opt = opt or {}
        Stream.uid = 0; Stream.NT = not self.opt.get('nont')
        self.C = Stream('C', dbg, tags); self.H = Stream('H', dbg, tags)
        self.C.seclen = self.H.seclen = seclen or {}
    def sync_check(self): assert self.C.nbar == self.H.nbar, (self.C.nbar, self.H.nbar)

    def prologue(self):
        C, H = self.C, self.H; a = C.a
        a(f".text\n.globl {NAME}_kernel\n.p2align 12\n.type {NAME}_kernel,@function")
        a.label(f"{NAME}_kernel")
        a.label("main_kernel")
        a(f"""
    s_cmp_ge_u32 s2, 256
    s_cbranch_scc1 main_exit
    s_load_dwordx2 s[4:5], s[0:1], 96
    s_load_dwordx2 s[8:9], s[0:1], 0
    s_load_dwordx2 s[12:13], s[0:1], 80
    s_load_dwordx2 s[{sPR}:{sPR+1}], s[0:1], 8
    s_load_dwordx4 s[32:35], s[0:1], 16
    s_load_dwordx2 s[{sPP}:{sPP+1}], s[0:1], 32
    s_load_dwordx8 s[{sPP+2}:{sPP+9}], s[0:1], 48""")
        if self.dbg:
            a(f"{'s_memtime' if self.dbg == 'cyc' else 's_memrealtime'} s[70:71]"); C.nts = H.nts = 1
        a(f"""
    v_lshrrev_b32 v1, 6, v0
    v_and_b32 v{vLANE}, 63, v0
    v_readfirstlane_b32 s{sW8}, v1
    s_and_b32 s{sT0}, s2, 7
    s_lshr_b32 s{sT1}, s2, 3
    s_lshl_b32 s{sGRP}, s{sT0}, 2
    s_lshr_b32 s{sT2}, s{sT1}, 3
    s_add_u32 s{sGRP}, s{sGRP}, s{sT2}
    s_and_b32 s{sMEM}, s{sT1}, 7
    s_and_b32 s{sW}, s{sW8}, 3
    s_mul_i32 s{sAR}, s{sGRP}, {GA:#x}
    s_lshl_b32 s{sNT}, s{sMEM}, 2
    s_add_u32 s{sNT}, s{sNT}, s{sW}
    v_lshlrev_b32 v{vL16}, 4, v{vLANE}
    s_getpc_b64 s[42:43]""")
        a.label("L_pc0")
        a(f"""
    s_sub_u32 s42, s42, L_pc0-main_kernel
    s_subb_u32 s43, s43, 0
    s_lshl_b32 s{sT1}, s{sT1}, 3
    s_add_u32 s{sT1}, s{sT1}, s{sW8}
    s_lshl_b32 s{sT1}, s{sT1}, 8
    v_and_b32 v9, 1, v{vLANE}
    v_lshlrev_b32 v9, 7, v9
    v_add_u32 v9, s{sT1}, v9
    v_min_u32 v9, main_end-main_kernel-4, v9
    global_load_dword v255, v9, s[42:43]
    s_mov_b32 s6, {WS_USED:#x}
    s_mov_b32 s7, 0x20000
    v_lshrrev_b32 v8, 3, v{vLANE}
    s_mov_b32 s10, {2048*1024:#x}
    s_mov_b32 s11, 0x20000
    s_mov_b32 s{sPR+3}, 0x20000
    s_cmp_lt_u32 s{sW8}, 4
    s_cbranch_scc1 C_entry""")
        self.head = a.lines; a.lines = []
        a(".p2align 8"); a.label("C_entry")
    def setup_common(self, S, t):
        S.a(f"""
    s_mov_b32 s14, {2048*1024:#x}
    s_mov_b32 s15, 0x20000
    s_getreg_b32 s{sXCC}, hwreg(HW_REG_XCC_ID, 0, 3)
    v_and_b32 v{t}, 15, v{vLANE}                  ; t
    v_lshrrev_b32 v{t+1}, 4, v{vLANE}             ; g
    v_lshlrev_b32 v{vB}, 10, v{t+1}
    v_lshl_add_u32 v{vB}, v{t}, 4, v{vB}
    v_add_u32 v{vB}, {ACT}, v{vB}                 ; ACT + g*1024 + t*16
    v_lshrrev_b32 v{vD}, 1, v{t+1}
    v_lshlrev_b32 v{vD}, 10, v{vD}
    v_lshl_add_u32 v{vD}, v{t}, 4, v{vD}
    v_and_b32 v{t+2}, 1, v{t+1}
    v_lshl_add_u32 v{vD}, v{t+2}, 3, v{vD}        ; (g>>1)*1024 + t*16 + (g&1)*8
    s_lshl_b32 s{sT0}, s{sNT}, 2
    v_mov_b32 v{vMYF}, s{sT0}
    s_lshl_b32 s{sFLG}, s{sGRP}, 8
    s_add_u32 s{sFLG}, s{sFLG}, {FLAGS:#x}
    v_lshlrev_b32 v{t+2}, 10, v{t}
    v_lshl_add_u32 v{vXO}, v{t+1}, 3, v{t+2}      ; t*1024 + g*8
    s_and_b32 s{sORD}, s{sW}, 1
    s_lshl_b32 s{sORD}, s{sORD}, 8""")

    cT = 6
    S0, S1, NEGM, OA, OB, QA, QB, vIDX, vKA, vVA, vREG = 24, 40, 56, 72, 88, 16, 20, 13, 14, 15, 11
    KVR = 104
    NB = 1
    SCR = 16384
    def x_addr(self, S, dst, t, x):
        S.a(f"""
    v_lshrrev_b32 v{x}, 4, v{vLANE}
    v_and_b32 v{x+1}, 7, v{vLANE}
    v_xor_b32 v{x+1}, v{x+1}, v{x}
    v_lshlrev_b32 v{x+1}, 4, v{x+1}
    v_lshl_add_u32 v{dst}, v{t}, 7, v{x+1}
    v_add_u32 v{dst}, 32768, v{dst}""")
    def qstage(self):
        C, H = self.C, self.H; a = C.a; t = self.cT
        WQR, QACC, QBP = 192, 24, 40
        XB, WB = 32768, 98304
        QS = 144
        a(f"""
    v_bfe_u32 v9, v{vLANE}, 4, 1
    s_and_b32 s{sT0}, s{sW}, 1
    s_lshl_b32 s{sT0}, s{sT0}, 1
    v_or_b32 v9, s{sT0}, v9
    v_bfe_u32 v10, v{vLANE}, 1, 2
    v_xor_b32 v9, v9, v10
    v_lshlrev_b32 v9, 5, v9
    v_and_b32 v10, 1, v{vLANE}
    v_lshl_add_u32 v9, v10, 4, v9
    v_lshl_add_u32 v134, v8, 10, v9
    s_mov_b32 s{sPR+2}, 0x80000""")
        if not self.opt.get('lateraw'): self.prep_setup(C, 152)
        self.setup_common(C, t)
        a(f"""
    s_mov_b32 s40, 0xffff
    s_mov_b32 s41, 0xffff
    v_mov_b32 v{self.vIDX}, 0xdddddddd
    v_mov_b32 v{self.vKA}, v{vL16}
    v_lshrrev_b32 v{t+1}, 5, v{vLANE}
    v_lshlrev_b32 v{t+1}, 8, v{t+1}
    v_lshl_add_u32 v{self.vVA}, v{t}, 4, v{t+1}   ; hA*256 + d*16""")
        for i in range(32): a(f"v_mov_b32 v{self.OA+i}, 0")
        a(f"v_and_b32 v{t+1}, 31, v{vLANE}\n v_cmp_eq_u32 vcc, 16, v{t+1}\n v_mov_b32 v{t+1}, 0x3f803f80")
        for b in range(2):
            for i in range(8): a(f"v_cndmask_b32 v{self.KVR+12*b+4+i}, 0, v{t+1}, vcc")
        a(f"""
    s_waitcnt lgkmcnt(0)
    s_and_b32 s5, s5, 0xffff
    s_and_b32 s13, s13, 0xffff
    s_and_b32 s{sPR+1}, s{sPR+1}, 0xffff
    s_lshl_b32 s{sG}, s{sW}, 13
    s_lshl_b32 s{sT0}, s{sMEM}, 7
    s_add_u32 s{sG}, s{sG}, s{sT0}
    s_lshl_b32 s{sL}, s{sW}, 10""")
        if self.opt.get("xbar"): C.bar()
        for i in range(16):
            a(f"s_add_u32 m0, s{sL}, {WB + 4096*i}")
            C.vm(f"buffer_load_dwordx4 v134, s[{sPR}:{sPR+3}], s{sG} offen lds")
            if i < 15: a(f"s_add_u32 s{sG}, s{sG}, 32768")
        wqseq = C.nvm - 1
        if not self.opt.get('lateraw'): self.prep_load(C, 152, 160)
        self.x_addr(C, 130, t, t+1)
        a(f"""
    v_xor_b32 v131, 64, v130
    v_bfe_u32 v{t+2}, v{vLANE}, 2, 2
    v_lshl_add_u32 v132, v{t+1}, 3, v{t+2}
    v_lshlrev_b32 v132, 7, v132
    v_and_b32 v{t+1}, 1, v{t+1}
    v_lshrrev_b32 v{t+2}, 1, v{t+2}
    v_lshl_add_u32 v{t+1}, v{t+1}, 1, v{t+2}
    v_xor_b32 v{t+1}, s{sW}, v{t+1}
    v_lshl_add_u32 v132, v{t+1}, 5, v132
    v_and_b32 v{t+2}, 3, v{vLANE}
    v_lshl_add_u32 v132, v{t+2}, 3, v132
    v_add_u32 v132, {WB}, v132
    v_lshlrev_b32 v133, 3, v{t}""")
        ONE, CSQ = 136, 140
        for i in range(4): a(f"v_mov_b32 v{ONE+i}, 0x3f803f80")
        C.wait_vm(wqseq)
        def postbar(c):
            for ks in (2*c, 2*c+1):
                C.ld(f"ds_read_b64_tr_b16 {P(WQR+4*ks)}, v132 offset:{4096*ks}")
                C.ld(f"ds_read_b64_tr_b16 {P(WQR+4*ks+2)}, v132 offset:{4096*ks+512}")
        side = {c: [(lambda ks=ks: a(f"v_mfma_f32_16x16x32_bf16 {vr(CSQ)}, {vr(WQR+4*ks)}, {vr(ONE)}, {'0' if ks == 0 else vr(CSQ)}")) for ks in (2*c, 2*c+1)] for c in range(8)}
        side[5] += [(lambda jt=jt: C.ld(f"ds_read_b64 {P(QS+2*jt)}, v133 offset:{self.SCR + 128*jt}")) for jt in range(4)]
        C.cons_gemm(V(WQR), QACC, QBP, side=side, baddr=lambda ks, jt: (130 + (ks & 1), 8192*(ks >> 1) + 2048*jt),
                    postbar=postbar, tag="q", onebar=True)
        C.ts()
        QA, QB = self.QA, self.QB
        for jt in range(4): a(f"v_mul_f32 v{QS+2*jt+1}, {f32(QSCALE)}, v{QS+2*jt+1}")
        for jt in range(4):
            for h in (0, 2): a(f"v_pk_fma_f32 {P(QACC+4*jt+h)}, {P(QS+2*jt)}, {P(CSQ+h)}, {P(QACC+4*jt+h)} op_sel_hi:[0,1,1] neg_lo:[1,0,0] neg_hi:[1,0,0]")
        for jt in range(4):
            for h in (0, 2): a(f"v_pk_mul_f32 {P(QACC+4*jt+h)}, {P(QS+2*jt)}, {P(QACC+4*jt+h)} op_sel:[1,0] op_sel_hi:[1,1]")
        for jt in range(4):
            a(f"v_cvt_pk_bf16_f32 v{QA+2*jt}, v{QACC+4*jt}, v{QACC+4*jt+1}")
            a(f"v_cvt_pk_bf16_f32 v{QA+2*jt+1}, v{QACC+4*jt+2}, v{QACC+4*jt+3}")
        a(f"v_mov_b32 v{t}, 0\n v_mov_b32 v{t+1}, 0")
        for q in (QA, QB): a(f"v_permlane16_swap_b32 v{q}, v{q+2}\n v_permlane16_swap_b32 v{q+1}, v{q+3}")
        for i in range(4): a(f"v_dot2_f32_bf16 v{t}, v{QA+i}, v{QA+i}, v{t}\n v_dot2_f32_bf16 v{t+1}, v{QB+i}, v{QB+i}, v{t+1}")
        a(f"""
    v_permlane32_swap_b32 v{t}, v{t+1}
    v_add_f32 v{t}, v{t}, v{t+1}
    v_mov_b32 v{t+1}, v{t}
    v_permlane32_swap_b32 v{t}, v{t+1}
    v_max_f32 v{t}, v{t}, v{t+1}
    v_sqrt_f32 v{t}, v{t}
    v_mov_b32 v133, {self.SCR + 512}""")
        C.ts("q"); C.bar(); C.ts("q")
        a(f"s_lshl_b32 s{sT0}, s{sW}, 10\n s_add_u32 s{sT0}, s{sT0}, {HI}\n v_add_u32 v134, s{sT0}, v{vL16}\n s_waitcnt vmcnt(0)")
        if not self.opt.get('lateraw'):
            for i in range(5): a(f"ds_write_b128 v134, {vr(160+4*i)} offset:{4096*i}")
        a(f"""
    ds_read_b64 v[128:129], v133
    s_waitcnt lgkmcnt(0)
    v_mul_f32 v{self.NEGM}, v{t}, v128
    v_readfirstlane_b32 s{sSLOW}, v129""")
        for i in range(1, 16): a(f"v_mov_b32 v{self.NEGM+i}, v{self.NEGM}")
        a(f"s_mov_b32 s{sSLOW+1}, s{sSLOW}")

        a = H.a; v = self.PV
        XF, WF = 64, 128
        a(f"""
    s_setprio 3
    v_and_b32 v9, 7, v{vLANE}
    v_xor_b32 v9, v9, v8
    v_lshlrev_b32 v9, 4, v9
    v_lshl_add_u32 v19, v8, 10, v9
    s_lshl_b32 s{sPF}, s{sGRP}, 16
    s_lshl_b32 s{sT0}, s{sW}, 14
    s_add_u32 s{sPF}, s{sPF}, s{sT0}
    s_lshl_b32 s{sL}, s{sW}, 11
    s_add_u32 s{sL}, s{sL}, {XB}
    s_lshr_b32 s{sKVW}, s{sMEM}, 1
    s_mov_b32 s{sPR+2}, 16384
    v_mov_b32 v7, 0
    s_bitcmp1_b32 s{sMEM}, 0
    s_waitcnt lgkmcnt(0)
    s_cselect_b64 s[{sPR}:{sPR+1}], s[34:35], s[32:33]
    s_and_b32 s5, s5, 0xffff
    s_and_b32 s9, s9, 0xffff
    s_and_b32 s13, s13, 0xffff
    s_and_b32 s{sPR+1}, s{sPR+1}, 0xffff
    s_mov_b32 s{sT0}, {TAGW:#x}
    buffer_load_dword v47, v7, {WS}, s{sT0} offen sc1""")
        for c in range(8):
            a(f"""
    s_add_u32 s{sT0}, s{sMEM}, {c}
    s_and_b32 s{sT0}, s{sT0}, 7
    s_lshl_b32 s{sG}, s{sT0}, 7
    s_add_u32 s{sG}, s{sG}, s{sPF}
    s_lshl_b32 s{sT0}, s{sT0}, 13
    s_add_u32 m0, s{sT0}, s{sL}""")
            H.vm(f"buffer_load_dwordx4 v19, {XS}, s{sG} offen lds")
            a(f"s_add_u32 s{sG}, s{sG}, {8192 - 1024}")
            xseq = H.vm(f"buffer_load_dwordx4 v19, {XS}, s{sG} offen offset:1024 lds")
        self.setup_common(H, 16)
        L = H.lab("nokv1")
        a(f"s_cmp_lg_u32 s{sKVW}, s{sW}\n s_cbranch_scc1 {L}")
        for i in range(4):
            a(f"s_mov_b32 m0, {4096*i}\n s_mov_b32 s{sT0}, {4096*i}")
            for k in range(4): a(f"buffer_load_dwordx4 v{vL16}, s[{sPR}:{sPR+3}], s{sT0} offen offset:{1024*k} lds")
        a.label(L)
        if self.opt.get("xbar"): H.bar()
        self.prep_setup(H, self.PV)
        self.x_addr(H, 40, 16, 42)
        a(f"s_lshl_b32 s{sT0}, s{sW}, 11\n v_add_u32 v40, s{sT0}, v40\n v_xor_b32 v41, 64, v40")
        a("v_mov_b32 v32, 0\n v_mov_b32 v33, 0\n v_mov_b32 v34, 0\n v_mov_b32 v35, 0\n v_mov_b32 v60, 0x3f803f80\n v_mov_b32 v61, 0x3f803f80\n v_mov_b32 v62, 0x3f803f80\n v_mov_b32 v63, 0x3f803f80")
        H.ts("q")
        L, L2 = H.lab("noinit"), H.lab("initd")
        a(f"s_cmp_lg_u32 s{sKVW}, s{sW}\n s_cbranch_scc1 {L}")
        a(f"""
    v_mov_b32 v48, 0
    v_mov_b32 v49, 0
    v_mov_b32 v50, 0
    v_mov_b32 v51, 0
    v_lshrrev_b32 v52, 1, v{vLANE}
    v_lshlrev_b32 v52, 13, v52
    v_and_b32 v53, 1, v{vLANE}
    v_lshl_add_u32 v52, v53, 4, v52
    s_lshl_b32 s{sT0}, s{sMEM}, 5
    s_add_u32 s{sT0}, s{sT0}, s{sFLG}
    s_mov_b64 exec, 0x3fff
    buffer_store_dwordx4 v[48:51], v52, {WS}, s{sT0} offen sc1
    s_lshl_b32 s{sT0}, s2, 7
    s_add_u32 s{sT0}, s{sT0}, {PFLAG:#x}
    s_mov_b64 exec, 1
    buffer_store_dword v48, v7, {WS}, s{sT0} offen sc1
    s_mov_b64 exec, -1
    v_mov_b32 v52, -1
    v_mov_b32 v53, -1
    v_mov_b32 v54, -1
    v_mov_b32 v55, -1
    s_lshl_b32 s{sT0}, s{sMEM}, 10
    s_add_u32 s{sT0}, s{sT0}, s{sAR}
    s_add_u32 s{sT0}, s{sT0}, {ST1:#x}
    buffer_store_dwordx4 v[52:55], v{vL16}, {WS}, s{sT0} offen sc1
    s_bfe_u32 s{sT1}, s{sMEM}, 0x10001
    s_mul_i32 s{sT1}, s{sT1}, 31
    s_cmp_eq_u32 s{sT1}, s{sGRP}
    s_cselect_b32 s{sT1}, 0, -1
    v_mov_b32 v56, s{sT1}
    v_mov_b32 v57, s{sT1}
    v_mov_b32 v58, s{sT1}
    v_mov_b32 v59, s{sT1}
    s_lshl_b32 s{sT0}, s{sMEM}, 8
    s_add_u32 s{sT0}, s{sT0}, s{sAR}
    s_add_u32 s{sT0}, s{sT0}, {HALO:#x}
    s_mov_b64 exec, 0xffff
    buffer_store_dwordx4 v[56:59], v{vL16}, {WS}, s{sT0} offen sc1
    s_mov_b64 exec, -1""")
        a(f"s_waitcnt vmcnt(4)\n s_branch {L2}")
        a.label(L)
        a("s_waitcnt vmcnt(0)")
        a.label(L2)
        H.ts("q")
        rs = [H.ld(f"ds_read_b128 {vr(XF+4*ks)}, v{40 + (ks & 1)} offset:{8192*(ks >> 1)}") for ks in range(16)]
        L = H.lab("nokv2")
        a(f"""
    s_cmp_lg_u32 s{sKVW}, s{sW}
    s_cbranch_scc1 {L}
    v_bfe_u32 v42, v{vLANE}, 2, 2
    v_lshl_add_u32 v42, v17, 3, v42
    v_lshlrev_b32 v42, 5, v42
    v_and_b32 v43, 3, v{vLANE}
    v_lshl_add_u32 v42, v43, 3, v42""")
        for ks in range(16):
            a(f"ds_read_b64_tr_b16 {P(WF+4*ks)}, v42 offset:{1024*ks}\n ds_read_b64_tr_b16 {P(WF+4*ks+2)}, v42 offset:{1024*ks+128}")
        a.label(L)
        for ks in range(16):
            if ks % 2 == 0: H.wait_ld(rs[ks+1])
            a(f"v_mfma_f32_16x16x32_bf16 v[36:39], v[60:63], {vr(XF+4*ks)}, {'0' if ks == 0 else 'v[36:39]'}")
            for i in range(4): a(f"v_dot2_f32_bf16 v{32+i}, v{XF+4*ks+i}, v{XF+4*ks+i}, v{32+i}")
        a(f"""
    v_add_f32 v32, v32, v33
    v_add_f32 v34, v34, v35
    v_add_f32 v45, v32, v34
    v_mov_b32 v44, v45
    v_permlane32_swap_b32 v44, v45
    v_add_f32 v45, v44, v45
    v_mov_b32 v44, v45
    v_permlane16_swap_b32 v44, v45
    v_add_f32 v45, v44, v45
    v_mul_f32 v44, 0x3b000000, v36
    v_mul_f32 v45, 0x3b000000, v45
    v_fma_f32 v45, -v44, v44, v45
    v_max_f32 v45, 0, v45
    v_add_f32 v45, 0x3727c5ac, v45
    v_rsq_f32 v45, v45
    s_lshl_b32 s{sT0}, s{sW}, 7
    v_lshl_add_u32 v46, v16, 3, s{sT0}
    ds_write_b64 v46, v[44:45] offset:{self.SCR}""")
        a(f"v_readfirstlane_b32 s{sTAG}, v47\n s_add_u32 s{sTAG}, s{sTAG}, 1")
        L, Lv, Lp = H.lab("nokv3"), H.lab("isv"), H.lab("pub")
        a(f"""
    s_waitcnt lgkmcnt(0)
    s_cmp_lg_u32 s{sKVW}, s{sW}
    s_cbranch_scc1 {L}
    s_lshl_b32 s{sT1}, s{sGRP}, 1
    s_lshr_b32 s{sT2}, s{sW}, 1
    s_add_u32 s{sT1}, s{sT1}, s{sT2}
    s_lshl_b32 s{sT1}, s{sT1}, 11
    s_add_u32 s{sT1}, s{sT1}, {KV:#x}             ; tile32*2048
    v_lshrrev_b32 v42, 1, v17                     ; hA
    v_and_b32 v43, 0xff, v{vD}                    ; (t or d)*16 + (g&1)*8
    s_bitcmp1_b32 s{sMEM}, 0
    s_cbranch_scc1 {Lv}""")
        for ks in range(16):
            a(f"v_mfma_f32_16x16x32_bf16 v[48:51], {vr(WF+4*ks)}, {vr(XF+4*ks)}, {'0' if ks == 0 else 'v[48:51]'}")
            a(f"v_mfma_f32_16x16x32_bf16 v[52:55], {vr(WF+4*ks)}, v[60:63], {'0' if ks == 0 else 'v[52:55]'}")
        a(f"s_add_u32 s{sT1}, s{sT1}, s{sORD}\n v_lshl_add_u32 v43, v42, 9, v43")
        for i in range(4): a(f"v_fma_f32 v{48+i}, -v44, v{52+i}, v{48+i}")
        for i in range(4): a(f"v_mul_f32 v{48+i}, v{48+i}, v45")
        a(f"""
    v_cvt_pk_bf16_f32 v52, v48, v49
    v_cvt_pk_bf16_f32 v53, v50, v51
    v_mov_b32 v57, 0
    buffer_store_dwordx2 v[52:53], v43, {WS}, s{sT1} offen sc1
    v_dot2_f32_bf16 v57, v52, v52, v57
    v_dot2_f32_bf16 v57, v53, v53, v57
    v_mov_b32 v58, v57
    v_permlane32_swap_b32 v57, v58
    v_add_f32 v57, v57, v58
    v_mov_b32 v58, v57
    v_permlane16_swap_b32 v57, v58
    v_add_f32 v57, v57, v58""")
        for r in (8, 4, 2, 1): a(f"v_max_f32_dpp v57, v57, v57 row_ror:{r} row_mask:0xf bank_mask:0xf")
        a(f"s_branch {Lp}")
        a.label(Lv)
        a(f"v_lshl_add_u32 v46, v17, 5, s{sT0}\n ds_read_b128 v[32:35], v46 offset:{self.SCR}\n ds_read_b128 v[36:39], v46 offset:{self.SCR+16}")
        for ks in range(16):
            a(f"v_mfma_f32_16x16x32_bf16 v[48:51], {vr(XF+4*ks)}, {vr(WF+4*ks)}, {'0' if ks == 0 else 'v[48:51]'}")
            a(f"v_mfma_f32_16x16x32_bf16 v[52:55], v[60:63], {vr(WF+4*ks)}, {'0' if ks == 0 else 'v[52:55]'}")
        a(f"s_lshl_b32 s{sT2}, s{sORD}, 1\n s_add_u32 s{sT1}, s{sT1}, s{sT2}\n v_lshl_add_u32 v43, v42, 8, v43\n s_waitcnt lgkmcnt(0)")
        for i in range(4): a(f"v_fma_f32 v{48+i}, -v{32+2*i}, v{52+i}, v{48+i}")
        for i in range(4): a(f"v_mul_f32 v{48+i}, v{48+i}, v{33+2*i}")
        a(f"""
    v_cvt_pk_bf16_f32 v52, v48, v49
    v_cvt_pk_bf16_f32 v53, v50, v51
    v_mov_b32 v57, 0
    buffer_store_dwordx2 v[52:53], v43, {WS}, s{sT1} offen offset:1024 sc1""")
        a.label(Lp)
        a(f"""
    v_mov_b32 v56, s{sTAG}
    v_mov_b32 v58, s{sXCC}
    v_mov_b32 v59, s{sTAG}
    s_lshl_b32 s{sT0}, s{sGRP}, 3
    s_add_u32 s{sT0}, s{sT0}, s{sMEM}
    s_lshl_b32 s{sT0}, s{sT0}, 7
    s_add_u32 s{sT0}, s{sT0}, {KFLAG:#x}
    s_waitcnt vmcnt(0)
    s_mov_b64 exec, 1
    buffer_store_dwordx4 v[56:59], v7, {WS}, s{sT0} offen sc1
    s_mov_b64 exec, -1""")
        a.label(L)
        H.ts("q")
        a("s_setprio 0")
        H.bar()
        a(f"v_lshlrev_b32 v{self.TA}, 7, v{vLANE}\n v_and_b32 v46, 0xfff, v{self.TA}\n s_lshr_b32 s{sRND}, s{sGRP}, 2")
        self.kpoll(46, True)
        self.kv(1)
        a(f"""
    s_and_b32 s{sT0}, s{sGRP}, 3
    s_lshl_b32 s{sT0}, s{sT0}, 3
    s_lshl_b32 s{sT0}, 0xff, s{sT0}
    v_cmp_ne_u32 vcc, s{sXCC}, v50
    s_and_b32 s{sT0}, s{sT0}, vcc_lo
    s_cselect_b64 s[{sSLOW}:{sSLOW+1}], -1, 0""")
        for r in (8, 4, 2, 1): a(f"v_max_f32_dpp v49, v49, v49 row_ror:{r} row_mask:0xf bank_mask:0xf")
        a(f"""
    v_mov_b32 v50, v49
    v_permlane16_swap_b32 v49, v50
    v_max_f32 v49, v49, v50
    v_sqrt_f32 v49, v49
    v_mov_b32 v51, s{sSLOW}
    v_mul_f32 v50, -1.0, v49
    v_mov_b32 v46, {self.SCR + 512}
    ds_write_b64 v46, v[50:51]
    s_waitcnt lgkmcnt(0)""")
        H.ts("q")
        H.bar()
        self.kv01 = self.kvseq
        self.sync_check()
    TA = 18
    def kpoll(self, va, first=False):
        H = self.H; a = H.a; L = H.lab("kp")
        a(f"s_lshl_b32 s{sT0}, s{sRND}, 12\n s_add_u32 s{sT0}, s{sT0}, {KFLAG:#x}\n s_mov_b32 s{sCNT}, 0")
        a.label(L)
        a(f"""
    buffer_load_dwordx4 v[48:51], v{va}, {WS}, s{sT0} offen sc1
    s_add_u32 s{sCNT}, s{sCNT}, 1
    s_cmp_gt_u32 s{sCNT}, {SPIN}
    s_cbranch_scc1 main_exit
    s_waitcnt vmcnt(0)
    v_cmp_ne_u32 vcc, s{sTAG}, v48
    v_cmp_ne_u32 s[36:37], s{sTAG}, v51
    s_or_b64 vcc, vcc, s[36:37]
    s_cbranch_vccnz {L}""")
    nkv = 0
    def kv(self, n):
        H = self.H
        for r in range(n):
            H.a(f"""
    s_lshl_b32 s{sW4}, s{sRND}, 14
    s_lshl_b32 s{sPL}, s{sW}, 12
    s_add_u32 s{sW4}, s{sW4}, s{sPL}
    s_add_u32 s{sW4}, s{sW4}, {KV:#x}
    s_add_u32 m0, s{sPL}, {16384*self.nkv}
    s_add_u32 s{sRND}, s{sRND}, 1
    s_and_b32 s{sRND}, s{sRND}, 7""")
            self.nkv += 1
            for i in range(4): self.kvseq = H.vm(f"buffer_load_dwordx4 v{vL16}, {WS}, s{sW4} offen offset:{1024*i} sc1 lds")

    PV = 20
    def prep_setup(self, H, v):
        a = H.a
        T0, T1, T2, T3 = sT0, sT1, sT2, sT3
        def std(q, dst, base, o):
            a(f"""
    s_lshr_b32 s{T1}, s{q}, 3
    s_and_b32 s{T2}, s{q}, 7
    s_lshl_b32 s{o}, s{T1}, 15
    s_lshl_b32 s{T3}, s{T2}, 7
    s_add_u32 s{o}, s{o}, s{T3}
    s_lshl_b32 s{T3}, s{sW}, 13
    s_add_u32 s{o}, s{o}, s{T3}""")
            if dst is not None:
                a(f"""
    s_lshl_b32 s{T2}, s{T2}, 2
    s_add_u32 s{T2}, s{T2}, s{sW}
    s_lshl_b32 s{T2}, s{T2}, 4
    s_add_u32 s{T2}, s{T2}, s{T1}
    s_lshl_b32 s{dst}, s{T2}, 10
    s_add_u32 s{dst}, s{dst}, {base}""")
        def w4t(q, i):
            std(q, None, None, sPS+i)
            a(f"""
    s_mul_i32 s{T2}, s{T2}, 56
    s_add_u32 s{T2}, s{T2}, s{T1}
    s_lshl_b32 s{T2}, s{T2}, 2
    s_mul_i32 s{T1}, s{T1}, 9363
    s_lshr_b32 s{T1}, s{T1}, 16
    s_sub_u32 s{T1}, s{sW}, s{T1}
    s_and_b32 s{T1}, s{T1}, 3
    s_add_u32 s{T2}, s{T2}, s{T1}
    s_lshl_b32 s{sPD+i}, s{T2}, 10
    s_add_u32 s{sPD+i}, s{sPD+i}, {W4:#x}""")
        def w3t(q, i):
            a(f"""
    s_mul_i32 s{T1}, s{q}, 2341
    s_lshr_b32 s{T1}, s{T1}, 16                   ; ks = q/28
    s_mul_i32 s{T2}, s{T1}, 28
    s_sub_u32 s{T2}, s{q}, s{T2}                  ; nb
    s_lshl_b32 s{T3}, s{T1}, 2
    s_add_u32 s{T3}, s{T3}, s{sW}
    s_mul_i32 s{sPS+i}, s{T3}, {8*3584}
    s_lshl_b32 s{T3}, s{T2}, 7
    s_add_u32 s{sPS+i}, s{sPS+i}, s{T3}
    s_lshl_b32 s{T2}, s{T2}, 2
    s_add_u32 s{T2}, s{T2}, s{sW}
    s_lshl_b32 s{T2}, s{T2}, 4
    s_add_u32 s{T2}, s{T2}, s{T1}
    s_lshl_b32 s{sPD+i}, s{T2}, 10
    s_add_u32 s{sPD+i}, s{sPD+i}, {W3:#x}""")
        w3t(2, 0); w4t(2, 1)
        L, Le = H.lab("pwo"), H.lab("pend")
        a(f"""
    v_lshrrev_b32 v{v+3}, 3, v{vLANE}
    v_and_b32 v{v+4}, 7, v{vLANE}
    v_lshlrev_b32 v{v+4}, 4, v{v+4}
    v_lshl_add_u32 v{v}, v{v+3}, 10, v{v+4}
    v_mul_u32_u24 v{v+1}, 3584, v{v+3}
    v_add_u32 v{v+1}, v{v+1}, v{v+4}
    v_bfe_u32 v{v+3}, v{vLANE}, 2, 2
    v_lshlrev_b32 v{v+3}, 7, v{v+3}
    v_and_b32 v{v+4}, 3, v{vLANE}
    v_lshl_add_u32 v{v+3}, v{v+4}, 3, v{v+3}
    s_lshl_b32 s{T0}, s{sW}, 5
    s_add_u32 s{T0}, s{T0}, {HI}
    v_add_u32 v{v+6}, s{T0}, v{v+3}
    v_lshrrev_b32 v{v+4}, 4, v{vLANE}
    v_lshl_add_u32 v{v+3}, v{v+4}, 10, v{v+6}
    s_cmp_ge_u32 s2, 192
    s_cbranch_scc1 {L}
    s_add_u32 s{T0}, s2, 256""")
        w3t(T0, 2); w4t(T0, 3)
        a(f"v_mov_b32 v{v+2}, v{v+1}\n v_mov_b32 v{v+4}, v{v+3}\n v_add_u32 v{v+5}, 512, v{v+3}\n s_branch {Le}")
        a.label(L)
        a(f"s_sub_u32 s{T0}, s2, 192"); std(T0, sPD+2, WO, sPS+2)
        a(f"s_sub_u32 s{T0}, s2, 128"); std(T0, sPD+3, WO, sPS+3)
        a(f"""
    v_mov_b32 v{v+2}, v{v}
    v_lshrrev_b32 v{v+5}, 1, v{v+4}
    v_lshl_add_u32 v{v+6}, v{v+5}, 11, v{v+6}
    v_and_b32 v{v+5}, 1, v{v+4}
    v_lshl_add_u32 v{v+4}, v{v+5}, 9, v{v+6}
    v_add_u32 v{v+5}, 1024, v{v+4}""")
        a.label(Le)
        a(f"s_and_b32 s{T0}, s2, 127"); std(T0, sPD+4, W1, sPS+4)
        a(f"s_lshr_b32 s{T0}, s2, 7\n s_lshl_b32 s{T0}, s{T0}, 19\n s_add_u32 s{sPD+4}, s{sPD+4}, s{T0}")
    def prep_load(self, H, v, dst):
        a = H.a
        PR = f"s[{sPR}:{sPR+3}]"
        wo, w1, w2, w3, w4 = (f"s[{sPP+2*i}:{sPP+2*i+1}]" for i in range(5))
        big, small = 0x1c0000, 0x80000
        for i in range(5):
            if i < 2: a(f"s_mov_b64 s[{sPR}:{sPR+1}], {(w3, w4)[i]}\n s_mov_b32 s{sPR+2}, {big:#x}")
            elif i < 4:
                a(f"s_mov_b32 s{sT1}, {small:#x}\n s_cmp_ge_u32 s2, 192\n s_cselect_b64 s[{sPR}:{sPR+1}], {wo}, {(w3, w4)[i-2]}\n s_cselect_b32 s{sPR+2}, s{sT1}, {big:#x}")
            else: a(f"s_cmp_ge_u32 s2, 128\n s_cselect_b64 s[{sPR}:{sPR+1}], {w2}, {w1}\n s_mov_b32 s{sPR+2}, {small:#x}")
            a(f"s_and_b32 s{sPR+1}, s{sPR+1}, 0xffff")
            if dst is None:
                a(f"s_lshl_b32 s{sT0}, s{sW}, 10\n s_add_u32 m0, s{sT0}, {HI + 4096*i}")
                self.prepseq = H.vm(f"buffer_load_dwordx4 v{(v+1, v, v+2, v, v)[i]}, {PR}, s{sPS+i} offen lds")
            else: self.prepseq = H.vm(f"buffer_load_dwordx4 {vr(dst+4*i)}, v{(v+1, v, v+2, v, v)[i]}, {PR}, s{sPS+i} offen")

    hXT, hACC, hBP = 8, 16, 32
    hRES, hSTAT, hCS1, hR1, hTMP, hCS3, hX = 64, 80, 96, 100, 104, 112, 120
    UB = tuple(int(x) for x in os.environ.get('UB', '28,74,88,100,106').split(','))
    def attention(self):
        C, H = self.C, self.H; a = C.a
        S0, S1, NEGM, OA, OB, QA, QB, vIDX, vKA, vVA = self.S0, self.S1, self.NEGM, self.OA, self.OB, self.QA, self.QB, self.vIDX, self.vKA, self.vVA
        kf = lambda t: self.KVR + 12*(t & 1)
        C.ts("at"); C.bar(); C.ts("at")
        a("s_setprio 1")
        def rdK(t): a(f"ds_read_b128 {vr(kf(t))}, v{vKA} offset:{(t&31)*2048}")
        def rdV(t):
            a(f"s_mov_b64 exec, {sVM}")
            a(f"ds_read_b128 {vr(kf(t)+4)}, v{vVA} offset:{(t&31)*2048+1024}")
            a(f"ds_read_b128 {vr(kf(t)+8)}, v{vVA} offset:{(t&31)*2048+1536}")
            a("s_mov_b64 exec, -1")
        def qk(u): a(f"v_mfma_f32_32x32x16_bf16 {vr((S0,S1)[u&1],16)}, {vr(kf(u>>1))}, {vr((QA,QB)[u&1])}, {vr(NEGM,16)}")
        def pv(u, h): a(f"v_smfmac_f32_32x32x32_bf16 {vr((OA,OB)[u&1],16)}, {vr(kf(u>>1)+4+4*h)}, {vr((S0,S1)[u&1]+8*h,8)}, v{vIDX}")
        def ex(u, lo, hi):
            for i in range(lo, hi): a(f"v_exp_f32 v{(S0,S1)[u&1]+i}, v{(S0,S1)[u&1]+i}")
        x = self.cT
        a(f"s_lshl_b32 s{sT0}, s{sW}, 13\n s_add_u32 s{sT0}, s{sT0}, {HI}\n v_add_u32 v{x}, s{sT0}, v{vL16}\n s_lshl_b32 s{sT0}, s{sW}, 14\n v_add_u32 v{x+1}, s{sT0}, v{vL16}")
        plan = {}
        for ub, f0, n, va in ((self.UB[1], 0, 8, x), (self.UB[2], 8, 16, x+1), (self.UB[3], 24, 8, x)):
            for i in range(n): plan.setdefault(ub + 1 + 2*(i // 4), []).append(f"ds_read_b128 {vr(128+4*(f0+i))}, v{va} offset:{1024*i}")
        rdK(0); rdV(0); rdK(1)
        a("s_waitcnt lgkmcnt(3)")
        qk(0)
        for u in range(128):
            t, q = u >> 1, u & 1
            if u % 8 == 0: C.ts("at")
            ex(u, 0, 2)
            if u > 0: pv(u-1, 1)
            ex(u, 2, 5)
            if u + 1 < 128: qk(u+1)
            if u in self.UB or u == int(os.environ.get('UBK', '6')): C.bar()
            if q == 0:
                if t + 1 < 64:
                    if t + 1 == 32: a(f"v_add_u32 v{vVA}, 0x10000, v{vVA}")
                    rdV(t+1)
                if t + 2 < 64:
                    if t + 2 == 32: a(f"v_add_u32 v{vKA}, 0x10000, v{vKA}")
                    rdK(t+2)
            for y in plan.pop(u, []): a(y)
            ex(u, 5, 10)
            if q == 0: a(f"s_waitcnt lgkmcnt({3 if t + 2 < 64 else (2 if t + 1 < 64 else 0)})")
            pv(u, 0)
            ex(u, 10, 16)
        assert not plan
        pv(127, 1)
        C.ts(); C.ts("at")
        t = self.cT
        a(f"""
    v_lshrrev_b32 v{t+1}, 5, v{vLANE}
    v_lshlrev_b32 v{t+1}, 10, v{t+1}
    v_and_b32 v{t+2}, 31, v{vLANE}
    v_lshl_add_u32 v{t+4}, v{t+2}, 4, v{t+1}""")
        C.tile_soff(sT1, O_)
        a(f"v_min_f32 v{t}, v{OA+8}, v{OB+8}\n v_max_f32 v{t+1}, v{OA+8}, v{OB+8}\n v_cmp_nle_f32 vcc, {f32(2.0**-80)}, v{t}\n s_mov_b32 s{sT2}, vcc_lo\n v_cmp_nge_f32 vcc, {f32(2.0**80)}, v{t+1}\n s_or_b32 s{sT2}, s{sT2}, vcc_lo\n s_cbranch_scc1 attn_redo")
        a.label("attn_done")
        a(f"v_mov_b32 v{OA+9}, v{OA+8}\n v_mov_b32 v{OB+9}, v{OB+8}\n v_permlane32_swap_b32 v{OA+8}, v{OA+9}\n v_permlane32_swap_b32 v{OB+8}, v{OB+9}")
        a(f"v_rcp_f32 v{t+2}, v{OA+8}\n v_rcp_f32 v{t+6}, v{OB+8}")
        for o, r in ((OA, t+2), (OB, t+6)):
            for i in range(4): a(f"v_pk_mul_f32 {P(o+2*i)}, {P(o+2*i)}, {P(r)} op_sel_hi:[1,0]")
            for i in range(4): a(f"v_cvt_pk_bf16_f32 v{o+i}, v{o+2*i}, v{o+2*i+1}")
        C.setvcc()
        C.cstore([f"buffer_store_dwordx4 {vr(OA)}, v{t+4}, {WS}, s{sT1} offen", f"buffer_store_dwordx4 {vr(OB)}, v{t+4}, {WS}, s{sT1} offen offset:512"])
        a("s_setprio 0")
        C.set_act(O_)
        a(f"v_and_b32 v{self.cF}, 31, v{vLANE}\n v_lshlrev_b32 v{self.cF}, 2, v{self.cF}")
        C.flag(0, t)
        C.ts()
        a = H.a; v = self.PV; d = v + 8
        CW = v + 7
        a(f"v_mov_b32 v{CW}, {HI + 32752}\n v_mov_b32 v6, 0\n ds_write_b64 v{CW}, v[6:7]\n ds_write_b32 v{CW}, v6 offset:8\n s_waitcnt lgkmcnt(0)")
        H.wait_vm(self.kv01); H.bar()
        TA, TD = self.TA, 19
        def spin(n, off=0):
            L = H.lab("hs")
            a(f"s_mov_b32 s{sCNT}, 0")
            a.label(L)
            a(f"""
    s_sleep 1
    ds_read_b32 v6, v{CW} offset:{off}
    s_add_u32 s{sCNT}, s{sCNT}, 1
    s_cmp_gt_u32 s{sCNT}, {SPIN*16}
    s_cbranch_scc1 main_exit
    s_waitcnt lgkmcnt(0)
    v_cmp_gt_u32 vcc, {n}, v6
    s_cbranch_vccnz {L}""")
        def count(off=0): a(f"v_mov_b32 v6, 1\n s_mov_b64 exec, 1\n ds_add_u32 v{CW}, v6 offset:{off}\n s_mov_b64 exec, -1")
        def trd():
            for i in range(5):
                if i in (2, 3):
                    a(f"ds_read_b64_tr_b16 {P(224+4*i)}, v{v+4} offset:{4096*i}\n ds_read_b64_tr_b16 {P(224+4*i+2)}, v{v+5} offset:{4096*i}")
                else:
                    a(f"ds_read_b64_tr_b16 {P(224+4*i)}, v{v+3} offset:{4096*i}\n ds_read_b64_tr_b16 {P(224+4*i+2)}, v{v+3} offset:{4096*i+512}")
        def pub(n):
            L = H.lab("nopf")
            a(f"s_cmp_lg_u32 s{sW}, 3\n s_cbranch_scc1 {L}")
            spin(n)
            a(f"""
    s_lshl_b32 s{sT0}, s2, 7
    s_add_u32 s{sT0}, s{sT0}, {PFLAG:#x}
    v_mov_b32 v6, 1
    s_mov_b64 exec, 1
    buffer_store_dword v6, v7, {WS}, s{sT0} offen sc1
    s_mov_b64 exec, -1""")
            a.label(L)
        def kall():
            L = H.lab("kall")
            a(f"s_mov_b32 s{sCNT}, 0\n s_lshl_b32 s{sT0}, s{sW}, 13\n s_add_u32 s{sT0}, s{sT0}, {KFLAG:#x}")
            a.label(L)
            a(f"""
    buffer_load_dword v48, v{TA}, {WS}, s{sT0} offen sc1
    s_add_u32 s{sCNT}, s{sCNT}, 1
    s_cmp_gt_u32 s{sCNT}, {SPIN}
    s_cbranch_scc1 main_exit
    s_waitcnt vmcnt(0)
    v_cmp_ne_u32 vcc, s{sTAG}, v48
    s_mov_b64 exec, vcc
    s_cbranch_vccnz {L}
    s_mov_b64 exec, -1""")
            count(8); spin(4, 8)
        def pstores():
            a("s_waitcnt lgkmcnt(0)")
            for i in range(5): r = H.vm(f"buffer_store_dwordx4 {vr(224+4*i)}, v{vL16}, {WS}, s{sPD+i} offen sc1")
            return r
        if self.opt.get('lateraw'):
            kall(); self.kv(1); k1 = self.kvseq
            self.kv(2); k3 = self.kvseq
            H.wait_vm(k1); H.bar()
            self.kv(4)
            self.prep_load(H, v, None)
            H.wait_vm(self.kvseq); H.ts("h"); H.bar()
            H.wait_vm(self.prepseq); count(); spin(4)
            trd(); pst = pstores()
            H.wait_vm(pst); count(); pub(8)
        else:
            trd()
            a(f"v_and_b32 v46, 0xfff, v{TA}")
            self.kpoll(46); self.kv(1); k1 = self.kvseq
            pst = pstores()
            H.wait_vm(k1); H.bar()
            H.wait_vm(pst); count(); pub(4)
            kall(); self.kv(6)
            H.wait_vm(self.kvseq); H.ts("h"); H.bar()
        def code_touch():
            L = H.lab("pc")
            a(f"s_getpc_b64 s[36:37]")
            a.label(L)
            a(f"""
    s_sub_u32 s36, s36, {L}-main_kernel
    s_subb_u32 s37, s37, 0
    s_and_b32 s{sT1}, s{sGRP}, 3
    s_lshl_b32 s{sT1}, s{sT1}, 5
    s_add_u32 s{sT1}, s{sT1}, s{sNT}
    s_lshl_b32 s{sT1}, s{sT1}, 9
    v_and_b32 v{v+2}, 0x1ff, v{TA}
    v_add_u32 v{v+2}, s{sT1}, v{v+2}
    v_min_u32 v{v+2}, main_end-main_kernel-4, v{v+2}""")
            H.vm(f"global_load_dword v{TD}, v{v+2}, s[36:37]")
        def arena_touch():
            if self.opt.get("usc1"):
                a(f"""
    s_lshl_b32 s{sTCH}, s{sNT}, 12
    s_lshl_b32 s{sT1}, s{sNT}, 8
    s_sub_u32 s{sT1}, s{sT1}, s{sTCH}
    s_add_u32 s{sT1}, s{sT1}, {ST1 - 4096}
    s_add_u32 s{sTCH}, s{sTCH}, s{sAR}
    v_mov_b32 v6, v{TA}
    s_mov_b32 exec_lo, 0
    v_add_u32 v6, s{sT1}, v6
    s_mov_b32 exec_lo, -1
    s_mov_b32 exec_hi, 3""")
                H.vm(f"buffer_load_dword v{TD}, v6, {WS}, s{sTCH} offen")
                a("s_mov_b64 exec, -1")
                return
            a(f"s_mul_i32 s{sTCH}, s{sNT}, {TOUCHN*128}\n s_add_u32 s{sTCH}, s{sTCH}, s{sAR}\n s_add_u32 s{sTCH}, s{sTCH}, {TOUCH0:#x}")
            H.vm(f"buffer_load_dword v{TD}, v{TA}, {WS}, s{sTCH} offen")
            a(f"s_mov_b32 exec_lo, 0x7ff\n s_mov_b32 exec_hi, 0\n s_add_u32 s{sTCH}, s{sTCH}, 8192")
            H.vm(f"buffer_load_dword v{TD}, v{TA}, {WS}, s{sTCH} offen")
            a("s_mov_b64 exec, -1")
        hi = f"s_lshl_b32 s{sPL}, s{sW}, 13\n s_add_u32 s{sPL}, s{sPL}, {HI}"
        lo = f"s_lshl_b32 s{sPL}, s{sW}, 14"
        F = lambda *x, **k: H.run(H.frags(*x, **k))
        code_touch()
        arena_touch()
        L0 = H.lab("pchk")
        a(f"s_lshl_b32 s{sPS}, s{sW}, 13\n s_add_u32 s{sPS}, s{sPS}, {PFLAG:#x}\n s_mov_b32 s{sCNT}, 0")
        a.label(L0)
        a(f"""
    buffer_load_dword v{d}, v{TA}, {WS}, s{sPS} offen sc1
    s_add_u32 s{sCNT}, s{sCNT}, 1
    s_cmp_gt_u32 s{sCNT}, {SPIN}
    s_cbranch_scc1 main_exit
    s_waitcnt vmcnt(0)
    v_cmp_ne_u32 vcc, 1, v{d}
    s_mov_b64 exec, vcc
    s_sleep 2
    s_cbranch_vccnz {L0}
    s_mov_b64 exec, -1""")
        count(4); spin(4, 4); count(4)
        L = H.lab("notag")
        a(f"""
    s_or_b32 s{sT0}, s2, s{sW}
    s_cmp_lg_u32 s{sT0}, 0
    s_cbranch_scc1 {L}
    v_mov_b32 v6, s{sTAG}
    s_mov_b32 s{sT0}, {TAGW:#x}
    s_mov_b64 exec, 1
    buffer_store_dword v6, v7, {WS}, s{sT0} offen sc1
    s_mov_b64 exec, -1""")
        a.label(L)
        H.ts("h")
        for base, reg in ((WO, 64), (W1, 128), (W2, 192)):
            H.set_wbase(base, 16, sW4); F(16, sW4, dst=V(reg))
        L = H.lab("ack")
        a(f"s_cmp_lg_u32 s{sW}, 3\n s_cbranch_scc1 {L}")
        spin(8, 4)
        a.label(L)
        H.set_w3(0); a(hi)
        F(8, sPF, lds=sPL); r1 = H.lastf
        code_touch()
        H.xo_soff(sT1)
        for jt in range(4):
            H.vm(f"buffer_load_dwordx2 {P(self.hXT+2*jt)}, v{vXO}, {XS}, s{sT1} offen")
            if jt < 3: a(f"s_add_u32 s{sT1}, s{sT1}, 16384")
        a(f"s_and_b32 s{sT1}, s{sGRP}, 3\n s_mul_i32 s{sT1}, s{sT1}, 6144\n s_add_u32 s{sTCH}, s{sPF}, s{sT1}\n s_mov_b32 exec_hi, 0xffff")
        H.vm(f"buffer_load_dword v{TD}, v{TA}, {WS}, s{sTCH} offen")
        a("s_mov_b64 exec, -1")
        H.wait_vm(r1); H.ts("h"); H.bar()
        a(lo); F(16, sPF, lds=sPL); r2 = H.lastf
        code_touch()
        a(f"""
    s_and_b32 s{sT1}, s{sGRP}, 3
    s_lshl_b32 s{sTCH}, s{sT1}, 5
    s_add_u32 s{sTCH}, s{sTCH}, s{sNT}
    s_mul_i32 s{sTCH}, s{sTCH}, 14336
    s_add_u32 s{sTCH}, s{sTCH}, {W4:#x}""")
        H.vm(f"buffer_load_dword v{TD}, v{TA}, {WS}, s{sTCH} offen")
        H.wait_vm(r2); H.ts("h"); H.bar()
        a(hi); F(8, sPF, lds=sPL); r3 = H.lastf
        a(f"s_add_u32 s{sTCH}, s{sTCH}, 6144")
        H.vm(f"buffer_load_dword v{TD}, v{TA}, {WS}, s{sTCH} offen")
        H.wait_vm(r3); H.ts("h"); H.bar()
        H.bar()
        a(lo); F(16, sPF, lds=sPL)
        H.set_w3(3)
        a(f"s_lshl_b32 s{sT5}, s{sORD}, 5\n s_add_u32 s{sPF}, s{sPF}, s{sT5}"); a(hi)
        F(8, sPF, lds=sPL)
        arena_touch()
        code_touch()
        a("s_waitcnt vmcnt(0)")
        H.setvcc()
        H.tile_soff(sT4, H_)
        a("s_setprio 1")
        H.ts("h")
        self.sync_check()

    def fallback(self):
        C = self.C; a = C.a; t = self.cT
        S0, NEGM, KF, VF, vVA, vIDX = self.S0, self.NEGM, self.KVR, self.KVR+4, self.vVA, self.vIDX
        a.label("attn_redo")
        a(f"v_and_b32 v{vVA}, 0x3ff, v{vVA}")
        for (Q, O) in ((self.QA, self.OA), (self.QB, self.OB)):
            L1, L2 = C.lab("fb1"), C.lab("fb2")
            a(f"v_mov_b32 v{t}, 0xff800000\n s_mov_b32 s{sT2}, {KV:#x}")
            a.label(L1)
            a(f"""
    buffer_load_dwordx4 {vr(KF)}, v{vL16}, {WS}, s{sT2} offen sc1
    s_add_u32 s{sT2}, s{sT2}, 2048
    s_waitcnt vmcnt(0)
    v_mfma_f32_32x32x16_bf16 {vr(S0,16)}, {vr(KF)}, {vr(Q)}, 0""")
            for i in range(8): a(f"v_max3_f32 v{t}, v{t}, v{S0+2*i}, v{S0+2*i+1}")
            a(f"""
    s_cmp_lt_u32 s{sT2}, {KV+131072:#x}
    s_cbranch_scc1 {L1}
    v_mov_b32 v{t+1}, v{t}
    v_permlane32_swap_b32 v{t}, v{t+1}
    v_max_f32 v{t}, v{t}, v{t+1}
    v_sub_f32 v{t}, 0, v{t}""")
            for i in range(16): a(f"v_mov_b32 v{NEGM+i}, v{t}")
            for i in range(16): a(f"v_mov_b32 v{O+i}, 0")
            a(f"s_mov_b32 s{sT2}, {KV:#x}")
            a.label(L2)
            a(f"""
    buffer_load_dwordx4 {vr(KF)}, v{vL16}, {WS}, s{sT2} offen sc1
    s_mov_b64 exec, {sVM}
    buffer_load_dwordx4 {vr(VF)}, v{vVA}, {WS}, s{sT2} offen offset:1024 sc1
    buffer_load_dwordx4 {vr(VF+4)}, v{vVA}, {WS}, s{sT2} offen offset:1536 sc1
    s_mov_b64 exec, -1
    s_add_u32 s{sT2}, s{sT2}, 2048
    s_waitcnt vmcnt(0)
    v_mfma_f32_32x32x16_bf16 {vr(S0,16)}, {vr(KF)}, {vr(Q)}, {vr(NEGM,16)}""")
            for i in range(16): a(f"v_exp_f32 v{S0+i}, v{S0+i}")
            a(f"""
    v_smfmac_f32_32x32x32_bf16 {vr(O,16)}, {vr(VF)}, {vr(S0,8)}, v{vIDX}
    v_smfmac_f32_32x32x32_bf16 {vr(O,16)}, {vr(VF+4)}, {vr(S0+8,8)}, v{vIDX}
    s_nop 15
    s_cmp_lt_u32 s{sT2}, {KV+131072:#x}
    s_cbranch_scc1 {L2}""")
        a("s_nop 15\n s_branch attn_done")

    cF, cP = 120, 122
    cACC, cBP, cSTAT, cCS3, cTMP, cOUT = 16, 48, 80, 96, 104, 112
    def prod_stats(self, vals):
        H = self.H; a = H.a; t = self.hTMP; x = self.hBP
        for jt in range(4): a(f"v_pk_add_f32 {P(x+2*jt)}, {P(vals+4*jt)}, {P(vals+4*jt+2)}")
        for jt in range(4): a(f"v_pk_mul_f32 {P(x+8+2*jt)}, {P(vals+4*jt)}, {P(vals+4*jt)}")
        for jt in range(4): a(f"v_pk_fma_f32 {P(x+8+2*jt)}, {P(vals+4*jt+2)}, {P(vals+4*jt+2)}, {P(x+8+2*jt)}")
        for jt in range(8): a(f"v_add_f32 v{t+jt}, v{x+2*jt}, v{x+2*jt+1}")
        a(f"""
    s_lshl_b32 s{sT5}, s{sW}, 10
    s_add_u32 s{sT5}, s{sT5}, {XST}
    v_permlane32_swap_b32 v{t}, v{t+2}
    v_permlane32_swap_b32 v{t+1}, v{t+3}
    v_permlane32_swap_b32 v{t+4}, v{t+6}
    v_permlane32_swap_b32 v{t+5}, v{t+7}
    v_pk_add_f32 {P(t)}, {P(t)}, {P(t+2)}
    v_pk_add_f32 {P(t+4)}, {P(t+4)}, {P(t+6)}
    v_lshl_add_u32 v{x}, v{vLANE}, 3, s{sT5}
    v_permlane16_swap_b32 v{t}, v{t+1}
    v_permlane16_swap_b32 v{t+4}, v{t+5}
    v_add_f32 v{t}, v{t}, v{t+1}
    v_add_f32 v{t+1}, v{t+4}, v{t+5}
    ds_write_b64 v{x}, {P(t)}""")
    def stat_publish(self, base):
        C = self.C; a = C.a; t = self.cTMP; x = self.cT
        a(f"""
    v_lshlrev_b32 v{x}, 3, v{vLANE}
    v_add_u32 v{x}, {XST}, v{x}
    s_lshl_b32 s{sT2}, s{sMEM}, 3
    s_add_u32 s{sT2}, s{sT2}, s{sAR}
    s_add_u32 s{sT2}, s{sT2}, {base:#x}
    v_lshlrev_b32 v{x+1}, 6, v{vLANE}
    s_lshl_b32 s{sT5}, s{sW}, 4
    s_lshl_b64 s[36:37], 0xffff, s{sT5}""")
        C.bar()
        for p in range(4): a(f"ds_read_b64 {P(t+2*p)}, v{x} offset:{1024*p}")
        def fin():
            a(f"""
    s_waitcnt lgkmcnt(0)
    v_pk_add_f32 {P(t)}, {P(t)}, {P(t+2)}
    v_pk_add_f32 {P(t+4)}, {P(t+4)}, {P(t+6)}
    v_pk_add_f32 {P(t)}, {P(t)}, {P(t+4)}
    s_mov_b64 exec, s[36:37]""")
            C.cstore([f"buffer_store_dwordx2 {P(t)}, v{x+1}, {WS}, s{sT2} offen"], nt=False)
            a("s_mov_b64 exec, -1")
        self.pubfin = fin
    def cons_stats(self, gbase, scr, double):
        C = self.C; a = C.a; x = self.cT; o = self.cSTAT; S = o + 8
        st = {}
        ltxt = f"buffer_load_dwordx4 {vr(o)}, v{x+1}, {WS}, s{sT1} offen sc1"
        def load():
            a(f"""
    s_lshl_b32 s{sT1}, s{sW}, 10
    s_add_u32 s{sT1}, s{sT1}, s{sAR}
    s_add_u32 s{sT1}, s{sT1}, {gbase:#x}
    v_and_b32 v{x+3}, 0xff, v{vL16}
    v_and_b32 v{x+1}, 0x30, v{vLANE}
    v_lshl_add_u32 v{x+1}, v{x+3}, 2, v{x+1}
    s_lshl_b32 s{sT5}, s{sW}, 8
    s_add_u32 s{sT5}, s{sT5}, {scr}
    v_add_u32 v{x+2}, s{sT5}, v{x+3}""")
            st['g'] = C.vm(ltxt)
        def check():
            L0, Lr, L2 = C.lab("schk"), C.lab("sre"), C.lab("sok")
            C.wait_vm(st['g'])
            a.label(L0)
            a(f"v_max_u32 v{o+4}, v{o+1}, v{o+3}\n v_cmp_eq_u32 vcc, -1, v{o+4}\n s_cbranch_vccnz {Lr}")
            a.label(L2)
            C.ool.append((Lr, [f"s_add_u32 s{sCNT}, s{sCNT}, 1", f"s_cmp_gt_u32 s{sCNT}, {SPIN}", f"s_cbranch_scc1 {L2}",
                               ltxt, "s_waitcnt vmcnt(0)", f"s_branch {L0}"]))
            C.setvcc()
        txt = f"""
    v_add_f32 v{o}, v{o}, v{o+2}
    v_add_f32 v{o+1}, v{o+1}, v{o+3}
    v_permlane32_swap_b32 v{o}, v{o+1}
    v_add_f32 v{o}, v{o}, v{o+1}
    v_mov_b32 v{o+1}, v{o}
    v_permlane16_swap_b32 v{o}, v{o+1}
    v_add_f32 v{o}, v{o}, v{o+1}
    v_mul_f32 v{o}, 0x3b000000, v{o}
    v_mov_b32 v{o+1}, v{o}
    v_permlane32_swap_b32 v{o}, v{o+1}
    v_mov_b32 v{S}, v{o}
    v_fma_f32 v{o+1}, -v{o}, v{o}, v{o+1}
    v_max_f32 v{o+1}, 0, v{o+1}
    v_add_f32 v{o+2}, 0x3727c5ac, v{o+1}
    v_rsq_f32 v{o+3}, v{o+2}"""
        R = o+3
        if double:
            txt += f"""
    v_mul_f32 v{o+4}, v{o+3}, v{o+3}
    ds_write_b32 v{x+2}, v{o+3} offset:1024
    v_mul_f32 v{o+4}, v{o+4}, v{o+1}
    v_add_f32 v{o+4}, 0x3727c5ac, v{o+4}
    v_rsq_f32 v{o+4}, v{o+4}
    v_mul_f32 v{o+5}, v{o+3}, v{o+4}"""
            R = o+5
        txt += f"""
    v_rcp_f32 v{S+1}, v{R}
    v_mul_f32 v{S+2}, {f32(GC1)}, v{R}
    v_mul_f32 v{o+6}, v{R}, v{R}
    v_mul_f32 v{o+6}, {f32(0.044715)}, v{o+6}
    v_mul_f32 v{S+3}, v{S+2}, v{o+6}
    ds_write_b128 v{x+2}, {vr(S)}"""
        comp = [check]
        for y in txt.split("\n"):
            y = y.strip()
            if not y: continue
            if y.startswith("ds_"): comp.append(lambda y=y: setattr(C, 'wseq', C.ld(y)))
            else: comp.append(lambda y=y: a(y))
        return load, comp
    def tile_store(self, jt):
        return f"buffer_store_dwordx2 {P(self.hXT+2*jt)}, v{vD}, {WS}, s{sT4} offen offset:{256*jt}"
    def add_pack(self, jt, src):
        a = self.H.a; A_ = self.hACC
        for h in (0, 2): a(f"v_pk_add_f32 {P(A_+4*jt+h)}, {P(A_+4*jt+h)}, {P(src+h)}")
        for h in (0, 1): a(f"v_cvt_pk_bf16_f32 v{self.hXT+2*jt+h}, v{A_+4*jt+2*h}, v{A_+4*jt+2*h+1}")

    def s3(self):
        self.C.mark(); self.H.mark()
        C, H = self.C, self.H
        C.colsum(V(128), self.cCS3, self.cOUT)
        C.poll(0, self.cF, self.cP, mid=[lambda: C.colsum(V(192), self.cCS3+4, self.cOUT)]); C.ts()
        def w4ref():
            C.a(f"""
    v_lshlrev_b32 v118, 7, v{vLANE}
    s_and_b32 s{sTCH}, s{sGRP}, 3
    s_lshl_b32 s{sTCH}, s{sTCH}, 5
    s_add_u32 s{sTCH}, s{sTCH}, s{sNT}
    s_mul_i32 s{sTCH}, s{sTCH}, 14336
    s_add_u32 s{sTCH}, s{sTCH}, {W4:#x}""")
            C.vm(f"buffer_load_dword v119, v118, {WS}, s{sTCH} offen")
        def w4ref2():
            C.a(f"s_add_u32 s{sTCH}, s{sTCH}, 6144")
            C.vm(f"buffer_load_dword v119, v118, {WS}, s{sTCH} offen")
        C.load_gemm(C.act_issue(), side={3: [w4ref], 5: [w4ref2]} if self.opt.get('w4ref') else None, tag='s3')
        C.set_act(H_)
        self.stat_publish(ST1)
        H.cons_gemm(V(64), self.hACC, self.hBP, tag="s3"); H.ts()
        for i in range(8): H.unpack(self.hXT+i, self.hRES+2*i)
        for jt in range(4): self.add_pack(jt, self.hRES+4*jt)
        H.cstore([self.tile_store(jt) for jt in range(4)])
        self.prod_stats(self.hACC)
        for i in range(8): H.unpack(self.hXT+i, self.hRES+2*i)
        H.flag(1, 6); H.ts()
        H.a("s_waitcnt lgkmcnt(0)"); H.bar()
        self.sync_check()
    def s4(self):
        self.C.mark(); self.H.mark()
        C, H = self.C, self.H; a = H.a
        C.poll(1, self.cF, self.cP, mid=[self.pubfin]); C.ts()
        load, comp = self.cons_stats(ST1, ACT, True)
        C.load_gemm(C.act_issue(), side={-1: [load], 3: comp[:7], 4: comp[7:14], 5: comp[14:21], 6: comp[21:],
                                         (7, 'pre'): [lambda: C.wait_ld(C.wseq)]}, tag='s4')
        if self.opt.get('uref'):
            C.a(f"v_lshlrev_b32 v118, 7, v{vLANE}\n s_mul_i32 s{sTCH}, s{sNT}, {40*128}\n s_add_u32 s{sTCH}, s{sTCH}, s{sAR}\n s_add_u32 s{sTCH}, s{sTCH}, {U_ + 0x10000:#x}\n s_mov_b32 exec_hi, 0xff")
            C.vm(f"buffer_load_dword v119, v118, {WS}, s{sTCH} offen")
            C.a("s_mov_b64 exec, -1")
        H.colsum(V(128), self.hCS1, self.hX)
        H.tile_soff(sT4, T_)
        a(f"""
    v_lshrrev_b32 v6, 5, v{vLANE}
    v_lshlrev_b32 v6, 5, v6
    v_and_b32 v7, 0x1f, v{vD}
    v_add_u32 v{self.hX+4}, v6, v7                ; halo: (g>>1)*32 + (t&1)*16 + (g&1)*8
    s_lshl_b32 s{sT3}, s{sNT}, 6
    s_add_u32 s{sT3}, s{sT3}, s{sAR}
    v_and_b32 v7, 0xff, v{vL16}
    v_add_u32 v7, {ACT}, v7""")
        sr = H.stat_reads(self.hSTAT, 7, False, self.hR1)
        H.cons_gemm(V(128), self.hACC, self.hBP, side={6: sr[:4], 7: sr[4:]}, tag="s4"); H.ts()
        A_, XT, ST = self.hACC, self.hXT, self.hSTAT
        H.wait_ld(H.stseq)
        for x in H.gelu2((A_, self.hCS1, ST, XT), (A_+12, self.hCS1, ST+12, XT+6), self.hTMP, True): a(x)
        Lh, L1 = H.lab("nohalo"), H.lab("side1")
        a(f"""
    s_bitcmp1_b32 s{sMEM}, 1
    s_cbranch_scc1 {L1}
    s_cmp_eq_u32 s{sGRP}, 31
    s_cbranch_scc1 {Lh}
    s_add_u32 s{sT3}, s{sT3}, {HALO+GA:#x}
    s_mov_b32 exec_lo, 0xc000c000
    s_mov_b32 exec_hi, 0xc000c000
    buffer_store_dwordx2 {P(XT+6)}, v{self.hX+4}, {WS}, s{sT3} offen sc1
    s_branch {Lh}""")
        a.label(L1)
        a(f"""
    s_cmp_eq_u32 s{sGRP}, 0
    s_cbranch_scc1 {Lh}
    s_sub_u32 s{sT3}, s{sT3}, {GA-HALO:#x}
    s_mov_b32 exec_lo, 0x00030003
    s_mov_b32 exec_hi, 0x00030003
    buffer_store_dwordx2 {P(XT)}, v{self.hX+4}, {WS}, s{sT3} offen sc1""")
        a.label(Lh)
        a("s_mov_b64 exec, -1")
        H.cstore([self.tile_store(0), self.tile_store(3)])
        for x in H.gelu2((A_+4, self.hCS1, ST+4, XT+2), (A_+8, self.hCS1, ST+8, XT+4), self.hTMP, True): a(x)
        H.cstore([self.tile_store(1), self.tile_store(2)])
        H.flag(2, 6); H.ts()
        self.sync_check()
    def s5(self):
        self.C.mark(); self.H.mark()
        C, H = self.C, self.H; a = C.a; x = self.cT; T = self.cTMP
        C.set_act(T_)
        a(f"""
    s_lshl_b32 s{sT1}, s{sW}, 9
    s_add_u32 s{sT1}, s{sT1}, s{sAR}
    s_add_u32 s{sT1}, s{sT1}, {HALO:#x}
    v_and_b32 v{x+2}, 0x1ff, v{vL16}
    s_cmp_eq_u32 s{sW}, 0
    s_cselect_b32 s{sT3}, -16, 0
    s_cselect_b32 s{sT4}, 0xaaaaaaaa, -1
    s_cmp_eq_u32 s{sW}, 1
    s_cselect_b32 s{sT3}, {63*16}, s{sT3}
    s_cselect_b32 s{sT4}, 0x55555555, s{sT4}
    s_cmp_eq_u32 s{sW}, 3
    s_cselect_b32 s{sT3}, {62*16}, s{sT3}
    s_lshl_b32 s{sT2}, s{sW}, 14
    s_add_u32 s{sT3}, s{sT3}, s{sT2}
    s_add_u32 s{sT3}, s{sT3}, {ACT}
    v_lshrrev_b32 v{x+1}, 1, v{vLANE}
    v_lshlrev_b32 v{x+1}, 10, v{x+1}
    v_and_b32 v{x+3}, 1, v{vLANE}
    v_lshl_add_u32 v{x+1}, v{x+3}, 4, v{x+1}
    v_add_u32 v{x+1}, s{sT3}, v{x+1}
    s_lshl_b32 s{sPF}, s{sMEM}, 3
    s_add_u32 s{sPF}, s{sPF}, s{sW}
    s_mul_i32 s{sPF}, s{sPF}, {28*1024}
    s_add_u32 s{sPF}, s{sPF}, {W4 + 20*1024:#x}
    s_lshl_b32 s{sPL}, s{sW}, 13""")
        C.poll(2, self.cF, self.cP, mid=[]); C.ts()
        shifts = (1, -1, 2, -2)
        masks = ((0xfffffffe, 0xffffffff), (0xffffffff, 0x7fffffff), (0xfffffffc, 0xffffffff), (0xffffffff, 0x3fffffff))
        def pre(c):
            g = c >> 1
            if c & 1 == 0: a(f"s_add_i32 s{sG}, s{sG}, {-16*shifts[g] + (16*shifts[g-1] if g else 0)}")
            a(f"s_mov_b32 exec_lo, {masks[g][0]:#x}" if masks[g][0] != 0xffffffff else f"s_mov_b32 exec_hi, {masks[g][1]:#x}")
        hs = {}
        hload = f"buffer_load_dwordx4 {vr(T)}, v{x+2}, {WS}, s{sT1} offen sc1"
        stg = C.frags(8, sPF, lds=sPL) + C.E(f"s_add_u32 s{sPF}, s{sPF}, {4*28*1024 - 8192}\n s_add_u32 s{sPL}, s{sPL}, {32768 - 8192}") + C.frags(8, sPF, lds=sPL)
        C.load_gemm(C.act_issue(pre=pre, post=lambda c: a("s_mov_b64 exec, -1")),
                    side={2: [lambda: hs.__setitem__(0, C.vm(hload))], 3: stg[:2], 4: stg[2:4], 5: stg[4:6], 6: stg[6:10]}, tag='s5')
        L0, Lr, L2 = C.lab("hchk"), C.lab("hre"), C.lab("hok")
        C.wait_vm(hs[0])
        a.label(L0)
        a(f"v_max_u32 v{x}, v{T}, v{T+1}\n v_max3_u32 v{x}, v{x}, v{T+2}, v{T+3}\n v_cmp_eq_u32 vcc, -1, v{x}\n s_cbranch_vccnz {Lr}")
        a.label(L2)
        C.ool.append((Lr, [f"s_add_u32 s{sCNT}, s{sCNT}, 1", f"s_cmp_gt_u32 s{sCNT}, {SPIN}", f"s_cbranch_scc1 {L2}",
                           hload, "s_waitcnt vmcnt(0)", f"s_branch {L0}"]))
        C.setvcc()
        a(f"s_mov_b32 exec_lo, s{sT4}\n s_mov_b32 exec_hi, 0\n ds_write_b128 v{x+1}, {vr(T)}\n s_mov_b64 exec, -1\n s_waitcnt lgkmcnt(0)")
        C.bar()
        C.run(stg[10:14]); self.stg_rest = stg[14:]
        C.set_act(X1)
        self.stat_publish(ST3)
        a = H.a; ST, RES, R1 = self.hSTAT, self.hRES, self.hR1
        a(f"s_lshl_b32 s{sT1}, s{sW}, 14\n v_add_u32 v7, s{sT1}, v{vL16}")
        H.lds2reg(V(128), 16, 7)
        for jt in range(4):
            a(f"v_mul_f32 v6, v{ST+4*jt}, v{R1+jt}")
            for i in range(4): a(f"v_fma_f32 v{ST+4*jt+i}, v{RES+4*jt+i}, v{R1+jt}, -v6")
        H.tile_soff(sT4, X1)
        a("s_waitcnt lgkmcnt(0)")
        H.colsum(V(128), self.hCS3, self.hX)
        H.cons_gemm(V(192), self.hACC, self.hBP, defer=lambda ks: 3 if (ks >> 2) & 1 else 0, tag="s5"); H.ts()
        for jt in range(4): self.add_pack(jt, ST+4*jt)
        H.cstore([self.tile_store(jt) for jt in range(4)])
        self.prod_stats(self.hACC)
        for i in range(8): H.unpack(self.hXT+i, self.hACC+2*i)
        H.flag(3, 6)
        a("s_waitcnt lgkmcnt(0)"); H.bar()
        for i in range(8): a(f"v_pk_add_f32 {P(RES+2*i)}, {P(RES+2*i)}, {P(self.hACC+2*i)}")
        H.ts()
        self.sync_check()

    def capture(self, S, fn):
        keep = S.a.lines; S.a.lines = []
        fn()
        got = S.a.lines; S.a.lines = keep
        return [(lambda x=x: S.a(x)) for x in got]
    def s6(self):
        self.C.mark(); self.H.mark()
        C, H = self.C, self.H
        PK = bool(self.opt.get("s6pk"))
        for S in (C, H):
            isC = S is C; a = S.a
            vBa, vBb, vDa, vDb, vS = (124, 125, 126, 127, 14) if isC else (self.hCS1, self.hCS1+1, self.hCS1+2, self.hCS1+3, self.hR1)
            ACCS = [self.cACC + 4*i for i in range(8)] if isC else [self.hACC + 4*i for i in range(4)] + [self.hX, self.hX+4]
            BP = self.cBP if isC else self.hBP
            ST, CS, TMP, OUT = (self.cSTAT, self.cCS3, self.cTMP, self.cOUT) if isC else (self.hSTAT, self.hCS3, self.hTMP, self.hXT)
            W = (V(128), V(192))
            def setup():
                a(f"""
    v_xor_b32 v{vBa}, s{sORD}, v{vB}
    v_xor_b32 v{vBb}, 256, v{vBa}
    v_xor_b32 v{vDa}, s{sORD}, v{vD}
    v_xor_b32 v{vDb}, 256, v{vDa}
    v_and_b32 v{vS}, 0xff, v{vL16}
    v_add_u32 v{vS}, {HI}, v{vS}
    v_xor_b32 v{vS}, s{sORD}, v{vS}
    v_xor_b32 v{vS+1}, 256, v{vS}
    s_mul_i32 s{sU0}, s{sMEM}, {14*2048}
    s_add_u32 s{sU0}, s{sU0}, s{sAR}
    s_add_u32 s{sU0}, s{sU0}, {U_:#x}
    s_lshr_b32 s{sU1}, s{sW}, 1
    s_add_u32 s{sU1}, s{sU1}, 12
    s_lshl_b32 s{sU1}, s{sU1}, 11
    s_add_u32 s{sU1}, s{sU1}, s{sU0}
    s_mul_i32 s{sT3}, s{sW}, {3*2048}
    s_add_u32 s{sU0}, s{sU0}, s{sT3}
    s_lshl_b32 s{sW4}, s{sMEM}, 3
    s_add_u32 s{sW4}, s{sW4}, s{sW8}
    s_lshl_b32 s{sT3}, s{sW4}, 2
    v_mov_b32 v{vMYF}, s{sT3}
    s_mul_i32 s{sW4}, s{sW4}, {28*1024}
    s_add_u32 s{sW4}, s{sW4}, {W4:#x}
""")
                if isC: a(f"s_add_u32 s{sU1}, s{sU0}, 2048")
                else: a(f"s_add_u32 s{sU0}, s{sU0}, 4096")
            tilesA = [(j, n) for j in (0, 1) for n in ((0, 1) if isC or j == 0 else (0,))]
            tilesB = [(j, n) for j in (2, 3) for n in ((0, 1) if isC or j == 2 else (0,))]
            acc = {t: ACCS[i] for i, t in enumerate(tilesA + tilesB)}
            rs = {}
            slot = lambda s, j: BP + 16*(s & 1) + 4*j
            def rd(s, j): rs[(s, j)] = S.ld(f"ds_read_b128 {vr(slot(s, j))}, v{vBb if j & 1 else vBa} offset:{4096*s + 512*(j>>1)}")
            def mf(s, j, n): a(f"v_mfma_f32_16x16x32_bf16 {vr(acc[(j, n)])}, {W[n](s)}, {vr(slot(s, j))}, {'0' if s == 0 else vr(acc[(j, n)])}")
            wreg = lambda f: vr(128 + 4*(f >> 1) + 64*(f & 1))
            S.wreg = wreg
            w4 = S.frags(20, sW4, dst=wreg)
            stg = []
            sr = S.stat_reads(ST, vS, True)
            def ustore(j, n, r):
                return f"buffer_store_dwordx2 {P(r)}, v{vDb if j & 1 else vDa}, {WS}, s{(sU0, sU1)[n]} offen offset:{512*(j>>1)}"
            k2 = [0]
            def gel(ts_):
                o = OUT + 4*(k2[0] & 1); k2[0] += 1
                arg = [(acc[t], CS+4*t[1], ST+4*t[0], o+2*i) for i, t in enumerate(ts_)]
                z = S.gelu2(*arg, TMP, True) if len(ts_) == 2 else S.gelu(*arg[0], TMP, True)
                for y in z: a(y)
                if self.opt.get("usc1"):
                    for i, t in enumerate(ts_): S.vm(ustore(*t, o+2*i) + " sc1")
                else: S.cstore([ustore(*t, o+2*i) for i, t in enumerate(ts_)])
                return S.nvm - 1
            tiles = tilesA + tilesB
            if isC:
                S.poll(3, self.cF, self.cP, mid=[self.pubfin]); S.ts()
                load, comp = self.cons_stats(ST3, HI, False)
                issue = S.act_issue(); seqs = {}
                for c in range(3): seqs[c] = issue(c)
                load(); setup()
                S.wait_vm(seqs[0])
            else:
                a(f"s_and_b32 s{sT1}, s{sW}, 2\n s_lshl_b32 s{sT1}, s{sT1}, 13\n s_add_u32 s{sT1}, s{sT1}, {HI}\n v_add_u32 v7, s{sT1}, v{vL16}")
                S.lds2reg(V(192), 16, 7)
                setup()
                a("s_waitcnt lgkmcnt(0)")
                S.colsum(V(192), CS+4, self.hX)
                a("s_setprio 0")
            S.bar()
            for j in range(4): rd(0, j)
            BAR = {1: 1, 3: 3, 7: 7}
            nt = len(tiles)
            for s in range(16):
                items = []
                if isC:
                    if s == 0: items = [(lambda c=c: seqs.__setitem__(c, issue(c))) for c in (3, 4, 5)]
                    if s == 1: items = [(lambda c=c: seqs.__setitem__(c, issue(c))) for c in (6, 7)]
                    if s == 2: items = self.stg_rest + [lambda: seqs.__setitem__(7, S.lastf)]
                    items = items + {3: comp[:7], 4: comp[7:14], 5: comp[14:]}.get(s, [])
                if s == 8: items = items + sr
                if s == 13: items = S.E(f"s_lshl_b32 s{sT1}, s{sW8}, 13\n v_add_u32 v7, s{sT1}, v{vL16}")
                if s >= 14: items = [(lambda i=i: S.ld(f"ds_read_b128 {wreg(20+i)}, v7 offset:{1024*i}")) for i in range(4*(s-14), 4*(s-14)+4)]
                if 3 <= s < 13: items = [w4.pop(0)] + items[:len(items)//2] + [w4.pop(0)] + items[len(items)//2:]
                if s in BAR:
                    if isC:
                        S.wait_vm(seqs[BAR[s]])
                        if s == 7: S.wait_ld(S.wseq)
                    S.bar()
                for i, (j, n) in enumerate(tiles):
                    if n == 0: S.wait_ld(rs[(s, j)])
                    mf(s, j, n)
                    if n == 0 and s + 1 < 16: rd(s+1, j)
                    S.run(items[i*len(items)//nt:(i+1)*len(items)//nt])
                if s % 4 == 3: S.ts("s6")
            assert not w4
            vF8, vPp = (self.cF, self.cP) if isC else (vBa, self.hR1+2)
            S.f7 = (vF8, vPp)
            a(f"""
    s_setprio 1
    s_mul_i32 s{sB}, s{sW8}, {7*4096}
    s_add_u32 s{sB}, s{sB}, s{sAR}
    s_add_u32 s{sB}, s{sB}, {U_ - ACT:#x}
    v_and_b32 v{vF8}, 7, v{vLANE}
    v_lshlrev_b32 v{vF8}, 2, v{vF8}
    s_lshl_b32 s{sT1}, s{sW8}, 5
    v_add_u32 v{vF8}, s{sT1}, v{vF8}""")
            gel(tilesA[:2]); sa = gel(tilesA[2:])
            a("s_setprio 0")
            S.ts()
            gel(tilesB[:2])
            S.flag(4, 6, seq=sa)
            S.sb = gel(tilesB[2:])
            S.ts()
        self.sync_check()

    def s7(self):
        self.C.mark(); self.H.mark()
        C, H = self.C, self.H
        for S in (C, H):
            isC = S is C; a = S.a
            wreg = S.wreg
            vF8, vPp = S.f7
            if isC:
                vWr, vRD, vO = [8, 9, 10, 11], 12, 13
                ring = [self.cBP + 4*i for i in range(8)]
                accx = lambda p, m: self.cACC + 16*(p & 1) + 4*m
                rb = [80 + 4*k for k in range(8)]
            else:
                vWr, vRD, vO = [self.hX+4+i for i in range(4)], 7, vXO
                ring = [self.hBP + 4*i for i in range(8)]
                accx = lambda p, m: self.hACC + 4*m if p & 1 else (184, 188, 248, 252)[m]
                rb = [80, 84, 88, 92, 104, 108, 112, 116]
            NR = len(ring); x = rb[0]
            def setup():
                a(f"""
    v_and_b32 v{x}, 15, v{vLANE}
    v_lshrrev_b32 v{x+1}, 4, v{vLANE}
    v_xor_b32 v{x+2}, v{x}, v{x+1}                ; t ^ g""")
                for m in range(4):
                    a(f"""
    s_add_u32 s{sT1}, s{sW}, {m}
    s_and_b32 s{sT1}, s{sT1}, 3
    s_lshl_b32 s{sT2}, s{sT1}, 2
    v_xor_b32 v{vWr[m]}, s{sT2}, v{x+2}
    v_lshlrev_b32 v{vWr[m]}, 4, v{vWr[m]}
    v_lshl_add_u32 v{vWr[m]}, v{x+1}, 8, v{vWr[m]}
    s_lshl_b32 s{sT1}, s{sT1}, 10
    s_lshl_b32 s{sT2}, s{sW8}, 12
    s_add_u32 s{sT1}, s{sT1}, s{sT2}
    v_add_u32 v{vWr[m]}, s{sT1}, v{vWr[m]}""")
                a(f"""
    s_lshl_b32 s{sT1}, s{sW}, 2
    v_add_u32 v{x+1}, s{sT1}, v{x+1}
    v_xor_b32 v{vRD}, v{x+1}, v{x}
    v_lshlrev_b32 v{vRD}, 4, v{vRD}
    v_lshl_add_u32 v{vRD}, v{x}, 8, v{vRD}
    v_lshlrev_b32 v{vO}, 10, v{x+1}
    v_lshl_add_u32 v{vO}, v{x}, 3, v{vO}
    s_lshl_b32 s{sT4}, s{sGRP}, 16
    s_lshl_b32 s{sT1}, s{sMEM}, 7
    s_add_u32 s{sT4}, s{sT4}, s{sT1}""")
                if not isC: a(f"s_add_u32 s{sT4}, s{sT4}, 16384\n v_add_u32 v{vRD}, 32768, v{vRD}")
                a("s_waitcnt lgkmcnt(0)")
            S.poll(4, vF8, vPp, mid=[setup])
            S.flag(6, 6, seq=S.sb)
            S.ts()
            seq = {}
            def load(u):
                p, i = u // 7, u % 7
                seq[u] = S.vm(f"buffer_load_dwordx4 {vr(ring[u % NR])}, v{vB}, {WS}, s{sB} offen offset:{256*p} sc1")
                a(f"s_add_u32 s{sB}, s{sB}, 4096" if i < 6 else f"s_sub_u32 s{sB}, s{sB}, {6*4096}")
            def Wr(p):
                it = []
                for m in range(4):
                    if p == 2: it.append(lambda m=m: a(f"v_add_u32 v{vWr[m]}, 0x10000, v{vWr[m]}"))
                    it.append(lambda m=m: S.ld(f"ds_write_b128 v{vWr[m]}, {vr(accx(p, m))} offset:{32768*(p&1)}"))
                return it
            bar = [lambda: (a("s_waitcnt lgkmcnt(0)"), S.bar())]
            st = {}
            def Rd(p):
                it = [lambda: a(f"v_add_u32 v{vRD}, 0x10000, v{vRD}")] if p >= 2 else []
                return it + [(lambda k=k: st.__setitem__(p, S.ld(f"ds_read_b128 {vr(rb[k])}, v{vRD} offset:{4096*k}"))) for k in range(8)]
            def Ad(p, pk):
                r = rb
                pairs = [(r[0], r[1]), (r[2], r[3]), (r[4], r[5]), (r[6], r[7]), (r[0], r[2]), (r[4], r[6]), (r[0], r[4])]
                ins = []
                for y, z in pairs:
                    if pk: ins += [f"v_pk_add_f32 {P(y+h)}, {P(y+h)}, {P(z+h)}" for h in (0, 2)]
                    else: ins += [f"v_add_f32 v{y+h}, v{y+h}, v{z+h}" for h in range(4)]
                ins += [f"v_cvt_pk_bf16_f32 v{r[1]+h}, v{r[0]+2*h}, v{r[0]+2*h+1}" for h in (0, 1)]
                return [lambda: S.wait_ld(st[p])] + [(lambda z=z: a(z)) for z in ins] + \
                       [lambda: S.vm(f"buffer_store_dwordx2 {P(r[1])}, v{vO}, {OS}, s{sT4} offen {self.opt.get('osc', 'nt')}"), lambda: a(f"s_add_u32 s{sT4}, s{sT4}, 32768")]
            la = int(self.opt.get('la7', 4))
            pb = {}
            ltxt = f"buffer_load_dword v{vPp}, v{vF8}, {WS}, s{sT0} offen sc1"
            def chkB():
                L0, Lr = S.lab("bchk"), S.lab("bre")
                S.wait_vm(pb[0])
                a.label(L0)
                a(f"v_cmp_ne_u32 vcc, 1, v{vPp}\n s_cbranch_vccnz {Lr}")
                S.ool.append((Lr, [f"s_add_u32 s{sCNT}, s{sCNT}, 1", f"s_cmp_gt_u32 s{sCNT}, {SPIN}", "s_cbranch_scc1 main_exit",
                                   ltxt, "s_waitcnt vmcnt(0)", f"s_branch {L0}"]))
            side = {6: bar, 8: Wr(0), 15: Wr(1), 16: bar, 22: Wr(2)}
            side[13 - 2*la] = side.get(13 - 2*la, []) + [lambda: pb.__setitem__(0, S.vm(ltxt))]
            side[13 - la] = side.get(13 - la, []) + [chkB]
            p0 = 0 if isC else 1
            ad = Ad(p0, False)
            side[17] = Rd(p0); side[18] = ad[:11]; side[19] = ad[11:22]; side[20] = ad[22:]
            for u in range(la): load(u)
            for u in range(28):
                p, i = u // 7, u % 7
                S.wait_vm(seq[u])
                items = list(side.get(u, []))
                per = -(-len(items) // 3)
                for m in range(4):
                    c0 = vr(self.hRES+4*p) if (m == 0 and not isC) else '0'
                    if not (self.opt.get('x7b') and m): a(f"v_mfma_f32_16x16x32_bf16 {vr(accx(p, m))}, {wreg(4*i+m)}, {vr(ring[u % NR])}, {c0 if i == 0 else vr(accx(p, m))}")
                    if m == 0:
                        if u + la < 28: load(u + la)
                    else:
                        for _ in range(per):
                            if items: items.pop(0)()
                if u % 7 == 6: S.ts("s7")
            S.run(Wr(3) + bar)
            S.ts()
            S.run(Rd(p0+2) + Ad(p0+2, True))
            S.ts("s7")
        self.sync_check()

    def dump_ts(self, S):
        a = S.a
        a("s_waitcnt vmcnt(0)")
        S.ts()
        a(f"""
    s_waitcnt lgkmcnt(0)
    s_lshl_b32 s{sT0}, s2, 3
    s_add_u32 s{sT0}, s{sT0}, s{sW8}
    s_lshl_b32 s{sT0}, s{sT0}, 7
    s_add_u32 s{sT0}, s{sT0}, {DBG:#x}
    v_mov_b32 v7, 0
    s_mov_b64 exec, 1""")
        assert S.nts <= 28
        for i in range(S.nts):
            a(f"v_mov_b32 v6, s{tsreg(i)}\n buffer_store_dword v6, v7, {WS}, s{sT0} offen offset:{4*i}")
        a(f"v_mov_b32 v6, s{sSLOW}\n buffer_store_dword v6, v7, {WS}, s{sT0} offen offset:124")
        a(f"v_mov_b32 v6, s{sXCC}\n buffer_store_dword v6, v7, {WS}, s{sT0} offen offset:120")

    def gen(self):
        C, H = self.C, self.H
        self.prologue(); self.qstage(); self.attention()
        for name in ("s3", "s4", "s5", "s6", "s7"): getattr(self, name)()
        for S in (C, H):
            S.a.label(f"M_{S.name}_{S.nmark}")
            if self.dbg: self.dump_ts(S)
            if S is C: S.a.label("main_exit")
            S.a("s_endpgm")
        tail = Asm()
        self.fallback()
        for S in (C, H):
            for L, body in S.ool:
                S.a.label(L)
                for x in body: S.a(x)
        C.a.label("main_end")
        H.a.lines = self.head + H.a.lines
        txt = H.a.finish() + C.a.finish()
        txt += """
.section .rodata,"a"
.p2align 6
.amdhsa_kernel """ + NAME + """_kernel
  .amdhsa_next_free_vgpr 256
  .amdhsa_next_free_sgpr 102
  .amdhsa_accum_offset 256
  .amdhsa_group_segment_fixed_size 0
  .amdhsa_kernarg_size 104
  .amdhsa_user_sgpr_count 2
  .amdhsa_user_sgpr_kernarg_segment_ptr 1
  .amdhsa_system_sgpr_workgroup_id_x 1
.end_amdhsa_kernel
"""
        return txt
```

```python
from asmlib import Asm
from layout import *
import struct, os

def f32(x):
    return "0x%08x" % struct.unpack('<I', struct.pack('<f', x))[0]

K2_LDS = 163840
LOG2E = 1.4426950408889634
QSCALE = 0.25 * LOG2E
GC1 = -2.0 * 0.7978845608028654 * LOG2E
SPIN = 0x40000
ACT = 65536
XST = ACT + 5*8192 + 256
HI = 131072
LA = 5

sW, sGRP, sMEM, sSLOW, sXCC, sW8 = 3, 16, 17, 18, 45, 44
WS, XS, OS = "s[4:7]", "s[8:11]", "s[12:15]"
sT0, sT1, sT2, sT3, sT4, sT5 = 20, 21, 22, 23, 24, 25
sG, sL, sPF, sCNT, sFLG, sAR = 26, 27, 28, 29, 30, 31
sU0, sU1 = 32, 33
sB = 34
sKVW, sTAG, sRND = 40, 41, 33
sTCH = 35
sNT, sORD = 38, 39
sVM = "s[40:41]"
sPL, sW4 = 42, 43
sPP, sPR, sPS, sPD = 46, 56, 60, 65
def tsreg(i): return 70 + 2*i if i < 16 else 46 + 2*(i-16)
vLANE, vL16, vB, vD, vMYF, vXO = 0, 1, 2, 3, 4, 5

def vr(b, n=4): return f"v[{b}:{b+n-1}]"
def V(b): return lambda ks: vr(b+4*ks)
def P(r): return f"v[{r}:{r+1}]"

class Stream:
    uid = 0
    def __init__(self, name, dbg, tags):
        self.name, self.dbg, self.tags = name, dbg, tags
        self.a = Asm(); self.nvm = self.nld = self.nts = self.nbar = 0
        self.ool = []; self.nmark = 0; self.seclen = {}
    def vm(self, text):
        self.a(text); self.nvm += 1; return self.nvm - 1
    def wait_vm(self, seq): self.a(f"s_waitcnt vmcnt({min(self.nvm - 1 - seq, 63)})")
    def ld(self, text):
        self.a(text); self.nld += 1; return self.nld - 1
    def wait_ld(self, seq): self.a(f"s_waitcnt lgkmcnt({min(self.nld - 1 - seq, 15)})")
    def bar(self): self.a("s_barrier"); self.nbar += 1
    def ts(self, tag="main"):
        if self.dbg and tag in self.tags:
            self.a(f"{'s_memtime' if self.dbg == 'cyc' else 's_memrealtime'} s[{tsreg(self.nts)}:{tsreg(self.nts)+1}]")
            self.nts += 1
    def lab(self, p):
        Stream.uid += 1; return f"L_{p}_{Stream.uid}"
    def mark(self):
        i = self.nmark; self.nmark += 1
        L = f"M_{self.name}_{i}"
        n = self.seclen.get(L)
        if n is not None and n < 4000:
            self.a(f"s_branch {L}"); self.a(f".p2align 12,,{n + 64}")
        self.a.label(L)
    def E(self, text): return [(lambda x=x: self.a(x)) for x in text.split("\n") if x.strip()]
    def set_wbase(self, base, ks, dst=sPF):
        self.a(f"s_mul_i32 s{dst}, s{sNT}, {ks*1024}\n s_add_u32 s{dst}, s{dst}, {base:#x}")
    def set_w3(self, slot):
        if slot < 3: self.a(f"s_mul_i32 s{sPF}, s{sW}, 3\n s_add_u32 s{sPF}, s{sPF}, {slot}")
        else: self.a(f"s_lshr_b32 s{sPF}, s{sW}, 1\n s_add_u32 s{sPF}, s{sPF}, 12")
        self.a(f"s_mul_i32 s{sT5}, s{sMEM}, 14\n s_add_u32 s{sPF}, s{sPF}, s{sT5}\n s_lshl_b32 s{sPF}, s{sPF}, 14\n s_add_u32 s{sPF}, s{sPF}, {W3:#x}")
    def set_act(self, base):
        self.a(f"s_lshl_b32 s{sL}, s{sW}, 11\n s_add_u32 s{sG}, s{sAR}, s{sL}\n s_add_u32 s{sG}, s{sG}, {base:#x}\n s_add_u32 s{sL}, s{sL}, {ACT}")
    def tile_soff(self, s, base):
        self.a(f"s_lshl_b32 s{s}, s{sNT}, 11\n s_add_u32 s{s}, s{s}, s{sAR}\n s_add_u32 s{s}, s{s}, {base:#x}")
    def xo_soff(self, s):
        self.a(f"s_lshl_b32 s{s}, s{sNT}, 5\n s_lshl_b32 s{sT5}, s{sGRP}, 16\n s_add_u32 s{s}, s{s}, s{sT5}")
    def act_issue(self, sc="sc1", pre=None, post=None):
        def issue(c):
            self.a(f"s_mov_b32 m0, s{sL}")
            if pre: pre(c)
            self.vm(f"buffer_load_dwordx4 v{vL16}, {WS}, s{sG} offen {sc} lds")
            last = self.vm(f"buffer_load_dwordx4 v{vL16}, {WS}, s{sG} offen offset:1024 {sc} lds")
            if post: post(c)
            self.a(f"s_add_u32 s{sG}, s{sG}, 8192\n s_add_u32 s{sL}, s{sL}, 8192")
            return last
        return issue
    def frags(self, n, sreg, dst=None, lds=None, sc="sc1"):
        def mk(i):
            def f():
                if dst is not None:
                    r = self.vm(f"buffer_load_dwordx4 {dst(i)}, v{vL16}, {WS}, s{sreg} offen offset:{1024*(i&3)} {sc}")
                else:
                    self.a(f"s_mov_b32 m0, s{lds}")
                    r = self.vm(f"buffer_load_dwordx4 v{vL16}, {WS}, s{sreg} offen offset:{1024*(i&3)} {sc} lds")
                if i & 3 == 3:
                    self.a(f"s_add_u32 s{sreg}, s{sreg}, 4096")
                    if lds is not None: self.a(f"s_add_u32 s{lds}, s{lds}, 4096")
                self.lastf = r
                return r
            return f
        return [mk(i) for i in range(n)]
    def run(self, items):
        for f in items: f()
    def setvcc(self): self.a(f"s_mov_b64 vcc, s[{sSLOW}:{sSLOW+1}]")
    NT = True
    def cstore(self, st, nt=True):
        Ls, Le = self.lab("cs"), self.lab("ce")
        self.a(f"s_cbranch_vccnz {Ls}")
        for x in st: self.vm(x + (" nt" if nt and self.NT else ""))
        self.a.label(Le)
        self.ool.append((Ls, [x + " sc1" for x in st] + [f"s_branch {Le}"]))
    def flag(self, stage, t, vf=vMYF, seq=None):
        self.a(f"s_add_u32 s{sT0}, s{sFLG}, {stage*8192}\n v_mov_b32 v{t}, 1")
        if seq is None: self.a("s_waitcnt vmcnt(0)")
        else: self.wait_vm(seq)
        self.a("s_mov_b64 exec, 1")
        self.cstore([f"buffer_store_dword v{t}, v{vf}, {WS}, s{sT0} offen"], nt=False)
        self.a("s_mov_b64 exec, -1")
    def poll(self, stage, vf, p0, mid=()):
        a = self.a; L, Ld = self.lab("poll"), self.lab("pdone"); p1 = p0 + 1
        a(f"s_add_u32 s{sT0}, s{sFLG}, {stage*8192}\n s_mov_b32 s{sCNT}, 0")
        q = self.vm(f"buffer_load_dword v{p0}, v{vf}, {WS}, s{sT0} offen sc1")
        self.run(mid)
        self.vm(f"buffer_load_dword v{p1}, v{vf}, {WS}, s{sT0} offen sc1")
        self.wait_vm(q)
        a(f"v_cmp_ne_u32 vcc, 1, v{p0}\n s_cbranch_vccz {Ld}")
        a.label(L)
        a(f"""
    buffer_load_dword v{p0}, v{vf}, {WS}, s{sT0} offen sc1
    s_waitcnt vmcnt(1)
    v_cmp_ne_u32 vcc, 1, v{p1}
    s_add_u32 s{sCNT}, s{sCNT}, 1
    s_cbranch_vccz {Ld}
    buffer_load_dword v{p1}, v{vf}, {WS}, s{sT0} offen sc1
    s_cmp_gt_u32 s{sCNT}, {SPIN}
    s_cbranch_scc1 main_exit
    s_waitcnt vmcnt(1)
    v_cmp_ne_u32 vcc, 1, v{p0}
    s_cbranch_vccnz {L}""")
        a.label(Ld)
        self.setvcc()
    def regcheck(self, r, z):
        a = self.a; L, L0 = self.lab("reg"), self.lab("reg0")
        a(f"s_mov_b32 s{sCNT}, 0")
        a.label(L0)
        a(f"""
    v_readfirstlane_b32 s{sT1}, v{r}
    s_and_b32 s{sT2}, s{sT1}, 0x0f0f0f0f
    s_lshr_b32 s{sT3}, s{sT1}, 4
    s_and_b32 s{sT3}, s{sT3}, 0x0f0f0f0f
    s_add_u32 s{sT2}, s{sT2}, s{sT3}
    s_mul_i32 s{sT2}, s{sT2}, 0x01010101
    s_lshr_b32 s{sT2}, s{sT2}, 24
    s_cmp_lg_u32 s{sT2}, 8
    s_cbranch_scc1 {L}
    s_lshl_b32 s{sT2}, s{sXCC}, 2
    s_lshl_b32 s{sT2}, 8, s{sT2}
    s_cmp_lg_u32 s{sT1}, s{sT2}
    s_cselect_b64 s[{sSLOW}:{sSLOW+1}], -1, 0""")
        self.ool.append((L, [f"s_add_u32 s{sT0}, s{sFLG}, {5*8192}", f"buffer_load_dword v{r}, v{z}, {WS}, s{sT0} offen sc1",
                             f"s_add_u32 s{sCNT}, s{sCNT}, 1", f"s_cmp_gt_u32 s{sCNT}, {SPIN}", "s_cbranch_scc1 main_exit",
                             "s_waitcnt vmcnt(0)", f"s_branch {L0}"]))
    def regload(self, r, z):
        self.a(f"s_add_u32 s{sT0}, s{sFLG}, {5*8192}\n v_mov_b32 v{z}, 0")
        return self.vm(f"buffer_load_dword v{r}, v{z}, {WS}, s{sT0} offen sc1")
    def load_gemm(self, issue, la=LA, side=None, tag=None, ramp=True):
        side = side or {}
        seqs = {}
        if tag: self.ts(tag)
        ni = 3
        for c in range(ni): seqs[c] = issue(c)
        self.run(side.get(-1, []))
        if tag: self.ts(tag)
        for c in range(8):
            self.wait_vm(seqs[c])
            self.run(side.get((c, 'pre'), []))
            if tag: self.ts(tag)
            self.bar()
            for _ in range(2 if (c < 2 and ramp) else 1):
                if ni < 8: seqs[ni] = issue(ni); ni += 1
            self.run(side.get(c, []))
    def cons_gemm(self, areg, ACC, BP, side=None, prewait=None, defer=None, tag=None, baddr=None, prebar=None, postbar=None, onebar=False):
        a = self.a
        side = {k: list(v) for k, v in (side or {}).items()}
        work = [[(2*c+s, jt) for s in range(2) for jt in range(4) if not (defer and defer(2*c+s) == jt)] for c in range(8)]
        if defer: work += [[(ks, defer(ks)) for ks in range(8)], [(ks, defer(ks)) for ks in range(8, 16)]]
        nch = len(work); rs = {}; started = set()
        def read(c, i):
            ks, jt = work[c][i]
            r, off = baddr(ks, jt) if baddr else (vB, 4096*ks + 256*jt)
            rs[(c, i)] = self.ld(f"ds_read_b128 {vr(BP+4*i)}, v{r} offset:{off}")
        if tag: self.ts(tag)
        if prebar: prebar(0)
        self.bar()
        if postbar: postbar(0)
        for i in range(len(work[0])): read(0, i)
        if tag: self.ts(tag)
        for c in range(nch):
            nxt = c + 1 < nch
            if c + 1 < 8 and prebar: prebar(c+1)
            if (c + 1 < 8 or (c + 1 == 8 and defer)) and not onebar: self.bar()
            if c + 1 < 8 and postbar: postbar(c+1)
            if prewait: prewait(c)
            items = side.pop(c, [])
            n = len(work[c]); nn = len(work[c+1]) if nxt else 0
            per = -(-len(items) // n)
            for i in range(n, nn): read(c+1, i)
            for i in range(n):
                ks, jt = work[c][i]
                if i % 2 == 0: self.wait_ld(rs[(c, min(i+1, n-1))])
                cc = vr(ACC+4*jt) if jt in started else "0"
                started.add(jt)
                a(f"v_mfma_f32_16x16x32_bf16 {vr(ACC+4*jt)}, {areg(ks)}, {vr(BP+4*i)}, {cc}")
                if i < nn: read(c+1, i)
                for _ in range(per):
                    if items: items.pop(0)()
            if tag: self.ts(tag)
        assert not side
    def gelu(self, acc, cs, S, out, t, pk):
        I = []
        if pk:
            for i in (0, 2): I.append(f"v_pk_fma_f32 {P(acc+i)}, {P(S)}, {P(cs+i)}, {P(acc+i)} op_sel_hi:[0,1,1] neg_lo:[1,0,0] neg_hi:[1,0,0]")
            for i in (0, 2): I.append(f"v_pk_mul_f32 {P(t+i)}, {P(acc+i)}, {P(acc+i)}")
            for i in (0, 2): I.append(f"v_pk_fma_f32 {P(t+i)}, {P(S+2)}, {P(t+i)}, {P(S+2)} op_sel:[1,0,0] op_sel_hi:[1,1,0]")
            for i in (0, 2): I.append(f"v_pk_mul_f32 {P(t+i)}, {P(t+i)}, {P(acc+i)}")
            for i in range(4): I.append(f"v_exp_f32 v{t+i}, v{t+i}")
            for i in (0, 2): I.append(f"v_pk_fma_f32 {P(t+i)}, {P(S)}, {P(t+i)}, {P(S)} op_sel:[1,0,1] op_sel_hi:[1,1,1]")
            for i in range(4): I.append(f"v_rcp_f32 v{t+i}, v{t+i}")
            for i in (0, 2): I.append(f"v_pk_mul_f32 {P(acc+i)}, {P(acc+i)}, {P(t+i)}")
        else:
            for i in range(4): I.append(f"v_fma_f32 v{acc+i}, -v{S}, v{cs+i}, v{acc+i}")
            for i in range(4): I.append(f"v_mul_f32 v{t+i}, v{acc+i}, v{acc+i}")
            for i in range(4): I.append(f"v_fma_f32 v{t+i}, v{t+i}, v{S+3}, v{S+2}")
            for i in range(4): I.append(f"v_mul_f32 v{t+i}, v{t+i}, v{acc+i}")
            for i in range(4): I.append(f"v_exp_f32 v{t+i}, v{t+i}")
            for i in range(4): I.append(f"v_fma_f32 v{t+i}, v{t+i}, v{S+1}, v{S+1}")
            for i in range(4): I.append(f"v_rcp_f32 v{t+i}, v{t+i}")
            for i in range(4): I.append(f"v_mul_f32 v{acc+i}, v{acc+i}, v{t+i}")
        return I + [f"v_cvt_pk_bf16_f32 v{out}, v{acc}, v{acc+1}", f"v_cvt_pk_bf16_f32 v{out+1}, v{acc+2}, v{acc+3}"]
    def gelu2(self, x, y, t, pk):
        p, q = self.gelu(*x, t, pk), self.gelu(*y, t+4, pk)
        return [z for pair in zip(p, q) for z in pair]
    def colsum(self, areg, dst, ones):
        for i in range(4): self.a(f"v_mov_b32 v{ones+i}, 0x3f803f80")
        for ks in range(16):
            self.a(f"v_mfma_f32_16x16x32_bf16 {vr(dst)}, {areg(ks)}, {vr(ones)}, {'0' if ks == 0 else vr(dst)}")
    def unpack(self, src, dst): self.a(f"v_lshlrev_b32 v{dst}, 16, v{src}\n v_and_b32 v{dst+1}, 0xffff0000, v{src}")
    def lds2reg(self, dst, n, va):
        for i in range(n): self.ld(f"ds_read_b128 {dst(i)}, v{va} offset:{1024*i}")
    def stat_reads(self, STAT, va, order, R1=None):
        it = []
        for jt in range(4):
            if order: x = f"ds_read_b128 {vr(STAT+4*jt)}, v{va+(jt&1)} offset:{512*(jt>>1)}"
            else: x = f"ds_read_b128 {vr(STAT+4*jt)}, v{va} offset:{256*jt}"
            it.append(lambda x=x: setattr(self, 'stseq', self.ld(x)))
        if R1 is not None:
            for jt in range(4):
                it.append(lambda jt=jt: setattr(self, 'stseq', self.ld(f"ds_read_b32 v{R1+jt}, v{va} offset:{1024 + 256*jt}")))
        return it

class Main:
    def __init__(self, dbg=False, tags=('main',), opt=None, seclen=None):
        self.dbg = dbg; self.opt = opt or {}
        Stream.uid = 0; Stream.NT = not self.opt.get('nont')
        self.C = Stream('C', dbg, tags); self.H = Stream('H', dbg, tags)
        self.C.seclen = self.H.seclen = seclen or {}
    def sync_check(self): assert self.C.nbar == self.H.nbar, (self.C.nbar, self.H.nbar)

    def prologue(self):
        C, H = self.C, self.H; a = C.a
        a(f".text\n.globl {NAME}_kernel\n.p2align 12\n.type {NAME}_kernel,@function")
        a.label(f"{NAME}_kernel")
        a.label("main_kernel")
        a(f"""
    s_cmp_ge_u32 s2, 256
    s_cbranch_scc1 main_exit
    s_load_dwordx2 s[4:5], s[0:1], 96
    s_load_dwordx2 s[8:9], s[0:1], 0
    s_load_dwordx2 s[12:13], s[0:1], 80
    s_load_dwordx2 s[{sPR}:{sPR+1}], s[0:1], 8
    s_load_dwordx4 s[32:35], s[0:1], 16
    s_load_dwordx2 s[{sPP}:{sPP+1}], s[0:1], 32
    s_load_dwordx8 s[{sPP+2}:{sPP+9}], s[0:1], 48""")
        if self.dbg:
            a(f"{'s_memtime' if self.dbg == 'cyc' else 's_memrealtime'} s[70:71]"); C.nts = H.nts = 1
        a(f"""
    v_lshrrev_b32 v1, 6, v0
    v_and_b32 v{vLANE}, 63, v0
    v_readfirstlane_b32 s{sW8}, v1
    s_and_b32 s{sT0}, s2, 7
    s_lshr_b32 s{sT1}, s2, 3
    s_lshl_b32 s{sGRP}, s{sT0}, 2
    s_lshr_b32 s{sT2}, s{sT1}, 3
    s_add_u32 s{sGRP}, s{sGRP}, s{sT2}
    s_and_b32 s{sMEM}, s{sT1}, 7
    s_and_b32 s{sW}, s{sW8}, 3
    s_mul_i32 s{sAR}, s{sGRP}, {GA:#x}
    s_lshl_b32 s{sNT}, s{sMEM}, 2
    s_add_u32 s{sNT}, s{sNT}, s{sW}
    v_lshlrev_b32 v{vL16}, 4, v{vLANE}
    s_getpc_b64 s[42:43]""")
        a.label("L_pc0")
        a(f"""
    s_sub_u32 s42, s42, L_pc0-main_kernel
    s_subb_u32 s43, s43, 0
    s_lshl_b32 s{sT1}, s{sT1}, 3
    s_add_u32 s{sT1}, s{sT1}, s{sW8}
    s_lshl_b32 s{sT1}, s{sT1}, 8
    v_and_b32 v9, 1, v{vLANE}
    v_lshlrev_b32 v9, 7, v9
    v_add_u32 v9, s{sT1}, v9
    v_min_u32 v9, main_end-main_kernel-4, v9
    global_load_dword v255, v9, s[42:43]
    s_mov_b32 s6, {WS_USED:#x}
    s_mov_b32 s7, 0x20000
    v_lshrrev_b32 v8, 3, v{vLANE}
    s_mov_b32 s10, {2048*1024:#x}
    s_mov_b32 s11, 0x20000
    s_mov_b32 s{sPR+3}, 0x20000
    s_cmp_lt_u32 s{sW8}, 4
    s_cbranch_scc1 C_entry""")
        self.head = a.lines; a.lines = []
        a(".p2align 8"); a.label("C_entry")
    def setup_common(self, S, t):
        S.a(f"""
    s_mov_b32 s14, {2048*1024:#x}
    s_mov_b32 s15, 0x20000
    s_getreg_b32 s{sXCC}, hwreg(HW_REG_XCC_ID, 0, 3)
    v_and_b32 v{t}, 15, v{vLANE}                  ; t
    v_lshrrev_b32 v{t+1}, 4, v{vLANE}             ; g
    v_lshlrev_b32 v{vB}, 10, v{t+1}
    v_lshl_add_u32 v{vB}, v{t}, 4, v{vB}
    v_add_u32 v{vB}, {ACT}, v{vB}                 ; ACT + g*1024 + t*16
    v_lshrrev_b32 v{vD}, 1, v{t+1}
    v_lshlrev_b32 v{vD}, 10, v{vD}
    v_lshl_add_u32 v{vD}, v{t}, 4, v{vD}
    v_and_b32 v{t+2}, 1, v{t+1}
    v_lshl_add_u32 v{vD}, v{t+2}, 3, v{vD}        ; (g>>1)*1024 + t*16 + (g&1)*8
    s_lshl_b32 s{sT0}, s{sNT}, 2
    v_mov_b32 v{vMYF}, s{sT0}
    s_lshl_b32 s{sFLG}, s{sGRP}, 8
    s_add_u32 s{sFLG}, s{sFLG}, {FLAGS:#x}
    v_lshlrev_b32 v{t+2}, 10, v{t}
    v_lshl_add_u32 v{vXO}, v{t+1}, 3, v{t+2}      ; t*1024 + g*8
    s_and_b32 s{sORD}, s{sW}, 1
    s_lshl_b32 s{sORD}, s{sORD}, 8""")

    cT = 6
    S0, S1, NEGM, OA, OB, QA, QB, vIDX, vKA, vVA, vREG = 24, 40, 56, 72, 88, 16, 20, 13, 14, 15, 11
    KVR = 104
    NB = 1
    SCR = 16384
    def x_addr(self, S, dst, t, x):
        S.a(f"""
    v_lshrrev_b32 v{x}, 4, v{vLANE}
    v_and_b32 v{x+1}, 7, v{vLANE}
    v_xor_b32 v{x+1}, v{x+1}, v{x}
    v_lshlrev_b32 v{x+1}, 4, v{x+1}
    v_lshl_add_u32 v{dst}, v{t}, 7, v{x+1}
    v_add_u32 v{dst}, 32768, v{dst}""")
    def qstage(self):
        C, H = self.C, self.H; a = C.a; t = self.cT
        WQR, QACC, QBP = 192, 24, 40
        XB, WB = 32768, 98304
        QS = 144
        a(f"""
    v_bfe_u32 v9, v{vLANE}, 4, 1
    s_and_b32 s{sT0}, s{sW}, 1
    s_lshl_b32 s{sT0}, s{sT0}, 1
    v_or_b32 v9, s{sT0}, v9
    v_bfe_u32 v10, v{vLANE}, 1, 2
    v_xor_b32 v9, v9, v10
    v_lshlrev_b32 v9, 5, v9
    v_and_b32 v10, 1, v{vLANE}
    v_lshl_add_u32 v9, v10, 4, v9
    v_lshl_add_u32 v134, v8, 10, v9
    s_mov_b32 s{sPR+2}, 0x80000""")
        self.prep_setup(C, 152)
        self.setup_common(C, t)
        a(f"""
    s_mov_b32 s40, 0xffff
    s_mov_b32 s41, 0xffff
    v_mov_b32 v{self.vIDX}, 0xdddddddd
    v_mov_b32 v{self.vKA}, v{vL16}
    v_lshrrev_b32 v{t+1}, 5, v{vLANE}
    v_lshlrev_b32 v{t+1}, 8, v{t+1}
    v_lshl_add_u32 v{self.vVA}, v{t}, 4, v{t+1}   ; hA*256 + d*16""")
        for i in range(32): a(f"v_mov_b32 v{self.OA+i}, 0")
        a(f"v_and_b32 v{t+1}, 31, v{vLANE}\n v_cmp_eq_u32 vcc, 16, v{t+1}\n v_mov_b32 v{t+1}, 0x3f803f80")
        for b in range(2):
            for i in range(8): a(f"v_cndmask_b32 v{self.KVR+12*b+4+i}, 0, v{t+1}, vcc")
        a(f"""
    s_waitcnt lgkmcnt(0)
    s_and_b32 s5, s5, 0xffff
    s_and_b32 s13, s13, 0xffff
    s_and_b32 s{sPR+1}, s{sPR+1}, 0xffff
    s_lshl_b32 s{sG}, s{sW}, 13
    s_lshl_b32 s{sT0}, s{sMEM}, 7
    s_add_u32 s{sG}, s{sG}, s{sT0}
    s_lshl_b32 s{sL}, s{sW}, 10""")
        for i in range(16):
            a(f"s_add_u32 m0, s{sL}, {WB + 4096*i}")
            C.vm(f"buffer_load_dwordx4 v134, s[{sPR}:{sPR+3}], s{sG} offen lds")
            if i < 15: a(f"s_add_u32 s{sG}, s{sG}, 32768")
        wqseq = C.nvm - 1
        self.prep_load(C, 152, 164)
        self.x_addr(C, 130, t, t+1)
        a(f"""
    v_xor_b32 v131, 64, v130
    v_bfe_u32 v{t+2}, v{vLANE}, 2, 2
    v_lshl_add_u32 v132, v{t+1}, 3, v{t+2}
    v_lshlrev_b32 v132, 7, v132
    v_and_b32 v{t+1}, 1, v{t+1}
    v_lshrrev_b32 v{t+2}, 1, v{t+2}
    v_lshl_add_u32 v{t+1}, v{t+1}, 1, v{t+2}
    v_xor_b32 v{t+1}, s{sW}, v{t+1}
    v_lshl_add_u32 v132, v{t+1}, 5, v132
    v_and_b32 v{t+2}, 3, v{vLANE}
    v_lshl_add_u32 v132, v{t+2}, 3, v132
    v_add_u32 v132, {WB}, v132
    v_lshlrev_b32 v133, 3, v{t}""")
        ONE, CSQ = 136, 140
        for i in range(4): a(f"v_mov_b32 v{ONE+i}, 0x3f803f80")
        PW = self.opt.get("pw", "after")
        if PW == "before":
            a("s_waitcnt vmcnt(0)"); self.prep_finish(C, 152, 164)
        else: C.wait_vm(wqseq)
        def postbar(c):
            for ks in (2*c, 2*c+1):
                C.ld(f"ds_read_b64_tr_b16 {P(WQR+4*ks)}, v132 offset:{4096*ks}")
                C.ld(f"ds_read_b64_tr_b16 {P(WQR+4*ks+2)}, v132 offset:{4096*ks+512}")
        side = {c: [(lambda ks=ks: a(f"v_mfma_f32_16x16x32_bf16 {vr(CSQ)}, {vr(WQR+4*ks)}, {vr(ONE)}, {'0' if ks == 0 else vr(CSQ)}")) for ks in (2*c, 2*c+1)] for c in range(8)}
        side[5] += [(lambda jt=jt: C.ld(f"ds_read_b64 {P(QS+2*jt)}, v133 offset:{self.SCR + 128*jt}")) for jt in range(4)]
        C.cons_gemm(V(WQR), QACC, QBP, side=side, baddr=lambda ks, jt: (130 + (ks & 1), 8192*(ks >> 1) + 2048*jt),
                    postbar=postbar, tag="q", onebar=True)
        C.ts()
        QA, QB = self.QA, self.QB
        for jt in range(4): a(f"v_mul_f32 v{QS+2*jt+1}, {f32(QSCALE)}, v{QS+2*jt+1}")
        for jt in range(4):
            for h in (0, 2): a(f"v_pk_fma_f32 {P(QACC+4*jt+h)}, {P(QS+2*jt)}, {P(CSQ+h)}, {P(QACC+4*jt+h)} op_sel_hi:[0,1,1] neg_lo:[1,0,0] neg_hi:[1,0,0]")
        for jt in range(4):
            for h in (0, 2): a(f"v_pk_mul_f32 {P(QACC+4*jt+h)}, {P(QS+2*jt)}, {P(QACC+4*jt+h)} op_sel:[1,0] op_sel_hi:[1,1]")
        for jt in range(4):
            a(f"v_cvt_pk_bf16_f32 v{QA+2*jt}, v{QACC+4*jt}, v{QACC+4*jt+1}")
            a(f"v_cvt_pk_bf16_f32 v{QA+2*jt+1}, v{QACC+4*jt+2}, v{QACC+4*jt+3}")
        a(f"v_mov_b32 v{t}, 0\n v_mov_b32 v{t+1}, 0")
        for q in (QA, QB): a(f"v_permlane16_swap_b32 v{q}, v{q+2}\n v_permlane16_swap_b32 v{q+1}, v{q+3}")
        for i in range(4): a(f"v_dot2_f32_bf16 v{t}, v{QA+i}, v{QA+i}, v{t}\n v_dot2_f32_bf16 v{t+1}, v{QB+i}, v{QB+i}, v{t+1}")
        a(f"""
    v_permlane32_swap_b32 v{t}, v{t+1}
    v_add_f32 v{t}, v{t}, v{t+1}
    v_mov_b32 v{t+1}, v{t}
    v_permlane32_swap_b32 v{t}, v{t+1}
    v_max_f32 v{t}, v{t}, v{t+1}
    v_sqrt_f32 v{t}, v{t}
    v_mov_b32 v133, {self.SCR + 512}""")
        if PW != "before":
            a("s_waitcnt vmcnt(0)"); self.prep_finish(C, 152, 164)
        C.ts("q"); C.bar(); C.ts("q")
        a(f"""
    ds_read_b64 v[128:129], v133
    s_waitcnt lgkmcnt(0)
    v_mul_f32 v{self.NEGM}, v{t}, v128
    v_readfirstlane_b32 s{sSLOW}, v129""")
        for i in range(1, 16): a(f"v_mov_b32 v{self.NEGM+i}, v{self.NEGM}")
        a(f"s_mov_b32 s{sSLOW+1}, s{sSLOW}")

        a = H.a; v = self.PV
        XF, WF = 64, 128
        a(f"""
    s_setprio 3
    v_and_b32 v9, 7, v{vLANE}
    v_xor_b32 v9, v9, v8
    v_lshlrev_b32 v9, 4, v9
    v_lshl_add_u32 v19, v8, 10, v9
    s_lshl_b32 s{sPF}, s{sGRP}, 16
    s_lshl_b32 s{sT0}, s{sW}, 14
    s_add_u32 s{sPF}, s{sPF}, s{sT0}
    s_lshl_b32 s{sL}, s{sW}, 11
    s_add_u32 s{sL}, s{sL}, {XB}
    s_lshr_b32 s{sKVW}, s{sMEM}, 1
    s_mov_b32 s{sPR+2}, 16384
    v_mov_b32 v7, 0
    s_bitcmp1_b32 s{sMEM}, 0
    s_waitcnt lgkmcnt(0)
    s_cselect_b64 s[{sPR}:{sPR+1}], s[34:35], s[32:33]
    s_and_b32 s5, s5, 0xffff
    s_and_b32 s9, s9, 0xffff
    s_and_b32 s13, s13, 0xffff
    s_and_b32 s{sPR+1}, s{sPR+1}, 0xffff
    s_mov_b32 s{sT0}, {TAGW:#x}
    buffer_load_dword v47, v7, {WS}, s{sT0} offen sc1""")
        for c in range(8):
            a(f"""
    s_add_u32 s{sT0}, s{sMEM}, {c}
    s_and_b32 s{sT0}, s{sT0}, 7
    s_lshl_b32 s{sG}, s{sT0}, 7
    s_add_u32 s{sG}, s{sG}, s{sPF}
    s_lshl_b32 s{sT0}, s{sT0}, 13
    s_add_u32 m0, s{sT0}, s{sL}""")
            H.vm(f"buffer_load_dwordx4 v19, {XS}, s{sG} offen lds")
            a(f"s_add_u32 s{sG}, s{sG}, {8192 - 1024}")
            xseq = H.vm(f"buffer_load_dwordx4 v19, {XS}, s{sG} offen offset:1024 lds")
        self.setup_common(H, 16)
        L = H.lab("nokv1")
        a(f"s_cmp_lg_u32 s{sKVW}, s{sW}\n s_cbranch_scc1 {L}")
        for i in range(4):
            a(f"s_mov_b32 m0, {4096*i}\n s_mov_b32 s{sT0}, {4096*i}")
            for k in range(4): a(f"buffer_load_dwordx4 v{vL16}, s[{sPR}:{sPR+3}], s{sT0} offen offset:{1024*k} lds")
        a.label(L)
        self.x_addr(H, 40, 16, 42)
        a(f"s_lshl_b32 s{sT0}, s{sW}, 11\n v_add_u32 v40, s{sT0}, v40\n v_xor_b32 v41, 64, v40")
        a("v_mov_b32 v32, 0\n v_mov_b32 v33, 0\n v_mov_b32 v34, 0\n v_mov_b32 v35, 0\n v_mov_b32 v60, 0x3f803f80\n v_mov_b32 v61, 0x3f803f80\n v_mov_b32 v62, 0x3f803f80\n v_mov_b32 v63, 0x3f803f80")
        H.ts("q")
        L, L2 = H.lab("noinit"), H.lab("initd")
        a(f"s_cmp_lg_u32 s{sKVW}, s{sW}\n s_cbranch_scc1 {L}")
        a(f"""
    v_mov_b32 v48, 0
    v_mov_b32 v49, 0
    v_mov_b32 v50, 0
    v_mov_b32 v51, 0
    v_lshrrev_b32 v52, 1, v{vLANE}
    v_lshlrev_b32 v52, 13, v52
    v_and_b32 v53, 1, v{vLANE}
    v_lshl_add_u32 v52, v53, 4, v52
    s_lshl_b32 s{sT0}, s{sMEM}, 5
    s_add_u32 s{sT0}, s{sT0}, s{sFLG}
    s_mov_b64 exec, 0x3fff
    buffer_store_dwordx4 v[48:51], v52, {WS}, s{sT0} offen sc1
    s_lshl_b32 s{sT0}, s2, 7
    s_add_u32 s{sT0}, s{sT0}, {PFLAG:#x}
    s_mov_b64 exec, 1
    buffer_store_dword v48, v7, {WS}, s{sT0} offen sc1
    s_mov_b64 exec, -1
    v_mov_b32 v52, -1
    v_mov_b32 v53, -1
    v_mov_b32 v54, -1
    v_mov_b32 v55, -1
    s_lshl_b32 s{sT0}, s{sMEM}, 10
    s_add_u32 s{sT0}, s{sT0}, s{sAR}
    s_add_u32 s{sT0}, s{sT0}, {ST1:#x}
    buffer_store_dwordx4 v[52:55], v{vL16}, {WS}, s{sT0} offen sc1
    s_bfe_u32 s{sT1}, s{sMEM}, 0x10001
    s_mul_i32 s{sT1}, s{sT1}, 31
    s_cmp_eq_u32 s{sT1}, s{sGRP}
    s_cselect_b32 s{sT1}, 0, -1
    v_mov_b32 v56, s{sT1}
    v_mov_b32 v57, s{sT1}
    v_mov_b32 v58, s{sT1}
    v_mov_b32 v59, s{sT1}
    s_lshl_b32 s{sT0}, s{sMEM}, 8
    s_add_u32 s{sT0}, s{sT0}, s{sAR}
    s_add_u32 s{sT0}, s{sT0}, {HALO:#x}
    s_mov_b64 exec, 0xffff
    buffer_store_dwordx4 v[56:59], v{vL16}, {WS}, s{sT0} offen sc1
    s_mov_b64 exec, -1""")
        a(f"s_waitcnt vmcnt(4)\n s_branch {L2}")
        a.label(L)
        a("s_waitcnt vmcnt(0)")
        a.label(L2)
        H.ts("q")
        rs = [H.ld(f"ds_read_b128 {vr(XF+4*ks)}, v{40 + (ks & 1)} offset:{8192*(ks >> 1)}") for ks in range(16)]
        L = H.lab("nokv2")
        a(f"""
    s_cmp_lg_u32 s{sKVW}, s{sW}
    s_cbranch_scc1 {L}
    v_bfe_u32 v42, v{vLANE}, 2, 2
    v_lshl_add_u32 v42, v17, 3, v42
    v_lshlrev_b32 v42, 5, v42
    v_and_b32 v43, 3, v{vLANE}
    v_lshl_add_u32 v42, v43, 3, v42""")
        for ks in range(16):
            a(f"ds_read_b64_tr_b16 {P(WF+4*ks)}, v42 offset:{1024*ks}\n ds_read_b64_tr_b16 {P(WF+4*ks+2)}, v42 offset:{1024*ks+128}")
        a.label(L)
        for ks in range(16):
            if ks % 2 == 0: H.wait_ld(rs[ks+1])
            a(f"v_mfma_f32_16x16x32_bf16 v[36:39], v[60:63], {vr(XF+4*ks)}, {'0' if ks == 0 else 'v[36:39]'}")
            for i in range(4): a(f"v_dot2_f32_bf16 v{32+i}, v{XF+4*ks+i}, v{XF+4*ks+i}, v{32+i}")
        a(f"""
    v_add_f32 v32, v32, v33
    v_add_f32 v34, v34, v35
    v_add_f32 v45, v32, v34
    v_mov_b32 v44, v45
    v_permlane32_swap_b32 v44, v45
    v_add_f32 v45, v44, v45
    v_mov_b32 v44, v45
    v_permlane16_swap_b32 v44, v45
    v_add_f32 v45, v44, v45
    v_mul_f32 v44, 0x3b000000, v36
    v_mul_f32 v45, 0x3b000000, v45
    v_fma_f32 v45, -v44, v44, v45
    v_max_f32 v45, 0, v45
    v_add_f32 v45, 0x3727c5ac, v45
    v_rsq_f32 v45, v45
    s_lshl_b32 s{sT0}, s{sW}, 7
    v_lshl_add_u32 v46, v16, 3, s{sT0}
    ds_write_b64 v46, v[44:45] offset:{self.SCR}""")
        a(f"v_readfirstlane_b32 s{sTAG}, v47\n s_add_u32 s{sTAG}, s{sTAG}, 1")
        L, Lv, Lp = H.lab("nokv3"), H.lab("isv"), H.lab("pub")
        a(f"""
    s_waitcnt lgkmcnt(0)
    s_cmp_lg_u32 s{sKVW}, s{sW}
    s_cbranch_scc1 {L}
    s_lshl_b32 s{sT1}, s{sGRP}, 1
    s_lshr_b32 s{sT2}, s{sW}, 1
    s_add_u32 s{sT1}, s{sT1}, s{sT2}
    s_lshl_b32 s{sT1}, s{sT1}, 11
    s_add_u32 s{sT1}, s{sT1}, {KV:#x}             ; tile32*2048
    v_lshrrev_b32 v42, 1, v17                     ; hA
    v_and_b32 v43, 0xff, v{vD}                    ; (t or d)*16 + (g&1)*8
    s_bitcmp1_b32 s{sMEM}, 0
    s_cbranch_scc1 {Lv}""")
        for ks in range(16):
            a(f"v_mfma_f32_16x16x32_bf16 v[48:51], {vr(WF+4*ks)}, {vr(XF+4*ks)}, {'0' if ks == 0 else 'v[48:51]'}")
            a(f"v_mfma_f32_16x16x32_bf16 v[52:55], {vr(WF+4*ks)}, v[60:63], {'0' if ks == 0 else 'v[52:55]'}")
        a(f"s_add_u32 s{sT1}, s{sT1}, s{sORD}\n v_lshl_add_u32 v43, v42, 9, v43")
        for i in range(4): a(f"v_fma_f32 v{48+i}, -v44, v{52+i}, v{48+i}")
        for i in range(4): a(f"v_mul_f32 v{48+i}, v{48+i}, v45")
        a(f"""
    v_cvt_pk_bf16_f32 v52, v48, v49
    v_cvt_pk_bf16_f32 v53, v50, v51
    v_mov_b32 v57, 0
    buffer_store_dwordx2 v[52:53], v43, {WS}, s{sT1} offen sc1
    v_dot2_f32_bf16 v57, v52, v52, v57
    v_dot2_f32_bf16 v57, v53, v53, v57
    v_mov_b32 v58, v57
    v_permlane32_swap_b32 v57, v58
    v_add_f32 v57, v57, v58
    v_mov_b32 v58, v57
    v_permlane16_swap_b32 v57, v58
    v_add_f32 v57, v57, v58""")
        for r in (8, 4, 2, 1): a(f"v_max_f32_dpp v57, v57, v57 row_ror:{r} row_mask:0xf bank_mask:0xf")
        a(f"s_branch {Lp}")
        a.label(Lv)
        a(f"v_lshl_add_u32 v46, v17, 5, s{sT0}\n ds_read_b128 v[32:35], v46 offset:{self.SCR}\n ds_read_b128 v[36:39], v46 offset:{self.SCR+16}")
        for ks in range(16):
            a(f"v_mfma_f32_16x16x32_bf16 v[48:51], {vr(XF+4*ks)}, {vr(WF+4*ks)}, {'0' if ks == 0 else 'v[48:51]'}")
            a(f"v_mfma_f32_16x16x32_bf16 v[52:55], v[60:63], {vr(WF+4*ks)}, {'0' if ks == 0 else 'v[52:55]'}")
        a(f"s_lshl_b32 s{sT2}, s{sORD}, 1\n s_add_u32 s{sT1}, s{sT1}, s{sT2}\n v_lshl_add_u32 v43, v42, 8, v43\n s_waitcnt lgkmcnt(0)")
        for i in range(4): a(f"v_fma_f32 v{48+i}, -v{32+2*i}, v{52+i}, v{48+i}")
        for i in range(4): a(f"v_mul_f32 v{48+i}, v{48+i}, v{33+2*i}")
        a(f"""
    v_cvt_pk_bf16_f32 v52, v48, v49
    v_cvt_pk_bf16_f32 v53, v50, v51
    v_mov_b32 v57, 0
    buffer_store_dwordx2 v[52:53], v43, {WS}, s{sT1} offen offset:1024 sc1""")
        a.label(Lp)
        a(f"""
    v_mov_b32 v56, s{sTAG}
    v_mov_b32 v58, s{sXCC}
    v_mov_b32 v59, s{sTAG}
    s_lshl_b32 s{sT0}, s{sGRP}, 3
    s_add_u32 s{sT0}, s{sT0}, s{sMEM}
    s_lshl_b32 s{sT0}, s{sT0}, 7
    s_add_u32 s{sT0}, s{sT0}, {KFLAG:#x}
    s_waitcnt vmcnt(0)
    s_mov_b64 exec, 1
    buffer_store_dwordx4 v[56:59], v7, {WS}, s{sT0} offen sc1
    s_mov_b64 exec, -1""")
        a.label(L)
        H.ts("q")
        a("s_setprio 0")
        H.bar()
        a(f"v_lshlrev_b32 v{self.TA}, 7, v{vLANE}\n v_and_b32 v46, 0xfff, v{self.TA}\n s_lshr_b32 s{sRND}, s{sGRP}, 2")
        self.kpoll(46, True)
        self.kv(1)
        a(f"""
    s_and_b32 s{sT0}, s{sGRP}, 3
    s_lshl_b32 s{sT0}, s{sT0}, 3
    s_lshl_b32 s{sT0}, 0xff, s{sT0}
    v_cmp_ne_u32 vcc, s{sXCC}, v50
    s_and_b32 s{sT0}, s{sT0}, vcc_lo
    s_cselect_b64 s[{sSLOW}:{sSLOW+1}], -1, 0""")
        for r in (8, 4, 2, 1): a(f"v_max_f32_dpp v49, v49, v49 row_ror:{r} row_mask:0xf bank_mask:0xf")
        a(f"""
    v_mov_b32 v50, v49
    v_permlane16_swap_b32 v49, v50
    v_max_f32 v49, v49, v50
    v_sqrt_f32 v49, v49
    v_mov_b32 v51, s{sSLOW}
    v_mul_f32 v50, -1.0, v49
    v_mov_b32 v46, {self.SCR + 512}
    ds_write_b64 v46, v[50:51]
    s_waitcnt lgkmcnt(0)""")
        H.ts("q")
        H.bar()
        self.kv01 = self.kvseq
        self.sync_check()
    TA = 18
    def kpoll(self, va, first=False):
        H = self.H; a = H.a; L = H.lab("kp")
        a(f"s_lshl_b32 s{sT0}, s{sRND}, 12\n s_add_u32 s{sT0}, s{sT0}, {KFLAG:#x}\n s_mov_b32 s{sCNT}, 0")
        a.label(L)
        a(f"""
    buffer_load_dwordx4 v[48:51], v{va}, {WS}, s{sT0} offen sc1
    s_add_u32 s{sCNT}, s{sCNT}, 1
    s_cmp_gt_u32 s{sCNT}, {SPIN}
    s_cbranch_scc1 main_exit
    s_waitcnt vmcnt(0)
    v_cmp_ne_u32 vcc, s{sTAG}, v48
    v_cmp_ne_u32 s[36:37], s{sTAG}, v51
    s_or_b64 vcc, vcc, s[36:37]
    s_cbranch_vccnz {L}""")
    nkv = 0
    def kv(self, n):
        H = self.H
        for r in range(n):
            H.a(f"""
    s_lshl_b32 s{sW4}, s{sRND}, 14
    s_lshl_b32 s{sPL}, s{sW}, 12
    s_add_u32 s{sW4}, s{sW4}, s{sPL}
    s_add_u32 s{sW4}, s{sW4}, {KV:#x}
    s_add_u32 m0, s{sPL}, {16384*self.nkv}
    s_add_u32 s{sRND}, s{sRND}, 1
    s_and_b32 s{sRND}, s{sRND}, 7""")
            self.nkv += 1
            for i in range(4): self.kvseq = H.vm(f"buffer_load_dwordx4 v{vL16}, {WS}, s{sW4} offen offset:{1024*i} sc1 lds")

    PV = 20
    def prep_setup(self, S, v):
        a = S.a
        T0, T1, T2, T3 = sT0, sT1, sT2, sT3
        def dst(i, base): a(f"s_lshl_b32 s{sPD+i}, s{T2}, 10\n s_lshl_b32 s{T3}, s{sW}, 8\n s_add_u32 s{sPD+i}, s{sPD+i}, s{T3}\n s_add_u32 s{sPD+i}, s{sPD+i}, {base:#x}")
        def std(q, i, base, rows=True):
            a(f"""
    s_lshr_b32 s{T1}, s{q}, 3
    s_and_b32 s{T2}, s{q}, 7
    s_lshl_b32 s{sPS+i}, s{T1}, 15
    s_lshl_b32 s{T3}, s{T2}, 7
    s_add_u32 s{sPS+i}, s{sPS+i}, s{T3}""")
            if rows: a(f"s_lshl_b32 s{T3}, s{sW}, 13\n s_add_u32 s{sPS+i}, s{sPS+i}, s{T3}")
            if base is not None:
                a(f"s_lshl_b32 s{T2}, s{T2}, 6\n s_add_u32 s{T2}, s{T2}, s{T1}"); dst(i, base)
        def w4t(q, i, vd):
            std(q, i, None)
            a(f"""
    s_mul_i32 s{T2}, s{T2}, 56
    s_add_u32 s{T2}, s{T2}, s{T1}
    s_lshl_b32 s{T2}, s{T2}, 2
    s_mul_i32 s{T1}, s{T1}, 9363
    s_lshr_b32 s{T1}, s{T1}, 16
    v_subrev_u32 v{vd}, s{T1}, v{v+9}
    v_and_b32 v{vd}, 3, v{vd}
    v_lshl_add_u32 v{vd}, v{vd}, 10, v{v+10}""")
            dst(i, W4)
        def w3t(q, i):
            a(f"""
    s_mul_i32 s{T1}, s{q}, 2341
    s_lshr_b32 s{T1}, s{T1}, 16                   ; ks = q/28
    s_mul_i32 s{T2}, s{T1}, 28
    s_sub_u32 s{T2}, s{q}, s{T2}                  ; nb
    s_lshl_b32 s{T3}, s{T1}, 2
    s_add_u32 s{T3}, s{T3}, s{sW}
    s_mul_i32 s{sPS+i}, s{T3}, {8*3584}
    s_lshl_b32 s{T3}, s{T2}, 7
    s_add_u32 s{sPS+i}, s{sPS+i}, s{T3}
    s_lshl_b32 s{T2}, s{T2}, 6
    s_add_u32 s{T2}, s{T2}, s{T1}""")
            dst(i, W3)
        a(f"""
    v_lshrrev_b32 v{v+9}, 4, v{vLANE}             ; q
    v_and_b32 v{v+10}, 0xff, v{vL16}              ; i*16
    v_lshl_add_u32 v{v+4}, v{v+9}, 14, v{v+10}
    v_lshrrev_b32 v{v+7}, 3, v{vLANE}
    v_and_b32 v{v+8}, 0x7f, v{vL16}
    v_lshl_add_u32 v{v}, v{v+7}, 10, v{v+8}
    v_mul_u32_u24 v{v+1}, 3584, v{v+7}
    v_add_u32 v{v+1}, v{v+1}, v{v+8}""")
        w3t(2, 0); w4t(2, 1, v+5)
        L, Le = S.lab("pwo"), S.lab("pend")
        a(f"s_cmp_ge_u32 s2, 192\n s_cbranch_scc1 {L}\n s_add_u32 s{T0}, s2, 256")
        w3t(T0, 2); w4t(T0, 3, v+6)
        a(f"v_mov_b32 v{v+2}, v{v+1}\n v_mov_b32 v{v+3}, v{v}\n s_branch {Le}")
        a.label(L)
        a(f"s_sub_u32 s{T0}, s2, 192"); std(T0, 2, WO, rows=False)
        a(f"s_sub_u32 s{T0}, s2, 128"); std(T0, 3, WO, rows=False)
        a(f"""
    s_lshr_b32 s{T1}, s{sW}, 1
    s_lshl_b32 s{T1}, s{T1}, 4
    s_and_b32 s{T2}, s{sW}, 1
    s_lshl_b32 s{T2}, s{T2}, 2
    s_add_u32 s{T1}, s{T1}, s{T2}
    v_and_b32 v{v+2}, 4, v{v+7}
    v_add3_u32 v{v+2}, v{v+2}, v{v+7}, s{T1}
    v_lshl_add_u32 v{v+2}, v{v+2}, 10, v{v+8}
    v_mov_b32 v{v+3}, v{v+2}
    v_mov_b32 v{v+6}, v{v+4}""")
        a.label(Le)
        a(f"s_and_b32 s{T0}, s2, 127"); std(T0, 4, W1)
        a(f"""
    s_lshr_b32 s{T0}, s2, 7
    s_lshl_b32 s{T0}, s{T0}, 19
    s_add_u32 s{sPD+4}, s{sPD+4}, s{T0}
    s_mul_i32 s{T0}, s{sW}, 3072
    s_add_u32 s{T0}, s{T0}, 20480
    v_add_u32 v{v+7}, s{T0}, v{vL16}
    v_bfe_u32 v{v+8}, v{vLANE}, 2, 2
    v_lshlrev_b32 v{v+8}, 7, v{v+8}
    v_lshl_add_u32 v{v+8}, v{v+9}, 5, v{v+8}
    v_and_b32 v{v+9}, 3, v{vLANE}
    v_lshl_add_u32 v{v+8}, v{v+9}, 3, v{v+8}
    v_add_u32 v{v+8}, s{T0}, v{v+8}""")
    def prep_load(self, S, v, dst):
        a = S.a
        PR = f"s[{sPR}:{sPR+3}]"
        wo, w1, w2, w3, w4 = (f"s[{sPP+2*i}:{sPP+2*i+1}]" for i in range(5))
        big, small = 0x1c0000, 0x80000
        for i in range(5):
            if i < 2: a(f"s_mov_b64 s[{sPR}:{sPR+1}], {(w3, w4)[i]}\n s_mov_b32 s{sPR+2}, {big:#x}")
            elif i < 4:
                a(f"s_mov_b32 s{sT1}, {small:#x}\n s_cmp_ge_u32 s2, 192\n s_cselect_b64 s[{sPR}:{sPR+1}], {wo}, {(w3, w4)[i-2]}\n s_cselect_b32 s{sPR+2}, s{sT1}, {big:#x}")
            else: a(f"s_cmp_ge_u32 s2, 128\n s_cselect_b64 s[{sPR}:{sPR+1}], {w2}, {w1}\n s_mov_b32 s{sPR+2}, {small:#x}")
            a(f"s_and_b32 s{sPR+1}, s{sPR+1}, 0xffff")
            S.vm(f"buffer_load_dwordx4 {vr(dst+4*i)}, v{(v+1, v, v+2, v+3, v)[i]}, {PR}, s{sPS+i} offen")
    def prep_finish(self, S, v, d):
        a = S.a
        for grp in ((0, 1, 2), (3, 4)):
            for k, i in enumerate(grp): a(f"ds_write_b128 v{v+7}, {vr(d+4*i)} offset:{1024*k}")
            a("s_waitcnt lgkmcnt(0)")
            for k, i in enumerate(grp):
                a(f"ds_read_b64_tr_b16 {P(d+4*i)}, v{v+8} offset:{1024*k}\n ds_read_b64_tr_b16 {P(d+4*i+2)}, v{v+8} offset:{1024*k+512}")
            a("s_waitcnt lgkmcnt(0)")
        for i in range(5): S.vm(f"buffer_store_dwordx4 {vr(d+4*i)}, v{(v+4, v+5, v+4, v+6, v+4)[i]}, {WS}, s{sPD+i} offen sc1")

    hXT, hACC, hBP = 8, 16, 32
    hRES, hSTAT, hCS1, hR1, hTMP, hCS3, hX = 64, 80, 96, 100, 104, 112, 120
    UB = tuple(int(x) for x in os.environ.get('UB', '20,72,86,98,104').split(','))
    UBK = int(os.environ.get('UBK', '6'))
    def attention(self):
        C, H = self.C, self.H; a = C.a
        S0, S1, NEGM, OA, OB, QA, QB, vIDX, vKA, vVA = self.S0, self.S1, self.NEGM, self.OA, self.OB, self.QA, self.QB, self.vIDX, self.vKA, self.vVA
        kf = lambda t: self.KVR + 12*(t & 1)
        C.ts("at"); C.bar(); C.ts("at")
        a("s_setprio 1")
        def rdK(t): a(f"ds_read_b128 {vr(kf(t))}, v{vKA} offset:{(t&31)*2048}")
        def rdV(t):
            a(f"s_mov_b64 exec, {sVM}")
            a(f"ds_read_b128 {vr(kf(t)+4)}, v{vVA} offset:{(t&31)*2048+1024}")
            a(f"ds_read_b128 {vr(kf(t)+8)}, v{vVA} offset:{(t&31)*2048+1536}")
            a("s_mov_b64 exec, -1")
        def qk(u): a(f"v_mfma_f32_32x32x16_bf16 {vr((S0,S1)[u&1],16)}, {vr(kf(u>>1))}, {vr((QA,QB)[u&1])}, {vr(NEGM,16)}")
        def pv(u, h): a(f"v_smfmac_f32_32x32x32_bf16 {vr((OA,OB)[u&1],16)}, {vr(kf(u>>1)+4+4*h)}, {vr((S0,S1)[u&1]+8*h,8)}, v{vIDX}")
        def ex(u, lo, hi):
            for i in range(lo, hi): a(f"v_exp_f32 v{(S0,S1)[u&1]+i}, v{(S0,S1)[u&1]+i}")
        x = self.cT
        a(f"s_lshl_b32 s{sT0}, s{sW}, 13\n s_add_u32 s{sT0}, s{sT0}, {HI}\n v_add_u32 v{x}, s{sT0}, v{vL16}\n s_lshl_b32 s{sT0}, s{sW}, 14\n v_add_u32 v{x+1}, s{sT0}, v{vL16}")
        plan = {}
        for ub, f0, n, va in ((self.UB[1], 0, 8, x), (self.UB[2], 8, 16, x+1), (self.UB[3], 24, 8, x)):
            for i in range(n): plan.setdefault(ub + 1 + 2*(i // 4), []).append(f"ds_read_b128 {vr(128+4*(f0+i))}, v{va} offset:{1024*i}")
        rdK(0); rdV(0); rdK(1)
        a("s_waitcnt lgkmcnt(3)")
        qk(0)
        for u in range(128):
            t, q = u >> 1, u & 1
            if u % 8 == 0: C.ts("at")
            ex(u, 0, 2)
            if u > 0: pv(u-1, 1)
            ex(u, 2, 5)
            if u + 1 < 128: qk(u+1)
            if u == self.UBK: a("s_waitcnt vmcnt(0)")
            if u in self.UB or u == self.UBK: C.bar()
            if q == 0:
                if t + 1 < 64:
                    if t + 1 == 32: a(f"v_add_u32 v{vVA}, 0x10000, v{vVA}")
                    rdV(t+1)
                if t + 2 < 64:
                    if t + 2 == 32: a(f"v_add_u32 v{vKA}, 0x10000, v{vKA}")
                    rdK(t+2)
            for y in plan.pop(u, []): a(y)
            ex(u, 5, 10)
            if q == 0: a(f"s_waitcnt lgkmcnt({3 if t + 2 < 64 else (2 if t + 1 < 64 else 0)})")
            pv(u, 0)
            ex(u, 10, 16)
        assert not plan
        pv(127, 1)
        C.ts(); C.ts("at")
        t = self.cT
        a(f"""
    v_lshrrev_b32 v{t+1}, 5, v{vLANE}
    v_lshlrev_b32 v{t+1}, 10, v{t+1}
    v_and_b32 v{t+2}, 31, v{vLANE}
    v_lshl_add_u32 v{t+4}, v{t+2}, 4, v{t+1}""")
        C.tile_soff(sT1, O_)
        a(f"v_min_f32 v{t}, v{OA+8}, v{OB+8}\n v_max_f32 v{t+1}, v{OA+8}, v{OB+8}\n v_cmp_nle_f32 vcc, {f32(2.0**-80)}, v{t}\n s_mov_b32 s{sT2}, vcc_lo\n v_cmp_nge_f32 vcc, {f32(2.0**80)}, v{t+1}\n s_or_b32 s{sT2}, s{sT2}, vcc_lo\n s_cbranch_scc1 attn_redo")
        a.label("attn_done")
        a(f"v_mov_b32 v{OA+9}, v{OA+8}\n v_mov_b32 v{OB+9}, v{OB+8}\n v_permlane32_swap_b32 v{OA+8}, v{OA+9}\n v_permlane32_swap_b32 v{OB+8}, v{OB+9}")
        a(f"v_rcp_f32 v{t+2}, v{OA+8}\n v_rcp_f32 v{t+6}, v{OB+8}")
        for o, r in ((OA, t+2), (OB, t+6)):
            for i in range(4): a(f"v_pk_mul_f32 {P(o+2*i)}, {P(o+2*i)}, {P(r)} op_sel_hi:[1,0]")
            for i in range(4): a(f"v_cvt_pk_bf16_f32 v{o+i}, v{o+2*i}, v{o+2*i+1}")
        C.setvcc()
        C.cstore([f"buffer_store_dwordx4 {vr(OA)}, v{t+4}, {WS}, s{sT1} offen", f"buffer_store_dwordx4 {vr(OB)}, v{t+4}, {WS}, s{sT1} offen offset:512"])
        a("s_setprio 0")
        C.set_act(O_)
        a(f"v_and_b32 v{self.cF}, 31, v{vLANE}\n v_lshlrev_b32 v{self.cF}, 2, v{self.cF}")
        C.flag(0, t)
        C.ts()
        a = H.a; v = self.PV; d = v + 8
        CW = v + 7
        a(f"v_mov_b32 v{CW}, {HI + 32752}\n v_mov_b32 v6, 0\n ds_write_b64 v{CW}, v[6:7]\n ds_write_b32 v{CW}, v6 offset:8\n s_waitcnt lgkmcnt(0)")
        H.wait_vm(self.kv01); H.bar()
        TA, TD = self.TA, 19
        def spin(n, off=0):
            L = H.lab("hs")
            a(f"s_mov_b32 s{sCNT}, 0")
            a.label(L)
            a(f"""
    s_sleep 1
    ds_read_b32 v6, v{CW} offset:{off}
    s_add_u32 s{sCNT}, s{sCNT}, 1
    s_cmp_gt_u32 s{sCNT}, {SPIN*16}
    s_cbranch_scc1 main_exit
    s_waitcnt lgkmcnt(0)
    v_cmp_gt_u32 vcc, {n}, v6
    s_cbranch_vccnz {L}""")
        def count(off=0): a(f"v_mov_b32 v6, 1\n s_mov_b64 exec, 1\n ds_add_u32 v{CW}, v6 offset:{off}\n s_mov_b64 exec, -1")
        def pub():
            L = H.lab("nopf")
            a(f"s_cmp_lg_u32 s{sW}, 3\n s_cbranch_scc1 {L}")
            a(f"""
    s_lshl_b32 s{sT0}, s2, 7
    s_add_u32 s{sT0}, s{sT0}, {PFLAG:#x}
    v_mov_b32 v6, 1
    s_mov_b64 exec, 1
    buffer_store_dword v6, v7, {WS}, s{sT0} offen sc1
    s_mov_b64 exec, -1""")
            a.label(L)
        def kall():
            L = H.lab("kall")
            a(f"s_mov_b32 s{sCNT}, 0\n s_lshl_b32 s{sT0}, s{sW}, 13\n s_add_u32 s{sT0}, s{sT0}, {KFLAG:#x}")
            a.label(L)
            a(f"""
    buffer_load_dword v48, v{TA}, {WS}, s{sT0} offen sc1
    s_add_u32 s{sCNT}, s{sCNT}, 1
    s_cmp_gt_u32 s{sCNT}, {SPIN}
    s_cbranch_scc1 main_exit
    s_waitcnt vmcnt(0)
    v_cmp_ne_u32 vcc, s{sTAG}, v48
    s_mov_b64 exec, vcc
    s_cbranch_vccnz {L}
    s_mov_b64 exec, -1""")
            count(8); spin(4, 8)
        a(f"v_and_b32 v46, 0xfff, v{TA}")
        self.kpoll(46); self.kv(1)
        H.wait_vm(self.kvseq); H.bar()
        pub()
        kall(); self.kv(6)
        H.wait_vm(self.kvseq); H.ts("h"); H.bar()
        def code_touch():
            L = H.lab("pc")
            a(f"s_getpc_b64 s[36:37]")
            a.label(L)
            a(f"""
    s_sub_u32 s36, s36, {L}-main_kernel
    s_subb_u32 s37, s37, 0
    s_and_b32 s{sT1}, s{sGRP}, 3
    s_lshl_b32 s{sT1}, s{sT1}, 5
    s_add_u32 s{sT1}, s{sT1}, s{sNT}
    s_lshl_b32 s{sT1}, s{sT1}, 9
    v_and_b32 v{v+2}, 0x1ff, v{TA}
    v_add_u32 v{v+2}, s{sT1}, v{v+2}
    v_min_u32 v{v+2}, main_end-main_kernel-4, v{v+2}""")
            H.vm(f"global_load_dword v{TD}, v{v+2}, s[36:37]")
        def arena_touch():
            if self.opt.get("usc1"):
                a(f"""
    s_lshl_b32 s{sTCH}, s{sNT}, 12
    s_lshl_b32 s{sT1}, s{sNT}, 8
    s_sub_u32 s{sT1}, s{sT1}, s{sTCH}
    s_add_u32 s{sT1}, s{sT1}, {ST1 - 4096}
    s_add_u32 s{sTCH}, s{sTCH}, s{sAR}
    v_mov_b32 v6, v{TA}
    s_mov_b32 exec_lo, 0
    v_add_u32 v6, s{sT1}, v6
    s_mov_b32 exec_lo, -1
    s_mov_b32 exec_hi, 3""")
                H.vm(f"buffer_load_dword v{TD}, v6, {WS}, s{sTCH} offen")
                a("s_mov_b64 exec, -1")
                return
            a(f"s_mul_i32 s{sTCH}, s{sNT}, {TOUCHN*128}\n s_add_u32 s{sTCH}, s{sTCH}, s{sAR}\n s_add_u32 s{sTCH}, s{sTCH}, {TOUCH0:#x}")
            H.vm(f"buffer_load_dword v{TD}, v{TA}, {WS}, s{sTCH} offen")
            a(f"s_mov_b32 exec_lo, 0x7ff\n s_mov_b32 exec_hi, 0\n s_add_u32 s{sTCH}, s{sTCH}, 8192")
            H.vm(f"buffer_load_dword v{TD}, v{TA}, {WS}, s{sTCH} offen")
            a("s_mov_b64 exec, -1")
        hi = f"s_lshl_b32 s{sPL}, s{sW}, 13\n s_add_u32 s{sPL}, s{sPL}, {HI}"
        lo = f"s_lshl_b32 s{sPL}, s{sW}, 14"
        F = lambda *x, **k: H.run(H.frags(*x, **k))
        code_touch()
        AP = self.opt.get("ap", "mid")
        if AP == "pre": arena_touch()
        L0 = H.lab("pchk")
        a(f"s_lshl_b32 s{sPS}, s{sW}, 13\n s_add_u32 s{sPS}, s{sPS}, {PFLAG:#x}\n s_mov_b32 s{sCNT}, 0")
        a.label(L0)
        a(f"""
    buffer_load_dword v{d}, v{TA}, {WS}, s{sPS} offen sc1
    s_add_u32 s{sCNT}, s{sCNT}, 1
    s_cmp_gt_u32 s{sCNT}, {SPIN}
    s_cbranch_scc1 main_exit
    s_waitcnt vmcnt(0)
    v_cmp_ne_u32 vcc, 1, v{d}
    s_mov_b64 exec, vcc
    s_sleep 2
    s_cbranch_vccnz {L0}
    s_mov_b64 exec, -1""")
        count(4); spin(4, 4); count(4)
        L = H.lab("notag")
        a(f"""
    s_or_b32 s{sT0}, s2, s{sW}
    s_cmp_lg_u32 s{sT0}, 0
    s_cbranch_scc1 {L}
    v_mov_b32 v6, s{sTAG}
    s_mov_b32 s{sT0}, {TAGW:#x}
    s_mov_b64 exec, 1
    buffer_store_dword v6, v7, {WS}, s{sT0} offen sc1
    s_mov_b64 exec, -1""")
        a.label(L)
        H.ts("h")
        for base, reg in ((WO, 64), (W1, 128), (W2, 192)):
            H.set_wbase(base, 16, sW4); F(16, sW4, dst=V(reg))
        L = H.lab("ack")
        a(f"s_cmp_lg_u32 s{sW}, 3\n s_cbranch_scc1 {L}")
        spin(8, 4)
        a.label(L)
        H.set_w3(0); a(hi)
        F(8, sPF, lds=sPL); r1 = H.lastf
        code_touch()
        H.xo_soff(sT1)
        for jt in range(4):
            H.vm(f"buffer_load_dwordx2 {P(self.hXT+2*jt)}, v{vXO}, {XS}, s{sT1} offen")
            if jt < 3: a(f"s_add_u32 s{sT1}, s{sT1}, 16384")
        a(f"s_and_b32 s{sT1}, s{sGRP}, 3\n s_mul_i32 s{sT1}, s{sT1}, 6144\n s_add_u32 s{sTCH}, s{sPF}, s{sT1}\n s_mov_b32 exec_hi, 0xffff")
        H.vm(f"buffer_load_dword v{TD}, v{TA}, {WS}, s{sTCH} offen")
        a("s_mov_b64 exec, -1")
        if AP == "mid": arena_touch()
        H.wait_vm(r1); H.ts("h"); H.bar()
        a(lo); F(16, sPF, lds=sPL); r2 = H.lastf
        code_touch()
        a(f"""
    s_and_b32 s{sT1}, s{sGRP}, 3
    s_lshl_b32 s{sTCH}, s{sT1}, 5
    s_add_u32 s{sTCH}, s{sTCH}, s{sNT}
    s_mul_i32 s{sTCH}, s{sTCH}, 14336
    s_add_u32 s{sTCH}, s{sTCH}, {W4:#x}""")
        H.vm(f"buffer_load_dword v{TD}, v{TA}, {WS}, s{sTCH} offen")
        H.wait_vm(r2); H.ts("h"); H.bar()
        a(hi); F(8, sPF, lds=sPL); r3 = H.lastf
        a(f"s_add_u32 s{sTCH}, s{sTCH}, 6144")
        H.vm(f"buffer_load_dword v{TD}, v{TA}, {WS}, s{sTCH} offen")
        H.wait_vm(r3); H.ts("h"); H.bar()
        H.bar()
        a(lo); F(16, sPF, lds=sPL)
        H.set_w3(3)
        a(f"s_lshl_b32 s{sT5}, s{sORD}, 5\n s_add_u32 s{sPF}, s{sPF}, s{sT5}"); a(hi)
        F(8, sPF, lds=sPL)
        arena_touch()
        code_touch()
        a("s_waitcnt vmcnt(0)")
        H.setvcc()
        H.tile_soff(sT4, H_)
        a("s_setprio 1")
        H.ts("h")
        self.sync_check()

    def fallback(self):
        C = self.C; a = C.a; t = self.cT
        S0, NEGM, KF, VF, vVA, vIDX = self.S0, self.NEGM, self.KVR, self.KVR+4, self.vVA, self.vIDX
        a.label("attn_redo")
        a(f"v_and_b32 v{vVA}, 0x3ff, v{vVA}")
        for (Q, O) in ((self.QA, self.OA), (self.QB, self.OB)):
            L1, L2 = C.lab("fb1"), C.lab("fb2")
            a(f"v_mov_b32 v{t}, 0xff800000\n s_mov_b32 s{sT2}, {KV:#x}")
            a.label(L1)
            a(f"""
    buffer_load_dwordx4 {vr(KF)}, v{vL16}, {WS}, s{sT2} offen sc1
    s_add_u32 s{sT2}, s{sT2}, 2048
    s_waitcnt vmcnt(0)
    v_mfma_f32_32x32x16_bf16 {vr(S0,16)}, {vr(KF)}, {vr(Q)}, 0""")
            for i in range(8): a(f"v_max3_f32 v{t}, v{t}, v{S0+2*i}, v{S0+2*i+1}")
            a(f"""
    s_cmp_lt_u32 s{sT2}, {KV+131072:#x}
    s_cbranch_scc1 {L1}
    v_mov_b32 v{t+1}, v{t}
    v_permlane32_swap_b32 v{t}, v{t+1}
    v_max_f32 v{t}, v{t}, v{t+1}
    v_sub_f32 v{t}, 0, v{t}""")
            for i in range(16): a(f"v_mov_b32 v{NEGM+i}, v{t}")
            for i in range(16): a(f"v_mov_b32 v{O+i}, 0")
            a(f"s_mov_b32 s{sT2}, {KV:#x}")
            a.label(L2)
            a(f"""
    buffer_load_dwordx4 {vr(KF)}, v{vL16}, {WS}, s{sT2} offen sc1
    s_mov_b64 exec, {sVM}
    buffer_load_dwordx4 {vr(VF)}, v{vVA}, {WS}, s{sT2} offen offset:1024 sc1
    buffer_load_dwordx4 {vr(VF+4)}, v{vVA}, {WS}, s{sT2} offen offset:1536 sc1
    s_mov_b64 exec, -1
    s_add_u32 s{sT2}, s{sT2}, 2048
    s_waitcnt vmcnt(0)
    v_mfma_f32_32x32x16_bf16 {vr(S0,16)}, {vr(KF)}, {vr(Q)}, {vr(NEGM,16)}""")
            for i in range(16): a(f"v_exp_f32 v{S0+i}, v{S0+i}")
            a(f"""
    v_smfmac_f32_32x32x32_bf16 {vr(O,16)}, {vr(VF)}, {vr(S0,8)}, v{vIDX}
    v_smfmac_f32_32x32x32_bf16 {vr(O,16)}, {vr(VF+4)}, {vr(S0+8,8)}, v{vIDX}
    s_nop 15
    s_cmp_lt_u32 s{sT2}, {KV+131072:#x}
    s_cbranch_scc1 {L2}""")
        a("s_nop 15\n s_branch attn_done")

    cF, cP = 120, 122
    cACC, cBP, cSTAT, cCS3, cTMP, cOUT = 16, 48, 80, 96, 104, 112
    def prod_stats(self, vals):
        H = self.H; a = H.a; t = self.hTMP; x = self.hBP
        for jt in range(4): a(f"v_pk_add_f32 {P(x+2*jt)}, {P(vals+4*jt)}, {P(vals+4*jt+2)}")
        for jt in range(4): a(f"v_pk_mul_f32 {P(x+8+2*jt)}, {P(vals+4*jt)}, {P(vals+4*jt)}")
        for jt in range(4): a(f"v_pk_fma_f32 {P(x+8+2*jt)}, {P(vals+4*jt+2)}, {P(vals+4*jt+2)}, {P(x+8+2*jt)}")
        for jt in range(8): a(f"v_add_f32 v{t+jt}, v{x+2*jt}, v{x+2*jt+1}")
        a(f"""
    s_lshl_b32 s{sT5}, s{sW}, 10
    s_add_u32 s{sT5}, s{sT5}, {XST}
    v_permlane32_swap_b32 v{t}, v{t+2}
    v_permlane32_swap_b32 v{t+1}, v{t+3}
    v_permlane32_swap_b32 v{t+4}, v{t+6}
    v_permlane32_swap_b32 v{t+5}, v{t+7}
    v_pk_add_f32 {P(t)}, {P(t)}, {P(t+2)}
    v_pk_add_f32 {P(t+4)}, {P(t+4)}, {P(t+6)}
    v_lshl_add_u32 v{x}, v{vLANE}, 3, s{sT5}
    v_permlane16_swap_b32 v{t}, v{t+1}
    v_permlane16_swap_b32 v{t+4}, v{t+5}
    v_add_f32 v{t}, v{t}, v{t+1}
    v_add_f32 v{t+1}, v{t+4}, v{t+5}
    ds_write_b64 v{x}, {P(t)}""")
    def stat_publish(self, base):
        C = self.C; a = C.a; t = self.cTMP; x = self.cT
        a(f"""
    v_lshlrev_b32 v{x}, 3, v{vLANE}
    v_add_u32 v{x}, {XST}, v{x}
    s_lshl_b32 s{sT2}, s{sMEM}, 3
    s_add_u32 s{sT2}, s{sT2}, s{sAR}
    s_add_u32 s{sT2}, s{sT2}, {base:#x}
    v_lshlrev_b32 v{x+1}, 6, v{vLANE}
    s_lshl_b32 s{sT5}, s{sW}, 4
    s_lshl_b64 s[36:37], 0xffff, s{sT5}""")
        C.bar()
        for p in range(4): a(f"ds_read_b64 {P(t+2*p)}, v{x} offset:{1024*p}")
        def fin():
            a(f"""
    s_waitcnt lgkmcnt(0)
    v_pk_add_f32 {P(t)}, {P(t)}, {P(t+2)}
    v_pk_add_f32 {P(t+4)}, {P(t+4)}, {P(t+6)}
    v_pk_add_f32 {P(t)}, {P(t)}, {P(t+4)}
    s_mov_b64 exec, s[36:37]""")
            C.cstore([f"buffer_store_dwordx2 {P(t)}, v{x+1}, {WS}, s{sT2} offen"], nt=False)
            a("s_mov_b64 exec, -1")
        self.pubfin = fin
    def cons_stats(self, gbase, scr, double):
        C = self.C; a = C.a; x = self.cT; o = self.cSTAT; S = o + 8
        st = {}
        ltxt = f"buffer_load_dwordx4 {vr(o)}, v{x+1}, {WS}, s{sT1} offen sc1"
        def load():
            a(f"""
    s_lshl_b32 s{sT1}, s{sW}, 10
    s_add_u32 s{sT1}, s{sT1}, s{sAR}
    s_add_u32 s{sT1}, s{sT1}, {gbase:#x}
    v_and_b32 v{x+3}, 0xff, v{vL16}
    v_and_b32 v{x+1}, 0x30, v{vLANE}
    v_lshl_add_u32 v{x+1}, v{x+3}, 2, v{x+1}
    s_lshl_b32 s{sT5}, s{sW}, 8
    s_add_u32 s{sT5}, s{sT5}, {scr}
    v_add_u32 v{x+2}, s{sT5}, v{x+3}""")
            st['g'] = C.vm(ltxt)
        def check():
            L0, Lr, L2 = C.lab("schk"), C.lab("sre"), C.lab("sok")
            C.wait_vm(st['g'])
            a.label(L0)
            a(f"v_max_u32 v{o+4}, v{o+1}, v{o+3}\n v_cmp_eq_u32 vcc, -1, v{o+4}\n s_cbranch_vccnz {Lr}")
            a.label(L2)
            C.ool.append((Lr, [f"s_add_u32 s{sCNT}, s{sCNT}, 1", f"s_cmp_gt_u32 s{sCNT}, {SPIN}", f"s_cbranch_scc1 {L2}",
                               ltxt, "s_waitcnt vmcnt(0)", f"s_branch {L0}"]))
            C.setvcc()
        txt = f"""
    v_add_f32 v{o}, v{o}, v{o+2}
    v_add_f32 v{o+1}, v{o+1}, v{o+3}
    v_permlane32_swap_b32 v{o}, v{o+1}
    v_add_f32 v{o}, v{o}, v{o+1}
    v_mov_b32 v{o+1}, v{o}
    v_permlane16_swap_b32 v{o}, v{o+1}
    v_add_f32 v{o}, v{o}, v{o+1}
    v_mul_f32 v{o}, 0x3b000000, v{o}
    v_mov_b32 v{o+1}, v{o}
    v_permlane32_swap_b32 v{o}, v{o+1}
    v_mov_b32 v{S}, v{o}
    v_fma_f32 v{o+1}, -v{o}, v{o}, v{o+1}
    v_max_f32 v{o+1}, 0, v{o+1}
    v_add_f32 v{o+2}, 0x3727c5ac, v{o+1}
    v_rsq_f32 v{o+3}, v{o+2}"""
        R = o+3
        if double:
            txt += f"""
    v_mul_f32 v{o+4}, v{o+3}, v{o+3}
    ds_write_b32 v{x+2}, v{o+3} offset:1024
    v_mul_f32 v{o+4}, v{o+4}, v{o+1}
    v_add_f32 v{o+4}, 0x3727c5ac, v{o+4}
    v_rsq_f32 v{o+4}, v{o+4}
    v_mul_f32 v{o+5}, v{o+3}, v{o+4}"""
            R = o+5
        txt += f"""
    v_rcp_f32 v{S+1}, v{R}
    v_mul_f32 v{S+2}, {f32(GC1)}, v{R}
    v_mul_f32 v{o+6}, v{R}, v{R}
    v_mul_f32 v{o+6}, {f32(0.044715)}, v{o+6}
    v_mul_f32 v{S+3}, v{S+2}, v{o+6}
    ds_write_b128 v{x+2}, {vr(S)}"""
        comp = [check]
        for y in txt.split("\n"):
            y = y.strip()
            if not y: continue
            if y.startswith("ds_"): comp.append(lambda y=y: setattr(C, 'wseq', C.ld(y)))
            else: comp.append(lambda y=y: a(y))
        return load, comp
    def tile_store(self, jt):
        return f"buffer_store_dwordx2 {P(self.hXT+2*jt)}, v{vD}, {WS}, s{sT4} offen offset:{256*jt}"
    def add_pack(self, jt, src):
        a = self.H.a; A_ = self.hACC
        for h in (0, 2): a(f"v_pk_add_f32 {P(A_+4*jt+h)}, {P(A_+4*jt+h)}, {P(src+h)}")
        for h in (0, 1): a(f"v_cvt_pk_bf16_f32 v{self.hXT+2*jt+h}, v{A_+4*jt+2*h}, v{A_+4*jt+2*h+1}")

    def s3(self):
        self.C.mark(); self.H.mark()
        C, H = self.C, self.H
        C.colsum(V(128), self.cCS3, self.cOUT)
        C.poll(0, self.cF, self.cP, mid=[lambda: C.colsum(V(192), self.cCS3+4, self.cOUT)]); C.ts()
        def w4ref():
            C.a(f"""
    v_lshlrev_b32 v118, 7, v{vLANE}
    s_and_b32 s{sTCH}, s{sGRP}, 3
    s_lshl_b32 s{sTCH}, s{sTCH}, 5
    s_add_u32 s{sTCH}, s{sTCH}, s{sNT}
    s_mul_i32 s{sTCH}, s{sTCH}, 14336
    s_add_u32 s{sTCH}, s{sTCH}, {W4:#x}""")
            C.vm(f"buffer_load_dword v119, v118, {WS}, s{sTCH} offen")
        def w4ref2():
            C.a(f"s_add_u32 s{sTCH}, s{sTCH}, 6144")
            C.vm(f"buffer_load_dword v119, v118, {WS}, s{sTCH} offen")
        C.load_gemm(C.act_issue(), side={3: [w4ref], 5: [w4ref2]} if self.opt.get('w4ref') else None, tag='s3')
        C.set_act(H_)
        self.stat_publish(ST1)
        H.cons_gemm(V(64), self.hACC, self.hBP, tag="s3"); H.ts()
        for i in range(8): H.unpack(self.hXT+i, self.hRES+2*i)
        for jt in range(4): self.add_pack(jt, self.hRES+4*jt)
        H.cstore([self.tile_store(jt) for jt in range(4)])
        self.prod_stats(self.hACC)
        for i in range(8): H.unpack(self.hXT+i, self.hRES+2*i)
        H.flag(1, 6); H.ts()
        H.a("s_waitcnt lgkmcnt(0)"); H.bar()
        self.sync_check()
    def s4(self):
        self.C.mark(); self.H.mark()
        C, H = self.C, self.H; a = H.a
        C.poll(1, self.cF, self.cP, mid=[self.pubfin]); C.ts()
        load, comp = self.cons_stats(ST1, ACT, True)
        C.load_gemm(C.act_issue(), side={-1: [load], 3: comp[:7], 4: comp[7:14], 5: comp[14:21], 6: comp[21:],
                                         (7, 'pre'): [lambda: C.wait_ld(C.wseq)]}, tag='s4')
        if self.opt.get('uref'):
            C.a(f"v_lshlrev_b32 v118, 7, v{vLANE}\n s_mul_i32 s{sTCH}, s{sNT}, {40*128}\n s_add_u32 s{sTCH}, s{sTCH}, s{sAR}\n s_add_u32 s{sTCH}, s{sTCH}, {U_ + 0x10000:#x}\n s_mov_b32 exec_hi, 0xff")
            C.vm(f"buffer_load_dword v119, v118, {WS}, s{sTCH} offen")
            C.a("s_mov_b64 exec, -1")
        H.colsum(V(128), self.hCS1, self.hX)
        H.tile_soff(sT4, T_)
        a(f"""
    v_lshrrev_b32 v6, 5, v{vLANE}
    v_lshlrev_b32 v6, 5, v6
    v_and_b32 v7, 0x1f, v{vD}
    v_add_u32 v{self.hX+4}, v6, v7                ; halo: (g>>1)*32 + (t&1)*16 + (g&1)*8
    s_lshl_b32 s{sT3}, s{sNT}, 6
    s_add_u32 s{sT3}, s{sT3}, s{sAR}
    v_and_b32 v7, 0xff, v{vL16}
    v_add_u32 v7, {ACT}, v7""")
        sr = H.stat_reads(self.hSTAT, 7, False, self.hR1)
        H.cons_gemm(V(128), self.hACC, self.hBP, side={6: sr[:4], 7: sr[4:]}, tag="s4"); H.ts()
        A_, XT, ST = self.hACC, self.hXT, self.hSTAT
        H.wait_ld(H.stseq)
        for x in H.gelu2((A_, self.hCS1, ST, XT), (A_+12, self.hCS1, ST+12, XT+6), self.hTMP, True): a(x)
        Lh, L1 = H.lab("nohalo"), H.lab("side1")
        a(f"""
    s_bitcmp1_b32 s{sMEM}, 1
    s_cbranch_scc1 {L1}
    s_cmp_eq_u32 s{sGRP}, 31
    s_cbranch_scc1 {Lh}
    s_add_u32 s{sT3}, s{sT3}, {HALO+GA:#x}
    s_mov_b32 exec_lo, 0xc000c000
    s_mov_b32 exec_hi, 0xc000c000
    buffer_store_dwordx2 {P(XT+6)}, v{self.hX+4}, {WS}, s{sT3} offen sc1
    s_branch {Lh}""")
        a.label(L1)
        a(f"""
    s_cmp_eq_u32 s{sGRP}, 0
    s_cbranch_scc1 {Lh}
    s_sub_u32 s{sT3}, s{sT3}, {GA-HALO:#x}
    s_mov_b32 exec_lo, 0x00030003
    s_mov_b32 exec_hi, 0x00030003
    buffer_store_dwordx2 {P(XT)}, v{self.hX+4}, {WS}, s{sT3} offen sc1""")
        a.label(Lh)
        a("s_mov_b64 exec, -1")
        H.cstore([self.tile_store(0), self.tile_store(3)])
        for x in H.gelu2((A_+4, self.hCS1, ST+4, XT+2), (A_+8, self.hCS1, ST+8, XT+4), self.hTMP, True): a(x)
        H.cstore([self.tile_store(1), self.tile_store(2)])
        H.flag(2, 6); H.ts()
        self.sync_check()
    def s5(self):
        self.C.mark(); self.H.mark()
        C, H = self.C, self.H; a = C.a; x = self.cT; T = self.cTMP
        C.set_act(T_)
        a(f"""
    s_lshl_b32 s{sT1}, s{sW}, 9
    s_add_u32 s{sT1}, s{sT1}, s{sAR}
    s_add_u32 s{sT1}, s{sT1}, {HALO:#x}
    v_and_b32 v{x+2}, 0x1ff, v{vL16}
    s_cmp_eq_u32 s{sW}, 0
    s_cselect_b32 s{sT3}, -16, 0
    s_cselect_b32 s{sT4}, 0xaaaaaaaa, -1
    s_cmp_eq_u32 s{sW}, 1
    s_cselect_b32 s{sT3}, {63*16}, s{sT3}
    s_cselect_b32 s{sT4}, 0x55555555, s{sT4}
    s_cmp_eq_u32 s{sW}, 3
    s_cselect_b32 s{sT3}, {62*16}, s{sT3}
    s_lshl_b32 s{sT2}, s{sW}, 14
    s_add_u32 s{sT3}, s{sT3}, s{sT2}
    s_add_u32 s{sT3}, s{sT3}, {ACT}
    v_lshrrev_b32 v{x+1}, 1, v{vLANE}
    v_lshlrev_b32 v{x+1}, 10, v{x+1}
    v_and_b32 v{x+3}, 1, v{vLANE}
    v_lshl_add_u32 v{x+1}, v{x+3}, 4, v{x+1}
    v_add_u32 v{x+1}, s{sT3}, v{x+1}
    s_lshl_b32 s{sPF}, s{sMEM}, 3
    s_add_u32 s{sPF}, s{sPF}, s{sW}
    s_mul_i32 s{sPF}, s{sPF}, {28*1024}
    s_add_u32 s{sPF}, s{sPF}, {W4 + 20*1024:#x}
    s_lshl_b32 s{sPL}, s{sW}, 13""")
        C.poll(2, self.cF, self.cP, mid=[]); C.ts()
        shifts = (1, -1, 2, -2)
        masks = ((0xfffffffe, 0xffffffff), (0xffffffff, 0x7fffffff), (0xfffffffc, 0xffffffff), (0xffffffff, 0x3fffffff))
        def pre(c):
            g = c >> 1
            if c & 1 == 0: a(f"s_add_i32 s{sG}, s{sG}, {-16*shifts[g] + (16*shifts[g-1] if g else 0)}")
            a(f"s_mov_b32 exec_lo, {masks[g][0]:#x}" if masks[g][0] != 0xffffffff else f"s_mov_b32 exec_hi, {masks[g][1]:#x}")
        hs = {}
        hload = f"buffer_load_dwordx4 {vr(T)}, v{x+2}, {WS}, s{sT1} offen sc1"
        stg = C.frags(8, sPF, lds=sPL) + C.E(f"s_add_u32 s{sPF}, s{sPF}, {4*28*1024 - 8192}\n s_add_u32 s{sPL}, s{sPL}, {32768 - 8192}") + C.frags(8, sPF, lds=sPL)
        C.load_gemm(C.act_issue(pre=pre, post=lambda c: a("s_mov_b64 exec, -1")),
                    side={2: [lambda: hs.__setitem__(0, C.vm(hload))], 3: stg[:2], 4: stg[2:4], 5: stg[4:6], 6: stg[6:10]}, tag='s5')
        L0, Lr, L2 = C.lab("hchk"), C.lab("hre"), C.lab("hok")
        C.wait_vm(hs[0])
        a.label(L0)
        a(f"v_max_u32 v{x}, v{T}, v{T+1}\n v_max3_u32 v{x}, v{x}, v{T+2}, v{T+3}\n v_cmp_eq_u32 vcc, -1, v{x}\n s_cbranch_vccnz {Lr}")
        a.label(L2)
        C.ool.append((Lr, [f"s_add_u32 s{sCNT}, s{sCNT}, 1", f"s_cmp_gt_u32 s{sCNT}, {SPIN}", f"s_cbranch_scc1 {L2}",
                           hload, "s_waitcnt vmcnt(0)", f"s_branch {L0}"]))
        C.setvcc()
        a(f"s_mov_b32 exec_lo, s{sT4}\n s_mov_b32 exec_hi, 0\n ds_write_b128 v{x+1}, {vr(T)}\n s_mov_b64 exec, -1\n s_waitcnt lgkmcnt(0)")
        C.bar()
        C.run(stg[10:14]); self.stg_rest = stg[14:]
        C.set_act(X1)
        self.stat_publish(ST3)
        a = H.a; ST, RES, R1 = self.hSTAT, self.hRES, self.hR1
        a(f"s_lshl_b32 s{sT1}, s{sW}, 14\n v_add_u32 v7, s{sT1}, v{vL16}")
        H.lds2reg(V(128), 16, 7)
        for jt in range(4):
            a(f"v_mul_f32 v6, v{ST+4*jt}, v{R1+jt}")
            for i in range(4): a(f"v_fma_f32 v{ST+4*jt+i}, v{RES+4*jt+i}, v{R1+jt}, -v6")
        H.tile_soff(sT4, X1)
        a("s_waitcnt lgkmcnt(0)")
        H.colsum(V(128), self.hCS3, self.hX)
        H.cons_gemm(V(192), self.hACC, self.hBP, defer=lambda ks: 3 if (ks >> 2) & 1 else 0, tag="s5"); H.ts()
        for jt in range(4): self.add_pack(jt, ST+4*jt)
        H.cstore([self.tile_store(jt) for jt in range(4)])
        self.prod_stats(self.hACC)
        for i in range(8): H.unpack(self.hXT+i, self.hACC+2*i)
        H.flag(3, 6)
        a("s_waitcnt lgkmcnt(0)"); H.bar()
        for i in range(8): a(f"v_pk_add_f32 {P(RES+2*i)}, {P(RES+2*i)}, {P(self.hACC+2*i)}")
        H.ts()
        self.sync_check()

    def capture(self, S, fn):
        keep = S.a.lines; S.a.lines = []
        fn()
        got = S.a.lines; S.a.lines = keep
        return [(lambda x=x: S.a(x)) for x in got]
    def s6(self):
        self.C.mark(); self.H.mark()
        C, H = self.C, self.H
        PK = bool(self.opt.get("s6pk"))
        for S in (C, H):
            isC = S is C; a = S.a
            vBa, vBb, vDa, vDb, vS = (124, 125, 126, 127, 14) if isC else (self.hCS1, self.hCS1+1, self.hCS1+2, self.hCS1+3, self.hR1)
            ACCS = [self.cACC + 4*i for i in range(8)] if isC else [self.hACC + 4*i for i in range(4)] + [self.hX, self.hX+4]
            BP = self.cBP if isC else self.hBP
            ST, CS, TMP, OUT = (self.cSTAT, self.cCS3, self.cTMP, self.cOUT) if isC else (self.hSTAT, self.hCS3, self.hTMP, self.hXT)
            W = (V(128), V(192))
            def setup():
                a(f"""
    v_xor_b32 v{vBa}, s{sORD}, v{vB}
    v_xor_b32 v{vBb}, 256, v{vBa}
    v_xor_b32 v{vDa}, s{sORD}, v{vD}
    v_xor_b32 v{vDb}, 256, v{vDa}
    v_and_b32 v{vS}, 0xff, v{vL16}
    v_add_u32 v{vS}, {HI}, v{vS}
    v_xor_b32 v{vS}, s{sORD}, v{vS}
    v_xor_b32 v{vS+1}, 256, v{vS}
    s_mul_i32 s{sU0}, s{sMEM}, {14*2048}
    s_add_u32 s{sU0}, s{sU0}, s{sAR}
    s_add_u32 s{sU0}, s{sU0}, {U_:#x}
    s_lshr_b32 s{sU1}, s{sW}, 1
    s_add_u32 s{sU1}, s{sU1}, 12
    s_lshl_b32 s{sU1}, s{sU1}, 11
    s_add_u32 s{sU1}, s{sU1}, s{sU0}
    s_mul_i32 s{sT3}, s{sW}, {3*2048}
    s_add_u32 s{sU0}, s{sU0}, s{sT3}
    s_lshl_b32 s{sW4}, s{sMEM}, 3
    s_add_u32 s{sW4}, s{sW4}, s{sW8}
    s_lshl_b32 s{sT3}, s{sW4}, 2
    v_mov_b32 v{vMYF}, s{sT3}
    s_mul_i32 s{sW4}, s{sW4}, {28*1024}
    s_add_u32 s{sW4}, s{sW4}, {W4:#x}
""")
                if isC: a(f"s_add_u32 s{sU1}, s{sU0}, 2048")
                else: a(f"s_add_u32 s{sU0}, s{sU0}, 4096")
            tilesA = [(j, n) for j in (0, 1) for n in ((0, 1) if isC or j == 0 else (0,))]
            tilesB = [(j, n) for j in (2, 3) for n in ((0, 1) if isC or j == 2 else (0,))]
            acc = {t: ACCS[i] for i, t in enumerate(tilesA + tilesB)}
            rs = {}
            slot = lambda s, j: BP + 16*(s & 1) + 4*j
            def rd(s, j): rs[(s, j)] = S.ld(f"ds_read_b128 {vr(slot(s, j))}, v{vBb if j & 1 else vBa} offset:{4096*s + 512*(j>>1)}")
            def mf(s, j, n): a(f"v_mfma_f32_16x16x32_bf16 {vr(acc[(j, n)])}, {W[n](s)}, {vr(slot(s, j))}, {'0' if s == 0 else vr(acc[(j, n)])}")
            wreg = lambda f: vr(128 + 4*(f >> 1) + 64*(f & 1))
            S.wreg = wreg
            w4 = S.frags(20, sW4, dst=wreg)
            stg = []
            sr = S.stat_reads(ST, vS, True)
            def ustore(j, n, r):
                return f"buffer_store_dwordx2 {P(r)}, v{vDb if j & 1 else vDa}, {WS}, s{(sU0, sU1)[n]} offen offset:{512*(j>>1)}"
            k2 = [0]
            def gel(ts_):
                o = OUT + 4*(k2[0] & 1); k2[0] += 1
                arg = [(acc[t], CS+4*t[1], ST+4*t[0], o+2*i) for i, t in enumerate(ts_)]
                z = S.gelu2(*arg, TMP, True) if len(ts_) == 2 else S.gelu(*arg[0], TMP, True)
                for y in z: a(y)
                if self.opt.get("usc1"):
                    for i, t in enumerate(ts_): S.vm(ustore(*t, o+2*i) + " sc1")
                else: S.cstore([ustore(*t, o+2*i) for i, t in enumerate(ts_)])
                return S.nvm - 1
            tiles = tilesA + tilesB
            if isC:
                S.poll(3, self.cF, self.cP, mid=[self.pubfin]); S.ts()
                load, comp = self.cons_stats(ST3, HI, False)
                issue = S.act_issue(); seqs = {}
                for c in range(3): seqs[c] = issue(c)
                load(); setup()
                S.wait_vm(seqs[0])
            else:
                a(f"s_and_b32 s{sT1}, s{sW}, 2\n s_lshl_b32 s{sT1}, s{sT1}, 13\n s_add_u32 s{sT1}, s{sT1}, {HI}\n v_add_u32 v7, s{sT1}, v{vL16}")
                S.lds2reg(V(192), 16, 7)
                setup()
                a("s_waitcnt lgkmcnt(0)")
                S.colsum(V(192), CS+4, self.hX)
                a("s_setprio 0")
            S.bar()
            for j in range(4): rd(0, j)
            BAR = {1: 1, 3: 3, 7: 7}
            nt = len(tiles)
            for s in range(16):
                items = []
                if isC:
                    if s == 0: items = [(lambda c=c: seqs.__setitem__(c, issue(c))) for c in (3, 4, 5)]
                    if s == 1: items = [(lambda c=c: seqs.__setitem__(c, issue(c))) for c in (6, 7)]
                    if s == 2: items = self.stg_rest + [lambda: seqs.__setitem__(7, S.lastf)]
                    items = items + {3: comp[:7], 4: comp[7:14], 5: comp[14:]}.get(s, [])
                if s == 8: items = items + sr
                if s == 13: items = S.E(f"s_lshl_b32 s{sT1}, s{sW8}, 13\n v_add_u32 v7, s{sT1}, v{vL16}")
                if s >= 14: items = [(lambda i=i: S.ld(f"ds_read_b128 {wreg(20+i)}, v7 offset:{1024*i}")) for i in range(4*(s-14), 4*(s-14)+4)]
                if 3 <= s < 13: items = [w4.pop(0)] + items[:len(items)//2] + [w4.pop(0)] + items[len(items)//2:]
                if s in BAR:
                    if isC:
                        S.wait_vm(seqs[BAR[s]])
                        if s == 7: S.wait_ld(S.wseq)
                    S.bar()
                for i, (j, n) in enumerate(tiles):
                    if n == 0: S.wait_ld(rs[(s, j)])
                    mf(s, j, n)
                    if n == 0 and s + 1 < 16: rd(s+1, j)
                    S.run(items[i*len(items)//nt:(i+1)*len(items)//nt])
                if s % 4 == 3: S.ts("s6")
            assert not w4
            vF8, vPp = (self.cF, self.cP) if isC else (vBa, self.hR1+2)
            S.f7 = (vF8, vPp)
            a(f"""
    s_setprio 1
    s_mul_i32 s{sB}, s{sW8}, {7*4096}
    s_add_u32 s{sB}, s{sB}, s{sAR}
    s_add_u32 s{sB}, s{sB}, {U_ - ACT:#x}
    v_and_b32 v{vF8}, 7, v{vLANE}
    v_lshlrev_b32 v{vF8}, 2, v{vF8}
    s_lshl_b32 s{sT1}, s{sW8}, 5
    v_add_u32 v{vF8}, s{sT1}, v{vF8}""")
            gel(tilesA[:2]); sa = gel(tilesA[2:])
            a("s_setprio 0")
            S.ts()
            gel(tilesB[:2])
            S.flag(4, 6, seq=sa)
            S.sb = gel(tilesB[2:])
            S.ts()
        self.sync_check()

    def s7(self):
        self.C.mark(); self.H.mark()
        C, H = self.C, self.H
        for S in (C, H):
            isC = S is C; a = S.a
            wreg = S.wreg
            vF8, vPp = S.f7
            if isC:
                vWr, vRD, vO = [8, 9, 10, 11], 12, 13
                ring = [self.cBP + 4*i for i in range(8)]
                accx = lambda p, m: self.cACC + 16*(p & 1) + 4*m
                rb = [80 + 4*k for k in range(8)]
            else:
                vWr, vRD, vO = [self.hX+4+i for i in range(4)], 7, vXO
                ring = [self.hBP + 4*i for i in range(8)]
                accx = lambda p, m: self.hACC + 4*m if p & 1 else (184, 188, 248, 252)[m]
                rb = [80, 84, 88, 92, 104, 108, 112, 116]
            NR = len(ring); x = rb[0]
            def setup():
                a(f"""
    v_and_b32 v{x}, 15, v{vLANE}
    v_lshrrev_b32 v{x+1}, 4, v{vLANE}
    v_xor_b32 v{x+2}, v{x}, v{x+1}                ; t ^ g""")
                for m in range(4):
                    a(f"""
    s_add_u32 s{sT1}, s{sW}, {m}
    s_and_b32 s{sT1}, s{sT1}, 3
    s_lshl_b32 s{sT2}, s{sT1}, 2
    v_xor_b32 v{vWr[m]}, s{sT2}, v{x+2}
    v_lshlrev_b32 v{vWr[m]}, 4, v{vWr[m]}
    v_lshl_add_u32 v{vWr[m]}, v{x+1}, 8, v{vWr[m]}
    s_lshl_b32 s{sT1}, s{sT1}, 10
    s_lshl_b32 s{sT2}, s{sW8}, 12
    s_add_u32 s{sT1}, s{sT1}, s{sT2}
    v_add_u32 v{vWr[m]}, s{sT1}, v{vWr[m]}""")
                a(f"""
    s_lshl_b32 s{sT1}, s{sW}, 2
    v_add_u32 v{x+1}, s{sT1}, v{x+1}
    v_xor_b32 v{vRD}, v{x+1}, v{x}
    v_lshlrev_b32 v{vRD}, 4, v{vRD}
    v_lshl_add_u32 v{vRD}, v{x}, 8, v{vRD}
    v_lshlrev_b32 v{vO}, 10, v{x+1}
    v_lshl_add_u32 v{vO}, v{x}, 3, v{vO}
    s_lshl_b32 s{sT4}, s{sGRP}, 16
    s_lshl_b32 s{sT1}, s{sMEM}, 7
    s_add_u32 s{sT4}, s{sT4}, s{sT1}""")
                if not isC: a(f"s_add_u32 s{sT4}, s{sT4}, 16384\n v_add_u32 v{vRD}, 32768, v{vRD}")
                a("s_waitcnt lgkmcnt(0)")
            S.poll(4, vF8, vPp, mid=[setup])
            S.flag(6, 6, seq=S.sb)
            S.ts()
            seq = {}
            def load(u):
                p, i = u // 7, u % 7
                seq[u] = S.vm(f"buffer_load_dwordx4 {vr(ring[u % NR])}, v{vB}, {WS}, s{sB} offen offset:{256*p} sc1")
                a(f"s_add_u32 s{sB}, s{sB}, 4096" if i < 6 else f"s_sub_u32 s{sB}, s{sB}, {6*4096}")
            def Wr(p):
                it = []
                for m in range(4):
                    if p == 2: it.append(lambda m=m: a(f"v_add_u32 v{vWr[m]}, 0x10000, v{vWr[m]}"))
                    it.append(lambda m=m: S.ld(f"ds_write_b128 v{vWr[m]}, {vr(accx(p, m))} offset:{32768*(p&1)}"))
                return it
            bar = [lambda: (a("s_waitcnt lgkmcnt(0)"), S.bar())]
            st = {}
            def Rd(p):
                it = [lambda: a(f"v_add_u32 v{vRD}, 0x10000, v{vRD}")] if p >= 2 else []
                return it + [(lambda k=k: st.__setitem__(p, S.ld(f"ds_read_b128 {vr(rb[k])}, v{vRD} offset:{4096*k}"))) for k in range(8)]
            def Ad(p, pk):
                r = rb
                pairs = [(r[0], r[1]), (r[2], r[3]), (r[4], r[5]), (r[6], r[7]), (r[0], r[2]), (r[4], r[6]), (r[0], r[4])]
                ins = []
                for y, z in pairs:
                    if pk: ins += [f"v_pk_add_f32 {P(y+h)}, {P(y+h)}, {P(z+h)}" for h in (0, 2)]
                    else: ins += [f"v_add_f32 v{y+h}, v{y+h}, v{z+h}" for h in range(4)]
                ins += [f"v_cvt_pk_bf16_f32 v{r[1]+h}, v{r[0]+2*h}, v{r[0]+2*h+1}" for h in (0, 1)]
                return [lambda: S.wait_ld(st[p])] + [(lambda z=z: a(z)) for z in ins] + \
                       [lambda: S.vm(f"buffer_store_dwordx2 {P(r[1])}, v{vO}, {OS}, s{sT4} offen {self.opt.get('osc', 'nt')}"), lambda: a(f"s_add_u32 s{sT4}, s{sT4}, 32768")]
            la = int(self.opt.get('la7', 4))
            pb = {}
            ltxt = f"buffer_load_dword v{vPp}, v{vF8}, {WS}, s{sT0} offen sc1"
            def chkB():
                L0, Lr = S.lab("bchk"), S.lab("bre")
                S.wait_vm(pb[0])
                a.label(L0)
                a(f"v_cmp_ne_u32 vcc, 1, v{vPp}\n s_cbranch_vccnz {Lr}")
                S.ool.append((Lr, [f"s_add_u32 s{sCNT}, s{sCNT}, 1", f"s_cmp_gt_u32 s{sCNT}, {SPIN}", "s_cbranch_scc1 main_exit",
                                   ltxt, "s_waitcnt vmcnt(0)", f"s_branch {L0}"]))
            side = {6: bar, 8: Wr(0), 15: Wr(1), 16: bar, 22: Wr(2)}
            side[13 - 2*la] = side.get(13 - 2*la, []) + [lambda: pb.__setitem__(0, S.vm(ltxt))]
            side[13 - la] = side.get(13 - la, []) + [chkB]
            p0 = 0 if isC else 1
            ad = Ad(p0, False)
            side[17] = Rd(p0); side[18] = ad[:11]; side[19] = ad[11:22]; side[20] = ad[22:]
            for u in range(la): load(u)
            for u in range(28):
                p, i = u // 7, u % 7
                S.wait_vm(seq[u])
                items = list(side.get(u, []))
                per = -(-len(items) // 3)
                for m in range(4):
                    c0 = vr(self.hRES+4*p) if (m == 0 and not isC) else '0'
                    if not (self.opt.get('x7b') and m): a(f"v_mfma_f32_16x16x32_bf16 {vr(accx(p, m))}, {wreg(4*i+m)}, {vr(ring[u % NR])}, {c0 if i == 0 else vr(accx(p, m))}")
                    if m == 0:
                        if u + la < 28: load(u + la)
                    else:
                        for _ in range(per):
                            if items: items.pop(0)()
                if u % 7 == 6: S.ts("s7")
            S.run(Wr(3) + bar)
            S.ts()
            S.run(Rd(p0+2) + Ad(p0+2, True))
            S.ts("s7")
        self.sync_check()

    def dump_ts(self, S):
        a = S.a
        a("s_waitcnt vmcnt(0)")
        S.ts()
        a(f"""
    s_waitcnt lgkmcnt(0)
    s_lshl_b32 s{sT0}, s2, 3
    s_add_u32 s{sT0}, s{sT0}, s{sW8}
    s_lshl_b32 s{sT0}, s{sT0}, 7
    s_add_u32 s{sT0}, s{sT0}, {DBG:#x}
    v_mov_b32 v7, 0
    s_mov_b64 exec, 1""")
        assert S.nts <= 28
        for i in range(S.nts):
            a(f"v_mov_b32 v6, s{tsreg(i)}\n buffer_store_dword v6, v7, {WS}, s{sT0} offen offset:{4*i}")
        a(f"v_mov_b32 v6, s{sSLOW}\n buffer_store_dword v6, v7, {WS}, s{sT0} offen offset:124")
        a(f"v_mov_b32 v6, s{sXCC}\n buffer_store_dword v6, v7, {WS}, s{sT0} offen offset:120")

    def gen(self):
        C, H = self.C, self.H
        self.prologue(); self.qstage(); self.attention()
        for name in ("s3", "s4", "s5", "s6", "s7"): getattr(self, name)()
        for S in (C, H):
            S.a.label(f"M_{S.name}_{S.nmark}")
            if self.dbg: self.dump_ts(S)
            if S is C: S.a.label("main_exit")
            S.a("s_endpgm")
        tail = Asm()
        self.fallback()
        for S in (C, H):
            for L, body in S.ool:
                S.a.label(L)
                for x in body: S.a(x)
        C.a.label("main_end")
        H.a.lines = self.head + H.a.lines
        txt = H.a.finish() + C.a.finish()
        txt += """
.section .rodata,"a"
.p2align 6
.amdhsa_kernel """ + NAME + """_kernel
  .amdhsa_next_free_vgpr 256
  .amdhsa_next_free_sgpr 102
  .amdhsa_accum_offset 256
  .amdhsa_group_segment_fixed_size 0
  .amdhsa_kernarg_size 104
  .amdhsa_user_sgpr_count 2
  .amdhsa_user_sgpr_kernarg_segment_ptr 1
  .amdhsa_system_sgpr_workgroup_id_x 1
.end_amdhsa_kernel
"""
        return txt
```

```python
from asmlib import Asm
from layout import *
import struct, os

def f32(x):
    return "0x%08x" % struct.unpack('<I', struct.pack('<f', x))[0]

K2_LDS = 163840
LOG2E = 1.4426950408889634
QSCALE = 0.25 * LOG2E
GC1 = -2.0 * 0.7978845608028654 * LOG2E
SPIN = 0x40000
ACT = 65536
XST = ACT + 5*8192 + 256
HI = 131072
LA = 5

sW, sGRP, sMEM, sSLOW, sXCC, sW8 = 3, 16, 17, 18, 45, 44
WS, XS, OS = "s[4:7]", "s[8:11]", "s[12:15]"
sT0, sT1, sT2, sT3, sT4, sT5 = 20, 21, 22, 23, 24, 25
sG, sL, sPF, sCNT, sFLG, sAR = 26, 27, 28, 29, 30, 31
sU0, sU1 = 32, 33
sB = 34
sKVW, sTAG, sRND = 40, 41, 33
sTCH = 35
sNT, sORD = 38, 39
sVM = "s[40:41]"
sPL, sW4 = 42, 43
sPP, sPR, sPS, sPD = 46, 56, 60, 65
def tsreg(i): return 70 + 2*i if i < 16 else 46 + 2*(i-16)
vLANE, vL16, vB, vD, vMYF, vXO = 0, 1, 2, 3, 4, 5

def vr(b, n=4): return f"v[{b}:{b+n-1}]"
def V(b): return lambda ks: vr(b+4*ks)
def P(r): return f"v[{r}:{r+1}]"

class Stream:
    uid = 0
    def __init__(self, name, dbg, tags):
        self.name, self.dbg, self.tags = name, dbg, tags
        self.a = Asm(); self.nvm = self.nld = self.nts = self.nbar = 0
        self.ool = []; self.nmark = 0; self.seclen = {}
    def vm(self, text):
        self.a(text); self.nvm += 1; return self.nvm - 1
    def wait_vm(self, seq): self.a(f"s_waitcnt vmcnt({min(self.nvm - 1 - seq, 63)})")
    def ld(self, text):
        self.a(text); self.nld += 1; return self.nld - 1
    def wait_ld(self, seq): self.a(f"s_waitcnt lgkmcnt({min(self.nld - 1 - seq, 15)})")
    def bar(self): self.a("s_barrier"); self.nbar += 1
    def ts(self, tag="main"):
        if self.dbg and tag in self.tags:
            self.a(f"{'s_memtime' if self.dbg == 'cyc' else 's_memrealtime'} s[{tsreg(self.nts)}:{tsreg(self.nts)+1}]")
            self.nts += 1
    def lab(self, p):
        Stream.uid += 1; return f"L_{p}_{Stream.uid}"
    def mark(self):
        i = self.nmark; self.nmark += 1
        L = f"M_{self.name}_{i}"
        n = self.seclen.get(L)
        if n is not None and n < 4000:
            self.a(f"s_branch {L}"); self.a(f".p2align 12,,{n + 64}")
        self.a.label(L)
    def E(self, text): return [(lambda x=x: self.a(x)) for x in text.split("\n") if x.strip()]
    def set_wbase(self, base, ks, dst=sPF):
        self.a(f"s_mul_i32 s{dst}, s{sNT}, {ks*1024}\n s_add_u32 s{dst}, s{dst}, {base:#x}")
    def set_w3(self, slot):
        if slot < 3: self.a(f"s_mul_i32 s{sPF}, s{sW}, 3\n s_add_u32 s{sPF}, s{sPF}, {slot}")
        else: self.a(f"s_lshr_b32 s{sPF}, s{sW}, 1\n s_add_u32 s{sPF}, s{sPF}, 12")
        self.a(f"s_mul_i32 s{sT5}, s{sMEM}, 14\n s_add_u32 s{sPF}, s{sPF}, s{sT5}\n s_lshl_b32 s{sPF}, s{sPF}, 14\n s_add_u32 s{sPF}, s{sPF}, {W3:#x}")
    def set_act(self, base):
        self.a(f"s_lshl_b32 s{sL}, s{sW}, 11\n s_add_u32 s{sG}, s{sAR}, s{sL}\n s_add_u32 s{sG}, s{sG}, {base:#x}\n s_add_u32 s{sL}, s{sL}, {ACT}")
    def tile_soff(self, s, base):
        self.a(f"s_lshl_b32 s{s}, s{sNT}, 11\n s_add_u32 s{s}, s{s}, s{sAR}\n s_add_u32 s{s}, s{s}, {base:#x}")
    def xo_soff(self, s):
        self.a(f"s_lshl_b32 s{s}, s{sNT}, 5\n s_lshl_b32 s{sT5}, s{sGRP}, 16\n s_add_u32 s{s}, s{s}, s{sT5}")
    def act_issue(self, sc="sc1", pre=None, post=None):
        def issue(c):
            self.a(f"s_mov_b32 m0, s{sL}")
            if pre: pre(c)
            self.vm(f"buffer_load_dwordx4 v{vL16}, {WS}, s{sG} offen {sc} lds")
            last = self.vm(f"buffer_load_dwordx4 v{vL16}, {WS}, s{sG} offen offset:1024 {sc} lds")
            if post: post(c)
            self.a(f"s_add_u32 s{sG}, s{sG}, 8192\n s_add_u32 s{sL}, s{sL}, 8192")
            return last
        return issue
    def frags(self, n, sreg, dst=None, lds=None, sc="sc1"):
        def mk(i):
            def f():
                if dst is not None:
                    r = self.vm(f"buffer_load_dwordx4 {dst(i)}, v{vL16}, {WS}, s{sreg} offen offset:{1024*(i&3)} {sc}")
                else:
                    self.a(f"s_mov_b32 m0, s{lds}")
                    r = self.vm(f"buffer_load_dwordx4 v{vL16}, {WS}, s{sreg} offen offset:{1024*(i&3)} {sc} lds")
                if i & 3 == 3:
                    self.a(f"s_add_u32 s{sreg}, s{sreg}, 4096")
                    if lds is not None: self.a(f"s_add_u32 s{lds}, s{lds}, 4096")
                self.lastf = r
                return r
            return f
        return [mk(i) for i in range(n)]
    def run(self, items):
        for f in items: f()
    def setvcc(self): self.a(f"s_mov_b64 vcc, s[{sSLOW}:{sSLOW+1}]")
    NT = True
    def cstore(self, st, nt=True):
        Ls, Le = self.lab("cs"), self.lab("ce")
        self.a(f"s_cbranch_vccnz {Ls}")
        for x in st: self.vm(x + (" nt" if nt and self.NT else ""))
        self.a.label(Le)
        self.ool.append((Ls, [x + " sc1" for x in st] + [f"s_branch {Le}"]))
    def flag(self, stage, t, vf=vMYF, seq=None):
        self.a(f"s_add_u32 s{sT0}, s{sFLG}, {stage*8192}\n v_mov_b32 v{t}, 1")
        if seq is None: self.a("s_waitcnt vmcnt(0)")
        else: self.wait_vm(seq)
        self.a("s_mov_b64 exec, 1")
        self.cstore([f"buffer_store_dword v{t}, v{vf}, {WS}, s{sT0} offen"], nt=False)
        self.a("s_mov_b64 exec, -1")
    def poll(self, stage, vf, p0, mid=()):
        a = self.a; L, Ld = self.lab("poll"), self.lab("pdone"); p1 = p0 + 1
        a(f"s_add_u32 s{sT0}, s{sFLG}, {stage*8192}\n s_mov_b32 s{sCNT}, 0")
        q = self.vm(f"buffer_load_dword v{p0}, v{vf}, {WS}, s{sT0} offen sc1")
        self.run(mid)
        self.vm(f"buffer_load_dword v{p1}, v{vf}, {WS}, s{sT0} offen sc1")
        self.wait_vm(q)
        a(f"v_cmp_ne_u32 vcc, 1, v{p0}\n s_cbranch_vccz {Ld}")
        a.label(L)
        a(f"""
    buffer_load_dword v{p0}, v{vf}, {WS}, s{sT0} offen sc1
    s_waitcnt vmcnt(1)
    v_cmp_ne_u32 vcc, 1, v{p1}
    s_add_u32 s{sCNT}, s{sCNT}, 1
    s_cbranch_vccz {Ld}
    buffer_load_dword v{p1}, v{vf}, {WS}, s{sT0} offen sc1
    s_cmp_gt_u32 s{sCNT}, {SPIN}
    s_cbranch_scc1 main_exit
    s_waitcnt vmcnt(1)
    v_cmp_ne_u32 vcc, 1, v{p0}
    s_cbranch_vccnz {L}""")
        a.label(Ld)
        self.setvcc()
    def regcheck(self, r, z):
        a = self.a; L, L0 = self.lab("reg"), self.lab("reg0")
        a(f"s_mov_b32 s{sCNT}, 0")
        a.label(L0)
        a(f"""
    v_readfirstlane_b32 s{sT1}, v{r}
    s_and_b32 s{sT2}, s{sT1}, 0x0f0f0f0f
    s_lshr_b32 s{sT3}, s{sT1}, 4
    s_and_b32 s{sT3}, s{sT3}, 0x0f0f0f0f
    s_add_u32 s{sT2}, s{sT2}, s{sT3}
    s_mul_i32 s{sT2}, s{sT2}, 0x01010101
    s_lshr_b32 s{sT2}, s{sT2}, 24
    s_cmp_lg_u32 s{sT2}, 8
    s_cbranch_scc1 {L}
    s_lshl_b32 s{sT2}, s{sXCC}, 2
    s_lshl_b32 s{sT2}, 8, s{sT2}
    s_cmp_lg_u32 s{sT1}, s{sT2}
    s_cselect_b64 s[{sSLOW}:{sSLOW+1}], -1, 0""")
        self.ool.append((L, [f"s_add_u32 s{sT0}, s{sFLG}, {5*8192}", f"buffer_load_dword v{r}, v{z}, {WS}, s{sT0} offen sc1",
                             f"s_add_u32 s{sCNT}, s{sCNT}, 1", f"s_cmp_gt_u32 s{sCNT}, {SPIN}", "s_cbranch_scc1 main_exit",
                             "s_waitcnt vmcnt(0)", f"s_branch {L0}"]))
    def regload(self, r, z):
        self.a(f"s_add_u32 s{sT0}, s{sFLG}, {5*8192}\n v_mov_b32 v{z}, 0")
        return self.vm(f"buffer_load_dword v{r}, v{z}, {WS}, s{sT0} offen sc1")
    def load_gemm(self, issue, la=LA, side=None, tag=None, ramp=True):
        side = side or {}
        seqs = {}
        if tag: self.ts(tag)
        ni = 3
        for c in range(ni): seqs[c] = issue(c)
        self.run(side.get(-1, []))
        if tag: self.ts(tag)
        for c in range(8):
            self.wait_vm(seqs[c])
            self.run(side.get((c, 'pre'), []))
            if tag: self.ts(tag)
            self.bar()
            for _ in range(2 if (c < 2 and ramp) else 1):
                if ni < 8: seqs[ni] = issue(ni); ni += 1
            self.run(side.get(c, []))
    def cons_gemm(self, areg, ACC, BP, side=None, prewait=None, defer=None, tag=None, baddr=None, prebar=None, postbar=None, onebar=False):
        a = self.a
        side = {k: list(v) for k, v in (side or {}).items()}
        work = [[(2*c+s, jt) for s in range(2) for jt in range(4) if not (defer and defer(2*c+s) == jt)] for c in range(8)]
        if defer: work += [[(ks, defer(ks)) for ks in range(8)], [(ks, defer(ks)) for ks in range(8, 16)]]
        nch = len(work); rs = {}; started = set()
        def read(c, i):
            ks, jt = work[c][i]
            r, off = baddr(ks, jt) if baddr else (vB, 4096*ks + 256*jt)
            rs[(c, i)] = self.ld(f"ds_read_b128 {vr(BP+4*i)}, v{r} offset:{off}")
        if tag: self.ts(tag)
        if prebar: prebar(0)
        self.bar()
        if postbar: postbar(0)
        for i in range(len(work[0])): read(0, i)
        if tag: self.ts(tag)
        for c in range(nch):
            nxt = c + 1 < nch
            if c + 1 < 8 and prebar: prebar(c+1)
            if (c + 1 < 8 or (c + 1 == 8 and defer)) and not onebar: self.bar()
            if c + 1 < 8 and postbar: postbar(c+1)
            if prewait: prewait(c)
            items = side.pop(c, [])
            n = len(work[c]); nn = len(work[c+1]) if nxt else 0
            per = -(-len(items) // n)
            for i in range(n, nn): read(c+1, i)
            for i in range(n):
                ks, jt = work[c][i]
                if i % 2 == 0: self.wait_ld(rs[(c, min(i+1, n-1))])
                cc = vr(ACC+4*jt) if jt in started else "0"
                started.add(jt)
                a(f"v_mfma_f32_16x16x32_bf16 {vr(ACC+4*jt)}, {areg(ks)}, {vr(BP+4*i)}, {cc}")
                if i < nn: read(c+1, i)
                for _ in range(per):
                    if items: items.pop(0)()
            if tag: self.ts(tag)
        assert not side
    def gelu(self, acc, cs, S, out, t, pk):
        I = []
        if pk:
            for i in (0, 2): I.append(f"v_pk_fma_f32 {P(acc+i)}, {P(S)}, {P(cs+i)}, {P(acc+i)} op_sel_hi:[0,1,1] neg_lo:[1,0,0] neg_hi:[1,0,0]")
            for i in (0, 2): I.append(f"v_pk_mul_f32 {P(t+i)}, {P(acc+i)}, {P(acc+i)}")
            for i in (0, 2): I.append(f"v_pk_fma_f32 {P(t+i)}, {P(S+2)}, {P(t+i)}, {P(S+2)} op_sel:[1,0,0] op_sel_hi:[1,1,0]")
            for i in (0, 2): I.append(f"v_pk_mul_f32 {P(t+i)}, {P(t+i)}, {P(acc+i)}")
            for i in range(4): I.append(f"v_exp_f32 v{t+i}, v{t+i}")
            for i in (0, 2): I.append(f"v_pk_fma_f32 {P(t+i)}, {P(S)}, {P(t+i)}, {P(S)} op_sel:[1,0,1] op_sel_hi:[1,1,1]")
            for i in range(4): I.append(f"v_rcp_f32 v{t+i}, v{t+i}")
            for i in (0, 2): I.append(f"v_pk_mul_f32 {P(acc+i)}, {P(acc+i)}, {P(t+i)}")
        else:
            for i in range(4): I.append(f"v_fma_f32 v{acc+i}, -v{S}, v{cs+i}, v{acc+i}")
            for i in range(4): I.append(f"v_mul_f32 v{t+i}, v{acc+i}, v{acc+i}")
            for i in range(4): I.append(f"v_fma_f32 v{t+i}, v{t+i}, v{S+3}, v{S+2}")
            for i in range(4): I.append(f"v_mul_f32 v{t+i}, v{t+i}, v{acc+i}")
            for i in range(4): I.append(f"v_exp_f32 v{t+i}, v{t+i}")
            for i in range(4): I.append(f"v_fma_f32 v{t+i}, v{t+i}, v{S+1}, v{S+1}")
            for i in range(4): I.append(f"v_rcp_f32 v{t+i}, v{t+i}")
            for i in range(4): I.append(f"v_mul_f32 v{acc+i}, v{acc+i}, v{t+i}")
        return I + [f"v_cvt_pk_bf16_f32 v{out}, v{acc}, v{acc+1}", f"v_cvt_pk_bf16_f32 v{out+1}, v{acc+2}, v{acc+3}"]
    def gelu2(self, x, y, t, pk):
        p, q = self.gelu(*x, t, pk), self.gelu(*y, t+4, pk)
        return [z for pair in zip(p, q) for z in pair]
    def colsum(self, areg, dst, ones):
        for i in range(4): self.a(f"v_mov_b32 v{ones+i}, 0x3f803f80")
        for ks in range(16):
            self.a(f"v_mfma_f32_16x16x32_bf16 {vr(dst)}, {areg(ks)}, {vr(ones)}, {'0' if ks == 0 else vr(dst)}")
    def unpack(self, src, dst): self.a(f"v_lshlrev_b32 v{dst}, 16, v{src}\n v_and_b32 v{dst+1}, 0xffff0000, v{src}")
    def lds2reg(self, dst, n, va):
        for i in range(n): self.ld(f"ds_read_b128 {dst(i)}, v{va} offset:{1024*i}")
    def stat_reads(self, STAT, va, order, R1=None):
        it = []
        for jt in range(4):
            if order: x = f"ds_read_b128 {vr(STAT+4*jt)}, v{va+(jt&1)} offset:{512*(jt>>1)}"
            else: x = f"ds_read_b128 {vr(STAT+4*jt)}, v{va} offset:{256*jt}"
            it.append(lambda x=x: setattr(self, 'stseq', self.ld(x)))
        if R1 is not None:
            for jt in range(4):
                it.append(lambda jt=jt: setattr(self, 'stseq', self.ld(f"ds_read_b32 v{R1+jt}, v{va} offset:{1024 + 256*jt}")))
        return it

class Main:
    def __init__(self, dbg=False, tags=('main',), opt=None, seclen=None):
        self.dbg = dbg; self.opt = opt or {}
        Stream.uid = 0; Stream.NT = not self.opt.get('nont')
        self.C = Stream('C', dbg, tags); self.H = Stream('H', dbg, tags)
        self.C.seclen = self.H.seclen = seclen or {}
    def sync_check(self): assert self.C.nbar == self.H.nbar, (self.C.nbar, self.H.nbar)

    def prologue(self):
        C, H = self.C, self.H; a = C.a
        a(f".text\n.globl {NAME}_kernel\n.p2align 12\n.type {NAME}_kernel,@function")
        a.label(f"{NAME}_kernel")
        a.label("main_kernel")
        a(f"""
    s_cmp_ge_u32 s2, 256
    s_cbranch_scc1 main_exit
    s_load_dwordx2 s[4:5], s[0:1], 96
    s_load_dwordx2 s[8:9], s[0:1], 0
    s_load_dwordx2 s[12:13], s[0:1], 80
    s_load_dwordx2 s[{sPR}:{sPR+1}], s[0:1], 8
    s_load_dwordx4 s[32:35], s[0:1], 16
    s_load_dwordx2 s[{sPP}:{sPP+1}], s[0:1], 32
    s_load_dwordx8 s[{sPP+2}:{sPP+9}], s[0:1], 48""")
        if self.dbg:
            a(f"{'s_memtime' if self.dbg == 'cyc' else 's_memrealtime'} s[70:71]"); C.nts = H.nts = 1
        a(f"""
    v_lshrrev_b32 v1, 6, v0
    v_and_b32 v{vLANE}, 63, v0
    v_readfirstlane_b32 s{sW8}, v1
    s_and_b32 s{sT0}, s2, 7
    s_lshr_b32 s{sT1}, s2, 3
    s_lshl_b32 s{sGRP}, s{sT0}, 2
    s_lshr_b32 s{sT2}, s{sT1}, 3
    s_add_u32 s{sGRP}, s{sGRP}, s{sT2}
    s_and_b32 s{sMEM}, s{sT1}, 7
    s_and_b32 s{sW}, s{sW8}, 3
    s_mul_i32 s{sAR}, s{sGRP}, {GA:#x}
    s_lshl_b32 s{sNT}, s{sMEM}, 2
    s_add_u32 s{sNT}, s{sNT}, s{sW}
    v_lshlrev_b32 v{vL16}, 4, v{vLANE}
    s_getpc_b64 s[42:43]""")
        a.label("L_pc0")
        a(f"""
    s_sub_u32 s42, s42, L_pc0-main_kernel
    s_subb_u32 s43, s43, 0
    s_lshl_b32 s{sT1}, s{sT1}, 3
    s_add_u32 s{sT1}, s{sT1}, s{sW8}
    s_lshl_b32 s{sT1}, s{sT1}, 8
    v_and_b32 v9, 1, v{vLANE}
    v_lshlrev_b32 v9, 7, v9
    v_add_u32 v9, s{sT1}, v9
    v_min_u32 v9, main_end-main_kernel-4, v9
    global_load_dword v255, v9, s[42:43]
    s_mov_b32 s6, {WS_USED:#x}
    s_mov_b32 s7, 0x20000
    v_lshrrev_b32 v8, 3, v{vLANE}
    s_mov_b32 s10, {2048*1024:#x}
    s_mov_b32 s11, 0x20000
    s_mov_b32 s{sPR+3}, 0x20000
    s_cmp_lt_u32 s{sW8}, 4
    s_cbranch_scc1 C_entry""")
        self.head = a.lines; a.lines = []
        a(".p2align 8"); a.label("C_entry")
    def setup_common(self, S, t):
        S.a(f"""
    s_mov_b32 s14, {2048*1024:#x}
    s_mov_b32 s15, 0x20000
    s_getreg_b32 s{sXCC}, hwreg(HW_REG_XCC_ID, 0, 3)
    v_and_b32 v{t}, 15, v{vLANE}                  ; t
    v_lshrrev_b32 v{t+1}, 4, v{vLANE}             ; g
    v_lshlrev_b32 v{vB}, 10, v{t+1}
    v_lshl_add_u32 v{vB}, v{t}, 4, v{vB}
    v_add_u32 v{vB}, {ACT}, v{vB}                 ; ACT + g*1024 + t*16
    v_lshrrev_b32 v{vD}, 1, v{t+1}
    v_lshlrev_b32 v{vD}, 10, v{vD}
    v_lshl_add_u32 v{vD}, v{t}, 4, v{vD}
    v_and_b32 v{t+2}, 1, v{t+1}
    v_lshl_add_u32 v{vD}, v{t+2}, 3, v{vD}        ; (g>>1)*1024 + t*16 + (g&1)*8
    s_lshl_b32 s{sT0}, s{sNT}, 2
    v_mov_b32 v{vMYF}, s{sT0}
    s_lshl_b32 s{sFLG}, s{sGRP}, 8
    s_add_u32 s{sFLG}, s{sFLG}, {FLAGS:#x}
    v_lshlrev_b32 v{t+2}, 10, v{t}
    v_lshl_add_u32 v{vXO}, v{t+1}, 3, v{t+2}      ; t*1024 + g*8
    s_and_b32 s{sORD}, s{sW}, 1
    s_lshl_b32 s{sORD}, s{sORD}, 8""")

    cT = 6
    S0, S1, NEGM, OA, OB, QA, QB, vIDX, vKA, vVA, vREG = 24, 40, 56, 72, 88, 16, 20, 13, 14, 15, 11
    KVR = 104
    NB = 1
    SCR = 16384
    def x_addr(self, S, dst, t, x):
        S.a(f"""
    v_lshrrev_b32 v{x}, 4, v{vLANE}
    v_and_b32 v{x+1}, 7, v{vLANE}
    v_xor_b32 v{x+1}, v{x+1}, v{x}
    v_lshlrev_b32 v{x+1}, 4, v{x+1}
    v_lshl_add_u32 v{dst}, v{t}, 7, v{x+1}
    v_add_u32 v{dst}, 32768, v{dst}""")
    def qstage(self):
        C, H = self.C, self.H; a = C.a; t = self.cT
        WQR, QACC, QBP = 192, 24, 40
        XB, WB = 32768, 98304
        QS = 144
        a(f"""
    v_bfe_u32 v9, v{vLANE}, 4, 1
    s_and_b32 s{sT0}, s{sW}, 1
    s_lshl_b32 s{sT0}, s{sT0}, 1
    v_or_b32 v9, s{sT0}, v9
    v_bfe_u32 v10, v{vLANE}, 1, 2
    v_xor_b32 v9, v9, v10
    v_lshlrev_b32 v9, 5, v9
    v_and_b32 v10, 1, v{vLANE}
    v_lshl_add_u32 v9, v10, 4, v9
    v_lshl_add_u32 v134, v8, 10, v9
    s_mov_b32 s{sPR+2}, 0x80000""")
        if not self.opt.get('hprep'): self.prep_setup(C, 152)
        self.setup_common(C, t)
        a(f"""
    s_mov_b32 s40, 0xffff
    s_mov_b32 s41, 0xffff
    v_mov_b32 v{self.vIDX}, 0xdddddddd
    v_mov_b32 v{self.vKA}, v{vL16}
    v_lshrrev_b32 v{t+1}, 5, v{vLANE}
    v_lshlrev_b32 v{t+1}, 8, v{t+1}
    v_lshl_add_u32 v{self.vVA}, v{t}, 4, v{t+1}   ; hA*256 + d*16""")
        for i in range(32): a(f"v_mov_b32 v{self.OA+i}, 0")
        a(f"v_and_b32 v{t+1}, 31, v{vLANE}\n v_cmp_eq_u32 vcc, 16, v{t+1}\n v_mov_b32 v{t+1}, 0x3f803f80")
        for b in range(2):
            for i in range(8): a(f"v_cndmask_b32 v{self.KVR+12*b+4+i}, 0, v{t+1}, vcc")
        a(f"""
    s_waitcnt lgkmcnt(0)
    s_and_b32 s5, s5, 0xffff
    s_and_b32 s13, s13, 0xffff
    s_and_b32 s{sPR+1}, s{sPR+1}, 0xffff
    s_lshl_b32 s{sG}, s{sW}, 13
    s_lshl_b32 s{sT0}, s{sMEM}, 7
    s_add_u32 s{sG}, s{sG}, s{sT0}
    s_lshl_b32 s{sL}, s{sW}, 10""")
        for i in range(16):
            a(f"s_add_u32 m0, s{sL}, {WB + 4096*i}")
            C.vm(f"buffer_load_dwordx4 v134, s[{sPR}:{sPR+3}], s{sG} offen lds")
            if i < 15: a(f"s_add_u32 s{sG}, s{sG}, 32768")
        wqseq = C.nvm - 1
        if not self.opt.get('hprep'): self.prep_load(C, 152, 164)
        self.x_addr(C, 130, t, t+1)
        a(f"""
    v_xor_b32 v131, 64, v130
    v_bfe_u32 v{t+2}, v{vLANE}, 2, 2
    v_lshl_add_u32 v132, v{t+1}, 3, v{t+2}
    v_lshlrev_b32 v132, 7, v132
    v_and_b32 v{t+1}, 1, v{t+1}
    v_lshrrev_b32 v{t+2}, 1, v{t+2}
    v_lshl_add_u32 v{t+1}, v{t+1}, 1, v{t+2}
    v_xor_b32 v{t+1}, s{sW}, v{t+1}
    v_lshl_add_u32 v132, v{t+1}, 5, v132
    v_and_b32 v{t+2}, 3, v{vLANE}
    v_lshl_add_u32 v132, v{t+2}, 3, v132
    v_add_u32 v132, {WB}, v132
    v_lshlrev_b32 v133, 3, v{t}""")
        ONE, CSQ = 136, 140
        for i in range(4): a(f"v_mov_b32 v{ONE+i}, 0x3f803f80")
        PW = self.opt.get("pw", "after")
        if PW == "before":
            a("s_waitcnt vmcnt(0)"); self.prep_finish(C, 152, 164)
        else: C.wait_vm(wqseq)
        def postbar(c):
            for ks in (2*c, 2*c+1):
                C.ld(f"ds_read_b64_tr_b16 {P(WQR+4*ks)}, v132 offset:{4096*ks}")
                C.ld(f"ds_read_b64_tr_b16 {P(WQR+4*ks+2)}, v132 offset:{4096*ks+512}")
        side = {c: [(lambda ks=ks: a(f"v_mfma_f32_16x16x32_bf16 {vr(CSQ)}, {vr(WQR+4*ks)}, {vr(ONE)}, {'0' if ks == 0 else vr(CSQ)}")) for ks in (2*c, 2*c+1)] for c in range(8)}
        side[5] += [(lambda jt=jt: C.ld(f"ds_read_b64 {P(QS+2*jt)}, v133 offset:{self.SCR + 128*jt}")) for jt in range(4)]
        C.cons_gemm(V(WQR), QACC, QBP, side=side, baddr=lambda ks, jt: (130 + (ks & 1), 8192*(ks >> 1) + 2048*jt),
                    postbar=postbar, tag="q", onebar=True)
        C.ts()
        QA, QB = self.QA, self.QB
        for jt in range(4): a(f"v_mul_f32 v{QS+2*jt+1}, {f32(QSCALE)}, v{QS+2*jt+1}")
        for jt in range(4):
            for h in (0, 2): a(f"v_pk_fma_f32 {P(QACC+4*jt+h)}, {P(QS+2*jt)}, {P(CSQ+h)}, {P(QACC+4*jt+h)} op_sel_hi:[0,1,1] neg_lo:[1,0,0] neg_hi:[1,0,0]")
        for jt in range(4):
            for h in (0, 2): a(f"v_pk_mul_f32 {P(QACC+4*jt+h)}, {P(QS+2*jt)}, {P(QACC+4*jt+h)} op_sel:[1,0] op_sel_hi:[1,1]")
        for jt in range(4):
            a(f"v_cvt_pk_bf16_f32 v{QA+2*jt}, v{QACC+4*jt}, v{QACC+4*jt+1}")
            a(f"v_cvt_pk_bf16_f32 v{QA+2*jt+1}, v{QACC+4*jt+2}, v{QACC+4*jt+3}")
        a(f"v_mov_b32 v{t}, 0\n v_mov_b32 v{t+1}, 0")
        for q in (QA, QB): a(f"v_permlane16_swap_b32 v{q}, v{q+2}\n v_permlane16_swap_b32 v{q+1}, v{q+3}")
        for i in range(4): a(f"v_dot2_f32_bf16 v{t}, v{QA+i}, v{QA+i}, v{t}\n v_dot2_f32_bf16 v{t+1}, v{QB+i}, v{QB+i}, v{t+1}")
        a(f"""
    v_permlane32_swap_b32 v{t}, v{t+1}
    v_add_f32 v{t}, v{t}, v{t+1}
    v_mov_b32 v{t+1}, v{t}
    v_permlane32_swap_b32 v{t}, v{t+1}
    v_max_f32 v{t}, v{t}, v{t+1}
    v_sqrt_f32 v{t}, v{t}
    v_mov_b32 v133, {self.SCR + 512}""")
        if PW != "before" and not self.opt.get('hprep'):
            a("s_waitcnt vmcnt(0)"); self.prep_finish(C, 152, 164)
        C.ts("q"); C.bar(); C.ts("q")
        a(f"""
    ds_read_b64 v[128:129], v133
    s_waitcnt lgkmcnt(0)
    v_mul_f32 v{self.NEGM}, v{t}, v128
    v_readfirstlane_b32 s{sSLOW}, v129""")
        for i in range(1, 16): a(f"v_mov_b32 v{self.NEGM+i}, v{self.NEGM}")
        a(f"s_mov_b32 s{sSLOW+1}, s{sSLOW}")

        a = H.a; v = self.PV
        XF, WF = 64, 128
        a(f"""
    s_setprio 3
    v_and_b32 v9, 7, v{vLANE}
    v_xor_b32 v9, v9, v8
    v_lshlrev_b32 v9, 4, v9
    v_lshl_add_u32 v19, v8, 10, v9
    s_lshl_b32 s{sPF}, s{sGRP}, 16
    s_lshl_b32 s{sT0}, s{sW}, 14
    s_add_u32 s{sPF}, s{sPF}, s{sT0}
    s_lshl_b32 s{sL}, s{sW}, 11
    s_add_u32 s{sL}, s{sL}, {XB}
    s_lshr_b32 s{sKVW}, s{sMEM}, 1
    s_mov_b32 s{sPR+2}, 16384
    v_mov_b32 v7, 0
    s_bitcmp1_b32 s{sMEM}, 0
    s_waitcnt lgkmcnt(0)
    s_cselect_b64 s[{sPR}:{sPR+1}], s[34:35], s[32:33]
    s_and_b32 s5, s5, 0xffff
    s_and_b32 s9, s9, 0xffff
    s_and_b32 s13, s13, 0xffff
    s_and_b32 s{sPR+1}, s{sPR+1}, 0xffff
    s_mov_b32 s{sT0}, {TAGW:#x}
    buffer_load_dword v47, v7, {WS}, s{sT0} offen sc1""")
        for c in range(8):
            a(f"""
    s_add_u32 s{sT0}, s{sMEM}, {c}
    s_and_b32 s{sT0}, s{sT0}, 7
    s_lshl_b32 s{sG}, s{sT0}, 7
    s_add_u32 s{sG}, s{sG}, s{sPF}
    s_lshl_b32 s{sT0}, s{sT0}, 13
    s_add_u32 m0, s{sT0}, s{sL}""")
            H.vm(f"buffer_load_dwordx4 v19, {XS}, s{sG} offen lds")
            a(f"s_add_u32 s{sG}, s{sG}, {8192 - 1024}")
            xseq = H.vm(f"buffer_load_dwordx4 v19, {XS}, s{sG} offen offset:1024 lds")
        self.setup_common(H, 16)
        L = H.lab("nokv1")
        a(f"s_cmp_lg_u32 s{sKVW}, s{sW}\n s_cbranch_scc1 {L}")
        for i in range(4):
            a(f"s_mov_b32 m0, {4096*i}\n s_mov_b32 s{sT0}, {4096*i}")
            for k in range(4): a(f"buffer_load_dwordx4 v{vL16}, s[{sPR}:{sPR+3}], s{sT0} offen offset:{1024*k} lds")
        a.label(L)
        if self.opt.get('hprep'): self.prep_setup(H, 200, HI)
        self.x_addr(H, 40, 16, 42)
        a(f"s_lshl_b32 s{sT0}, s{sW}, 11\n v_add_u32 v40, s{sT0}, v40\n v_xor_b32 v41, 64, v40")
        a("v_mov_b32 v32, 0\n v_mov_b32 v33, 0\n v_mov_b32 v34, 0\n v_mov_b32 v35, 0\n v_mov_b32 v60, 0x3f803f80\n v_mov_b32 v61, 0x3f803f80\n v_mov_b32 v62, 0x3f803f80\n v_mov_b32 v63, 0x3f803f80")
        H.ts("q")
        L, L2 = H.lab("noinit"), H.lab("initd")
        a(f"s_cmp_lg_u32 s{sKVW}, s{sW}\n s_cbranch_scc1 {L}")
        a(f"""
    v_mov_b32 v48, 0
    v_mov_b32 v49, 0
    v_mov_b32 v50, 0
    v_mov_b32 v51, 0
    v_lshrrev_b32 v52, 1, v{vLANE}
    v_lshlrev_b32 v52, 13, v52
    v_and_b32 v53, 1, v{vLANE}
    v_lshl_add_u32 v52, v53, 4, v52
    s_lshl_b32 s{sT0}, s{sMEM}, 5
    s_add_u32 s{sT0}, s{sT0}, s{sFLG}
    s_mov_b64 exec, 0x3fff
    buffer_store_dwordx4 v[48:51], v52, {WS}, s{sT0} offen sc1
    s_lshl_b32 s{sT0}, s2, 7
    s_add_u32 s{sT0}, s{sT0}, {PFLAG:#x}
    s_mov_b64 exec, 1
    buffer_store_dword v48, v7, {WS}, s{sT0} offen sc1
    s_mov_b64 exec, -1
    v_mov_b32 v52, -1
    v_mov_b32 v53, -1
    v_mov_b32 v54, -1
    v_mov_b32 v55, -1
    s_lshl_b32 s{sT0}, s{sMEM}, 10
    s_add_u32 s{sT0}, s{sT0}, s{sAR}
    s_add_u32 s{sT0}, s{sT0}, {ST1:#x}
    buffer_store_dwordx4 v[52:55], v{vL16}, {WS}, s{sT0} offen sc1
    s_bfe_u32 s{sT1}, s{sMEM}, 0x10001
    s_mul_i32 s{sT1}, s{sT1}, 31
    s_cmp_eq_u32 s{sT1}, s{sGRP}
    s_cselect_b32 s{sT1}, 0, -1
    v_mov_b32 v56, s{sT1}
    v_mov_b32 v57, s{sT1}
    v_mov_b32 v58, s{sT1}
    v_mov_b32 v59, s{sT1}
    s_lshl_b32 s{sT0}, s{sMEM}, 8
    s_add_u32 s{sT0}, s{sT0}, s{sAR}
    s_add_u32 s{sT0}, s{sT0}, {HALO:#x}
    s_mov_b64 exec, 0xffff
    buffer_store_dwordx4 v[56:59], v{vL16}, {WS}, s{sT0} offen sc1
    s_mov_b64 exec, -1""")
        a(f"s_waitcnt vmcnt(4)\n s_branch {L2}")
        a.label(L)
        a("s_waitcnt vmcnt(0)")
        a.label(L2)
        H.ts("q")
        rs = [H.ld(f"ds_read_b128 {vr(XF+4*ks)}, v{40 + (ks & 1)} offset:{8192*(ks >> 1)}") for ks in range(16)]
        L = H.lab("nokv2")
        a(f"""
    s_cmp_lg_u32 s{sKVW}, s{sW}
    s_cbranch_scc1 {L}
    v_bfe_u32 v42, v{vLANE}, 2, 2
    v_lshl_add_u32 v42, v17, 3, v42
    v_lshlrev_b32 v42, 5, v42
    v_and_b32 v43, 3, v{vLANE}
    v_lshl_add_u32 v42, v43, 3, v42""")
        for ks in range(16):
            a(f"ds_read_b64_tr_b16 {P(WF+4*ks)}, v42 offset:{1024*ks}\n ds_read_b64_tr_b16 {P(WF+4*ks+2)}, v42 offset:{1024*ks+128}")
        a.label(L)
        for ks in range(16):
            if ks % 2 == 0: H.wait_ld(rs[ks+1])
            a(f"v_mfma_f32_16x16x32_bf16 v[36:39], v[60:63], {vr(XF+4*ks)}, {'0' if ks == 0 else 'v[36:39]'}")
            for i in range(4): a(f"v_dot2_f32_bf16 v{32+i}, v{XF+4*ks+i}, v{XF+4*ks+i}, v{32+i}")
        a(f"""
    v_add_f32 v32, v32, v33
    v_add_f32 v34, v34, v35
    v_add_f32 v45, v32, v34
    v_mov_b32 v44, v45
    v_permlane32_swap_b32 v44, v45
    v_add_f32 v45, v44, v45
    v_mov_b32 v44, v45
    v_permlane16_swap_b32 v44, v45
    v_add_f32 v45, v44, v45
    v_mul_f32 v44, 0x3b000000, v36
    v_mul_f32 v45, 0x3b000000, v45
    v_fma_f32 v45, -v44, v44, v45
    v_max_f32 v45, 0, v45
    v_add_f32 v45, 0x3727c5ac, v45
    v_rsq_f32 v45, v45
    s_lshl_b32 s{sT0}, s{sW}, 7
    v_lshl_add_u32 v46, v16, 3, s{sT0}
    ds_write_b64 v46, v[44:45] offset:{self.SCR}""")
        a(f"v_readfirstlane_b32 s{sTAG}, v47\n s_add_u32 s{sTAG}, s{sTAG}, 1")
        L, Lv, Lp = H.lab("nokv3"), H.lab("isv"), H.lab("pub")
        a(f"""
    s_waitcnt lgkmcnt(0)
    s_cmp_lg_u32 s{sKVW}, s{sW}
    s_cbranch_scc1 {L}
    s_lshl_b32 s{sT1}, s{sGRP}, 1
    s_lshr_b32 s{sT2}, s{sW}, 1
    s_add_u32 s{sT1}, s{sT1}, s{sT2}
    s_lshl_b32 s{sT1}, s{sT1}, 11
    s_add_u32 s{sT1}, s{sT1}, {KV:#x}             ; tile32*2048
    v_lshrrev_b32 v42, 1, v17                     ; hA
    v_and_b32 v43, 0xff, v{vD}                    ; (t or d)*16 + (g&1)*8
    s_bitcmp1_b32 s{sMEM}, 0
    s_cbranch_scc1 {Lv}""")
        for ks in range(16):
            a(f"v_mfma_f32_16x16x32_bf16 v[48:51], {vr(WF+4*ks)}, {vr(XF+4*ks)}, {'0' if ks == 0 else 'v[48:51]'}")
            a(f"v_mfma_f32_16x16x32_bf16 v[52:55], {vr(WF+4*ks)}, v[60:63], {'0' if ks == 0 else 'v[52:55]'}")
        a(f"s_add_u32 s{sT1}, s{sT1}, s{sORD}\n v_lshl_add_u32 v43, v42, 9, v43")
        for i in range(4): a(f"v_fma_f32 v{48+i}, -v44, v{52+i}, v{48+i}")
        for i in range(4): a(f"v_mul_f32 v{48+i}, v{48+i}, v45")
        a(f"""
    v_cvt_pk_bf16_f32 v52, v48, v49
    v_cvt_pk_bf16_f32 v53, v50, v51
    v_mov_b32 v57, 0
    buffer_store_dwordx2 v[52:53], v43, {WS}, s{sT1} offen sc1
    v_dot2_f32_bf16 v57, v52, v52, v57
    v_dot2_f32_bf16 v57, v53, v53, v57
    v_mov_b32 v58, v57
    v_permlane32_swap_b32 v57, v58
    v_add_f32 v57, v57, v58
    v_mov_b32 v58, v57
    v_permlane16_swap_b32 v57, v58
    v_add_f32 v57, v57, v58""")
        for r in (8, 4, 2, 1): a(f"v_max_f32_dpp v57, v57, v57 row_ror:{r} row_mask:0xf bank_mask:0xf")
        a(f"s_branch {Lp}")
        a.label(Lv)
        a(f"v_lshl_add_u32 v46, v17, 5, s{sT0}\n ds_read_b128 v[32:35], v46 offset:{self.SCR}\n ds_read_b128 v[36:39], v46 offset:{self.SCR+16}")
        for ks in range(16):
            a(f"v_mfma_f32_16x16x32_bf16 v[48:51], {vr(XF+4*ks)}, {vr(WF+4*ks)}, {'0' if ks == 0 else 'v[48:51]'}")
            a(f"v_mfma_f32_16x16x32_bf16 v[52:55], v[60:63], {vr(WF+4*ks)}, {'0' if ks == 0 else 'v[52:55]'}")
        a(f"s_lshl_b32 s{sT2}, s{sORD}, 1\n s_add_u32 s{sT1}, s{sT1}, s{sT2}\n v_lshl_add_u32 v43, v42, 8, v43\n s_waitcnt lgkmcnt(0)")
        for i in range(4): a(f"v_fma_f32 v{48+i}, -v{32+2*i}, v{52+i}, v{48+i}")
        for i in range(4): a(f"v_mul_f32 v{48+i}, v{48+i}, v{33+2*i}")
        a(f"""
    v_cvt_pk_bf16_f32 v52, v48, v49
    v_cvt_pk_bf16_f32 v53, v50, v51
    v_mov_b32 v57, 0
    buffer_store_dwordx2 v[52:53], v43, {WS}, s{sT1} offen offset:1024 sc1""")
        a.label(Lp)
        a(f"""
    v_mov_b32 v56, s{sTAG}
    v_mov_b32 v58, s{sXCC}
    v_mov_b32 v59, s{sTAG}
    s_lshl_b32 s{sT0}, s{sGRP}, 3
    s_add_u32 s{sT0}, s{sT0}, s{sMEM}
    s_lshl_b32 s{sT0}, s{sT0}, 7
    s_add_u32 s{sT0}, s{sT0}, {KFLAG:#x}
    s_waitcnt vmcnt(0)
    s_mov_b64 exec, 1
    buffer_store_dwordx4 v[56:59], v7, {WS}, s{sT0} offen sc1
    s_mov_b64 exec, -1""")
        a.label(L)
        H.ts("q")
        a("s_setprio 0")
        H.bar()
        a(f"v_lshlrev_b32 v{self.TA}, 7, v{vLANE}\n v_and_b32 v46, 0xfff, v{self.TA}\n s_lshr_b32 s{sRND}, s{sGRP}, 2")
        self.kpoll(46, True)
        self.kv(1)
        a(f"""
    s_and_b32 s{sT0}, s{sGRP}, 3
    s_lshl_b32 s{sT0}, s{sT0}, 3
    s_lshl_b32 s{sT0}, 0xff, s{sT0}
    v_cmp_ne_u32 vcc, s{sXCC}, v50
    s_and_b32 s{sT0}, s{sT0}, vcc_lo
    s_cselect_b64 s[{sSLOW}:{sSLOW+1}], -1, 0""")
        for r in (8, 4, 2, 1): a(f"v_max_f32_dpp v49, v49, v49 row_ror:{r} row_mask:0xf bank_mask:0xf")
        a(f"""
    v_mov_b32 v50, v49
    v_permlane16_swap_b32 v49, v50
    v_max_f32 v49, v49, v50
    v_sqrt_f32 v49, v49
    v_mov_b32 v51, s{sSLOW}
    v_mul_f32 v50, -1.0, v49
    v_mov_b32 v46, {self.SCR + 512}
    ds_write_b64 v46, v[50:51]
    s_waitcnt lgkmcnt(0)""")
        H.ts("q")
        H.bar()
        self.kv01 = self.kvseq
        self.sync_check()
    TA = 18
    def kpoll(self, va, first=False):
        H = self.H; a = H.a; L = H.lab("kp")
        a(f"s_lshl_b32 s{sT0}, s{sRND}, 12\n s_add_u32 s{sT0}, s{sT0}, {KFLAG:#x}\n s_mov_b32 s{sCNT}, 0")
        a.label(L)
        a(f"""
    buffer_load_dwordx4 v[48:51], v{va}, {WS}, s{sT0} offen sc1
    s_add_u32 s{sCNT}, s{sCNT}, 1
    s_cmp_gt_u32 s{sCNT}, {SPIN}
    s_cbranch_scc1 main_exit
    s_waitcnt vmcnt(0)
    v_cmp_ne_u32 vcc, s{sTAG}, v48
    v_cmp_ne_u32 s[36:37], s{sTAG}, v51
    s_or_b64 vcc, vcc, s[36:37]
    s_cbranch_vccnz {L}""")
    nkv = 0
    def kv(self, n):
        H = self.H
        for r in range(n):
            H.a(f"""
    s_lshl_b32 s{sW4}, s{sRND}, 14
    s_lshl_b32 s{sPL}, s{sW}, 12
    s_add_u32 s{sW4}, s{sW4}, s{sPL}
    s_add_u32 s{sW4}, s{sW4}, {KV:#x}
    s_add_u32 m0, s{sPL}, {16384*self.nkv}
    s_add_u32 s{sRND}, s{sRND}, 1
    s_and_b32 s{sRND}, s{sRND}, 7""")
            self.nkv += 1
            for i in range(4): self.kvseq = H.vm(f"buffer_load_dwordx4 v{vL16}, {WS}, s{sW4} offen offset:{1024*i} sc1 lds")

    PV = 20
    def prep_setup(self, S, v, win=20480):
        a = S.a
        T0, T1, T2, T3 = sT0, sT1, sT2, sT3
        def dst(i, base): a(f"s_lshl_b32 s{sPD+i}, s{T2}, 10\n s_lshl_b32 s{T3}, s{sW}, 8\n s_add_u32 s{sPD+i}, s{sPD+i}, s{T3}\n s_add_u32 s{sPD+i}, s{sPD+i}, {base:#x}")
        def std(q, i, base, rows=True):
            a(f"""
    s_lshr_b32 s{T1}, s{q}, 3
    s_and_b32 s{T2}, s{q}, 7
    s_lshl_b32 s{sPS+i}, s{T1}, 15
    s_lshl_b32 s{T3}, s{T2}, 7
    s_add_u32 s{sPS+i}, s{sPS+i}, s{T3}""")
            if rows: a(f"s_lshl_b32 s{T3}, s{sW}, 13\n s_add_u32 s{sPS+i}, s{sPS+i}, s{T3}")
            if base is not None:
                a(f"s_lshl_b32 s{T2}, s{T2}, 6\n s_add_u32 s{T2}, s{T2}, s{T1}"); dst(i, base)
        def w4t(q, i, vd):
            std(q, i, None)
            a(f"""
    s_mul_i32 s{T2}, s{T2}, 56
    s_add_u32 s{T2}, s{T2}, s{T1}
    s_lshl_b32 s{T2}, s{T2}, 2
    s_mul_i32 s{T1}, s{T1}, 9363
    s_lshr_b32 s{T1}, s{T1}, 16
    v_subrev_u32 v{vd}, s{T1}, v{v+9}
    v_and_b32 v{vd}, 3, v{vd}
    v_lshl_add_u32 v{vd}, v{vd}, 10, v{v+10}""")
            dst(i, W4)
        def w3t(q, i):
            a(f"""
    s_mul_i32 s{T1}, s{q}, 2341
    s_lshr_b32 s{T1}, s{T1}, 16                   ; ks = q/28
    s_mul_i32 s{T2}, s{T1}, 28
    s_sub_u32 s{T2}, s{q}, s{T2}                  ; nb
    s_lshl_b32 s{T3}, s{T1}, 2
    s_add_u32 s{T3}, s{T3}, s{sW}
    s_mul_i32 s{sPS+i}, s{T3}, {8*3584}
    s_lshl_b32 s{T3}, s{T2}, 7
    s_add_u32 s{sPS+i}, s{sPS+i}, s{T3}
    s_lshl_b32 s{T2}, s{T2}, 6
    s_add_u32 s{T2}, s{T2}, s{T1}""")
            dst(i, W3)
        a(f"""
    v_lshrrev_b32 v{v+9}, 4, v{vLANE}             ; q
    v_and_b32 v{v+10}, 0xff, v{vL16}              ; i*16
    v_lshl_add_u32 v{v+4}, v{v+9}, 14, v{v+10}
    v_lshrrev_b32 v{v+7}, 3, v{vLANE}
    v_and_b32 v{v+8}, 0x7f, v{vL16}
    v_lshl_add_u32 v{v}, v{v+7}, 10, v{v+8}
    v_mul_u32_u24 v{v+1}, 3584, v{v+7}
    v_add_u32 v{v+1}, v{v+1}, v{v+8}""")
        w3t(2, 0); w4t(2, 1, v+5)
        L, Le = S.lab("pwo"), S.lab("pend")
        a(f"s_cmp_ge_u32 s2, 192\n s_cbranch_scc1 {L}\n s_add_u32 s{T0}, s2, 256")
        w3t(T0, 2); w4t(T0, 3, v+6)
        a(f"v_mov_b32 v{v+2}, v{v+1}\n v_mov_b32 v{v+3}, v{v}\n s_branch {Le}")
        a.label(L)
        a(f"s_sub_u32 s{T0}, s2, 192"); std(T0, 2, WO, rows=False)
        a(f"s_sub_u32 s{T0}, s2, 128"); std(T0, 3, WO, rows=False)
        a(f"""
    s_lshr_b32 s{T1}, s{sW}, 1
    s_lshl_b32 s{T1}, s{T1}, 4
    s_and_b32 s{T2}, s{sW}, 1
    s_lshl_b32 s{T2}, s{T2}, 2
    s_add_u32 s{T1}, s{T1}, s{T2}
    v_and_b32 v{v+2}, 4, v{v+7}
    v_add3_u32 v{v+2}, v{v+2}, v{v+7}, s{T1}
    v_lshl_add_u32 v{v+2}, v{v+2}, 10, v{v+8}
    v_mov_b32 v{v+3}, v{v+2}
    v_mov_b32 v{v+6}, v{v+4}""")
        a.label(Le)
        a(f"s_and_b32 s{T0}, s2, 127"); std(T0, 4, W1)
        a(f"""
    s_lshr_b32 s{T0}, s2, 7
    s_lshl_b32 s{T0}, s{T0}, 19
    s_add_u32 s{sPD+4}, s{sPD+4}, s{T0}
    s_mul_i32 s{T0}, s{sW}, 3072
    s_add_u32 s{T0}, s{T0}, {win}
    v_add_u32 v{v+7}, s{T0}, v{vL16}
    v_bfe_u32 v{v+8}, v{vLANE}, 2, 2
    v_lshlrev_b32 v{v+8}, 7, v{v+8}
    v_lshl_add_u32 v{v+8}, v{v+9}, 5, v{v+8}
    v_and_b32 v{v+9}, 3, v{vLANE}
    v_lshl_add_u32 v{v+8}, v{v+9}, 3, v{v+8}
    v_add_u32 v{v+8}, s{T0}, v{v+8}""")
    def prep_load(self, S, v, dst):
        a = S.a
        PR = f"s[{sPR}:{sPR+3}]"
        wo, w1, w2, w3, w4 = (f"s[{sPP+2*i}:{sPP+2*i+1}]" for i in range(5))
        big, small = 0x1c0000, 0x80000
        for i in range(5):
            if i < 2: a(f"s_mov_b64 s[{sPR}:{sPR+1}], {(w3, w4)[i]}\n s_mov_b32 s{sPR+2}, {big:#x}")
            elif i < 4:
                a(f"s_mov_b32 s{sT1}, {small:#x}\n s_cmp_ge_u32 s2, 192\n s_cselect_b64 s[{sPR}:{sPR+1}], {wo}, {(w3, w4)[i-2]}\n s_cselect_b32 s{sPR+2}, s{sT1}, {big:#x}")
            else: a(f"s_cmp_ge_u32 s2, 128\n s_cselect_b64 s[{sPR}:{sPR+1}], {w2}, {w1}\n s_mov_b32 s{sPR+2}, {small:#x}")
            a(f"s_and_b32 s{sPR+1}, s{sPR+1}, 0xffff")
            S.vm(f"buffer_load_dwordx4 {vr(dst+4*i)}, v{(v+1, v, v+2, v+3, v)[i]}, {PR}, s{sPS+i} offen")
    def prep_finish(self, S, v, d):
        a = S.a
        for grp in ((0, 1, 2), (3, 4)):
            for k, i in enumerate(grp): a(f"ds_write_b128 v{v+7}, {vr(d+4*i)} offset:{1024*k}")
            a("s_waitcnt lgkmcnt(0)")
            for k, i in enumerate(grp):
                a(f"ds_read_b64_tr_b16 {P(d+4*i)}, v{v+8} offset:{1024*k}\n ds_read_b64_tr_b16 {P(d+4*i+2)}, v{v+8} offset:{1024*k+512}")
            a("s_waitcnt lgkmcnt(0)")
        for i in range(5): S.vm(f"buffer_store_dwordx4 {vr(d+4*i)}, v{(v+4, v+5, v+4, v+6, v+4)[i]}, {WS}, s{sPD+i} offen sc1")

    hXT, hACC, hBP = 8, 16, 32
    hRES, hSTAT, hCS1, hR1, hTMP, hCS3, hX = 64, 80, 96, 100, 104, 112, 120
    UB = tuple(int(x) for x in os.environ.get('UB', '20,72,86,98,104').split(','))
    UBK = int(os.environ.get('UBK', '6'))
    def attention(self):
        C, H = self.C, self.H; a = C.a
        S0, S1, NEGM, OA, OB, QA, QB, vIDX, vKA, vVA = self.S0, self.S1, self.NEGM, self.OA, self.OB, self.QA, self.QB, self.vIDX, self.vKA, self.vVA
        kf = lambda t: self.KVR + 12*(t & 1)
        C.ts("at"); C.bar(); C.ts("at")
        a("s_setprio 1")
        def rdK(t): a(f"ds_read_b128 {vr(kf(t))}, v{vKA} offset:{(t&31)*2048}")
        def rdV(t):
            a(f"s_mov_b64 exec, {sVM}")
            a(f"ds_read_b128 {vr(kf(t)+4)}, v{vVA} offset:{(t&31)*2048+1024}")
            a(f"ds_read_b128 {vr(kf(t)+8)}, v{vVA} offset:{(t&31)*2048+1536}")
            a("s_mov_b64 exec, -1")
        def qk(u): a(f"v_mfma_f32_32x32x16_bf16 {vr((S0,S1)[u&1],16)}, {vr(kf(u>>1))}, {vr((QA,QB)[u&1])}, {vr(NEGM,16)}")
        def pv(u, h): a(f"v_smfmac_f32_32x32x32_bf16 {vr((OA,OB)[u&1],16)}, {vr(kf(u>>1)+4+4*h)}, {vr((S0,S1)[u&1]+8*h,8)}, v{vIDX}")
        def ex(u, lo, hi):
            for i in range(lo, hi): a(f"v_exp_f32 v{(S0,S1)[u&1]+i}, v{(S0,S1)[u&1]+i}")
        x = self.cT
        a(f"s_lshl_b32 s{sT0}, s{sW}, 13\n s_add_u32 s{sT0}, s{sT0}, {HI}\n v_add_u32 v{x}, s{sT0}, v{vL16}\n s_lshl_b32 s{sT0}, s{sW}, 14\n v_add_u32 v{x+1}, s{sT0}, v{vL16}")
        plan = {}
        for ub, f0, n, va in ((self.UB[1], 0, 8, x), (self.UB[2], 8, 16, x+1), (self.UB[3], 24, 8, x)):
            for i in range(n): plan.setdefault(ub + 1 + 2*(i // 4), []).append(f"ds_read_b128 {vr(128+4*(f0+i))}, v{va} offset:{1024*i}")
        rdK(0); rdV(0); rdK(1)
        a("s_waitcnt lgkmcnt(3)")
        qk(0)
        for u in range(128):
            t, q = u >> 1, u & 1
            if u % 8 == 0: C.ts("at")
            ex(u, 0, 2)
            if u > 0: pv(u-1, 1)
            ex(u, 2, 5)
            if u + 1 < 128: qk(u+1)
            if u == self.UBK: a("s_waitcnt vmcnt(0)")
            if u in self.UB or u == self.UBK: C.bar()
            if q == 0:
                if t + 1 < 64:
                    if t + 1 == 32: a(f"v_add_u32 v{vVA}, 0x10000, v{vVA}")
                    rdV(t+1)
                if t + 2 < 64:
                    if t + 2 == 32: a(f"v_add_u32 v{vKA}, 0x10000, v{vKA}")
                    rdK(t+2)
            for y in plan.pop(u, []): a(y)
            ex(u, 5, 10)
            if q == 0: a(f"s_waitcnt lgkmcnt({3 if t + 2 < 64 else (2 if t + 1 < 64 else 0)})")
            pv(u, 0)
            ex(u, 10, 16)
        assert not plan
        pv(127, 1)
        C.ts(); C.ts("at")
        t = self.cT
        a(f"""
    v_lshrrev_b32 v{t+1}, 5, v{vLANE}
    v_lshlrev_b32 v{t+1}, 10, v{t+1}
    v_and_b32 v{t+2}, 31, v{vLANE}
    v_lshl_add_u32 v{t+4}, v{t+2}, 4, v{t+1}""")
        C.tile_soff(sT1, O_)
        a(f"v_min_f32 v{t}, v{OA+8}, v{OB+8}\n v_max_f32 v{t+1}, v{OA+8}, v{OB+8}\n v_cmp_nle_f32 vcc, {f32(2.0**-80)}, v{t}\n s_mov_b32 s{sT2}, vcc_lo\n v_cmp_nge_f32 vcc, {f32(2.0**80)}, v{t+1}\n s_or_b32 s{sT2}, s{sT2}, vcc_lo\n s_cbranch_scc1 attn_redo")
        a.label("attn_done")
        a(f"v_mov_b32 v{OA+9}, v{OA+8}\n v_mov_b32 v{OB+9}, v{OB+8}\n v_permlane32_swap_b32 v{OA+8}, v{OA+9}\n v_permlane32_swap_b32 v{OB+8}, v{OB+9}")
        a(f"v_rcp_f32 v{t+2}, v{OA+8}\n v_rcp_f32 v{t+6}, v{OB+8}")
        for o, r in ((OA, t+2), (OB, t+6)):
            for i in range(4): a(f"v_pk_mul_f32 {P(o+2*i)}, {P(o+2*i)}, {P(r)} op_sel_hi:[1,0]")
            for i in range(4): a(f"v_cvt_pk_bf16_f32 v{o+i}, v{o+2*i}, v{o+2*i+1}")
        C.setvcc()
        C.cstore([f"buffer_store_dwordx4 {vr(OA)}, v{t+4}, {WS}, s{sT1} offen", f"buffer_store_dwordx4 {vr(OB)}, v{t+4}, {WS}, s{sT1} offen offset:512"])
        a("s_setprio 0")
        C.set_act(O_)
        a(f"v_and_b32 v{self.cF}, 31, v{vLANE}\n v_lshlrev_b32 v{self.cF}, 2, v{self.cF}")
        C.flag(0, t)
        C.ts()
        a = H.a; v = self.PV; d = v + 8
        CW = v + 7
        a(f"v_mov_b32 v{CW}, {HI + 32752}\n v_mov_b32 v6, 0\n ds_write_b64 v{CW}, v[6:7]\n ds_write_b32 v{CW}, v6 offset:8\n s_waitcnt lgkmcnt(0)")
        H.wait_vm(self.kv01); H.bar()
        TA, TD = self.TA, 19
        def spin(n, off=0):
            L = H.lab("hs")
            a(f"s_mov_b32 s{sCNT}, 0")
            a.label(L)
            a(f"""
    s_sleep 1
    ds_read_b32 v6, v{CW} offset:{off}
    s_add_u32 s{sCNT}, s{sCNT}, 1
    s_cmp_gt_u32 s{sCNT}, {SPIN*16}
    s_cbranch_scc1 main_exit
    s_waitcnt lgkmcnt(0)
    v_cmp_gt_u32 vcc, {n}, v6
    s_cbranch_vccnz {L}""")
        def count(off=0): a(f"v_mov_b32 v6, 1\n s_mov_b64 exec, 1\n ds_add_u32 v{CW}, v6 offset:{off}\n s_mov_b64 exec, -1")
        def pub():
            L = H.lab("nopf")
            a(f"s_cmp_lg_u32 s{sW}, 3\n s_cbranch_scc1 {L}")
            a(f"""
    s_lshl_b32 s{sT0}, s2, 7
    s_add_u32 s{sT0}, s{sT0}, {PFLAG:#x}
    v_mov_b32 v6, 1
    s_mov_b64 exec, 1
    buffer_store_dword v6, v7, {WS}, s{sT0} offen sc1
    s_mov_b64 exec, -1""")
            a.label(L)
        def kall():
            L = H.lab("kall")
            a(f"s_mov_b32 s{sCNT}, 0\n s_lshl_b32 s{sT0}, s{sW}, 13\n s_add_u32 s{sT0}, s{sT0}, {KFLAG:#x}")
            a.label(L)
            a(f"""
    buffer_load_dword v48, v{TA}, {WS}, s{sT0} offen sc1
    s_add_u32 s{sCNT}, s{sCNT}, 1
    s_cmp_gt_u32 s{sCNT}, {SPIN}
    s_cbranch_scc1 main_exit
    s_waitcnt vmcnt(0)
    v_cmp_ne_u32 vcc, s{sTAG}, v48
    s_mov_b64 exec, vcc
    s_cbranch_vccnz {L}
    s_mov_b64 exec, -1""")
            count(8); spin(4, 8)
        a(f"v_and_b32 v46, 0xfff, v{TA}")
        self.kpoll(46); self.kv(1); k1 = self.kvseq
        if self.opt.get('hprep'):
            self.prep_load(H, 200, 224)
            H.wait_vm(k1); H.bar()
            a("s_waitcnt vmcnt(0)"); self.prep_finish(H, 200, 224)
            kall(); pub()
            self.kv(6)
        else:
            H.wait_vm(k1); H.bar()
            pub()
            kall(); self.kv(6)
        H.wait_vm(self.kvseq); H.ts("h"); H.bar()
        def code_touch():
            L = H.lab("pc")
            a(f"s_getpc_b64 s[36:37]")
            a.label(L)
            a(f"""
    s_sub_u32 s36, s36, {L}-main_kernel
    s_subb_u32 s37, s37, 0
    s_and_b32 s{sT1}, s{sGRP}, 3
    s_lshl_b32 s{sT1}, s{sT1}, 5
    s_add_u32 s{sT1}, s{sT1}, s{sNT}
    s_lshl_b32 s{sT1}, s{sT1}, 9
    v_and_b32 v{v+2}, 0x1ff, v{TA}
    v_add_u32 v{v+2}, s{sT1}, v{v+2}
    v_min_u32 v{v+2}, main_end-main_kernel-4, v{v+2}""")
            H.vm(f"global_load_dword v{TD}, v{v+2}, s[36:37]")
        def arena_touch():
            if self.opt.get("usc1"):
                a(f"""
    s_lshl_b32 s{sTCH}, s{sNT}, 12
    s_lshl_b32 s{sT1}, s{sNT}, 8
    s_sub_u32 s{sT1}, s{sT1}, s{sTCH}
    s_add_u32 s{sT1}, s{sT1}, {ST1 - 4096}
    s_add_u32 s{sTCH}, s{sTCH}, s{sAR}
    v_mov_b32 v6, v{TA}
    s_mov_b32 exec_lo, 0
    v_add_u32 v6, s{sT1}, v6
    s_mov_b32 exec_lo, -1
    s_mov_b32 exec_hi, 3""")
                H.vm(f"buffer_load_dword v{TD}, v6, {WS}, s{sTCH} offen")
                a("s_mov_b64 exec, -1")
                return
            a(f"s_mul_i32 s{sTCH}, s{sNT}, {TOUCHN*128}\n s_add_u32 s{sTCH}, s{sTCH}, s{sAR}\n s_add_u32 s{sTCH}, s{sTCH}, {TOUCH0:#x}")
            H.vm(f"buffer_load_dword v{TD}, v{TA}, {WS}, s{sTCH} offen")
            a(f"s_mov_b32 exec_lo, 0x7ff\n s_mov_b32 exec_hi, 0\n s_add_u32 s{sTCH}, s{sTCH}, 8192")
            H.vm(f"buffer_load_dword v{TD}, v{TA}, {WS}, s{sTCH} offen")
            a("s_mov_b64 exec, -1")
        hi = f"s_lshl_b32 s{sPL}, s{sW}, 13\n s_add_u32 s{sPL}, s{sPL}, {HI}"
        lo = f"s_lshl_b32 s{sPL}, s{sW}, 14"
        F = lambda *x, **k: H.run(H.frags(*x, **k))
        code_touch()
        AP = self.opt.get("ap", "none")
        if AP == "pre": arena_touch()
        L0 = H.lab("pchk")
        a(f"s_lshl_b32 s{sPS}, s{sW}, 13\n s_add_u32 s{sPS}, s{sPS}, {PFLAG:#x}\n s_mov_b32 s{sCNT}, 0")
        a.label(L0)
        a(f"""
    buffer_load_dword v{d}, v{TA}, {WS}, s{sPS} offen sc1
    s_add_u32 s{sCNT}, s{sCNT}, 1
    s_cmp_gt_u32 s{sCNT}, {SPIN}
    s_cbranch_scc1 main_exit
    s_waitcnt vmcnt(0)
    v_cmp_ne_u32 vcc, 1, v{d}
    s_mov_b64 exec, vcc
    s_sleep 2
    s_cbranch_vccnz {L0}
    s_mov_b64 exec, -1""")
        count(4); spin(4, 4); count(4)
        L = H.lab("notag")
        a(f"""
    s_or_b32 s{sT0}, s2, s{sW}
    s_cmp_lg_u32 s{sT0}, 0
    s_cbranch_scc1 {L}
    v_mov_b32 v6, s{sTAG}
    s_mov_b32 s{sT0}, {TAGW:#x}
    s_mov_b64 exec, 1
    buffer_store_dword v6, v7, {WS}, s{sT0} offen sc1
    s_mov_b64 exec, -1""")
        a.label(L)
        H.ts("h")
        for base, reg in ((WO, 64), (W1, 128), (W2, 192)):
            H.set_wbase(base, 16, sW4); F(16, sW4, dst=V(reg))
        L = H.lab("ack")
        a(f"s_cmp_lg_u32 s{sW}, 3\n s_cbranch_scc1 {L}")
        spin(8, 4)
        a.label(L)
        H.set_w3(0); a(hi)
        F(8, sPF, lds=sPL); r1 = H.lastf
        code_touch()
        H.xo_soff(sT1)
        for jt in range(4):
            H.vm(f"buffer_load_dwordx2 {P(self.hXT+2*jt)}, v{vXO}, {XS}, s{sT1} offen")
            if jt < 3: a(f"s_add_u32 s{sT1}, s{sT1}, 16384")
        a(f"s_and_b32 s{sT1}, s{sGRP}, 3\n s_mul_i32 s{sT1}, s{sT1}, 6144\n s_add_u32 s{sTCH}, s{sPF}, s{sT1}\n s_mov_b32 exec_hi, 0xffff")
        H.vm(f"buffer_load_dword v{TD}, v{TA}, {WS}, s{sTCH} offen")
        a("s_mov_b64 exec, -1")
        if AP == "mid": arena_touch()
        H.wait_vm(r1); H.ts("h"); H.bar()
        a(lo); F(16, sPF, lds=sPL); r2 = H.lastf
        code_touch()
        a(f"""
    s_and_b32 s{sT1}, s{sGRP}, 3
    s_lshl_b32 s{sTCH}, s{sT1}, 5
    s_add_u32 s{sTCH}, s{sTCH}, s{sNT}
    s_mul_i32 s{sTCH}, s{sTCH}, 14336
    s_add_u32 s{sTCH}, s{sTCH}, {W4:#x}""")
        H.vm(f"buffer_load_dword v{TD}, v{TA}, {WS}, s{sTCH} offen")
        H.wait_vm(r2); H.ts("h"); H.bar()
        a(hi); F(8, sPF, lds=sPL); r3 = H.lastf
        a(f"s_add_u32 s{sTCH}, s{sTCH}, 6144")
        H.vm(f"buffer_load_dword v{TD}, v{TA}, {WS}, s{sTCH} offen")
        H.wait_vm(r3); H.ts("h"); H.bar()
        H.bar()
        a(lo); F(16, sPF, lds=sPL)
        H.set_w3(3)
        a(f"s_lshl_b32 s{sT5}, s{sORD}, 5\n s_add_u32 s{sPF}, s{sPF}, s{sT5}"); a(hi)
        F(8, sPF, lds=sPL)
        arena_touch()
        code_touch()
        a("s_waitcnt vmcnt(0)")
        H.setvcc()
        H.tile_soff(sT4, H_)
        a("s_setprio 1")
        H.ts("h")
        self.sync_check()

    def fallback(self):
        C = self.C; a = C.a; t = self.cT
        S0, NEGM, KF, VF, vVA, vIDX = self.S0, self.NEGM, self.KVR, self.KVR+4, self.vVA, self.vIDX
        a.label("attn_redo")
        a(f"v_and_b32 v{vVA}, 0x3ff, v{vVA}")
        for (Q, O) in ((self.QA, self.OA), (self.QB, self.OB)):
            L1, L2 = C.lab("fb1"), C.lab("fb2")
            a(f"v_mov_b32 v{t}, 0xff800000\n s_mov_b32 s{sT2}, {KV:#x}")
            a.label(L1)
            a(f"""
    buffer_load_dwordx4 {vr(KF)}, v{vL16}, {WS}, s{sT2} offen sc1
    s_add_u32 s{sT2}, s{sT2}, 2048
    s_waitcnt vmcnt(0)
    v_mfma_f32_32x32x16_bf16 {vr(S0,16)}, {vr(KF)}, {vr(Q)}, 0""")
            for i in range(8): a(f"v_max3_f32 v{t}, v{t}, v{S0+2*i}, v{S0+2*i+1}")
            a(f"""
    s_cmp_lt_u32 s{sT2}, {KV+131072:#x}
    s_cbranch_scc1 {L1}
    v_mov_b32 v{t+1}, v{t}
    v_permlane32_swap_b32 v{t}, v{t+1}
    v_max_f32 v{t}, v{t}, v{t+1}
    v_sub_f32 v{t}, 0, v{t}""")
            for i in range(16): a(f"v_mov_b32 v{NEGM+i}, v{t}")
            for i in range(16): a(f"v_mov_b32 v{O+i}, 0")
            a(f"s_mov_b32 s{sT2}, {KV:#x}")
            a.label(L2)
            a(f"""
    buffer_load_dwordx4 {vr(KF)}, v{vL16}, {WS}, s{sT2} offen sc1
    s_mov_b64 exec, {sVM}
    buffer_load_dwordx4 {vr(VF)}, v{vVA}, {WS}, s{sT2} offen offset:1024 sc1
    buffer_load_dwordx4 {vr(VF+4)}, v{vVA}, {WS}, s{sT2} offen offset:1536 sc1
    s_mov_b64 exec, -1
    s_add_u32 s{sT2}, s{sT2}, 2048
    s_waitcnt vmcnt(0)
    v_mfma_f32_32x32x16_bf16 {vr(S0,16)}, {vr(KF)}, {vr(Q)}, {vr(NEGM,16)}""")
            for i in range(16): a(f"v_exp_f32 v{S0+i}, v{S0+i}")
            a(f"""
    v_smfmac_f32_32x32x32_bf16 {vr(O,16)}, {vr(VF)}, {vr(S0,8)}, v{vIDX}
    v_smfmac_f32_32x32x32_bf16 {vr(O,16)}, {vr(VF+4)}, {vr(S0+8,8)}, v{vIDX}
    s_nop 15
    s_cmp_lt_u32 s{sT2}, {KV+131072:#x}
    s_cbranch_scc1 {L2}""")
        a("s_nop 15\n s_branch attn_done")

    cF, cP = 120, 122
    cACC, cBP, cSTAT, cCS3, cTMP, cOUT = 16, 48, 80, 96, 104, 112
    def prod_stats(self, vals):
        H = self.H; a = H.a; t = self.hTMP; x = self.hBP
        for jt in range(4): a(f"v_pk_add_f32 {P(x+2*jt)}, {P(vals+4*jt)}, {P(vals+4*jt+2)}")
        for jt in range(4): a(f"v_pk_mul_f32 {P(x+8+2*jt)}, {P(vals+4*jt)}, {P(vals+4*jt)}")
        for jt in range(4): a(f"v_pk_fma_f32 {P(x+8+2*jt)}, {P(vals+4*jt+2)}, {P(vals+4*jt+2)}, {P(x+8+2*jt)}")
        for jt in range(8): a(f"v_add_f32 v{t+jt}, v{x+2*jt}, v{x+2*jt+1}")
        a(f"""
    s_lshl_b32 s{sT5}, s{sW}, 10
    s_add_u32 s{sT5}, s{sT5}, {XST}
    v_permlane32_swap_b32 v{t}, v{t+2}
    v_permlane32_swap_b32 v{t+1}, v{t+3}
    v_permlane32_swap_b32 v{t+4}, v{t+6}
    v_permlane32_swap_b32 v{t+5}, v{t+7}
    v_pk_add_f32 {P(t)}, {P(t)}, {P(t+2)}
    v_pk_add_f32 {P(t+4)}, {P(t+4)}, {P(t+6)}
    v_lshl_add_u32 v{x}, v{vLANE}, 3, s{sT5}
    v_permlane16_swap_b32 v{t}, v{t+1}
    v_permlane16_swap_b32 v{t+4}, v{t+5}
    v_add_f32 v{t}, v{t}, v{t+1}
    v_add_f32 v{t+1}, v{t+4}, v{t+5}
    ds_write_b64 v{x}, {P(t)}""")
    def stat_publish(self, base):
        C = self.C; a = C.a; t = self.cTMP; x = self.cT
        a(f"""
    v_lshlrev_b32 v{x}, 3, v{vLANE}
    v_add_u32 v{x}, {XST}, v{x}
    s_lshl_b32 s{sT2}, s{sMEM}, 3
    s_add_u32 s{sT2}, s{sT2}, s{sAR}
    s_add_u32 s{sT2}, s{sT2}, {base:#x}
    v_lshlrev_b32 v{x+1}, 6, v{vLANE}
    s_lshl_b32 s{sT5}, s{sW}, 4
    s_lshl_b64 s[36:37], 0xffff, s{sT5}""")
        C.bar()
        for p in range(4): a(f"ds_read_b64 {P(t+2*p)}, v{x} offset:{1024*p}")
        def fin():
            a(f"""
    s_waitcnt lgkmcnt(0)
    v_pk_add_f32 {P(t)}, {P(t)}, {P(t+2)}
    v_pk_add_f32 {P(t+4)}, {P(t+4)}, {P(t+6)}
    v_pk_add_f32 {P(t)}, {P(t)}, {P(t+4)}
    s_mov_b64 exec, s[36:37]""")
            C.cstore([f"buffer_store_dwordx2 {P(t)}, v{x+1}, {WS}, s{sT2} offen"], nt=False)
            a("s_mov_b64 exec, -1")
        self.pubfin = fin
    def cons_stats(self, gbase, scr, double):
        C = self.C; a = C.a; x = self.cT; o = self.cSTAT; S = o + 8
        st = {}
        ltxt = f"buffer_load_dwordx4 {vr(o)}, v{x+1}, {WS}, s{sT1} offen sc1"
        def load():
            a(f"""
    s_lshl_b32 s{sT1}, s{sW}, 10
    s_add_u32 s{sT1}, s{sT1}, s{sAR}
    s_add_u32 s{sT1}, s{sT1}, {gbase:#x}
    v_and_b32 v{x+3}, 0xff, v{vL16}
    v_and_b32 v{x+1}, 0x30, v{vLANE}
    v_lshl_add_u32 v{x+1}, v{x+3}, 2, v{x+1}
    s_lshl_b32 s{sT5}, s{sW}, 8
    s_add_u32 s{sT5}, s{sT5}, {scr}
    v_add_u32 v{x+2}, s{sT5}, v{x+3}""")
            st['g'] = C.vm(ltxt)
        def check():
            L0, Lr, L2 = C.lab("schk"), C.lab("sre"), C.lab("sok")
            C.wait_vm(st['g'])
            a.label(L0)
            a(f"v_max_u32 v{o+4}, v{o+1}, v{o+3}\n v_cmp_eq_u32 vcc, -1, v{o+4}\n s_cbranch_vccnz {Lr}")
            a.label(L2)
            C.ool.append((Lr, [f"s_add_u32 s{sCNT}, s{sCNT}, 1", f"s_cmp_gt_u32 s{sCNT}, {SPIN}", f"s_cbranch_scc1 {L2}",
                               ltxt, "s_waitcnt vmcnt(0)", f"s_branch {L0}"]))
            C.setvcc()
        txt = f"""
    v_add_f32 v{o}, v{o}, v{o+2}
    v_add_f32 v{o+1}, v{o+1}, v{o+3}
    v_permlane32_swap_b32 v{o}, v{o+1}
    v_add_f32 v{o}, v{o}, v{o+1}
    v_mov_b32 v{o+1}, v{o}
    v_permlane16_swap_b32 v{o}, v{o+1}
    v_add_f32 v{o}, v{o}, v{o+1}
    v_mul_f32 v{o}, 0x3b000000, v{o}
    v_mov_b32 v{o+1}, v{o}
    v_permlane32_swap_b32 v{o}, v{o+1}
    v_mov_b32 v{S}, v{o}
    v_fma_f32 v{o+1}, -v{o}, v{o}, v{o+1}
    v_max_f32 v{o+1}, 0, v{o+1}
    v_add_f32 v{o+2}, 0x3727c5ac, v{o+1}
    v_rsq_f32 v{o+3}, v{o+2}"""
        R = o+3
        if double:
            txt += f"""
    v_mul_f32 v{o+4}, v{o+3}, v{o+3}
    ds_write_b32 v{x+2}, v{o+3} offset:1024
    v_mul_f32 v{o+4}, v{o+4}, v{o+1}
    v_add_f32 v{o+4}, 0x3727c5ac, v{o+4}
    v_rsq_f32 v{o+4}, v{o+4}
    v_mul_f32 v{o+5}, v{o+3}, v{o+4}"""
            R = o+5
        txt += f"""
    v_rcp_f32 v{S+1}, v{R}
    v_mul_f32 v{S+2}, {f32(GC1)}, v{R}
    v_mul_f32 v{o+6}, v{R}, v{R}
    v_mul_f32 v{o+6}, {f32(0.044715)}, v{o+6}
    v_mul_f32 v{S+3}, v{S+2}, v{o+6}
    ds_write_b128 v{x+2}, {vr(S)}"""
        comp = [check]
        for y in txt.split("\n"):
            y = y.strip()
            if not y: continue
            if y.startswith("ds_"): comp.append(lambda y=y: setattr(C, 'wseq', C.ld(y)))
            else: comp.append(lambda y=y: a(y))
        return load, comp
    def tile_store(self, jt):
        return f"buffer_store_dwordx2 {P(self.hXT+2*jt)}, v{vD}, {WS}, s{sT4} offen offset:{256*jt}"
    def add_pack(self, jt, src):
        a = self.H.a; A_ = self.hACC
        for h in (0, 2): a(f"v_pk_add_f32 {P(A_+4*jt+h)}, {P(A_+4*jt+h)}, {P(src+h)}")
        for h in (0, 1): a(f"v_cvt_pk_bf16_f32 v{self.hXT+2*jt+h}, v{A_+4*jt+2*h}, v{A_+4*jt+2*h+1}")

    def s3(self):
        self.C.mark(); self.H.mark()
        C, H = self.C, self.H
        C.colsum(V(128), self.cCS3, self.cOUT)
        C.poll(0, self.cF, self.cP, mid=[lambda: C.colsum(V(192), self.cCS3+4, self.cOUT)]); C.ts()
        def w4ref():
            C.a(f"""
    v_lshlrev_b32 v118, 7, v{vLANE}
    s_and_b32 s{sTCH}, s{sGRP}, 3
    s_lshl_b32 s{sTCH}, s{sTCH}, 5
    s_add_u32 s{sTCH}, s{sTCH}, s{sNT}
    s_mul_i32 s{sTCH}, s{sTCH}, 14336
    s_add_u32 s{sTCH}, s{sTCH}, {W4:#x}""")
            C.vm(f"buffer_load_dword v119, v118, {WS}, s{sTCH} offen")
        def w4ref2():
            C.a(f"s_add_u32 s{sTCH}, s{sTCH}, 6144")
            C.vm(f"buffer_load_dword v119, v118, {WS}, s{sTCH} offen")
        C.load_gemm(C.act_issue(), side={3: [w4ref], 5: [w4ref2]} if self.opt.get('w4ref') else None, tag='s3')
        C.set_act(H_)
        self.stat_publish(ST1)
        H.cons_gemm(V(64), self.hACC, self.hBP, tag="s3"); H.ts()
        for i in range(8): H.unpack(self.hXT+i, self.hRES+2*i)
        for jt in range(4): self.add_pack(jt, self.hRES+4*jt)
        H.cstore([self.tile_store(jt) for jt in range(4)])
        self.prod_stats(self.hACC)
        for i in range(8): H.unpack(self.hXT+i, self.hRES+2*i)
        H.flag(1, 6); H.ts()
        H.a("s_waitcnt lgkmcnt(0)"); H.bar()
        self.sync_check()
    def s4(self):
        self.C.mark(); self.H.mark()
        C, H = self.C, self.H; a = H.a
        C.poll(1, self.cF, self.cP, mid=[self.pubfin]); C.ts()
        load, comp = self.cons_stats(ST1, ACT, True)
        C.load_gemm(C.act_issue(), side={-1: [load], 3: comp[:7], 4: comp[7:14], 5: comp[14:21], 6: comp[21:],
                                         (7, 'pre'): [lambda: C.wait_ld(C.wseq)]}, tag='s4')
        if self.opt.get('uref'):
            C.a(f"v_lshlrev_b32 v118, 7, v{vLANE}\n s_mul_i32 s{sTCH}, s{sNT}, {40*128}\n s_add_u32 s{sTCH}, s{sTCH}, s{sAR}\n s_add_u32 s{sTCH}, s{sTCH}, {U_ + 0x10000:#x}\n s_mov_b32 exec_hi, 0xff")
            C.vm(f"buffer_load_dword v119, v118, {WS}, s{sTCH} offen")
            C.a("s_mov_b64 exec, -1")
        H.colsum(V(128), self.hCS1, self.hX)
        H.tile_soff(sT4, T_)
        a(f"""
    v_lshrrev_b32 v6, 5, v{vLANE}
    v_lshlrev_b32 v6, 5, v6
    v_and_b32 v7, 0x1f, v{vD}
    v_add_u32 v{self.hX+4}, v6, v7                ; halo: (g>>1)*32 + (t&1)*16 + (g&1)*8
    s_lshl_b32 s{sT3}, s{sNT}, 6
    s_add_u32 s{sT3}, s{sT3}, s{sAR}
    v_and_b32 v7, 0xff, v{vL16}
    v_add_u32 v7, {ACT}, v7""")
        sr = H.stat_reads(self.hSTAT, 7, False, self.hR1)
        H.cons_gemm(V(128), self.hACC, self.hBP, side={6: sr[:4], 7: sr[4:]}, tag="s4"); H.ts()
        A_, XT, ST = self.hACC, self.hXT, self.hSTAT
        H.wait_ld(H.stseq)
        for x in H.gelu2((A_, self.hCS1, ST, XT), (A_+12, self.hCS1, ST+12, XT+6), self.hTMP, True): a(x)
        Lh, L1 = H.lab("nohalo"), H.lab("side1")
        a(f"""
    s_bitcmp1_b32 s{sMEM}, 1
    s_cbranch_scc1 {L1}
    s_cmp_eq_u32 s{sGRP}, 31
    s_cbranch_scc1 {Lh}
    s_add_u32 s{sT3}, s{sT3}, {HALO+GA:#x}
    s_mov_b32 exec_lo, 0xc000c000
    s_mov_b32 exec_hi, 0xc000c000
    buffer_store_dwordx2 {P(XT+6)}, v{self.hX+4}, {WS}, s{sT3} offen sc1
    s_branch {Lh}""")
        a.label(L1)
        a(f"""
    s_cmp_eq_u32 s{sGRP}, 0
    s_cbranch_scc1 {Lh}
    s_sub_u32 s{sT3}, s{sT3}, {GA-HALO:#x}
    s_mov_b32 exec_lo, 0x00030003
    s_mov_b32 exec_hi, 0x00030003
    buffer_store_dwordx2 {P(XT)}, v{self.hX+4}, {WS}, s{sT3} offen sc1""")
        a.label(Lh)
        a("s_mov_b64 exec, -1")
        H.cstore([self.tile_store(0), self.tile_store(3)])
        for x in H.gelu2((A_+4, self.hCS1, ST+4, XT+2), (A_+8, self.hCS1, ST+8, XT+4), self.hTMP, True): a(x)
        H.cstore([self.tile_store(1), self.tile_store(2)])
        H.flag(2, 6); H.ts()
        self.sync_check()
    def s5(self):
        self.C.mark(); self.H.mark()
        C, H = self.C, self.H; a = C.a; x = self.cT; T = self.cTMP
        C.set_act(T_)
        a(f"""
    s_lshl_b32 s{sT1}, s{sW}, 9
    s_add_u32 s{sT1}, s{sT1}, s{sAR}
    s_add_u32 s{sT1}, s{sT1}, {HALO:#x}
    v_and_b32 v{x+2}, 0x1ff, v{vL16}
    s_cmp_eq_u32 s{sW}, 0
    s_cselect_b32 s{sT3}, -16, 0
    s_cselect_b32 s{sT4}, 0xaaaaaaaa, -1
    s_cmp_eq_u32 s{sW}, 1
    s_cselect_b32 s{sT3}, {63*16}, s{sT3}
    s_cselect_b32 s{sT4}, 0x55555555, s{sT4}
    s_cmp_eq_u32 s{sW}, 3
    s_cselect_b32 s{sT3}, {62*16}, s{sT3}
    s_lshl_b32 s{sT2}, s{sW}, 14
    s_add_u32 s{sT3}, s{sT3}, s{sT2}
    s_add_u32 s{sT3}, s{sT3}, {ACT}
    v_lshrrev_b32 v{x+1}, 1, v{vLANE}
    v_lshlrev_b32 v{x+1}, 10, v{x+1}
    v_and_b32 v{x+3}, 1, v{vLANE}
    v_lshl_add_u32 v{x+1}, v{x+3}, 4, v{x+1}
    v_add_u32 v{x+1}, s{sT3}, v{x+1}
    s_lshl_b32 s{sPF}, s{sMEM}, 3
    s_add_u32 s{sPF}, s{sPF}, s{sW}
    s_mul_i32 s{sPF}, s{sPF}, {28*1024}
    s_add_u32 s{sPF}, s{sPF}, {W4 + 20*1024:#x}
    s_lshl_b32 s{sPL}, s{sW}, 13""")
        C.poll(2, self.cF, self.cP, mid=[]); C.ts()
        shifts = (1, -1, 2, -2)
        masks = ((0xfffffffe, 0xffffffff), (0xffffffff, 0x7fffffff), (0xfffffffc, 0xffffffff), (0xffffffff, 0x3fffffff))
        def pre(c):
            g = c >> 1
            if c & 1 == 0: a(f"s_add_i32 s{sG}, s{sG}, {-16*shifts[g] + (16*shifts[g-1] if g else 0)}")
            a(f"s_mov_b32 exec_lo, {masks[g][0]:#x}" if masks[g][0] != 0xffffffff else f"s_mov_b32 exec_hi, {masks[g][1]:#x}")
        hs = {}
        hload = f"buffer_load_dwordx4 {vr(T)}, v{x+2}, {WS}, s{sT1} offen sc1"
        stg = C.frags(8, sPF, lds=sPL) + C.E(f"s_add_u32 s{sPF}, s{sPF}, {4*28*1024 - 8192}\n s_add_u32 s{sPL}, s{sPL}, {32768 - 8192}") + C.frags(8, sPF, lds=sPL)
        C.load_gemm(C.act_issue(pre=pre, post=lambda c: a("s_mov_b64 exec, -1")),
                    side={2: [lambda: hs.__setitem__(0, C.vm(hload))], 3: stg[:2], 4: stg[2:4], 5: stg[4:6], 6: stg[6:10]}, tag='s5')
        L0, Lr, L2 = C.lab("hchk"), C.lab("hre"), C.lab("hok")
        C.wait_vm(hs[0])
        a.label(L0)
        a(f"v_max_u32 v{x}, v{T}, v{T+1}\n v_max3_u32 v{x}, v{x}, v{T+2}, v{T+3}\n v_cmp_eq_u32 vcc, -1, v{x}\n s_cbranch_vccnz {Lr}")
        a.label(L2)
        C.ool.append((Lr, [f"s_add_u32 s{sCNT}, s{sCNT}, 1", f"s_cmp_gt_u32 s{sCNT}, {SPIN}", f"s_cbranch_scc1 {L2}",
                           hload, "s_waitcnt vmcnt(0)", f"s_branch {L0}"]))
        C.setvcc()
        a(f"s_mov_b32 exec_lo, s{sT4}\n s_mov_b32 exec_hi, 0\n ds_write_b128 v{x+1}, {vr(T)}\n s_mov_b64 exec, -1\n s_waitcnt lgkmcnt(0)")
        C.bar()
        C.run(stg[10:14]); self.stg_rest = stg[14:]
        C.set_act(X1)
        self.stat_publish(ST3)
        a = H.a; ST, RES, R1 = self.hSTAT, self.hRES, self.hR1
        a(f"s_lshl_b32 s{sT1}, s{sW}, 14\n v_add_u32 v7, s{sT1}, v{vL16}")
        H.lds2reg(V(128), 16, 7)
        for jt in range(4):
            a(f"v_mul_f32 v6, v{ST+4*jt}, v{R1+jt}")
            for i in range(4): a(f"v_fma_f32 v{ST+4*jt+i}, v{RES+4*jt+i}, v{R1+jt}, -v6")
        H.tile_soff(sT4, X1)
        a("s_waitcnt lgkmcnt(0)")
        H.colsum(V(128), self.hCS3, self.hX)
        H.cons_gemm(V(192), self.hACC, self.hBP, defer=lambda ks: 3 if (ks >> 2) & 1 else 0, tag="s5"); H.ts()
        for jt in range(4): self.add_pack(jt, ST+4*jt)
        H.cstore([self.tile_store(jt) for jt in range(4)])
        self.prod_stats(self.hACC)
        for i in range(8): H.unpack(self.hXT+i, self.hACC+2*i)
        H.flag(3, 6)
        a("s_waitcnt lgkmcnt(0)"); H.bar()
        for i in range(8): a(f"v_pk_add_f32 {P(RES+2*i)}, {P(RES+2*i)}, {P(self.hACC+2*i)}")
        H.ts()
        self.sync_check()

    def capture(self, S, fn):
        keep = S.a.lines; S.a.lines = []
        fn()
        got = S.a.lines; S.a.lines = keep
        return [(lambda x=x: S.a(x)) for x in got]
    def s6(self):
        self.C.mark(); self.H.mark()
        C, H = self.C, self.H
        PK = bool(self.opt.get("s6pk"))
        for S in (C, H):
            isC = S is C; a = S.a
            vBa, vBb, vDa, vDb, vS = (124, 125, 126, 127, 14) if isC else (self.hCS1, self.hCS1+1, self.hCS1+2, self.hCS1+3, self.hR1)
            ACCS = [self.cACC + 4*i for i in range(8)] if isC else [self.hACC + 4*i for i in range(4)] + [self.hX, self.hX+4]
            BP = self.cBP if isC else self.hBP
            ST, CS, TMP, OUT = (self.cSTAT, self.cCS3, self.cTMP, self.cOUT) if isC else (self.hSTAT, self.hCS3, self.hTMP, self.hXT)
            W = (V(128), V(192))
            def setup():
                a(f"""
    v_xor_b32 v{vBa}, s{sORD}, v{vB}
    v_xor_b32 v{vBb}, 256, v{vBa}
    v_xor_b32 v{vDa}, s{sORD}, v{vD}
    v_xor_b32 v{vDb}, 256, v{vDa}
    v_and_b32 v{vS}, 0xff, v{vL16}
    v_add_u32 v{vS}, {HI}, v{vS}
    v_xor_b32 v{vS}, s{sORD}, v{vS}
    v_xor_b32 v{vS+1}, 256, v{vS}
    s_mul_i32 s{sU0}, s{sMEM}, {14*2048}
    s_add_u32 s{sU0}, s{sU0}, s{sAR}
    s_add_u32 s{sU0}, s{sU0}, {U_:#x}
    s_lshr_b32 s{sU1}, s{sW}, 1
    s_add_u32 s{sU1}, s{sU1}, 12
    s_lshl_b32 s{sU1}, s{sU1}, 11
    s_add_u32 s{sU1}, s{sU1}, s{sU0}
    s_mul_i32 s{sT3}, s{sW}, {3*2048}
    s_add_u32 s{sU0}, s{sU0}, s{sT3}
    s_lshl_b32 s{sW4}, s{sMEM}, 3
    s_add_u32 s{sW4}, s{sW4}, s{sW8}
    s_lshl_b32 s{sT3}, s{sW4}, 2
    v_mov_b32 v{vMYF}, s{sT3}
    s_mul_i32 s{sW4}, s{sW4}, {28*1024}
    s_add_u32 s{sW4}, s{sW4}, {W4:#x}
""")
                if isC: a(f"s_add_u32 s{sU1}, s{sU0}, 2048")
                else: a(f"s_add_u32 s{sU0}, s{sU0}, 4096")
            tilesA = [(j, n) for j in (0, 1) for n in ((0, 1) if isC or j == 0 else (0,))]
            tilesB = [(j, n) for j in (2, 3) for n in ((0, 1) if isC or j == 2 else (0,))]
            acc = {t: ACCS[i] for i, t in enumerate(tilesA + tilesB)}
            rs = {}
            slot = lambda s, j: BP + 16*(s & 1) + 4*j
            def rd(s, j): rs[(s, j)] = S.ld(f"ds_read_b128 {vr(slot(s, j))}, v{vBb if j & 1 else vBa} offset:{4096*s + 512*(j>>1)}")
            def mf(s, j, n): a(f"v_mfma_f32_16x16x32_bf16 {vr(acc[(j, n)])}, {W[n](s)}, {vr(slot(s, j))}, {'0' if s == 0 else vr(acc[(j, n)])}")
            wreg = lambda f: vr(128 + 4*(f >> 1) + 64*(f & 1))
            S.wreg = wreg
            w4 = S.frags(20, sW4, dst=wreg)
            stg = []
            sr = S.stat_reads(ST, vS, True)
            def ustore(j, n, r):
                return f"buffer_store_dwordx2 {P(r)}, v{vDb if j & 1 else vDa}, {WS}, s{(sU0, sU1)[n]} offen offset:{512*(j>>1)}"
            k2 = [0]
            def gel(ts_):
                o = OUT + 4*(k2[0] & 1); k2[0] += 1
                arg = [(acc[t], CS+4*t[1], ST+4*t[0], o+2*i) for i, t in enumerate(ts_)]
                z = S.gelu2(*arg, TMP, True) if len(ts_) == 2 else S.gelu(*arg[0], TMP, True)
                for y in z: a(y)
                if self.opt.get("usc1"):
                    for i, t in enumerate(ts_): S.vm(ustore(*t, o+2*i) + " sc1")
                else: S.cstore([ustore(*t, o+2*i) for i, t in enumerate(ts_)])
                return S.nvm - 1
            tiles = tilesA + tilesB
            if isC:
                S.poll(3, self.cF, self.cP, mid=[self.pubfin]); S.ts()
                load, comp = self.cons_stats(ST3, HI, False)
                issue = S.act_issue(); seqs = {}
                for c in range(3): seqs[c] = issue(c)
                load(); setup()
                S.wait_vm(seqs[0])
            else:
                a(f"s_and_b32 s{sT1}, s{sW}, 2\n s_lshl_b32 s{sT1}, s{sT1}, 13\n s_add_u32 s{sT1}, s{sT1}, {HI}\n v_add_u32 v7, s{sT1}, v{vL16}")
                S.lds2reg(V(192), 16, 7)
                setup()
                a("s_waitcnt lgkmcnt(0)")
                S.colsum(V(192), CS+4, self.hX)
                a("s_setprio 0")
            S.bar()
            for j in range(4): rd(0, j)
            BAR = {1: 1, 3: 3, 7: 7}
            nt = len(tiles)
            for s in range(16):
                items = []
                if isC:
                    if s == 0: items = [(lambda c=c: seqs.__setitem__(c, issue(c))) for c in (3, 4, 5)]
                    if s == 1: items = [(lambda c=c: seqs.__setitem__(c, issue(c))) for c in (6, 7)]
                    if s == 2: items = self.stg_rest + [lambda: seqs.__setitem__(7, S.lastf)]
                    items = items + {3: comp[:7], 4: comp[7:14], 5: comp[14:]}.get(s, [])
                if s == 8: items = items + sr
                if s == 13: items = S.E(f"s_lshl_b32 s{sT1}, s{sW8}, 13\n v_add_u32 v7, s{sT1}, v{vL16}")
                if s >= 14: items = [(lambda i=i: S.ld(f"ds_read_b128 {wreg(20+i)}, v7 offset:{1024*i}")) for i in range(4*(s-14), 4*(s-14)+4)]
                if 3 <= s < 13: items = [w4.pop(0)] + items[:len(items)//2] + [w4.pop(0)] + items[len(items)//2:]
                if s in BAR:
                    if isC:
                        S.wait_vm(seqs[BAR[s]])
                        if s == 7: S.wait_ld(S.wseq)
                    S.bar()
                for i, (j, n) in enumerate(tiles):
                    if n == 0: S.wait_ld(rs[(s, j)])
                    mf(s, j, n)
                    if n == 0 and s + 1 < 16: rd(s+1, j)
                    S.run(items[i*len(items)//nt:(i+1)*len(items)//nt])
                if s % 4 == 3: S.ts("s6")
            assert not w4
            vF8, vPp = (self.cF, self.cP) if isC else (vBa, self.hR1+2)
            S.f7 = (vF8, vPp)
            a(f"""
    s_setprio 1
    s_mul_i32 s{sB}, s{sW8}, {7*4096}
    s_add_u32 s{sB}, s{sB}, s{sAR}
    s_add_u32 s{sB}, s{sB}, {U_ - ACT:#x}
    v_and_b32 v{vF8}, 7, v{vLANE}
    v_lshlrev_b32 v{vF8}, 2, v{vF8}
    s_lshl_b32 s{sT1}, s{sW8}, 5
    v_add_u32 v{vF8}, s{sT1}, v{vF8}""")
            gel(tilesA[:2]); sa = gel(tilesA[2:])
            a("s_setprio 0")
            S.ts()
            gel(tilesB[:2])
            S.flag(4, 6, seq=sa)
            S.sb = gel(tilesB[2:])
            S.ts()
        self.sync_check()

    def s7(self):
        self.C.mark(); self.H.mark()
        C, H = self.C, self.H
        for S in (C, H):
            isC = S is C; a = S.a
            wreg = S.wreg
            vF8, vPp = S.f7
            if isC:
                vWr, vRD, vO = [8, 9, 10, 11], 12, 13
                ring = [self.cBP + 4*i for i in range(8)]
                accx = lambda p, m: self.cACC + 16*(p & 1) + 4*m
                rb = [80 + 4*k for k in range(8)]
            else:
                vWr, vRD, vO = [self.hX+4+i for i in range(4)], 7, vXO
                ring = [self.hBP + 4*i for i in range(8)]
                accx = lambda p, m: self.hACC + 4*m if p & 1 else (184, 188, 248, 252)[m]
                rb = [80, 84, 88, 92, 104, 108, 112, 116]
            NR = len(ring); x = rb[0]
            def setup():
                a(f"""
    v_and_b32 v{x}, 15, v{vLANE}
    v_lshrrev_b32 v{x+1}, 4, v{vLANE}
    v_xor_b32 v{x+2}, v{x}, v{x+1}                ; t ^ g""")
                for m in range(4):
                    a(f"""
    s_add_u32 s{sT1}, s{sW}, {m}
    s_and_b32 s{sT1}, s{sT1}, 3
    s_lshl_b32 s{sT2}, s{sT1}, 2
    v_xor_b32 v{vWr[m]}, s{sT2}, v{x+2}
    v_lshlrev_b32 v{vWr[m]}, 4, v{vWr[m]}
    v_lshl_add_u32 v{vWr[m]}, v{x+1}, 8, v{vWr[m]}
    s_lshl_b32 s{sT1}, s{sT1}, 10
    s_lshl_b32 s{sT2}, s{sW8}, 12
    s_add_u32 s{sT1}, s{sT1}, s{sT2}
    v_add_u32 v{vWr[m]}, s{sT1}, v{vWr[m]}""")
                a(f"""
    s_lshl_b32 s{sT1}, s{sW}, 2
    v_add_u32 v{x+1}, s{sT1}, v{x+1}
    v_xor_b32 v{vRD}, v{x+1}, v{x}
    v_lshlrev_b32 v{vRD}, 4, v{vRD}
    v_lshl_add_u32 v{vRD}, v{x}, 8, v{vRD}
    v_lshlrev_b32 v{vO}, 10, v{x+1}
    v_lshl_add_u32 v{vO}, v{x}, 3, v{vO}
    s_lshl_b32 s{sT4}, s{sGRP}, 16
    s_lshl_b32 s{sT1}, s{sMEM}, 7
    s_add_u32 s{sT4}, s{sT4}, s{sT1}""")
                if not isC: a(f"s_add_u32 s{sT4}, s{sT4}, 16384\n v_add_u32 v{vRD}, 32768, v{vRD}")
                a("s_waitcnt lgkmcnt(0)")
            S.poll(4, vF8, vPp, mid=[setup])
            S.flag(6, 6, seq=S.sb)
            S.ts()
            seq = {}
            def load(u):
                p, i = u // 7, u % 7
                seq[u] = S.vm(f"buffer_load_dwordx4 {vr(ring[u % NR])}, v{vB}, {WS}, s{sB} offen offset:{256*p} sc1")
                a(f"s_add_u32 s{sB}, s{sB}, 4096" if i < 6 else f"s_sub_u32 s{sB}, s{sB}, {6*4096}")
            def Wr(p):
                it = []
                for m in range(4):
                    if p == 2: it.append(lambda m=m: a(f"v_add_u32 v{vWr[m]}, 0x10000, v{vWr[m]}"))
                    it.append(lambda m=m: S.ld(f"ds_write_b128 v{vWr[m]}, {vr(accx(p, m))} offset:{32768*(p&1)}"))
                return it
            bar = [lambda: (a("s_waitcnt lgkmcnt(0)"), S.bar())]
            st = {}
            def Rd(p):
                it = [lambda: a(f"v_add_u32 v{vRD}, 0x10000, v{vRD}")] if p >= 2 else []
                return it + [(lambda k=k: st.__setitem__(p, S.ld(f"ds_read_b128 {vr(rb[k])}, v{vRD} offset:{4096*k}"))) for k in range(8)]
            def Ad(p, pk):
                r = rb
                pairs = [(r[0], r[1]), (r[2], r[3]), (r[4], r[5]), (r[6], r[7]), (r[0], r[2]), (r[4], r[6]), (r[0], r[4])]
                ins = []
                for y, z in pairs:
                    if pk: ins += [f"v_pk_add_f32 {P(y+h)}, {P(y+h)}, {P(z+h)}" for h in (0, 2)]
                    else: ins += [f"v_add_f32 v{y+h}, v{y+h}, v{z+h}" for h in range(4)]
                ins += [f"v_cvt_pk_bf16_f32 v{r[1]+h}, v{r[0]+2*h}, v{r[0]+2*h+1}" for h in (0, 1)]
                return [lambda: S.wait_ld(st[p])] + [(lambda z=z: a(z)) for z in ins] + \
                       [lambda: S.vm(f"buffer_store_dwordx2 {P(r[1])}, v{vO}, {OS}, s{sT4} offen {self.opt.get('osc', 'nt')}"), lambda: a(f"s_add_u32 s{sT4}, s{sT4}, 32768")]
            la = int(self.opt.get('la7', 4))
            pb = {}
            ltxt = f"buffer_load_dword v{vPp}, v{vF8}, {WS}, s{sT0} offen sc1"
            def chkB():
                L0, Lr = S.lab("bchk"), S.lab("bre")
                S.wait_vm(pb[0])
                a.label(L0)
                a(f"v_cmp_ne_u32 vcc, 1, v{vPp}\n s_cbranch_vccnz {Lr}")
                S.ool.append((Lr, [f"s_add_u32 s{sCNT}, s{sCNT}, 1", f"s_cmp_gt_u32 s{sCNT}, {SPIN}", "s_cbranch_scc1 main_exit",
                                   ltxt, "s_waitcnt vmcnt(0)", f"s_branch {L0}"]))
            side = {6: bar, 8: Wr(0), 15: Wr(1), 16: bar, 22: Wr(2)}
            side[13 - 2*la] = side.get(13 - 2*la, []) + [lambda: pb.__setitem__(0, S.vm(ltxt))]
            side[13 - la] = side.get(13 - la, []) + [chkB]
            p0 = 0 if isC else 1
            ad = Ad(p0, False)
            side[17] = Rd(p0); side[18] = ad[:11]; side[19] = ad[11:22]; side[20] = ad[22:]
            for u in range(la): load(u)
            for u in range(28):
                p, i = u // 7, u % 7
                S.wait_vm(seq[u])
                items = list(side.get(u, []))
                per = -(-len(items) // 3)
                for m in range(4):
                    c0 = vr(self.hRES+4*p) if (m == 0 and not isC) else '0'
                    if not (self.opt.get('x7b') and m): a(f"v_mfma_f32_16x16x32_bf16 {vr(accx(p, m))}, {wreg(4*i+m)}, {vr(ring[u % NR])}, {c0 if i == 0 else vr(accx(p, m))}")
                    if m == 0:
                        if u + la < 28: load(u + la)
                    else:
                        for _ in range(per):
                            if items: items.pop(0)()
                if u % 7 == 6: S.ts("s7")
            S.run(Wr(3) + bar)
            S.ts()
            S.run(Rd(p0+2) + Ad(p0+2, True))
            S.ts("s7")
        self.sync_check()

    def dump_ts(self, S):
        a = S.a
        a("s_waitcnt vmcnt(0)")
        S.ts()
        a(f"""
    s_waitcnt lgkmcnt(0)
    s_lshl_b32 s{sT0}, s2, 3
    s_add_u32 s{sT0}, s{sT0}, s{sW8}
    s_lshl_b32 s{sT0}, s{sT0}, 7
    s_add_u32 s{sT0}, s{sT0}, {DBG:#x}
    v_mov_b32 v7, 0
    s_mov_b64 exec, 1""")
        assert S.nts <= 28
        for i in range(S.nts):
            a(f"v_mov_b32 v6, s{tsreg(i)}\n buffer_store_dword v6, v7, {WS}, s{sT0} offen offset:{4*i}")
        a(f"v_mov_b32 v6, s{sSLOW}\n buffer_store_dword v6, v7, {WS}, s{sT0} offen offset:124")
        a(f"v_mov_b32 v6, s{sXCC}\n buffer_store_dword v6, v7, {WS}, s{sT0} offen offset:120")

    def gen(self):
        C, H = self.C, self.H
        self.prologue(); self.qstage(); self.attention()
        for name in ("s3", "s4", "s5", "s6", "s7"): getattr(self, name)()
        for S in (C, H):
            S.a.label(f"M_{S.name}_{S.nmark}")
            if self.dbg: self.dump_ts(S)
            if S is C: S.a.label("main_exit")
            S.a("s_endpgm")
        tail = Asm()
        self.fallback()
        for S in (C, H):
            for L, body in S.ool:
                S.a.label(L)
                for x in body: S.a(x)
        C.a.label("main_end")
        H.a.lines = self.head + H.a.lines
        txt = H.a.finish() + C.a.finish()
        txt += """
.section .rodata,"a"
.p2align 6
.amdhsa_kernel """ + NAME + """_kernel
  .amdhsa_next_free_vgpr 256
  .amdhsa_next_free_sgpr 102
  .amdhsa_accum_offset 256
  .amdhsa_group_segment_fixed_size 0
  .amdhsa_kernarg_size 104
  .amdhsa_user_sgpr_count 2
  .amdhsa_user_sgpr_kernarg_segment_ptr 1
  .amdhsa_system_sgpr_workgroup_id_x 1
.end_amdhsa_kernel
"""
        return txt
```

```python
from asmlib import Asm
from layout import *
import struct, os

def f32(x):
    return "0x%08x" % struct.unpack('<I', struct.pack('<f', x))[0]

K2_LDS = 163840
LOG2E = 1.4426950408889634
QSCALE = 0.25 * LOG2E
GC1 = -2.0 * 0.7978845608028654 * LOG2E
SPIN = 0x40000
ACT = 65536
XST = ACT + 5*8192 + 256
HI = 131072
LA = 5

sW, sGRP, sMEM, sSLOW, sXCC, sW8 = 3, 16, 17, 18, 45, 44
WS, XS, OS = "s[4:7]", "s[8:11]", "s[12:15]"
sT0, sT1, sT2, sT3, sT4, sT5 = 20, 21, 22, 23, 24, 25
sG, sL, sPF, sCNT, sFLG, sAR = 26, 27, 28, 29, 30, 31
sU0, sU1 = 32, 33
sB = 34
sKVW, sTAG, sRND = 40, 41, 33
sTCH = 35
sNT, sORD = 38, 39
sVM = "s[40:41]"
sPL, sW4 = 42, 43
sPP, sPR, sPS, sPD = 46, 56, 60, 65
def tsreg(i): return 70 + 2*i if i < 16 else 46 + 2*(i-16)
vLANE, vL16, vB, vD, vMYF, vXO = 0, 1, 2, 3, 4, 5

def vr(b, n=4): return f"v[{b}:{b+n-1}]"
def V(b): return lambda ks: vr(b+4*ks)
def P(r): return f"v[{r}:{r+1}]"

class Stream:
    uid = 0
    def __init__(self, name, dbg, tags):
        self.name, self.dbg, self.tags = name, dbg, tags
        self.a = Asm(); self.nvm = self.nld = self.nts = self.nbar = 0
        self.ool = []; self.nmark = 0; self.seclen = {}
    def vm(self, text):
        self.a(text); self.nvm += 1; return self.nvm - 1
    def wait_vm(self, seq): self.a(f"s_waitcnt vmcnt({min(self.nvm - 1 - seq, 63)})")
    def ld(self, text):
        self.a(text); self.nld += 1; return self.nld - 1
    def wait_ld(self, seq): self.a(f"s_waitcnt lgkmcnt({min(self.nld - 1 - seq, 15)})")
    def bar(self): self.a("s_barrier"); self.nbar += 1
    def ts(self, tag="main"):
        if self.dbg and tag in self.tags:
            self.a(f"{'s_memtime' if self.dbg == 'cyc' else 's_memrealtime'} s[{tsreg(self.nts)}:{tsreg(self.nts)+1}]")
            self.nts += 1
    def lab(self, p):
        Stream.uid += 1; return f"L_{p}_{Stream.uid}"
    def mark(self):
        i = self.nmark; self.nmark += 1
        L = f"M_{self.name}_{i}"
        n = self.seclen.get(L)
        if n is not None and n < 4000:
            self.a(f"s_branch {L}"); self.a(f".p2align 12,,{n + 64}")
        self.a.label(L)
    def E(self, text): return [(lambda x=x: self.a(x)) for x in text.split("\n") if x.strip()]
    def set_wbase(self, base, ks, dst=sPF):
        self.a(f"s_mul_i32 s{dst}, s{sNT}, {ks*1024}\n s_add_u32 s{dst}, s{dst}, {base:#x}")
    def set_w3(self, slot):
        if slot < 3: self.a(f"s_mul_i32 s{sPF}, s{sW}, 3\n s_add_u32 s{sPF}, s{sPF}, {slot}")
        else: self.a(f"s_lshr_b32 s{sPF}, s{sW}, 1\n s_add_u32 s{sPF}, s{sPF}, 12")
        self.a(f"s_mul_i32 s{sT5}, s{sMEM}, 14\n s_add_u32 s{sPF}, s{sPF}, s{sT5}\n s_lshl_b32 s{sPF}, s{sPF}, 14\n s_add_u32 s{sPF}, s{sPF}, {W3:#x}")
    def set_act(self, base):
        self.a(f"s_lshl_b32 s{sL}, s{sW}, 11\n s_add_u32 s{sG}, s{sAR}, s{sL}\n s_add_u32 s{sG}, s{sG}, {base:#x}\n s_add_u32 s{sL}, s{sL}, {ACT}")
    def tile_soff(self, s, base):
        self.a(f"s_lshl_b32 s{s}, s{sNT}, 11\n s_add_u32 s{s}, s{s}, s{sAR}\n s_add_u32 s{s}, s{s}, {base:#x}")
    def xo_soff(self, s):
        self.a(f"s_lshl_b32 s{s}, s{sNT}, 5\n s_lshl_b32 s{sT5}, s{sGRP}, 16\n s_add_u32 s{s}, s{s}, s{sT5}")
    def act_issue(self, sc="sc1", pre=None, post=None):
        def issue(c):
            self.a(f"s_mov_b32 m0, s{sL}")
            if pre: pre(c)
            self.vm(f"buffer_load_dwordx4 v{vL16}, {WS}, s{sG} offen {sc} lds")
            last = self.vm(f"buffer_load_dwordx4 v{vL16}, {WS}, s{sG} offen offset:1024 {sc} lds")
            if post: post(c)
            self.a(f"s_add_u32 s{sG}, s{sG}, 8192\n s_add_u32 s{sL}, s{sL}, 8192")
            return last
        return issue
    def frags(self, n, sreg, dst=None, lds=None, sc="sc1"):
        def mk(i):
            def f():
                if dst is not None:
                    r = self.vm(f"buffer_load_dwordx4 {dst(i)}, v{vL16}, {WS}, s{sreg} offen offset:{1024*(i&3)} {sc}")
                else:
                    self.a(f"s_mov_b32 m0, s{lds}")
                    r = self.vm(f"buffer_load_dwordx4 v{vL16}, {WS}, s{sreg} offen offset:{1024*(i&3)} {sc} lds")
                if i & 3 == 3:
                    self.a(f"s_add_u32 s{sreg}, s{sreg}, 4096")
                    if lds is not None: self.a(f"s_add_u32 s{lds}, s{lds}, 4096")
                self.lastf = r
                return r
            return f
        return [mk(i) for i in range(n)]
    def run(self, items):
        for f in items: f()
    def setvcc(self): self.a(f"s_mov_b64 vcc, s[{sSLOW}:{sSLOW+1}]")
    NT = True
    def cstore(self, st, nt=True):
        Ls, Le = self.lab("cs"), self.lab("ce")
        self.a(f"s_cbranch_vccnz {Ls}")
        for x in st: self.vm(x + (" nt" if nt and self.NT else ""))
        self.a.label(Le)
        self.ool.append((Ls, [x + " sc1" for x in st] + [f"s_branch {Le}"]))
    def flag(self, stage, t, vf=vMYF, seq=None):
        self.a(f"s_add_u32 s{sT0}, s{sFLG}, {stage*8192}\n v_mov_b32 v{t}, 1")
        if seq is None: self.a("s_waitcnt vmcnt(0)")
        else: self.wait_vm(seq)
        self.a("s_mov_b64 exec, 1")
        self.cstore([f"buffer_store_dword v{t}, v{vf}, {WS}, s{sT0} offen"], nt=False)
        self.a("s_mov_b64 exec, -1")
    def poll(self, stage, vf, p0, mid=()):
        a = self.a; L, Ld = self.lab("poll"), self.lab("pdone"); p1 = p0 + 1
        a(f"s_add_u32 s{sT0}, s{sFLG}, {stage*8192}\n s_mov_b32 s{sCNT}, 0")
        q = self.vm(f"buffer_load_dword v{p0}, v{vf}, {WS}, s{sT0} offen sc1")
        self.run(mid)
        self.vm(f"buffer_load_dword v{p1}, v{vf}, {WS}, s{sT0} offen sc1")
        self.wait_vm(q)
        a(f"v_cmp_ne_u32 vcc, 1, v{p0}\n s_cbranch_vccz {Ld}")
        a.label(L)
        a(f"""
    buffer_load_dword v{p0}, v{vf}, {WS}, s{sT0} offen sc1
    s_waitcnt vmcnt(1)
    v_cmp_ne_u32 vcc, 1, v{p1}
    s_add_u32 s{sCNT}, s{sCNT}, 1
    s_cbranch_vccz {Ld}
    buffer_load_dword v{p1}, v{vf}, {WS}, s{sT0} offen sc1
    s_cmp_gt_u32 s{sCNT}, {SPIN}
    s_cbranch_scc1 main_exit
    s_waitcnt vmcnt(1)
    v_cmp_ne_u32 vcc, 1, v{p0}
    s_cbranch_vccnz {L}""")
        a.label(Ld)
        self.setvcc()
    def regcheck(self, r, z):
        a = self.a; L, L0 = self.lab("reg"), self.lab("reg0")
        a(f"s_mov_b32 s{sCNT}, 0")
        a.label(L0)
        a(f"""
    v_readfirstlane_b32 s{sT1}, v{r}
    s_and_b32 s{sT2}, s{sT1}, 0x0f0f0f0f
    s_lshr_b32 s{sT3}, s{sT1}, 4
    s_and_b32 s{sT3}, s{sT3}, 0x0f0f0f0f
    s_add_u32 s{sT2}, s{sT2}, s{sT3}
    s_mul_i32 s{sT2}, s{sT2}, 0x01010101
    s_lshr_b32 s{sT2}, s{sT2}, 24
    s_cmp_lg_u32 s{sT2}, 8
    s_cbranch_scc1 {L}
    s_lshl_b32 s{sT2}, s{sXCC}, 2
    s_lshl_b32 s{sT2}, 8, s{sT2}
    s_cmp_lg_u32 s{sT1}, s{sT2}
    s_cselect_b64 s[{sSLOW}:{sSLOW+1}], -1, 0""")
        self.ool.append((L, [f"s_add_u32 s{sT0}, s{sFLG}, {5*8192}", f"buffer_load_dword v{r}, v{z}, {WS}, s{sT0} offen sc1",
                             f"s_add_u32 s{sCNT}, s{sCNT}, 1", f"s_cmp_gt_u32 s{sCNT}, {SPIN}", "s_cbranch_scc1 main_exit",
                             "s_waitcnt vmcnt(0)", f"s_branch {L0}"]))
    def regload(self, r, z):
        self.a(f"s_add_u32 s{sT0}, s{sFLG}, {5*8192}\n v_mov_b32 v{z}, 0")
        return self.vm(f"buffer_load_dword v{r}, v{z}, {WS}, s{sT0} offen sc1")
    def load_gemm(self, issue, la=LA, side=None, tag=None, ramp=True):
        side = side or {}
        seqs = {}
        if tag: self.ts(tag)
        ni = 3
        for c in range(ni): seqs[c] = issue(c)
        self.run(side.get(-1, []))
        if tag: self.ts(tag)
        for c in range(8):
            self.wait_vm(seqs[c])
            self.run(side.get((c, 'pre'), []))
            if tag: self.ts(tag)
            self.bar()
            for _ in range(2 if (c < 2 and ramp) else 1):
                if ni < 8: seqs[ni] = issue(ni); ni += 1
            self.run(side.get(c, []))
    def cons_gemm(self, areg, ACC, BP, side=None, prewait=None, defer=None, tag=None, baddr=None, prebar=None, postbar=None, onebar=False):
        a = self.a
        side = {k: list(v) for k, v in (side or {}).items()}
        work = [[(2*c+s, jt) for s in range(2) for jt in range(4) if not (defer and defer(2*c+s) == jt)] for c in range(8)]
        if defer: work += [[(ks, defer(ks)) for ks in range(8)], [(ks, defer(ks)) for ks in range(8, 16)]]
        nch = len(work); rs = {}; started = set()
        def read(c, i):
            ks, jt = work[c][i]
            r, off = baddr(ks, jt) if baddr else (vB, 4096*ks + 256*jt)
            rs[(c, i)] = self.ld(f"ds_read_b128 {vr(BP+4*i)}, v{r} offset:{off}")
        if tag: self.ts(tag)
        if prebar: prebar(0)
        self.bar()
        if postbar: postbar(0)
        for i in range(len(work[0])): read(0, i)
        if tag: self.ts(tag)
        for c in range(nch):
            nxt = c + 1 < nch
            if c + 1 < 8 and prebar: prebar(c+1)
            if (c + 1 < 8 or (c + 1 == 8 and defer)) and not onebar: self.bar()
            if c + 1 < 8 and postbar: postbar(c+1)
            if prewait: prewait(c)
            items = side.pop(c, [])
            n = len(work[c]); nn = len(work[c+1]) if nxt else 0
            per = -(-len(items) // n)
            for i in range(n, nn): read(c+1, i)
            for i in range(n):
                ks, jt = work[c][i]
                if i % 2 == 0: self.wait_ld(rs[(c, min(i+1, n-1))])
                cc = vr(ACC+4*jt) if jt in started else "0"
                started.add(jt)
                a(f"v_mfma_f32_16x16x32_bf16 {vr(ACC+4*jt)}, {areg(ks)}, {vr(BP+4*i)}, {cc}")
                if i < nn: read(c+1, i)
                for _ in range(per):
                    if items: items.pop(0)()
            if tag: self.ts(tag)
        assert not side
    def gelu(self, acc, cs, S, out, t, pk):
        I = []
        if pk:
            for i in (0, 2): I.append(f"v_pk_fma_f32 {P(acc+i)}, {P(S)}, {P(cs+i)}, {P(acc+i)} op_sel_hi:[0,1,1] neg_lo:[1,0,0] neg_hi:[1,0,0]")
            for i in (0, 2): I.append(f"v_pk_mul_f32 {P(t+i)}, {P(acc+i)}, {P(acc+i)}")
            for i in (0, 2): I.append(f"v_pk_fma_f32 {P(t+i)}, {P(S+2)}, {P(t+i)}, {P(S+2)} op_sel:[1,0,0] op_sel_hi:[1,1,0]")
            for i in (0, 2): I.append(f"v_pk_mul_f32 {P(t+i)}, {P(t+i)}, {P(acc+i)}")
            for i in range(4): I.append(f"v_exp_f32 v{t+i}, v{t+i}")
            for i in (0, 2): I.append(f"v_pk_fma_f32 {P(t+i)}, {P(S)}, {P(t+i)}, {P(S)} op_sel:[1,0,1] op_sel_hi:[1,1,1]")
            for i in range(4): I.append(f"v_rcp_f32 v{t+i}, v{t+i}")
            for i in (0, 2): I.append(f"v_pk_mul_f32 {P(acc+i)}, {P(acc+i)}, {P(t+i)}")
        else:
            for i in range(4): I.append(f"v_fma_f32 v{acc+i}, -v{S}, v{cs+i}, v{acc+i}")
            for i in range(4): I.append(f"v_mul_f32 v{t+i}, v{acc+i}, v{acc+i}")
            for i in range(4): I.append(f"v_fma_f32 v{t+i}, v{t+i}, v{S+3}, v{S+2}")
            for i in range(4): I.append(f"v_mul_f32 v{t+i}, v{t+i}, v{acc+i}")
            for i in range(4): I.append(f"v_exp_f32 v{t+i}, v{t+i}")
            for i in range(4): I.append(f"v_fma_f32 v{t+i}, v{t+i}, v{S+1}, v{S+1}")
            for i in range(4): I.append(f"v_rcp_f32 v{t+i}, v{t+i}")
            for i in range(4): I.append(f"v_mul_f32 v{acc+i}, v{acc+i}, v{t+i}")
        return I + [f"v_cvt_pk_bf16_f32 v{out}, v{acc}, v{acc+1}", f"v_cvt_pk_bf16_f32 v{out+1}, v{acc+2}, v{acc+3}"]
    def gelu2(self, x, y, t, pk):
        p, q = self.gelu(*x, t, pk), self.gelu(*y, t+4, pk)
        return [z for pair in zip(p, q) for z in pair]
    def colsum(self, areg, dst, ones):
        for i in range(4): self.a(f"v_mov_b32 v{ones+i}, 0x3f803f80")
        for ks in range(16):
            self.a(f"v_mfma_f32_16x16x32_bf16 {vr(dst)}, {areg(ks)}, {vr(ones)}, {'0' if ks == 0 else vr(dst)}")
    def unpack(self, src, dst): self.a(f"v_lshlrev_b32 v{dst}, 16, v{src}\n v_and_b32 v{dst+1}, 0xffff0000, v{src}")
    def lds2reg(self, dst, n, va):
        for i in range(n): self.ld(f"ds_read_b128 {dst(i)}, v{va} offset:{1024*i}")
    def stat_reads(self, STAT, va, order, R1=None):
        it = []
        for jt in range(4):
            if order: x = f"ds_read_b128 {vr(STAT+4*jt)}, v{va+(jt&1)} offset:{512*(jt>>1)}"
            else: x = f"ds_read_b128 {vr(STAT+4*jt)}, v{va} offset:{256*jt}"
            it.append(lambda x=x: setattr(self, 'stseq', self.ld(x)))
        if R1 is not None:
            for jt in range(4):
                it.append(lambda jt=jt: setattr(self, 'stseq', self.ld(f"ds_read_b32 v{R1+jt}, v{va} offset:{1024 + 256*jt}")))
        return it

class Main:
    def __init__(self, dbg=False, tags=('main',), opt=None, seclen=None):
        self.dbg = dbg; self.opt = opt or {}
        Stream.uid = 0; Stream.NT = not self.opt.get('nont')
        self.C = Stream('C', dbg, tags); self.H = Stream('H', dbg, tags)
        self.C.seclen = self.H.seclen = seclen or {}
    def sync_check(self): assert self.C.nbar == self.H.nbar, (self.C.nbar, self.H.nbar)

    def prologue(self):
        C, H = self.C, self.H; a = C.a
        a(f".text\n.globl {NAME}_kernel\n.p2align 12\n.type {NAME}_kernel,@function")
        a.label(f"{NAME}_kernel")
        a.label("main_kernel")
        a(f"""
    s_cmp_ge_u32 s2, 256
    s_cbranch_scc1 main_exit
    s_load_dwordx2 s[4:5], s[0:1], 96
    s_load_dwordx2 s[8:9], s[0:1], 0
    s_load_dwordx2 s[12:13], s[0:1], 80
    s_load_dwordx2 s[{sPR}:{sPR+1}], s[0:1], 8
    s_load_dwordx4 s[32:35], s[0:1], 16
    s_load_dwordx2 s[{sPP}:{sPP+1}], s[0:1], 32
    s_load_dwordx8 s[{sPP+2}:{sPP+9}], s[0:1], 48""")
        if self.dbg:
            a(f"{'s_memtime' if self.dbg == 'cyc' else 's_memrealtime'} s[70:71]"); C.nts = H.nts = 1
        a(f"""
    v_lshrrev_b32 v1, 6, v0
    v_and_b32 v{vLANE}, 63, v0
    v_readfirstlane_b32 s{sW8}, v1
    s_and_b32 s{sT0}, s2, 7
    s_lshr_b32 s{sT1}, s2, 3
    s_lshl_b32 s{sGRP}, s{sT0}, 2
    s_lshr_b32 s{sT2}, s{sT1}, 3
    s_add_u32 s{sGRP}, s{sGRP}, s{sT2}
    s_and_b32 s{sMEM}, s{sT1}, 7
    s_and_b32 s{sW}, s{sW8}, 3
    s_mul_i32 s{sAR}, s{sGRP}, {GA:#x}
    s_lshl_b32 s{sNT}, s{sMEM}, 2
    s_add_u32 s{sNT}, s{sNT}, s{sW}
    v_lshlrev_b32 v{vL16}, 4, v{vLANE}
    s_getpc_b64 s[42:43]""")
        a.label("L_pc0")
        a(f"""
    s_sub_u32 s42, s42, L_pc0-main_kernel
    s_subb_u32 s43, s43, 0
    s_lshl_b32 s{sT1}, s{sT1}, 3
    s_add_u32 s{sT1}, s{sT1}, s{sW8}
    s_lshl_b32 s{sT1}, s{sT1}, 8
    v_and_b32 v9, 1, v{vLANE}
    v_lshlrev_b32 v9, 7, v9
    v_add_u32 v9, s{sT1}, v9
    v_min_u32 v9, main_end-main_kernel-4, v9
    global_load_dword v255, v9, s[42:43]
    s_mov_b32 s6, {WS_USED:#x}
    s_mov_b32 s7, 0x20000
    v_lshrrev_b32 v8, 3, v{vLANE}
    s_mov_b32 s10, {2048*1024:#x}
    s_mov_b32 s11, 0x20000
    s_mov_b32 s{sPR+3}, 0x20000
    s_cmp_lt_u32 s{sW8}, 4
    s_cbranch_scc1 C_entry""")
        self.head = a.lines; a.lines = []
        a(".p2align 8"); a.label("C_entry")
    def setup_common(self, S, t):
        S.a(f"""
    s_mov_b32 s14, {2048*1024:#x}
    s_mov_b32 s15, 0x20000
    s_getreg_b32 s{sXCC}, hwreg(HW_REG_XCC_ID, 0, 3)
    v_and_b32 v{t}, 15, v{vLANE}                  ; t
    v_lshrrev_b32 v{t+1}, 4, v{vLANE}             ; g
    v_lshlrev_b32 v{vB}, 10, v{t+1}
    v_lshl_add_u32 v{vB}, v{t}, 4, v{vB}
    v_add_u32 v{vB}, {ACT}, v{vB}                 ; ACT + g*1024 + t*16
    v_lshrrev_b32 v{vD}, 1, v{t+1}
    v_lshlrev_b32 v{vD}, 10, v{vD}
    v_lshl_add_u32 v{vD}, v{t}, 4, v{vD}
    v_and_b32 v{t+2}, 1, v{t+1}
    v_lshl_add_u32 v{vD}, v{t+2}, 3, v{vD}        ; (g>>1)*1024 + t*16 + (g&1)*8
    s_lshl_b32 s{sT0}, s{sNT}, 2
    v_mov_b32 v{vMYF}, s{sT0}
    s_lshl_b32 s{sFLG}, s{sGRP}, 8
    s_add_u32 s{sFLG}, s{sFLG}, {FLAGS:#x}
    v_lshlrev_b32 v{t+2}, 10, v{t}
    v_lshl_add_u32 v{vXO}, v{t+1}, 3, v{t+2}      ; t*1024 + g*8
    s_and_b32 s{sORD}, s{sW}, 1
    s_lshl_b32 s{sORD}, s{sORD}, 8""")

    cT = 6
    S0, S1, NEGM, OA, OB, QA, QB, vIDX, vKA, vVA, vREG = 24, 40, 56, 72, 88, 16, 20, 13, 14, 15, 11
    KVR = 104
    NB = 1
    SCR = 16384
    def x_addr(self, S, dst, t, x):
        S.a(f"""
    v_lshrrev_b32 v{x}, 4, v{vLANE}
    v_and_b32 v{x+1}, 7, v{vLANE}
    v_xor_b32 v{x+1}, v{x+1}, v{x}
    v_lshlrev_b32 v{x+1}, 4, v{x+1}
    v_lshl_add_u32 v{dst}, v{t}, 7, v{x+1}
    v_add_u32 v{dst}, 32768, v{dst}""")
    def qstage(self):
        C, H = self.C, self.H; a = C.a; t = self.cT
        WQR, QACC, QBP = 192, 24, 40
        XB, WB = 32768, 98304
        QS = 144
        a(f"""
    v_bfe_u32 v9, v{vLANE}, 4, 1
    s_and_b32 s{sT0}, s{sW}, 1
    s_lshl_b32 s{sT0}, s{sT0}, 1
    v_or_b32 v9, s{sT0}, v9
    v_bfe_u32 v10, v{vLANE}, 1, 2
    v_xor_b32 v9, v9, v10
    v_lshlrev_b32 v9, 5, v9
    v_and_b32 v10, 1, v{vLANE}
    v_lshl_add_u32 v9, v10, 4, v9
    v_lshl_add_u32 v134, v8, 10, v9
    s_mov_b32 s{sPR+2}, 0x80000""")
        if not self.opt.get('hprep'): self.prep_setup(C, 152)
        self.setup_common(C, t)
        a(f"""
    s_mov_b32 s40, 0xffff
    s_mov_b32 s41, 0xffff
    v_mov_b32 v{self.vIDX}, 0xdddddddd
    v_mov_b32 v{self.vKA}, v{vL16}
    v_lshrrev_b32 v{t+1}, 5, v{vLANE}
    v_lshlrev_b32 v{t+1}, 8, v{t+1}
    v_lshl_add_u32 v{self.vVA}, v{t}, 4, v{t+1}   ; hA*256 + d*16""")
        for i in range(32): a(f"v_mov_b32 v{self.OA+i}, 0")
        a(f"v_and_b32 v{t+1}, 31, v{vLANE}\n v_cmp_eq_u32 vcc, 16, v{t+1}\n v_mov_b32 v{t+1}, 0x3f803f80")
        for b in range(2):
            for i in range(8): a(f"v_cndmask_b32 v{self.KVR+12*b+4+i}, 0, v{t+1}, vcc")
        a(f"""
    s_waitcnt lgkmcnt(0)
    s_and_b32 s5, s5, 0xffff
    s_and_b32 s13, s13, 0xffff
    s_and_b32 s{sPR+1}, s{sPR+1}, 0xffff
    s_lshl_b32 s{sG}, s{sW}, 13
    s_lshl_b32 s{sT0}, s{sMEM}, 7
    s_add_u32 s{sG}, s{sG}, s{sT0}
    s_lshl_b32 s{sL}, s{sW}, 10""")
        for i in range(16):
            a(f"s_add_u32 m0, s{sL}, {WB + 4096*i}")
            C.vm(f"buffer_load_dwordx4 v134, s[{sPR}:{sPR+3}], s{sG} offen lds")
            if i < 15: a(f"s_add_u32 s{sG}, s{sG}, 32768")
        wqseq = C.nvm - 1
        if not self.opt.get('hprep'): self.prep_load(C, 152, 164)
        self.x_addr(C, 130, t, t+1)
        a(f"""
    v_xor_b32 v131, 64, v130
    v_bfe_u32 v{t+2}, v{vLANE}, 2, 2
    v_lshl_add_u32 v132, v{t+1}, 3, v{t+2}
    v_lshlrev_b32 v132, 7, v132
    v_and_b32 v{t+1}, 1, v{t+1}
    v_lshrrev_b32 v{t+2}, 1, v{t+2}
    v_lshl_add_u32 v{t+1}, v{t+1}, 1, v{t+2}
    v_xor_b32 v{t+1}, s{sW}, v{t+1}
    v_lshl_add_u32 v132, v{t+1}, 5, v132
    v_and_b32 v{t+2}, 3, v{vLANE}
    v_lshl_add_u32 v132, v{t+2}, 3, v132
    v_add_u32 v132, {WB}, v132
    v_lshlrev_b32 v133, 3, v{t}""")
        ONE, CSQ = 136, 140
        for i in range(4): a(f"v_mov_b32 v{ONE+i}, 0x3f803f80")
        PW = self.opt.get("pw", "after")
        if PW == "before":
            a("s_waitcnt vmcnt(0)"); self.prep_finish(C, 152, 164)
        else: C.wait_vm(wqseq)
        def postbar(c):
            for ks in (2*c, 2*c+1):
                C.ld(f"ds_read_b64_tr_b16 {P(WQR+4*ks)}, v132 offset:{4096*ks}")
                C.ld(f"ds_read_b64_tr_b16 {P(WQR+4*ks+2)}, v132 offset:{4096*ks+512}")
        side = {c: [(lambda ks=ks: a(f"v_mfma_f32_16x16x32_bf16 {vr(CSQ)}, {vr(WQR+4*ks)}, {vr(ONE)}, {'0' if ks == 0 else vr(CSQ)}")) for ks in (2*c, 2*c+1)] for c in range(8)}
        side[5] += [(lambda jt=jt: C.ld(f"ds_read_b64 {P(QS+2*jt)}, v133 offset:{self.SCR + 128*jt}")) for jt in range(4)]
        C.cons_gemm(V(WQR), QACC, QBP, side=side, baddr=lambda ks, jt: (130 + (ks & 1), 8192*(ks >> 1) + 2048*jt),
                    postbar=postbar, tag="q", onebar=True)
        C.ts()
        QA, QB = self.QA, self.QB
        for jt in range(4): a(f"v_mul_f32 v{QS+2*jt+1}, {f32(QSCALE)}, v{QS+2*jt+1}")
        for jt in range(4):
            for h in (0, 2): a(f"v_pk_fma_f32 {P(QACC+4*jt+h)}, {P(QS+2*jt)}, {P(CSQ+h)}, {P(QACC+4*jt+h)} op_sel_hi:[0,1,1] neg_lo:[1,0,0] neg_hi:[1,0,0]")
        for jt in range(4):
            for h in (0, 2): a(f"v_pk_mul_f32 {P(QACC+4*jt+h)}, {P(QS+2*jt)}, {P(QACC+4*jt+h)} op_sel:[1,0] op_sel_hi:[1,1]")
        for jt in range(4):
            a(f"v_cvt_pk_bf16_f32 v{QA+2*jt}, v{QACC+4*jt}, v{QACC+4*jt+1}")
            a(f"v_cvt_pk_bf16_f32 v{QA+2*jt+1}, v{QACC+4*jt+2}, v{QACC+4*jt+3}")
        a(f"v_mov_b32 v{t}, 0\n v_mov_b32 v{t+1}, 0")
        for q in (QA, QB): a(f"v_permlane16_swap_b32 v{q}, v{q+2}\n v_permlane16_swap_b32 v{q+1}, v{q+3}")
        for i in range(4): a(f"v_dot2_f32_bf16 v{t}, v{QA+i}, v{QA+i}, v{t}\n v_dot2_f32_bf16 v{t+1}, v{QB+i}, v{QB+i}, v{t+1}")
        a(f"""
    v_permlane32_swap_b32 v{t}, v{t+1}
    v_add_f32 v{t}, v{t}, v{t+1}
    v_mov_b32 v{t+1}, v{t}
    v_permlane32_swap_b32 v{t}, v{t+1}
    v_max_f32 v{t}, v{t}, v{t+1}
    v_sqrt_f32 v{t}, v{t}
    v_mov_b32 v133, {self.SCR + 512}""")
        if PW != "before" and not self.opt.get('hprep'):
            a("s_waitcnt vmcnt(0)"); self.prep_finish(C, 152, 164)
        C.ts("q"); C.bar(); C.ts("q")
        a(f"""
    ds_read_b64 v[128:129], v133
    s_waitcnt lgkmcnt(0)
    v_mul_f32 v{self.NEGM}, v{t}, v128
    v_readfirstlane_b32 s{sSLOW}, v129""")
        for i in range(1, 16): a(f"v_mov_b32 v{self.NEGM+i}, v{self.NEGM}")
        a(f"s_mov_b32 s{sSLOW+1}, s{sSLOW}")

        a = H.a; v = self.PV
        XF, WF = 64, 128
        a(f"""
    s_setprio 3
    v_and_b32 v9, 7, v{vLANE}
    v_xor_b32 v9, v9, v8
    v_lshlrev_b32 v9, 4, v9
    v_lshl_add_u32 v19, v8, 10, v9
    s_lshl_b32 s{sPF}, s{sGRP}, 16
    s_lshl_b32 s{sT0}, s{sW}, 14
    s_add_u32 s{sPF}, s{sPF}, s{sT0}
    s_lshl_b32 s{sL}, s{sW}, 11
    s_add_u32 s{sL}, s{sL}, {XB}
    s_lshr_b32 s{sKVW}, s{sMEM}, 1
    s_mov_b32 s{sPR+2}, 16384
    v_mov_b32 v7, 0
    s_bitcmp1_b32 s{sMEM}, 0
    s_waitcnt lgkmcnt(0)
    s_cselect_b64 s[{sPR}:{sPR+1}], s[34:35], s[32:33]
    s_and_b32 s5, s5, 0xffff
    s_and_b32 s9, s9, 0xffff
    s_and_b32 s13, s13, 0xffff
    s_and_b32 s{sPR+1}, s{sPR+1}, 0xffff
    s_mov_b32 s{sT0}, {TAGW:#x}
    buffer_load_dword v47, v7, {WS}, s{sT0} offen sc1""")
        for c in range(8):
            a(f"""
    s_add_u32 s{sT0}, s{sMEM}, {c}
    s_and_b32 s{sT0}, s{sT0}, 7
    s_lshl_b32 s{sG}, s{sT0}, 7
    s_add_u32 s{sG}, s{sG}, s{sPF}
    s_lshl_b32 s{sT0}, s{sT0}, 13
    s_add_u32 m0, s{sT0}, s{sL}""")
            H.vm(f"buffer_load_dwordx4 v19, {XS}, s{sG} offen lds")
            a(f"s_add_u32 s{sG}, s{sG}, {8192 - 1024}")
            xseq = H.vm(f"buffer_load_dwordx4 v19, {XS}, s{sG} offen offset:1024 lds")
        self.setup_common(H, 16)
        L = H.lab("nokv1")
        a(f"s_cmp_lg_u32 s{sKVW}, s{sW}\n s_cbranch_scc1 {L}")
        for i in range(4):
            a(f"s_mov_b32 m0, {4096*i}\n s_mov_b32 s{sT0}, {4096*i}")
            for k in range(4): a(f"buffer_load_dwordx4 v{vL16}, s[{sPR}:{sPR+3}], s{sT0} offen offset:{1024*k} lds")
        a.label(L)
        if self.opt.get('hprep'): self.prep_setup(H, 200, HI)
        self.x_addr(H, 40, 16, 42)
        a(f"s_lshl_b32 s{sT0}, s{sW}, 11\n v_add_u32 v40, s{sT0}, v40\n v_xor_b32 v41, 64, v40")
        a("v_mov_b32 v32, 0\n v_mov_b32 v33, 0\n v_mov_b32 v34, 0\n v_mov_b32 v35, 0\n v_mov_b32 v60, 0x3f803f80\n v_mov_b32 v61, 0x3f803f80\n v_mov_b32 v62, 0x3f803f80\n v_mov_b32 v63, 0x3f803f80")
        H.ts("q")
        L, L2 = H.lab("noinit"), H.lab("initd")
        a(f"s_cmp_lg_u32 s{sKVW}, s{sW}\n s_cbranch_scc1 {L}")
        a(f"""
    v_mov_b32 v48, 0
    v_mov_b32 v49, 0
    v_mov_b32 v50, 0
    v_mov_b32 v51, 0
    v_lshrrev_b32 v52, 1, v{vLANE}
    v_lshlrev_b32 v52, 13, v52
    v_and_b32 v53, 1, v{vLANE}
    v_lshl_add_u32 v52, v53, 4, v52
    s_lshl_b32 s{sT0}, s{sMEM}, 5
    s_add_u32 s{sT0}, s{sT0}, s{sFLG}
    s_mov_b64 exec, 0x3fff
    buffer_store_dwordx4 v[48:51], v52, {WS}, s{sT0} offen sc1
    s_lshl_b32 s{sT0}, s2, 7
    s_add_u32 s{sT0}, s{sT0}, {PFLAG:#x}
    s_mov_b64 exec, 1
    buffer_store_dword v48, v7, {WS}, s{sT0} offen sc1
    s_mov_b64 exec, -1
    v_mov_b32 v52, -1
    v_mov_b32 v53, -1
    v_mov_b32 v54, -1
    v_mov_b32 v55, -1
    s_lshl_b32 s{sT0}, s{sMEM}, 10
    s_add_u32 s{sT0}, s{sT0}, s{sAR}
    s_add_u32 s{sT0}, s{sT0}, {ST1:#x}
    buffer_store_dwordx4 v[52:55], v{vL16}, {WS}, s{sT0} offen sc1
    s_bfe_u32 s{sT1}, s{sMEM}, 0x10001
    s_mul_i32 s{sT1}, s{sT1}, 31
    s_cmp_eq_u32 s{sT1}, s{sGRP}
    s_cselect_b32 s{sT1}, 0, -1
    v_mov_b32 v56, s{sT1}
    v_mov_b32 v57, s{sT1}
    v_mov_b32 v58, s{sT1}
    v_mov_b32 v59, s{sT1}
    s_lshl_b32 s{sT0}, s{sMEM}, 8
    s_add_u32 s{sT0}, s{sT0}, s{sAR}
    s_add_u32 s{sT0}, s{sT0}, {HALO:#x}
    s_mov_b64 exec, 0xffff
    buffer_store_dwordx4 v[56:59], v{vL16}, {WS}, s{sT0} offen sc1
    s_mov_b64 exec, -1""")
        a(f"s_waitcnt vmcnt(4)\n s_branch {L2}")
        a.label(L)
        a("s_waitcnt vmcnt(0)")
        a.label(L2)
        H.ts("q")
        rs = [H.ld(f"ds_read_b128 {vr(XF+4*ks)}, v{40 + (ks & 1)} offset:{8192*(ks >> 1)}") for ks in range(16)]
        L = H.lab("nokv2")
        a(f"""
    s_cmp_lg_u32 s{sKVW}, s{sW}
    s_cbranch_scc1 {L}
    v_bfe_u32 v42, v{vLANE}, 2, 2
    v_lshl_add_u32 v42, v17, 3, v42
    v_lshlrev_b32 v42, 5, v42
    v_and_b32 v43, 3, v{vLANE}
    v_lshl_add_u32 v42, v43, 3, v42""")
        for ks in range(16):
            a(f"ds_read_b64_tr_b16 {P(WF+4*ks)}, v42 offset:{1024*ks}\n ds_read_b64_tr_b16 {P(WF+4*ks+2)}, v42 offset:{1024*ks+128}")
        a.label(L)
        for ks in range(16):
            if ks % 2 == 0: H.wait_ld(rs[ks+1])
            a(f"v_mfma_f32_16x16x32_bf16 v[36:39], v[60:63], {vr(XF+4*ks)}, {'0' if ks == 0 else 'v[36:39]'}")
            for i in range(4): a(f"v_dot2_f32_bf16 v{32+i}, v{XF+4*ks+i}, v{XF+4*ks+i}, v{32+i}")
        a(f"""
    v_add_f32 v32, v32, v33
    v_add_f32 v34, v34, v35
    v_add_f32 v45, v32, v34
    v_mov_b32 v44, v45
    v_permlane32_swap_b32 v44, v45
    v_add_f32 v45, v44, v45
    v_mov_b32 v44, v45
    v_permlane16_swap_b32 v44, v45
    v_add_f32 v45, v44, v45
    v_mul_f32 v44, 0x3b000000, v36
    v_mul_f32 v45, 0x3b000000, v45
    v_fma_f32 v45, -v44, v44, v45
    v_max_f32 v45, 0, v45
    v_add_f32 v45, 0x3727c5ac, v45
    v_rsq_f32 v45, v45
    s_lshl_b32 s{sT0}, s{sW}, 7
    v_lshl_add_u32 v46, v16, 3, s{sT0}
    ds_write_b64 v46, v[44:45] offset:{self.SCR}""")
        a(f"v_readfirstlane_b32 s{sTAG}, v47\n s_add_u32 s{sTAG}, s{sTAG}, 1")
        L, Lv, Lp = H.lab("nokv3"), H.lab("isv"), H.lab("pub")
        a(f"""
    s_waitcnt lgkmcnt(0)
    s_cmp_lg_u32 s{sKVW}, s{sW}
    s_cbranch_scc1 {L}
    s_lshl_b32 s{sT1}, s{sGRP}, 1
    s_lshr_b32 s{sT2}, s{sW}, 1
    s_add_u32 s{sT1}, s{sT1}, s{sT2}
    s_lshl_b32 s{sT1}, s{sT1}, 11
    s_add_u32 s{sT1}, s{sT1}, {KV:#x}             ; tile32*2048
    v_lshrrev_b32 v42, 1, v17                     ; hA
    v_and_b32 v43, 0xff, v{vD}                    ; (t or d)*16 + (g&1)*8
    s_bitcmp1_b32 s{sMEM}, 0
    s_cbranch_scc1 {Lv}""")
        for ks in range(16):
            a(f"v_mfma_f32_16x16x32_bf16 v[48:51], {vr(WF+4*ks)}, {vr(XF+4*ks)}, {'0' if ks == 0 else 'v[48:51]'}")
            a(f"v_mfma_f32_16x16x32_bf16 v[52:55], {vr(WF+4*ks)}, v[60:63], {'0' if ks == 0 else 'v[52:55]'}")
        a(f"s_add_u32 s{sT1}, s{sT1}, s{sORD}\n v_lshl_add_u32 v43, v42, 9, v43")
        for i in range(4): a(f"v_fma_f32 v{48+i}, -v44, v{52+i}, v{48+i}")
        for i in range(4): a(f"v_mul_f32 v{48+i}, v{48+i}, v45")
        a(f"""
    v_cvt_pk_bf16_f32 v52, v48, v49
    v_cvt_pk_bf16_f32 v53, v50, v51
    v_mov_b32 v57, 0
    buffer_store_dwordx2 v[52:53], v43, {WS}, s{sT1} offen sc1
    v_dot2_f32_bf16 v57, v52, v52, v57
    v_dot2_f32_bf16 v57, v53, v53, v57
    v_mov_b32 v58, v57
    v_permlane32_swap_b32 v57, v58
    v_add_f32 v57, v57, v58
    v_mov_b32 v58, v57
    v_permlane16_swap_b32 v57, v58
    v_add_f32 v57, v57, v58""")
        for r in (8, 4, 2, 1): a(f"v_max_f32_dpp v57, v57, v57 row_ror:{r} row_mask:0xf bank_mask:0xf")
        a(f"s_branch {Lp}")
        a.label(Lv)
        a(f"v_lshl_add_u32 v46, v17, 5, s{sT0}\n ds_read_b128 v[32:35], v46 offset:{self.SCR}\n ds_read_b128 v[36:39], v46 offset:{self.SCR+16}")
        for ks in range(16):
            a(f"v_mfma_f32_16x16x32_bf16 v[48:51], {vr(XF+4*ks)}, {vr(WF+4*ks)}, {'0' if ks == 0 else 'v[48:51]'}")
            a(f"v_mfma_f32_16x16x32_bf16 v[52:55], v[60:63], {vr(WF+4*ks)}, {'0' if ks == 0 else 'v[52:55]'}")
        a(f"s_lshl_b32 s{sT2}, s{sORD}, 1\n s_add_u32 s{sT1}, s{sT1}, s{sT2}\n v_lshl_add_u32 v43, v42, 8, v43\n s_waitcnt lgkmcnt(0)")
        for i in range(4): a(f"v_fma_f32 v{48+i}, -v{32+2*i}, v{52+i}, v{48+i}")
        for i in range(4): a(f"v_mul_f32 v{48+i}, v{48+i}, v{33+2*i}")
        a(f"""
    v_cvt_pk_bf16_f32 v52, v48, v49
    v_cvt_pk_bf16_f32 v53, v50, v51
    v_mov_b32 v57, 0
    buffer_store_dwordx2 v[52:53], v43, {WS}, s{sT1} offen offset:1024 sc1""")
        a.label(Lp)
        a(f"""
    v_mov_b32 v56, s{sTAG}
    v_mov_b32 v58, s{sXCC}
    v_mov_b32 v59, s{sTAG}
    s_lshl_b32 s{sT0}, s{sGRP}, 3
    s_add_u32 s{sT0}, s{sT0}, s{sMEM}
    s_lshl_b32 s{sT0}, s{sT0}, 7
    s_add_u32 s{sT0}, s{sT0}, {KFLAG:#x}
    s_waitcnt vmcnt(0)
    s_mov_b64 exec, 1
    buffer_store_dwordx4 v[56:59], v7, {WS}, s{sT0} offen sc1
    s_mov_b64 exec, -1""")
        a.label(L)
        H.ts("q")
        a("s_setprio 0")
        H.bar()
        a(f"v_lshlrev_b32 v{self.TA}, 7, v{vLANE}\n v_and_b32 v46, 0xfff, v{self.TA}\n s_lshr_b32 s{sRND}, s{sGRP}, 2")
        self.kpoll(46, True)
        self.kv(1)
        a(f"""
    s_and_b32 s{sT0}, s{sGRP}, 3
    s_lshl_b32 s{sT0}, s{sT0}, 3
    s_lshl_b32 s{sT0}, 0xff, s{sT0}
    v_cmp_ne_u32 vcc, s{sXCC}, v50
    s_and_b32 s{sT0}, s{sT0}, vcc_lo
    s_cselect_b64 s[{sSLOW}:{sSLOW+1}], -1, 0""")
        for r in (8, 4, 2, 1): a(f"v_max_f32_dpp v49, v49, v49 row_ror:{r} row_mask:0xf bank_mask:0xf")
        a(f"""
    v_mov_b32 v50, v49
    v_permlane16_swap_b32 v49, v50
    v_max_f32 v49, v49, v50
    v_sqrt_f32 v49, v49
    v_mov_b32 v51, s{sSLOW}
    v_mul_f32 v50, -1.0, v49
    v_mov_b32 v46, {self.SCR + 512}
    ds_write_b64 v46, v[50:51]
    s_waitcnt lgkmcnt(0)""")
        H.ts("q")
        H.bar()
        self.kv01 = self.kvseq
        self.sync_check()
    TA = 18
    def kpoll(self, va, first=False):
        H = self.H; a = H.a; L = H.lab("kp")
        a(f"s_lshl_b32 s{sT0}, s{sRND}, 12\n s_add_u32 s{sT0}, s{sT0}, {KFLAG:#x}\n s_mov_b32 s{sCNT}, 0")
        a.label(L)
        a(f"""
    buffer_load_dwordx4 v[48:51], v{va}, {WS}, s{sT0} offen sc1
    s_add_u32 s{sCNT}, s{sCNT}, 1
    s_cmp_gt_u32 s{sCNT}, {SPIN}
    s_cbranch_scc1 main_exit
    s_waitcnt vmcnt(0)
    v_cmp_ne_u32 vcc, s{sTAG}, v48
    v_cmp_ne_u32 s[36:37], s{sTAG}, v51
    s_or_b64 vcc, vcc, s[36:37]
    s_cbranch_vccnz {L}""")
    nkv = 0
    def kv(self, n):
        H = self.H
        for r in range(n):
            H.a(f"""
    s_lshl_b32 s{sW4}, s{sRND}, 14
    s_lshl_b32 s{sPL}, s{sW}, 12
    s_add_u32 s{sW4}, s{sW4}, s{sPL}
    s_add_u32 s{sW4}, s{sW4}, {KV:#x}
    s_add_u32 m0, s{sPL}, {16384*self.nkv}
    s_add_u32 s{sRND}, s{sRND}, 1
    s_and_b32 s{sRND}, s{sRND}, 7""")
            self.nkv += 1
            for i in range(4): self.kvseq = H.vm(f"buffer_load_dwordx4 v{vL16}, {WS}, s{sW4} offen offset:{1024*i} sc1 lds")

    PV = 20
    def prep_setup(self, S, v, win=20480):
        a = S.a
        T0, T1, T2, T3 = sT0, sT1, sT2, sT3
        def dst(i, base): a(f"s_lshl_b32 s{sPD+i}, s{T2}, 10\n s_lshl_b32 s{T3}, s{sW}, 8\n s_add_u32 s{sPD+i}, s{sPD+i}, s{T3}\n s_add_u32 s{sPD+i}, s{sPD+i}, {base:#x}")
        def std(q, i, base, rows=True):
            a(f"""
    s_lshr_b32 s{T1}, s{q}, 3
    s_and_b32 s{T2}, s{q}, 7
    s_lshl_b32 s{sPS+i}, s{T1}, 15
    s_lshl_b32 s{T3}, s{T2}, 7
    s_add_u32 s{sPS+i}, s{sPS+i}, s{T3}""")
            if rows: a(f"s_lshl_b32 s{T3}, s{sW}, 13\n s_add_u32 s{sPS+i}, s{sPS+i}, s{T3}")
            if base is not None:
                a(f"s_lshl_b32 s{T2}, s{T2}, 6\n s_add_u32 s{T2}, s{T2}, s{T1}"); dst(i, base)
        def w4t(q, i, vd):
            std(q, i, None)
            a(f"""
    s_mul_i32 s{T2}, s{T2}, 56
    s_add_u32 s{T2}, s{T2}, s{T1}
    s_lshl_b32 s{T2}, s{T2}, 2
    s_mul_i32 s{T1}, s{T1}, 9363
    s_lshr_b32 s{T1}, s{T1}, 16
    v_subrev_u32 v{vd}, s{T1}, v{v+9}
    v_and_b32 v{vd}, 3, v{vd}
    v_lshl_add_u32 v{vd}, v{vd}, 10, v{v+10}""")
            dst(i, W4)
        def w3t(q, i):
            a(f"""
    s_mul_i32 s{T1}, s{q}, 2341
    s_lshr_b32 s{T1}, s{T1}, 16                   ; ks = q/28
    s_mul_i32 s{T2}, s{T1}, 28
    s_sub_u32 s{T2}, s{q}, s{T2}                  ; nb
    s_lshl_b32 s{T3}, s{T1}, 2
    s_add_u32 s{T3}, s{T3}, s{sW}
    s_mul_i32 s{sPS+i}, s{T3}, {8*3584}
    s_lshl_b32 s{T3}, s{T2}, 7
    s_add_u32 s{sPS+i}, s{sPS+i}, s{T3}
    s_lshl_b32 s{T2}, s{T2}, 6
    s_add_u32 s{T2}, s{T2}, s{T1}""")
            dst(i, W3)
        a(f"""
    v_lshrrev_b32 v{v+9}, 4, v{vLANE}             ; q
    v_and_b32 v{v+10}, 0xff, v{vL16}              ; i*16
    v_lshl_add_u32 v{v+4}, v{v+9}, 14, v{v+10}
    v_lshrrev_b32 v{v+7}, 3, v{vLANE}
    v_and_b32 v{v+8}, 0x7f, v{vL16}
    v_lshl_add_u32 v{v}, v{v+7}, 10, v{v+8}
    v_mul_u32_u24 v{v+1}, 3584, v{v+7}
    v_add_u32 v{v+1}, v{v+1}, v{v+8}""")
        w3t(2, 0); w4t(2, 1, v+5)
        L, Le = S.lab("pwo"), S.lab("pend")
        a(f"s_cmp_ge_u32 s2, 192\n s_cbranch_scc1 {L}\n s_add_u32 s{T0}, s2, 256")
        w3t(T0, 2); w4t(T0, 3, v+6)
        a(f"v_mov_b32 v{v+2}, v{v+1}\n v_mov_b32 v{v+3}, v{v}\n s_branch {Le}")
        a.label(L)
        a(f"s_sub_u32 s{T0}, s2, 192"); std(T0, 2, WO, rows=False)
        a(f"s_sub_u32 s{T0}, s2, 128"); std(T0, 3, WO, rows=False)
        a(f"""
    s_lshr_b32 s{T1}, s{sW}, 1
    s_lshl_b32 s{T1}, s{T1}, 4
    s_and_b32 s{T2}, s{sW}, 1
    s_lshl_b32 s{T2}, s{T2}, 2
    s_add_u32 s{T1}, s{T1}, s{T2}
    v_and_b32 v{v+2}, 4, v{v+7}
    v_add3_u32 v{v+2}, v{v+2}, v{v+7}, s{T1}
    v_lshl_add_u32 v{v+2}, v{v+2}, 10, v{v+8}
    v_mov_b32 v{v+3}, v{v+2}
    v_mov_b32 v{v+6}, v{v+4}""")
        a.label(Le)
        a(f"s_and_b32 s{T0}, s2, 127"); std(T0, 4, W1)
        a(f"""
    s_lshr_b32 s{T0}, s2, 7
    s_lshl_b32 s{T0}, s{T0}, 19
    s_add_u32 s{sPD+4}, s{sPD+4}, s{T0}
    s_mul_i32 s{T0}, s{sW}, 3072
    s_add_u32 s{T0}, s{T0}, {win}
    v_add_u32 v{v+7}, s{T0}, v{vL16}
    v_bfe_u32 v{v+8}, v{vLANE}, 2, 2
    v_lshlrev_b32 v{v+8}, 7, v{v+8}
    v_lshl_add_u32 v{v+8}, v{v+9}, 5, v{v+8}
    v_and_b32 v{v+9}, 3, v{vLANE}
    v_lshl_add_u32 v{v+8}, v{v+9}, 3, v{v+8}
    v_add_u32 v{v+8}, s{T0}, v{v+8}""")
    def prep_load(self, S, v, dst):
        a = S.a
        PR = f"s[{sPR}:{sPR+3}]"
        wo, w1, w2, w3, w4 = (f"s[{sPP+2*i}:{sPP+2*i+1}]" for i in range(5))
        big, small = 0x1c0000, 0x80000
        for i in range(5):
            if i < 2: a(f"s_mov_b64 s[{sPR}:{sPR+1}], {(w3, w4)[i]}\n s_mov_b32 s{sPR+2}, {big:#x}")
            elif i < 4:
                a(f"s_mov_b32 s{sT1}, {small:#x}\n s_cmp_ge_u32 s2, 192\n s_cselect_b64 s[{sPR}:{sPR+1}], {wo}, {(w3, w4)[i-2]}\n s_cselect_b32 s{sPR+2}, s{sT1}, {big:#x}")
            else: a(f"s_cmp_ge_u32 s2, 128\n s_cselect_b64 s[{sPR}:{sPR+1}], {w2}, {w1}\n s_mov_b32 s{sPR+2}, {small:#x}")
            a(f"s_and_b32 s{sPR+1}, s{sPR+1}, 0xffff")
            S.vm(f"buffer_load_dwordx4 {vr(dst+4*i)}, v{(v+1, v, v+2, v+3, v)[i]}, {PR}, s{sPS+i} offen")
    def prep_finish(self, S, v, d):
        a = S.a
        for grp in ((0, 1, 2), (3, 4)):
            for k, i in enumerate(grp): a(f"ds_write_b128 v{v+7}, {vr(d+4*i)} offset:{1024*k}")
            a("s_waitcnt lgkmcnt(0)")
            for k, i in enumerate(grp):
                a(f"ds_read_b64_tr_b16 {P(d+4*i)}, v{v+8} offset:{1024*k}\n ds_read_b64_tr_b16 {P(d+4*i+2)}, v{v+8} offset:{1024*k+512}")
            a("s_waitcnt lgkmcnt(0)")
        for i in range(5): S.vm(f"buffer_store_dwordx4 {vr(d+4*i)}, v{(v+4, v+5, v+4, v+6, v+4)[i]}, {WS}, s{sPD+i} offen sc1")

    hXT, hACC, hBP = 8, 16, 32
    hRES, hSTAT, hCS1, hR1, hTMP, hCS3, hX = 64, 80, 96, 100, 104, 112, 120
    UB = tuple(int(x) for x in os.environ.get('UB', '20,72,86,98,104').split(','))
    UBK = int(os.environ.get('UBK', '6'))
    def attention(self):
        C, H = self.C, self.H; a = C.a
        S0, S1, NEGM, OA, OB, QA, QB, vIDX, vKA, vVA = self.S0, self.S1, self.NEGM, self.OA, self.OB, self.QA, self.QB, self.vIDX, self.vKA, self.vVA
        kf = lambda t: self.KVR + 12*(t & 1)
        C.ts("at"); C.bar(); C.ts("at")
        a("s_setprio 1")
        def rdK(t): a(f"ds_read_b128 {vr(kf(t))}, v{vKA} offset:{(t&31)*2048}")
        def rdV(t):
            a(f"s_mov_b64 exec, {sVM}")
            a(f"ds_read_b128 {vr(kf(t)+4)}, v{vVA} offset:{(t&31)*2048+1024}")
            a(f"ds_read_b128 {vr(kf(t)+8)}, v{vVA} offset:{(t&31)*2048+1536}")
            a("s_mov_b64 exec, -1")
        def qk(u): a(f"v_mfma_f32_32x32x16_bf16 {vr((S0,S1)[u&1],16)}, {vr(kf(u>>1))}, {vr((QA,QB)[u&1])}, {vr(NEGM,16)}")
        def pv(u, h): a(f"v_smfmac_f32_32x32x32_bf16 {vr((OA,OB)[u&1],16)}, {vr(kf(u>>1)+4+4*h)}, {vr((S0,S1)[u&1]+8*h,8)}, v{vIDX}")
        def ex(u, lo, hi):
            for i in range(lo, hi): a(f"v_exp_f32 v{(S0,S1)[u&1]+i}, v{(S0,S1)[u&1]+i}")
        x = self.cT
        a(f"s_lshl_b32 s{sT0}, s{sW}, 13\n s_add_u32 s{sT0}, s{sT0}, {HI}\n v_add_u32 v{x}, s{sT0}, v{vL16}\n s_lshl_b32 s{sT0}, s{sW}, 14\n v_add_u32 v{x+1}, s{sT0}, v{vL16}")
        plan = {}
        for ub, f0, n, va in ((self.UB[1], 0, 8, x), (self.UB[2], 8, 16, x+1), (self.UB[3], 24, 8, x)):
            for i in range(n): plan.setdefault(ub + 1 + 2*(i // 4), []).append(f"ds_read_b128 {vr(128+4*(f0+i))}, v{va} offset:{1024*i}")
        rdK(0); rdV(0); rdK(1)
        a("s_waitcnt lgkmcnt(3)")
        qk(0)
        for u in range(128):
            t, q = u >> 1, u & 1
            if u % 8 == 0: C.ts("at")
            ex(u, 0, 2)
            if u > 0: pv(u-1, 1)
            ex(u, 2, 5)
            if u + 1 < 128: qk(u+1)
            if u == self.UBK: a("s_waitcnt vmcnt(0)")
            if u in self.UB or u == self.UBK: C.bar()
            if q == 0:
                if t + 1 < 64:
                    if t + 1 == 32: a(f"v_add_u32 v{vVA}, 0x10000, v{vVA}")
                    rdV(t+1)
                if t + 2 < 64:
                    if t + 2 == 32: a(f"v_add_u32 v{vKA}, 0x10000, v{vKA}")
                    rdK(t+2)
            for y in plan.pop(u, []): a(y)
            ex(u, 5, 10)
            if q == 0: a(f"s_waitcnt lgkmcnt({3 if t + 2 < 64 else (2 if t + 1 < 64 else 0)})")
            pv(u, 0)
            ex(u, 10, 16)
        assert not plan
        pv(127, 1)
        C.ts(); C.ts("at")
        t = self.cT
        a(f"""
    v_lshrrev_b32 v{t+1}, 5, v{vLANE}
    v_lshlrev_b32 v{t+1}, 10, v{t+1}
    v_and_b32 v{t+2}, 31, v{vLANE}
    v_lshl_add_u32 v{t+4}, v{t+2}, 4, v{t+1}""")
        C.tile_soff(sT1, O_)
        a(f"v_min_f32 v{t}, v{OA+8}, v{OB+8}\n v_max_f32 v{t+1}, v{OA+8}, v{OB+8}\n v_cmp_nle_f32 vcc, {f32(2.0**-80)}, v{t}\n s_mov_b32 s{sT2}, vcc_lo\n v_cmp_nge_f32 vcc, {f32(2.0**80)}, v{t+1}\n s_or_b32 s{sT2}, s{sT2}, vcc_lo\n s_cbranch_scc1 attn_redo")
        a.label("attn_done")
        a(f"v_mov_b32 v{OA+9}, v{OA+8}\n v_mov_b32 v{OB+9}, v{OB+8}\n v_permlane32_swap_b32 v{OA+8}, v{OA+9}\n v_permlane32_swap_b32 v{OB+8}, v{OB+9}")
        a(f"v_rcp_f32 v{t+2}, v{OA+8}\n v_rcp_f32 v{t+6}, v{OB+8}")
        for o, r in ((OA, t+2), (OB, t+6)):
            for i in range(4): a(f"v_pk_mul_f32 {P(o+2*i)}, {P(o+2*i)}, {P(r)} op_sel_hi:[1,0]")
            for i in range(4): a(f"v_cvt_pk_bf16_f32 v{o+i}, v{o+2*i}, v{o+2*i+1}")
        C.setvcc()
        C.cstore([f"buffer_store_dwordx4 {vr(OA)}, v{t+4}, {WS}, s{sT1} offen", f"buffer_store_dwordx4 {vr(OB)}, v{t+4}, {WS}, s{sT1} offen offset:512"])
        a("s_setprio 0")
        C.set_act(O_)
        a(f"v_and_b32 v{self.cF}, 31, v{vLANE}\n v_lshlrev_b32 v{self.cF}, 2, v{self.cF}")
        C.flag(0, t)
        C.ts()
        a = H.a; v = self.PV; d = v + 8
        CW = v + 7
        a(f"v_mov_b32 v{CW}, {HI + 32752}\n v_mov_b32 v6, 0\n ds_write_b64 v{CW}, v[6:7]\n ds_write_b32 v{CW}, v6 offset:8\n s_waitcnt lgkmcnt(0)")
        H.wait_vm(self.kv01); H.bar()
        TA, TD = self.TA, 19
        def spin(n, off=0):
            L = H.lab("hs")
            a(f"s_mov_b32 s{sCNT}, 0")
            a.label(L)
            a(f"""
    s_sleep 1
    ds_read_b32 v6, v{CW} offset:{off}
    s_add_u32 s{sCNT}, s{sCNT}, 1
    s_cmp_gt_u32 s{sCNT}, {SPIN*16}
    s_cbranch_scc1 main_exit
    s_waitcnt lgkmcnt(0)
    v_cmp_gt_u32 vcc, {n}, v6
    s_cbranch_vccnz {L}""")
        def count(off=0): a(f"v_mov_b32 v6, 1\n s_mov_b64 exec, 1\n ds_add_u32 v{CW}, v6 offset:{off}\n s_mov_b64 exec, -1")
        def pub():
            L = H.lab("nopf")
            a(f"s_cmp_lg_u32 s{sW}, 3\n s_cbranch_scc1 {L}")
            a(f"""
    s_lshl_b32 s{sT0}, s2, 7
    s_add_u32 s{sT0}, s{sT0}, {PFLAG:#x}
    v_mov_b32 v6, 1
    s_mov_b64 exec, 1
    buffer_store_dword v6, v7, {WS}, s{sT0} offen sc1
    s_mov_b64 exec, -1""")
            a.label(L)
        def kall():
            L = H.lab("kall")
            a(f"s_mov_b32 s{sCNT}, 0\n s_lshl_b32 s{sT0}, s{sW}, 13\n s_add_u32 s{sT0}, s{sT0}, {KFLAG:#x}")
            a.label(L)
            a(f"""
    buffer_load_dword v48, v{TA}, {WS}, s{sT0} offen sc1
    s_add_u32 s{sCNT}, s{sCNT}, 1
    s_cmp_gt_u32 s{sCNT}, {SPIN}
    s_cbranch_scc1 main_exit
    s_waitcnt vmcnt(0)
    v_cmp_ne_u32 vcc, s{sTAG}, v48
    s_mov_b64 exec, vcc
    s_cbranch_vccnz {L}
    s_mov_b64 exec, -1""")
            count(8); spin(4, 8)
        a(f"v_and_b32 v46, 0xfff, v{TA}")
        self.kpoll(46); self.kv(1); k1 = self.kvseq
        if self.opt.get('hprep'):
            self.prep_load(H, 200, 224)
            H.wait_vm(k1); H.bar()
            kall(); self.kv(2); k3 = self.kvseq
            self.prep_finish(H, 200, 224); pst = H.nvm - 1
            self.kv(4); k7 = self.kvseq
            H.wait_vm(pst); count()
            L = H.lab("np2")
            a(f"s_cmp_lg_u32 s{sW}, 3\n s_cbranch_scc1 {L}")
            spin(4)
            a.label(L)
            pub()
        else:
            H.wait_vm(k1); H.bar()
            pub()
            kall(); self.kv(6)
        H.wait_vm(self.kvseq); H.ts("h"); H.bar()
        def code_touch():
            L = H.lab("pc")
            a(f"s_getpc_b64 s[36:37]")
            a.label(L)
            a(f"""
    s_sub_u32 s36, s36, {L}-main_kernel
    s_subb_u32 s37, s37, 0
    s_and_b32 s{sT1}, s{sGRP}, 3
    s_lshl_b32 s{sT1}, s{sT1}, 5
    s_add_u32 s{sT1}, s{sT1}, s{sNT}
    s_lshl_b32 s{sT1}, s{sT1}, 9
    v_and_b32 v{v+2}, 0x1ff, v{TA}
    v_add_u32 v{v+2}, s{sT1}, v{v+2}
    v_min_u32 v{v+2}, main_end-main_kernel-4, v{v+2}""")
            H.vm(f"global_load_dword v{TD}, v{v+2}, s[36:37]")
        def arena_touch():
            if self.opt.get("usc1"):
                a(f"""
    s_lshl_b32 s{sTCH}, s{sNT}, 12
    s_lshl_b32 s{sT1}, s{sNT}, 8
    s_sub_u32 s{sT1}, s{sT1}, s{sTCH}
    s_add_u32 s{sT1}, s{sT1}, {ST1 - 4096}
    s_add_u32 s{sTCH}, s{sTCH}, s{sAR}
    v_mov_b32 v6, v{TA}
    s_mov_b32 exec_lo, 0
    v_add_u32 v6, s{sT1}, v6
    s_mov_b32 exec_lo, -1
    s_mov_b32 exec_hi, 3""")
                H.vm(f"buffer_load_dword v{TD}, v6, {WS}, s{sTCH} offen")
                a("s_mov_b64 exec, -1")
                return
            a(f"s_mul_i32 s{sTCH}, s{sNT}, {TOUCHN*128}\n s_add_u32 s{sTCH}, s{sTCH}, s{sAR}\n s_add_u32 s{sTCH}, s{sTCH}, {TOUCH0:#x}")
            H.vm(f"buffer_load_dword v{TD}, v{TA}, {WS}, s{sTCH} offen")
            a(f"s_mov_b32 exec_lo, 0x7ff\n s_mov_b32 exec_hi, 0\n s_add_u32 s{sTCH}, s{sTCH}, 8192")
            H.vm(f"buffer_load_dword v{TD}, v{TA}, {WS}, s{sTCH} offen")
            a("s_mov_b64 exec, -1")
        hi = f"s_lshl_b32 s{sPL}, s{sW}, 13\n s_add_u32 s{sPL}, s{sPL}, {HI}"
        lo = f"s_lshl_b32 s{sPL}, s{sW}, 14"
        F = lambda *x, **k: H.run(H.frags(*x, **k))
        code_touch()
        AP = self.opt.get("ap", "none")
        if AP == "pre": arena_touch()
        L0 = H.lab("pchk")
        a(f"s_lshl_b32 s{sPS}, s{sW}, 13\n s_add_u32 s{sPS}, s{sPS}, {PFLAG:#x}\n s_mov_b32 s{sCNT}, 0")
        a.label(L0)
        a(f"""
    buffer_load_dword v{d}, v{TA}, {WS}, s{sPS} offen sc1
    s_add_u32 s{sCNT}, s{sCNT}, 1
    s_cmp_gt_u32 s{sCNT}, {SPIN}
    s_cbranch_scc1 main_exit
    s_waitcnt vmcnt(0)
    v_cmp_ne_u32 vcc, 1, v{d}
    s_mov_b64 exec, vcc
    s_sleep 2
    s_cbranch_vccnz {L0}
    s_mov_b64 exec, -1""")
        count(4); spin(4, 4); count(4)
        L = H.lab("notag")
        a(f"""
    s_or_b32 s{sT0}, s2, s{sW}
    s_cmp_lg_u32 s{sT0}, 0
    s_cbranch_scc1 {L}
    v_mov_b32 v6, s{sTAG}
    s_mov_b32 s{sT0}, {TAGW:#x}
    s_mov_b64 exec, 1
    buffer_store_dword v6, v7, {WS}, s{sT0} offen sc1
    s_mov_b64 exec, -1""")
        a.label(L)
        H.ts("h")
        for base, reg in ((WO, 64), (W1, 128), (W2, 192)):
            H.set_wbase(base, 16, sW4); F(16, sW4, dst=V(reg))
        L = H.lab("ack")
        a(f"s_cmp_lg_u32 s{sW}, 3\n s_cbranch_scc1 {L}")
        spin(8, 4)
        a.label(L)
        H.set_w3(0); a(hi)
        F(8, sPF, lds=sPL); r1 = H.lastf
        code_touch()
        H.xo_soff(sT1)
        for jt in range(4):
            H.vm(f"buffer_load_dwordx2 {P(self.hXT+2*jt)}, v{vXO}, {XS}, s{sT1} offen")
            if jt < 3: a(f"s_add_u32 s{sT1}, s{sT1}, 16384")
        a(f"s_and_b32 s{sT1}, s{sGRP}, 3\n s_mul_i32 s{sT1}, s{sT1}, 6144\n s_add_u32 s{sTCH}, s{sPF}, s{sT1}\n s_mov_b32 exec_hi, 0xffff")
        H.vm(f"buffer_load_dword v{TD}, v{TA}, {WS}, s{sTCH} offen")
        a("s_mov_b64 exec, -1")
        if AP == "mid": arena_touch()
        H.wait_vm(r1); H.ts("h"); H.bar()
        a(lo); F(16, sPF, lds=sPL); r2 = H.lastf
        code_touch()
        a(f"""
    s_and_b32 s{sT1}, s{sGRP}, 3
    s_lshl_b32 s{sTCH}, s{sT1}, 5
    s_add_u32 s{sTCH}, s{sTCH}, s{sNT}
    s_mul_i32 s{sTCH}, s{sTCH}, 14336
    s_add_u32 s{sTCH}, s{sTCH}, {W4:#x}""")
        H.vm(f"buffer_load_dword v{TD}, v{TA}, {WS}, s{sTCH} offen")
        H.wait_vm(r2); H.ts("h"); H.bar()
        a(hi); F(8, sPF, lds=sPL); r3 = H.lastf
        a(f"s_add_u32 s{sTCH}, s{sTCH}, 6144")
        H.vm(f"buffer_load_dword v{TD}, v{TA}, {WS}, s{sTCH} offen")
        H.wait_vm(r3); H.ts("h"); H.bar()
        H.bar()
        a(lo); F(16, sPF, lds=sPL)
        H.set_w3(3)
        a(f"s_lshl_b32 s{sT5}, s{sORD}, 5\n s_add_u32 s{sPF}, s{sPF}, s{sT5}"); a(hi)
        F(8, sPF, lds=sPL)
        arena_touch()
        code_touch()
        a("s_waitcnt vmcnt(0)")
        H.setvcc()
        H.tile_soff(sT4, H_)
        a("s_setprio 1")
        H.ts("h")
        self.sync_check()

    def fallback(self):
        C = self.C; a = C.a; t = self.cT
        S0, NEGM, KF, VF, vVA, vIDX = self.S0, self.NEGM, self.KVR, self.KVR+4, self.vVA, self.vIDX
        a.label("attn_redo")
        a(f"v_and_b32 v{vVA}, 0x3ff, v{vVA}")
        for (Q, O) in ((self.QA, self.OA), (self.QB, self.OB)):
            L1, L2 = C.lab("fb1"), C.lab("fb2")
            a(f"v_mov_b32 v{t}, 0xff800000\n s_mov_b32 s{sT2}, {KV:#x}")
            a.label(L1)
            a(f"""
    buffer_load_dwordx4 {vr(KF)}, v{vL16}, {WS}, s{sT2} offen sc1
    s_add_u32 s{sT2}, s{sT2}, 2048
    s_waitcnt vmcnt(0)
    v_mfma_f32_32x32x16_bf16 {vr(S0,16)}, {vr(KF)}, {vr(Q)}, 0""")
            for i in range(8): a(f"v_max3_f32 v{t}, v{t}, v{S0+2*i}, v{S0+2*i+1}")
            a(f"""
    s_cmp_lt_u32 s{sT2}, {KV+131072:#x}
    s_cbranch_scc1 {L1}
    v_mov_b32 v{t+1}, v{t}
    v_permlane32_swap_b32 v{t}, v{t+1}
    v_max_f32 v{t}, v{t}, v{t+1}
    v_sub_f32 v{t}, 0, v{t}""")
            for i in range(16): a(f"v_mov_b32 v{NEGM+i}, v{t}")
            for i in range(16): a(f"v_mov_b32 v{O+i}, 0")
            a(f"s_mov_b32 s{sT2}, {KV:#x}")
            a.label(L2)
            a(f"""
    buffer_load_dwordx4 {vr(KF)}, v{vL16}, {WS}, s{sT2} offen sc1
    s_mov_b64 exec, {sVM}
    buffer_load_dwordx4 {vr(VF)}, v{vVA}, {WS}, s{sT2} offen offset:1024 sc1
    buffer_load_dwordx4 {vr(VF+4)}, v{vVA}, {WS}, s{sT2} offen offset:1536 sc1
    s_mov_b64 exec, -1
    s_add_u32 s{sT2}, s{sT2}, 2048
    s_waitcnt vmcnt(0)
    v_mfma_f32_32x32x16_bf16 {vr(S0,16)}, {vr(KF)}, {vr(Q)}, {vr(NEGM,16)}""")
            for i in range(16): a(f"v_exp_f32 v{S0+i}, v{S0+i}")
            a(f"""
    v_smfmac_f32_32x32x32_bf16 {vr(O,16)}, {vr(VF)}, {vr(S0,8)}, v{vIDX}
    v_smfmac_f32_32x32x32_bf16 {vr(O,16)}, {vr(VF+4)}, {vr(S0+8,8)}, v{vIDX}
    s_nop 15
    s_cmp_lt_u32 s{sT2}, {KV+131072:#x}
    s_cbranch_scc1 {L2}""")
        a("s_nop 15\n s_branch attn_done")

    cF, cP = 120, 122
    cACC, cBP, cSTAT, cCS3, cTMP, cOUT = 16, 48, 80, 96, 104, 112
    def prod_stats(self, vals):
        H = self.H; a = H.a; t = self.hTMP; x = self.hBP
        for jt in range(4): a(f"v_pk_add_f32 {P(x+2*jt)}, {P(vals+4*jt)}, {P(vals+4*jt+2)}")
        for jt in range(4): a(f"v_pk_mul_f32 {P(x+8+2*jt)}, {P(vals+4*jt)}, {P(vals+4*jt)}")
        for jt in range(4): a(f"v_pk_fma_f32 {P(x+8+2*jt)}, {P(vals+4*jt+2)}, {P(vals+4*jt+2)}, {P(x+8+2*jt)}")
        for jt in range(8): a(f"v_add_f32 v{t+jt}, v{x+2*jt}, v{x+2*jt+1}")
        a(f"""
    s_lshl_b32 s{sT5}, s{sW}, 10
    s_add_u32 s{sT5}, s{sT5}, {XST}
    v_permlane32_swap_b32 v{t}, v{t+2}
    v_permlane32_swap_b32 v{t+1}, v{t+3}
    v_permlane32_swap_b32 v{t+4}, v{t+6}
    v_permlane32_swap_b32 v{t+5}, v{t+7}
    v_pk_add_f32 {P(t)}, {P(t)}, {P(t+2)}
    v_pk_add_f32 {P(t+4)}, {P(t+4)}, {P(t+6)}
    v_lshl_add_u32 v{x}, v{vLANE}, 3, s{sT5}
    v_permlane16_swap_b32 v{t}, v{t+1}
    v_permlane16_swap_b32 v{t+4}, v{t+5}
    v_add_f32 v{t}, v{t}, v{t+1}
    v_add_f32 v{t+1}, v{t+4}, v{t+5}
    ds_write_b64 v{x}, {P(t)}""")
    def stat_publish(self, base):
        C = self.C; a = C.a; t = self.cTMP; x = self.cT
        a(f"""
    v_lshlrev_b32 v{x}, 3, v{vLANE}
    v_add_u32 v{x}, {XST}, v{x}
    s_lshl_b32 s{sT2}, s{sMEM}, 3
    s_add_u32 s{sT2}, s{sT2}, s{sAR}
    s_add_u32 s{sT2}, s{sT2}, {base:#x}
    v_lshlrev_b32 v{x+1}, 6, v{vLANE}
    s_lshl_b32 s{sT5}, s{sW}, 4
    s_lshl_b64 s[36:37], 0xffff, s{sT5}""")
        C.bar()
        for p in range(4): a(f"ds_read_b64 {P(t+2*p)}, v{x} offset:{1024*p}")
        def fin():
            a(f"""
    s_waitcnt lgkmcnt(0)
    v_pk_add_f32 {P(t)}, {P(t)}, {P(t+2)}
    v_pk_add_f32 {P(t+4)}, {P(t+4)}, {P(t+6)}
    v_pk_add_f32 {P(t)}, {P(t)}, {P(t+4)}
    s_mov_b64 exec, s[36:37]""")
            C.cstore([f"buffer_store_dwordx2 {P(t)}, v{x+1}, {WS}, s{sT2} offen"], nt=False)
            a("s_mov_b64 exec, -1")
        self.pubfin = fin
    def cons_stats(self, gbase, scr, double):
        C = self.C; a = C.a; x = self.cT; o = self.cSTAT; S = o + 8
        st = {}
        ltxt = f"buffer_load_dwordx4 {vr(o)}, v{x+1}, {WS}, s{sT1} offen sc1"
        def load():
            a(f"""
    s_lshl_b32 s{sT1}, s{sW}, 10
    s_add_u32 s{sT1}, s{sT1}, s{sAR}
    s_add_u32 s{sT1}, s{sT1}, {gbase:#x}
    v_and_b32 v{x+3}, 0xff, v{vL16}
    v_and_b32 v{x+1}, 0x30, v{vLANE}
    v_lshl_add_u32 v{x+1}, v{x+3}, 2, v{x+1}
    s_lshl_b32 s{sT5}, s{sW}, 8
    s_add_u32 s{sT5}, s{sT5}, {scr}
    v_add_u32 v{x+2}, s{sT5}, v{x+3}""")
            st['g'] = C.vm(ltxt)
        def check():
            L0, Lr, L2 = C.lab("schk"), C.lab("sre"), C.lab("sok")
            C.wait_vm(st['g'])
            a.label(L0)
            a(f"v_max_u32 v{o+4}, v{o+1}, v{o+3}\n v_cmp_eq_u32 vcc, -1, v{o+4}\n s_cbranch_vccnz {Lr}")
            a.label(L2)
            C.ool.append((Lr, [f"s_add_u32 s{sCNT}, s{sCNT}, 1", f"s_cmp_gt_u32 s{sCNT}, {SPIN}", f"s_cbranch_scc1 {L2}",
                               ltxt, "s_waitcnt vmcnt(0)", f"s_branch {L0}"]))
            C.setvcc()
        txt = f"""
    v_add_f32 v{o}, v{o}, v{o+2}
    v_add_f32 v{o+1}, v{o+1}, v{o+3}
    v_permlane32_swap_b32 v{o}, v{o+1}
    v_add_f32 v{o}, v{o}, v{o+1}
    v_mov_b32 v{o+1}, v{o}
    v_permlane16_swap_b32 v{o}, v{o+1}
    v_add_f32 v{o}, v{o}, v{o+1}
    v_mul_f32 v{o}, 0x3b000000, v{o}
    v_mov_b32 v{o+1}, v{o}
    v_permlane32_swap_b32 v{o}, v{o+1}
    v_mov_b32 v{S}, v{o}
    v_fma_f32 v{o+1}, -v{o}, v{o}, v{o+1}
    v_max_f32 v{o+1}, 0, v{o+1}
    v_add_f32 v{o+2}, 0x3727c5ac, v{o+1}
    v_rsq_f32 v{o+3}, v{o+2}"""
        R = o+3
        if double:
            txt += f"""
    v_mul_f32 v{o+4}, v{o+3}, v{o+3}
    ds_write_b32 v{x+2}, v{o+3} offset:1024
    v_mul_f32 v{o+4}, v{o+4}, v{o+1}
    v_add_f32 v{o+4}, 0x3727c5ac, v{o+4}
    v_rsq_f32 v{o+4}, v{o+4}
    v_mul_f32 v{o+5}, v{o+3}, v{o+4}"""
            R = o+5
        txt += f"""
    v_rcp_f32 v{S+1}, v{R}
    v_mul_f32 v{S+2}, {f32(GC1)}, v{R}
    v_mul_f32 v{o+6}, v{R}, v{R}
    v_mul_f32 v{o+6}, {f32(0.044715)}, v{o+6}
    v_mul_f32 v{S+3}, v{S+2}, v{o+6}
    ds_write_b128 v{x+2}, {vr(S)}"""
        comp = [check]
        for y in txt.split("\n"):
            y = y.strip()
            if not y: continue
            if y.startswith("ds_"): comp.append(lambda y=y: setattr(C, 'wseq', C.ld(y)))
            else: comp.append(lambda y=y: a(y))
        return load, comp
    def tile_store(self, jt):
        return f"buffer_store_dwordx2 {P(self.hXT+2*jt)}, v{vD}, {WS}, s{sT4} offen offset:{256*jt}"
    def add_pack(self, jt, src):
        a = self.H.a; A_ = self.hACC
        for h in (0, 2): a(f"v_pk_add_f32 {P(A_+4*jt+h)}, {P(A_+4*jt+h)}, {P(src+h)}")
        for h in (0, 1): a(f"v_cvt_pk_bf16_f32 v{self.hXT+2*jt+h}, v{A_+4*jt+2*h}, v{A_+4*jt+2*h+1}")

    def s3(self):
        self.C.mark(); self.H.mark()
        C, H = self.C, self.H
        C.colsum(V(128), self.cCS3, self.cOUT)
        C.poll(0, self.cF, self.cP, mid=[lambda: C.colsum(V(192), self.cCS3+4, self.cOUT)]); C.ts()
        def w4ref():
            C.a(f"""
    v_lshlrev_b32 v118, 7, v{vLANE}
    s_and_b32 s{sTCH}, s{sGRP}, 3
    s_lshl_b32 s{sTCH}, s{sTCH}, 5
    s_add_u32 s{sTCH}, s{sTCH}, s{sNT}
    s_mul_i32 s{sTCH}, s{sTCH}, 14336
    s_add_u32 s{sTCH}, s{sTCH}, {W4:#x}""")
            C.vm(f"buffer_load_dword v119, v118, {WS}, s{sTCH} offen")
        def w4ref2():
            C.a(f"s_add_u32 s{sTCH}, s{sTCH}, 6144")
            C.vm(f"buffer_load_dword v119, v118, {WS}, s{sTCH} offen")
        C.load_gemm(C.act_issue(), side={3: [w4ref], 5: [w4ref2]} if self.opt.get('w4ref') else None, tag='s3')
        C.set_act(H_)
        self.stat_publish(ST1)
        H.cons_gemm(V(64), self.hACC, self.hBP, tag="s3"); H.ts()
        for i in range(8): H.unpack(self.hXT+i, self.hRES+2*i)
        for jt in range(4): self.add_pack(jt, self.hRES+4*jt)
        H.cstore([self.tile_store(jt) for jt in range(4)])
        self.prod_stats(self.hACC)
        for i in range(8): H.unpack(self.hXT+i, self.hRES+2*i)
        H.flag(1, 6); H.ts()
        H.a("s_waitcnt lgkmcnt(0)"); H.bar()
        self.sync_check()
    def s4(self):
        self.C.mark(); self.H.mark()
        C, H = self.C, self.H; a = H.a
        C.poll(1, self.cF, self.cP, mid=[self.pubfin]); C.ts()
        load, comp = self.cons_stats(ST1, ACT, True)
        C.load_gemm(C.act_issue(), side={-1: [load], 3: comp[:7], 4: comp[7:14], 5: comp[14:21], 6: comp[21:],
                                         (7, 'pre'): [lambda: C.wait_ld(C.wseq)]}, tag='s4')
        if self.opt.get('uref'):
            C.a(f"v_lshlrev_b32 v118, 7, v{vLANE}\n s_mul_i32 s{sTCH}, s{sNT}, {40*128}\n s_add_u32 s{sTCH}, s{sTCH}, s{sAR}\n s_add_u32 s{sTCH}, s{sTCH}, {U_ + 0x10000:#x}\n s_mov_b32 exec_hi, 0xff")
            C.vm(f"buffer_load_dword v119, v118, {WS}, s{sTCH} offen")
            C.a("s_mov_b64 exec, -1")
        H.colsum(V(128), self.hCS1, self.hX)
        H.tile_soff(sT4, T_)
        a(f"""
    v_lshrrev_b32 v6, 5, v{vLANE}
    v_lshlrev_b32 v6, 5, v6
    v_and_b32 v7, 0x1f, v{vD}
    v_add_u32 v{self.hX+4}, v6, v7                ; halo: (g>>1)*32 + (t&1)*16 + (g&1)*8
    s_lshl_b32 s{sT3}, s{sNT}, 6
    s_add_u32 s{sT3}, s{sT3}, s{sAR}
    v_and_b32 v7, 0xff, v{vL16}
    v_add_u32 v7, {ACT}, v7""")
        sr = H.stat_reads(self.hSTAT, 7, False, self.hR1)
        H.cons_gemm(V(128), self.hACC, self.hBP, side={6: sr[:4], 7: sr[4:]}, tag="s4"); H.ts()
        A_, XT, ST = self.hACC, self.hXT, self.hSTAT
        H.wait_ld(H.stseq)
        for x in H.gelu2((A_, self.hCS1, ST, XT), (A_+12, self.hCS1, ST+12, XT+6), self.hTMP, True): a(x)
        Lh, L1 = H.lab("nohalo"), H.lab("side1")
        a(f"""
    s_bitcmp1_b32 s{sMEM}, 1
    s_cbranch_scc1 {L1}
    s_cmp_eq_u32 s{sGRP}, 31
    s_cbranch_scc1 {Lh}
    s_add_u32 s{sT3}, s{sT3}, {HALO+GA:#x}
    s_mov_b32 exec_lo, 0xc000c000
    s_mov_b32 exec_hi, 0xc000c000
    buffer_store_dwordx2 {P(XT+6)}, v{self.hX+4}, {WS}, s{sT3} offen sc1
    s_branch {Lh}""")
        a.label(L1)
        a(f"""
    s_cmp_eq_u32 s{sGRP}, 0
    s_cbranch_scc1 {Lh}
    s_sub_u32 s{sT3}, s{sT3}, {GA-HALO:#x}
    s_mov_b32 exec_lo, 0x00030003
    s_mov_b32 exec_hi, 0x00030003
    buffer_store_dwordx2 {P(XT)}, v{self.hX+4}, {WS}, s{sT3} offen sc1""")
        a.label(Lh)
        a("s_mov_b64 exec, -1")
        H.cstore([self.tile_store(0), self.tile_store(3)])
        for x in H.gelu2((A_+4, self.hCS1, ST+4, XT+2), (A_+8, self.hCS1, ST+8, XT+4), self.hTMP, True): a(x)
        H.cstore([self.tile_store(1), self.tile_store(2)])
        H.flag(2, 6); H.ts()
        self.sync_check()
    def s5(self):
        self.C.mark(); self.H.mark()
        C, H = self.C, self.H; a = C.a; x = self.cT; T = self.cTMP
        C.set_act(T_)
        a(f"""
    s_lshl_b32 s{sT1}, s{sW}, 9
    s_add_u32 s{sT1}, s{sT1}, s{sAR}
    s_add_u32 s{sT1}, s{sT1}, {HALO:#x}
    v_and_b32 v{x+2}, 0x1ff, v{vL16}
    s_cmp_eq_u32 s{sW}, 0
    s_cselect_b32 s{sT3}, -16, 0
    s_cselect_b32 s{sT4}, 0xaaaaaaaa, -1
    s_cmp_eq_u32 s{sW}, 1
    s_cselect_b32 s{sT3}, {63*16}, s{sT3}
    s_cselect_b32 s{sT4}, 0x55555555, s{sT4}
    s_cmp_eq_u32 s{sW}, 3
    s_cselect_b32 s{sT3}, {62*16}, s{sT3}
    s_lshl_b32 s{sT2}, s{sW}, 14
    s_add_u32 s{sT3}, s{sT3}, s{sT2}
    s_add_u32 s{sT3}, s{sT3}, {ACT}
    v_lshrrev_b32 v{x+1}, 1, v{vLANE}
    v_lshlrev_b32 v{x+1}, 10, v{x+1}
    v_and_b32 v{x+3}, 1, v{vLANE}
    v_lshl_add_u32 v{x+1}, v{x+3}, 4, v{x+1}
    v_add_u32 v{x+1}, s{sT3}, v{x+1}
    s_lshl_b32 s{sPF}, s{sMEM}, 3
    s_add_u32 s{sPF}, s{sPF}, s{sW}
    s_mul_i32 s{sPF}, s{sPF}, {28*1024}
    s_add_u32 s{sPF}, s{sPF}, {W4 + 20*1024:#x}
    s_lshl_b32 s{sPL}, s{sW}, 13""")
        C.poll(2, self.cF, self.cP, mid=[]); C.ts()
        shifts = (1, -1, 2, -2)
        masks = ((0xfffffffe, 0xffffffff), (0xffffffff, 0x7fffffff), (0xfffffffc, 0xffffffff), (0xffffffff, 0x3fffffff))
        def pre(c):
            g = c >> 1
            if c & 1 == 0: a(f"s_add_i32 s{sG}, s{sG}, {-16*shifts[g] + (16*shifts[g-1] if g else 0)}")
            a(f"s_mov_b32 exec_lo, {masks[g][0]:#x}" if masks[g][0] != 0xffffffff else f"s_mov_b32 exec_hi, {masks[g][1]:#x}")
        hs = {}
        hload = f"buffer_load_dwordx4 {vr(T)}, v{x+2}, {WS}, s{sT1} offen sc1"
        stg = C.frags(8, sPF, lds=sPL) + C.E(f"s_add_u32 s{sPF}, s{sPF}, {4*28*1024 - 8192}\n s_add_u32 s{sPL}, s{sPL}, {32768 - 8192}") + C.frags(8, sPF, lds=sPL)
        C.load_gemm(C.act_issue(pre=pre, post=lambda c: a("s_mov_b64 exec, -1")),
                    side={2: [lambda: hs.__setitem__(0, C.vm(hload))], 3: stg[:2], 4: stg[2:4], 5: stg[4:6], 6: stg[6:10]}, tag='s5')
        L0, Lr, L2 = C.lab("hchk"), C.lab("hre"), C.lab("hok")
        C.wait_vm(hs[0])
        a.label(L0)
        a(f"v_max_u32 v{x}, v{T}, v{T+1}\n v_max3_u32 v{x}, v{x}, v{T+2}, v{T+3}\n v_cmp_eq_u32 vcc, -1, v{x}\n s_cbranch_vccnz {Lr}")
        a.label(L2)
        C.ool.append((Lr, [f"s_add_u32 s{sCNT}, s{sCNT}, 1", f"s_cmp_gt_u32 s{sCNT}, {SPIN}", f"s_cbranch_scc1 {L2}",
                           hload, "s_waitcnt vmcnt(0)", f"s_branch {L0}"]))
        C.setvcc()
        a(f"s_mov_b32 exec_lo, s{sT4}\n s_mov_b32 exec_hi, 0\n ds_write_b128 v{x+1}, {vr(T)}\n s_mov_b64 exec, -1\n s_waitcnt lgkmcnt(0)")
        C.bar()
        C.run(stg[10:14]); self.stg_rest = stg[14:]
        C.set_act(X1)
        self.stat_publish(ST3)
        a = H.a; ST, RES, R1 = self.hSTAT, self.hRES, self.hR1
        a(f"s_lshl_b32 s{sT1}, s{sW}, 14\n v_add_u32 v7, s{sT1}, v{vL16}")
        H.lds2reg(V(128), 16, 7)
        for jt in range(4):
            a(f"v_mul_f32 v6, v{ST+4*jt}, v{R1+jt}")
            for i in range(4): a(f"v_fma_f32 v{ST+4*jt+i}, v{RES+4*jt+i}, v{R1+jt}, -v6")
        H.tile_soff(sT4, X1)
        a("s_waitcnt lgkmcnt(0)")
        H.colsum(V(128), self.hCS3, self.hX)
        H.cons_gemm(V(192), self.hACC, self.hBP, defer=lambda ks: 3 if (ks >> 2) & 1 else 0, tag="s5"); H.ts()
        for jt in range(4): self.add_pack(jt, ST+4*jt)
        H.cstore([self.tile_store(jt) for jt in range(4)])
        self.prod_stats(self.hACC)
        for i in range(8): H.unpack(self.hXT+i, self.hACC+2*i)
        H.flag(3, 6)
        a("s_waitcnt lgkmcnt(0)"); H.bar()
        for i in range(8): a(f"v_pk_add_f32 {P(RES+2*i)}, {P(RES+2*i)}, {P(self.hACC+2*i)}")
        H.ts()
        self.sync_check()

    def capture(self, S, fn):
        keep = S.a.lines; S.a.lines = []
        fn()
        got = S.a.lines; S.a.lines = keep
        return [(lambda x=x: S.a(x)) for x in got]
    def s6(self):
        self.C.mark(); self.H.mark()
        C, H = self.C, self.H
        PK = bool(self.opt.get("s6pk"))
        for S in (C, H):
            isC = S is C; a = S.a
            vBa, vBb, vDa, vDb, vS = (124, 125, 126, 127, 14) if isC else (self.hCS1, self.hCS1+1, self.hCS1+2, self.hCS1+3, self.hR1)
            ACCS = [self.cACC + 4*i for i in range(8)] if isC else [self.hACC + 4*i for i in range(4)] + [self.hX, self.hX+4]
            BP = self.cBP if isC else self.hBP
            ST, CS, TMP, OUT = (self.cSTAT, self.cCS3, self.cTMP, self.cOUT) if isC else (self.hSTAT, self.hCS3, self.hTMP, self.hXT)
            W = (V(128), V(192))
            def setup():
                a(f"""
    v_xor_b32 v{vBa}, s{sORD}, v{vB}
    v_xor_b32 v{vBb}, 256, v{vBa}
    v_xor_b32 v{vDa}, s{sORD}, v{vD}
    v_xor_b32 v{vDb}, 256, v{vDa}
    v_and_b32 v{vS}, 0xff, v{vL16}
    v_add_u32 v{vS}, {HI}, v{vS}
    v_xor_b32 v{vS}, s{sORD}, v{vS}
    v_xor_b32 v{vS+1}, 256, v{vS}
    s_mul_i32 s{sU0}, s{sMEM}, {14*2048}
    s_add_u32 s{sU0}, s{sU0}, s{sAR}
    s_add_u32 s{sU0}, s{sU0}, {U_:#x}
    s_lshr_b32 s{sU1}, s{sW}, 1
    s_add_u32 s{sU1}, s{sU1}, 12
    s_lshl_b32 s{sU1}, s{sU1}, 11
    s_add_u32 s{sU1}, s{sU1}, s{sU0}
    s_mul_i32 s{sT3}, s{sW}, {3*2048}
    s_add_u32 s{sU0}, s{sU0}, s{sT3}
    s_lshl_b32 s{sW4}, s{sMEM}, 3
    s_add_u32 s{sW4}, s{sW4}, s{sW8}
    s_lshl_b32 s{sT3}, s{sW4}, 2
    v_mov_b32 v{vMYF}, s{sT3}
    s_mul_i32 s{sW4}, s{sW4}, {28*1024}
    s_add_u32 s{sW4}, s{sW4}, {W4:#x}
""")
                if isC: a(f"s_add_u32 s{sU1}, s{sU0}, 2048")
                else: a(f"s_add_u32 s{sU0}, s{sU0}, 4096")
            tilesA = [(j, n) for j in (0, 1) for n in ((0, 1) if isC or j == 0 else (0,))]
            tilesB = [(j, n) for j in (2, 3) for n in ((0, 1) if isC or j == 2 else (0,))]
            acc = {t: ACCS[i] for i, t in enumerate(tilesA + tilesB)}
            rs = {}
            slot = lambda s, j: BP + 16*(s & 1) + 4*j
            def rd(s, j): rs[(s, j)] = S.ld(f"ds_read_b128 {vr(slot(s, j))}, v{vBb if j & 1 else vBa} offset:{4096*s + 512*(j>>1)}")
            def mf(s, j, n): a(f"v_mfma_f32_16x16x32_bf16 {vr(acc[(j, n)])}, {W[n](s)}, {vr(slot(s, j))}, {'0' if s == 0 else vr(acc[(j, n)])}")
            wreg = lambda f: vr(128 + 4*(f >> 1) + 64*(f & 1))
            S.wreg = wreg
            w4 = S.frags(20, sW4, dst=wreg)
            stg = []
            sr = S.stat_reads(ST, vS, True)
            def ustore(j, n, r):
                return f"buffer_store_dwordx2 {P(r)}, v{vDb if j & 1 else vDa}, {WS}, s{(sU0, sU1)[n]} offen offset:{512*(j>>1)}"
            k2 = [0]
            def gel(ts_):
                o = OUT + 4*(k2[0] & 1); k2[0] += 1
                arg = [(acc[t], CS+4*t[1], ST+4*t[0], o+2*i) for i, t in enumerate(ts_)]
                z = S.gelu2(*arg, TMP, True) if len(ts_) == 2 else S.gelu(*arg[0], TMP, True)
                for y in z: a(y)
                if self.opt.get("usc1"):
                    for i, t in enumerate(ts_): S.vm(ustore(*t, o+2*i) + " sc1")
                else: S.cstore([ustore(*t, o+2*i) for i, t in enumerate(ts_)])
                return S.nvm - 1
            tiles = tilesA + tilesB
            if isC:
                S.poll(3, self.cF, self.cP, mid=[self.pubfin]); S.ts()
                load, comp = self.cons_stats(ST3, HI, False)
                issue = S.act_issue(); seqs = {}
                for c in range(3): seqs[c] = issue(c)
                load(); setup()
                S.wait_vm(seqs[0])
            else:
                a(f"s_and_b32 s{sT1}, s{sW}, 2\n s_lshl_b32 s{sT1}, s{sT1}, 13\n s_add_u32 s{sT1}, s{sT1}, {HI}\n v_add_u32 v7, s{sT1}, v{vL16}")
                S.lds2reg(V(192), 16, 7)
                setup()
                a("s_waitcnt lgkmcnt(0)")
                S.colsum(V(192), CS+4, self.hX)
                a("s_setprio 0")
            S.bar()
            for j in range(4): rd(0, j)
            BAR = {1: 1, 3: 3, 7: 7}
            nt = len(tiles)
            for s in range(16):
                items = []
                if isC:
                    if s == 0: items = [(lambda c=c: seqs.__setitem__(c, issue(c))) for c in (3, 4, 5)]
                    if s == 1: items = [(lambda c=c: seqs.__setitem__(c, issue(c))) for c in (6, 7)]
                    if s == 2: items = self.stg_rest + [lambda: seqs.__setitem__(7, S.lastf)]
                    items = items + {3: comp[:7], 4: comp[7:14], 5: comp[14:]}.get(s, [])
                if s == 8: items = items + sr
                if s == 13: items = S.E(f"s_lshl_b32 s{sT1}, s{sW8}, 13\n v_add_u32 v7, s{sT1}, v{vL16}")
                if s >= 14: items = [(lambda i=i: S.ld(f"ds_read_b128 {wreg(20+i)}, v7 offset:{1024*i}")) for i in range(4*(s-14), 4*(s-14)+4)]
                if 3 <= s < 13: items = [w4.pop(0)] + items[:len(items)//2] + [w4.pop(0)] + items[len(items)//2:]
                if s in BAR:
                    if isC:
                        S.wait_vm(seqs[BAR[s]])
                        if s == 7: S.wait_ld(S.wseq)
                    S.bar()
                for i, (j, n) in enumerate(tiles):
                    if n == 0: S.wait_ld(rs[(s, j)])
                    mf(s, j, n)
                    if n == 0 and s + 1 < 16: rd(s+1, j)
                    S.run(items[i*len(items)//nt:(i+1)*len(items)//nt])
                if s % 4 == 3: S.ts("s6")
            assert not w4
            vF8, vPp = (self.cF, self.cP) if isC else (vBa, self.hR1+2)
            S.f7 = (vF8, vPp)
            a(f"""
    s_setprio 1
    s_mul_i32 s{sB}, s{sW8}, {7*4096}
    s_add_u32 s{sB}, s{sB}, s{sAR}
    s_add_u32 s{sB}, s{sB}, {U_ - ACT:#x}
    v_and_b32 v{vF8}, 7, v{vLANE}
    v_lshlrev_b32 v{vF8}, 2, v{vF8}
    s_lshl_b32 s{sT1}, s{sW8}, 5
    v_add_u32 v{vF8}, s{sT1}, v{vF8}""")
            gel(tilesA[:2]); sa = gel(tilesA[2:])
            a("s_setprio 0")
            S.ts()
            gel(tilesB[:2])
            S.flag(4, 6, seq=sa)
            S.sb = gel(tilesB[2:])
            S.ts()
        self.sync_check()

    def s7(self):
        self.C.mark(); self.H.mark()
        C, H = self.C, self.H
        for S in (C, H):
            isC = S is C; a = S.a
            wreg = S.wreg
            vF8, vPp = S.f7
            if isC:
                vWr, vRD, vO = [8, 9, 10, 11], 12, 13
                ring = [self.cBP + 4*i for i in range(8)]
                accx = lambda p, m: self.cACC + 16*(p & 1) + 4*m
                rb = [80 + 4*k for k in range(8)]
            else:
                vWr, vRD, vO = [self.hX+4+i for i in range(4)], 7, vXO
                ring = [self.hBP + 4*i for i in range(8)]
                accx = lambda p, m: self.hACC + 4*m if p & 1 else (184, 188, 248, 252)[m]
                rb = [80, 84, 88, 92, 104, 108, 112, 116]
            NR = len(ring); x = rb[0]
            def setup():
                a(f"""
    v_and_b32 v{x}, 15, v{vLANE}
    v_lshrrev_b32 v{x+1}, 4, v{vLANE}
    v_xor_b32 v{x+2}, v{x}, v{x+1}                ; t ^ g""")
                for m in range(4):
                    a(f"""
    s_add_u32 s{sT1}, s{sW}, {m}
    s_and_b32 s{sT1}, s{sT1}, 3
    s_lshl_b32 s{sT2}, s{sT1}, 2
    v_xor_b32 v{vWr[m]}, s{sT2}, v{x+2}
    v_lshlrev_b32 v{vWr[m]}, 4, v{vWr[m]}
    v_lshl_add_u32 v{vWr[m]}, v{x+1}, 8, v{vWr[m]}
    s_lshl_b32 s{sT1}, s{sT1}, 10
    s_lshl_b32 s{sT2}, s{sW8}, 12
    s_add_u32 s{sT1}, s{sT1}, s{sT2}
    v_add_u32 v{vWr[m]}, s{sT1}, v{vWr[m]}""")
                a(f"""
    s_lshl_b32 s{sT1}, s{sW}, 2
    v_add_u32 v{x+1}, s{sT1}, v{x+1}
    v_xor_b32 v{vRD}, v{x+1}, v{x}
    v_lshlrev_b32 v{vRD}, 4, v{vRD}
    v_lshl_add_u32 v{vRD}, v{x}, 8, v{vRD}
    v_lshlrev_b32 v{vO}, 10, v{x+1}
    v_lshl_add_u32 v{vO}, v{x}, 3, v{vO}
    s_lshl_b32 s{sT4}, s{sGRP}, 16
    s_lshl_b32 s{sT1}, s{sMEM}, 7
    s_add_u32 s{sT4}, s{sT4}, s{sT1}""")
                if not isC: a(f"s_add_u32 s{sT4}, s{sT4}, 16384\n v_add_u32 v{vRD}, 32768, v{vRD}")
                a("s_waitcnt lgkmcnt(0)")
            S.poll(4, vF8, vPp, mid=[setup])
            S.flag(6, 6, seq=S.sb)
            S.ts()
            seq = {}
            def load(u):
                p, i = u // 7, u % 7
                seq[u] = S.vm(f"buffer_load_dwordx4 {vr(ring[u % NR])}, v{vB}, {WS}, s{sB} offen offset:{256*p} sc1")
                a(f"s_add_u32 s{sB}, s{sB}, 4096" if i < 6 else f"s_sub_u32 s{sB}, s{sB}, {6*4096}")
            def Wr(p):
                it = []
                for m in range(4):
                    if p == 2: it.append(lambda m=m: a(f"v_add_u32 v{vWr[m]}, 0x10000, v{vWr[m]}"))
                    it.append(lambda m=m: S.ld(f"ds_write_b128 v{vWr[m]}, {vr(accx(p, m))} offset:{32768*(p&1)}"))
                return it
            bar = [lambda: (a("s_waitcnt lgkmcnt(0)"), S.bar())]
            st = {}
            def Rd(p):
                it = [lambda: a(f"v_add_u32 v{vRD}, 0x10000, v{vRD}")] if p >= 2 else []
                return it + [(lambda k=k: st.__setitem__(p, S.ld(f"ds_read_b128 {vr(rb[k])}, v{vRD} offset:{4096*k}"))) for k in range(8)]
            def Ad(p, pk):
                r = rb
                pairs = [(r[0], r[1]), (r[2], r[3]), (r[4], r[5]), (r[6], r[7]), (r[0], r[2]), (r[4], r[6]), (r[0], r[4])]
                ins = []
                for y, z in pairs:
                    if pk: ins += [f"v_pk_add_f32 {P(y+h)}, {P(y+h)}, {P(z+h)}" for h in (0, 2)]
                    else: ins += [f"v_add_f32 v{y+h}, v{y+h}, v{z+h}" for h in range(4)]
                ins += [f"v_cvt_pk_bf16_f32 v{r[1]+h}, v{r[0]+2*h}, v{r[0]+2*h+1}" for h in (0, 1)]
                return [lambda: S.wait_ld(st[p])] + [(lambda z=z: a(z)) for z in ins] + \
                       [lambda: S.vm(f"buffer_store_dwordx2 {P(r[1])}, v{vO}, {OS}, s{sT4} offen {self.opt.get('osc', 'nt')}"), lambda: a(f"s_add_u32 s{sT4}, s{sT4}, 32768")]
            la = int(self.opt.get('la7', 4))
            pb = {}
            ltxt = f"buffer_load_dword v{vPp}, v{vF8}, {WS}, s{sT0} offen sc1"
            def chkB():
                L0, Lr = S.lab("bchk"), S.lab("bre")
                S.wait_vm(pb[0])
                a.label(L0)
                a(f"v_cmp_ne_u32 vcc, 1, v{vPp}\n s_cbranch_vccnz {Lr}")
                S.ool.append((Lr, [f"s_add_u32 s{sCNT}, s{sCNT}, 1", f"s_cmp_gt_u32 s{sCNT}, {SPIN}", "s_cbranch_scc1 main_exit",
                                   ltxt, "s_waitcnt vmcnt(0)", f"s_branch {L0}"]))
            side = {6: bar, 8: Wr(0), 15: Wr(1), 16: bar, 22: Wr(2)}
            side[13 - 2*la] = side.get(13 - 2*la, []) + [lambda: pb.__setitem__(0, S.vm(ltxt))]
            side[13 - la] = side.get(13 - la, []) + [chkB]
            p0 = 0 if isC else 1
            ad = Ad(p0, False)
            side[17] = Rd(p0); side[18] = ad[:11]; side[19] = ad[11:22]; side[20] = ad[22:]
            for u in range(la): load(u)
            for u in range(28):
                p, i = u // 7, u % 7
                S.wait_vm(seq[u])
                items = list(side.get(u, []))
                per = -(-len(items) // 3)
                for m in range(4):
                    c0 = vr(self.hRES+4*p) if (m == 0 and not isC) else '0'
                    if not (self.opt.get('x7b') and m): a(f"v_mfma_f32_16x16x32_bf16 {vr(accx(p, m))}, {wreg(4*i+m)}, {vr(ring[u % NR])}, {c0 if i == 0 else vr(accx(p, m))}")
                    if m == 0:
                        if u + la < 28: load(u + la)
                    else:
                        for _ in range(per):
                            if items: items.pop(0)()
                if u % 7 == 6: S.ts("s7")
            S.run(Wr(3) + bar)
            S.ts()
            S.run(Rd(p0+2) + Ad(p0+2, True))
            S.ts("s7")
        self.sync_check()

    def dump_ts(self, S):
        a = S.a
        a("s_waitcnt vmcnt(0)")
        S.ts()
        a(f"""
    s_waitcnt lgkmcnt(0)
    s_lshl_b32 s{sT0}, s2, 3
    s_add_u32 s{sT0}, s{sT0}, s{sW8}
    s_lshl_b32 s{sT0}, s{sT0}, 7
    s_add_u32 s{sT0}, s{sT0}, {DBG:#x}
    v_mov_b32 v7, 0
    s_mov_b64 exec, 1""")
        assert S.nts <= 28
        for i in range(S.nts):
            a(f"v_mov_b32 v6, s{tsreg(i)}\n buffer_store_dword v6, v7, {WS}, s{sT0} offen offset:{4*i}")
        a(f"v_mov_b32 v6, s{sSLOW}\n buffer_store_dword v6, v7, {WS}, s{sT0} offen offset:124")
        a(f"v_mov_b32 v6, s{sXCC}\n buffer_store_dword v6, v7, {WS}, s{sT0} offen offset:120")

    def gen(self):
        C, H = self.C, self.H
        self.prologue(); self.qstage(); self.attention()
        for name in ("s3", "s4", "s5", "s6", "s7"): getattr(self, name)()
        for S in (C, H):
            S.a.label(f"M_{S.name}_{S.nmark}")
            if self.dbg: self.dump_ts(S)
            if S is C: S.a.label("main_exit")
            S.a("s_endpgm")
        tail = Asm()
        self.fallback()
        for S in (C, H):
            for L, body in S.ool:
                S.a.label(L)
                for x in body: S.a(x)
        C.a.label("main_end")
        H.a.lines = self.head + H.a.lines
        txt = H.a.finish() + C.a.finish()
        txt += """
.section .rodata,"a"
.p2align 6
.amdhsa_kernel """ + NAME + """_kernel
  .amdhsa_next_free_vgpr 256
  .amdhsa_next_free_sgpr 102
  .amdhsa_accum_offset 256
  .amdhsa_group_segment_fixed_size 0
  .amdhsa_kernarg_size 104
  .amdhsa_user_sgpr_count 2
  .amdhsa_user_sgpr_kernarg_segment_ptr 1
  .amdhsa_system_sgpr_workgroup_id_x 1
.end_amdhsa_kernel
"""
        return txt
```

```python
from asmlib import Asm
from layout import *
import struct, os

def f32(x):
    return "0x%08x" % struct.unpack('<I', struct.pack('<f', x))[0]

K2_LDS = 163840
LOG2E = 1.4426950408889634
QSCALE = 0.25 * LOG2E
GC1 = -2.0 * 0.7978845608028654 * LOG2E
SPIN = 0x40000
ACT = 65536
XST = ACT + 5*8192 + 256
HI = 131072
LA = 5

sW, sGRP, sMEM, sSLOW, sXCC, sW8 = 3, 16, 17, 18, 45, 44
WS, XS, OS = "s[4:7]", "s[8:11]", "s[12:15]"
sT0, sT1, sT2, sT3, sT4, sT5 = 20, 21, 22, 23, 24, 25
sG, sL, sPF, sCNT, sFLG, sAR = 26, 27, 28, 29, 30, 31
sU0, sU1 = 32, 33
sB = 34
sKVW, sTAG, sRND = 40, 41, 33
sTCH = 35
sNT, sORD = 38, 39
sVM = "s[40:41]"
sPL, sW4 = 42, 43
sPP, sPR, sPS, sPD = 46, 56, 60, 65
def tsreg(i): return 70 + 2*i if i < 16 else 46 + 2*(i-16)
vLANE, vL16, vB, vD, vMYF, vXO = 0, 1, 2, 3, 4, 5

def vr(b, n=4): return f"v[{b}:{b+n-1}]"
def V(b): return lambda ks: vr(b+4*ks)
def P(r): return f"v[{r}:{r+1}]"

class Stream:
    uid = 0
    def __init__(self, name, dbg, tags):
        self.name, self.dbg, self.tags = name, dbg, tags
        self.a = Asm(); self.nvm = self.nld = self.nts = self.nbar = 0
        self.ool = []; self.nmark = 0; self.seclen = {}
    def vm(self, text):
        self.a(text); self.nvm += 1; return self.nvm - 1
    def wait_vm(self, seq): self.a(f"s_waitcnt vmcnt({min(self.nvm - 1 - seq, 63)})")
    def ld(self, text):
        self.a(text); self.nld += 1; return self.nld - 1
    def wait_ld(self, seq): self.a(f"s_waitcnt lgkmcnt({min(self.nld - 1 - seq, 15)})")
    def bar(self): self.a("s_barrier"); self.nbar += 1
    def ts(self, tag="main"):
        if self.dbg and tag in self.tags:
            self.a(f"{'s_memtime' if self.dbg == 'cyc' else 's_memrealtime'} s[{tsreg(self.nts)}:{tsreg(self.nts)+1}]")
            self.nts += 1
    def lab(self, p):
        Stream.uid += 1; return f"L_{p}_{Stream.uid}"
    def mark(self):
        i = self.nmark; self.nmark += 1
        L = f"M_{self.name}_{i}"
        n = self.seclen.get(L)
        if n is not None and n < 4000:
            self.a(f"s_branch {L}"); self.a(f".p2align 12,,{n + 64}")
        self.a.label(L)
    def E(self, text): return [(lambda x=x: self.a(x)) for x in text.split("\n") if x.strip()]
    def set_wbase(self, base, ks, dst=sPF):
        self.a(f"s_mul_i32 s{dst}, s{sNT}, {ks*1024}\n s_add_u32 s{dst}, s{dst}, {base:#x}")
    def set_w3(self, slot):
        if slot < 3: self.a(f"s_mul_i32 s{sPF}, s{sW}, 3\n s_add_u32 s{sPF}, s{sPF}, {slot}")
        else: self.a(f"s_lshr_b32 s{sPF}, s{sW}, 1\n s_add_u32 s{sPF}, s{sPF}, 12")
        self.a(f"s_mul_i32 s{sT5}, s{sMEM}, 14\n s_add_u32 s{sPF}, s{sPF}, s{sT5}\n s_lshl_b32 s{sPF}, s{sPF}, 14\n s_add_u32 s{sPF}, s{sPF}, {W3:#x}")
    def set_act(self, base):
        self.a(f"s_lshl_b32 s{sL}, s{sW}, 11\n s_add_u32 s{sG}, s{sAR}, s{sL}\n s_add_u32 s{sG}, s{sG}, {base:#x}\n s_add_u32 s{sL}, s{sL}, {ACT}")
    def tile_soff(self, s, base):
        self.a(f"s_lshl_b32 s{s}, s{sNT}, 11\n s_add_u32 s{s}, s{s}, s{sAR}\n s_add_u32 s{s}, s{s}, {base:#x}")
    def xo_soff(self, s):
        self.a(f"s_lshl_b32 s{s}, s{sNT}, 5\n s_lshl_b32 s{sT5}, s{sGRP}, 16\n s_add_u32 s{s}, s{s}, s{sT5}")
    def act_issue(self, sc="sc1", pre=None, post=None):
        def issue(c):
            self.a(f"s_mov_b32 m0, s{sL}")
            if pre: pre(c)
            self.vm(f"buffer_load_dwordx4 v{vL16}, {WS}, s{sG} offen {sc} lds")
            last = self.vm(f"buffer_load_dwordx4 v{vL16}, {WS}, s{sG} offen offset:1024 {sc} lds")
            if post: post(c)
            self.a(f"s_add_u32 s{sG}, s{sG}, 8192\n s_add_u32 s{sL}, s{sL}, 8192")
            return last
        return issue
    def frags(self, n, sreg, dst=None, lds=None, sc="sc1"):
        def mk(i):
            def f():
                if dst is not None:
                    r = self.vm(f"buffer_load_dwordx4 {dst(i)}, v{vL16}, {WS}, s{sreg} offen offset:{1024*(i&3)} {sc}")
                else:
                    self.a(f"s_mov_b32 m0, s{lds}")
                    r = self.vm(f"buffer_load_dwordx4 v{vL16}, {WS}, s{sreg} offen offset:{1024*(i&3)} {sc} lds")
                if i & 3 == 3:
                    self.a(f"s_add_u32 s{sreg}, s{sreg}, 4096")
                    if lds is not None: self.a(f"s_add_u32 s{lds}, s{lds}, 4096")
                self.lastf = r
                return r
            return f
        return [mk(i) for i in range(n)]
    def run(self, items):
        for f in items: f()
    def setvcc(self): self.a(f"s_mov_b64 vcc, s[{sSLOW}:{sSLOW+1}]")
    NT = True
    def cstore(self, st, nt=True):
        Ls, Le = self.lab("cs"), self.lab("ce")
        self.a(f"s_cbranch_vccnz {Ls}")
        for x in st: self.vm(x + (" nt" if nt and self.NT else ""))
        self.a.label(Le)
        self.ool.append((Ls, [x + " sc1" for x in st] + [f"s_branch {Le}"]))
    def flag(self, stage, t, vf=vMYF, seq=None):
        self.a(f"s_add_u32 s{sT0}, s{sFLG}, {stage*8192}\n v_mov_b32 v{t}, 1")
        if seq is None: self.a("s_waitcnt vmcnt(0)")
        else: self.wait_vm(seq)
        self.a("s_mov_b64 exec, 1")
        self.cstore([f"buffer_store_dword v{t}, v{vf}, {WS}, s{sT0} offen"], nt=False)
        self.a("s_mov_b64 exec, -1")
    def poll(self, stage, vf, p0, mid=()):
        a = self.a; L, Ld = self.lab("poll"), self.lab("pdone"); p1 = p0 + 1
        a(f"s_add_u32 s{sT0}, s{sFLG}, {stage*8192}\n s_mov_b32 s{sCNT}, 0")
        q = self.vm(f"buffer_load_dword v{p0}, v{vf}, {WS}, s{sT0} offen sc1")
        self.run(mid)
        self.vm(f"buffer_load_dword v{p1}, v{vf}, {WS}, s{sT0} offen sc1")
        self.wait_vm(q)
        a(f"v_cmp_ne_u32 vcc, 1, v{p0}\n s_cbranch_vccz {Ld}")
        a.label(L)
        a(f"""
    buffer_load_dword v{p0}, v{vf}, {WS}, s{sT0} offen sc1
    s_waitcnt vmcnt(1)
    v_cmp_ne_u32 vcc, 1, v{p1}
    s_add_u32 s{sCNT}, s{sCNT}, 1
    s_cbranch_vccz {Ld}
    buffer_load_dword v{p1}, v{vf}, {WS}, s{sT0} offen sc1
    s_cmp_gt_u32 s{sCNT}, {SPIN}
    s_cbranch_scc1 main_exit
    s_waitcnt vmcnt(1)
    v_cmp_ne_u32 vcc, 1, v{p0}
    s_cbranch_vccnz {L}""")
        a.label(Ld)
        self.setvcc()
    def regcheck(self, r, z):
        a = self.a; L, L0 = self.lab("reg"), self.lab("reg0")
        a(f"s_mov_b32 s{sCNT}, 0")
        a.label(L0)
        a(f"""
    v_readfirstlane_b32 s{sT1}, v{r}
    s_and_b32 s{sT2}, s{sT1}, 0x0f0f0f0f
    s_lshr_b32 s{sT3}, s{sT1}, 4
    s_and_b32 s{sT3}, s{sT3}, 0x0f0f0f0f
    s_add_u32 s{sT2}, s{sT2}, s{sT3}
    s_mul_i32 s{sT2}, s{sT2}, 0x01010101
    s_lshr_b32 s{sT2}, s{sT2}, 24
    s_cmp_lg_u32 s{sT2}, 8
    s_cbranch_scc1 {L}
    s_lshl_b32 s{sT2}, s{sXCC}, 2
    s_lshl_b32 s{sT2}, 8, s{sT2}
    s_cmp_lg_u32 s{sT1}, s{sT2}
    s_cselect_b64 s[{sSLOW}:{sSLOW+1}], -1, 0""")
        self.ool.append((L, [f"s_add_u32 s{sT0}, s{sFLG}, {5*8192}", f"buffer_load_dword v{r}, v{z}, {WS}, s{sT0} offen sc1",
                             f"s_add_u32 s{sCNT}, s{sCNT}, 1", f"s_cmp_gt_u32 s{sCNT}, {SPIN}", "s_cbranch_scc1 main_exit",
                             "s_waitcnt vmcnt(0)", f"s_branch {L0}"]))
    def regload(self, r, z):
        self.a(f"s_add_u32 s{sT0}, s{sFLG}, {5*8192}\n v_mov_b32 v{z}, 0")
        return self.vm(f"buffer_load_dword v{r}, v{z}, {WS}, s{sT0} offen sc1")
    def load_gemm(self, issue, la=LA, side=None, tag=None, ramp=True):
        side = side or {}
        seqs = {}
        if tag: self.ts(tag)
        ni = 3
        for c in range(ni): seqs[c] = issue(c)
        self.run(side.get(-1, []))
        if tag: self.ts(tag)
        for c in range(8):
            self.wait_vm(seqs[c])
            self.run(side.get((c, 'pre'), []))
            if tag: self.ts(tag)
            self.bar()
            for _ in range(2 if (c < 2 and ramp) else 1):
                if ni < 8: seqs[ni] = issue(ni); ni += 1
            self.run(side.get(c, []))
    def cons_gemm(self, areg, ACC, BP, side=None, prewait=None, defer=None, tag=None, baddr=None, prebar=None, postbar=None, onebar=False):
        a = self.a
        side = {k: list(v) for k, v in (side or {}).items()}
        work = [[(2*c+s, jt) for s in range(2) for jt in range(4) if not (defer and defer(2*c+s) == jt)] for c in range(8)]
        if defer: work += [[(ks, defer(ks)) for ks in range(8)], [(ks, defer(ks)) for ks in range(8, 16)]]
        nch = len(work); rs = {}; started = set()
        def read(c, i):
            ks, jt = work[c][i]
            r, off = baddr(ks, jt) if baddr else (vB, 4096*ks + 256*jt)
            rs[(c, i)] = self.ld(f"ds_read_b128 {vr(BP+4*i)}, v{r} offset:{off}")
        if tag: self.ts(tag)
        if prebar: prebar(0)
        self.bar()
        if postbar: postbar(0)
        for i in range(len(work[0])): read(0, i)
        if tag: self.ts(tag)
        for c in range(nch):
            nxt = c + 1 < nch
            if c + 1 < 8 and prebar: prebar(c+1)
            if (c + 1 < 8 or (c + 1 == 8 and defer)) and not onebar: self.bar()
            if c + 1 < 8 and postbar: postbar(c+1)
            if prewait: prewait(c)
            items = side.pop(c, [])
            n = len(work[c]); nn = len(work[c+1]) if nxt else 0
            per = -(-len(items) // n)
            for i in range(n, nn): read(c+1, i)
            for i in range(n):
                ks, jt = work[c][i]
                if i % 2 == 0: self.wait_ld(rs[(c, min(i+1, n-1))])
                cc = vr(ACC+4*jt) if jt in started else "0"
                started.add(jt)
                a(f"v_mfma_f32_16x16x32_bf16 {vr(ACC+4*jt)}, {areg(ks)}, {vr(BP+4*i)}, {cc}")
                if i < nn: read(c+1, i)
                for _ in range(per):
                    if items: items.pop(0)()
            if tag: self.ts(tag)
        assert not side
    def gelu(self, acc, cs, S, out, t, pk):
        I = []
        if pk:
            for i in (0, 2): I.append(f"v_pk_fma_f32 {P(acc+i)}, {P(S)}, {P(cs+i)}, {P(acc+i)} op_sel_hi:[0,1,1] neg_lo:[1,0,0] neg_hi:[1,0,0]")
            for i in (0, 2): I.append(f"v_pk_mul_f32 {P(t+i)}, {P(acc+i)}, {P(acc+i)}")
            for i in (0, 2): I.append(f"v_pk_fma_f32 {P(t+i)}, {P(S+2)}, {P(t+i)}, {P(S+2)} op_sel:[1,0,0] op_sel_hi:[1,1,0]")
            for i in (0, 2): I.append(f"v_pk_mul_f32 {P(t+i)}, {P(t+i)}, {P(acc+i)}")
            for i in range(4): I.append(f"v_exp_f32 v{t+i}, v{t+i}")
            for i in (0, 2): I.append(f"v_pk_fma_f32 {P(t+i)}, {P(S)}, {P(t+i)}, {P(S)} op_sel:[1,0,1] op_sel_hi:[1,1,1]")
            for i in range(4): I.append(f"v_rcp_f32 v{t+i}, v{t+i}")
            for i in (0, 2): I.append(f"v_pk_mul_f32 {P(acc+i)}, {P(acc+i)}, {P(t+i)}")
        else:
            for i in range(4): I.append(f"v_fma_f32 v{acc+i}, -v{S}, v{cs+i}, v{acc+i}")
            for i in range(4): I.append(f"v_mul_f32 v{t+i}, v{acc+i}, v{acc+i}")
            for i in range(4): I.append(f"v_fma_f32 v{t+i}, v{t+i}, v{S+3}, v{S+2}")
            for i in range(4): I.append(f"v_mul_f32 v{t+i}, v{t+i}, v{acc+i}")
            for i in range(4): I.append(f"v_exp_f32 v{t+i}, v{t+i}")
            for i in range(4): I.append(f"v_fma_f32 v{t+i}, v{t+i}, v{S+1}, v{S+1}")
            for i in range(4): I.append(f"v_rcp_f32 v{t+i}, v{t+i}")
            for i in range(4): I.append(f"v_mul_f32 v{acc+i}, v{acc+i}, v{t+i}")
        return I + [f"v_cvt_pk_bf16_f32 v{out}, v{acc}, v{acc+1}", f"v_cvt_pk_bf16_f32 v{out+1}, v{acc+2}, v{acc+3}"]
    def gelu2(self, x, y, t, pk):
        p, q = self.gelu(*x, t, pk), self.gelu(*y, t+4, pk)
        return [z for pair in zip(p, q) for z in pair]
    def colsum(self, areg, dst, ones):
        for i in range(4): self.a(f"v_mov_b32 v{ones+i}, 0x3f803f80")
        for ks in range(16):
            self.a(f"v_mfma_f32_16x16x32_bf16 {vr(dst)}, {areg(ks)}, {vr(ones)}, {'0' if ks == 0 else vr(dst)}")
    def unpack(self, src, dst): self.a(f"v_lshlrev_b32 v{dst}, 16, v{src}\n v_and_b32 v{dst+1}, 0xffff0000, v{src}")
    def lds2reg(self, dst, n, va):
        for i in range(n): self.ld(f"ds_read_b128 {dst(i)}, v{va} offset:{1024*i}")
    def stat_reads(self, STAT, va, order, R1=None):
        it = []
        for jt in range(4):
            if order: x = f"ds_read_b128 {vr(STAT+4*jt)}, v{va+(jt&1)} offset:{512*(jt>>1)}"
            else: x = f"ds_read_b128 {vr(STAT+4*jt)}, v{va} offset:{256*jt}"
            it.append(lambda x=x: setattr(self, 'stseq', self.ld(x)))
        if R1 is not None:
            for jt in range(4):
                it.append(lambda jt=jt: setattr(self, 'stseq', self.ld(f"ds_read_b32 v{R1+jt}, v{va} offset:{1024 + 256*jt}")))
        return it

class Main:
    def __init__(self, dbg=False, tags=('main',), opt=None, seclen=None):
        self.dbg = dbg; self.opt = opt or {}
        Stream.uid = 0; Stream.NT = not self.opt.get('nont')
        self.C = Stream('C', dbg, tags); self.H = Stream('H', dbg, tags)
        self.C.seclen = self.H.seclen = seclen or {}
    def sync_check(self): assert self.C.nbar == self.H.nbar, (self.C.nbar, self.H.nbar)

    def prologue(self):
        C, H = self.C, self.H; a = C.a
        a(f".text\n.globl {NAME}_kernel\n.p2align 12\n.type {NAME}_kernel,@function")
        a.label(f"{NAME}_kernel")
        a.label("main_kernel")
        a(f"""
    s_cmp_ge_u32 s2, 256
    s_cbranch_scc1 main_exit
    s_load_dwordx2 s[4:5], s[0:1], 96
    s_load_dwordx2 s[8:9], s[0:1], 0
    s_load_dwordx2 s[12:13], s[0:1], 80
    s_load_dwordx2 s[{sPR}:{sPR+1}], s[0:1], 8
    s_load_dwordx4 s[32:35], s[0:1], 16
    s_load_dwordx2 s[{sPP}:{sPP+1}], s[0:1], 32
    s_load_dwordx8 s[{sPP+2}:{sPP+9}], s[0:1], 48""")
        if self.dbg:
            a(f"{'s_memtime' if self.dbg == 'cyc' else 's_memrealtime'} s[70:71]"); C.nts = H.nts = 1
        a(f"""
    v_lshrrev_b32 v1, 6, v0
    v_and_b32 v{vLANE}, 63, v0
    v_readfirstlane_b32 s{sW8}, v1
    s_and_b32 s{sT0}, s2, 7
    s_lshr_b32 s{sT1}, s2, 3
    s_lshl_b32 s{sGRP}, s{sT0}, 2
    s_lshr_b32 s{sT2}, s{sT1}, 3
    s_add_u32 s{sGRP}, s{sGRP}, s{sT2}
    s_and_b32 s{sMEM}, s{sT1}, 7
    s_and_b32 s{sW}, s{sW8}, 3
    s_mul_i32 s{sAR}, s{sGRP}, {GA:#x}
    s_lshl_b32 s{sNT}, s{sMEM}, 2
    s_add_u32 s{sNT}, s{sNT}, s{sW}
    v_lshlrev_b32 v{vL16}, 4, v{vLANE}
    s_getpc_b64 s[42:43]""")
        a.label("L_pc0")
        a(f"""
    s_sub_u32 s42, s42, L_pc0-main_kernel
    s_subb_u32 s43, s43, 0
    s_lshl_b32 s{sT1}, s{sT1}, 3
    s_add_u32 s{sT1}, s{sT1}, s{sW8}
    s_lshl_b32 s{sT1}, s{sT1}, 8
    v_and_b32 v9, 1, v{vLANE}
    v_lshlrev_b32 v9, 7, v9
    v_add_u32 v9, s{sT1}, v9
    v_min_u32 v9, main_end-main_kernel-4, v9
    global_load_dword v255, v9, s[42:43]
    s_mov_b32 s6, {WS_USED:#x}
    s_mov_b32 s7, 0x20000
    v_lshrrev_b32 v8, 3, v{vLANE}
    s_mov_b32 s10, {2048*1024:#x}
    s_mov_b32 s11, 0x20000
    s_mov_b32 s{sPR+3}, 0x20000
    s_cmp_ge_u32 s{sW8}, 4
    s_cbranch_scc1 H_entry
    v_bfe_u32 v9, v{vLANE}, 4, 1
    s_and_b32 s{sT0}, s{sW}, 1
    s_lshl_b32 s{sT0}, s{sT0}, 1
    v_or_b32 v9, s{sT0}, v9
    v_bfe_u32 v10, v{vLANE}, 1, 2
    v_xor_b32 v9, v9, v10
    v_lshlrev_b32 v9, 5, v9
    v_and_b32 v10, 1, v{vLANE}
    v_lshl_add_u32 v9, v10, 4, v9
    v_lshl_add_u32 v134, v8, 10, v9
    s_mov_b32 s{sPR+2}, 0x80000
    s_lshl_b32 s{sG}, s{sW}, 13
    s_lshl_b32 s{sT0}, s{sMEM}, 7
    s_add_u32 s{sG}, s{sG}, s{sT0}
    s_lshl_b32 s{sL}, s{sW}, 10
    s_add_u32 s{sL}, s{sL}, 98304
    s_waitcnt lgkmcnt(0)
    s_and_b32 s{sPR+1}, s{sPR+1}, 0xffff""")
        a.label("L_wq")
        a(f"""
    s_mov_b32 m0, s{sL}
    s_add_u32 s{sL}, s{sL}, 4096
    buffer_load_dwordx4 v134, s[{sPR}:{sPR+3}], s{sG} offen lds
    s_add_u32 s{sG}, s{sG}, 32768
    s_cmp_lt_u32 s{sL}, 163840
    s_cbranch_scc1 L_wq
    s_branch C_entry""")
        C.nvm += 16
        a.label("H_entry")
        self.head = a.lines; a.lines = []
        a(".p2align 8"); a.label("C_entry")
    def setup_common(self, S, t):
        S.a(f"""
    s_mov_b32 s14, {2048*1024:#x}
    s_mov_b32 s15, 0x20000
    s_getreg_b32 s{sXCC}, hwreg(HW_REG_XCC_ID, 0, 3)
    v_and_b32 v{t}, 15, v{vLANE}                  ; t
    v_lshrrev_b32 v{t+1}, 4, v{vLANE}             ; g
    v_lshlrev_b32 v{vB}, 10, v{t+1}
    v_lshl_add_u32 v{vB}, v{t}, 4, v{vB}
    v_add_u32 v{vB}, {ACT}, v{vB}                 ; ACT + g*1024 + t*16
    v_lshrrev_b32 v{vD}, 1, v{t+1}
    v_lshlrev_b32 v{vD}, 10, v{vD}
    v_lshl_add_u32 v{vD}, v{t}, 4, v{vD}
    v_and_b32 v{t+2}, 1, v{t+1}
    v_lshl_add_u32 v{vD}, v{t+2}, 3, v{vD}        ; (g>>1)*1024 + t*16 + (g&1)*8
    s_lshl_b32 s{sT0}, s{sNT}, 2
    v_mov_b32 v{vMYF}, s{sT0}
    s_lshl_b32 s{sFLG}, s{sGRP}, 8
    s_add_u32 s{sFLG}, s{sFLG}, {FLAGS:#x}
    v_lshlrev_b32 v{t+2}, 10, v{t}
    v_lshl_add_u32 v{vXO}, v{t+1}, 3, v{t+2}      ; t*1024 + g*8
    s_and_b32 s{sORD}, s{sW}, 1
    s_lshl_b32 s{sORD}, s{sORD}, 8""")

    cT = 6
    S0, S1, NEGM, OA, OB, QA, QB, vIDX, vKA, vVA, vREG = 24, 40, 56, 72, 88, 16, 20, 13, 14, 15, 11
    KVR = 104
    NB = 1
    SCR = 16384
    def x_addr(self, S, dst, t, x):
        S.a(f"""
    v_lshrrev_b32 v{x}, 4, v{vLANE}
    v_and_b32 v{x+1}, 7, v{vLANE}
    v_xor_b32 v{x+1}, v{x+1}, v{x}
    v_lshlrev_b32 v{x+1}, 4, v{x+1}
    v_lshl_add_u32 v{dst}, v{t}, 7, v{x+1}
    v_add_u32 v{dst}, 32768, v{dst}""")
    def qstage(self):
        C, H = self.C, self.H; a = C.a; t = self.cT
        WQR, QACC, QBP = 192, 24, 40
        XB, WB = 32768, 98304
        QS = 144
        a("s_and_b32 s5, s5, 0xffff\n s_and_b32 s13, s13, 0xffff")
        wqseq = C.nvm - 1
        if not self.opt.get('hprep'):
            self.prep_setup(C, 152); self.prep_load(C, 152, 164)
        self.setup_common(C, t)
        a(f"""
    s_mov_b32 s40, 0xffff
    s_mov_b32 s41, 0xffff
    v_mov_b32 v{self.vIDX}, 0xdddddddd
    v_mov_b32 v{self.vKA}, v{vL16}
    v_lshrrev_b32 v{t+1}, 5, v{vLANE}
    v_lshlrev_b32 v{t+1}, 8, v{t+1}
    v_lshl_add_u32 v{self.vVA}, v{t}, 4, v{t+1}   ; hA*256 + d*16""")
        for i in range(32): a(f"v_mov_b32 v{self.OA+i}, 0")
        a(f"v_and_b32 v{t+1}, 31, v{vLANE}\n v_cmp_eq_u32 vcc, 16, v{t+1}\n v_mov_b32 v{t+1}, 0x3f803f80")
        for b in range(2):
            for i in range(8): a(f"v_cndmask_b32 v{self.KVR+12*b+4+i}, 0, v{t+1}, vcc")
        self.x_addr(C, 130, t, t+1)
        a(f"""
    v_xor_b32 v131, 64, v130
    v_bfe_u32 v{t+2}, v{vLANE}, 2, 2
    v_lshl_add_u32 v132, v{t+1}, 3, v{t+2}
    v_lshlrev_b32 v132, 7, v132
    v_and_b32 v{t+1}, 1, v{t+1}
    v_lshrrev_b32 v{t+2}, 1, v{t+2}
    v_lshl_add_u32 v{t+1}, v{t+1}, 1, v{t+2}
    v_xor_b32 v{t+1}, s{sW}, v{t+1}
    v_lshl_add_u32 v132, v{t+1}, 5, v132
    v_and_b32 v{t+2}, 3, v{vLANE}
    v_lshl_add_u32 v132, v{t+2}, 3, v132
    v_add_u32 v132, {WB}, v132
    v_lshlrev_b32 v133, 3, v{t}""")
        ONE, CSQ = 136, 140
        for i in range(4): a(f"v_mov_b32 v{ONE+i}, 0x3f803f80")
        PW = self.opt.get("pw", "after")
        if PW == "before":
            a("s_waitcnt vmcnt(0)"); self.prep_finish(C, 152, 164)
        else: C.wait_vm(wqseq)
        def postbar(c):
            for ks in (2*c, 2*c+1):
                C.ld(f"ds_read_b64_tr_b16 {P(WQR+4*ks)}, v132 offset:{4096*ks}")
                C.ld(f"ds_read_b64_tr_b16 {P(WQR+4*ks+2)}, v132 offset:{4096*ks+512}")
        side = {c: [(lambda ks=ks: a(f"v_mfma_f32_16x16x32_bf16 {vr(CSQ)}, {vr(WQR+4*ks)}, {vr(ONE)}, {'0' if ks == 0 else vr(CSQ)}")) for ks in (2*c, 2*c+1)] for c in range(8)}
        side[5] += [(lambda jt=jt: C.ld(f"ds_read_b64 {P(QS+2*jt)}, v133 offset:{self.SCR + 128*jt}")) for jt in range(4)]
        C.cons_gemm(V(WQR), QACC, QBP, side=side, baddr=lambda ks, jt: (130 + (ks & 1), 8192*(ks >> 1) + 2048*jt),
                    postbar=postbar, tag="q", onebar=True)
        C.ts()
        QA, QB = self.QA, self.QB
        for jt in range(4): a(f"v_mul_f32 v{QS+2*jt+1}, {f32(QSCALE)}, v{QS+2*jt+1}")
        for jt in range(4):
            for h in (0, 2): a(f"v_pk_fma_f32 {P(QACC+4*jt+h)}, {P(QS+2*jt)}, {P(CSQ+h)}, {P(QACC+4*jt+h)} op_sel_hi:[0,1,1] neg_lo:[1,0,0] neg_hi:[1,0,0]")
        for jt in range(4):
            for h in (0, 2): a(f"v_pk_mul_f32 {P(QACC+4*jt+h)}, {P(QS+2*jt)}, {P(QACC+4*jt+h)} op_sel:[1,0] op_sel_hi:[1,1]")
        for jt in range(4):
            a(f"v_cvt_pk_bf16_f32 v{QA+2*jt}, v{QACC+4*jt}, v{QACC+4*jt+1}")
            a(f"v_cvt_pk_bf16_f32 v{QA+2*jt+1}, v{QACC+4*jt+2}, v{QACC+4*jt+3}")
        a(f"v_mov_b32 v{t}, 0\n v_mov_b32 v{t+1}, 0")
        for q in (QA, QB): a(f"v_permlane16_swap_b32 v{q}, v{q+2}\n v_permlane16_swap_b32 v{q+1}, v{q+3}")
        for i in range(4): a(f"v_dot2_f32_bf16 v{t}, v{QA+i}, v{QA+i}, v{t}\n v_dot2_f32_bf16 v{t+1}, v{QB+i}, v{QB+i}, v{t+1}")
        a(f"""
    v_permlane32_swap_b32 v{t}, v{t+1}
    v_add_f32 v{t}, v{t}, v{t+1}
    v_mov_b32 v{t+1}, v{t}
    v_permlane32_swap_b32 v{t}, v{t+1}
    v_max_f32 v{t}, v{t}, v{t+1}
    v_sqrt_f32 v{t}, v{t}
    v_mov_b32 v133, {self.SCR + 512}""")
        if PW != "before" and not self.opt.get('hprep'):
            a("s_waitcnt vmcnt(0)"); self.prep_finish(C, 152, 164)
        C.ts("q"); C.bar(); C.ts("q")
        a(f"""
    ds_read_b64 v[128:129], v133
    s_waitcnt lgkmcnt(0)
    v_mul_f32 v{self.NEGM}, v{t}, v128
    v_readfirstlane_b32 s{sSLOW}, v129""")
        for i in range(1, 16): a(f"v_mov_b32 v{self.NEGM+i}, v{self.NEGM}")
        a(f"s_mov_b32 s{sSLOW+1}, s{sSLOW}")

        a = H.a; v = self.PV
        XF, WF = 64, 128
        a(f"""
    s_setprio 3
    v_and_b32 v9, 7, v{vLANE}
    v_xor_b32 v9, v9, v8
    v_lshlrev_b32 v9, 4, v9
    v_lshl_add_u32 v19, v8, 10, v9
    s_lshl_b32 s{sPF}, s{sGRP}, 16
    s_lshl_b32 s{sT0}, s{sW}, 14
    s_add_u32 s{sPF}, s{sPF}, s{sT0}
    s_lshl_b32 s{sL}, s{sW}, 11
    s_add_u32 s{sL}, s{sL}, {XB}
    s_lshr_b32 s{sKVW}, s{sMEM}, 1
    s_mov_b32 s{sPR+2}, 16384
    v_mov_b32 v7, 0
    s_bitcmp1_b32 s{sMEM}, 0
    s_waitcnt lgkmcnt(0)
    s_cselect_b64 s[{sPR}:{sPR+1}], s[34:35], s[32:33]
    s_and_b32 s5, s5, 0xffff
    s_and_b32 s9, s9, 0xffff
    s_and_b32 s13, s13, 0xffff
    s_and_b32 s{sPR+1}, s{sPR+1}, 0xffff
    s_mov_b32 s{sT0}, {TAGW:#x}
    buffer_load_dword v47, v7, {WS}, s{sT0} offen sc1""")
        a(f"s_mov_b32 s{sT1}, s{sMEM}\n s_add_u32 s{sT2}, s{sMEM}, 8")
        a.label("L_x")
        a(f"""
    s_and_b32 s{sT0}, s{sT1}, 7
    s_lshl_b32 s{sG}, s{sT0}, 7
    s_add_u32 s{sG}, s{sG}, s{sPF}
    s_lshl_b32 s{sT0}, s{sT0}, 13
    s_add_u32 m0, s{sT0}, s{sL}
    s_add_u32 s{sT1}, s{sT1}, 1
    buffer_load_dwordx4 v19, {XS}, s{sG} offen lds
    s_add_u32 s{sG}, s{sG}, {8192 - 1024}
    s_cmp_lt_u32 s{sT1}, s{sT2}
    buffer_load_dwordx4 v19, {XS}, s{sG} offen offset:1024 lds
    s_cbranch_scc1 L_x""")
        H.nvm += 16
        L = H.lab("nokv1")
        a(f"s_cmp_lg_u32 s{sKVW}, s{sW}\n s_cbranch_scc1 {L}\n s_mov_b32 s{sT0}, 0")
        a.label("L_wk")
        a(f"s_mov_b32 m0, s{sT0}\n s_nop 0")
        for k in range(4): a(f"buffer_load_dwordx4 v{vL16}, s[{sPR}:{sPR+3}], s{sT0} offen offset:{1024*k} lds")
        a(f"s_add_u32 s{sT0}, s{sT0}, 4096\n s_cmp_lt_u32 s{sT0}, 16384\n s_cbranch_scc1 L_wk")
        a.label(L)
        self.setup_common(H, 16)
        if self.opt.get('hprep'): self.prep_setup(H, 200, HI)
        self.x_addr(H, 40, 16, 42)
        a(f"s_lshl_b32 s{sT0}, s{sW}, 11\n v_add_u32 v40, s{sT0}, v40\n v_xor_b32 v41, 64, v40")
        a("v_mov_b32 v32, 0\n v_mov_b32 v33, 0\n v_mov_b32 v34, 0\n v_mov_b32 v35, 0\n v_mov_b32 v60, 0x3f803f80\n v_mov_b32 v61, 0x3f803f80\n v_mov_b32 v62, 0x3f803f80\n v_mov_b32 v63, 0x3f803f80")
        H.ts("q")
        L, L2 = H.lab("noinit"), H.lab("initd")
        a(f"s_cmp_lg_u32 s{sKVW}, s{sW}\n s_cbranch_scc1 {L}")
        a(f"""
    v_mov_b32 v48, 0
    v_mov_b32 v49, 0
    v_mov_b32 v50, 0
    v_mov_b32 v51, 0
    v_lshrrev_b32 v52, 1, v{vLANE}
    v_lshlrev_b32 v52, 13, v52
    v_and_b32 v53, 1, v{vLANE}
    v_lshl_add_u32 v52, v53, 4, v52
    s_lshl_b32 s{sT0}, s{sMEM}, 5
    s_add_u32 s{sT0}, s{sT0}, s{sFLG}
    s_mov_b64 exec, 0x3fff
    buffer_store_dwordx4 v[48:51], v52, {WS}, s{sT0} offen sc1
    s_lshl_b32 s{sT0}, s2, 7
    s_add_u32 s{sT0}, s{sT0}, {PFLAG:#x}
    s_mov_b64 exec, 1
    buffer_store_dword v48, v7, {WS}, s{sT0} offen sc1
    s_mov_b64 exec, -1
    v_mov_b32 v52, -1
    v_mov_b32 v53, -1
    v_mov_b32 v54, -1
    v_mov_b32 v55, -1
    s_lshl_b32 s{sT0}, s{sMEM}, 10
    s_add_u32 s{sT0}, s{sT0}, s{sAR}
    s_add_u32 s{sT0}, s{sT0}, {ST1:#x}
    buffer_store_dwordx4 v[52:55], v{vL16}, {WS}, s{sT0} offen sc1
    s_bfe_u32 s{sT1}, s{sMEM}, 0x10001
    s_mul_i32 s{sT1}, s{sT1}, 31
    s_cmp_eq_u32 s{sT1}, s{sGRP}
    s_cselect_b32 s{sT1}, 0, -1
    v_mov_b32 v56, s{sT1}
    v_mov_b32 v57, s{sT1}
    v_mov_b32 v58, s{sT1}
    v_mov_b32 v59, s{sT1}
    s_lshl_b32 s{sT0}, s{sMEM}, 8
    s_add_u32 s{sT0}, s{sT0}, s{sAR}
    s_add_u32 s{sT0}, s{sT0}, {HALO:#x}
    s_mov_b64 exec, 0xffff
    buffer_store_dwordx4 v[56:59], v{vL16}, {WS}, s{sT0} offen sc1
    s_mov_b64 exec, -1""")
        a(f"s_waitcnt vmcnt(4)\n s_branch {L2}")
        a.label(L)
        a("s_waitcnt vmcnt(0)")
        a.label(L2)
        H.ts("q")
        rs = [H.ld(f"ds_read_b128 {vr(XF+4*ks)}, v{40 + (ks & 1)} offset:{8192*(ks >> 1)}") for ks in range(16)]
        L = H.lab("nokv2")
        a(f"""
    s_cmp_lg_u32 s{sKVW}, s{sW}
    s_cbranch_scc1 {L}
    v_bfe_u32 v42, v{vLANE}, 2, 2
    v_lshl_add_u32 v42, v17, 3, v42
    v_lshlrev_b32 v42, 5, v42
    v_and_b32 v43, 3, v{vLANE}
    v_lshl_add_u32 v42, v43, 3, v42""")
        for ks in range(16):
            a(f"ds_read_b64_tr_b16 {P(WF+4*ks)}, v42 offset:{1024*ks}\n ds_read_b64_tr_b16 {P(WF+4*ks+2)}, v42 offset:{1024*ks+128}")
        a.label(L)
        for ks in range(16):
            if ks % 2 == 0: H.wait_ld(rs[ks+1])
            a(f"v_mfma_f32_16x16x32_bf16 v[36:39], v[60:63], {vr(XF+4*ks)}, {'0' if ks == 0 else 'v[36:39]'}")
            for i in range(4): a(f"v_dot2_f32_bf16 v{32+i}, v{XF+4*ks+i}, v{XF+4*ks+i}, v{32+i}")
        a(f"""
    v_add_f32 v32, v32, v33
    v_add_f32 v34, v34, v35
    v_add_f32 v45, v32, v34
    v_mov_b32 v44, v45
    v_permlane32_swap_b32 v44, v45
    v_add_f32 v45, v44, v45
    v_mov_b32 v44, v45
    v_permlane16_swap_b32 v44, v45
    v_add_f32 v45, v44, v45
    v_mul_f32 v44, 0x3b000000, v36
    v_mul_f32 v45, 0x3b000000, v45
    v_fma_f32 v45, -v44, v44, v45
    v_max_f32 v45, 0, v45
    v_add_f32 v45, 0x3727c5ac, v45
    v_rsq_f32 v45, v45
    s_lshl_b32 s{sT0}, s{sW}, 7
    v_lshl_add_u32 v46, v16, 3, s{sT0}
    ds_write_b64 v46, v[44:45] offset:{self.SCR}""")
        a(f"v_readfirstlane_b32 s{sTAG}, v47\n s_add_u32 s{sTAG}, s{sTAG}, 1")
        L, Lv, Lp = H.lab("nokv3"), H.lab("isv"), H.lab("pub")
        a(f"""
    s_waitcnt lgkmcnt(0)
    s_cmp_lg_u32 s{sKVW}, s{sW}
    s_cbranch_scc1 {L}
    s_lshl_b32 s{sT1}, s{sGRP}, 1
    s_lshr_b32 s{sT2}, s{sW}, 1
    s_add_u32 s{sT1}, s{sT1}, s{sT2}
    s_lshl_b32 s{sT1}, s{sT1}, 11
    s_add_u32 s{sT1}, s{sT1}, {KV:#x}             ; tile32*2048
    v_lshrrev_b32 v42, 1, v17                     ; hA
    v_and_b32 v43, 0xff, v{vD}                    ; (t or d)*16 + (g&1)*8
    s_bitcmp1_b32 s{sMEM}, 0
    s_cbranch_scc1 {Lv}""")
        for ks in range(16):
            a(f"v_mfma_f32_16x16x32_bf16 v[48:51], {vr(WF+4*ks)}, {vr(XF+4*ks)}, {'0' if ks == 0 else 'v[48:51]'}")
            a(f"v_mfma_f32_16x16x32_bf16 v[52:55], {vr(WF+4*ks)}, v[60:63], {'0' if ks == 0 else 'v[52:55]'}")
        a(f"s_add_u32 s{sT1}, s{sT1}, s{sORD}\n v_lshl_add_u32 v43, v42, 9, v43")
        for i in range(4): a(f"v_fma_f32 v{48+i}, -v44, v{52+i}, v{48+i}")
        for i in range(4): a(f"v_mul_f32 v{48+i}, v{48+i}, v45")
        a(f"""
    v_cvt_pk_bf16_f32 v52, v48, v49
    v_cvt_pk_bf16_f32 v53, v50, v51
    v_mov_b32 v57, 0
    buffer_store_dwordx2 v[52:53], v43, {WS}, s{sT1} offen sc1
    v_dot2_f32_bf16 v57, v52, v52, v57
    v_dot2_f32_bf16 v57, v53, v53, v57
    v_mov_b32 v58, v57
    v_permlane32_swap_b32 v57, v58
    v_add_f32 v57, v57, v58
    v_mov_b32 v58, v57
    v_permlane16_swap_b32 v57, v58
    v_add_f32 v57, v57, v58""")
        for r in (8, 4, 2, 1): a(f"v_max_f32_dpp v57, v57, v57 row_ror:{r} row_mask:0xf bank_mask:0xf")
        a(f"s_branch {Lp}")
        a.label(Lv)
        a(f"v_lshl_add_u32 v46, v17, 5, s{sT0}\n ds_read_b128 v[32:35], v46 offset:{self.SCR}\n ds_read_b128 v[36:39], v46 offset:{self.SCR+16}")
        for ks in range(16):
            a(f"v_mfma_f32_16x16x32_bf16 v[48:51], {vr(XF+4*ks)}, {vr(WF+4*ks)}, {'0' if ks == 0 else 'v[48:51]'}")
            a(f"v_mfma_f32_16x16x32_bf16 v[52:55], v[60:63], {vr(WF+4*ks)}, {'0' if ks == 0 else 'v[52:55]'}")
        a(f"s_lshl_b32 s{sT2}, s{sORD}, 1\n s_add_u32 s{sT1}, s{sT1}, s{sT2}\n v_lshl_add_u32 v43, v42, 8, v43\n s_waitcnt lgkmcnt(0)")
        for i in range(4): a(f"v_fma_f32 v{48+i}, -v{32+2*i}, v{52+i}, v{48+i}")
        for i in range(4): a(f"v_mul_f32 v{48+i}, v{48+i}, v{33+2*i}")
        a(f"""
    v_cvt_pk_bf16_f32 v52, v48, v49
    v_cvt_pk_bf16_f32 v53, v50, v51
    v_mov_b32 v57, 0
    buffer_store_dwordx2 v[52:53], v43, {WS}, s{sT1} offen offset:1024 sc1""")
        a.label(Lp)
        a(f"""
    v_mov_b32 v56, s{sTAG}
    v_mov_b32 v58, s{sXCC}
    v_mov_b32 v59, s{sTAG}
    s_lshl_b32 s{sT0}, s{sGRP}, 3
    s_add_u32 s{sT0}, s{sT0}, s{sMEM}
    s_lshl_b32 s{sT0}, s{sT0}, 7
    s_add_u32 s{sT0}, s{sT0}, {KFLAG:#x}
    s_waitcnt vmcnt(0)
    s_mov_b64 exec, 1
    buffer_store_dwordx4 v[56:59], v7, {WS}, s{sT0} offen sc1
    s_mov_b64 exec, -1""")
        a.label(L)
        H.ts("q")
        a("s_setprio 0")
        H.bar()
        a(f"v_lshlrev_b32 v{self.TA}, 7, v{vLANE}\n v_and_b32 v46, 0xfff, v{self.TA}\n s_lshr_b32 s{sRND}, s{sGRP}, 2")
        self.kpoll(46, True)
        self.kv(1)
        a(f"""
    s_and_b32 s{sT0}, s{sGRP}, 3
    s_lshl_b32 s{sT0}, s{sT0}, 3
    s_lshl_b32 s{sT0}, 0xff, s{sT0}
    v_cmp_ne_u32 vcc, s{sXCC}, v50
    s_and_b32 s{sT0}, s{sT0}, vcc_lo
    s_cselect_b64 s[{sSLOW}:{sSLOW+1}], -1, 0""")
        for r in (8, 4, 2, 1): a(f"v_max_f32_dpp v49, v49, v49 row_ror:{r} row_mask:0xf bank_mask:0xf")
        a(f"""
    v_mov_b32 v50, v49
    v_permlane16_swap_b32 v49, v50
    v_max_f32 v49, v49, v50
    v_sqrt_f32 v49, v49
    v_mov_b32 v51, s{sSLOW}
    v_mul_f32 v50, -1.0, v49
    v_mov_b32 v46, {self.SCR + 512}
    ds_write_b64 v46, v[50:51]
    s_waitcnt lgkmcnt(0)""")
        H.ts("q")
        H.bar()
        self.kv01 = self.kvseq
        self.sync_check()
    TA = 18
    def kpoll(self, va, first=False):
        H = self.H; a = H.a; L = H.lab("kp")
        a(f"s_lshl_b32 s{sT0}, s{sRND}, 12\n s_add_u32 s{sT0}, s{sT0}, {KFLAG:#x}\n s_mov_b32 s{sCNT}, 0")
        a.label(L)
        a(f"""
    buffer_load_dwordx4 v[48:51], v{va}, {WS}, s{sT0} offen sc1
    s_add_u32 s{sCNT}, s{sCNT}, 1
    s_cmp_gt_u32 s{sCNT}, {SPIN}
    s_cbranch_scc1 main_exit
    s_waitcnt vmcnt(0)
    v_cmp_ne_u32 vcc, s{sTAG}, v48
    v_cmp_ne_u32 s[36:37], s{sTAG}, v51
    s_or_b64 vcc, vcc, s[36:37]
    s_cbranch_vccnz {L}""")
    nkv = 0
    def kv(self, n):
        H = self.H
        for r in range(n):
            H.a(f"""
    s_lshl_b32 s{sW4}, s{sRND}, 14
    s_lshl_b32 s{sPL}, s{sW}, 12
    s_add_u32 s{sW4}, s{sW4}, s{sPL}
    s_add_u32 s{sW4}, s{sW4}, {KV:#x}
    s_add_u32 m0, s{sPL}, {16384*self.nkv}
    s_add_u32 s{sRND}, s{sRND}, 1
    s_and_b32 s{sRND}, s{sRND}, 7""")
            self.nkv += 1
            for i in range(4): self.kvseq = H.vm(f"buffer_load_dwordx4 v{vL16}, {WS}, s{sW4} offen offset:{1024*i} sc1 lds")

    PV = 20
    def prep_setup(self, S, v, win=20480):
        a = S.a
        T0, T1, T2, T3 = sT0, sT1, sT2, sT3
        def dst(i, base): a(f"s_lshl_b32 s{sPD+i}, s{T2}, 10\n s_lshl_b32 s{T3}, s{sW}, 8\n s_add_u32 s{sPD+i}, s{sPD+i}, s{T3}\n s_add_u32 s{sPD+i}, s{sPD+i}, {base:#x}")
        def std(q, i, base, rows=True):
            a(f"""
    s_lshr_b32 s{T1}, s{q}, 3
    s_and_b32 s{T2}, s{q}, 7
    s_lshl_b32 s{sPS+i}, s{T1}, 15
    s_lshl_b32 s{T3}, s{T2}, 7
    s_add_u32 s{sPS+i}, s{sPS+i}, s{T3}""")
            if rows: a(f"s_lshl_b32 s{T3}, s{sW}, 13\n s_add_u32 s{sPS+i}, s{sPS+i}, s{T3}")
            if base is not None:
                a(f"s_lshl_b32 s{T2}, s{T2}, 6\n s_add_u32 s{T2}, s{T2}, s{T1}"); dst(i, base)
        def w4t(q, i, vd):
            std(q, i, None)
            a(f"""
    s_mul_i32 s{T2}, s{T2}, 56
    s_add_u32 s{T2}, s{T2}, s{T1}
    s_lshl_b32 s{T2}, s{T2}, 2
    s_mul_i32 s{T1}, s{T1}, 9363
    s_lshr_b32 s{T1}, s{T1}, 16
    v_subrev_u32 v{vd}, s{T1}, v{v+9}
    v_and_b32 v{vd}, 3, v{vd}
    v_lshl_add_u32 v{vd}, v{vd}, 10, v{v+10}""")
            dst(i, W4)
        def w3t(q, i):
            a(f"""
    s_mul_i32 s{T1}, s{q}, 2341
    s_lshr_b32 s{T1}, s{T1}, 16                   ; ks = q/28
    s_mul_i32 s{T2}, s{T1}, 28
    s_sub_u32 s{T2}, s{q}, s{T2}                  ; nb
    s_lshl_b32 s{T3}, s{T1}, 2
    s_add_u32 s{T3}, s{T3}, s{sW}
    s_mul_i32 s{sPS+i}, s{T3}, {8*3584}
    s_lshl_b32 s{T3}, s{T2}, 7
    s_add_u32 s{sPS+i}, s{sPS+i}, s{T3}
    s_lshl_b32 s{T2}, s{T2}, 6
    s_add_u32 s{T2}, s{T2}, s{T1}""")
            dst(i, W3)
        a(f"""
    v_lshrrev_b32 v{v+9}, 4, v{vLANE}             ; q
    v_and_b32 v{v+10}, 0xff, v{vL16}              ; i*16
    v_lshl_add_u32 v{v+4}, v{v+9}, 14, v{v+10}
    v_lshrrev_b32 v{v+7}, 3, v{vLANE}
    v_and_b32 v{v+8}, 0x7f, v{vL16}
    v_lshl_add_u32 v{v}, v{v+7}, 10, v{v+8}
    v_mul_u32_u24 v{v+1}, 3584, v{v+7}
    v_add_u32 v{v+1}, v{v+1}, v{v+8}""")
        w3t(2, 0); w4t(2, 1, v+5)
        L, Le = S.lab("pwo"), S.lab("pend")
        a(f"s_cmp_ge_u32 s2, 192\n s_cbranch_scc1 {L}\n s_add_u32 s{T0}, s2, 256")
        w3t(T0, 2); w4t(T0, 3, v+6)
        a(f"v_mov_b32 v{v+2}, v{v+1}\n v_mov_b32 v{v+3}, v{v}\n s_branch {Le}")
        a.label(L)
        a(f"s_sub_u32 s{T0}, s2, 192"); std(T0, 2, WO, rows=False)
        a(f"s_sub_u32 s{T0}, s2, 128"); std(T0, 3, WO, rows=False)
        a(f"""
    s_lshr_b32 s{T1}, s{sW}, 1
    s_lshl_b32 s{T1}, s{T1}, 4
    s_and_b32 s{T2}, s{sW}, 1
    s_lshl_b32 s{T2}, s{T2}, 2
    s_add_u32 s{T1}, s{T1}, s{T2}
    v_and_b32 v{v+2}, 4, v{v+7}
    v_add3_u32 v{v+2}, v{v+2}, v{v+7}, s{T1}
    v_lshl_add_u32 v{v+2}, v{v+2}, 10, v{v+8}
    v_mov_b32 v{v+3}, v{v+2}
    v_mov_b32 v{v+6}, v{v+4}""")
        a.label(Le)
        a(f"s_and_b32 s{T0}, s2, 127"); std(T0, 4, W1)
        a(f"""
    s_lshr_b32 s{T0}, s2, 7
    s_lshl_b32 s{T0}, s{T0}, 19
    s_add_u32 s{sPD+4}, s{sPD+4}, s{T0}
    s_mul_i32 s{T0}, s{sW}, 3072
    s_add_u32 s{T0}, s{T0}, {win}
    v_add_u32 v{v+7}, s{T0}, v{vL16}
    v_bfe_u32 v{v+8}, v{vLANE}, 2, 2
    v_lshlrev_b32 v{v+8}, 7, v{v+8}
    v_lshl_add_u32 v{v+8}, v{v+9}, 5, v{v+8}
    v_and_b32 v{v+9}, 3, v{vLANE}
    v_lshl_add_u32 v{v+8}, v{v+9}, 3, v{v+8}
    v_add_u32 v{v+8}, s{T0}, v{v+8}""")
    def prep_load(self, S, v, dst):
        a = S.a
        PR = f"s[{sPR}:{sPR+3}]"
        wo, w1, w2, w3, w4 = (f"s[{sPP+2*i}:{sPP+2*i+1}]" for i in range(5))
        big, small = 0x1c0000, 0x80000
        for i in range(5):
            if i < 2: a(f"s_mov_b64 s[{sPR}:{sPR+1}], {(w3, w4)[i]}\n s_mov_b32 s{sPR+2}, {big:#x}")
            elif i < 4:
                a(f"s_mov_b32 s{sT1}, {small:#x}\n s_cmp_ge_u32 s2, 192\n s_cselect_b64 s[{sPR}:{sPR+1}], {wo}, {(w3, w4)[i-2]}\n s_cselect_b32 s{sPR+2}, s{sT1}, {big:#x}")
            else: a(f"s_cmp_ge_u32 s2, 128\n s_cselect_b64 s[{sPR}:{sPR+1}], {w2}, {w1}\n s_mov_b32 s{sPR+2}, {small:#x}")
            a(f"s_and_b32 s{sPR+1}, s{sPR+1}, 0xffff")
            S.vm(f"buffer_load_dwordx4 {vr(dst+4*i)}, v{(v+1, v, v+2, v+3, v)[i]}, {PR}, s{sPS+i} offen")
    def prep_finish(self, S, v, d):
        a = S.a
        for grp in ((0, 1, 2), (3, 4)):
            for k, i in enumerate(grp): a(f"ds_write_b128 v{v+7}, {vr(d+4*i)} offset:{1024*k}")
            a("s_waitcnt lgkmcnt(0)")
            for k, i in enumerate(grp):
                a(f"ds_read_b64_tr_b16 {P(d+4*i)}, v{v+8} offset:{1024*k}\n ds_read_b64_tr_b16 {P(d+4*i+2)}, v{v+8} offset:{1024*k+512}")
            a("s_waitcnt lgkmcnt(0)")
        for i in range(5): S.vm(f"buffer_store_dwordx4 {vr(d+4*i)}, v{(v+4, v+5, v+4, v+6, v+4)[i]}, {WS}, s{sPD+i} offen sc1")

    hXT, hACC, hBP = 8, 16, 32
    hRES, hSTAT, hCS1, hR1, hTMP, hCS3, hX = 64, 80, 96, 100, 104, 112, 120
    UB = tuple(int(x) for x in os.environ.get('UB', '28,72,86,98,104').split(','))
    UBK = int(os.environ.get('UBK', '12'))
    def attention(self):
        C, H = self.C, self.H; a = C.a
        S0, S1, NEGM, OA, OB, QA, QB, vIDX, vKA, vVA = self.S0, self.S1, self.NEGM, self.OA, self.OB, self.QA, self.QB, self.vIDX, self.vKA, self.vVA
        kf = lambda t: self.KVR + 12*(t & 1)
        C.ts("at"); C.bar(); C.ts("at")
        a("s_setprio 1")
        def rdK(t): a(f"ds_read_b128 {vr(kf(t))}, v{vKA} offset:{(t&31)*2048}")
        def rdV(t):
            a(f"s_mov_b64 exec, {sVM}")
            a(f"ds_read_b128 {vr(kf(t)+4)}, v{vVA} offset:{(t&31)*2048+1024}")
            a(f"ds_read_b128 {vr(kf(t)+8)}, v{vVA} offset:{(t&31)*2048+1536}")
            a("s_mov_b64 exec, -1")
        def qk(u): a(f"v_mfma_f32_32x32x16_bf16 {vr((S0,S1)[u&1],16)}, {vr(kf(u>>1))}, {vr((QA,QB)[u&1])}, {vr(NEGM,16)}")
        def pv(u, h): a(f"v_smfmac_f32_32x32x32_bf16 {vr((OA,OB)[u&1],16)}, {vr(kf(u>>1)+4+4*h)}, {vr((S0,S1)[u&1]+8*h,8)}, v{vIDX}")
        def ex(u, lo, hi):
            for i in range(lo, hi): a(f"v_exp_f32 v{(S0,S1)[u&1]+i}, v{(S0,S1)[u&1]+i}")
        x = self.cT
        a(f"s_lshl_b32 s{sT0}, s{sW}, 13\n s_add_u32 s{sT0}, s{sT0}, {HI}\n v_add_u32 v{x}, s{sT0}, v{vL16}\n s_lshl_b32 s{sT0}, s{sW}, 14\n v_add_u32 v{x+1}, s{sT0}, v{vL16}")
        plan = {}
        for ub, f0, n, va in ((self.UB[1], 0, 8, x), (self.UB[2], 8, 16, x+1), (self.UB[3], 24, 8, x)):
            for i in range(n): plan.setdefault(ub + 1 + 2*(i // 4), []).append(f"ds_read_b128 {vr(128+4*(f0+i))}, v{va} offset:{1024*i}")
        rdK(0); rdV(0); rdK(1)
        a("s_waitcnt lgkmcnt(3)")
        qk(0)
        for u in range(128):
            t, q = u >> 1, u & 1
            if u % 8 == 0: C.ts("at")
            ex(u, 0, 2)
            if u > 0: pv(u-1, 1)
            ex(u, 2, 5)
            if u + 1 < 128: qk(u+1)
            if u == self.UBK: a("s_waitcnt vmcnt(0)")
            if u in self.UB or u == self.UBK: C.bar()
            if q == 0:
                if t + 1 < 64:
                    if t + 1 == 32: a(f"v_add_u32 v{vVA}, 0x10000, v{vVA}")
                    rdV(t+1)
                if t + 2 < 64:
                    if t + 2 == 32: a(f"v_add_u32 v{vKA}, 0x10000, v{vKA}")
                    rdK(t+2)
            for y in plan.pop(u, []): a(y)
            ex(u, 5, 10)
            if q == 0: a(f"s_waitcnt lgkmcnt({3 if t + 2 < 64 else (2 if t + 1 < 64 else 0)})")
            pv(u, 0)
            ex(u, 10, 16)
        assert not plan
        pv(127, 1)
        C.ts(); C.ts("at")
        t = self.cT
        a(f"""
    v_lshrrev_b32 v{t+1}, 5, v{vLANE}
    v_lshlrev_b32 v{t+1}, 10, v{t+1}
    v_and_b32 v{t+2}, 31, v{vLANE}
    v_lshl_add_u32 v{t+4}, v{t+2}, 4, v{t+1}""")
        C.tile_soff(sT1, O_)
        a(f"v_min_f32 v{t}, v{OA+8}, v{OB+8}\n v_max_f32 v{t+1}, v{OA+8}, v{OB+8}\n v_cmp_nle_f32 vcc, {f32(2.0**-80)}, v{t}\n s_mov_b32 s{sT2}, vcc_lo\n v_cmp_nge_f32 vcc, {f32(2.0**80)}, v{t+1}\n s_or_b32 s{sT2}, s{sT2}, vcc_lo\n s_cbranch_scc1 attn_redo")
        a.label("attn_done")
        a(f"v_mov_b32 v{OA+9}, v{OA+8}\n v_mov_b32 v{OB+9}, v{OB+8}\n v_permlane32_swap_b32 v{OA+8}, v{OA+9}\n v_permlane32_swap_b32 v{OB+8}, v{OB+9}")
        a(f"v_rcp_f32 v{t+2}, v{OA+8}\n v_rcp_f32 v{t+6}, v{OB+8}")
        for o, r in ((OA, t+2), (OB, t+6)):
            for i in range(4): a(f"v_pk_mul_f32 {P(o+2*i)}, {P(o+2*i)}, {P(r)} op_sel_hi:[1,0]")
            for i in range(4): a(f"v_cvt_pk_bf16_f32 v{o+i}, v{o+2*i}, v{o+2*i+1}")
        C.setvcc()
        C.cstore([f"buffer_store_dwordx4 {vr(OA)}, v{t+4}, {WS}, s{sT1} offen", f"buffer_store_dwordx4 {vr(OB)}, v{t+4}, {WS}, s{sT1} offen offset:512"])
        a("s_setprio 0")
        C.set_act(O_)
        a(f"v_and_b32 v{self.cF}, 31, v{vLANE}\n v_lshlrev_b32 v{self.cF}, 2, v{self.cF}")
        C.flag(0, t)
        C.ts()
        a = H.a; v = self.PV; d = v + 8
        CW = v + 7
        a(f"v_mov_b32 v{CW}, {HI + 32752}\n v_mov_b32 v6, 0\n ds_write_b64 v{CW}, v[6:7]\n ds_write_b32 v{CW}, v6 offset:8\n s_waitcnt lgkmcnt(0)")
        H.wait_vm(self.kv01); H.bar()
        TA, TD = self.TA, 19
        def spin(n, off=0):
            L = H.lab("hs")
            a(f"s_mov_b32 s{sCNT}, 0")
            a.label(L)
            a(f"""
    s_sleep 1
    ds_read_b32 v6, v{CW} offset:{off}
    s_add_u32 s{sCNT}, s{sCNT}, 1
    s_cmp_gt_u32 s{sCNT}, {SPIN*16}
    s_cbranch_scc1 main_exit
    s_waitcnt lgkmcnt(0)
    v_cmp_gt_u32 vcc, {n}, v6
    s_cbranch_vccnz {L}""")
        def count(off=0): a(f"v_mov_b32 v6, 1\n s_mov_b64 exec, 1\n ds_add_u32 v{CW}, v6 offset:{off}\n s_mov_b64 exec, -1")
        def pub():
            L = H.lab("nopf")
            a(f"s_cmp_lg_u32 s{sW}, 3\n s_cbranch_scc1 {L}")
            a(f"""
    s_lshl_b32 s{sT0}, s2, 7
    s_add_u32 s{sT0}, s{sT0}, {PFLAG:#x}
    v_mov_b32 v6, 1
    s_mov_b64 exec, 1
    buffer_store_dword v6, v7, {WS}, s{sT0} offen sc1
    s_mov_b64 exec, -1""")
            a.label(L)
        def kall():
            L = H.lab("kall")
            a(f"s_mov_b32 s{sCNT}, 0\n s_lshl_b32 s{sT0}, s{sW}, 13\n s_add_u32 s{sT0}, s{sT0}, {KFLAG:#x}")
            a.label(L)
            a(f"""
    buffer_load_dword v48, v{TA}, {WS}, s{sT0} offen sc1
    s_add_u32 s{sCNT}, s{sCNT}, 1
    s_cmp_gt_u32 s{sCNT}, {SPIN}
    s_cbranch_scc1 main_exit
    s_waitcnt vmcnt(0)
    v_cmp_ne_u32 vcc, s{sTAG}, v48
    s_mov_b64 exec, vcc
    s_cbranch_vccnz {L}
    s_mov_b64 exec, -1""")
            count(8); spin(4, 8)
        a(f"v_and_b32 v46, 0xfff, v{TA}")
        self.kpoll(46); self.kv(1); k1 = self.kvseq
        if self.opt.get('hprep'):
            self.prep_load(H, 200, 224)
            H.wait_vm(k1); H.bar()
            kall(); self.kv(2); k3 = self.kvseq
            self.prep_finish(H, 200, 224); pst = H.nvm - 1
            self.kv(4); k7 = self.kvseq
            H.wait_vm(pst); count()
            L = H.lab("np2")
            a(f"s_cmp_lg_u32 s{sW}, 3\n s_cbranch_scc1 {L}")
            spin(4)
            a.label(L)
            pub()
        else:
            H.wait_vm(k1); H.bar()
            pub()
            kall(); self.kv(6)
        H.wait_vm(self.kvseq); H.ts("h"); H.bar()
        def code_touch():
            L = H.lab("pc")
            a(f"s_getpc_b64 s[36:37]")
            a.label(L)
            a(f"""
    s_sub_u32 s36, s36, {L}-main_kernel
    s_subb_u32 s37, s37, 0
    s_and_b32 s{sT1}, s{sGRP}, 3
    s_lshl_b32 s{sT1}, s{sT1}, 5
    s_add_u32 s{sT1}, s{sT1}, s{sNT}
    s_lshl_b32 s{sT1}, s{sT1}, 9
    v_and_b32 v{v+2}, 0x1ff, v{TA}
    v_add_u32 v{v+2}, s{sT1}, v{v+2}
    v_min_u32 v{v+2}, main_end-main_kernel-4, v{v+2}""")
            H.vm(f"global_load_dword v{TD}, v{v+2}, s[36:37]")
        def arena_touch():
            if self.opt.get("usc1"):
                a(f"""
    s_lshl_b32 s{sTCH}, s{sNT}, 12
    s_lshl_b32 s{sT1}, s{sNT}, 8
    s_sub_u32 s{sT1}, s{sT1}, s{sTCH}
    s_add_u32 s{sT1}, s{sT1}, {ST1 - 4096}
    s_add_u32 s{sTCH}, s{sTCH}, s{sAR}
    v_mov_b32 v6, v{TA}
    s_mov_b32 exec_lo, 0
    v_add_u32 v6, s{sT1}, v6
    s_mov_b32 exec_lo, -1
    s_mov_b32 exec_hi, 3""")
                H.vm(f"buffer_load_dword v{TD}, v6, {WS}, s{sTCH} offen")
                a("s_mov_b64 exec, -1")
                return
            a(f"s_mul_i32 s{sTCH}, s{sNT}, {TOUCHN*128}\n s_add_u32 s{sTCH}, s{sTCH}, s{sAR}\n s_add_u32 s{sTCH}, s{sTCH}, {TOUCH0:#x}")
            H.vm(f"buffer_load_dword v{TD}, v{TA}, {WS}, s{sTCH} offen")
            a(f"s_mov_b32 exec_lo, 0x7ff\n s_mov_b32 exec_hi, 0\n s_add_u32 s{sTCH}, s{sTCH}, 8192")
            H.vm(f"buffer_load_dword v{TD}, v{TA}, {WS}, s{sTCH} offen")
            a("s_mov_b64 exec, -1")
        hi = f"s_lshl_b32 s{sPL}, s{sW}, 13\n s_add_u32 s{sPL}, s{sPL}, {HI}"
        lo = f"s_lshl_b32 s{sPL}, s{sW}, 14"
        F = lambda *x, **k: H.run(H.frags(*x, **k))
        code_touch()
        AP = self.opt.get("ap", "none")
        if AP == "pre": arena_touch()
        L0 = H.lab("pchk")
        a(f"s_lshl_b32 s{sPS}, s{sW}, 13\n s_add_u32 s{sPS}, s{sPS}, {PFLAG:#x}\n s_mov_b32 s{sCNT}, 0")
        a.label(L0)
        a(f"""
    buffer_load_dword v{d}, v{TA}, {WS}, s{sPS} offen sc1
    s_add_u32 s{sCNT}, s{sCNT}, 1
    s_cmp_gt_u32 s{sCNT}, {SPIN}
    s_cbranch_scc1 main_exit
    s_waitcnt vmcnt(0)
    v_cmp_ne_u32 vcc, 1, v{d}
    s_mov_b64 exec, vcc
    s_sleep 2
    s_cbranch_vccnz {L0}
    s_mov_b64 exec, -1""")
        count(4); spin(4, 4); count(4)
        L = H.lab("notag")
        a(f"""
    s_or_b32 s{sT0}, s2, s{sW}
    s_cmp_lg_u32 s{sT0}, 0
    s_cbranch_scc1 {L}
    v_mov_b32 v6, s{sTAG}
    s_mov_b32 s{sT0}, {TAGW:#x}
    s_mov_b64 exec, 1
    buffer_store_dword v6, v7, {WS}, s{sT0} offen sc1
    s_mov_b64 exec, -1""")
        a.label(L)
        H.ts("h")
        for base, reg in ((WO, 64), (W1, 128), (W2, 192)):
            H.set_wbase(base, 16, sW4); F(16, sW4, dst=V(reg))
        L = H.lab("ack")
        a(f"s_cmp_lg_u32 s{sW}, 3\n s_cbranch_scc1 {L}")
        spin(8, 4)
        a.label(L)
        H.set_w3(0); a(hi)
        F(8, sPF, lds=sPL); r1 = H.lastf
        code_touch()
        H.xo_soff(sT1)
        for jt in range(4):
            H.vm(f"buffer_load_dwordx2 {P(self.hXT+2*jt)}, v{vXO}, {XS}, s{sT1} offen")
            if jt < 3: a(f"s_add_u32 s{sT1}, s{sT1}, 16384")
        a(f"s_and_b32 s{sT1}, s{sGRP}, 3\n s_mul_i32 s{sT1}, s{sT1}, 6144\n s_add_u32 s{sTCH}, s{sPF}, s{sT1}\n s_mov_b32 exec_hi, 0xffff")
        H.vm(f"buffer_load_dword v{TD}, v{TA}, {WS}, s{sTCH} offen")
        a("s_mov_b64 exec, -1")
        if AP == "mid": arena_touch()
        H.wait_vm(r1); H.ts("h"); H.bar()
        a(lo); F(16, sPF, lds=sPL); r2 = H.lastf
        code_touch()
        a(f"""
    s_and_b32 s{sT1}, s{sGRP}, 3
    s_lshl_b32 s{sTCH}, s{sT1}, 5
    s_add_u32 s{sTCH}, s{sTCH}, s{sNT}
    s_mul_i32 s{sTCH}, s{sTCH}, 14336
    s_add_u32 s{sTCH}, s{sTCH}, {W4:#x}""")
        H.vm(f"buffer_load_dword v{TD}, v{TA}, {WS}, s{sTCH} offen")
        H.wait_vm(r2); H.ts("h"); H.bar()
        a(hi); F(8, sPF, lds=sPL); r3 = H.lastf
        a(f"s_add_u32 s{sTCH}, s{sTCH}, 6144")
        H.vm(f"buffer_load_dword v{TD}, v{TA}, {WS}, s{sTCH} offen")
        H.wait_vm(r3); H.ts("h"); H.bar()
        H.bar()
        a(lo); F(16, sPF, lds=sPL)
        H.set_w3(3)
        a(f"s_lshl_b32 s{sT5}, s{sORD}, 5\n s_add_u32 s{sPF}, s{sPF}, s{sT5}"); a(hi)
        F(8, sPF, lds=sPL)
        arena_touch()
        code_touch()
        a("s_waitcnt vmcnt(0)")
        H.setvcc()
        H.tile_soff(sT4, H_)
        a("s_setprio 1")
        H.ts("h")
        self.sync_check()

    def fallback(self):
        C = self.C; a = C.a; t = self.cT
        S0, NEGM, KF, VF, vVA, vIDX = self.S0, self.NEGM, self.KVR, self.KVR+4, self.vVA, self.vIDX
        a.label("attn_redo")
        a(f"v_and_b32 v{vVA}, 0x3ff, v{vVA}")
        for (Q, O) in ((self.QA, self.OA), (self.QB, self.OB)):
            L1, L2 = C.lab("fb1"), C.lab("fb2")
            a(f"v_mov_b32 v{t}, 0xff800000\n s_mov_b32 s{sT2}, {KV:#x}")
            a.label(L1)
            a(f"""
    buffer_load_dwordx4 {vr(KF)}, v{vL16}, {WS}, s{sT2} offen sc1
    s_add_u32 s{sT2}, s{sT2}, 2048
    s_waitcnt vmcnt(0)
    v_mfma_f32_32x32x16_bf16 {vr(S0,16)}, {vr(KF)}, {vr(Q)}, 0""")
            for i in range(8): a(f"v_max3_f32 v{t}, v{t}, v{S0+2*i}, v{S0+2*i+1}")
            a(f"""
    s_cmp_lt_u32 s{sT2}, {KV+131072:#x}
    s_cbranch_scc1 {L1}
    v_mov_b32 v{t+1}, v{t}
    v_permlane32_swap_b32 v{t}, v{t+1}
    v_max_f32 v{t}, v{t}, v{t+1}
    v_sub_f32 v{t}, 0, v{t}""")
            for i in range(16): a(f"v_mov_b32 v{NEGM+i}, v{t}")
            for i in range(16): a(f"v_mov_b32 v{O+i}, 0")
            a(f"s_mov_b32 s{sT2}, {KV:#x}")
            a.label(L2)
            a(f"""
    buffer_load_dwordx4 {vr(KF)}, v{vL16}, {WS}, s{sT2} offen sc1
    s_mov_b64 exec, {sVM}
    buffer_load_dwordx4 {vr(VF)}, v{vVA}, {WS}, s{sT2} offen offset:1024 sc1
    buffer_load_dwordx4 {vr(VF+4)}, v{vVA}, {WS}, s{sT2} offen offset:1536 sc1
    s_mov_b64 exec, -1
    s_add_u32 s{sT2}, s{sT2}, 2048
    s_waitcnt vmcnt(0)
    v_mfma_f32_32x32x16_bf16 {vr(S0,16)}, {vr(KF)}, {vr(Q)}, {vr(NEGM,16)}""")
            for i in range(16): a(f"v_exp_f32 v{S0+i}, v{S0+i}")
            a(f"""
    v_smfmac_f32_32x32x32_bf16 {vr(O,16)}, {vr(VF)}, {vr(S0,8)}, v{vIDX}
    v_smfmac_f32_32x32x32_bf16 {vr(O,16)}, {vr(VF+4)}, {vr(S0+8,8)}, v{vIDX}
    s_nop 15
    s_cmp_lt_u32 s{sT2}, {KV+131072:#x}
    s_cbranch_scc1 {L2}""")
        a("s_nop 15\n s_branch attn_done")

    cF, cP = 120, 122
    cACC, cBP, cSTAT, cCS3, cTMP, cOUT = 16, 48, 80, 96, 104, 112
    def prod_stats(self, vals):
        H = self.H; a = H.a; t = self.hTMP; x = self.hBP
        for jt in range(4): a(f"v_pk_add_f32 {P(x+2*jt)}, {P(vals+4*jt)}, {P(vals+4*jt+2)}")
        for jt in range(4): a(f"v_pk_mul_f32 {P(x+8+2*jt)}, {P(vals+4*jt)}, {P(vals+4*jt)}")
        for jt in range(4): a(f"v_pk_fma_f32 {P(x+8+2*jt)}, {P(vals+4*jt+2)}, {P(vals+4*jt+2)}, {P(x+8+2*jt)}")
        for jt in range(8): a(f"v_add_f32 v{t+jt}, v{x+2*jt}, v{x+2*jt+1}")
        a(f"""
    s_lshl_b32 s{sT5}, s{sW}, 10
    s_add_u32 s{sT5}, s{sT5}, {XST}
    v_permlane32_swap_b32 v{t}, v{t+2}
    v_permlane32_swap_b32 v{t+1}, v{t+3}
    v_permlane32_swap_b32 v{t+4}, v{t+6}
    v_permlane32_swap_b32 v{t+5}, v{t+7}
    v_pk_add_f32 {P(t)}, {P(t)}, {P(t+2)}
    v_pk_add_f32 {P(t+4)}, {P(t+4)}, {P(t+6)}
    v_lshl_add_u32 v{x}, v{vLANE}, 3, s{sT5}
    v_permlane16_swap_b32 v{t}, v{t+1}
    v_permlane16_swap_b32 v{t+4}, v{t+5}
    v_add_f32 v{t}, v{t}, v{t+1}
    v_add_f32 v{t+1}, v{t+4}, v{t+5}
    ds_write_b64 v{x}, {P(t)}""")
    def stat_publish(self, base):
        C = self.C; a = C.a; t = self.cTMP; x = self.cT
        a(f"""
    v_lshlrev_b32 v{x}, 3, v{vLANE}
    v_add_u32 v{x}, {XST}, v{x}
    s_lshl_b32 s{sT2}, s{sMEM}, 3
    s_add_u32 s{sT2}, s{sT2}, s{sAR}
    s_add_u32 s{sT2}, s{sT2}, {base:#x}
    v_lshlrev_b32 v{x+1}, 6, v{vLANE}
    s_lshl_b32 s{sT5}, s{sW}, 4
    s_lshl_b64 s[36:37], 0xffff, s{sT5}""")
        C.bar()
        for p in range(4): a(f"ds_read_b64 {P(t+2*p)}, v{x} offset:{1024*p}")
        def fin():
            a(f"""
    s_waitcnt lgkmcnt(0)
    v_pk_add_f32 {P(t)}, {P(t)}, {P(t+2)}
    v_pk_add_f32 {P(t+4)}, {P(t+4)}, {P(t+6)}
    v_pk_add_f32 {P(t)}, {P(t)}, {P(t+4)}
    s_mov_b64 exec, s[36:37]""")
            C.cstore([f"buffer_store_dwordx2 {P(t)}, v{x+1}, {WS}, s{sT2} offen"], nt=False)
            a("s_mov_b64 exec, -1")
        self.pubfin = fin
    def cons_stats(self, gbase, scr, double):
        C = self.C; a = C.a; x = self.cT; o = self.cSTAT; S = o + 8
        st = {}
        ltxt = f"buffer_load_dwordx4 {vr(o)}, v{x+1}, {WS}, s{sT1} offen sc1"
        def load():
            a(f"""
    s_lshl_b32 s{sT1}, s{sW}, 10
    s_add_u32 s{sT1}, s{sT1}, s{sAR}
    s_add_u32 s{sT1}, s{sT1}, {gbase:#x}
    v_and_b32 v{x+3}, 0xff, v{vL16}
    v_and_b32 v{x+1}, 0x30, v{vLANE}
    v_lshl_add_u32 v{x+1}, v{x+3}, 2, v{x+1}
    s_lshl_b32 s{sT5}, s{sW}, 8
    s_add_u32 s{sT5}, s{sT5}, {scr}
    v_add_u32 v{x+2}, s{sT5}, v{x+3}""")
            st['g'] = C.vm(ltxt)
        def check():
            L0, Lr, L2 = C.lab("schk"), C.lab("sre"), C.lab("sok")
            C.wait_vm(st['g'])
            a.label(L0)
            a(f"v_max_u32 v{o+4}, v{o+1}, v{o+3}\n v_cmp_eq_u32 vcc, -1, v{o+4}\n s_cbranch_vccnz {Lr}")
            a.label(L2)
            C.ool.append((Lr, [f"s_add_u32 s{sCNT}, s{sCNT}, 1", f"s_cmp_gt_u32 s{sCNT}, {SPIN}", f"s_cbranch_scc1 {L2}",
                               ltxt, "s_waitcnt vmcnt(0)", f"s_branch {L0}"]))
            C.setvcc()
        txt = f"""
    v_add_f32 v{o}, v{o}, v{o+2}
    v_add_f32 v{o+1}, v{o+1}, v{o+3}
    v_permlane32_swap_b32 v{o}, v{o+1}
    v_add_f32 v{o}, v{o}, v{o+1}
    v_mov_b32 v{o+1}, v{o}
    v_permlane16_swap_b32 v{o}, v{o+1}
    v_add_f32 v{o}, v{o}, v{o+1}
    v_mul_f32 v{o}, 0x3b000000, v{o}
    v_mov_b32 v{o+1}, v{o}
    v_permlane32_swap_b32 v{o}, v{o+1}
    v_mov_b32 v{S}, v{o}
    v_fma_f32 v{o+1}, -v{o}, v{o}, v{o+1}
    v_max_f32 v{o+1}, 0, v{o+1}
    v_add_f32 v{o+2}, 0x3727c5ac, v{o+1}
    v_rsq_f32 v{o+3}, v{o+2}"""
        R = o+3
        if double:
            txt += f"""
    v_mul_f32 v{o+4}, v{o+3}, v{o+3}
    ds_write_b32 v{x+2}, v{o+3} offset:1024
    v_mul_f32 v{o+4}, v{o+4}, v{o+1}
    v_add_f32 v{o+4}, 0x3727c5ac, v{o+4}
    v_rsq_f32 v{o+4}, v{o+4}
    v_mul_f32 v{o+5}, v{o+3}, v{o+4}"""
            R = o+5
        txt += f"""
    v_rcp_f32 v{S+1}, v{R}
    v_mul_f32 v{S+2}, {f32(GC1)}, v{R}
    v_mul_f32 v{o+6}, v{R}, v{R}
    v_mul_f32 v{o+6}, {f32(0.044715)}, v{o+6}
    v_mul_f32 v{S+3}, v{S+2}, v{o+6}
    ds_write_b128 v{x+2}, {vr(S)}"""
        comp = [check]
        for y in txt.split("\n"):
            y = y.strip()
            if not y: continue
            if y.startswith("ds_"): comp.append(lambda y=y: setattr(C, 'wseq', C.ld(y)))
            else: comp.append(lambda y=y: a(y))
        return load, comp
    def tile_store(self, jt):
        return f"buffer_store_dwordx2 {P(self.hXT+2*jt)}, v{vD}, {WS}, s{sT4} offen offset:{256*jt}"
    def add_pack(self, jt, src):
        a = self.H.a; A_ = self.hACC
        for h in (0, 2): a(f"v_pk_add_f32 {P(A_+4*jt+h)}, {P(A_+4*jt+h)}, {P(src+h)}")
        for h in (0, 1): a(f"v_cvt_pk_bf16_f32 v{self.hXT+2*jt+h}, v{A_+4*jt+2*h}, v{A_+4*jt+2*h+1}")

    def s3(self):
        self.C.mark(); self.H.mark()
        C, H = self.C, self.H
        C.colsum(V(128), self.cCS3, self.cOUT)
        C.poll(0, self.cF, self.cP, mid=[lambda: C.colsum(V(192), self.cCS3+4, self.cOUT)]); C.ts()
        def w4ref():
            C.a(f"""
    v_lshlrev_b32 v118, 7, v{vLANE}
    s_and_b32 s{sTCH}, s{sGRP}, 3
    s_lshl_b32 s{sTCH}, s{sTCH}, 5
    s_add_u32 s{sTCH}, s{sTCH}, s{sNT}
    s_mul_i32 s{sTCH}, s{sTCH}, 14336
    s_add_u32 s{sTCH}, s{sTCH}, {W4:#x}""")
            C.vm(f"buffer_load_dword v119, v118, {WS}, s{sTCH} offen")
        def w4ref2():
            C.a(f"s_add_u32 s{sTCH}, s{sTCH}, 6144")
            C.vm(f"buffer_load_dword v119, v118, {WS}, s{sTCH} offen")
        C.load_gemm(C.act_issue(), side={3: [w4ref], 5: [w4ref2]} if self.opt.get('w4ref') else None, tag='s3')
        C.set_act(H_)
        self.stat_publish(ST1)
        H.cons_gemm(V(64), self.hACC, self.hBP, tag="s3"); H.ts()
        for i in range(8): H.unpack(self.hXT+i, self.hRES+2*i)
        for jt in range(4): self.add_pack(jt, self.hRES+4*jt)
        H.cstore([self.tile_store(jt) for jt in range(4)])
        self.prod_stats(self.hACC)
        for i in range(8): H.unpack(self.hXT+i, self.hRES+2*i)
        H.flag(1, 6); H.ts()
        H.a("s_waitcnt lgkmcnt(0)"); H.bar()
        self.sync_check()
    def s4(self):
        self.C.mark(); self.H.mark()
        C, H = self.C, self.H; a = H.a
        C.poll(1, self.cF, self.cP, mid=[self.pubfin]); C.ts()
        load, comp = self.cons_stats(ST1, ACT, True)
        C.load_gemm(C.act_issue(), side={-1: [load], 3: comp[:7], 4: comp[7:14], 5: comp[14:21], 6: comp[21:],
                                         (7, 'pre'): [lambda: C.wait_ld(C.wseq)]}, tag='s4')
        if self.opt.get('uref'):
            C.a(f"v_lshlrev_b32 v118, 7, v{vLANE}\n s_mul_i32 s{sTCH}, s{sNT}, {40*128}\n s_add_u32 s{sTCH}, s{sTCH}, s{sAR}\n s_add_u32 s{sTCH}, s{sTCH}, {U_ + 0x10000:#x}\n s_mov_b32 exec_hi, 0xff")
            C.vm(f"buffer_load_dword v119, v118, {WS}, s{sTCH} offen")
            C.a("s_mov_b64 exec, -1")
        H.colsum(V(128), self.hCS1, self.hX)
        H.tile_soff(sT4, T_)
        a(f"""
    v_lshrrev_b32 v6, 5, v{vLANE}
    v_lshlrev_b32 v6, 5, v6
    v_and_b32 v7, 0x1f, v{vD}
    v_add_u32 v{self.hX+4}, v6, v7                ; halo: (g>>1)*32 + (t&1)*16 + (g&1)*8
    s_lshl_b32 s{sT3}, s{sNT}, 6
    s_add_u32 s{sT3}, s{sT3}, s{sAR}
    v_and_b32 v7, 0xff, v{vL16}
    v_add_u32 v7, {ACT}, v7""")
        sr = H.stat_reads(self.hSTAT, 7, False, self.hR1)
        H.cons_gemm(V(128), self.hACC, self.hBP, side={6: sr[:4], 7: sr[4:]}, tag="s4"); H.ts()
        A_, XT, ST = self.hACC, self.hXT, self.hSTAT
        H.wait_ld(H.stseq)
        for x in H.gelu2((A_, self.hCS1, ST, XT), (A_+12, self.hCS1, ST+12, XT+6), self.hTMP, True): a(x)
        Lh, L1 = H.lab("nohalo"), H.lab("side1")
        a(f"""
    s_bitcmp1_b32 s{sMEM}, 1
    s_cbranch_scc1 {L1}
    s_cmp_eq_u32 s{sGRP}, 31
    s_cbranch_scc1 {Lh}
    s_add_u32 s{sT3}, s{sT3}, {HALO+GA:#x}
    s_mov_b32 exec_lo, 0xc000c000
    s_mov_b32 exec_hi, 0xc000c000
    buffer_store_dwordx2 {P(XT+6)}, v{self.hX+4}, {WS}, s{sT3} offen sc1
    s_branch {Lh}""")
        a.label(L1)
        a(f"""
    s_cmp_eq_u32 s{sGRP}, 0
    s_cbranch_scc1 {Lh}
    s_sub_u32 s{sT3}, s{sT3}, {GA-HALO:#x}
    s_mov_b32 exec_lo, 0x00030003
    s_mov_b32 exec_hi, 0x00030003
    buffer_store_dwordx2 {P(XT)}, v{self.hX+4}, {WS}, s{sT3} offen sc1""")
        a.label(Lh)
        a("s_mov_b64 exec, -1")
        H.cstore([self.tile_store(0), self.tile_store(3)])
        for x in H.gelu2((A_+4, self.hCS1, ST+4, XT+2), (A_+8, self.hCS1, ST+8, XT+4), self.hTMP, True): a(x)
        H.cstore([self.tile_store(1), self.tile_store(2)])
        H.flag(2, 6); H.ts()
        self.sync_check()
    def s5(self):
        self.C.mark(); self.H.mark()
        C, H = self.C, self.H; a = C.a; x = self.cT; T = self.cTMP
        C.set_act(T_)
        a(f"""
    s_lshl_b32 s{sT1}, s{sW}, 9
    s_add_u32 s{sT1}, s{sT1}, s{sAR}
    s_add_u32 s{sT1}, s{sT1}, {HALO:#x}
    v_and_b32 v{x+2}, 0x1ff, v{vL16}
    s_cmp_eq_u32 s{sW}, 0
    s_cselect_b32 s{sT3}, -16, 0
    s_cselect_b32 s{sT4}, 0xaaaaaaaa, -1
    s_cmp_eq_u32 s{sW}, 1
    s_cselect_b32 s{sT3}, {63*16}, s{sT3}
    s_cselect_b32 s{sT4}, 0x55555555, s{sT4}
    s_cmp_eq_u32 s{sW}, 3
    s_cselect_b32 s{sT3}, {62*16}, s{sT3}
    s_lshl_b32 s{sT2}, s{sW}, 14
    s_add_u32 s{sT3}, s{sT3}, s{sT2}
    s_add_u32 s{sT3}, s{sT3}, {ACT}
    v_lshrrev_b32 v{x+1}, 1, v{vLANE}
    v_lshlrev_b32 v{x+1}, 10, v{x+1}
    v_and_b32 v{x+3}, 1, v{vLANE}
    v_lshl_add_u32 v{x+1}, v{x+3}, 4, v{x+1}
    v_add_u32 v{x+1}, s{sT3}, v{x+1}
    s_lshl_b32 s{sPF}, s{sMEM}, 3
    s_add_u32 s{sPF}, s{sPF}, s{sW}
    s_mul_i32 s{sPF}, s{sPF}, {28*1024}
    s_add_u32 s{sPF}, s{sPF}, {W4 + 20*1024:#x}
    s_lshl_b32 s{sPL}, s{sW}, 13""")
        C.poll(2, self.cF, self.cP, mid=[]); C.ts()
        shifts = (1, -1, 2, -2)
        masks = ((0xfffffffe, 0xffffffff), (0xffffffff, 0x7fffffff), (0xfffffffc, 0xffffffff), (0xffffffff, 0x3fffffff))
        def pre(c):
            g = c >> 1
            if c & 1 == 0: a(f"s_add_i32 s{sG}, s{sG}, {-16*shifts[g] + (16*shifts[g-1] if g else 0)}")
            a(f"s_mov_b32 exec_lo, {masks[g][0]:#x}" if masks[g][0] != 0xffffffff else f"s_mov_b32 exec_hi, {masks[g][1]:#x}")
        hs = {}
        hload = f"buffer_load_dwordx4 {vr(T)}, v{x+2}, {WS}, s{sT1} offen sc1"
        stg = C.frags(8, sPF, lds=sPL) + C.E(f"s_add_u32 s{sPF}, s{sPF}, {4*28*1024 - 8192}\n s_add_u32 s{sPL}, s{sPL}, {32768 - 8192}") + C.frags(8, sPF, lds=sPL)
        C.load_gemm(C.act_issue(pre=pre, post=lambda c: a("s_mov_b64 exec, -1")),
                    side={2: [lambda: hs.__setitem__(0, C.vm(hload))], 3: stg[:2], 4: stg[2:4], 5: stg[4:6], 6: stg[6:10]}, tag='s5')
        L0, Lr, L2 = C.lab("hchk"), C.lab("hre"), C.lab("hok")
        C.wait_vm(hs[0])
        a.label(L0)
        a(f"v_max_u32 v{x}, v{T}, v{T+1}\n v_max3_u32 v{x}, v{x}, v{T+2}, v{T+3}\n v_cmp_eq_u32 vcc, -1, v{x}\n s_cbranch_vccnz {Lr}")
        a.label(L2)
        C.ool.append((Lr, [f"s_add_u32 s{sCNT}, s{sCNT}, 1", f"s_cmp_gt_u32 s{sCNT}, {SPIN}", f"s_cbranch_scc1 {L2}",
                           hload, "s_waitcnt vmcnt(0)", f"s_branch {L0}"]))
        C.setvcc()
        a(f"s_mov_b32 exec_lo, s{sT4}\n s_mov_b32 exec_hi, 0\n ds_write_b128 v{x+1}, {vr(T)}\n s_mov_b64 exec, -1\n s_waitcnt lgkmcnt(0)")
        C.bar()
        C.run(stg[10:14]); self.stg_rest = stg[14:]
        C.set_act(X1)
        self.stat_publish(ST3)
        a = H.a; ST, RES, R1 = self.hSTAT, self.hRES, self.hR1
        a(f"s_lshl_b32 s{sT1}, s{sW}, 14\n v_add_u32 v7, s{sT1}, v{vL16}")
        H.lds2reg(V(128), 16, 7)
        for jt in range(4):
            a(f"v_mul_f32 v6, v{ST+4*jt}, v{R1+jt}")
            for i in range(4): a(f"v_fma_f32 v{ST+4*jt+i}, v{RES+4*jt+i}, v{R1+jt}, -v6")
        H.tile_soff(sT4, X1)
        a("s_waitcnt lgkmcnt(0)")
        H.colsum(V(128), self.hCS3, self.hX)
        H.cons_gemm(V(192), self.hACC, self.hBP, defer=lambda ks: 3 if (ks >> 2) & 1 else 0, tag="s5"); H.ts()
        for jt in range(4): self.add_pack(jt, ST+4*jt)
        H.cstore([self.tile_store(jt) for jt in range(4)])
        self.prod_stats(self.hACC)
        for i in range(8): H.unpack(self.hXT+i, self.hACC+2*i)
        H.flag(3, 6)
        a("s_waitcnt lgkmcnt(0)"); H.bar()
        for i in range(8): a(f"v_pk_add_f32 {P(RES+2*i)}, {P(RES+2*i)}, {P(self.hACC+2*i)}")
        H.ts()
        self.sync_check()

    def capture(self, S, fn):
        keep = S.a.lines; S.a.lines = []
        fn()
        got = S.a.lines; S.a.lines = keep
        return [(lambda x=x: S.a(x)) for x in got]
    def s6(self):
        self.C.mark(); self.H.mark()
        C, H = self.C, self.H
        PK = bool(self.opt.get("s6pk"))
        for S in (C, H):
            isC = S is C; a = S.a
            vBa, vBb, vDa, vDb, vS = (124, 125, 126, 127, 14) if isC else (self.hCS1, self.hCS1+1, self.hCS1+2, self.hCS1+3, self.hR1)
            ACCS = [self.cACC + 4*i for i in range(8)] if isC else [self.hACC + 4*i for i in range(4)] + [self.hX, self.hX+4]
            BP = self.cBP if isC else self.hBP
            ST, CS, TMP, OUT = (self.cSTAT, self.cCS3, self.cTMP, self.cOUT) if isC else (self.hSTAT, self.hCS3, self.hTMP, self.hXT)
            W = (V(128), V(192))
            def setup():
                a(f"""
    v_xor_b32 v{vBa}, s{sORD}, v{vB}
    v_xor_b32 v{vBb}, 256, v{vBa}
    v_xor_b32 v{vDa}, s{sORD}, v{vD}
    v_xor_b32 v{vDb}, 256, v{vDa}
    v_and_b32 v{vS}, 0xff, v{vL16}
    v_add_u32 v{vS}, {HI}, v{vS}
    v_xor_b32 v{vS}, s{sORD}, v{vS}
    v_xor_b32 v{vS+1}, 256, v{vS}
    s_mul_i32 s{sU0}, s{sMEM}, {14*2048}
    s_add_u32 s{sU0}, s{sU0}, s{sAR}
    s_add_u32 s{sU0}, s{sU0}, {U_:#x}
    s_lshr_b32 s{sU1}, s{sW}, 1
    s_add_u32 s{sU1}, s{sU1}, 12
    s_lshl_b32 s{sU1}, s{sU1}, 11
    s_add_u32 s{sU1}, s{sU1}, s{sU0}
    s_mul_i32 s{sT3}, s{sW}, {3*2048}
    s_add_u32 s{sU0}, s{sU0}, s{sT3}
    s_lshl_b32 s{sW4}, s{sMEM}, 3
    s_add_u32 s{sW4}, s{sW4}, s{sW8}
    s_lshl_b32 s{sT3}, s{sW4}, 2
    v_mov_b32 v{vMYF}, s{sT3}
    s_mul_i32 s{sW4}, s{sW4}, {28*1024}
    s_add_u32 s{sW4}, s{sW4}, {W4:#x}
""")
                if isC: a(f"s_add_u32 s{sU1}, s{sU0}, 2048")
                else: a(f"s_add_u32 s{sU0}, s{sU0}, 4096")
            tilesA = [(j, n) for j in (0, 1) for n in ((0, 1) if isC or j == 0 else (0,))]
            tilesB = [(j, n) for j in (2, 3) for n in ((0, 1) if isC or j == 2 else (0,))]
            acc = {t: ACCS[i] for i, t in enumerate(tilesA + tilesB)}
            rs = {}
            slot = lambda s, j: BP + 16*(s & 1) + 4*j
            def rd(s, j): rs[(s, j)] = S.ld(f"ds_read_b128 {vr(slot(s, j))}, v{vBb if j & 1 else vBa} offset:{4096*s + 512*(j>>1)}")
            def mf(s, j, n): a(f"v_mfma_f32_16x16x32_bf16 {vr(acc[(j, n)])}, {W[n](s)}, {vr(slot(s, j))}, {'0' if s == 0 else vr(acc[(j, n)])}")
            wreg = lambda f: vr(128 + 4*(f >> 1) + 64*(f & 1))
            S.wreg = wreg
            w4 = S.frags(20, sW4, dst=wreg)
            stg = []
            sr = S.stat_reads(ST, vS, True)
            def ustore(j, n, r):
                return f"buffer_store_dwordx2 {P(r)}, v{vDb if j & 1 else vDa}, {WS}, s{(sU0, sU1)[n]} offen offset:{512*(j>>1)}"
            k2 = [0]
            def gel(ts_):
                o = OUT + 4*(k2[0] & 1); k2[0] += 1
                arg = [(acc[t], CS+4*t[1], ST+4*t[0], o+2*i) for i, t in enumerate(ts_)]
                z = S.gelu2(*arg, TMP, True) if len(ts_) == 2 else S.gelu(*arg[0], TMP, True)
                for y in z: a(y)
                if self.opt.get("usc1"):
                    for i, t in enumerate(ts_): S.vm(ustore(*t, o+2*i) + " sc1")
                else: S.cstore([ustore(*t, o+2*i) for i, t in enumerate(ts_)])
                return S.nvm - 1
            tiles = tilesA + tilesB
            if isC:
                S.poll(3, self.cF, self.cP, mid=[self.pubfin]); S.ts()
                load, comp = self.cons_stats(ST3, HI, False)
                issue = S.act_issue(); seqs = {}
                for c in range(3): seqs[c] = issue(c)
                load(); setup()
                S.wait_vm(seqs[0])
            else:
                a(f"s_and_b32 s{sT1}, s{sW}, 2\n s_lshl_b32 s{sT1}, s{sT1}, 13\n s_add_u32 s{sT1}, s{sT1}, {HI}\n v_add_u32 v7, s{sT1}, v{vL16}")
                S.lds2reg(V(192), 16, 7)
                setup()
                a("s_waitcnt lgkmcnt(0)")
                S.colsum(V(192), CS+4, self.hX)
                a("s_setprio 0")
            S.bar()
            for j in range(4): rd(0, j)
            BAR = {1: 1, 3: 3, 7: 7}
            nt = len(tiles)
            for s in range(16):
                items = []
                if isC:
                    if s == 0: items = [(lambda c=c: seqs.__setitem__(c, issue(c))) for c in (3, 4, 5)]
                    if s == 1: items = [(lambda c=c: seqs.__setitem__(c, issue(c))) for c in (6, 7)]
                    if s == 2: items = self.stg_rest + [lambda: seqs.__setitem__(7, S.lastf)]
                    items = items + {3: comp[:7], 4: comp[7:14], 5: comp[14:]}.get(s, [])
                if s == 8: items = items + sr
                if s == 13: items = S.E(f"s_lshl_b32 s{sT1}, s{sW8}, 13\n v_add_u32 v7, s{sT1}, v{vL16}")
                if s >= 14: items = [(lambda i=i: S.ld(f"ds_read_b128 {wreg(20+i)}, v7 offset:{1024*i}")) for i in range(4*(s-14), 4*(s-14)+4)]
                if 3 <= s < 13: items = [w4.pop(0)] + items[:len(items)//2] + [w4.pop(0)] + items[len(items)//2:]
                if s in BAR:
                    if isC:
                        S.wait_vm(seqs[BAR[s]])
                        if s == 7: S.wait_ld(S.wseq)
                    S.bar()
                for i, (j, n) in enumerate(tiles):
                    if n == 0: S.wait_ld(rs[(s, j)])
                    mf(s, j, n)
                    if n == 0 and s + 1 < 16: rd(s+1, j)
                    S.run(items[i*len(items)//nt:(i+1)*len(items)//nt])
                if s % 4 == 3: S.ts("s6")
            assert not w4
            vF8, vPp = (self.cF, self.cP) if isC else (vBa, self.hR1+2)
            S.f7 = (vF8, vPp)
            a(f"""
    s_setprio 1
    s_mul_i32 s{sB}, s{sW8}, {7*4096}
    s_add_u32 s{sB}, s{sB}, s{sAR}
    s_add_u32 s{sB}, s{sB}, {U_ - ACT:#x}
    v_and_b32 v{vF8}, 7, v{vLANE}
    v_lshlrev_b32 v{vF8}, 2, v{vF8}
    s_lshl_b32 s{sT1}, s{sW8}, 5
    v_add_u32 v{vF8}, s{sT1}, v{vF8}""")
            gel(tilesA[:2]); sa = gel(tilesA[2:])
            a("s_setprio 0")
            S.ts()
            gel(tilesB[:2])
            S.flag(4, 6, seq=sa)
            S.sb = gel(tilesB[2:])
            S.ts()
        self.sync_check()

    def s7(self):
        self.C.mark(); self.H.mark()
        C, H = self.C, self.H
        for S in (C, H):
            isC = S is C; a = S.a
            wreg = S.wreg
            vF8, vPp = S.f7
            if isC:
                vWr, vRD, vO = [8, 9, 10, 11], 12, 13
                ring = [self.cBP + 4*i for i in range(8)]
                accx = lambda p, m: self.cACC + 16*(p & 1) + 4*m
                rb = [80 + 4*k for k in range(8)]
            else:
                vWr, vRD, vO = [self.hX+4+i for i in range(4)], 7, vXO
                ring = [self.hBP + 4*i for i in range(8)]
                accx = lambda p, m: self.hACC + 4*m if p & 1 else (184, 188, 248, 252)[m]
                rb = [80, 84, 88, 92, 104, 108, 112, 116]
            NR = len(ring); x = rb[0]
            def setup():
                a(f"""
    v_and_b32 v{x}, 15, v{vLANE}
    v_lshrrev_b32 v{x+1}, 4, v{vLANE}
    v_xor_b32 v{x+2}, v{x}, v{x+1}                ; t ^ g""")
                for m in range(4):
                    a(f"""
    s_add_u32 s{sT1}, s{sW}, {m}
    s_and_b32 s{sT1}, s{sT1}, 3
    s_lshl_b32 s{sT2}, s{sT1}, 2
    v_xor_b32 v{vWr[m]}, s{sT2}, v{x+2}
    v_lshlrev_b32 v{vWr[m]}, 4, v{vWr[m]}
    v_lshl_add_u32 v{vWr[m]}, v{x+1}, 8, v{vWr[m]}
    s_lshl_b32 s{sT1}, s{sT1}, 10
    s_lshl_b32 s{sT2}, s{sW8}, 12
    s_add_u32 s{sT1}, s{sT1}, s{sT2}
    v_add_u32 v{vWr[m]}, s{sT1}, v{vWr[m]}""")
                a(f"""
    s_lshl_b32 s{sT1}, s{sW}, 2
    v_add_u32 v{x+1}, s{sT1}, v{x+1}
    v_xor_b32 v{vRD}, v{x+1}, v{x}
    v_lshlrev_b32 v{vRD}, 4, v{vRD}
    v_lshl_add_u32 v{vRD}, v{x}, 8, v{vRD}
    v_lshlrev_b32 v{vO}, 10, v{x+1}
    v_lshl_add_u32 v{vO}, v{x}, 3, v{vO}
    s_lshl_b32 s{sT4}, s{sGRP}, 16
    s_lshl_b32 s{sT1}, s{sMEM}, 7
    s_add_u32 s{sT4}, s{sT4}, s{sT1}""")
                if not isC: a(f"s_add_u32 s{sT4}, s{sT4}, 16384\n v_add_u32 v{vRD}, 32768, v{vRD}")
                a("s_waitcnt lgkmcnt(0)")
            S.poll(4, vF8, vPp, mid=[setup])
            S.flag(6, 6, seq=S.sb)
            S.ts()
            seq = {}
            def load(u):
                p, i = u // 7, u % 7
                seq[u] = S.vm(f"buffer_load_dwordx4 {vr(ring[u % NR])}, v{vB}, {WS}, s{sB} offen offset:{256*p} sc1")
                a(f"s_add_u32 s{sB}, s{sB}, 4096" if i < 6 else f"s_sub_u32 s{sB}, s{sB}, {6*4096}")
            def Wr(p):
                it = []
                for m in range(4):
                    if p == 2: it.append(lambda m=m: a(f"v_add_u32 v{vWr[m]}, 0x10000, v{vWr[m]}"))
                    it.append(lambda m=m: S.ld(f"ds_write_b128 v{vWr[m]}, {vr(accx(p, m))} offset:{32768*(p&1)}"))
                return it
            bar = [lambda: (a("s_waitcnt lgkmcnt(0)"), S.bar())]
            st = {}
            def Rd(p):
                it = [lambda: a(f"v_add_u32 v{vRD}, 0x10000, v{vRD}")] if p >= 2 else []
                return it + [(lambda k=k: st.__setitem__(p, S.ld(f"ds_read_b128 {vr(rb[k])}, v{vRD} offset:{4096*k}"))) for k in range(8)]
            def Ad(p, pk):
                r = rb
                pairs = [(r[0], r[1]), (r[2], r[3]), (r[4], r[5]), (r[6], r[7]), (r[0], r[2]), (r[4], r[6]), (r[0], r[4])]
                ins = []
                for y, z in pairs:
                    if pk: ins += [f"v_pk_add_f32 {P(y+h)}, {P(y+h)}, {P(z+h)}" for h in (0, 2)]
                    else: ins += [f"v_add_f32 v{y+h}, v{y+h}, v{z+h}" for h in range(4)]
                ins += [f"v_cvt_pk_bf16_f32 v{r[1]+h}, v{r[0]+2*h}, v{r[0]+2*h+1}" for h in (0, 1)]
                return [lambda: S.wait_ld(st[p])] + [(lambda z=z: a(z)) for z in ins] + \
                       [lambda: S.vm(f"buffer_store_dwordx2 {P(r[1])}, v{vO}, {OS}, s{sT4} offen {self.opt.get('osc', 'nt')}"), lambda: a(f"s_add_u32 s{sT4}, s{sT4}, 32768")]
            la = int(self.opt.get('la7', 4))
            pb = {}
            ltxt = f"buffer_load_dword v{vPp}, v{vF8}, {WS}, s{sT0} offen sc1"
            def chkB():
                L0, Lr = S.lab("bchk"), S.lab("bre")
                S.wait_vm(pb[0])
                a.label(L0)
                a(f"v_cmp_ne_u32 vcc, 1, v{vPp}\n s_cbranch_vccnz {Lr}")
                S.ool.append((Lr, [f"s_add_u32 s{sCNT}, s{sCNT}, 1", f"s_cmp_gt_u32 s{sCNT}, {SPIN}", "s_cbranch_scc1 main_exit",
                                   ltxt, "s_waitcnt vmcnt(0)", f"s_branch {L0}"]))
            side = {6: bar, 8: Wr(0), 15: Wr(1), 16: bar, 22: Wr(2)}
            side[13 - 2*la] = side.get(13 - 2*la, []) + [lambda: pb.__setitem__(0, S.vm(ltxt))]
            side[13 - la] = side.get(13 - la, []) + [chkB]
            p0 = 0 if isC else 1
            ad = Ad(p0, False)
            side[17] = Rd(p0); side[18] = ad[:11]; side[19] = ad[11:22]; side[20] = ad[22:]
            for u in range(la): load(u)
            for u in range(28):
                p, i = u // 7, u % 7
                S.wait_vm(seq[u])
                items = list(side.get(u, []))
                per = -(-len(items) // 3)
                for m in range(4):
                    c0 = vr(self.hRES+4*p) if (m == 0 and not isC) else '0'
                    if not (self.opt.get('x7b') and m): a(f"v_mfma_f32_16x16x32_bf16 {vr(accx(p, m))}, {wreg(4*i+m)}, {vr(ring[u % NR])}, {c0 if i == 0 else vr(accx(p, m))}")
                    if m == 0:
                        if u + la < 28: load(u + la)
                    else:
                        for _ in range(per):
                            if items: items.pop(0)()
                if u % 7 == 6: S.ts("s7")
            S.run(Wr(3) + bar)
            S.ts()
            S.run(Rd(p0+2) + Ad(p0+2, True))
            S.ts("s7")
        self.sync_check()

    def dump_ts(self, S):
        a = S.a
        a("s_waitcnt vmcnt(0)")
        S.ts()
        a(f"""
    s_waitcnt lgkmcnt(0)
    s_lshl_b32 s{sT0}, s2, 3
    s_add_u32 s{sT0}, s{sT0}, s{sW8}
    s_lshl_b32 s{sT0}, s{sT0}, 7
    s_add_u32 s{sT0}, s{sT0}, {DBG:#x}
    v_mov_b32 v7, 0
    s_mov_b64 exec, 1""")
        assert S.nts <= 28
        for i in range(S.nts):
            a(f"v_mov_b32 v6, s{tsreg(i)}\n buffer_store_dword v6, v7, {WS}, s{sT0} offen offset:{4*i}")
        a(f"v_mov_b32 v6, s{sSLOW}\n buffer_store_dword v6, v7, {WS}, s{sT0} offen offset:124")
        a(f"v_mov_b32 v6, s{sXCC}\n buffer_store_dword v6, v7, {WS}, s{sT0} offen offset:120")

    def gen(self):
        C, H = self.C, self.H
        self.prologue(); self.qstage(); self.attention()
        for name in ("s3", "s4", "s5", "s6", "s7"): getattr(self, name)()
        for S in (C, H):
            S.a.label(f"M_{S.name}_{S.nmark}")
            if self.dbg: self.dump_ts(S)
            if S is C: S.a.label("main_exit")
            S.a("s_endpgm")
        tail = Asm()
        self.fallback()
        for S in (C, H):
            for L, body in S.ool:
                S.a.label(L)
                for x in body: S.a(x)
        C.a.label("main_end")
        H.a.lines = self.head + H.a.lines
        txt = H.a.finish() + C.a.finish()
        txt += """
.section .rodata,"a"
.p2align 6
.amdhsa_kernel """ + NAME + """_kernel
  .amdhsa_next_free_vgpr 256
  .amdhsa_next_free_sgpr 102
  .amdhsa_accum_offset 256
  .amdhsa_group_segment_fixed_size 0
  .amdhsa_kernarg_size 104
  .amdhsa_user_sgpr_count 2
  .amdhsa_user_sgpr_kernarg_segment_ptr 1
  .amdhsa_system_sgpr_workgroup_id_x 1
.end_amdhsa_kernel
"""
        return txt
```

```python
from asmlib import Asm
from layout import *
import struct, os

def f32(x):
    return "0x%08x" % struct.unpack('<I', struct.pack('<f', x))[0]

K2_LDS = 163840
LOG2E = 1.4426950408889634
QSCALE = 0.25 * LOG2E
GC1 = -2.0 * 0.7978845608028654 * LOG2E
SPIN = 0x40000
ACT = 65536
XST = ACT + 5*8192 + 256
HI = 131072
LA = 5

sW, sGRP, sMEM, sSLOW, sXCC, sW8 = 3, 16, 17, 18, 45, 44
WS, XS, OS = "s[4:7]", "s[8:11]", "s[12:15]"
sT0, sT1, sT2, sT3, sT4, sT5 = 20, 21, 22, 23, 24, 25
sG, sL, sPF, sCNT, sFLG, sAR = 26, 27, 28, 29, 30, 31
sU0, sU1 = 32, 33
sB = 34
sKVW, sTAG, sRND = 40, 41, 33
sTCH = 35
sNT, sORD = 38, 39
sVM = "s[40:41]"
sPL, sW4 = 42, 43
sPP, sPR, sPS, sPD = 46, 56, 60, 65
def tsreg(i): return 70 + 2*i if i < 16 else 46 + 2*(i-16)
vLANE, vL16, vB, vD, vMYF, vXO = 0, 1, 2, 3, 4, 5

def vr(b, n=4): return f"v[{b}:{b+n-1}]"
def V(b): return lambda ks: vr(b+4*ks)
def P(r): return f"v[{r}:{r+1}]"

class Stream:
    uid = 0
    def __init__(self, name, dbg, tags):
        self.name, self.dbg, self.tags = name, dbg, tags
        self.a = Asm(); self.nvm = self.nld = self.nts = self.nbar = 0
        self.ool = []; self.nmark = 0; self.seclen = {}
    def vm(self, text):
        self.a(text); self.nvm += 1; return self.nvm - 1
    def wait_vm(self, seq): self.a(f"s_waitcnt vmcnt({min(self.nvm - 1 - seq, 63)})")
    def ld(self, text):
        self.a(text); self.nld += 1; return self.nld - 1
    def wait_ld(self, seq): self.a(f"s_waitcnt lgkmcnt({min(self.nld - 1 - seq, 15)})")
    def bar(self): self.a("s_barrier"); self.nbar += 1
    def ts(self, tag="main"):
        if self.dbg and tag in self.tags:
            self.a(f"{'s_memtime' if self.dbg == 'cyc' else 's_memrealtime'} s[{tsreg(self.nts)}:{tsreg(self.nts)+1}]")
            self.nts += 1
    def lab(self, p):
        Stream.uid += 1; return f"L_{p}_{Stream.uid}"
    def mark(self):
        i = self.nmark; self.nmark += 1
        L = f"M_{self.name}_{i}"
        n = self.seclen.get(L)
        if n is not None and n < 4000:
            self.a(f"s_branch {L}"); self.a(f".p2align 12,,{n + 64}")
        self.a.label(L)
    def E(self, text): return [(lambda x=x: self.a(x)) for x in text.split("\n") if x.strip()]
    def set_wbase(self, base, ks, dst=sPF):
        self.a(f"s_mul_i32 s{dst}, s{sNT}, {ks*1024}\n s_add_u32 s{dst}, s{dst}, {base:#x}")
    def set_w3(self, slot):
        if slot < 3: self.a(f"s_mul_i32 s{sPF}, s{sW}, 3\n s_add_u32 s{sPF}, s{sPF}, {slot}")
        else: self.a(f"s_lshr_b32 s{sPF}, s{sW}, 1\n s_add_u32 s{sPF}, s{sPF}, 12")
        self.a(f"s_mul_i32 s{sT5}, s{sMEM}, 14\n s_add_u32 s{sPF}, s{sPF}, s{sT5}\n s_lshl_b32 s{sPF}, s{sPF}, 14\n s_add_u32 s{sPF}, s{sPF}, {W3:#x}")
    def set_act(self, base):
        self.a(f"s_lshl_b32 s{sL}, s{sW}, 11\n s_add_u32 s{sG}, s{sAR}, s{sL}\n s_add_u32 s{sG}, s{sG}, {base:#x}\n s_add_u32 s{sL}, s{sL}, {ACT}")
    def tile_soff(self, s, base):
        self.a(f"s_lshl_b32 s{s}, s{sNT}, 11\n s_add_u32 s{s}, s{s}, s{sAR}\n s_add_u32 s{s}, s{s}, {base:#x}")
    def xo_soff(self, s):
        self.a(f"s_lshl_b32 s{s}, s{sNT}, 5\n s_lshl_b32 s{sT5}, s{sGRP}, 16\n s_add_u32 s{s}, s{s}, s{sT5}")
    def act_issue(self, sc="sc1", pre=None, post=None):
        def issue(c):
            self.a(f"s_mov_b32 m0, s{sL}")
            if pre: pre(c)
            self.vm(f"buffer_load_dwordx4 v{vL16}, {WS}, s{sG} offen {sc} lds")
            last = self.vm(f"buffer_load_dwordx4 v{vL16}, {WS}, s{sG} offen offset:1024 {sc} lds")
            if post: post(c)
            self.a(f"s_add_u32 s{sG}, s{sG}, 8192\n s_add_u32 s{sL}, s{sL}, 8192")
            return last
        return issue
    def frags(self, n, sreg, dst=None, lds=None, sc="sc1"):
        def mk(i):
            def f():
                if dst is not None:
                    r = self.vm(f"buffer_load_dwordx4 {dst(i)}, v{vL16}, {WS}, s{sreg} offen offset:{1024*(i&3)} {sc}")
                else:
                    self.a(f"s_mov_b32 m0, s{lds}")
                    r = self.vm(f"buffer_load_dwordx4 v{vL16}, {WS}, s{sreg} offen offset:{1024*(i&3)} {sc} lds")
                if i & 3 == 3:
                    self.a(f"s_add_u32 s{sreg}, s{sreg}, 4096")
                    if lds is not None: self.a(f"s_add_u32 s{lds}, s{lds}, 4096")
                self.lastf = r
                return r
            return f
        return [mk(i) for i in range(n)]
    def run(self, items):
        for f in items: f()
    def setvcc(self): self.a(f"s_mov_b64 vcc, s[{sSLOW}:{sSLOW+1}]")
    NT = True
    def cstore(self, st, nt=True):
        Ls, Le = self.lab("cs"), self.lab("ce")
        self.a(f"s_cbranch_vccnz {Ls}")
        for x in st: self.vm(x + (" nt" if nt and self.NT else ""))
        self.a.label(Le)
        self.ool.append((Ls, [x + " sc1" for x in st] + [f"s_branch {Le}"]))
    def flag(self, stage, t, vf=vMYF, seq=None):
        self.a(f"s_add_u32 s{sT0}, s{sFLG}, {stage*8192}\n v_mov_b32 v{t}, 1")
        if seq is None: self.a("s_waitcnt vmcnt(0)")
        else: self.wait_vm(seq)
        self.a("s_mov_b64 exec, 1")
        self.cstore([f"buffer_store_dword v{t}, v{vf}, {WS}, s{sT0} offen"], nt=False)
        self.a("s_mov_b64 exec, -1")
    def poll(self, stage, vf, p0, mid=()):
        a = self.a; L, Ld = self.lab("poll"), self.lab("pdone"); p1 = p0 + 1
        a(f"s_add_u32 s{sT0}, s{sFLG}, {stage*8192}\n s_mov_b32 s{sCNT}, 0")
        q = self.vm(f"buffer_load_dword v{p0}, v{vf}, {WS}, s{sT0} offen sc1")
        self.run(mid)
        self.vm(f"buffer_load_dword v{p1}, v{vf}, {WS}, s{sT0} offen sc1")
        self.wait_vm(q)
        a(f"v_cmp_ne_u32 vcc, 1, v{p0}\n s_cbranch_vccz {Ld}")
        a.label(L)
        a(f"""
    buffer_load_dword v{p0}, v{vf}, {WS}, s{sT0} offen sc1
    s_waitcnt vmcnt(1)
    v_cmp_ne_u32 vcc, 1, v{p1}
    s_add_u32 s{sCNT}, s{sCNT}, 1
    s_cbranch_vccz {Ld}
    buffer_load_dword v{p1}, v{vf}, {WS}, s{sT0} offen sc1
    s_cmp_gt_u32 s{sCNT}, {SPIN}
    s_cbranch_scc1 main_exit
    s_waitcnt vmcnt(1)
    v_cmp_ne_u32 vcc, 1, v{p0}
    s_cbranch_vccnz {L}""")
        a.label(Ld)
        self.setvcc()
    def regcheck(self, r, z):
        a = self.a; L, L0 = self.lab("reg"), self.lab("reg0")
        a(f"s_mov_b32 s{sCNT}, 0")
        a.label(L0)
        a(f"""
    v_readfirstlane_b32 s{sT1}, v{r}
    s_and_b32 s{sT2}, s{sT1}, 0x0f0f0f0f
    s_lshr_b32 s{sT3}, s{sT1}, 4
    s_and_b32 s{sT3}, s{sT3}, 0x0f0f0f0f
    s_add_u32 s{sT2}, s{sT2}, s{sT3}
    s_mul_i32 s{sT2}, s{sT2}, 0x01010101
    s_lshr_b32 s{sT2}, s{sT2}, 24
    s_cmp_lg_u32 s{sT2}, 8
    s_cbranch_scc1 {L}
    s_lshl_b32 s{sT2}, s{sXCC}, 2
    s_lshl_b32 s{sT2}, 8, s{sT2}
    s_cmp_lg_u32 s{sT1}, s{sT2}
    s_cselect_b64 s[{sSLOW}:{sSLOW+1}], -1, 0""")
        self.ool.append((L, [f"s_add_u32 s{sT0}, s{sFLG}, {5*8192}", f"buffer_load_dword v{r}, v{z}, {WS}, s{sT0} offen sc1",
                             f"s_add_u32 s{sCNT}, s{sCNT}, 1", f"s_cmp_gt_u32 s{sCNT}, {SPIN}", "s_cbranch_scc1 main_exit",
                             "s_waitcnt vmcnt(0)", f"s_branch {L0}"]))
    def regload(self, r, z):
        self.a(f"s_add_u32 s{sT0}, s{sFLG}, {5*8192}\n v_mov_b32 v{z}, 0")
        return self.vm(f"buffer_load_dword v{r}, v{z}, {WS}, s{sT0} offen sc1")
    def load_gemm(self, issue, la=LA, side=None, tag=None, ramp=True):
        side = side or {}
        seqs = {}
        if tag: self.ts(tag)
        ni = 3
        for c in range(ni): seqs[c] = issue(c)
        self.run(side.get(-1, []))
        if tag: self.ts(tag)
        for c in range(8):
            self.wait_vm(seqs[c])
            self.run(side.get((c, 'pre'), []))
            if tag: self.ts(tag)
            self.bar()
            for _ in range(2 if (c < 2 and ramp) else 1):
                if ni < 8: seqs[ni] = issue(ni); ni += 1
            self.run(side.get(c, []))
    def cons_gemm(self, areg, ACC, BP, side=None, prewait=None, defer=None, tag=None, baddr=None, prebar=None, postbar=None, onebar=False):
        a = self.a
        side = {k: list(v) for k, v in (side or {}).items()}
        work = [[(2*c+s, jt) for s in range(2) for jt in range(4) if not (defer and defer(2*c+s) == jt)] for c in range(8)]
        if defer: work += [[(ks, defer(ks)) for ks in range(8)], [(ks, defer(ks)) for ks in range(8, 16)]]
        nch = len(work); rs = {}; started = set()
        def read(c, i):
            ks, jt = work[c][i]
            r, off = baddr(ks, jt) if baddr else (vB, 4096*ks + 256*jt)
            rs[(c, i)] = self.ld(f"ds_read_b128 {vr(BP+4*i)}, v{r} offset:{off}")
        if tag: self.ts(tag)
        if prebar: prebar(0)
        self.bar()
        if postbar: postbar(0)
        for i in range(len(work[0])): read(0, i)
        if tag: self.ts(tag)
        for c in range(nch):
            nxt = c + 1 < nch
            if c + 1 < 8 and prebar: prebar(c+1)
            if (c + 1 < 8 or (c + 1 == 8 and defer)) and not onebar: self.bar()
            if c + 1 < 8 and postbar: postbar(c+1)
            if prewait: prewait(c)
            items = side.pop(c, [])
            n = len(work[c]); nn = len(work[c+1]) if nxt else 0
            per = -(-len(items) // n)
            for i in range(n, nn): read(c+1, i)
            for i in range(n):
                ks, jt = work[c][i]
                if i % 2 == 0: self.wait_ld(rs[(c, min(i+1, n-1))])
                cc = vr(ACC+4*jt) if jt in started else "0"
                started.add(jt)
                a(f"v_mfma_f32_16x16x32_bf16 {vr(ACC+4*jt)}, {areg(ks)}, {vr(BP+4*i)}, {cc}")
                if i < nn: read(c+1, i)
                for _ in range(per):
                    if items: items.pop(0)()
            if tag: self.ts(tag)
        assert not side
    def gelu(self, acc, cs, S, out, t, pk):
        I = []
        if pk:
            for i in (0, 2): I.append(f"v_pk_fma_f32 {P(acc+i)}, {P(S)}, {P(cs+i)}, {P(acc+i)} op_sel_hi:[0,1,1] neg_lo:[1,0,0] neg_hi:[1,0,0]")
            for i in (0, 2): I.append(f"v_pk_mul_f32 {P(t+i)}, {P(acc+i)}, {P(acc+i)}")
            for i in (0, 2): I.append(f"v_pk_fma_f32 {P(t+i)}, {P(S+2)}, {P(t+i)}, {P(S+2)} op_sel:[1,0,0] op_sel_hi:[1,1,0]")
            for i in (0, 2): I.append(f"v_pk_mul_f32 {P(t+i)}, {P(t+i)}, {P(acc+i)}")
            for i in range(4): I.append(f"v_exp_f32 v{t+i}, v{t+i}")
            for i in (0, 2): I.append(f"v_pk_fma_f32 {P(t+i)}, {P(S)}, {P(t+i)}, {P(S)} op_sel:[1,0,1] op_sel_hi:[1,1,1]")
            for i in range(4): I.append(f"v_rcp_f32 v{t+i}, v{t+i}")
            for i in (0, 2): I.append(f"v_pk_mul_f32 {P(acc+i)}, {P(acc+i)}, {P(t+i)}")
        else:
            for i in range(4): I.append(f"v_fma_f32 v{acc+i}, -v{S}, v{cs+i}, v{acc+i}")
            for i in range(4): I.append(f"v_mul_f32 v{t+i}, v{acc+i}, v{acc+i}")
            for i in range(4): I.append(f"v_fma_f32 v{t+i}, v{t+i}, v{S+3}, v{S+2}")
            for i in range(4): I.append(f"v_mul_f32 v{t+i}, v{t+i}, v{acc+i}")
            for i in range(4): I.append(f"v_exp_f32 v{t+i}, v{t+i}")
            for i in range(4): I.append(f"v_fma_f32 v{t+i}, v{t+i}, v{S+1}, v{S+1}")
            for i in range(4): I.append(f"v_rcp_f32 v{t+i}, v{t+i}")
            for i in range(4): I.append(f"v_mul_f32 v{acc+i}, v{acc+i}, v{t+i}")
        return I + [f"v_cvt_pk_bf16_f32 v{out}, v{acc}, v{acc+1}", f"v_cvt_pk_bf16_f32 v{out+1}, v{acc+2}, v{acc+3}"]
    def gelu2(self, x, y, t, pk):
        p, q = self.gelu(*x, t, pk), self.gelu(*y, t+4, pk)
        return [z for pair in zip(p, q) for z in pair]
    def colsum(self, areg, dst, ones):
        for i in range(4): self.a(f"v_mov_b32 v{ones+i}, 0x3f803f80")
        for ks in range(16):
            self.a(f"v_mfma_f32_16x16x32_bf16 {vr(dst)}, {areg(ks)}, {vr(ones)}, {'0' if ks == 0 else vr(dst)}")
    def unpack(self, src, dst): self.a(f"v_lshlrev_b32 v{dst}, 16, v{src}\n v_and_b32 v{dst+1}, 0xffff0000, v{src}")
    def lds2reg(self, dst, n, va):
        for i in range(n): self.ld(f"ds_read_b128 {dst(i)}, v{va} offset:{1024*i}")
    def stat_reads(self, STAT, va, order, R1=None):
        it = []
        for jt in range(4):
            if order: x = f"ds_read_b128 {vr(STAT+4*jt)}, v{va+(jt&1)} offset:{512*(jt>>1)}"
            else: x = f"ds_read_b128 {vr(STAT+4*jt)}, v{va} offset:{256*jt}"
            it.append(lambda x=x: setattr(self, 'stseq', self.ld(x)))
        if R1 is not None:
            for jt in range(4):
                it.append(lambda jt=jt: setattr(self, 'stseq', self.ld(f"ds_read_b32 v{R1+jt}, v{va} offset:{1024 + 256*jt}")))
        return it

class Main:
    def __init__(self, dbg=False, tags=('main',), opt=None, seclen=None):
        self.dbg = dbg; self.opt = opt or {}
        Stream.uid = 0; Stream.NT = not self.opt.get('nont')
        self.C = Stream('C', dbg, tags); self.H = Stream('H', dbg, tags)
        self.C.seclen = self.H.seclen = seclen or {}
    def sync_check(self): assert self.C.nbar == self.H.nbar, (self.C.nbar, self.H.nbar)

    def prologue(self):
        C, H = self.C, self.H; a = C.a
        a(f".text\n.globl {NAME}_kernel\n.p2align 12\n.type {NAME}_kernel,@function")
        a.label(f"{NAME}_kernel")
        a.label("main_kernel")
        a(f"""
    s_cmp_ge_u32 s2, 256
    s_cbranch_scc1 main_exit
    s_load_dwordx2 s[4:5], s[0:1], 96
    s_load_dwordx2 s[8:9], s[0:1], 0
    s_load_dwordx2 s[12:13], s[0:1], 80
    s_load_dwordx2 s[{sPR}:{sPR+1}], s[0:1], 8
    s_load_dwordx4 s[32:35], s[0:1], 16
    s_load_dwordx2 s[{sPP}:{sPP+1}], s[0:1], 32
    s_load_dwordx8 s[{sPP+2}:{sPP+9}], s[0:1], 48""")
        if self.dbg:
            a(f"{'s_memtime' if self.dbg == 'cyc' else 's_memrealtime'} s[70:71]"); C.nts = H.nts = 1
        a(f"""
    v_lshrrev_b32 v1, 6, v0
    v_and_b32 v{vLANE}, 63, v0
    v_readfirstlane_b32 s{sW8}, v1
    s_and_b32 s{sT0}, s2, 7
    s_lshr_b32 s{sT1}, s2, 3
    s_lshl_b32 s{sGRP}, s{sT0}, 2
    s_lshr_b32 s{sT2}, s{sT1}, 3
    s_add_u32 s{sGRP}, s{sGRP}, s{sT2}
    s_and_b32 s{sMEM}, s{sT1}, 7
    s_and_b32 s{sW}, s{sW8}, 3
    s_mul_i32 s{sAR}, s{sGRP}, {GA:#x}
    s_lshl_b32 s{sNT}, s{sMEM}, 2
    s_add_u32 s{sNT}, s{sNT}, s{sW}
    v_lshlrev_b32 v{vL16}, 4, v{vLANE}
    s_getpc_b64 s[42:43]""")
        a.label("L_pc0")
        a(f"""
    s_sub_u32 s42, s42, L_pc0-main_kernel
    s_subb_u32 s43, s43, 0
    s_lshl_b32 s{sT1}, s{sT1}, 3
    s_add_u32 s{sT1}, s{sT1}, s{sW8}
    s_lshl_b32 s{sT1}, s{sT1}, 8
    v_and_b32 v9, 1, v{vLANE}
    v_lshlrev_b32 v9, 7, v9
    v_add_u32 v9, s{sT1}, v9
    v_min_u32 v9, main_end-main_kernel-4, v9
    global_load_dword v255, v9, s[42:43]
    s_mov_b32 s6, {WS_USED:#x}
    s_mov_b32 s7, 0x20000
    v_lshrrev_b32 v8, 3, v{vLANE}
    s_mov_b32 s10, {2048*1024:#x}
    s_mov_b32 s11, 0x20000
    s_mov_b32 s{sPR+3}, 0x20000
    s_cmp_ge_u32 s{sW8}, 4
    s_cbranch_scc1 H_entry
    v_bfe_u32 v9, v{vLANE}, 4, 1
    s_and_b32 s{sT0}, s{sW}, 1
    s_lshl_b32 s{sT0}, s{sT0}, 1
    v_or_b32 v9, s{sT0}, v9
    v_bfe_u32 v10, v{vLANE}, 1, 2
    v_xor_b32 v9, v9, v10
    v_lshlrev_b32 v9, 5, v9
    v_and_b32 v10, 1, v{vLANE}
    v_lshl_add_u32 v9, v10, 4, v9
    v_lshl_add_u32 v134, v8, 10, v9
    s_mov_b32 s{sPR+2}, 0x80000
    s_lshl_b32 s{sG}, s{sW}, 13
    s_lshl_b32 s{sT0}, s{sMEM}, 7
    s_add_u32 s{sG}, s{sG}, s{sT0}
    s_lshl_b32 s{sL}, s{sW}, 10
    s_add_u32 s{sL}, s{sL}, 98304
    s_waitcnt lgkmcnt(0)
    s_and_b32 s{sPR+1}, s{sPR+1}, 0xffff""")
        a.label("L_wq")
        a(f"""
    s_mov_b32 m0, s{sL}
    s_add_u32 s{sL}, s{sL}, 4096
    buffer_load_dwordx4 v134, s[{sPR}:{sPR+3}], s{sG} offen lds
    s_add_u32 s{sG}, s{sG}, 32768
    s_cmp_lt_u32 s{sL}, 163840
    s_cbranch_scc1 L_wq
    s_branch C_entry""")
        C.nvm += 16
        a.label("H_entry")
        self.head = a.lines; a.lines = []
        a(".p2align 8"); a.label("C_entry")
    def setup_common(self, S, t):
        S.a(f"""
    s_mov_b32 s14, {2048*1024:#x}
    s_mov_b32 s15, 0x20000
    s_getreg_b32 s{sXCC}, hwreg(HW_REG_XCC_ID, 0, 3)
    v_and_b32 v{t}, 15, v{vLANE}                  ; t
    v_lshrrev_b32 v{t+1}, 4, v{vLANE}             ; g
    v_lshlrev_b32 v{vB}, 10, v{t+1}
    v_lshl_add_u32 v{vB}, v{t}, 4, v{vB}
    v_add_u32 v{vB}, {ACT}, v{vB}                 ; ACT + g*1024 + t*16
    v_lshrrev_b32 v{vD}, 1, v{t+1}
    v_lshlrev_b32 v{vD}, 10, v{vD}
    v_lshl_add_u32 v{vD}, v{t}, 4, v{vD}
    v_and_b32 v{t+2}, 1, v{t+1}
    v_lshl_add_u32 v{vD}, v{t+2}, 3, v{vD}        ; (g>>1)*1024 + t*16 + (g&1)*8
    s_lshl_b32 s{sT0}, s{sNT}, 2
    v_mov_b32 v{vMYF}, s{sT0}
    s_lshl_b32 s{sFLG}, s{sGRP}, 8
    s_add_u32 s{sFLG}, s{sFLG}, {FLAGS:#x}
    v_lshlrev_b32 v{t+2}, 10, v{t}
    v_lshl_add_u32 v{vXO}, v{t+1}, 3, v{t+2}      ; t*1024 + g*8
    s_and_b32 s{sORD}, s{sW}, 1
    s_lshl_b32 s{sORD}, s{sORD}, 8""")

    cT = 6
    S0, S1, NEGM, OA, OB, QA, QB, vIDX, vKA, vVA, vREG = 24, 40, 56, 72, 88, 16, 20, 13, 14, 15, 11
    KVR = 104
    NB = 1
    SCR = 16384
    def x_addr(self, S, dst, t, x):
        S.a(f"""
    v_lshrrev_b32 v{x}, 4, v{vLANE}
    v_and_b32 v{x+1}, 7, v{vLANE}
    v_xor_b32 v{x+1}, v{x+1}, v{x}
    v_lshlrev_b32 v{x+1}, 4, v{x+1}
    v_lshl_add_u32 v{dst}, v{t}, 7, v{x+1}
    v_add_u32 v{dst}, 32768, v{dst}""")
    def qstage(self):
        C, H = self.C, self.H; a = C.a; t = self.cT
        WQR, QACC, QBP = 192, 24, 40
        XB, WB = 32768, 98304
        QS = 144
        a("s_and_b32 s5, s5, 0xffff\n s_and_b32 s13, s13, 0xffff")
        wqseq = C.nvm - 1
        self.prep_setup(C, 152); self.prep_load(C, 152, 164)
        self.setup_common(C, t)
        self.x_addr(C, 130, t, t+1)
        a(f"""
    v_xor_b32 v131, 64, v130
    v_bfe_u32 v{t+2}, v{vLANE}, 2, 2
    v_lshl_add_u32 v132, v{t+1}, 3, v{t+2}
    v_lshlrev_b32 v132, 7, v132
    v_and_b32 v{t+1}, 1, v{t+1}
    v_lshrrev_b32 v{t+2}, 1, v{t+2}
    v_lshl_add_u32 v{t+1}, v{t+1}, 1, v{t+2}
    v_xor_b32 v{t+1}, s{sW}, v{t+1}
    v_lshl_add_u32 v132, v{t+1}, 5, v132
    v_and_b32 v{t+2}, 3, v{vLANE}
    v_lshl_add_u32 v132, v{t+2}, 3, v132
    v_add_u32 v132, {WB}, v132
    v_lshlrev_b32 v133, 3, v{t}""")
        ONE, CSQ = 136, 140
        for i in range(4): a(f"v_mov_b32 v{ONE+i}, 0x3f803f80")
        C.wait_vm(wqseq)
        def postbar(c):
            for ks in (2*c, 2*c+1):
                C.ld(f"ds_read_b64_tr_b16 {P(WQR+4*ks)}, v132 offset:{4096*ks}")
                C.ld(f"ds_read_b64_tr_b16 {P(WQR+4*ks+2)}, v132 offset:{4096*ks+512}")
        side = {c: [(lambda ks=ks: a(f"v_mfma_f32_16x16x32_bf16 {vr(CSQ)}, {vr(WQR+4*ks)}, {vr(ONE)}, {'0' if ks == 0 else vr(CSQ)}")) for ks in (2*c, 2*c+1)] for c in range(8)}
        side[5] += [(lambda jt=jt: C.ld(f"ds_read_b64 {P(QS+2*jt)}, v133 offset:{self.SCR + 128*jt}")) for jt in range(4)]
        C.cons_gemm(V(WQR), QACC, QBP, side=side, baddr=lambda ks, jt: (130 + (ks & 1), 8192*(ks >> 1) + 2048*jt),
                    postbar=postbar, tag="q", onebar=True)
        C.ts()
        QA, QB = self.QA, self.QB
        for jt in range(4): a(f"v_mul_f32 v{QS+2*jt+1}, {f32(QSCALE)}, v{QS+2*jt+1}")
        for jt in range(4):
            for h in (0, 2): a(f"v_pk_fma_f32 {P(QACC+4*jt+h)}, {P(QS+2*jt)}, {P(CSQ+h)}, {P(QACC+4*jt+h)} op_sel_hi:[0,1,1] neg_lo:[1,0,0] neg_hi:[1,0,0]")
        for jt in range(4):
            for h in (0, 2): a(f"v_pk_mul_f32 {P(QACC+4*jt+h)}, {P(QS+2*jt)}, {P(QACC+4*jt+h)} op_sel:[1,0] op_sel_hi:[1,1]")
        for jt in range(4):
            a(f"v_cvt_pk_bf16_f32 v{QA+2*jt}, v{QACC+4*jt}, v{QACC+4*jt+1}")
            a(f"v_cvt_pk_bf16_f32 v{QA+2*jt+1}, v{QACC+4*jt+2}, v{QACC+4*jt+3}")
        a(f"v_mov_b32 v{t}, 0\n v_mov_b32 v{t+1}, 0")
        for q in (QA, QB): a(f"v_permlane16_swap_b32 v{q}, v{q+2}\n v_permlane16_swap_b32 v{q+1}, v{q+3}")
        for i in range(4): a(f"v_dot2_f32_bf16 v{t}, v{QA+i}, v{QA+i}, v{t}\n v_dot2_f32_bf16 v{t+1}, v{QB+i}, v{QB+i}, v{t+1}")
        a(f"""
    v_permlane32_swap_b32 v{t}, v{t+1}
    v_add_f32 v{t}, v{t}, v{t+1}
    v_mov_b32 v{t+1}, v{t}
    v_permlane32_swap_b32 v{t}, v{t+1}
    v_max_f32 v{t}, v{t}, v{t+1}
    v_sqrt_f32 v{t}, v{t}
    v_mov_b32 v133, {self.SCR + 512}""")
        a(f"""
    s_mov_b32 s40, 0xffff
    s_mov_b32 s41, 0xffff
    v_mov_b32 v{self.vIDX}, 0xdddddddd
    v_mov_b32 v{self.vKA}, v{vL16}
    v_lshrrev_b32 v{t+2}, 5, v{vLANE}
    v_lshlrev_b32 v{t+2}, 8, v{t+2}
    v_and_b32 v{t+3}, 0xff, v{vL16}
    v_add_u32 v{self.vVA}, v{t+3}, v{t+2}   ; hA*256 + d*16""")
        for i in range(32): a(f"v_mov_b32 v{self.OA+i}, 0")
        a(f"v_and_b32 v{t+2}, 31, v{vLANE}\n v_cmp_eq_u32 vcc, 16, v{t+2}\n v_mov_b32 v{t+2}, 0x3f803f80")
        for b in range(2):
            for i in range(8): a(f"v_cndmask_b32 v{self.KVR+12*b+4+i}, 0, v{t+2}, vcc")
        a(f"s_mul_i32 s{sT0}, s{sW}, 5120\n s_add_u32 s{sT0}, s{sT0}, {HI}\n v_add_u32 v134, s{sT0}, v{vL16}\n s_waitcnt vmcnt(0)")
        C.ts("q"); C.bar(); C.ts("q")
        a(f"""
    ds_read_b64 v[128:129], v133""")
        for i in range(5): a(f"ds_write_b128 v134, {vr(164+4*i)} offset:{1024*i}")
        a(f"""
    s_waitcnt lgkmcnt(5)
    v_mul_f32 v{self.NEGM}, v{t}, v128
    v_readfirstlane_b32 s{sSLOW}, v129""")
        for i in range(1, 16): a(f"v_mov_b32 v{self.NEGM+i}, v{self.NEGM}")
        a(f"s_mov_b32 s{sSLOW+1}, s{sSLOW}\n s_waitcnt lgkmcnt(0)")

        a = H.a; v = self.PV
        XF, WF = 64, 128
        a(f"""
    s_setprio 3
    v_and_b32 v9, 7, v{vLANE}
    v_xor_b32 v9, v9, v8
    v_lshlrev_b32 v9, 4, v9
    v_lshl_add_u32 v19, v8, 10, v9
    s_lshl_b32 s{sPF}, s{sGRP}, 16
    s_lshl_b32 s{sT0}, s{sW}, 14
    s_add_u32 s{sPF}, s{sPF}, s{sT0}
    s_lshl_b32 s{sL}, s{sW}, 11
    s_add_u32 s{sL}, s{sL}, {XB}
    s_lshr_b32 s{sKVW}, s{sMEM}, 1
    s_mov_b32 s{sPR+2}, 16384
    v_mov_b32 v7, 0
    s_bitcmp1_b32 s{sMEM}, 0
    s_waitcnt lgkmcnt(0)
    s_cselect_b64 s[{sPR}:{sPR+1}], s[34:35], s[32:33]
    s_and_b32 s5, s5, 0xffff
    s_and_b32 s9, s9, 0xffff
    s_and_b32 s13, s13, 0xffff
    s_and_b32 s{sPR+1}, s{sPR+1}, 0xffff
    s_mov_b32 s{sT0}, {TAGW:#x}
    buffer_load_dword v47, v7, {WS}, s{sT0} offen sc1""")
        L = H.lab("nokv1")
        a(f"s_cmp_lg_u32 s{sKVW}, s{sW}\n s_cbranch_scc1 {L}\n s_mov_b32 s{sT0}, 0")
        a.label("L_wk")
        a(f"s_mov_b32 m0, s{sT0}\n s_nop 0")
        for k in range(4): a(f"buffer_load_dwordx4 v{vL16}, s[{sPR}:{sPR+3}], s{sT0} offen offset:{1024*k} lds")
        a(f"s_add_u32 s{sT0}, s{sT0}, 4096\n s_cmp_lt_u32 s{sT0}, 16384\n s_cbranch_scc1 L_wk")
        a.label(L)
        a(f"s_mov_b32 s{sT1}, s{sMEM}\n s_add_u32 s{sT2}, s{sMEM}, 8")
        a.label("L_x")
        a(f"""
    s_and_b32 s{sT0}, s{sT1}, 7
    s_lshl_b32 s{sG}, s{sT0}, 7
    s_add_u32 s{sG}, s{sG}, s{sPF}
    s_lshl_b32 s{sT0}, s{sT0}, 13
    s_add_u32 m0, s{sT0}, s{sL}
    s_add_u32 s{sT1}, s{sT1}, 1
    buffer_load_dwordx4 v19, {XS}, s{sG} offen lds
    s_add_u32 s{sG}, s{sG}, {8192 - 1024}
    s_cmp_lt_u32 s{sT1}, s{sT2}
    buffer_load_dwordx4 v19, {XS}, s{sG} offen offset:1024 lds
    s_cbranch_scc1 L_x""")
        H.nvm += 16
        self.setup_common(H, 16)
        self.x_addr(H, 40, 16, 42)
        a(f"s_lshl_b32 s{sT0}, s{sW}, 11\n v_add_u32 v40, s{sT0}, v40\n v_xor_b32 v41, 64, v40")
        a("v_mov_b32 v32, 0\n v_mov_b32 v33, 0\n v_mov_b32 v34, 0\n v_mov_b32 v35, 0\n v_mov_b32 v60, 0x3f803f80\n v_mov_b32 v61, 0x3f803f80\n v_mov_b32 v62, 0x3f803f80\n v_mov_b32 v63, 0x3f803f80")
        H.ts("q")
        L, L2 = H.lab("noinit"), H.lab("initd")
        a(f"s_cmp_lg_u32 s{sKVW}, s{sW}\n s_cbranch_scc1 {L}")
        a(f"""
    v_mov_b32 v48, 0
    v_mov_b32 v49, 0
    v_mov_b32 v50, 0
    v_mov_b32 v51, 0
    v_lshrrev_b32 v52, 1, v{vLANE}
    v_lshlrev_b32 v52, 13, v52
    v_and_b32 v53, 1, v{vLANE}
    v_lshl_add_u32 v52, v53, 4, v52
    s_lshl_b32 s{sT0}, s{sMEM}, 5
    s_add_u32 s{sT0}, s{sT0}, s{sFLG}
    s_mov_b64 exec, 0x3fff
    buffer_store_dwordx4 v[48:51], v52, {WS}, s{sT0} offen sc1
    s_lshl_b32 s{sT0}, s2, 7
    s_add_u32 s{sT0}, s{sT0}, {PFLAG:#x}
    s_mov_b64 exec, 1
    buffer_store_dword v48, v7, {WS}, s{sT0} offen sc1
    s_mov_b64 exec, -1
    v_mov_b32 v52, -1
    v_mov_b32 v53, -1
    v_mov_b32 v54, -1
    v_mov_b32 v55, -1
    s_lshl_b32 s{sT0}, s{sMEM}, 10
    s_add_u32 s{sT0}, s{sT0}, s{sAR}
    s_add_u32 s{sT0}, s{sT0}, {ST1:#x}
    buffer_store_dwordx4 v[52:55], v{vL16}, {WS}, s{sT0} offen sc1
    s_bfe_u32 s{sT1}, s{sMEM}, 0x10001
    s_mul_i32 s{sT1}, s{sT1}, 31
    s_cmp_eq_u32 s{sT1}, s{sGRP}
    s_cselect_b32 s{sT1}, 0, -1
    v_mov_b32 v56, s{sT1}
    v_mov_b32 v57, s{sT1}
    v_mov_b32 v58, s{sT1}
    v_mov_b32 v59, s{sT1}
    s_lshl_b32 s{sT0}, s{sMEM}, 8
    s_add_u32 s{sT0}, s{sT0}, s{sAR}
    s_add_u32 s{sT0}, s{sT0}, {HALO:#x}
    s_mov_b64 exec, 0xffff
    buffer_store_dwordx4 v[56:59], v{vL16}, {WS}, s{sT0} offen sc1
    s_mov_b64 exec, -1""")
        a(f"""
    v_bfe_u32 v42, v{vLANE}, 2, 2
    v_lshl_add_u32 v42, v17, 3, v42
    v_lshlrev_b32 v42, 5, v42
    v_and_b32 v43, 3, v{vLANE}
    v_lshl_add_u32 v42, v43, 3, v42
    s_waitcnt vmcnt(20)""")
        for ks in range(16):
            a(f"ds_read_b64_tr_b16 {P(WF+4*ks)}, v42 offset:{1024*ks}\n ds_read_b64_tr_b16 {P(WF+4*ks+2)}, v42 offset:{1024*ks+128}")
        a("s_waitcnt lgkmcnt(0)")
        for ks in range(16):
            a(f"v_mfma_f32_16x16x32_bf16 v[192:195], {vr(WF+4*ks)}, v[60:63], {'0' if ks == 0 else 'v[192:195]'}")
            a(f"v_mfma_f32_16x16x32_bf16 v[196:199], v[60:63], {vr(WF+4*ks)}, {'0' if ks == 0 else 'v[196:199]'}")
        a(f"s_waitcnt vmcnt(4)\n s_branch {L2}")
        a.label(L)
        a("s_waitcnt vmcnt(0)")
        a.label(L2)
        H.ts("q")
        rs = [H.ld(f"ds_read_b128 {vr(XF+4*ks)}, v{40 + (ks & 1)} offset:{8192*(ks >> 1)}") for ks in range(16)]
        for ks in range(16):
            if ks % 2 == 0: H.wait_ld(rs[ks+1])
            X, Wf = vr(XF+4*ks), vr(WF+4*ks)
            mf = [f"v_mfma_f32_16x16x32_bf16 v[36:39], v[60:63], {X}, {'0' if ks == 0 else 'v[36:39]'}",
                  f"v_mfma_f32_16x16x32_bf16 v[48:51], {Wf}, {X}, {'0' if ks == 0 else 'v[48:51]'}",
                  f"v_mfma_f32_16x16x32_bf16 v[52:55], {X}, {Wf}, {'0' if ks == 0 else 'v[52:55]'}"]
            for i in range(4):
                if i < 3: a(mf[i])
                a(f"v_dot2_f32_bf16 v{32+i}, v{XF+4*ks+i}, v{XF+4*ks+i}, v{32+i}")
        a(f"""
    v_add_f32 v32, v32, v33
    v_add_f32 v34, v34, v35
    v_add_f32 v45, v32, v34
    v_mov_b32 v44, v45
    v_permlane32_swap_b32 v44, v45
    v_add_f32 v45, v44, v45
    v_mov_b32 v44, v45
    v_permlane16_swap_b32 v44, v45
    v_add_f32 v45, v44, v45
    v_mul_f32 v44, 0x3b000000, v36
    v_mul_f32 v45, 0x3b000000, v45
    v_fma_f32 v45, -v44, v44, v45
    v_max_f32 v45, 0, v45
    v_add_f32 v45, 0x3727c5ac, v45
    v_rsq_f32 v45, v45
    s_lshl_b32 s{sT0}, s{sW}, 7
    v_lshl_add_u32 v46, v16, 3, s{sT0}
    ds_write_b64 v46, v[44:45] offset:{self.SCR}""")
        a(f"v_readfirstlane_b32 s{sTAG}, v47\n s_add_u32 s{sTAG}, s{sTAG}, 1")
        L, Lv, Lp = H.lab("nokv3"), H.lab("isv"), H.lab("pub")
        a(f"""
    s_waitcnt lgkmcnt(0)
    s_cmp_lg_u32 s{sKVW}, s{sW}
    s_cbranch_scc1 {L}
    s_lshl_b32 s{sT1}, s{sGRP}, 1
    s_lshr_b32 s{sT2}, s{sW}, 1
    s_add_u32 s{sT1}, s{sT1}, s{sT2}
    s_lshl_b32 s{sT1}, s{sT1}, 11
    s_add_u32 s{sT1}, s{sT1}, {KV:#x}             ; tile32*2048
    v_lshrrev_b32 v42, 1, v17                     ; hA
    v_and_b32 v43, 0xff, v{vD}                    ; (t or d)*16 + (g&1)*8
    s_bitcmp1_b32 s{sMEM}, 0
    s_cbranch_scc1 {Lv}""")
        a(f"s_add_u32 s{sT1}, s{sT1}, s{sORD}\n v_lshl_add_u32 v43, v42, 9, v43")
        for i in range(4): a(f"v_fma_f32 v{48+i}, -v44, v{192+i}, v{48+i}")
        for i in range(4): a(f"v_mul_f32 v{48+i}, v{48+i}, v45")
        a(f"""
    v_cvt_pk_bf16_f32 v52, v48, v49
    v_cvt_pk_bf16_f32 v53, v50, v51
    v_mov_b32 v57, 0
    buffer_store_dwordx2 v[52:53], v43, {WS}, s{sT1} offen sc1
    v_dot2_f32_bf16 v57, v52, v52, v57
    v_dot2_f32_bf16 v57, v53, v53, v57
    v_mov_b32 v58, v57
    v_permlane32_swap_b32 v57, v58
    v_add_f32 v57, v57, v58
    v_mov_b32 v58, v57
    v_permlane16_swap_b32 v57, v58
    v_add_f32 v57, v57, v58""")
        for r in (8, 4, 2, 1): a(f"v_max_f32_dpp v57, v57, v57 row_ror:{r} row_mask:0xf bank_mask:0xf")
        a(f"s_branch {Lp}")
        a.label(Lv)
        a(f"v_lshl_add_u32 v46, v17, 5, s{sT0}\n ds_read_b128 v[32:35], v46 offset:{self.SCR}\n ds_read_b128 v[36:39], v46 offset:{self.SCR+16}")
        a(f"s_lshl_b32 s{sT2}, s{sORD}, 1\n s_add_u32 s{sT1}, s{sT1}, s{sT2}\n v_lshl_add_u32 v43, v42, 8, v43\n s_waitcnt lgkmcnt(0)")
        for i in range(4): a(f"v_fma_f32 v{48+i}, -v{32+2*i}, v{196+i}, v{52+i}")
        for i in range(4): a(f"v_mul_f32 v{48+i}, v{48+i}, v{33+2*i}")
        a(f"""
    v_cvt_pk_bf16_f32 v52, v48, v49
    v_cvt_pk_bf16_f32 v53, v50, v51
    v_mov_b32 v57, 0
    buffer_store_dwordx2 v[52:53], v43, {WS}, s{sT1} offen offset:1024 sc1""")
        a.label(Lp)
        a(f"""
    v_mov_b32 v56, s{sTAG}
    v_mov_b32 v58, s{sXCC}
    v_mov_b32 v59, s{sTAG}
    s_lshl_b32 s{sT0}, s{sGRP}, 3
    s_add_u32 s{sT0}, s{sT0}, s{sMEM}
    s_lshl_b32 s{sT0}, s{sT0}, 7
    s_add_u32 s{sT0}, s{sT0}, {KFLAG:#x}
    s_waitcnt vmcnt(0)
    s_mov_b64 exec, 1
    buffer_store_dwordx4 v[56:59], v7, {WS}, s{sT0} offen sc1
    s_mov_b64 exec, -1""")
        a.label(L)
        H.ts("q")
        a("s_setprio 0")
        H.bar()
        self.prep_setup(H, 200, HI)
        a(f"v_lshlrev_b32 v{self.TA}, 7, v{vLANE}\n v_and_b32 v46, 0xfff, v{self.TA}\n s_lshr_b32 s{sRND}, s{sGRP}, 2")
        L = H.lab("nopoll")
        a(f"s_cmp_lg_u32 s{sW}, 0\n s_cbranch_scc1 {L}")
        self.kpoll(46, True)
        a(f"s_lshl_b32 s{sW4}, s{sRND}, 14\n s_add_u32 s{sW4}, s{sW4}, {KV:#x}")
        for i in range(4):
            a(f"s_mov_b32 m0, {4096*i}\n s_nop 0")
            for k in range(4): a(f"buffer_load_dwordx4 v{vL16}, {WS}, s{sW4} offen offset:{1024*k} sc1 lds")
            a(f"s_add_u32 s{sW4}, s{sW4}, 4096")
        a(f"""
    s_and_b32 s{sT0}, s{sGRP}, 3
    s_lshl_b32 s{sT0}, s{sT0}, 3
    s_lshl_b32 s{sT0}, 0xff, s{sT0}
    v_cmp_ne_u32 vcc, s{sXCC}, v50
    s_and_b32 s{sT0}, s{sT0}, vcc_lo
    s_cselect_b64 s[{sSLOW}:{sSLOW+1}], -1, 0""")
        for r in (8, 4, 2, 1): a(f"v_max_f32_dpp v49, v49, v49 row_ror:{r} row_mask:0xf bank_mask:0xf")
        a(f"""
    v_mov_b32 v50, v49
    v_permlane16_swap_b32 v49, v50
    v_max_f32 v49, v49, v50
    v_sqrt_f32 v49, v49
    v_mov_b32 v51, s{sSLOW}
    v_mul_f32 v50, -1.0, v49
    v_mov_b32 v46, {self.SCR + 512}
    ds_write_b64 v46, v[50:51]
    s_waitcnt lgkmcnt(0)""")
        a.label(L)
        a(f"s_add_u32 s{sRND}, s{sRND}, 1\n s_and_b32 s{sRND}, s{sRND}, 7")
        self.nkv = 1
        H.ts("q")
        H.bar()
        a(f"v_mov_b32 v46, {self.SCR + 512}\n ds_read_b64 v[50:51], v46\n s_waitcnt lgkmcnt(0)\n v_readfirstlane_b32 s{sSLOW}, v51\n s_mov_b32 s{sSLOW+1}, s{sSLOW}")
        self.sync_check()
    TA = 18
    def kpoll(self, va, first=False):
        H = self.H; a = H.a; L = H.lab("kp")
        a(f"s_lshl_b32 s{sT0}, s{sRND}, 12\n s_add_u32 s{sT0}, s{sT0}, {KFLAG:#x}\n s_mov_b32 s{sCNT}, 0")
        a.label(L)
        a(f"""
    buffer_load_dwordx4 v[48:51], v{va}, {WS}, s{sT0} offen sc1
    s_add_u32 s{sCNT}, s{sCNT}, 1
    s_cmp_gt_u32 s{sCNT}, {SPIN}
    s_cbranch_scc1 main_exit
    s_waitcnt vmcnt(0)
    v_cmp_ne_u32 vcc, s{sTAG}, v48
    v_cmp_ne_u32 s[36:37], s{sTAG}, v51
    s_or_b64 vcc, vcc, s[36:37]
    s_cbranch_vccnz {L}""")
    nkv = 0
    def kv(self, n):
        H = self.H
        for r in range(n):
            H.a(f"""
    s_lshl_b32 s{sW4}, s{sRND}, 14
    s_lshl_b32 s{sPL}, s{sW}, 12
    s_add_u32 s{sW4}, s{sW4}, s{sPL}
    s_add_u32 s{sW4}, s{sW4}, {KV:#x}
    s_add_u32 m0, s{sPL}, {16384*self.nkv}
    s_add_u32 s{sRND}, s{sRND}, 1
    s_and_b32 s{sRND}, s{sRND}, 7""")
            self.nkv += 1
            for i in range(4): self.kvseq = H.vm(f"buffer_load_dwordx4 v{vL16}, {WS}, s{sW4} offen offset:{1024*i} sc1 lds")

    PV = 20
    def prep_setup(self, S, v, win=20480):
        a = S.a
        T0, T1, T2, T3 = sT0, sT1, sT2, sT3
        def dst(i, base): a(f"s_lshl_b32 s{sPD+i}, s{T2}, 10\n s_lshl_b32 s{T3}, s{sW}, 8\n s_add_u32 s{sPD+i}, s{sPD+i}, s{T3}\n s_add_u32 s{sPD+i}, s{sPD+i}, {base:#x}")
        def std(q, i, base, rows=True):
            a(f"""
    s_lshr_b32 s{T1}, s{q}, 3
    s_and_b32 s{T2}, s{q}, 7
    s_lshl_b32 s{sPS+i}, s{T1}, 15
    s_lshl_b32 s{T3}, s{T2}, 7
    s_add_u32 s{sPS+i}, s{sPS+i}, s{T3}""")
            if rows: a(f"s_lshl_b32 s{T3}, s{sW}, 13\n s_add_u32 s{sPS+i}, s{sPS+i}, s{T3}")
            if base is not None:
                a(f"s_lshl_b32 s{T2}, s{T2}, 6\n s_add_u32 s{T2}, s{T2}, s{T1}"); dst(i, base)
        def w4t(q, i, vd):
            std(q, i, None)
            a(f"""
    s_mul_i32 s{T2}, s{T2}, 56
    s_add_u32 s{T2}, s{T2}, s{T1}
    s_lshl_b32 s{T2}, s{T2}, 2
    s_mul_i32 s{T1}, s{T1}, 9363
    s_lshr_b32 s{T1}, s{T1}, 16
    v_subrev_u32 v{vd}, s{T1}, v{v+9}
    v_and_b32 v{vd}, 3, v{vd}
    v_lshl_add_u32 v{vd}, v{vd}, 10, v{v+10}""")
            dst(i, W4)
        def w3t(q, i):
            a(f"""
    s_mul_i32 s{T1}, s{q}, 2341
    s_lshr_b32 s{T1}, s{T1}, 16                   ; ks = q/28
    s_mul_i32 s{T2}, s{T1}, 28
    s_sub_u32 s{T2}, s{q}, s{T2}                  ; nb
    s_lshl_b32 s{T3}, s{T1}, 2
    s_add_u32 s{T3}, s{T3}, s{sW}
    s_mul_i32 s{sPS+i}, s{T3}, {8*3584}
    s_lshl_b32 s{T3}, s{T2}, 7
    s_add_u32 s{sPS+i}, s{sPS+i}, s{T3}
    s_lshl_b32 s{T2}, s{T2}, 6
    s_add_u32 s{T2}, s{T2}, s{T1}""")
            dst(i, W3)
        a(f"""
    v_lshrrev_b32 v{v+9}, 4, v{vLANE}             ; q
    v_and_b32 v{v+10}, 0xff, v{vL16}              ; i*16
    v_lshl_add_u32 v{v+4}, v{v+9}, 14, v{v+10}
    v_lshrrev_b32 v{v+7}, 3, v{vLANE}
    v_and_b32 v{v+8}, 0x7f, v{vL16}
    v_lshl_add_u32 v{v}, v{v+7}, 10, v{v+8}
    v_mul_u32_u24 v{v+1}, 3584, v{v+7}
    v_add_u32 v{v+1}, v{v+1}, v{v+8}""")
        w3t(2, 0); w4t(2, 1, v+5)
        L, Le = S.lab("pwo"), S.lab("pend")
        a(f"s_cmp_ge_u32 s2, 192\n s_cbranch_scc1 {L}\n s_add_u32 s{T0}, s2, 256")
        w3t(T0, 2); w4t(T0, 3, v+6)
        a(f"v_mov_b32 v{v+2}, v{v+1}\n v_mov_b32 v{v+3}, v{v}\n s_branch {Le}")
        a.label(L)
        a(f"s_sub_u32 s{T0}, s2, 192"); std(T0, 2, WO, rows=False)
        a(f"s_sub_u32 s{T0}, s2, 128"); std(T0, 3, WO, rows=False)
        a(f"""
    s_lshr_b32 s{T1}, s{sW}, 1
    s_lshl_b32 s{T1}, s{T1}, 4
    s_and_b32 s{T2}, s{sW}, 1
    s_lshl_b32 s{T2}, s{T2}, 2
    s_add_u32 s{T1}, s{T1}, s{T2}
    v_and_b32 v{v+2}, 4, v{v+7}
    v_add3_u32 v{v+2}, v{v+2}, v{v+7}, s{T1}
    v_lshl_add_u32 v{v+2}, v{v+2}, 10, v{v+8}
    v_mov_b32 v{v+3}, v{v+2}
    v_mov_b32 v{v+6}, v{v+4}""")
        a.label(Le)
        a(f"s_and_b32 s{T0}, s2, 127"); std(T0, 4, W1)
        a(f"""
    s_lshr_b32 s{T0}, s2, 7
    s_lshl_b32 s{T0}, s{T0}, 19
    s_add_u32 s{sPD+4}, s{sPD+4}, s{T0}
    s_mul_i32 s{T0}, s{sW}, 5120
    s_add_u32 s{T0}, s{T0}, {win}
    v_add_u32 v{v+7}, s{T0}, v{vL16}
    v_bfe_u32 v{v+8}, v{vLANE}, 2, 2
    v_lshlrev_b32 v{v+8}, 7, v{v+8}
    v_lshl_add_u32 v{v+8}, v{v+9}, 5, v{v+8}
    v_and_b32 v{v+9}, 3, v{vLANE}
    v_lshl_add_u32 v{v+8}, v{v+9}, 3, v{v+8}
    v_add_u32 v{v+8}, s{T0}, v{v+8}""")
    def prep_load(self, S, v, dst):
        a = S.a
        PR = f"s[{sPR}:{sPR+3}]"
        wo, w1, w2, w3, w4 = (f"s[{sPP+2*i}:{sPP+2*i+1}]" for i in range(5))
        big, small = 0x1c0000, 0x80000
        for i in range(5):
            if i < 2: a(f"s_mov_b64 s[{sPR}:{sPR+1}], {(w3, w4)[i]}\n s_mov_b32 s{sPR+2}, {big:#x}")
            elif i < 4:
                a(f"s_mov_b32 s{sT1}, {small:#x}\n s_cmp_ge_u32 s2, 192\n s_cselect_b64 s[{sPR}:{sPR+1}], {wo}, {(w3, w4)[i-2]}\n s_cselect_b32 s{sPR+2}, s{sT1}, {big:#x}")
            else: a(f"s_cmp_ge_u32 s2, 128\n s_cselect_b64 s[{sPR}:{sPR+1}], {w2}, {w1}\n s_mov_b32 s{sPR+2}, {small:#x}")
            a(f"s_and_b32 s{sPR+1}, s{sPR+1}, 0xffff")
            S.vm(f"buffer_load_dwordx4 {vr(dst+4*i)}, v{(v+1, v, v+2, v+3, v)[i]}, {PR}, s{sPS+i} offen")
    def prep_finish(self, S, v, d):
        for i in range(5):
            S.a(f"ds_read_b64_tr_b16 {P(d+4*i)}, v{v+8} offset:{1024*i}\n ds_read_b64_tr_b16 {P(d+4*i+2)}, v{v+8} offset:{1024*i+512}")
    def prep_store(self, S, v, d):
        S.a("s_waitcnt lgkmcnt(0)")
        for i in range(5): r = S.vm(f"buffer_store_dwordx4 {vr(d+4*i)}, v{(v+4, v+5, v+4, v+6, v+4)[i]}, {WS}, s{sPD+i} offen sc1")
        return r

    hXT, hACC, hBP = 8, 16, 32
    hRES, hSTAT, hCS1, hR1, hTMP, hCS3, hX = 64, 80, 96, 100, 104, 112, 120
    UB = tuple(int(x) for x in os.environ.get('UB', '28,72,86,98,104').split(','))
    UBK = int(os.environ.get('UBK', '12'))
    def attention(self):
        C, H = self.C, self.H; a = C.a
        S0, S1, NEGM, OA, OB, QA, QB, vIDX, vKA, vVA = self.S0, self.S1, self.NEGM, self.OA, self.OB, self.QA, self.QB, self.vIDX, self.vKA, self.vVA
        kf = lambda t: self.KVR + 12*(t & 1)
        C.ts("at"); C.bar(); C.ts("at")
        a("s_setprio 1")
        def rdK(t): a(f"ds_read_b128 {vr(kf(t))}, v{vKA} offset:{(t&31)*2048}")
        def rdV(t):
            a(f"s_mov_b64 exec, {sVM}")
            a(f"ds_read_b128 {vr(kf(t)+4)}, v{vVA} offset:{(t&31)*2048+1024}")
            a(f"ds_read_b128 {vr(kf(t)+8)}, v{vVA} offset:{(t&31)*2048+1536}")
            a("s_mov_b64 exec, -1")
        def qk(u): a(f"v_mfma_f32_32x32x16_bf16 {vr((S0,S1)[u&1],16)}, {vr(kf(u>>1))}, {vr((QA,QB)[u&1])}, {vr(NEGM,16)}")
        def pv(u, h): a(f"v_smfmac_f32_32x32x32_bf16 {vr((OA,OB)[u&1],16)}, {vr(kf(u>>1)+4+4*h)}, {vr((S0,S1)[u&1]+8*h,8)}, v{vIDX}")
        def ex(u, lo, hi):
            for i in range(lo, hi): a(f"v_exp_f32 v{(S0,S1)[u&1]+i}, v{(S0,S1)[u&1]+i}")
        x = self.cT
        a(f"s_lshl_b32 s{sT0}, s{sW}, 13\n s_add_u32 s{sT0}, s{sT0}, {HI}\n v_add_u32 v{x}, s{sT0}, v{vL16}\n s_lshl_b32 s{sT0}, s{sW}, 14\n v_add_u32 v{x+1}, s{sT0}, v{vL16}")
        plan = {}
        for ub, f0, n, va in ((self.UB[1], 0, 8, x), (self.UB[2], 8, 16, x+1), (self.UB[3], 24, 8, x)):
            for i in range(n): plan.setdefault(ub + 1 + 2*(i // 4), []).append(f"ds_read_b128 {vr(128+4*(f0+i))}, v{va} offset:{1024*i}")
        rdK(0); rdV(0); rdK(1)
        a("s_waitcnt lgkmcnt(3)")
        qk(0)
        for u in range(128):
            t, q = u >> 1, u & 1
            if u % 8 == 0: C.ts("at")
            ex(u, 0, 2)
            if u > 0: pv(u-1, 1)
            ex(u, 2, 5)
            if u + 1 < 128: qk(u+1)
            if u in self.UB or u == self.UBK: C.bar()
            if q == 0:
                if t + 1 < 64:
                    if t + 1 == 32: a(f"v_add_u32 v{vVA}, 0x10000, v{vVA}")
                    rdV(t+1)
                if t + 2 < 64:
                    if t + 2 == 32: a(f"v_add_u32 v{vKA}, 0x10000, v{vKA}")
                    rdK(t+2)
            for y in plan.pop(u, []): a(y)
            ex(u, 5, 10)
            if q == 0: a(f"s_waitcnt lgkmcnt({3 if t + 2 < 64 else (2 if t + 1 < 64 else 0)})")
            pv(u, 0)
            ex(u, 10, 16)
        assert not plan
        pv(127, 1)
        C.ts(); C.ts("at")
        t = self.cT
        a(f"""
    v_lshrrev_b32 v{t+1}, 5, v{vLANE}
    v_lshlrev_b32 v{t+1}, 10, v{t+1}
    v_and_b32 v{t+2}, 31, v{vLANE}
    v_lshl_add_u32 v{t+4}, v{t+2}, 4, v{t+1}""")
        C.tile_soff(sT1, O_)
        a(f"v_min_f32 v{t}, v{OA+8}, v{OB+8}\n v_max_f32 v{t+1}, v{OA+8}, v{OB+8}\n v_cmp_nle_f32 vcc, {f32(2.0**-80)}, v{t}\n s_mov_b32 s{sT2}, vcc_lo\n v_cmp_nge_f32 vcc, {f32(2.0**80)}, v{t+1}\n s_or_b32 s{sT2}, s{sT2}, vcc_lo\n s_cbranch_scc1 attn_redo")
        a.label("attn_done")
        a(f"v_mov_b32 v{OA+9}, v{OA+8}\n v_mov_b32 v{OB+9}, v{OB+8}\n v_permlane32_swap_b32 v{OA+8}, v{OA+9}\n v_permlane32_swap_b32 v{OB+8}, v{OB+9}")
        a(f"v_rcp_f32 v{t+2}, v{OA+8}\n v_rcp_f32 v{t+6}, v{OB+8}")
        for o, r in ((OA, t+2), (OB, t+6)):
            for i in range(4): a(f"v_pk_mul_f32 {P(o+2*i)}, {P(o+2*i)}, {P(r)} op_sel_hi:[1,0]")
            for i in range(4): a(f"v_cvt_pk_bf16_f32 v{o+i}, v{o+2*i}, v{o+2*i+1}")
        C.setvcc()
        C.cstore([f"buffer_store_dwordx4 {vr(OA)}, v{t+4}, {WS}, s{sT1} offen", f"buffer_store_dwordx4 {vr(OB)}, v{t+4}, {WS}, s{sT1} offen offset:512"])
        a("s_setprio 0")
        C.set_act(O_)
        a(f"v_and_b32 v{self.cF}, 31, v{vLANE}\n v_lshlrev_b32 v{self.cF}, 2, v{self.cF}")
        C.flag(0, t)
        C.ts()
        a = H.a; v = self.PV; d = v + 8
        CW = v + 7
        a(f"v_mov_b32 v{CW}, {HI + 32752}\n v_mov_b32 v6, 0\n ds_write_b64 v{CW}, v[6:7]\n ds_write_b32 v{CW}, v6 offset:8\n s_waitcnt lgkmcnt(0)")
        a("s_waitcnt vmcnt(0)"); H.bar()
        TA, TD = self.TA, 19
        def spin(n, off=0):
            L = H.lab("hs")
            a(f"s_mov_b32 s{sCNT}, 0")
            a.label(L)
            a(f"""
    s_sleep 1
    ds_read_b32 v6, v{CW} offset:{off}
    s_add_u32 s{sCNT}, s{sCNT}, 1
    s_cmp_gt_u32 s{sCNT}, {SPIN*16}
    s_cbranch_scc1 main_exit
    s_waitcnt lgkmcnt(0)
    v_cmp_gt_u32 vcc, {n}, v6
    s_cbranch_vccnz {L}""")
        def count(off=0): a(f"v_mov_b32 v6, 1\n s_mov_b64 exec, 1\n ds_add_u32 v{CW}, v6 offset:{off}\n s_mov_b64 exec, -1")
        def pub():
            L = H.lab("nopf")
            a(f"s_cmp_lg_u32 s{sW}, 3\n s_cbranch_scc1 {L}")
            a(f"""
    s_lshl_b32 s{sT0}, s2, 7
    s_add_u32 s{sT0}, s{sT0}, {PFLAG:#x}
    v_mov_b32 v6, 1
    s_mov_b64 exec, 1
    buffer_store_dword v6, v7, {WS}, s{sT0} offen sc1
    s_mov_b64 exec, -1""")
            a.label(L)
        def kall():
            L = H.lab("kall")
            a(f"s_mov_b32 s{sCNT}, 0\n s_lshl_b32 s{sT0}, s{sW}, 13\n s_add_u32 s{sT0}, s{sT0}, {KFLAG:#x}")
            a.label(L)
            a(f"""
    buffer_load_dword v48, v{TA}, {WS}, s{sT0} offen sc1
    s_add_u32 s{sCNT}, s{sCNT}, 1
    s_cmp_gt_u32 s{sCNT}, {SPIN}
    s_cbranch_scc1 main_exit
    s_waitcnt vmcnt(0)
    v_cmp_ne_u32 vcc, s{sTAG}, v48
    s_mov_b64 exec, vcc
    s_cbranch_vccnz {L}
    s_mov_b64 exec, -1""")
            count(8); spin(4, 8)
        a(f"v_and_b32 v46, 0xfff, v{TA}")
        self.prep_finish(H, 200, 224)
        self.kpoll(46); self.kv(1); k1 = self.kvseq
        self.prep_store(H, 200, 224)
        H.wait_vm(k1); H.bar()
        kall(); pub()
        self.kv(6)
        H.wait_vm(self.kvseq); H.ts("h"); H.bar()
        def code_touch():
            L = H.lab("pc")
            a(f"s_getpc_b64 s[36:37]")
            a.label(L)
            a(f"""
    s_sub_u32 s36, s36, {L}-main_kernel
    s_subb_u32 s37, s37, 0
    s_and_b32 s{sT1}, s{sGRP}, 3
    s_lshl_b32 s{sT1}, s{sT1}, 5
    s_add_u32 s{sT1}, s{sT1}, s{sNT}
    s_lshl_b32 s{sT1}, s{sT1}, 9
    v_and_b32 v{v+2}, 0x1ff, v{TA}
    v_add_u32 v{v+2}, s{sT1}, v{v+2}
    v_min_u32 v{v+2}, main_end-main_kernel-4, v{v+2}""")
            H.vm(f"global_load_dword v{TD}, v{v+2}, s[36:37]")
        def arena_touch():
            if self.opt.get("usc1"):
                a(f"""
    s_lshl_b32 s{sTCH}, s{sNT}, 12
    s_lshl_b32 s{sT1}, s{sNT}, 8
    s_sub_u32 s{sT1}, s{sT1}, s{sTCH}
    s_add_u32 s{sT1}, s{sT1}, {ST1 - 4096}
    s_add_u32 s{sTCH}, s{sTCH}, s{sAR}
    v_mov_b32 v6, v{TA}
    s_mov_b32 exec_lo, 0
    v_add_u32 v6, s{sT1}, v6
    s_mov_b32 exec_lo, -1
    s_mov_b32 exec_hi, 3""")
                H.vm(f"buffer_load_dword v{TD}, v6, {WS}, s{sTCH} offen")
                a("s_mov_b64 exec, -1")
                return
            a(f"s_mul_i32 s{sTCH}, s{sNT}, {TOUCHN*128}\n s_add_u32 s{sTCH}, s{sTCH}, s{sAR}\n s_add_u32 s{sTCH}, s{sTCH}, {TOUCH0:#x}")
            H.vm(f"buffer_load_dword v{TD}, v{TA}, {WS}, s{sTCH} offen")
            a(f"s_mov_b32 exec_lo, 0x7ff\n s_mov_b32 exec_hi, 0\n s_add_u32 s{sTCH}, s{sTCH}, 8192")
            H.vm(f"buffer_load_dword v{TD}, v{TA}, {WS}, s{sTCH} offen")
            a("s_mov_b64 exec, -1")
        hi = f"s_lshl_b32 s{sPL}, s{sW}, 13\n s_add_u32 s{sPL}, s{sPL}, {HI}"
        lo = f"s_lshl_b32 s{sPL}, s{sW}, 14"
        F = lambda *x, **k: H.run(H.frags(*x, **k))
        code_touch()
        AP = self.opt.get("ap", "none")
        if AP == "pre": arena_touch()
        L0 = H.lab("pchk")
        a(f"s_lshl_b32 s{sPS}, s{sW}, 13\n s_add_u32 s{sPS}, s{sPS}, {PFLAG:#x}\n s_mov_b32 s{sCNT}, 0")
        a.label(L0)
        a(f"""
    buffer_load_dword v{d}, v{TA}, {WS}, s{sPS} offen sc1
    s_add_u32 s{sCNT}, s{sCNT}, 1
    s_cmp_gt_u32 s{sCNT}, {SPIN}
    s_cbranch_scc1 main_exit
    s_waitcnt vmcnt(0)
    v_cmp_ne_u32 vcc, 1, v{d}
    s_mov_b64 exec, vcc
    s_sleep 2
    s_cbranch_vccnz {L0}
    s_mov_b64 exec, -1""")
        count(4); spin(4, 4); count(4)
        L = H.lab("notag")
        a(f"""
    s_or_b32 s{sT0}, s2, s{sW}
    s_cmp_lg_u32 s{sT0}, 0
    s_cbranch_scc1 {L}
    v_mov_b32 v6, s{sTAG}
    s_mov_b32 s{sT0}, {TAGW:#x}
    s_mov_b64 exec, 1
    buffer_store_dword v6, v7, {WS}, s{sT0} offen sc1
    s_mov_b64 exec, -1""")
        a.label(L)
        H.ts("h")
        for base, reg in ((WO, 64), (W1, 128), (W2, 192)):
            H.set_wbase(base, 16, sW4); F(16, sW4, dst=V(reg))
        L = H.lab("ack")
        a(f"s_cmp_lg_u32 s{sW}, 3\n s_cbranch_scc1 {L}")
        spin(8, 4)
        a.label(L)
        H.set_w3(0); a(hi)
        F(8, sPF, lds=sPL); r1 = H.lastf
        code_touch()
        H.xo_soff(sT1)
        for jt in range(4):
            H.vm(f"buffer_load_dwordx2 {P(self.hXT+2*jt)}, v{vXO}, {XS}, s{sT1} offen")
            if jt < 3: a(f"s_add_u32 s{sT1}, s{sT1}, 16384")
        a(f"s_and_b32 s{sT1}, s{sGRP}, 3\n s_mul_i32 s{sT1}, s{sT1}, 6144\n s_add_u32 s{sTCH}, s{sPF}, s{sT1}\n s_mov_b32 exec_hi, 0xffff")
        H.vm(f"buffer_load_dword v{TD}, v{TA}, {WS}, s{sTCH} offen")
        a("s_mov_b64 exec, -1")
        if AP == "mid": arena_touch()
        H.wait_vm(r1); H.ts("h"); H.bar()
        a(lo); F(16, sPF, lds=sPL); r2 = H.lastf
        code_touch()
        a(f"""
    s_and_b32 s{sT1}, s{sGRP}, 3
    s_lshl_b32 s{sTCH}, s{sT1}, 5
    s_add_u32 s{sTCH}, s{sTCH}, s{sNT}
    s_mul_i32 s{sTCH}, s{sTCH}, 14336
    s_add_u32 s{sTCH}, s{sTCH}, {W4:#x}""")
        H.vm(f"buffer_load_dword v{TD}, v{TA}, {WS}, s{sTCH} offen")
        H.wait_vm(r2); H.ts("h"); H.bar()
        a(hi); F(8, sPF, lds=sPL); r3 = H.lastf
        a(f"s_add_u32 s{sTCH}, s{sTCH}, 6144")
        H.vm(f"buffer_load_dword v{TD}, v{TA}, {WS}, s{sTCH} offen")
        H.wait_vm(r3); H.ts("h"); H.bar()
        H.bar()
        a(lo); F(16, sPF, lds=sPL)
        H.set_w3(3)
        a(f"s_lshl_b32 s{sT5}, s{sORD}, 5\n s_add_u32 s{sPF}, s{sPF}, s{sT5}"); a(hi)
        F(8, sPF, lds=sPL)
        arena_touch()
        code_touch()
        a("s_waitcnt vmcnt(0)")
        H.setvcc()
        H.tile_soff(sT4, H_)
        a("s_setprio 1")
        H.ts("h")
        self.sync_check()

    def fallback(self):
        C = self.C; a = C.a; t = self.cT
        S0, NEGM, KF, VF, vVA, vIDX = self.S0, self.NEGM, self.KVR, self.KVR+4, self.vVA, self.vIDX
        a.label("attn_redo")
        a(f"v_and_b32 v{vVA}, 0x3ff, v{vVA}")
        for (Q, O) in ((self.QA, self.OA), (self.QB, self.OB)):
            L1, L2 = C.lab("fb1"), C.lab("fb2")
            a(f"v_mov_b32 v{t}, 0xff800000\n s_mov_b32 s{sT2}, {KV:#x}")
            a.label(L1)
            a(f"""
    buffer_load_dwordx4 {vr(KF)}, v{vL16}, {WS}, s{sT2} offen sc1
    s_add_u32 s{sT2}, s{sT2}, 2048
    s_waitcnt vmcnt(0)
    v_mfma_f32_32x32x16_bf16 {vr(S0,16)}, {vr(KF)}, {vr(Q)}, 0""")
            for i in range(8): a(f"v_max3_f32 v{t}, v{t}, v{S0+2*i}, v{S0+2*i+1}")
            a(f"""
    s_cmp_lt_u32 s{sT2}, {KV+131072:#x}
    s_cbranch_scc1 {L1}
    v_mov_b32 v{t+1}, v{t}
    v_permlane32_swap_b32 v{t}, v{t+1}
    v_max_f32 v{t}, v{t}, v{t+1}
    v_sub_f32 v{t}, 0, v{t}""")
            for i in range(16): a(f"v_mov_b32 v{NEGM+i}, v{t}")
            for i in range(16): a(f"v_mov_b32 v{O+i}, 0")
            a(f"s_mov_b32 s{sT2}, {KV:#x}")
            a.label(L2)
            a(f"""
    buffer_load_dwordx4 {vr(KF)}, v{vL16}, {WS}, s{sT2} offen sc1
    s_mov_b64 exec, {sVM}
    buffer_load_dwordx4 {vr(VF)}, v{vVA}, {WS}, s{sT2} offen offset:1024 sc1
    buffer_load_dwordx4 {vr(VF+4)}, v{vVA}, {WS}, s{sT2} offen offset:1536 sc1
    s_mov_b64 exec, -1
    s_add_u32 s{sT2}, s{sT2}, 2048
    s_waitcnt vmcnt(0)
    v_mfma_f32_32x32x16_bf16 {vr(S0,16)}, {vr(KF)}, {vr(Q)}, {vr(NEGM,16)}""")
            for i in range(16): a(f"v_exp_f32 v{S0+i}, v{S0+i}")
            a(f"""
    v_smfmac_f32_32x32x32_bf16 {vr(O,16)}, {vr(VF)}, {vr(S0,8)}, v{vIDX}
    v_smfmac_f32_32x32x32_bf16 {vr(O,16)}, {vr(VF+4)}, {vr(S0+8,8)}, v{vIDX}
    s_nop 15
    s_cmp_lt_u32 s{sT2}, {KV+131072:#x}
    s_cbranch_scc1 {L2}""")
        a("s_nop 15\n s_branch attn_done")

    cF, cP = 120, 122
    cACC, cBP, cSTAT, cCS3, cTMP, cOUT = 16, 48, 80, 96, 104, 112
    def prod_stats(self, vals):
        H = self.H; a = H.a; t = self.hTMP; x = self.hBP
        for jt in range(4): a(f"v_pk_add_f32 {P(x+2*jt)}, {P(vals+4*jt)}, {P(vals+4*jt+2)}")
        for jt in range(4): a(f"v_pk_mul_f32 {P(x+8+2*jt)}, {P(vals+4*jt)}, {P(vals+4*jt)}")
        for jt in range(4): a(f"v_pk_fma_f32 {P(x+8+2*jt)}, {P(vals+4*jt+2)}, {P(vals+4*jt+2)}, {P(x+8+2*jt)}")
        for jt in range(8): a(f"v_add_f32 v{t+jt}, v{x+2*jt}, v{x+2*jt+1}")
        a(f"""
    s_lshl_b32 s{sT5}, s{sW}, 10
    s_add_u32 s{sT5}, s{sT5}, {XST}
    v_permlane32_swap_b32 v{t}, v{t+2}
    v_permlane32_swap_b32 v{t+1}, v{t+3}
    v_permlane32_swap_b32 v{t+4}, v{t+6}
    v_permlane32_swap_b32 v{t+5}, v{t+7}
    v_pk_add_f32 {P(t)}, {P(t)}, {P(t+2)}
    v_pk_add_f32 {P(t+4)}, {P(t+4)}, {P(t+6)}
    v_lshl_add_u32 v{x}, v{vLANE}, 3, s{sT5}
    v_permlane16_swap_b32 v{t}, v{t+1}
    v_permlane16_swap_b32 v{t+4}, v{t+5}
    v_add_f32 v{t}, v{t}, v{t+1}
    v_add_f32 v{t+1}, v{t+4}, v{t+5}
    ds_write_b64 v{x}, {P(t)}""")
    def stat_publish(self, base):
        C = self.C; a = C.a; t = self.cTMP; x = self.cT
        a(f"""
    v_lshlrev_b32 v{x}, 3, v{vLANE}
    v_add_u32 v{x}, {XST}, v{x}
    s_lshl_b32 s{sT2}, s{sMEM}, 3
    s_add_u32 s{sT2}, s{sT2}, s{sAR}
    s_add_u32 s{sT2}, s{sT2}, {base:#x}
    v_lshlrev_b32 v{x+1}, 6, v{vLANE}
    s_lshl_b32 s{sT5}, s{sW}, 4
    s_lshl_b64 s[36:37], 0xffff, s{sT5}""")
        C.bar()
        for p in range(4): a(f"ds_read_b64 {P(t+2*p)}, v{x} offset:{1024*p}")
        def fin():
            a(f"""
    s_waitcnt lgkmcnt(0)
    v_pk_add_f32 {P(t)}, {P(t)}, {P(t+2)}
    v_pk_add_f32 {P(t+4)}, {P(t+4)}, {P(t+6)}
    v_pk_add_f32 {P(t)}, {P(t)}, {P(t+4)}
    s_mov_b64 exec, s[36:37]""")
            C.cstore([f"buffer_store_dwordx2 {P(t)}, v{x+1}, {WS}, s{sT2} offen"], nt=False)
            a("s_mov_b64 exec, -1")
        self.pubfin = fin
    def cons_stats(self, gbase, scr, double):
        C = self.C; a = C.a; x = self.cT; o = self.cSTAT; S = o + 8
        st = {}
        ltxt = f"buffer_load_dwordx4 {vr(o)}, v{x+1}, {WS}, s{sT1} offen sc1"
        def load():
            a(f"""
    s_lshl_b32 s{sT1}, s{sW}, 10
    s_add_u32 s{sT1}, s{sT1}, s{sAR}
    s_add_u32 s{sT1}, s{sT1}, {gbase:#x}
    v_and_b32 v{x+3}, 0xff, v{vL16}
    v_and_b32 v{x+1}, 0x30, v{vLANE}
    v_lshl_add_u32 v{x+1}, v{x+3}, 2, v{x+1}
    s_lshl_b32 s{sT5}, s{sW}, 8
    s_add_u32 s{sT5}, s{sT5}, {scr}
    v_add_u32 v{x+2}, s{sT5}, v{x+3}""")
            st['g'] = C.vm(ltxt)
        def check():
            L0, Lr, L2 = C.lab("schk"), C.lab("sre"), C.lab("sok")
            C.wait_vm(st['g'])
            a.label(L0)
            a(f"v_max_u32 v{o+4}, v{o+1}, v{o+3}\n v_cmp_eq_u32 vcc, -1, v{o+4}\n s_cbranch_vccnz {Lr}")
            a.label(L2)
            C.ool.append((Lr, [f"s_add_u32 s{sCNT}, s{sCNT}, 1", f"s_cmp_gt_u32 s{sCNT}, {SPIN}", f"s_cbranch_scc1 {L2}",
                               ltxt, "s_waitcnt vmcnt(0)", f"s_branch {L0}"]))
            C.setvcc()
        txt = f"""
    v_add_f32 v{o}, v{o}, v{o+2}
    v_add_f32 v{o+1}, v{o+1}, v{o+3}
    v_permlane32_swap_b32 v{o}, v{o+1}
    v_add_f32 v{o}, v{o}, v{o+1}
    v_mov_b32 v{o+1}, v{o}
    v_permlane16_swap_b32 v{o}, v{o+1}
    v_add_f32 v{o}, v{o}, v{o+1}
    v_mul_f32 v{o}, 0x3b000000, v{o}
    v_mov_b32 v{o+1}, v{o}
    v_permlane32_swap_b32 v{o}, v{o+1}
    v_mov_b32 v{S}, v{o}
    v_fma_f32 v{o+1}, -v{o}, v{o}, v{o+1}
    v_max_f32 v{o+1}, 0, v{o+1}
    v_add_f32 v{o+2}, 0x3727c5ac, v{o+1}
    v_rsq_f32 v{o+3}, v{o+2}"""
        R = o+3
        if double:
            txt += f"""
    v_mul_f32 v{o+4}, v{o+3}, v{o+3}
    ds_write_b32 v{x+2}, v{o+3} offset:1024
    v_mul_f32 v{o+4}, v{o+4}, v{o+1}
    v_add_f32 v{o+4}, 0x3727c5ac, v{o+4}
    v_rsq_f32 v{o+4}, v{o+4}
    v_mul_f32 v{o+5}, v{o+3}, v{o+4}"""
            R = o+5
        txt += f"""
    v_rcp_f32 v{S+1}, v{R}
    v_mul_f32 v{S+2}, {f32(GC1)}, v{R}
    v_mul_f32 v{o+6}, v{R}, v{R}
    v_mul_f32 v{o+6}, {f32(0.044715)}, v{o+6}
    v_mul_f32 v{S+3}, v{S+2}, v{o+6}
    ds_write_b128 v{x+2}, {vr(S)}"""
        comp = [check]
        for y in txt.split("\n"):
            y = y.strip()
            if not y: continue
            if y.startswith("ds_"): comp.append(lambda y=y: setattr(C, 'wseq', C.ld(y)))
            else: comp.append(lambda y=y: a(y))
        return load, comp
    def tile_store(self, jt):
        return f"buffer_store_dwordx2 {P(self.hXT+2*jt)}, v{vD}, {WS}, s{sT4} offen offset:{256*jt}"
    def add_pack(self, jt, src):
        a = self.H.a; A_ = self.hACC
        for h in (0, 2): a(f"v_pk_add_f32 {P(A_+4*jt+h)}, {P(A_+4*jt+h)}, {P(src+h)}")
        for h in (0, 1): a(f"v_cvt_pk_bf16_f32 v{self.hXT+2*jt+h}, v{A_+4*jt+2*h}, v{A_+4*jt+2*h+1}")

    def s3(self):
        self.C.mark(); self.H.mark()
        C, H = self.C, self.H
        C.colsum(V(128), self.cCS3, self.cOUT)
        C.poll(0, self.cF, self.cP, mid=[lambda: C.colsum(V(192), self.cCS3+4, self.cOUT)]); C.ts()
        def w4ref():
            C.a(f"""
    v_lshlrev_b32 v118, 7, v{vLANE}
    s_and_b32 s{sTCH}, s{sGRP}, 3
    s_lshl_b32 s{sTCH}, s{sTCH}, 5
    s_add_u32 s{sTCH}, s{sTCH}, s{sNT}
    s_mul_i32 s{sTCH}, s{sTCH}, 14336
    s_add_u32 s{sTCH}, s{sTCH}, {W4:#x}""")
            C.vm(f"buffer_load_dword v119, v118, {WS}, s{sTCH} offen")
        def w4ref2():
            C.a(f"s_add_u32 s{sTCH}, s{sTCH}, 6144")
            C.vm(f"buffer_load_dword v119, v118, {WS}, s{sTCH} offen")
        C.load_gemm(C.act_issue(), side={3: [w4ref], 5: [w4ref2]} if self.opt.get('w4ref') else None, tag='s3')
        C.set_act(H_)
        self.stat_publish(ST1)
        H.cons_gemm(V(64), self.hACC, self.hBP, tag="s3"); H.ts()
        for i in range(8): H.unpack(self.hXT+i, self.hRES+2*i)
        for jt in range(4): self.add_pack(jt, self.hRES+4*jt)
        H.cstore([self.tile_store(jt) for jt in range(4)])
        self.prod_stats(self.hACC)
        for i in range(8): H.unpack(self.hXT+i, self.hRES+2*i)
        H.flag(1, 6); H.ts()
        H.a("s_waitcnt lgkmcnt(0)"); H.bar()
        self.sync_check()
    def s4(self):
        self.C.mark(); self.H.mark()
        C, H = self.C, self.H; a = H.a
        C.poll(1, self.cF, self.cP, mid=[self.pubfin]); C.ts()
        load, comp = self.cons_stats(ST1, ACT, True)
        C.load_gemm(C.act_issue(), side={-1: [load], 3: comp[:7], 4: comp[7:14], 5: comp[14:21], 6: comp[21:],
                                         (7, 'pre'): [lambda: C.wait_ld(C.wseq)]}, tag='s4')
        if self.opt.get('uref'):
            C.a(f"v_lshlrev_b32 v118, 7, v{vLANE}\n s_mul_i32 s{sTCH}, s{sNT}, {40*128}\n s_add_u32 s{sTCH}, s{sTCH}, s{sAR}\n s_add_u32 s{sTCH}, s{sTCH}, {U_ + 0x10000:#x}\n s_mov_b32 exec_hi, 0xff")
            C.vm(f"buffer_load_dword v119, v118, {WS}, s{sTCH} offen")
            C.a("s_mov_b64 exec, -1")
        H.colsum(V(128), self.hCS1, self.hX)
        H.tile_soff(sT4, T_)
        a(f"""
    v_lshrrev_b32 v6, 5, v{vLANE}
    v_lshlrev_b32 v6, 5, v6
    v_and_b32 v7, 0x1f, v{vD}
    v_add_u32 v{self.hX+4}, v6, v7                ; halo: (g>>1)*32 + (t&1)*16 + (g&1)*8
    s_lshl_b32 s{sT3}, s{sNT}, 6
    s_add_u32 s{sT3}, s{sT3}, s{sAR}
    v_and_b32 v7, 0xff, v{vL16}
    v_add_u32 v7, {ACT}, v7""")
        sr = H.stat_reads(self.hSTAT, 7, False, self.hR1)
        H.cons_gemm(V(128), self.hACC, self.hBP, side={6: sr[:4], 7: sr[4:]}, tag="s4"); H.ts()
        A_, XT, ST = self.hACC, self.hXT, self.hSTAT
        H.wait_ld(H.stseq)
        for x in H.gelu2((A_, self.hCS1, ST, XT), (A_+12, self.hCS1, ST+12, XT+6), self.hTMP, True): a(x)
        Lh, L1 = H.lab("nohalo"), H.lab("side1")
        a(f"""
    s_bitcmp1_b32 s{sMEM}, 1
    s_cbranch_scc1 {L1}
    s_cmp_eq_u32 s{sGRP}, 31
    s_cbranch_scc1 {Lh}
    s_add_u32 s{sT3}, s{sT3}, {HALO+GA:#x}
    s_mov_b32 exec_lo, 0xc000c000
    s_mov_b32 exec_hi, 0xc000c000
    buffer_store_dwordx2 {P(XT+6)}, v{self.hX+4}, {WS}, s{sT3} offen sc1
    s_branch {Lh}""")
        a.label(L1)
        a(f"""
    s_cmp_eq_u32 s{sGRP}, 0
    s_cbranch_scc1 {Lh}
    s_sub_u32 s{sT3}, s{sT3}, {GA-HALO:#x}
    s_mov_b32 exec_lo, 0x00030003
    s_mov_b32 exec_hi, 0x00030003
    buffer_store_dwordx2 {P(XT)}, v{self.hX+4}, {WS}, s{sT3} offen sc1""")
        a.label(Lh)
        a("s_mov_b64 exec, -1")
        H.cstore([self.tile_store(0), self.tile_store(3)])
        for x in H.gelu2((A_+4, self.hCS1, ST+4, XT+2), (A_+8, self.hCS1, ST+8, XT+4), self.hTMP, True): a(x)
        H.cstore([self.tile_store(1), self.tile_store(2)])
        H.flag(2, 6); H.ts()
        self.sync_check()
    def s5(self):
        self.C.mark(); self.H.mark()
        C, H = self.C, self.H; a = C.a; x = self.cT; T = self.cTMP
        C.set_act(T_)
        a(f"""
    s_lshl_b32 s{sT1}, s{sW}, 9
    s_add_u32 s{sT1}, s{sT1}, s{sAR}
    s_add_u32 s{sT1}, s{sT1}, {HALO:#x}
    v_and_b32 v{x+2}, 0x1ff, v{vL16}
    s_cmp_eq_u32 s{sW}, 0
    s_cselect_b32 s{sT3}, -16, 0
    s_cselect_b32 s{sT4}, 0xaaaaaaaa, -1
    s_cmp_eq_u32 s{sW}, 1
    s_cselect_b32 s{sT3}, {63*16}, s{sT3}
    s_cselect_b32 s{sT4}, 0x55555555, s{sT4}
    s_cmp_eq_u32 s{sW}, 3
    s_cselect_b32 s{sT3}, {62*16}, s{sT3}
    s_lshl_b32 s{sT2}, s{sW}, 14
    s_add_u32 s{sT3}, s{sT3}, s{sT2}
    s_add_u32 s{sT3}, s{sT3}, {ACT}
    v_lshrrev_b32 v{x+1}, 1, v{vLANE}
    v_lshlrev_b32 v{x+1}, 10, v{x+1}
    v_and_b32 v{x+3}, 1, v{vLANE}
    v_lshl_add_u32 v{x+1}, v{x+3}, 4, v{x+1}
    v_add_u32 v{x+1}, s{sT3}, v{x+1}
    s_lshl_b32 s{sPF}, s{sMEM}, 3
    s_add_u32 s{sPF}, s{sPF}, s{sW}
    s_mul_i32 s{sPF}, s{sPF}, {28*1024}
    s_add_u32 s{sPF}, s{sPF}, {W4 + 20*1024:#x}
    s_lshl_b32 s{sPL}, s{sW}, 13""")
        C.poll(2, self.cF, self.cP, mid=[]); C.ts()
        shifts = (1, -1, 2, -2)
        masks = ((0xfffffffe, 0xffffffff), (0xffffffff, 0x7fffffff), (0xfffffffc, 0xffffffff), (0xffffffff, 0x3fffffff))
        def pre(c):
            g = c >> 1
            if c & 1 == 0: a(f"s_add_i32 s{sG}, s{sG}, {-16*shifts[g] + (16*shifts[g-1] if g else 0)}")
            a(f"s_mov_b32 exec_lo, {masks[g][0]:#x}" if masks[g][0] != 0xffffffff else f"s_mov_b32 exec_hi, {masks[g][1]:#x}")
        hs = {}
        hload = f"buffer_load_dwordx4 {vr(T)}, v{x+2}, {WS}, s{sT1} offen sc1"
        stg = C.frags(8, sPF, lds=sPL) + C.E(f"s_add_u32 s{sPF}, s{sPF}, {4*28*1024 - 8192}\n s_add_u32 s{sPL}, s{sPL}, {32768 - 8192}") + C.frags(8, sPF, lds=sPL)
        C.load_gemm(C.act_issue(pre=pre, post=lambda c: a("s_mov_b64 exec, -1")),
                    side={2: [lambda: hs.__setitem__(0, C.vm(hload))], 3: stg[:2], 4: stg[2:4], 5: stg[4:6], 6: stg[6:10]}, tag='s5')
        L0, Lr, L2 = C.lab("hchk"), C.lab("hre"), C.lab("hok")
        C.wait_vm(hs[0])
        a.label(L0)
        a(f"v_max_u32 v{x}, v{T}, v{T+1}\n v_max3_u32 v{x}, v{x}, v{T+2}, v{T+3}\n v_cmp_eq_u32 vcc, -1, v{x}\n s_cbranch_vccnz {Lr}")
        a.label(L2)
        C.ool.append((Lr, [f"s_add_u32 s{sCNT}, s{sCNT}, 1", f"s_cmp_gt_u32 s{sCNT}, {SPIN}", f"s_cbranch_scc1 {L2}",
                           hload, "s_waitcnt vmcnt(0)", f"s_branch {L0}"]))
        C.setvcc()
        a(f"s_mov_b32 exec_lo, s{sT4}\n s_mov_b32 exec_hi, 0\n ds_write_b128 v{x+1}, {vr(T)}\n s_mov_b64 exec, -1\n s_waitcnt lgkmcnt(0)")
        C.bar()
        C.run(stg[10:14]); self.stg_rest = stg[14:]
        C.set_act(X1)
        self.stat_publish(ST3)
        a = H.a; ST, RES, R1 = self.hSTAT, self.hRES, self.hR1
        a(f"s_lshl_b32 s{sT1}, s{sW}, 14\n v_add_u32 v7, s{sT1}, v{vL16}")
        H.lds2reg(V(128), 16, 7)
        for jt in range(4):
            a(f"v_mul_f32 v6, v{ST+4*jt}, v{R1+jt}")
            for i in range(4): a(f"v_fma_f32 v{ST+4*jt+i}, v{RES+4*jt+i}, v{R1+jt}, -v6")
        H.tile_soff(sT4, X1)
        a("s_waitcnt lgkmcnt(0)")
        H.colsum(V(128), self.hCS3, self.hX)
        H.cons_gemm(V(192), self.hACC, self.hBP, defer=lambda ks: 3 if (ks >> 2) & 1 else 0, tag="s5"); H.ts()
        for jt in range(4): self.add_pack(jt, ST+4*jt)
        H.cstore([self.tile_store(jt) for jt in range(4)])
        self.prod_stats(self.hACC)
        for i in range(8): H.unpack(self.hXT+i, self.hACC+2*i)
        H.flag(3, 6)
        a("s_waitcnt lgkmcnt(0)"); H.bar()
        for i in range(8): a(f"v_pk_add_f32 {P(RES+2*i)}, {P(RES+2*i)}, {P(self.hACC+2*i)}")
        H.ts()
        self.sync_check()

    def capture(self, S, fn):
        keep = S.a.lines; S.a.lines = []
        fn()
        got = S.a.lines; S.a.lines = keep
        return [(lambda x=x: S.a(x)) for x in got]
    def s6(self):
        self.C.mark(); self.H.mark()
        C, H = self.C, self.H
        PK = bool(self.opt.get("s6pk"))
        for S in (C, H):
            isC = S is C; a = S.a
            vBa, vBb, vDa, vDb, vS = (124, 125, 126, 127, 14) if isC else (self.hCS1, self.hCS1+1, self.hCS1+2, self.hCS1+3, self.hR1)
            ACCS = [self.cACC + 4*i for i in range(8)] if isC else [self.hACC + 4*i for i in range(4)] + [self.hX, self.hX+4]
            BP = self.cBP if isC else self.hBP
            ST, CS, TMP, OUT = (self.cSTAT, self.cCS3, self.cTMP, self.cOUT) if isC else (self.hSTAT, self.hCS3, self.hTMP, self.hXT)
            W = (V(128), V(192))
            def setup():
                a(f"""
    v_xor_b32 v{vBa}, s{sORD}, v{vB}
    v_xor_b32 v{vBb}, 256, v{vBa}
    v_xor_b32 v{vDa}, s{sORD}, v{vD}
    v_xor_b32 v{vDb}, 256, v{vDa}
    v_and_b32 v{vS}, 0xff, v{vL16}
    v_add_u32 v{vS}, {HI}, v{vS}
    v_xor_b32 v{vS}, s{sORD}, v{vS}
    v_xor_b32 v{vS+1}, 256, v{vS}
    s_mul_i32 s{sU0}, s{sMEM}, {14*2048}
    s_add_u32 s{sU0}, s{sU0}, s{sAR}
    s_add_u32 s{sU0}, s{sU0}, {U_:#x}
    s_lshr_b32 s{sU1}, s{sW}, 1
    s_add_u32 s{sU1}, s{sU1}, 12
    s_lshl_b32 s{sU1}, s{sU1}, 11
    s_add_u32 s{sU1}, s{sU1}, s{sU0}
    s_mul_i32 s{sT3}, s{sW}, {3*2048}
    s_add_u32 s{sU0}, s{sU0}, s{sT3}
    s_lshl_b32 s{sW4}, s{sMEM}, 3
    s_add_u32 s{sW4}, s{sW4}, s{sW8}
    s_lshl_b32 s{sT3}, s{sW4}, 2
    v_mov_b32 v{vMYF}, s{sT3}
    s_mul_i32 s{sW4}, s{sW4}, {28*1024}
    s_add_u32 s{sW4}, s{sW4}, {W4:#x}
""")
                if isC: a(f"s_add_u32 s{sU1}, s{sU0}, 2048")
                else: a(f"s_add_u32 s{sU0}, s{sU0}, 4096")
            tilesA = [(j, n) for j in (0, 1) for n in ((0, 1) if isC or j == 0 else (0,))]
            tilesB = [(j, n) for j in (2, 3) for n in ((0, 1) if isC or j == 2 else (0,))]
            acc = {t: ACCS[i] for i, t in enumerate(tilesA + tilesB)}
            rs = {}
            slot = lambda s, j: BP + 16*(s & 1) + 4*j
            def rd(s, j): rs[(s, j)] = S.ld(f"ds_read_b128 {vr(slot(s, j))}, v{vBb if j & 1 else vBa} offset:{4096*s + 512*(j>>1)}")
            def mf(s, j, n): a(f"v_mfma_f32_16x16x32_bf16 {vr(acc[(j, n)])}, {W[n](s)}, {vr(slot(s, j))}, {'0' if s == 0 else vr(acc[(j, n)])}")
            wreg = lambda f: vr(128 + 4*(f >> 1) + 64*(f & 1))
            S.wreg = wreg
            w4 = S.frags(20, sW4, dst=wreg)
            stg = []
            sr = S.stat_reads(ST, vS, True)
            def ustore(j, n, r):
                return f"buffer_store_dwordx2 {P(r)}, v{vDb if j & 1 else vDa}, {WS}, s{(sU0, sU1)[n]} offen offset:{512*(j>>1)}"
            k2 = [0]
            def gel(ts_):
                o = OUT + 4*(k2[0] & 1); k2[0] += 1
                arg = [(acc[t], CS+4*t[1], ST+4*t[0], o+2*i) for i, t in enumerate(ts_)]
                z = S.gelu2(*arg, TMP, True) if len(ts_) == 2 else S.gelu(*arg[0], TMP, True)
                for y in z: a(y)
                if self.opt.get("usc1"):
                    for i, t in enumerate(ts_): S.vm(ustore(*t, o+2*i) + " sc1")
                else: S.cstore([ustore(*t, o+2*i) for i, t in enumerate(ts_)])
                return S.nvm - 1
            tiles = tilesA + tilesB
            if isC:
                S.poll(3, self.cF, self.cP, mid=[self.pubfin]); S.ts()
                load, comp = self.cons_stats(ST3, HI, False)
                issue = S.act_issue(); seqs = {}
                for c in range(3): seqs[c] = issue(c)
                load(); setup()
                S.wait_vm(seqs[0])
            else:
                a(f"s_and_b32 s{sT1}, s{sW}, 2\n s_lshl_b32 s{sT1}, s{sT1}, 13\n s_add_u32 s{sT1}, s{sT1}, {HI}\n v_add_u32 v7, s{sT1}, v{vL16}")
                S.lds2reg(V(192), 16, 7)
                setup()
                a("s_waitcnt lgkmcnt(0)")
                S.colsum(V(192), CS+4, self.hX)
                a("s_setprio 0")
            S.bar()
            for j in range(4): rd(0, j)
            BAR = {1: 1, 3: 3, 7: 7}
            nt = len(tiles)
            for s in range(16):
                items = []
                if isC:
                    if s == 0: items = [(lambda c=c: seqs.__setitem__(c, issue(c))) for c in (3, 4, 5)]
                    if s == 1: items = [(lambda c=c: seqs.__setitem__(c, issue(c))) for c in (6, 7)]
                    if s == 2: items = self.stg_rest + [lambda: seqs.__setitem__(7, S.lastf)]
                    items = items + {3: comp[:7], 4: comp[7:14], 5: comp[14:]}.get(s, [])
                if s == 8: items = items + sr
                if s == 13: items = S.E(f"s_lshl_b32 s{sT1}, s{sW8}, 13\n v_add_u32 v7, s{sT1}, v{vL16}")
                if s >= 14: items = [(lambda i=i: S.ld(f"ds_read_b128 {wreg(20+i)}, v7 offset:{1024*i}")) for i in range(4*(s-14), 4*(s-14)+4)]
                if 3 <= s < 13: items = [w4.pop(0)] + items[:len(items)//2] + [w4.pop(0)] + items[len(items)//2:]
                if s in BAR:
                    if isC:
                        S.wait_vm(seqs[BAR[s]])
                        if s == 7: S.wait_ld(S.wseq)
                    S.bar()
                for i, (j, n) in enumerate(tiles):
                    if n == 0: S.wait_ld(rs[(s, j)])
                    mf(s, j, n)
                    if n == 0 and s + 1 < 16: rd(s+1, j)
                    S.run(items[i*len(items)//nt:(i+1)*len(items)//nt])
                if s % 4 == 3: S.ts("s6")
            assert not w4
            vF8, vPp = (self.cF, self.cP) if isC else (vBa, self.hR1+2)
            S.f7 = (vF8, vPp)
            a(f"""
    s_setprio 1
    s_mul_i32 s{sB}, s{sW8}, {7*4096}
    s_add_u32 s{sB}, s{sB}, s{sAR}
    s_add_u32 s{sB}, s{sB}, {U_ - ACT:#x}
    v_and_b32 v{vF8}, 7, v{vLANE}
    v_lshlrev_b32 v{vF8}, 2, v{vF8}
    s_lshl_b32 s{sT1}, s{sW8}, 5
    v_add_u32 v{vF8}, s{sT1}, v{vF8}""")
            gel(tilesA[:2]); sa = gel(tilesA[2:])
            a("s_setprio 0")
            S.ts()
            gel(tilesB[:2])
            S.flag(4, 6, seq=sa)
            S.sb = gel(tilesB[2:])
            S.ts()
        self.sync_check()

    def s7(self):
        self.C.mark(); self.H.mark()
        C, H = self.C, self.H
        for S in (C, H):
            isC = S is C; a = S.a
            wreg = S.wreg
            vF8, vPp = S.f7
            if isC:
                vWr, vRD, vO = [8, 9, 10, 11], 12, 13
                ring = [self.cBP + 4*i for i in range(8)]
                accx = lambda p, m: self.cACC + 16*(p & 1) + 4*m
                rb = [80 + 4*k for k in range(8)]
            else:
                vWr, vRD, vO = [self.hX+4+i for i in range(4)], 7, vXO
                ring = [self.hBP + 4*i for i in range(8)]
                accx = lambda p, m: self.hACC + 4*m if p & 1 else (184, 188, 248, 252)[m]
                rb = [80, 84, 88, 92, 104, 108, 112, 116]
            NR = len(ring); x = rb[0]
            def setup():
                a(f"""
    v_and_b32 v{x}, 15, v{vLANE}
    v_lshrrev_b32 v{x+1}, 4, v{vLANE}
    v_xor_b32 v{x+2}, v{x}, v{x+1}                ; t ^ g""")
                for m in range(4):
                    a(f"""
    s_add_u32 s{sT1}, s{sW}, {m}
    s_and_b32 s{sT1}, s{sT1}, 3
    s_lshl_b32 s{sT2}, s{sT1}, 2
    v_xor_b32 v{vWr[m]}, s{sT2}, v{x+2}
    v_lshlrev_b32 v{vWr[m]}, 4, v{vWr[m]}
    v_lshl_add_u32 v{vWr[m]}, v{x+1}, 8, v{vWr[m]}
    s_lshl_b32 s{sT1}, s{sT1}, 10
    s_lshl_b32 s{sT2}, s{sW8}, 12
    s_add_u32 s{sT1}, s{sT1}, s{sT2}
    v_add_u32 v{vWr[m]}, s{sT1}, v{vWr[m]}""")
                a(f"""
    s_lshl_b32 s{sT1}, s{sW}, 2
    v_add_u32 v{x+1}, s{sT1}, v{x+1}
    v_xor_b32 v{vRD}, v{x+1}, v{x}
    v_lshlrev_b32 v{vRD}, 4, v{vRD}
    v_lshl_add_u32 v{vRD}, v{x}, 8, v{vRD}
    v_lshlrev_b32 v{vO}, 10, v{x+1}
    v_lshl_add_u32 v{vO}, v{x}, 3, v{vO}
    s_lshl_b32 s{sT4}, s{sGRP}, 16
    s_lshl_b32 s{sT1}, s{sMEM}, 7
    s_add_u32 s{sT4}, s{sT4}, s{sT1}""")
                if not isC: a(f"s_add_u32 s{sT4}, s{sT4}, 16384\n v_add_u32 v{vRD}, 32768, v{vRD}")
                a("s_waitcnt lgkmcnt(0)")
            S.poll(4, vF8, vPp, mid=[setup])
            S.flag(6, 6, seq=S.sb)
            S.ts()
            seq = {}
            def load(u):
                p, i = u // 7, u % 7
                seq[u] = S.vm(f"buffer_load_dwordx4 {vr(ring[u % NR])}, v{vB}, {WS}, s{sB} offen offset:{256*p} sc1")
                a(f"s_add_u32 s{sB}, s{sB}, 4096" if i < 6 else f"s_sub_u32 s{sB}, s{sB}, {6*4096}")
            def Wr(p):
                it = []
                for m in range(4):
                    if p == 2: it.append(lambda m=m: a(f"v_add_u32 v{vWr[m]}, 0x10000, v{vWr[m]}"))
                    it.append(lambda m=m: S.ld(f"ds_write_b128 v{vWr[m]}, {vr(accx(p, m))} offset:{32768*(p&1)}"))
                return it
            bar = [lambda: (a("s_waitcnt lgkmcnt(0)"), S.bar())]
            st = {}
            def Rd(p):
                it = [lambda: a(f"v_add_u32 v{vRD}, 0x10000, v{vRD}")] if p >= 2 else []
                return it + [(lambda k=k: st.__setitem__(p, S.ld(f"ds_read_b128 {vr(rb[k])}, v{vRD} offset:{4096*k}"))) for k in range(8)]
            def Ad(p, pk):
                r = rb
                pairs = [(r[0], r[1]), (r[2], r[3]), (r[4], r[5]), (r[6], r[7]), (r[0], r[2]), (r[4], r[6]), (r[0], r[4])]
                ins = []
                for y, z in pairs:
                    if pk: ins += [f"v_pk_add_f32 {P(y+h)}, {P(y+h)}, {P(z+h)}" for h in (0, 2)]
                    else: ins += [f"v_add_f32 v{y+h}, v{y+h}, v{z+h}" for h in range(4)]
                ins += [f"v_cvt_pk_bf16_f32 v{r[1]+h}, v{r[0]+2*h}, v{r[0]+2*h+1}" for h in (0, 1)]
                return [lambda: S.wait_ld(st[p])] + [(lambda z=z: a(z)) for z in ins] + \
                       [lambda: S.vm(f"buffer_store_dwordx2 {P(r[1])}, v{vO}, {OS}, s{sT4} offen {self.opt.get('osc', 'nt')}"), lambda: a(f"s_add_u32 s{sT4}, s{sT4}, 32768")]
            la = int(self.opt.get('la7', 4))
            pb = {}
            ltxt = f"buffer_load_dword v{vPp}, v{vF8}, {WS}, s{sT0} offen sc1"
            def chkB():
                L0, Lr = S.lab("bchk"), S.lab("bre")
                S.wait_vm(pb[0])
                a.label(L0)
                a(f"v_cmp_ne_u32 vcc, 1, v{vPp}\n s_cbranch_vccnz {Lr}")
                S.ool.append((Lr, [f"s_add_u32 s{sCNT}, s{sCNT}, 1", f"s_cmp_gt_u32 s{sCNT}, {SPIN}", "s_cbranch_scc1 main_exit",
                                   ltxt, "s_waitcnt vmcnt(0)", f"s_branch {L0}"]))
            side = {6: bar, 8: Wr(0), 15: Wr(1), 16: bar, 22: Wr(2)}
            side[13 - 2*la] = side.get(13 - 2*la, []) + [lambda: pb.__setitem__(0, S.vm(ltxt))]
            side[13 - la] = side.get(13 - la, []) + [chkB]
            p0 = 0 if isC else 1
            ad = Ad(p0, False)
            side[17] = Rd(p0); side[18] = ad[:11]; side[19] = ad[11:22]; side[20] = ad[22:]
            for u in range(la): load(u)
            for u in range(28):
                p, i = u // 7, u % 7
                S.wait_vm(seq[u])
                items = list(side.get(u, []))
                per = -(-len(items) // 3)
                for m in range(4):
                    c0 = vr(self.hRES+4*p) if (m == 0 and not isC) else '0'
                    if not (self.opt.get('x7b') and m): a(f"v_mfma_f32_16x16x32_bf16 {vr(accx(p, m))}, {wreg(4*i+m)}, {vr(ring[u % NR])}, {c0 if i == 0 else vr(accx(p, m))}")
                    if m == 0:
                        if u + la < 28: load(u + la)
                    else:
                        for _ in range(per):
                            if items: items.pop(0)()
                if u % 7 == 6: S.ts("s7")
            S.run(Wr(3) + bar)
            S.ts()
            S.run(Rd(p0+2) + Ad(p0+2, True))
            S.ts("s7")
        self.sync_check()

    def dump_ts(self, S):
        a = S.a
        a("s_waitcnt vmcnt(0)")
        S.ts()
        a(f"""
    s_waitcnt lgkmcnt(0)
    s_lshl_b32 s{sT0}, s2, 3
    s_add_u32 s{sT0}, s{sT0}, s{sW8}
    s_lshl_b32 s{sT0}, s{sT0}, 7
    s_add_u32 s{sT0}, s{sT0}, {DBG:#x}
    v_mov_b32 v7, 0
    s_mov_b64 exec, 1""")
        assert S.nts <= 28
        for i in range(S.nts):
            a(f"v_mov_b32 v6, s{tsreg(i)}\n buffer_store_dword v6, v7, {WS}, s{sT0} offen offset:{4*i}")
        a(f"v_mov_b32 v6, s{sSLOW}\n buffer_store_dword v6, v7, {WS}, s{sT0} offen offset:124")
        a(f"v_mov_b32 v6, s{sXCC}\n buffer_store_dword v6, v7, {WS}, s{sT0} offen offset:120")

    def gen(self):
        C, H = self.C, self.H
        self.prologue(); self.qstage(); self.attention()
        for name in ("s3", "s4", "s5", "s6", "s7"): getattr(self, name)()
        for S in (C, H):
            S.a.label(f"M_{S.name}_{S.nmark}")
            if self.dbg: self.dump_ts(S)
            if S is C: S.a.label("main_exit")
            S.a("s_endpgm")
        tail = Asm()
        self.fallback()
        for S in (C, H):
            for L, body in S.ool:
                S.a.label(L)
                for x in body: S.a(x)
        C.a.label("main_end")
        H.a.lines = self.head + H.a.lines
        txt = H.a.finish() + C.a.finish()
        txt += """
.section .rodata,"a"
.p2align 6
.amdhsa_kernel """ + NAME + """_kernel
  .amdhsa_next_free_vgpr 256
  .amdhsa_next_free_sgpr 102
  .amdhsa_accum_offset 256
  .amdhsa_group_segment_fixed_size 0
  .amdhsa_kernarg_size 104
  .amdhsa_user_sgpr_count 2
  .amdhsa_user_sgpr_kernarg_segment_ptr 1
  .amdhsa_system_sgpr_workgroup_id_x 1
.end_amdhsa_kernel
"""
        return txt
```

```python
from asmlib import Asm
from layout import *
import struct, os

def f32(x):
    return "0x%08x" % struct.unpack('<I', struct.pack('<f', x))[0]

K2_LDS = 163840
LOG2E = 1.4426950408889634
QSCALE = 0.25 * LOG2E
GC1 = -2.0 * 0.7978845608028654 * LOG2E
SPIN = 0x40000
ACT = 65536
XST = ACT + 5*8192 + 256
HI = 131072
LA = 5

sW, sGRP, sMEM, sSLOW, sXCC, sW8 = 3, 16, 17, 18, 45, 44
WS, XS, OS = "s[4:7]", "s[8:11]", "s[12:15]"
sT0, sT1, sT2, sT3, sT4, sT5 = 20, 21, 22, 23, 24, 25
sG, sL, sPF, sCNT, sFLG, sAR = 26, 27, 28, 29, 30, 31
sU0, sU1 = 32, 33
sB = 34
sKVW, sTAG, sRND = 40, 41, 33
sTCH = 35
sNT, sORD = 38, 39
sVM = "s[40:41]"
sPL, sW4 = 42, 43
sPP, sPR, sPS, sPD = 46, 56, 60, 65
def tsreg(i): return 70 + 2*i if i < 16 else 46 + 2*(i-16)
vLANE, vL16, vB, vD, vMYF, vXO = 0, 1, 2, 3, 4, 5

def vr(b, n=4): return f"v[{b}:{b+n-1}]"
def V(b): return lambda ks: vr(b+4*ks)
def P(r): return f"v[{r}:{r+1}]"

class Stream:
    uid = 0
    def __init__(self, name, dbg, tags):
        self.name, self.dbg, self.tags = name, dbg, tags
        self.a = Asm(); self.nvm = self.nld = self.nts = self.nbar = 0
        self.ool = []; self.nmark = 0; self.seclen = {}
    def vm(self, text):
        self.a(text); self.nvm += 1; return self.nvm - 1
    def wait_vm(self, seq): self.a(f"s_waitcnt vmcnt({min(self.nvm - 1 - seq, 63)})")
    def ld(self, text):
        self.a(text); self.nld += 1; return self.nld - 1
    def wait_ld(self, seq): self.a(f"s_waitcnt lgkmcnt({min(self.nld - 1 - seq, 15)})")
    def bar(self): self.a("s_barrier"); self.nbar += 1
    def ts(self, tag="main"):
        if self.dbg and tag in self.tags:
            self.a(f"{'s_memtime' if self.dbg == 'cyc' else 's_memrealtime'} s[{tsreg(self.nts)}:{tsreg(self.nts)+1}]")
            self.nts += 1
    def lab(self, p):
        Stream.uid += 1; return f"L_{p}_{Stream.uid}"
    def mark(self):
        i = self.nmark; self.nmark += 1
        L = f"M_{self.name}_{i}"
        n = self.seclen.get(L)
        if n is not None and n < 4000:
            self.a(f"s_branch {L}"); self.a(f".p2align 12,,{n + 64}")
        self.a.label(L)
    def E(self, text): return [(lambda x=x: self.a(x)) for x in text.split("\n") if x.strip()]
    def set_wbase(self, base, ks, dst=sPF):
        self.a(f"s_mul_i32 s{dst}, s{sNT}, {ks*1024}\n s_add_u32 s{dst}, s{dst}, {base:#x}")
    def set_w3(self, slot):
        if slot < 3: self.a(f"s_mul_i32 s{sPF}, s{sW}, 3\n s_add_u32 s{sPF}, s{sPF}, {slot}")
        else: self.a(f"s_lshr_b32 s{sPF}, s{sW}, 1\n s_add_u32 s{sPF}, s{sPF}, 12")
        self.a(f"s_mul_i32 s{sT5}, s{sMEM}, 14\n s_add_u32 s{sPF}, s{sPF}, s{sT5}\n s_lshl_b32 s{sPF}, s{sPF}, 14\n s_add_u32 s{sPF}, s{sPF}, {W3:#x}")
    def set_act(self, base):
        self.a(f"s_lshl_b32 s{sL}, s{sW}, 11\n s_add_u32 s{sG}, s{sAR}, s{sL}\n s_add_u32 s{sG}, s{sG}, {base:#x}\n s_add_u32 s{sL}, s{sL}, {ACT}")
    def tile_soff(self, s, base):
        self.a(f"s_lshl_b32 s{s}, s{sNT}, 11\n s_add_u32 s{s}, s{s}, s{sAR}\n s_add_u32 s{s}, s{s}, {base:#x}")
    def xo_soff(self, s):
        self.a(f"s_lshl_b32 s{s}, s{sNT}, 5\n s_lshl_b32 s{sT5}, s{sGRP}, 16\n s_add_u32 s{s}, s{s}, s{sT5}")
    def act_issue(self, sc="sc1", pre=None, post=None):
        def issue(c):
            self.a(f"s_mov_b32 m0, s{sL}")
            if pre: pre(c)
            self.vm(f"buffer_load_dwordx4 v{vL16}, {WS}, s{sG} offen {sc} lds")
            last = self.vm(f"buffer_load_dwordx4 v{vL16}, {WS}, s{sG} offen offset:1024 {sc} lds")
            if post: post(c)
            self.a(f"s_add_u32 s{sG}, s{sG}, 8192\n s_add_u32 s{sL}, s{sL}, 8192")
            return last
        return issue
    def frags(self, n, sreg, dst=None, lds=None, sc="sc1"):
        def mk(i):
            def f():
                if dst is not None:
                    r = self.vm(f"buffer_load_dwordx4 {dst(i)}, v{vL16}, {WS}, s{sreg} offen offset:{1024*(i&3)} {sc}")
                else:
                    self.a(f"s_mov_b32 m0, s{lds}")
                    r = self.vm(f"buffer_load_dwordx4 v{vL16}, {WS}, s{sreg} offen offset:{1024*(i&3)} {sc} lds")
                if i & 3 == 3:
                    self.a(f"s_add_u32 s{sreg}, s{sreg}, 4096")
                    if lds is not None: self.a(f"s_add_u32 s{lds}, s{lds}, 4096")
                self.lastf = r
                return r
            return f
        return [mk(i) for i in range(n)]
    def run(self, items):
        for f in items: f()
    def setvcc(self): self.a(f"s_mov_b64 vcc, s[{sSLOW}:{sSLOW+1}]")
    NT = True
    def cstore(self, st, nt=True):
        Ls, Le = self.lab("cs"), self.lab("ce")
        self.a(f"s_cbranch_vccnz {Ls}")
        for x in st: self.vm(x + (" nt" if nt and self.NT else ""))
        self.a.label(Le)
        self.ool.append((Ls, [x + " sc1" for x in st] + [f"s_branch {Le}"]))
    def flag(self, stage, t, vf=vMYF, seq=None):
        self.a(f"s_add_u32 s{sT0}, s{sFLG}, {stage*8192}\n v_mov_b32 v{t}, 1")
        if seq is None: self.a("s_waitcnt vmcnt(0)")
        else: self.wait_vm(seq)
        self.a("s_mov_b64 exec, 1")
        self.cstore([f"buffer_store_dword v{t}, v{vf}, {WS}, s{sT0} offen"], nt=False)
        self.a("s_mov_b64 exec, -1")
    def poll(self, stage, vf, p0, mid=()):
        a = self.a; L, Ld = self.lab("poll"), self.lab("pdone"); p1 = p0 + 1
        a(f"s_add_u32 s{sT0}, s{sFLG}, {stage*8192}\n s_mov_b32 s{sCNT}, 0")
        q = self.vm(f"buffer_load_dword v{p0}, v{vf}, {WS}, s{sT0} offen sc1")
        self.run(mid)
        self.vm(f"buffer_load_dword v{p1}, v{vf}, {WS}, s{sT0} offen sc1")
        self.wait_vm(q)
        a(f"v_cmp_ne_u32 vcc, 1, v{p0}\n s_cbranch_vccz {Ld}")
        a.label(L)
        a(f"""
    buffer_load_dword v{p0}, v{vf}, {WS}, s{sT0} offen sc1
    s_waitcnt vmcnt(1)
    v_cmp_ne_u32 vcc, 1, v{p1}
    s_add_u32 s{sCNT}, s{sCNT}, 1
    s_cbranch_vccz {Ld}
    buffer_load_dword v{p1}, v{vf}, {WS}, s{sT0} offen sc1
    s_cmp_gt_u32 s{sCNT}, {SPIN}
    s_cbranch_scc1 main_exit
    s_waitcnt vmcnt(1)
    v_cmp_ne_u32 vcc, 1, v{p0}
    s_cbranch_vccnz {L}""")
        a.label(Ld)
        self.setvcc()
    def regcheck(self, r, z):
        a = self.a; L, L0 = self.lab("reg"), self.lab("reg0")
        a(f"s_mov_b32 s{sCNT}, 0")
        a.label(L0)
        a(f"""
    v_readfirstlane_b32 s{sT1}, v{r}
    s_and_b32 s{sT2}, s{sT1}, 0x0f0f0f0f
    s_lshr_b32 s{sT3}, s{sT1}, 4
    s_and_b32 s{sT3}, s{sT3}, 0x0f0f0f0f
    s_add_u32 s{sT2}, s{sT2}, s{sT3}
    s_mul_i32 s{sT2}, s{sT2}, 0x01010101
    s_lshr_b32 s{sT2}, s{sT2}, 24
    s_cmp_lg_u32 s{sT2}, 8
    s_cbranch_scc1 {L}
    s_lshl_b32 s{sT2}, s{sXCC}, 2
    s_lshl_b32 s{sT2}, 8, s{sT2}
    s_cmp_lg_u32 s{sT1}, s{sT2}
    s_cselect_b64 s[{sSLOW}:{sSLOW+1}], -1, 0""")
        self.ool.append((L, [f"s_add_u32 s{sT0}, s{sFLG}, {5*8192}", f"buffer_load_dword v{r}, v{z}, {WS}, s{sT0} offen sc1",
                             f"s_add_u32 s{sCNT}, s{sCNT}, 1", f"s_cmp_gt_u32 s{sCNT}, {SPIN}", "s_cbranch_scc1 main_exit",
                             "s_waitcnt vmcnt(0)", f"s_branch {L0}"]))
    def regload(self, r, z):
        self.a(f"s_add_u32 s{sT0}, s{sFLG}, {5*8192}\n v_mov_b32 v{z}, 0")
        return self.vm(f"buffer_load_dword v{r}, v{z}, {WS}, s{sT0} offen sc1")
    def load_gemm(self, issue, la=LA, side=None, tag=None, ramp=True):
        side = side or {}
        seqs = {}
        if tag: self.ts(tag)
        ni = 3
        for c in range(ni): seqs[c] = issue(c)
        self.run(side.get(-1, []))
        if tag: self.ts(tag)
        for c in range(8):
            self.wait_vm(seqs[c])
            self.run(side.get((c, 'pre'), []))
            if tag: self.ts(tag)
            self.bar()
            for _ in range(2 if (c < 2 and ramp) else 1):
                if ni < 8: seqs[ni] = issue(ni); ni += 1
            self.run(side.get(c, []))
    def cons_gemm(self, areg, ACC, BP, side=None, prewait=None, defer=None, tag=None, baddr=None, prebar=None, postbar=None, onebar=False):
        a = self.a
        side = {k: list(v) for k, v in (side or {}).items()}
        work = [[(2*c+s, jt) for s in range(2) for jt in range(4) if not (defer and defer(2*c+s) == jt)] for c in range(8)]
        if defer: work += [[(ks, defer(ks)) for ks in range(8)], [(ks, defer(ks)) for ks in range(8, 16)]]
        nch = len(work); rs = {}; started = set()
        def read(c, i):
            ks, jt = work[c][i]
            r, off = baddr(ks, jt) if baddr else (vB, 4096*ks + 256*jt)
            rs[(c, i)] = self.ld(f"ds_read_b128 {vr(BP+4*i)}, v{r} offset:{off}")
        if tag: self.ts(tag)
        if prebar: prebar(0)
        self.bar()
        if postbar: postbar(0)
        for i in range(len(work[0])): read(0, i)
        if tag: self.ts(tag)
        for c in range(nch):
            nxt = c + 1 < nch
            if c + 1 < 8 and prebar: prebar(c+1)
            if (c + 1 < 8 or (c + 1 == 8 and defer)) and not onebar: self.bar()
            if c + 1 < 8 and postbar: postbar(c+1)
            if prewait: prewait(c)
            items = side.pop(c, [])
            n = len(work[c]); nn = len(work[c+1]) if nxt else 0
            per = -(-len(items) // n)
            for i in range(n, nn): read(c+1, i)
            for i in range(n):
                ks, jt = work[c][i]
                if i % 2 == 0: self.wait_ld(rs[(c, min(i+1, n-1))])
                cc = vr(ACC+4*jt) if jt in started else "0"
                started.add(jt)
                a(f"v_mfma_f32_16x16x32_bf16 {vr(ACC+4*jt)}, {areg(ks)}, {vr(BP+4*i)}, {cc}")
                if i < nn: read(c+1, i)
                for _ in range(per):
                    if items: items.pop(0)()
            if tag: self.ts(tag)
        assert not side
    def gelu(self, acc, cs, S, out, t, pk):
        I = []
        if pk:
            for i in (0, 2): I.append(f"v_pk_fma_f32 {P(acc+i)}, {P(S)}, {P(cs+i)}, {P(acc+i)} op_sel_hi:[0,1,1] neg_lo:[1,0,0] neg_hi:[1,0,0]")
            for i in (0, 2): I.append(f"v_pk_mul_f32 {P(t+i)}, {P(acc+i)}, {P(acc+i)}")
            for i in (0, 2): I.append(f"v_pk_fma_f32 {P(t+i)}, {P(S+2)}, {P(t+i)}, {P(S+2)} op_sel:[1,0,0] op_sel_hi:[1,1,0]")
            for i in (0, 2): I.append(f"v_pk_mul_f32 {P(t+i)}, {P(t+i)}, {P(acc+i)}")
            for i in range(4): I.append(f"v_exp_f32 v{t+i}, v{t+i}")
            for i in (0, 2): I.append(f"v_pk_fma_f32 {P(t+i)}, {P(S)}, {P(t+i)}, {P(S)} op_sel:[1,0,1] op_sel_hi:[1,1,1]")
            for i in range(4): I.append(f"v_rcp_f32 v{t+i}, v{t+i}")
            for i in (0, 2): I.append(f"v_pk_mul_f32 {P(acc+i)}, {P(acc+i)}, {P(t+i)}")
        else:
            for i in range(4): I.append(f"v_fma_f32 v{acc+i}, -v{S}, v{cs+i}, v{acc+i}")
            for i in range(4): I.append(f"v_mul_f32 v{t+i}, v{acc+i}, v{acc+i}")
            for i in range(4): I.append(f"v_fma_f32 v{t+i}, v{t+i}, v{S+3}, v{S+2}")
            for i in range(4): I.append(f"v_mul_f32 v{t+i}, v{t+i}, v{acc+i}")
            for i in range(4): I.append(f"v_exp_f32 v{t+i}, v{t+i}")
            for i in range(4): I.append(f"v_fma_f32 v{t+i}, v{t+i}, v{S+1}, v{S+1}")
            for i in range(4): I.append(f"v_rcp_f32 v{t+i}, v{t+i}")
            for i in range(4): I.append(f"v_mul_f32 v{acc+i}, v{acc+i}, v{t+i}")
        return I + [f"v_cvt_pk_bf16_f32 v{out}, v{acc}, v{acc+1}", f"v_cvt_pk_bf16_f32 v{out+1}, v{acc+2}, v{acc+3}"]
    def gelu2(self, x, y, t, pk):
        p, q = self.gelu(*x, t, pk), self.gelu(*y, t+4, pk)
        return [z for pair in zip(p, q) for z in pair]
    def colsum(self, areg, dst, ones):
        for i in range(4): self.a(f"v_mov_b32 v{ones+i}, 0x3f803f80")
        for ks in range(16):
            self.a(f"v_mfma_f32_16x16x32_bf16 {vr(dst)}, {areg(ks)}, {vr(ones)}, {'0' if ks == 0 else vr(dst)}")
    def unpack(self, src, dst): self.a(f"v_lshlrev_b32 v{dst}, 16, v{src}\n v_and_b32 v{dst+1}, 0xffff0000, v{src}")
    def lds2reg(self, dst, n, va):
        for i in range(n): self.ld(f"ds_read_b128 {dst(i)}, v{va} offset:{1024*i}")
    def stat_reads(self, STAT, va, order, R1=None):
        it = []
        for jt in range(4):
            if order: x = f"ds_read_b128 {vr(STAT+4*jt)}, v{va+(jt&1)} offset:{512*(jt>>1)}"
            else: x = f"ds_read_b128 {vr(STAT+4*jt)}, v{va} offset:{256*jt}"
            it.append(lambda x=x: setattr(self, 'stseq', self.ld(x)))
        if R1 is not None:
            for jt in range(4):
                it.append(lambda jt=jt: setattr(self, 'stseq', self.ld(f"ds_read_b32 v{R1+jt}, v{va} offset:{1024 + 256*jt}")))
        return it

class Main:
    def __init__(self, dbg=False, tags=('main',), opt=None, seclen=None):
        self.dbg = dbg; self.opt = opt or {}
        Stream.uid = 0; Stream.NT = not self.opt.get('nont')
        self.C = Stream('C', dbg, tags); self.H = Stream('H', dbg, tags)
        self.C.seclen = self.H.seclen = seclen or {}
    def sync_check(self): assert self.C.nbar == self.H.nbar, (self.C.nbar, self.H.nbar)

    def prologue(self):
        C, H = self.C, self.H; a = C.a
        a(f".text\n.globl {NAME}_kernel\n.p2align 12\n.type {NAME}_kernel,@function")
        a.label(f"{NAME}_kernel")
        a.label("main_kernel")
        a(f"""
    s_cmp_ge_u32 s2, 256
    s_cbranch_scc1 main_exit
    s_load_dwordx2 s[4:5], s[0:1], 96
    s_load_dwordx2 s[8:9], s[0:1], 0
    s_load_dwordx2 s[12:13], s[0:1], 80
    s_load_dwordx2 s[{sPR}:{sPR+1}], s[0:1], 8
    s_load_dwordx4 s[32:35], s[0:1], 16
    s_load_dwordx2 s[{sPP}:{sPP+1}], s[0:1], 32
    s_load_dwordx8 s[{sPP+2}:{sPP+9}], s[0:1], 48""")
        if self.dbg:
            a(f"{'s_memtime' if self.dbg == 'cyc' else 's_memrealtime'} s[70:71]"); C.nts = H.nts = 1
        a(f"""
    v_lshrrev_b32 v1, 6, v0
    v_and_b32 v{vLANE}, 63, v0
    v_readfirstlane_b32 s{sW8}, v1
    s_and_b32 s{sT0}, s2, 7
    s_lshr_b32 s{sT1}, s2, 3
    s_lshl_b32 s{sGRP}, s{sT0}, 2
    s_lshr_b32 s{sT2}, s{sT1}, 3
    s_add_u32 s{sGRP}, s{sGRP}, s{sT2}
    s_and_b32 s{sMEM}, s{sT1}, 7
    s_and_b32 s{sW}, s{sW8}, 3
    s_mul_i32 s{sAR}, s{sGRP}, {GA:#x}
    s_lshl_b32 s{sNT}, s{sMEM}, 2
    s_add_u32 s{sNT}, s{sNT}, s{sW}
    v_lshlrev_b32 v{vL16}, 4, v{vLANE}
    s_getpc_b64 s[42:43]""")
        a.label("L_pc0")
        a(f"""
    s_sub_u32 s42, s42, L_pc0-main_kernel
    s_subb_u32 s43, s43, 0
    s_lshl_b32 s{sT1}, s{sT1}, 3
    s_add_u32 s{sT1}, s{sT1}, s{sW8}
    s_lshl_b32 s{sT1}, s{sT1}, 8
    v_and_b32 v9, 1, v{vLANE}
    v_lshlrev_b32 v9, 7, v9
    v_add_u32 v9, s{sT1}, v9
    v_min_u32 v9, main_end-main_kernel-4, v9
    global_load_dword v255, v9, s[42:43]
    s_mov_b32 s6, {WS_USED:#x}
    s_mov_b32 s7, 0x20000
    v_lshrrev_b32 v8, 3, v{vLANE}
    s_mov_b32 s10, {2048*1024:#x}
    s_mov_b32 s11, 0x20000
    s_mov_b32 s{sPR+3}, 0x20000
    s_cmp_ge_u32 s{sW8}, 4
    s_cbranch_scc1 H_entry
    v_bfe_u32 v9, v{vLANE}, 4, 1
    s_and_b32 s{sT0}, s{sW}, 1
    s_lshl_b32 s{sT0}, s{sT0}, 1
    v_or_b32 v9, s{sT0}, v9
    v_bfe_u32 v10, v{vLANE}, 1, 2
    v_xor_b32 v9, v9, v10
    v_lshlrev_b32 v9, 5, v9
    v_and_b32 v10, 1, v{vLANE}
    v_lshl_add_u32 v9, v10, 4, v9
    v_lshl_add_u32 v134, v8, 10, v9
    s_mov_b32 s{sPR+2}, 0x80000
    s_lshl_b32 s{sG}, s{sW}, 13
    s_lshl_b32 s{sT0}, s{sMEM}, 7
    s_add_u32 s{sG}, s{sG}, s{sT0}
    s_lshl_b32 s{sL}, s{sW}, 10
    s_add_u32 s{sL}, s{sL}, 98304
    s_waitcnt lgkmcnt(0)
    s_and_b32 s{sPR+1}, s{sPR+1}, 0xffff""")
        a.label("L_wq")
        a(f"""
    s_mov_b32 m0, s{sL}
    s_add_u32 s{sL}, s{sL}, 4096
    buffer_load_dwordx4 v134, s[{sPR}:{sPR+3}], s{sG} offen lds
    s_add_u32 s{sG}, s{sG}, 32768
    s_cmp_lt_u32 s{sL}, 163840
    s_cbranch_scc1 L_wq
    s_branch C_entry""")
        C.nvm += 16
        a.label("H_entry")
        self.head = a.lines; a.lines = []
        a(".p2align 8"); a.label("C_entry")
    def setup_common(self, S, t):
        S.a(f"""
    s_mov_b32 s14, {2048*1024:#x}
    s_mov_b32 s15, 0x20000
    s_getreg_b32 s{sXCC}, hwreg(HW_REG_XCC_ID, 0, 3)
    v_and_b32 v{t}, 15, v{vLANE}                  ; t
    v_lshrrev_b32 v{t+1}, 4, v{vLANE}             ; g
    v_lshlrev_b32 v{vB}, 10, v{t+1}
    v_lshl_add_u32 v{vB}, v{t}, 4, v{vB}
    v_add_u32 v{vB}, {ACT}, v{vB}                 ; ACT + g*1024 + t*16
    v_lshrrev_b32 v{vD}, 1, v{t+1}
    v_lshlrev_b32 v{vD}, 10, v{vD}
    v_lshl_add_u32 v{vD}, v{t}, 4, v{vD}
    v_and_b32 v{t+2}, 1, v{t+1}
    v_lshl_add_u32 v{vD}, v{t+2}, 3, v{vD}        ; (g>>1)*1024 + t*16 + (g&1)*8
    s_lshl_b32 s{sT0}, s{sNT}, 2
    v_mov_b32 v{vMYF}, s{sT0}
    s_lshl_b32 s{sFLG}, s{sGRP}, 8
    s_add_u32 s{sFLG}, s{sFLG}, {FLAGS:#x}
    v_lshlrev_b32 v{t+2}, 10, v{t}
    v_lshl_add_u32 v{vXO}, v{t+1}, 3, v{t+2}      ; t*1024 + g*8
    s_and_b32 s{sORD}, s{sW}, 1
    s_lshl_b32 s{sORD}, s{sORD}, 8""")

    cT = 6
    S0, S1, NEGM, OA, OB, QA, QB, vIDX, vKA, vVA, vREG = 24, 40, 56, 72, 88, 16, 20, 13, 14, 15, 11
    KVR = 104
    NB = 1
    SCR = 16384
    def x_addr(self, S, dst, t, x):
        S.a(f"""
    v_lshrrev_b32 v{x}, 4, v{vLANE}
    v_and_b32 v{x+1}, 7, v{vLANE}
    v_xor_b32 v{x+1}, v{x+1}, v{x}
    v_lshlrev_b32 v{x+1}, 4, v{x+1}
    v_lshl_add_u32 v{dst}, v{t}, 7, v{x+1}
    v_add_u32 v{dst}, 32768, v{dst}""")
    def qstage(self):
        C, H = self.C, self.H; a = C.a; t = self.cT
        WQR, QACC, QBP = 192, 24, 40
        XB, WB = 32768, 98304
        QS = 144
        a("s_and_b32 s5, s5, 0xffff\n s_and_b32 s13, s13, 0xffff")
        wqseq = C.nvm - 1
        self.prep_setup(C, 152); self.prep_load(C, 152, 164)
        self.setup_common(C, t)
        self.x_addr(C, 130, t, t+1)
        a(f"""
    v_xor_b32 v131, 64, v130
    v_bfe_u32 v{t+2}, v{vLANE}, 2, 2
    v_lshl_add_u32 v132, v{t+1}, 3, v{t+2}
    v_lshlrev_b32 v132, 7, v132
    v_and_b32 v{t+1}, 1, v{t+1}
    v_lshrrev_b32 v{t+2}, 1, v{t+2}
    v_lshl_add_u32 v{t+1}, v{t+1}, 1, v{t+2}
    v_xor_b32 v{t+1}, s{sW}, v{t+1}
    v_lshl_add_u32 v132, v{t+1}, 5, v132
    v_and_b32 v{t+2}, 3, v{vLANE}
    v_lshl_add_u32 v132, v{t+2}, 3, v132
    v_add_u32 v132, {WB}, v132
    v_lshlrev_b32 v133, 3, v{t}""")
        ONE, CSQ = 136, 140
        for i in range(4): a(f"v_mov_b32 v{ONE+i}, 0x3f803f80")
        C.wait_vm(wqseq)
        def postbar(c):
            for ks in (2*c, 2*c+1):
                C.ld(f"ds_read_b64_tr_b16 {P(WQR+4*ks)}, v132 offset:{4096*ks}")
                C.ld(f"ds_read_b64_tr_b16 {P(WQR+4*ks+2)}, v132 offset:{4096*ks+512}")
        side = {c: [(lambda ks=ks: a(f"v_mfma_f32_16x16x32_bf16 {vr(CSQ)}, {vr(WQR+4*ks)}, {vr(ONE)}, {'0' if ks == 0 else vr(CSQ)}")) for ks in (2*c, 2*c+1)] for c in range(8)}
        side[5] += [(lambda jt=jt: C.ld(f"ds_read_b64 {P(QS+2*jt)}, v133 offset:{self.SCR + 128*jt}")) for jt in range(4)]
        C.cons_gemm(V(WQR), QACC, QBP, side=side, baddr=lambda ks, jt: (130 + (ks & 1), 8192*(ks >> 1) + 2048*jt),
                    postbar=postbar, tag="q", onebar=True)
        C.ts()
        QA, QB = self.QA, self.QB
        for jt in range(4): a(f"v_mul_f32 v{QS+2*jt+1}, {f32(QSCALE)}, v{QS+2*jt+1}")
        for jt in range(4):
            for h in (0, 2): a(f"v_pk_fma_f32 {P(QACC+4*jt+h)}, {P(QS+2*jt)}, {P(CSQ+h)}, {P(QACC+4*jt+h)} op_sel_hi:[0,1,1] neg_lo:[1,0,0] neg_hi:[1,0,0]")
        for jt in range(4):
            for h in (0, 2): a(f"v_pk_mul_f32 {P(QACC+4*jt+h)}, {P(QS+2*jt)}, {P(QACC+4*jt+h)} op_sel:[1,0] op_sel_hi:[1,1]")
        for jt in range(4):
            a(f"v_cvt_pk_bf16_f32 v{QA+2*jt}, v{QACC+4*jt}, v{QACC+4*jt+1}")
            a(f"v_cvt_pk_bf16_f32 v{QA+2*jt+1}, v{QACC+4*jt+2}, v{QACC+4*jt+3}")
        a(f"v_mov_b32 v{t}, 0\n v_mov_b32 v{t+1}, 0")
        for q in (QA, QB): a(f"v_permlane16_swap_b32 v{q}, v{q+2}\n v_permlane16_swap_b32 v{q+1}, v{q+3}")
        for i in range(4): a(f"v_dot2_f32_bf16 v{t}, v{QA+i}, v{QA+i}, v{t}\n v_dot2_f32_bf16 v{t+1}, v{QB+i}, v{QB+i}, v{t+1}")
        a(f"""
    v_permlane32_swap_b32 v{t}, v{t+1}
    v_add_f32 v{t}, v{t}, v{t+1}
    v_mov_b32 v{t+1}, v{t}
    v_permlane32_swap_b32 v{t}, v{t+1}
    v_max_f32 v{t}, v{t}, v{t+1}
    v_sqrt_f32 v{t}, v{t}
    v_mov_b32 v133, {self.SCR + 512}""")
        a(f"""
    s_mov_b32 s40, 0xffff
    s_mov_b32 s41, 0xffff
    v_mov_b32 v{self.vIDX}, 0xdddddddd
    v_mov_b32 v{self.vKA}, v{vL16}
    v_lshrrev_b32 v{t+2}, 5, v{vLANE}
    v_lshlrev_b32 v{t+2}, 8, v{t+2}
    v_and_b32 v{t+3}, 0xff, v{vL16}
    v_add_u32 v{self.vVA}, v{t+3}, v{t+2}   ; hA*256 + d*16""")
        for i in range(32): a(f"v_mov_b32 v{self.OA+i}, 0")
        a(f"v_and_b32 v{t+2}, 31, v{vLANE}\n v_cmp_eq_u32 vcc, 16, v{t+2}\n v_mov_b32 v{t+2}, 0x3f803f80")
        for b in range(2):
            for i in range(8): a(f"v_cndmask_b32 v{self.KVR+12*b+4+i}, 0, v{t+2}, vcc")
        a(f"s_mul_i32 s{sT0}, s{sW}, 5120\n s_add_u32 s{sT0}, s{sT0}, {HI}\n v_add_u32 v134, s{sT0}, v{vL16}\n s_waitcnt vmcnt(0)")
        C.ts("q"); C.bar(); C.ts("q")
        a(f"""
    ds_read_b64 v[128:129], v133""")
        for i in range(5): a(f"ds_write_b128 v134, {vr(164+4*i)} offset:{1024*i}")
        a(f"""
    s_waitcnt lgkmcnt(5)
    v_mul_f32 v{self.NEGM}, v{t}, v128
    v_readfirstlane_b32 s{sSLOW}, v129""")
        for i in range(1, 16): a(f"v_mov_b32 v{self.NEGM+i}, v{self.NEGM}")
        a(f"s_mov_b32 s{sSLOW+1}, s{sSLOW}\n s_waitcnt lgkmcnt(0)")

        a = H.a; v = self.PV
        XF, WF = 64, 128
        a(f"""
    s_setprio 3
    v_and_b32 v9, 7, v{vLANE}
    v_xor_b32 v9, v9, v8
    v_lshlrev_b32 v9, 4, v9
    v_lshl_add_u32 v19, v8, 10, v9
    s_lshl_b32 s{sPF}, s{sGRP}, 16
    s_lshl_b32 s{sT0}, s{sW}, 14
    s_add_u32 s{sPF}, s{sPF}, s{sT0}
    s_lshl_b32 s{sL}, s{sW}, 11
    s_add_u32 s{sL}, s{sL}, {XB}
    s_lshr_b32 s{sKVW}, s{sMEM}, 1
    s_mov_b32 s{sPR+2}, 16384
    v_mov_b32 v7, 0
    s_bitcmp1_b32 s{sMEM}, 0
    s_waitcnt lgkmcnt(0)
    s_cselect_b64 s[{sPR}:{sPR+1}], s[34:35], s[32:33]
    s_and_b32 s5, s5, 0xffff
    s_and_b32 s9, s9, 0xffff
    s_and_b32 s13, s13, 0xffff
    s_and_b32 s{sPR+1}, s{sPR+1}, 0xffff
    s_mov_b32 s{sT0}, {TAGW:#x}
    buffer_load_dword v47, v7, {WS}, s{sT0} offen sc1""")
        L = H.lab("nokv1")
        a(f"s_cmp_lg_u32 s{sKVW}, s{sW}\n s_cbranch_scc1 {L}\n s_mov_b32 s{sT0}, 0")
        a.label("L_wk")
        a(f"s_mov_b32 m0, s{sT0}\n s_nop 0")
        for k in range(4): a(f"buffer_load_dwordx4 v{vL16}, s[{sPR}:{sPR+3}], s{sT0} offen offset:{1024*k} lds")
        a(f"s_add_u32 s{sT0}, s{sT0}, 4096\n s_cmp_lt_u32 s{sT0}, 16384\n s_cbranch_scc1 L_wk")
        a.label(L)
        a(f"s_mov_b32 s{sT1}, s{sMEM}\n s_add_u32 s{sT2}, s{sMEM}, 8")
        a.label("L_x")
        a(f"""
    s_and_b32 s{sT0}, s{sT1}, 7
    s_lshl_b32 s{sG}, s{sT0}, 7
    s_add_u32 s{sG}, s{sG}, s{sPF}
    s_lshl_b32 s{sT0}, s{sT0}, 13
    s_add_u32 m0, s{sT0}, s{sL}
    s_add_u32 s{sT1}, s{sT1}, 1
    buffer_load_dwordx4 v19, {XS}, s{sG} offen lds
    s_add_u32 s{sG}, s{sG}, {8192 - 1024}
    s_cmp_lt_u32 s{sT1}, s{sT2}
    buffer_load_dwordx4 v19, {XS}, s{sG} offen offset:1024 lds
    s_cbranch_scc1 L_x""")
        H.nvm += 16
        self.setup_common(H, 16)
        self.x_addr(H, 40, 16, 42)
        a(f"s_lshl_b32 s{sT0}, s{sW}, 11\n v_add_u32 v40, s{sT0}, v40\n v_xor_b32 v41, 64, v40")
        a("v_mov_b32 v60, 0x3f803f80\n v_mov_b32 v61, 0x3f803f80\n v_mov_b32 v62, 0x3f803f80\n v_mov_b32 v63, 0x3f803f80")
        H.ts("q")
        L, L2 = H.lab("noinit"), H.lab("initd")
        a(f"s_cmp_lg_u32 s{sKVW}, s{sW}\n s_cbranch_scc1 {L}")
        a(f"""
    v_mov_b32 v48, 0
    v_mov_b32 v49, 0
    v_mov_b32 v50, 0
    v_mov_b32 v51, 0
    v_lshrrev_b32 v52, 1, v{vLANE}
    v_lshlrev_b32 v52, 13, v52
    v_and_b32 v53, 1, v{vLANE}
    v_lshl_add_u32 v52, v53, 4, v52
    s_lshl_b32 s{sT0}, s{sMEM}, 5
    s_add_u32 s{sT0}, s{sT0}, s{sFLG}
    s_mov_b64 exec, 0x3fff
    buffer_store_dwordx4 v[48:51], v52, {WS}, s{sT0} offen sc1
    s_lshl_b32 s{sT0}, s2, 7
    s_add_u32 s{sT0}, s{sT0}, {PFLAG:#x}
    s_mov_b64 exec, 1
    buffer_store_dword v48, v7, {WS}, s{sT0} offen sc1
    s_mov_b64 exec, -1
    v_mov_b32 v52, -1
    v_mov_b32 v53, -1
    v_mov_b32 v54, -1
    v_mov_b32 v55, -1
    s_lshl_b32 s{sT0}, s{sMEM}, 10
    s_add_u32 s{sT0}, s{sT0}, s{sAR}
    s_add_u32 s{sT0}, s{sT0}, {ST1:#x}
    buffer_store_dwordx4 v[52:55], v{vL16}, {WS}, s{sT0} offen sc1
    s_bfe_u32 s{sT1}, s{sMEM}, 0x10001
    s_mul_i32 s{sT1}, s{sT1}, 31
    s_cmp_eq_u32 s{sT1}, s{sGRP}
    s_cselect_b32 s{sT1}, 0, -1
    v_mov_b32 v56, s{sT1}
    v_mov_b32 v57, s{sT1}
    v_mov_b32 v58, s{sT1}
    v_mov_b32 v59, s{sT1}
    s_lshl_b32 s{sT0}, s{sMEM}, 8
    s_add_u32 s{sT0}, s{sT0}, s{sAR}
    s_add_u32 s{sT0}, s{sT0}, {HALO:#x}
    s_mov_b64 exec, 0xffff
    buffer_store_dwordx4 v[56:59], v{vL16}, {WS}, s{sT0} offen sc1
    s_mov_b64 exec, -1""")
        a(f"""
    v_bfe_u32 v42, v{vLANE}, 2, 2
    v_lshl_add_u32 v42, v17, 3, v42
    v_lshlrev_b32 v42, 5, v42
    v_and_b32 v43, 3, v{vLANE}
    v_lshl_add_u32 v42, v43, 3, v42
    s_waitcnt vmcnt(20)""")
        for ks in range(16):
            a(f"ds_read_b64_tr_b16 {P(WF+4*ks)}, v42 offset:{1024*ks}\n ds_read_b64_tr_b16 {P(WF+4*ks+2)}, v42 offset:{1024*ks+128}")
        a("s_waitcnt lgkmcnt(0)")
        for ks in range(16):
            a(f"v_mfma_f32_16x16x32_bf16 v[192:195], {vr(WF+4*ks)}, v[60:63], {'0' if ks == 0 else 'v[192:195]'}")
            a(f"v_mfma_f32_16x16x32_bf16 v[196:199], v[60:63], {vr(WF+4*ks)}, {'0' if ks == 0 else 'v[196:199]'}")
        a(f"s_waitcnt vmcnt(4)\n s_branch {L2}")
        a.label(L)
        a("s_waitcnt vmcnt(0)")
        a.label(L2)
        H.ts("q")
        rs = [H.ld(f"ds_read_b128 {vr(XF+4*ks)}, v{40 + (ks & 1)} offset:{8192*(ks >> 1)}") for ks in range(16)]
        Lo, Lj = H.lab("ori"), H.lab("orj")
        a(f"s_bitcmp1_b32 s{sMEM}, 0\n s_cbranch_scc1 {Lo}")
        for ori in range(2):
            for ks in range(16):
                if ks % 2 == 0: H.wait_ld(rs[ks+1])
                X, Wf = vr(XF+4*ks), vr(WF+4*ks)
                a(f"v_mfma_f32_16x16x32_bf16 v[36:39], v[60:63], {X}, {'0' if ks == 0 else 'v[36:39]'}")
                a(f"v_mfma_f32_16x16x32_bf16 v[32:35], {X}, {X}, {'0' if ks == 0 else 'v[32:35]'}")
                a(f"v_mfma_f32_16x16x32_bf16 v[48:51], {X if ori else Wf}, {Wf if ori else X}, {'0' if ks == 0 else 'v[48:51]'}")
            if ori == 0:
                a(f"s_branch {Lj}"); a.label(Lo)
        a.label(Lj)
        a("v_mov_b32 v45, 0")
        for i in range(4):
            a(f"s_mov_b32 vcc_lo, {0x00100001 << i:#x}\n s_mov_b32 vcc_hi, {0x10000100 << i:#x}\n v_cndmask_b32 v45, v45, v{32+i}, vcc")
        a(f"""
    v_mov_b32 v44, v45
    v_permlane32_swap_b32 v44, v45
    v_add_f32 v45, v44, v45
    v_mov_b32 v44, v45
    v_permlane16_swap_b32 v44, v45
    v_add_f32 v45, v44, v45
    v_mul_f32 v44, 0x3b000000, v36
    v_mul_f32 v45, 0x3b000000, v45
    v_fma_f32 v45, -v44, v44, v45
    v_max_f32 v45, 0, v45
    v_add_f32 v45, 0x3727c5ac, v45
    v_rsq_f32 v45, v45
    s_lshl_b32 s{sT0}, s{sW}, 7
    v_lshl_add_u32 v46, v16, 3, s{sT0}
    ds_write_b64 v46, v[44:45] offset:{self.SCR}""")
        a(f"v_readfirstlane_b32 s{sTAG}, v47\n s_add_u32 s{sTAG}, s{sTAG}, 1")
        L, Lv, Lp = H.lab("nokv3"), H.lab("isv"), H.lab("pub")
        a(f"""
    s_waitcnt lgkmcnt(0)
    s_cmp_lg_u32 s{sKVW}, s{sW}
    s_cbranch_scc1 {L}
    s_lshl_b32 s{sT1}, s{sGRP}, 1
    s_lshr_b32 s{sT2}, s{sW}, 1
    s_add_u32 s{sT1}, s{sT1}, s{sT2}
    s_lshl_b32 s{sT1}, s{sT1}, 11
    s_add_u32 s{sT1}, s{sT1}, {KV:#x}             ; tile32*2048
    v_lshrrev_b32 v42, 1, v17                     ; hA
    v_and_b32 v43, 0xff, v{vD}                    ; (t or d)*16 + (g&1)*8
    s_bitcmp1_b32 s{sMEM}, 0
    s_cbranch_scc1 {Lv}""")
        a(f"s_add_u32 s{sT1}, s{sT1}, s{sORD}\n v_lshl_add_u32 v43, v42, 9, v43")
        for i in range(4): a(f"v_fma_f32 v{48+i}, -v44, v{192+i}, v{48+i}")
        for i in range(4): a(f"v_mul_f32 v{48+i}, v{48+i}, v45")
        a(f"""
    v_cvt_pk_bf16_f32 v52, v48, v49
    v_cvt_pk_bf16_f32 v53, v50, v51
    v_mov_b32 v57, 0
    buffer_store_dwordx2 v[52:53], v43, {WS}, s{sT1} offen sc1
    v_dot2_f32_bf16 v57, v52, v52, v57
    v_dot2_f32_bf16 v57, v53, v53, v57
    v_mov_b32 v58, v57
    v_permlane32_swap_b32 v57, v58
    v_add_f32 v57, v57, v58
    v_mov_b32 v58, v57
    v_permlane16_swap_b32 v57, v58
    v_add_f32 v57, v57, v58""")
        for r in (8, 4, 2, 1): a(f"v_max_f32_dpp v57, v57, v57 row_ror:{r} row_mask:0xf bank_mask:0xf")
        a(f"s_branch {Lp}")
        a.label(Lv)
        a(f"v_lshl_add_u32 v46, v17, 5, s{sT0}\n ds_read_b128 v[32:35], v46 offset:{self.SCR}\n ds_read_b128 v[36:39], v46 offset:{self.SCR+16}")
        a(f"s_lshl_b32 s{sT2}, s{sORD}, 1\n s_add_u32 s{sT1}, s{sT1}, s{sT2}\n v_lshl_add_u32 v43, v42, 8, v43\n s_waitcnt lgkmcnt(0)")
        for i in range(4): a(f"v_fma_f32 v{48+i}, -v{32+2*i}, v{196+i}, v{48+i}")
        for i in range(4): a(f"v_mul_f32 v{48+i}, v{48+i}, v{33+2*i}")
        a(f"""
    v_cvt_pk_bf16_f32 v52, v48, v49
    v_cvt_pk_bf16_f32 v53, v50, v51
    v_mov_b32 v57, 0
    buffer_store_dwordx2 v[52:53], v43, {WS}, s{sT1} offen offset:1024 sc1""")
        a.label(Lp)
        a(f"""
    v_mov_b32 v56, s{sTAG}
    v_mov_b32 v58, s{sXCC}
    v_mov_b32 v59, s{sTAG}
    s_lshl_b32 s{sT0}, s{sGRP}, 3
    s_add_u32 s{sT0}, s{sT0}, s{sMEM}
    s_lshl_b32 s{sT0}, s{sT0}, 7
    s_add_u32 s{sT0}, s{sT0}, {KFLAG:#x}""")
        a.label(L)
        H.ts("q")
        H.bar()
        L = H.lab("nokv4")
        a(f"""
    s_cmp_lg_u32 s{sKVW}, s{sW}
    s_cbranch_scc1 {L}
    s_waitcnt vmcnt(0)
    s_mov_b64 exec, 1
    buffer_store_dwordx4 v[56:59], v7, {WS}, s{sT0} offen sc1
    s_mov_b64 exec, -1""")
        a.label(L)
        a("s_setprio 0")
        self.prep_setup(H, 200, HI)
        a(f"v_lshlrev_b32 v{self.TA}, 7, v{vLANE}\n v_and_b32 v46, 0xfff, v{self.TA}\n s_lshr_b32 s{sRND}, s{sGRP}, 2")
        L = H.lab("nopoll")
        a(f"s_cmp_lg_u32 s{sW}, 0\n s_cbranch_scc1 {L}")
        self.kpoll(46, True)
        a(f"s_lshl_b32 s{sW4}, s{sRND}, 14\n s_add_u32 s{sW4}, s{sW4}, {KV:#x}")
        for i in range(4):
            a(f"s_mov_b32 m0, {4096*i}\n s_nop 0")
            for k in range(4): a(f"buffer_load_dwordx4 v{vL16}, {WS}, s{sW4} offen offset:{1024*k} sc1 lds")
            a(f"s_add_u32 s{sW4}, s{sW4}, 4096")
        a(f"""
    s_and_b32 s{sT0}, s{sGRP}, 3
    s_lshl_b32 s{sT0}, s{sT0}, 3
    s_lshl_b32 s{sT0}, 0xff, s{sT0}
    v_cmp_ne_u32 vcc, s{sXCC}, v50
    s_and_b32 s{sT0}, s{sT0}, vcc_lo
    s_cselect_b64 s[{sSLOW}:{sSLOW+1}], -1, 0""")
        for r in (8, 4, 2, 1): a(f"v_max_f32_dpp v49, v49, v49 row_ror:{r} row_mask:0xf bank_mask:0xf")
        a(f"""
    v_mov_b32 v50, v49
    v_permlane16_swap_b32 v49, v50
    v_max_f32 v49, v49, v50
    v_sqrt_f32 v49, v49
    v_mov_b32 v51, s{sSLOW}
    v_mul_f32 v50, -1.0, v49
    v_mov_b32 v46, {self.SCR + 512}
    ds_write_b64 v46, v[50:51]
    s_waitcnt lgkmcnt(0)""")
        a.label(L)
        a(f"s_add_u32 s{sRND}, s{sRND}, 1\n s_and_b32 s{sRND}, s{sRND}, 7")
        self.nkv = 1
        H.ts("q")
        H.bar()
        a(f"v_mov_b32 v46, {self.SCR + 512}\n ds_read_b64 v[50:51], v46\n s_waitcnt lgkmcnt(0)\n v_readfirstlane_b32 s{sSLOW}, v51\n s_mov_b32 s{sSLOW+1}, s{sSLOW}")
        self.sync_check()
    TA = 18
    def kpoll(self, va, first=False):
        H = self.H; a = H.a; L = H.lab("kp")
        a(f"s_lshl_b32 s{sT0}, s{sRND}, 12\n s_add_u32 s{sT0}, s{sT0}, {KFLAG:#x}\n s_mov_b32 s{sCNT}, 0")
        a.label(L)
        a(f"""
    buffer_load_dwordx4 v[48:51], v{va}, {WS}, s{sT0} offen sc1
    s_add_u32 s{sCNT}, s{sCNT}, 1
    s_cmp_gt_u32 s{sCNT}, {SPIN}
    s_cbranch_scc1 main_exit
    s_waitcnt vmcnt(0)
    v_cmp_ne_u32 vcc, s{sTAG}, v48
    v_cmp_ne_u32 s[36:37], s{sTAG}, v51
    s_or_b64 vcc, vcc, s[36:37]
    s_cbranch_vccnz {L}""")
    nkv = 0
    def kv(self, n):
        H = self.H
        for r in range(n):
            H.a(f"""
    s_lshl_b32 s{sW4}, s{sRND}, 14
    s_lshl_b32 s{sPL}, s{sW}, 12
    s_add_u32 s{sW4}, s{sW4}, s{sPL}
    s_add_u32 s{sW4}, s{sW4}, {KV:#x}
    s_add_u32 m0, s{sPL}, {16384*self.nkv}
    s_add_u32 s{sRND}, s{sRND}, 1
    s_and_b32 s{sRND}, s{sRND}, 7""")
            self.nkv += 1
            for i in range(4): self.kvseq = H.vm(f"buffer_load_dwordx4 v{vL16}, {WS}, s{sW4} offen offset:{1024*i} sc1 lds")

    PV = 20
    def prep_setup(self, S, v, win=20480):
        a = S.a
        T0, T1, T2, T3 = sT0, sT1, sT2, sT3
        def dst(i, base): a(f"s_lshl_b32 s{sPD+i}, s{T2}, 10\n s_lshl_b32 s{T3}, s{sW}, 8\n s_add_u32 s{sPD+i}, s{sPD+i}, s{T3}\n s_add_u32 s{sPD+i}, s{sPD+i}, {base:#x}")
        def std(q, i, base, rows=True):
            a(f"""
    s_lshr_b32 s{T1}, s{q}, 3
    s_and_b32 s{T2}, s{q}, 7
    s_lshl_b32 s{sPS+i}, s{T1}, 15
    s_lshl_b32 s{T3}, s{T2}, 7
    s_add_u32 s{sPS+i}, s{sPS+i}, s{T3}""")
            if rows: a(f"s_lshl_b32 s{T3}, s{sW}, 13\n s_add_u32 s{sPS+i}, s{sPS+i}, s{T3}")
            if base is not None:
                a(f"s_lshl_b32 s{T2}, s{T2}, 6\n s_add_u32 s{T2}, s{T2}, s{T1}"); dst(i, base)
        def w4t(q, i, vd):
            std(q, i, None)
            a(f"""
    s_mul_i32 s{T2}, s{T2}, 56
    s_add_u32 s{T2}, s{T2}, s{T1}
    s_lshl_b32 s{T2}, s{T2}, 2
    s_mul_i32 s{T1}, s{T1}, 9363
    s_lshr_b32 s{T1}, s{T1}, 16
    v_subrev_u32 v{vd}, s{T1}, v{v+9}
    v_and_b32 v{vd}, 3, v{vd}
    v_lshl_add_u32 v{vd}, v{vd}, 10, v{v+10}""")
            dst(i, W4)
        def w3t(q, i):
            a(f"""
    s_mul_i32 s{T1}, s{q}, 2341
    s_lshr_b32 s{T1}, s{T1}, 16                   ; ks = q/28
    s_mul_i32 s{T2}, s{T1}, 28
    s_sub_u32 s{T2}, s{q}, s{T2}                  ; nb
    s_lshl_b32 s{T3}, s{T1}, 2
    s_add_u32 s{T3}, s{T3}, s{sW}
    s_mul_i32 s{sPS+i}, s{T3}, {8*3584}
    s_lshl_b32 s{T3}, s{T2}, 7
    s_add_u32 s{sPS+i}, s{sPS+i}, s{T3}
    s_lshl_b32 s{T2}, s{T2}, 6
    s_add_u32 s{T2}, s{T2}, s{T1}""")
            dst(i, W3)
        a(f"""
    v_lshrrev_b32 v{v+9}, 4, v{vLANE}             ; q
    v_and_b32 v{v+10}, 0xff, v{vL16}              ; i*16
    v_lshl_add_u32 v{v+4}, v{v+9}, 14, v{v+10}
    v_lshrrev_b32 v{v+7}, 3, v{vLANE}
    v_and_b32 v{v+8}, 0x7f, v{vL16}
    v_lshl_add_u32 v{v}, v{v+7}, 10, v{v+8}
    v_mul_u32_u24 v{v+1}, 3584, v{v+7}
    v_add_u32 v{v+1}, v{v+1}, v{v+8}""")
        w3t(2, 0); w4t(2, 1, v+5)
        L, Le = S.lab("pwo"), S.lab("pend")
        a(f"s_cmp_ge_u32 s2, 192\n s_cbranch_scc1 {L}\n s_add_u32 s{T0}, s2, 256")
        w3t(T0, 2); w4t(T0, 3, v+6)
        a(f"v_mov_b32 v{v+2}, v{v+1}\n v_mov_b32 v{v+3}, v{v}\n s_branch {Le}")
        a.label(L)
        a(f"s_sub_u32 s{T0}, s2, 192"); std(T0, 2, WO, rows=False)
        a(f"s_sub_u32 s{T0}, s2, 128"); std(T0, 3, WO, rows=False)
        a(f"""
    s_lshr_b32 s{T1}, s{sW}, 1
    s_lshl_b32 s{T1}, s{T1}, 4
    s_and_b32 s{T2}, s{sW}, 1
    s_lshl_b32 s{T2}, s{T2}, 2
    s_add_u32 s{T1}, s{T1}, s{T2}
    v_and_b32 v{v+2}, 4, v{v+7}
    v_add3_u32 v{v+2}, v{v+2}, v{v+7}, s{T1}
    v_lshl_add_u32 v{v+2}, v{v+2}, 10, v{v+8}
    v_mov_b32 v{v+3}, v{v+2}
    v_mov_b32 v{v+6}, v{v+4}""")
        a.label(Le)
        a(f"s_and_b32 s{T0}, s2, 127"); std(T0, 4, W1)
        a(f"""
    s_lshr_b32 s{T0}, s2, 7
    s_lshl_b32 s{T0}, s{T0}, 19
    s_add_u32 s{sPD+4}, s{sPD+4}, s{T0}
    s_mul_i32 s{T0}, s{sW}, 5120
    s_add_u32 s{T0}, s{T0}, {win}
    v_add_u32 v{v+7}, s{T0}, v{vL16}
    v_bfe_u32 v{v+8}, v{vLANE}, 2, 2
    v_lshlrev_b32 v{v+8}, 7, v{v+8}
    v_lshl_add_u32 v{v+8}, v{v+9}, 5, v{v+8}
    v_and_b32 v{v+9}, 3, v{vLANE}
    v_lshl_add_u32 v{v+8}, v{v+9}, 3, v{v+8}
    v_add_u32 v{v+8}, s{T0}, v{v+8}""")
    def prep_load(self, S, v, dst):
        a = S.a
        PR = f"s[{sPR}:{sPR+3}]"
        wo, w1, w2, w3, w4 = (f"s[{sPP+2*i}:{sPP+2*i+1}]" for i in range(5))
        big, small = 0x1c0000, 0x80000
        for i in range(5):
            if i < 2: a(f"s_mov_b64 s[{sPR}:{sPR+1}], {(w3, w4)[i]}\n s_mov_b32 s{sPR+2}, {big:#x}")
            elif i < 4:
                a(f"s_mov_b32 s{sT1}, {small:#x}\n s_cmp_ge_u32 s2, 192\n s_cselect_b64 s[{sPR}:{sPR+1}], {wo}, {(w3, w4)[i-2]}\n s_cselect_b32 s{sPR+2}, s{sT1}, {big:#x}")
            else: a(f"s_cmp_ge_u32 s2, 128\n s_cselect_b64 s[{sPR}:{sPR+1}], {w2}, {w1}\n s_mov_b32 s{sPR+2}, {small:#x}")
            a(f"s_and_b32 s{sPR+1}, s{sPR+1}, 0xffff")
            S.vm(f"buffer_load_dwordx4 {vr(dst+4*i)}, v{(v+1, v, v+2, v+3, v)[i]}, {PR}, s{sPS+i} offen")
    def prep_finish(self, S, v, d):
        for i in range(5):
            S.a(f"ds_read_b64_tr_b16 {P(d+4*i)}, v{v+8} offset:{1024*i}\n ds_read_b64_tr_b16 {P(d+4*i+2)}, v{v+8} offset:{1024*i+512}")
    def prep_store(self, S, v, d):
        S.a("s_waitcnt lgkmcnt(0)")
        for i in range(5): r = S.vm(f"buffer_store_dwordx4 {vr(d+4*i)}, v{(v+4, v+5, v+4, v+6, v+4)[i]}, {WS}, s{sPD+i} offen sc1")
        return r

    hXT, hACC, hBP = 8, 16, 32
    hRES, hSTAT, hCS1, hR1, hTMP, hCS3, hX = 64, 80, 96, 100, 104, 112, 120
    UB = tuple(int(x) for x in os.environ.get('UB', '28,72,86,98,104').split(','))
    UBK = int(os.environ.get('UBK', '12'))
    def attention(self):
        C, H = self.C, self.H; a = C.a
        S0, S1, NEGM, OA, OB, QA, QB, vIDX, vKA, vVA = self.S0, self.S1, self.NEGM, self.OA, self.OB, self.QA, self.QB, self.vIDX, self.vKA, self.vVA
        kf = lambda t: self.KVR + 12*(t & 1)
        C.ts("at"); C.bar(); C.ts("at")
        a("s_setprio 1")
        def rdK(t): a(f"ds_read_b128 {vr(kf(t))}, v{vKA} offset:{(t&31)*2048}")
        def rdV(t):
            a(f"s_mov_b64 exec, {sVM}")
            a(f"ds_read_b128 {vr(kf(t)+4)}, v{vVA} offset:{(t&31)*2048+1024}")
            a(f"ds_read_b128 {vr(kf(t)+8)}, v{vVA} offset:{(t&31)*2048+1536}")
            a("s_mov_b64 exec, -1")
        def qk(u): a(f"v_mfma_f32_32x32x16_bf16 {vr((S0,S1)[u&1],16)}, {vr(kf(u>>1))}, {vr((QA,QB)[u&1])}, {vr(NEGM,16)}")
        def pv(u, h): a(f"v_smfmac_f32_32x32x32_bf16 {vr((OA,OB)[u&1],16)}, {vr(kf(u>>1)+4+4*h)}, {vr((S0,S1)[u&1]+8*h,8)}, v{vIDX}")
        def ex(u, lo, hi):
            for i in range(lo, hi): a(f"v_exp_f32 v{(S0,S1)[u&1]+i}, v{(S0,S1)[u&1]+i}")
        x = self.cT
        a(f"s_lshl_b32 s{sT0}, s{sW}, 13\n s_add_u32 s{sT0}, s{sT0}, {HI}\n v_add_u32 v{x}, s{sT0}, v{vL16}\n s_lshl_b32 s{sT0}, s{sW}, 14\n v_add_u32 v{x+1}, s{sT0}, v{vL16}")
        plan = {}
        for ub, f0, n, va in ((self.UB[1], 0, 8, x), (self.UB[2], 8, 16, x+1), (self.UB[3], 24, 8, x)):
            for i in range(n): plan.setdefault(ub + 1 + 2*(i // 4), []).append(f"ds_read_b128 {vr(128+4*(f0+i))}, v{va} offset:{1024*i}")
        rdK(0); rdV(0); rdK(1)
        a("s_waitcnt lgkmcnt(3)")
        qk(0)
        for u in range(128):
            t, q = u >> 1, u & 1
            if u % 8 == 0: C.ts("at")
            ex(u, 0, 2)
            if u > 0: pv(u-1, 1)
            ex(u, 2, 5)
            if u + 1 < 128: qk(u+1)
            if u in self.UB or u == self.UBK: C.bar()
            if q == 0:
                if t + 1 < 64:
                    if t + 1 == 32: a(f"v_add_u32 v{vVA}, 0x10000, v{vVA}")
                    rdV(t+1)
                if t + 2 < 64:
                    if t + 2 == 32: a(f"v_add_u32 v{vKA}, 0x10000, v{vKA}")
                    rdK(t+2)
            for y in plan.pop(u, []): a(y)
            ex(u, 5, 10)
            if q == 0: a(f"s_waitcnt lgkmcnt({3 if t + 2 < 64 else (2 if t + 1 < 64 else 0)})")
            pv(u, 0)
            ex(u, 10, 16)
        assert not plan
        pv(127, 1)
        C.ts(); C.ts("at")
        t = self.cT
        a(f"""
    v_lshrrev_b32 v{t+1}, 5, v{vLANE}
    v_lshlrev_b32 v{t+1}, 10, v{t+1}
    v_and_b32 v{t+2}, 31, v{vLANE}
    v_lshl_add_u32 v{t+4}, v{t+2}, 4, v{t+1}""")
        C.tile_soff(sT1, O_)
        a(f"v_min_f32 v{t}, v{OA+8}, v{OB+8}\n v_max_f32 v{t+1}, v{OA+8}, v{OB+8}\n v_cmp_nle_f32 vcc, {f32(2.0**-80)}, v{t}\n s_mov_b32 s{sT2}, vcc_lo\n v_cmp_nge_f32 vcc, {f32(2.0**80)}, v{t+1}\n s_or_b32 s{sT2}, s{sT2}, vcc_lo\n s_cbranch_scc1 attn_redo")
        a.label("attn_done")
        a(f"v_mov_b32 v{OA+9}, v{OA+8}\n v_mov_b32 v{OB+9}, v{OB+8}\n v_permlane32_swap_b32 v{OA+8}, v{OA+9}\n v_permlane32_swap_b32 v{OB+8}, v{OB+9}")
        a(f"v_rcp_f32 v{t+2}, v{OA+8}\n v_rcp_f32 v{t+6}, v{OB+8}")
        for o, r in ((OA, t+2), (OB, t+6)):
            for i in range(4): a(f"v_pk_mul_f32 {P(o+2*i)}, {P(o+2*i)}, {P(r)} op_sel_hi:[1,0]")
            for i in range(4): a(f"v_cvt_pk_bf16_f32 v{o+i}, v{o+2*i}, v{o+2*i+1}")
        C.setvcc()
        C.cstore([f"buffer_store_dwordx4 {vr(OA)}, v{t+4}, {WS}, s{sT1} offen", f"buffer_store_dwordx4 {vr(OB)}, v{t+4}, {WS}, s{sT1} offen offset:512"])
        a("s_setprio 0")
        C.set_act(O_)
        a(f"v_and_b32 v{self.cF}, 31, v{vLANE}\n v_lshlrev_b32 v{self.cF}, 2, v{self.cF}")
        C.flag(0, t)
        C.ts()
        a = H.a; v = self.PV; d = v + 8
        CW = v + 7
        a(f"v_mov_b32 v{CW}, {HI + 32752}\n v_mov_b32 v6, 0\n ds_write_b64 v{CW}, v[6:7]\n ds_write_b32 v{CW}, v6 offset:8\n s_waitcnt lgkmcnt(0)")
        a("s_waitcnt vmcnt(0)"); H.bar()
        TA, TD = self.TA, 19
        def spin(n, off=0):
            L = H.lab("hs")
            a(f"s_mov_b32 s{sCNT}, 0")
            a.label(L)
            a(f"""
    s_sleep 1
    ds_read_b32 v6, v{CW} offset:{off}
    s_add_u32 s{sCNT}, s{sCNT}, 1
    s_cmp_gt_u32 s{sCNT}, {SPIN*16}
    s_cbranch_scc1 main_exit
    s_waitcnt lgkmcnt(0)
    v_cmp_gt_u32 vcc, {n}, v6
    s_cbranch_vccnz {L}""")
        def count(off=0): a(f"v_mov_b32 v6, 1\n s_mov_b64 exec, 1\n ds_add_u32 v{CW}, v6 offset:{off}\n s_mov_b64 exec, -1")
        def pub():
            L = H.lab("nopf")
            a(f"s_cmp_lg_u32 s{sW}, 3\n s_cbranch_scc1 {L}")
            a(f"""
    s_lshl_b32 s{sT0}, s2, 7
    s_add_u32 s{sT0}, s{sT0}, {PFLAG:#x}
    v_mov_b32 v6, 1
    s_mov_b64 exec, 1
    buffer_store_dword v6, v7, {WS}, s{sT0} offen sc1
    s_mov_b64 exec, -1""")
            a.label(L)
        def kall():
            L = H.lab("kall")
            a(f"s_mov_b32 s{sCNT}, 0\n s_lshl_b32 s{sT0}, s{sW}, 13\n s_add_u32 s{sT0}, s{sT0}, {KFLAG:#x}")
            a.label(L)
            a(f"""
    buffer_load_dword v48, v{TA}, {WS}, s{sT0} offen sc1
    s_add_u32 s{sCNT}, s{sCNT}, 1
    s_cmp_gt_u32 s{sCNT}, {SPIN}
    s_cbranch_scc1 main_exit
    s_waitcnt vmcnt(0)
    v_cmp_ne_u32 vcc, s{sTAG}, v48
    s_mov_b64 exec, vcc
    s_cbranch_vccnz {L}
    s_mov_b64 exec, -1""")
            count(8); spin(4, 8)
        a(f"v_and_b32 v46, 0xfff, v{TA}")
        self.prep_finish(H, 200, 224)
        self.kpoll(46); self.kv(1); k1 = self.kvseq
        self.prep_store(H, 200, 224)
        H.wait_vm(k1); H.bar()
        kall(); pub()
        self.kv(6)
        H.wait_vm(self.kvseq); H.ts("h"); H.bar()
        def code_touch():
            L = H.lab("pc")
            a(f"s_getpc_b64 s[36:37]")
            a.label(L)
            a(f"""
    s_sub_u32 s36, s36, {L}-main_kernel
    s_subb_u32 s37, s37, 0
    s_and_b32 s{sT1}, s{sGRP}, 3
    s_lshl_b32 s{sT1}, s{sT1}, 5
    s_add_u32 s{sT1}, s{sT1}, s{sNT}
    s_lshl_b32 s{sT1}, s{sT1}, 9
    v_and_b32 v{v+2}, 0x1ff, v{TA}
    v_add_u32 v{v+2}, s{sT1}, v{v+2}
    v_min_u32 v{v+2}, main_end-main_kernel-4, v{v+2}""")
            H.vm(f"global_load_dword v{TD}, v{v+2}, s[36:37]")
        def arena_touch():
            if self.opt.get("usc1"):
                a(f"""
    s_lshl_b32 s{sTCH}, s{sNT}, 12
    s_lshl_b32 s{sT1}, s{sNT}, 8
    s_sub_u32 s{sT1}, s{sT1}, s{sTCH}
    s_add_u32 s{sT1}, s{sT1}, {ST1 - 4096}
    s_add_u32 s{sTCH}, s{sTCH}, s{sAR}
    v_mov_b32 v6, v{TA}
    s_mov_b32 exec_lo, 0
    v_add_u32 v6, s{sT1}, v6
    s_mov_b32 exec_lo, -1
    s_mov_b32 exec_hi, 3""")
                H.vm(f"buffer_load_dword v{TD}, v6, {WS}, s{sTCH} offen")
                a("s_mov_b64 exec, -1")
                return
            a(f"s_mul_i32 s{sTCH}, s{sNT}, {TOUCHN*128}\n s_add_u32 s{sTCH}, s{sTCH}, s{sAR}\n s_add_u32 s{sTCH}, s{sTCH}, {TOUCH0:#x}")
            H.vm(f"buffer_load_dword v{TD}, v{TA}, {WS}, s{sTCH} offen")
            a(f"s_mov_b32 exec_lo, 0x7ff\n s_mov_b32 exec_hi, 0\n s_add_u32 s{sTCH}, s{sTCH}, 8192")
            H.vm(f"buffer_load_dword v{TD}, v{TA}, {WS}, s{sTCH} offen")
            a("s_mov_b64 exec, -1")
        hi = f"s_lshl_b32 s{sPL}, s{sW}, 13\n s_add_u32 s{sPL}, s{sPL}, {HI}"
        lo = f"s_lshl_b32 s{sPL}, s{sW}, 14"
        F = lambda *x, **k: H.run(H.frags(*x, **k))
        code_touch()
        AP = self.opt.get("ap", "none")
        if AP == "pre": arena_touch()
        L0 = H.lab("pchk")
        a(f"s_lshl_b32 s{sPS}, s{sW}, 13\n s_add_u32 s{sPS}, s{sPS}, {PFLAG:#x}\n s_mov_b32 s{sCNT}, 0")
        a.label(L0)
        a(f"""
    buffer_load_dword v{d}, v{TA}, {WS}, s{sPS} offen sc1
    s_add_u32 s{sCNT}, s{sCNT}, 1
    s_cmp_gt_u32 s{sCNT}, {SPIN}
    s_cbranch_scc1 main_exit
    s_waitcnt vmcnt(0)
    v_cmp_ne_u32 vcc, 1, v{d}
    s_mov_b64 exec, vcc
    s_sleep 2
    s_cbranch_vccnz {L0}
    s_mov_b64 exec, -1""")
        count(4); spin(4, 4); count(4)
        L = H.lab("notag")
        a(f"""
    s_or_b32 s{sT0}, s2, s{sW}
    s_cmp_lg_u32 s{sT0}, 0
    s_cbranch_scc1 {L}
    v_mov_b32 v6, s{sTAG}
    s_mov_b32 s{sT0}, {TAGW:#x}
    s_mov_b64 exec, 1
    buffer_store_dword v6, v7, {WS}, s{sT0} offen sc1
    s_mov_b64 exec, -1""")
        a.label(L)
        H.ts("h")
        for base, reg in ((WO, 64), (W1, 128), (W2, 192)):
            H.set_wbase(base, 16, sW4); F(16, sW4, dst=V(reg))
        L = H.lab("ack")
        a(f"s_cmp_lg_u32 s{sW}, 3\n s_cbranch_scc1 {L}")
        spin(8, 4)
        a.label(L)
        H.set_w3(0); a(hi)
        F(8, sPF, lds=sPL); r1 = H.lastf
        code_touch()
        H.xo_soff(sT1)
        for jt in range(4):
            H.vm(f"buffer_load_dwordx2 {P(self.hXT+2*jt)}, v{vXO}, {XS}, s{sT1} offen")
            if jt < 3: a(f"s_add_u32 s{sT1}, s{sT1}, 16384")
        a(f"s_and_b32 s{sT1}, s{sGRP}, 3\n s_mul_i32 s{sT1}, s{sT1}, 6144\n s_add_u32 s{sTCH}, s{sPF}, s{sT1}\n s_mov_b32 exec_hi, 0xffff")
        H.vm(f"buffer_load_dword v{TD}, v{TA}, {WS}, s{sTCH} offen")
        a("s_mov_b64 exec, -1")
        if AP == "mid": arena_touch()
        H.wait_vm(r1); H.ts("h"); H.bar()
        a(lo); F(16, sPF, lds=sPL); r2 = H.lastf
        code_touch()
        a(f"""
    s_and_b32 s{sT1}, s{sGRP}, 3
    s_lshl_b32 s{sTCH}, s{sT1}, 5
    s_add_u32 s{sTCH}, s{sTCH}, s{sNT}
    s_mul_i32 s{sTCH}, s{sTCH}, 14336
    s_add_u32 s{sTCH}, s{sTCH}, {W4:#x}""")
        H.vm(f"buffer_load_dword v{TD}, v{TA}, {WS}, s{sTCH} offen")
        H.wait_vm(r2); H.ts("h"); H.bar()
        a(hi); F(8, sPF, lds=sPL); r3 = H.lastf
        a(f"s_add_u32 s{sTCH}, s{sTCH}, 6144")
        H.vm(f"buffer_load_dword v{TD}, v{TA}, {WS}, s{sTCH} offen")
        H.wait_vm(r3); H.ts("h"); H.bar()
        H.bar()
        a(lo); F(16, sPF, lds=sPL)
        H.set_w3(3)
        a(f"s_lshl_b32 s{sT5}, s{sORD}, 5\n s_add_u32 s{sPF}, s{sPF}, s{sT5}"); a(hi)
        F(8, sPF, lds=sPL)
        arena_touch()
        code_touch()
        a("s_waitcnt vmcnt(0)")
        H.setvcc()
        H.tile_soff(sT4, H_)
        a("s_setprio 1")
        H.ts("h")
        self.sync_check()

    def fallback(self):
        C = self.C; a = C.a; t = self.cT
        S0, NEGM, KF, VF, vVA, vIDX = self.S0, self.NEGM, self.KVR, self.KVR+4, self.vVA, self.vIDX
        a.label("attn_redo")
        a(f"v_and_b32 v{vVA}, 0x3ff, v{vVA}")
        for (Q, O) in ((self.QA, self.OA), (self.QB, self.OB)):
            L1, L2 = C.lab("fb1"), C.lab("fb2")
            a(f"v_mov_b32 v{t}, 0xff800000\n s_mov_b32 s{sT2}, {KV:#x}")
            a.label(L1)
            a(f"""
    buffer_load_dwordx4 {vr(KF)}, v{vL16}, {WS}, s{sT2} offen sc1
    s_add_u32 s{sT2}, s{sT2}, 2048
    s_waitcnt vmcnt(0)
    v_mfma_f32_32x32x16_bf16 {vr(S0,16)}, {vr(KF)}, {vr(Q)}, 0""")
            for i in range(8): a(f"v_max3_f32 v{t}, v{t}, v{S0+2*i}, v{S0+2*i+1}")
            a(f"""
    s_cmp_lt_u32 s{sT2}, {KV+131072:#x}
    s_cbranch_scc1 {L1}
    v_mov_b32 v{t+1}, v{t}
    v_permlane32_swap_b32 v{t}, v{t+1}
    v_max_f32 v{t}, v{t}, v{t+1}
    v_sub_f32 v{t}, 0, v{t}""")
            for i in range(16): a(f"v_mov_b32 v{NEGM+i}, v{t}")
            for i in range(16): a(f"v_mov_b32 v{O+i}, 0")
            a(f"s_mov_b32 s{sT2}, {KV:#x}")
            a.label(L2)
            a(f"""
    buffer_load_dwordx4 {vr(KF)}, v{vL16}, {WS}, s{sT2} offen sc1
    s_mov_b64 exec, {sVM}
    buffer_load_dwordx4 {vr(VF)}, v{vVA}, {WS}, s{sT2} offen offset:1024 sc1
    buffer_load_dwordx4 {vr(VF+4)}, v{vVA}, {WS}, s{sT2} offen offset:1536 sc1
    s_mov_b64 exec, -1
    s_add_u32 s{sT2}, s{sT2}, 2048
    s_waitcnt vmcnt(0)
    v_mfma_f32_32x32x16_bf16 {vr(S0,16)}, {vr(KF)}, {vr(Q)}, {vr(NEGM,16)}""")
            for i in range(16): a(f"v_exp_f32 v{S0+i}, v{S0+i}")
            a(f"""
    v_smfmac_f32_32x32x32_bf16 {vr(O,16)}, {vr(VF)}, {vr(S0,8)}, v{vIDX}
    v_smfmac_f32_32x32x32_bf16 {vr(O,16)}, {vr(VF+4)}, {vr(S0+8,8)}, v{vIDX}
    s_nop 15
    s_cmp_lt_u32 s{sT2}, {KV+131072:#x}
    s_cbranch_scc1 {L2}""")
        a("s_nop 15\n s_branch attn_done")

    cF, cP = 120, 122
    cACC, cBP, cSTAT, cCS3, cTMP, cOUT = 16, 48, 80, 96, 104, 112
    def prod_stats(self, vals):
        H = self.H; a = H.a; t = self.hTMP; x = self.hBP
        for jt in range(4): a(f"v_pk_add_f32 {P(x+2*jt)}, {P(vals+4*jt)}, {P(vals+4*jt+2)}")
        for jt in range(4): a(f"v_pk_mul_f32 {P(x+8+2*jt)}, {P(vals+4*jt)}, {P(vals+4*jt)}")
        for jt in range(4): a(f"v_pk_fma_f32 {P(x+8+2*jt)}, {P(vals+4*jt+2)}, {P(vals+4*jt+2)}, {P(x+8+2*jt)}")
        for jt in range(8): a(f"v_add_f32 v{t+jt}, v{x+2*jt}, v{x+2*jt+1}")
        a(f"""
    s_lshl_b32 s{sT5}, s{sW}, 10
    s_add_u32 s{sT5}, s{sT5}, {XST}
    v_permlane32_swap_b32 v{t}, v{t+2}
    v_permlane32_swap_b32 v{t+1}, v{t+3}
    v_permlane32_swap_b32 v{t+4}, v{t+6}
    v_permlane32_swap_b32 v{t+5}, v{t+7}
    v_pk_add_f32 {P(t)}, {P(t)}, {P(t+2)}
    v_pk_add_f32 {P(t+4)}, {P(t+4)}, {P(t+6)}
    v_lshl_add_u32 v{x}, v{vLANE}, 3, s{sT5}
    v_permlane16_swap_b32 v{t}, v{t+1}
    v_permlane16_swap_b32 v{t+4}, v{t+5}
    v_add_f32 v{t}, v{t}, v{t+1}
    v_add_f32 v{t+1}, v{t+4}, v{t+5}
    ds_write_b64 v{x}, {P(t)}""")
    def stat_publish(self, base):
        C = self.C; a = C.a; t = self.cTMP; x = self.cT
        a(f"""
    v_lshlrev_b32 v{x}, 3, v{vLANE}
    v_add_u32 v{x}, {XST}, v{x}
    s_lshl_b32 s{sT2}, s{sMEM}, 3
    s_add_u32 s{sT2}, s{sT2}, s{sAR}
    s_add_u32 s{sT2}, s{sT2}, {base:#x}
    v_lshlrev_b32 v{x+1}, 6, v{vLANE}
    s_lshl_b32 s{sT5}, s{sW}, 4
    s_lshl_b64 s[36:37], 0xffff, s{sT5}""")
        C.bar()
        for p in range(4): a(f"ds_read_b64 {P(t+2*p)}, v{x} offset:{1024*p}")
        def fin():
            a(f"""
    s_waitcnt lgkmcnt(0)
    v_pk_add_f32 {P(t)}, {P(t)}, {P(t+2)}
    v_pk_add_f32 {P(t+4)}, {P(t+4)}, {P(t+6)}
    v_pk_add_f32 {P(t)}, {P(t)}, {P(t+4)}
    s_mov_b64 exec, s[36:37]""")
            C.cstore([f"buffer_store_dwordx2 {P(t)}, v{x+1}, {WS}, s{sT2} offen"], nt=False)
            a("s_mov_b64 exec, -1")
        self.pubfin = fin
    def cons_stats(self, gbase, scr, double):
        C = self.C; a = C.a; x = self.cT; o = self.cSTAT; S = o + 8
        st = {}
        ltxt = f"buffer_load_dwordx4 {vr(o)}, v{x+1}, {WS}, s{sT1} offen sc1"
        def load():
            a(f"""
    s_lshl_b32 s{sT1}, s{sW}, 10
    s_add_u32 s{sT1}, s{sT1}, s{sAR}
    s_add_u32 s{sT1}, s{sT1}, {gbase:#x}
    v_and_b32 v{x+3}, 0xff, v{vL16}
    v_and_b32 v{x+1}, 0x30, v{vLANE}
    v_lshl_add_u32 v{x+1}, v{x+3}, 2, v{x+1}
    s_lshl_b32 s{sT5}, s{sW}, 8
    s_add_u32 s{sT5}, s{sT5}, {scr}
    v_add_u32 v{x+2}, s{sT5}, v{x+3}""")
            st['g'] = C.vm(ltxt)
        def check():
            L0, Lr, L2 = C.lab("schk"), C.lab("sre"), C.lab("sok")
            C.wait_vm(st['g'])
            a.label(L0)
            a(f"v_max_u32 v{o+4}, v{o+1}, v{o+3}\n v_cmp_eq_u32 vcc, -1, v{o+4}\n s_cbranch_vccnz {Lr}")
            a.label(L2)
            C.ool.append((Lr, [f"s_add_u32 s{sCNT}, s{sCNT}, 1", f"s_cmp_gt_u32 s{sCNT}, {SPIN}", f"s_cbranch_scc1 {L2}",
                               ltxt, "s_waitcnt vmcnt(0)", f"s_branch {L0}"]))
            C.setvcc()
        txt = f"""
    v_add_f32 v{o}, v{o}, v{o+2}
    v_add_f32 v{o+1}, v{o+1}, v{o+3}
    v_permlane32_swap_b32 v{o}, v{o+1}
    v_add_f32 v{o}, v{o}, v{o+1}
    v_mov_b32 v{o+1}, v{o}
    v_permlane16_swap_b32 v{o}, v{o+1}
    v_add_f32 v{o}, v{o}, v{o+1}
    v_mul_f32 v{o}, 0x3b000000, v{o}
    v_mov_b32 v{o+1}, v{o}
    v_permlane32_swap_b32 v{o}, v{o+1}
    v_mov_b32 v{S}, v{o}
    v_fma_f32 v{o+1}, -v{o}, v{o}, v{o+1}
    v_max_f32 v{o+1}, 0, v{o+1}
    v_add_f32 v{o+2}, 0x3727c5ac, v{o+1}
    v_rsq_f32 v{o+3}, v{o+2}"""
        R = o+3
        if double:
            txt += f"""
    v_mul_f32 v{o+4}, v{o+3}, v{o+3}
    ds_write_b32 v{x+2}, v{o+3} offset:1024
    v_mul_f32 v{o+4}, v{o+4}, v{o+1}
    v_add_f32 v{o+4}, 0x3727c5ac, v{o+4}
    v_rsq_f32 v{o+4}, v{o+4}
    v_mul_f32 v{o+5}, v{o+3}, v{o+4}"""
            R = o+5
        txt += f"""
    v_rcp_f32 v{S+1}, v{R}
    v_mul_f32 v{S+2}, {f32(GC1)}, v{R}
    v_mul_f32 v{o+6}, v{R}, v{R}
    v_mul_f32 v{o+6}, {f32(0.044715)}, v{o+6}
    v_mul_f32 v{S+3}, v{S+2}, v{o+6}
    ds_write_b128 v{x+2}, {vr(S)}"""
        comp = [check]
        for y in txt.split("\n"):
            y = y.strip()
            if not y: continue
            if y.startswith("ds_"): comp.append(lambda y=y: setattr(C, 'wseq', C.ld(y)))
            else: comp.append(lambda y=y: a(y))
        return load, comp
    def tile_store(self, jt):
        return f"buffer_store_dwordx2 {P(self.hXT+2*jt)}, v{vD}, {WS}, s{sT4} offen offset:{256*jt}"
    def add_pack(self, jt, src):
        a = self.H.a; A_ = self.hACC
        for h in (0, 2): a(f"v_pk_add_f32 {P(A_+4*jt+h)}, {P(A_+4*jt+h)}, {P(src+h)}")
        for h in (0, 1): a(f"v_cvt_pk_bf16_f32 v{self.hXT+2*jt+h}, v{A_+4*jt+2*h}, v{A_+4*jt+2*h+1}")

    def s3(self):
        self.C.mark(); self.H.mark()
        C, H = self.C, self.H
        C.colsum(V(128), self.cCS3, self.cOUT)
        C.poll(0, self.cF, self.cP, mid=[lambda: C.colsum(V(192), self.cCS3+4, self.cOUT)]); C.ts()
        def w4ref():
            C.a(f"""
    v_lshlrev_b32 v118, 7, v{vLANE}
    s_and_b32 s{sTCH}, s{sGRP}, 3
    s_lshl_b32 s{sTCH}, s{sTCH}, 5
    s_add_u32 s{sTCH}, s{sTCH}, s{sNT}
    s_mul_i32 s{sTCH}, s{sTCH}, 14336
    s_add_u32 s{sTCH}, s{sTCH}, {W4:#x}""")
            C.vm(f"buffer_load_dword v119, v118, {WS}, s{sTCH} offen")
        def w4ref2():
            C.a(f"s_add_u32 s{sTCH}, s{sTCH}, 6144")
            C.vm(f"buffer_load_dword v119, v118, {WS}, s{sTCH} offen")
        C.load_gemm(C.act_issue(), side={3: [w4ref], 5: [w4ref2]} if self.opt.get('w4ref') else None, tag='s3')
        C.set_act(H_)
        self.stat_publish(ST1)
        H.cons_gemm(V(64), self.hACC, self.hBP, tag="s3"); H.ts()
        for i in range(8): H.unpack(self.hXT+i, self.hRES+2*i)
        for jt in range(4): self.add_pack(jt, self.hRES+4*jt)
        H.cstore([self.tile_store(jt) for jt in range(4)])
        self.prod_stats(self.hACC)
        for i in range(8): H.unpack(self.hXT+i, self.hRES+2*i)
        H.flag(1, 6); H.ts()
        H.a("s_waitcnt lgkmcnt(0)"); H.bar()
        self.sync_check()
    def s4(self):
        self.C.mark(); self.H.mark()
        C, H = self.C, self.H; a = H.a
        C.poll(1, self.cF, self.cP, mid=[self.pubfin]); C.ts()
        load, comp = self.cons_stats(ST1, ACT, True)
        C.load_gemm(C.act_issue(), side={-1: [load], 3: comp[:7], 4: comp[7:14], 5: comp[14:21], 6: comp[21:],
                                         (7, 'pre'): [lambda: C.wait_ld(C.wseq)]}, tag='s4')
        if self.opt.get('uref'):
            C.a(f"v_lshlrev_b32 v118, 7, v{vLANE}\n s_mul_i32 s{sTCH}, s{sNT}, {40*128}\n s_add_u32 s{sTCH}, s{sTCH}, s{sAR}\n s_add_u32 s{sTCH}, s{sTCH}, {U_ + 0x10000:#x}\n s_mov_b32 exec_hi, 0xff")
            C.vm(f"buffer_load_dword v119, v118, {WS}, s{sTCH} offen")
            C.a("s_mov_b64 exec, -1")
        H.colsum(V(128), self.hCS1, self.hX)
        H.tile_soff(sT4, T_)
        a(f"""
    v_lshrrev_b32 v6, 5, v{vLANE}
    v_lshlrev_b32 v6, 5, v6
    v_and_b32 v7, 0x1f, v{vD}
    v_add_u32 v{self.hX+4}, v6, v7                ; halo: (g>>1)*32 + (t&1)*16 + (g&1)*8
    s_lshl_b32 s{sT3}, s{sNT}, 6
    s_add_u32 s{sT3}, s{sT3}, s{sAR}
    v_and_b32 v7, 0xff, v{vL16}
    v_add_u32 v7, {ACT}, v7""")
        sr = H.stat_reads(self.hSTAT, 7, False, self.hR1)
        H.cons_gemm(V(128), self.hACC, self.hBP, side={6: sr[:4], 7: sr[4:]}, tag="s4"); H.ts()
        A_, XT, ST = self.hACC, self.hXT, self.hSTAT
        H.wait_ld(H.stseq)
        for x in H.gelu2((A_, self.hCS1, ST, XT), (A_+12, self.hCS1, ST+12, XT+6), self.hTMP, True): a(x)
        Lh, L1 = H.lab("nohalo"), H.lab("side1")
        a(f"""
    s_bitcmp1_b32 s{sMEM}, 1
    s_cbranch_scc1 {L1}
    s_cmp_eq_u32 s{sGRP}, 31
    s_cbranch_scc1 {Lh}
    s_add_u32 s{sT3}, s{sT3}, {HALO+GA:#x}
    s_mov_b32 exec_lo, 0xc000c000
    s_mov_b32 exec_hi, 0xc000c000
    buffer_store_dwordx2 {P(XT+6)}, v{self.hX+4}, {WS}, s{sT3} offen sc1
    s_branch {Lh}""")
        a.label(L1)
        a(f"""
    s_cmp_eq_u32 s{sGRP}, 0
    s_cbranch_scc1 {Lh}
    s_sub_u32 s{sT3}, s{sT3}, {GA-HALO:#x}
    s_mov_b32 exec_lo, 0x00030003
    s_mov_b32 exec_hi, 0x00030003
    buffer_store_dwordx2 {P(XT)}, v{self.hX+4}, {WS}, s{sT3} offen sc1""")
        a.label(Lh)
        a("s_mov_b64 exec, -1")
        H.cstore([self.tile_store(0), self.tile_store(3)])
        for x in H.gelu2((A_+4, self.hCS1, ST+4, XT+2), (A_+8, self.hCS1, ST+8, XT+4), self.hTMP, True): a(x)
        H.cstore([self.tile_store(1), self.tile_store(2)])
        H.flag(2, 6); H.ts()
        self.sync_check()
    def s5(self):
        self.C.mark(); self.H.mark()
        C, H = self.C, self.H; a = C.a; x = self.cT; T = self.cTMP
        C.set_act(T_)
        a(f"""
    s_lshl_b32 s{sT1}, s{sW}, 9
    s_add_u32 s{sT1}, s{sT1}, s{sAR}
    s_add_u32 s{sT1}, s{sT1}, {HALO:#x}
    v_and_b32 v{x+2}, 0x1ff, v{vL16}
    s_cmp_eq_u32 s{sW}, 0
    s_cselect_b32 s{sT3}, -16, 0
    s_cselect_b32 s{sT4}, 0xaaaaaaaa, -1
    s_cmp_eq_u32 s{sW}, 1
    s_cselect_b32 s{sT3}, {63*16}, s{sT3}
    s_cselect_b32 s{sT4}, 0x55555555, s{sT4}
    s_cmp_eq_u32 s{sW}, 3
    s_cselect_b32 s{sT3}, {62*16}, s{sT3}
    s_lshl_b32 s{sT2}, s{sW}, 14
    s_add_u32 s{sT3}, s{sT3}, s{sT2}
    s_add_u32 s{sT3}, s{sT3}, {ACT}
    v_lshrrev_b32 v{x+1}, 1, v{vLANE}
    v_lshlrev_b32 v{x+1}, 10, v{x+1}
    v_and_b32 v{x+3}, 1, v{vLANE}
    v_lshl_add_u32 v{x+1}, v{x+3}, 4, v{x+1}
    v_add_u32 v{x+1}, s{sT3}, v{x+1}
    s_lshl_b32 s{sPF}, s{sMEM}, 3
    s_add_u32 s{sPF}, s{sPF}, s{sW}
    s_mul_i32 s{sPF}, s{sPF}, {28*1024}
    s_add_u32 s{sPF}, s{sPF}, {W4 + 20*1024:#x}
    s_lshl_b32 s{sPL}, s{sW}, 13""")
        C.poll(2, self.cF, self.cP, mid=[]); C.ts()
        shifts = (1, -1, 2, -2)
        masks = ((0xfffffffe, 0xffffffff), (0xffffffff, 0x7fffffff), (0xfffffffc, 0xffffffff), (0xffffffff, 0x3fffffff))
        def pre(c):
            g = c >> 1
            if c & 1 == 0: a(f"s_add_i32 s{sG}, s{sG}, {-16*shifts[g] + (16*shifts[g-1] if g else 0)}")
            a(f"s_mov_b32 exec_lo, {masks[g][0]:#x}" if masks[g][0] != 0xffffffff else f"s_mov_b32 exec_hi, {masks[g][1]:#x}")
        hs = {}
        hload = f"buffer_load_dwordx4 {vr(T)}, v{x+2}, {WS}, s{sT1} offen sc1"
        stg = C.frags(8, sPF, lds=sPL) + C.E(f"s_add_u32 s{sPF}, s{sPF}, {4*28*1024 - 8192}\n s_add_u32 s{sPL}, s{sPL}, {32768 - 8192}") + C.frags(8, sPF, lds=sPL)
        C.load_gemm(C.act_issue(pre=pre, post=lambda c: a("s_mov_b64 exec, -1")),
                    side={2: [lambda: hs.__setitem__(0, C.vm(hload))], 3: stg[:2], 4: stg[2:4], 5: stg[4:6], 6: stg[6:10]}, tag='s5')
        L0, Lr, L2 = C.lab("hchk"), C.lab("hre"), C.lab("hok")
        C.wait_vm(hs[0])
        a.label(L0)
        a(f"v_max_u32 v{x}, v{T}, v{T+1}\n v_max3_u32 v{x}, v{x}, v{T+2}, v{T+3}\n v_cmp_eq_u32 vcc, -1, v{x}\n s_cbranch_vccnz {Lr}")
        a.label(L2)
        C.ool.append((Lr, [f"s_add_u32 s{sCNT}, s{sCNT}, 1", f"s_cmp_gt_u32 s{sCNT}, {SPIN}", f"s_cbranch_scc1 {L2}",
                           hload, "s_waitcnt vmcnt(0)", f"s_branch {L0}"]))
        C.setvcc()
        a(f"s_mov_b32 exec_lo, s{sT4}\n s_mov_b32 exec_hi, 0\n ds_write_b128 v{x+1}, {vr(T)}\n s_mov_b64 exec, -1\n s_waitcnt lgkmcnt(0)")
        C.bar()
        C.run(stg[10:14]); self.stg_rest = stg[14:]
        C.set_act(X1)
        self.stat_publish(ST3)
        a = H.a; ST, RES, R1 = self.hSTAT, self.hRES, self.hR1
        a(f"s_lshl_b32 s{sT1}, s{sW}, 14\n v_add_u32 v7, s{sT1}, v{vL16}")
        H.lds2reg(V(128), 16, 7)
        for jt in range(4):
            a(f"v_mul_f32 v6, v{ST+4*jt}, v{R1+jt}")
            for i in range(4): a(f"v_fma_f32 v{ST+4*jt+i}, v{RES+4*jt+i}, v{R1+jt}, -v6")
        H.tile_soff(sT4, X1)
        a("s_waitcnt lgkmcnt(0)")
        H.colsum(V(128), self.hCS3, self.hX)
        H.cons_gemm(V(192), self.hACC, self.hBP, defer=lambda ks: 3 if (ks >> 2) & 1 else 0, tag="s5"); H.ts()
        for jt in range(4): self.add_pack(jt, ST+4*jt)
        H.cstore([self.tile_store(jt) for jt in range(4)])
        self.prod_stats(self.hACC)
        for i in range(8): H.unpack(self.hXT+i, self.hACC+2*i)
        H.flag(3, 6)
        a("s_waitcnt lgkmcnt(0)"); H.bar()
        for i in range(8): a(f"v_pk_add_f32 {P(RES+2*i)}, {P(RES+2*i)}, {P(self.hACC+2*i)}")
        H.ts()
        self.sync_check()

    def capture(self, S, fn):
        keep = S.a.lines; S.a.lines = []
        fn()
        got = S.a.lines; S.a.lines = keep
        return [(lambda x=x: S.a(x)) for x in got]
    def s6(self):
        self.C.mark(); self.H.mark()
        C, H = self.C, self.H
        PK = bool(self.opt.get("s6pk"))
        for S in (C, H):
            isC = S is C; a = S.a
            vBa, vBb, vDa, vDb, vS = (124, 125, 126, 127, 14) if isC else (self.hCS1, self.hCS1+1, self.hCS1+2, self.hCS1+3, self.hR1)
            ACCS = [self.cACC + 4*i for i in range(8)] if isC else [self.hACC + 4*i for i in range(4)] + [self.hX, self.hX+4]
            BP = self.cBP if isC else self.hBP
            ST, CS, TMP, OUT = (self.cSTAT, self.cCS3, self.cTMP, self.cOUT) if isC else (self.hSTAT, self.hCS3, self.hTMP, self.hXT)
            W = (V(128), V(192))
            def setup():
                a(f"""
    v_xor_b32 v{vBa}, s{sORD}, v{vB}
    v_xor_b32 v{vBb}, 256, v{vBa}
    v_xor_b32 v{vDa}, s{sORD}, v{vD}
    v_xor_b32 v{vDb}, 256, v{vDa}
    v_and_b32 v{vS}, 0xff, v{vL16}
    v_add_u32 v{vS}, {HI}, v{vS}
    v_xor_b32 v{vS}, s{sORD}, v{vS}
    v_xor_b32 v{vS+1}, 256, v{vS}
    s_mul_i32 s{sU0}, s{sMEM}, {14*2048}
    s_add_u32 s{sU0}, s{sU0}, s{sAR}
    s_add_u32 s{sU0}, s{sU0}, {U_:#x}
    s_lshr_b32 s{sU1}, s{sW}, 1
    s_add_u32 s{sU1}, s{sU1}, 12
    s_lshl_b32 s{sU1}, s{sU1}, 11
    s_add_u32 s{sU1}, s{sU1}, s{sU0}
    s_mul_i32 s{sT3}, s{sW}, {3*2048}
    s_add_u32 s{sU0}, s{sU0}, s{sT3}
    s_lshl_b32 s{sW4}, s{sMEM}, 3
    s_add_u32 s{sW4}, s{sW4}, s{sW8}
    s_lshl_b32 s{sT3}, s{sW4}, 2
    v_mov_b32 v{vMYF}, s{sT3}
    s_mul_i32 s{sW4}, s{sW4}, {28*1024}
    s_add_u32 s{sW4}, s{sW4}, {W4:#x}
""")
                if isC: a(f"s_add_u32 s{sU1}, s{sU0}, 2048")
                else: a(f"s_add_u32 s{sU0}, s{sU0}, 4096")
            tilesA = [(j, n) for j in (0, 1) for n in ((0, 1) if isC or j == 0 else (0,))]
            tilesB = [(j, n) for j in (2, 3) for n in ((0, 1) if isC or j == 2 else (0,))]
            acc = {t: ACCS[i] for i, t in enumerate(tilesA + tilesB)}
            rs = {}
            slot = lambda s, j: BP + 16*(s & 1) + 4*j
            def rd(s, j): rs[(s, j)] = S.ld(f"ds_read_b128 {vr(slot(s, j))}, v{vBb if j & 1 else vBa} offset:{4096*s + 512*(j>>1)}")
            def mf(s, j, n): a(f"v_mfma_f32_16x16x32_bf16 {vr(acc[(j, n)])}, {W[n](s)}, {vr(slot(s, j))}, {'0' if s == 0 else vr(acc[(j, n)])}")
            wreg = lambda f: vr(128 + 4*(f >> 1) + 64*(f & 1))
            S.wreg = wreg
            w4 = S.frags(20, sW4, dst=wreg)
            stg = []
            sr = S.stat_reads(ST, vS, True)
            def ustore(j, n, r):
                return f"buffer_store_dwordx2 {P(r)}, v{vDb if j & 1 else vDa}, {WS}, s{(sU0, sU1)[n]} offen offset:{512*(j>>1)}"
            k2 = [0]
            def gel(ts_):
                o = OUT + 4*(k2[0] & 1); k2[0] += 1
                arg = [(acc[t], CS+4*t[1], ST+4*t[0], o+2*i) for i, t in enumerate(ts_)]
                z = S.gelu2(*arg, TMP, True) if len(ts_) == 2 else S.gelu(*arg[0], TMP, True)
                for y in z: a(y)
                if self.opt.get("usc1"):
                    for i, t in enumerate(ts_): S.vm(ustore(*t, o+2*i) + " sc1")
                else: S.cstore([ustore(*t, o+2*i) for i, t in enumerate(ts_)])
                return S.nvm - 1
            tiles = tilesA + tilesB
            if isC:
                S.poll(3, self.cF, self.cP, mid=[self.pubfin]); S.ts()
                load, comp = self.cons_stats(ST3, HI, False)
                issue = S.act_issue(); seqs = {}
                for c in range(3): seqs[c] = issue(c)
                load(); setup()
                S.wait_vm(seqs[0])
            else:
                a(f"s_and_b32 s{sT1}, s{sW}, 2\n s_lshl_b32 s{sT1}, s{sT1}, 13\n s_add_u32 s{sT1}, s{sT1}, {HI}\n v_add_u32 v7, s{sT1}, v{vL16}")
                S.lds2reg(V(192), 16, 7)
                setup()
                a("s_waitcnt lgkmcnt(0)")
                S.colsum(V(192), CS+4, self.hX)
                a("s_setprio 0")
            S.bar()
            for j in range(4): rd(0, j)
            BAR = {1: 1, 3: 3, 7: 7}
            nt = len(tiles)
            for s in range(16):
                items = []
                if isC:
                    if s == 0: items = [(lambda c=c: seqs.__setitem__(c, issue(c))) for c in (3, 4, 5)]
                    if s == 1: items = [(lambda c=c: seqs.__setitem__(c, issue(c))) for c in (6, 7)]
                    if s == 2: items = self.stg_rest + [lambda: seqs.__setitem__(7, S.lastf)]
                    items = items + {3: comp[:7], 4: comp[7:14], 5: comp[14:]}.get(s, [])
                if s == 8: items = items + sr
                if s == 13: items = S.E(f"s_lshl_b32 s{sT1}, s{sW8}, 13\n v_add_u32 v7, s{sT1}, v{vL16}")
                if s >= 14: items = [(lambda i=i: S.ld(f"ds_read_b128 {wreg(20+i)}, v7 offset:{1024*i}")) for i in range(4*(s-14), 4*(s-14)+4)]
                if 3 <= s < 13: items = [w4.pop(0)] + items[:len(items)//2] + [w4.pop(0)] + items[len(items)//2:]
                if s in BAR:
                    if isC:
                        S.wait_vm(seqs[BAR[s]])
                        if s == 7: S.wait_ld(S.wseq)
                    S.bar()
                for i, (j, n) in enumerate(tiles):
                    if n == 0: S.wait_ld(rs[(s, j)])
                    mf(s, j, n)
                    if n == 0 and s + 1 < 16: rd(s+1, j)
                    S.run(items[i*len(items)//nt:(i+1)*len(items)//nt])
                if s % 4 == 3: S.ts("s6")
            assert not w4
            vF8, vPp = (self.cF, self.cP) if isC else (vBa, self.hR1+2)
            S.f7 = (vF8, vPp)
            a(f"""
    s_setprio 1
    s_mul_i32 s{sB}, s{sW8}, {7*4096}
    s_add_u32 s{sB}, s{sB}, s{sAR}
    s_add_u32 s{sB}, s{sB}, {U_ - ACT:#x}
    v_and_b32 v{vF8}, 7, v{vLANE}
    v_lshlrev_b32 v{vF8}, 2, v{vF8}
    s_lshl_b32 s{sT1}, s{sW8}, 5
    v_add_u32 v{vF8}, s{sT1}, v{vF8}""")
            gel(tilesA[:2]); sa = gel(tilesA[2:])
            a("s_setprio 0")
            S.ts()
            gel(tilesB[:2])
            S.flag(4, 6, seq=sa)
            S.sb = gel(tilesB[2:])
            S.ts()
        self.sync_check()

    def s7(self):
        self.C.mark(); self.H.mark()
        C, H = self.C, self.H
        for S in (C, H):
            isC = S is C; a = S.a
            wreg = S.wreg
            vF8, vPp = S.f7
            if isC:
                vWr, vRD, vO = [8, 9, 10, 11], 12, 13
                ring = [self.cBP + 4*i for i in range(8)]
                accx = lambda p, m: self.cACC + 16*(p & 1) + 4*m
                rb = [80 + 4*k for k in range(8)]
            else:
                vWr, vRD, vO = [self.hX+4+i for i in range(4)], 7, vXO
                ring = [self.hBP + 4*i for i in range(8)]
                accx = lambda p, m: self.hACC + 4*m if p & 1 else (184, 188, 248, 252)[m]
                rb = [80, 84, 88, 92, 104, 108, 112, 116]
            NR = len(ring); x = rb[0]
            def setup():
                a(f"""
    v_and_b32 v{x}, 15, v{vLANE}
    v_lshrrev_b32 v{x+1}, 4, v{vLANE}
    v_xor_b32 v{x+2}, v{x}, v{x+1}                ; t ^ g""")
                for m in range(4):
                    a(f"""
    s_add_u32 s{sT1}, s{sW}, {m}
    s_and_b32 s{sT1}, s{sT1}, 3
    s_lshl_b32 s{sT2}, s{sT1}, 2
    v_xor_b32 v{vWr[m]}, s{sT2}, v{x+2}
    v_lshlrev_b32 v{vWr[m]}, 4, v{vWr[m]}
    v_lshl_add_u32 v{vWr[m]}, v{x+1}, 8, v{vWr[m]}
    s_lshl_b32 s{sT1}, s{sT1}, 10
    s_lshl_b32 s{sT2}, s{sW8}, 12
    s_add_u32 s{sT1}, s{sT1}, s{sT2}
    v_add_u32 v{vWr[m]}, s{sT1}, v{vWr[m]}""")
                a(f"""
    s_lshl_b32 s{sT1}, s{sW}, 2
    v_add_u32 v{x+1}, s{sT1}, v{x+1}
    v_xor_b32 v{vRD}, v{x+1}, v{x}
    v_lshlrev_b32 v{vRD}, 4, v{vRD}
    v_lshl_add_u32 v{vRD}, v{x}, 8, v{vRD}
    v_lshlrev_b32 v{vO}, 10, v{x+1}
    v_lshl_add_u32 v{vO}, v{x}, 3, v{vO}
    s_lshl_b32 s{sT4}, s{sGRP}, 16
    s_lshl_b32 s{sT1}, s{sMEM}, 7
    s_add_u32 s{sT4}, s{sT4}, s{sT1}""")
                if not isC: a(f"s_add_u32 s{sT4}, s{sT4}, 16384\n v_add_u32 v{vRD}, 32768, v{vRD}")
                a("s_waitcnt lgkmcnt(0)")
            S.poll(4, vF8, vPp, mid=[setup])
            S.flag(6, 6, seq=S.sb)
            S.ts()
            seq = {}
            def load(u):
                p, i = u // 7, u % 7
                seq[u] = S.vm(f"buffer_load_dwordx4 {vr(ring[u % NR])}, v{vB}, {WS}, s{sB} offen offset:{256*p} sc1")
                a(f"s_add_u32 s{sB}, s{sB}, 4096" if i < 6 else f"s_sub_u32 s{sB}, s{sB}, {6*4096}")
            def Wr(p):
                it = []
                for m in range(4):
                    if p == 2: it.append(lambda m=m: a(f"v_add_u32 v{vWr[m]}, 0x10000, v{vWr[m]}"))
                    it.append(lambda m=m: S.ld(f"ds_write_b128 v{vWr[m]}, {vr(accx(p, m))} offset:{32768*(p&1)}"))
                return it
            bar = [lambda: (a("s_waitcnt lgkmcnt(0)"), S.bar())]
            st = {}
            def Rd(p):
                it = [lambda: a(f"v_add_u32 v{vRD}, 0x10000, v{vRD}")] if p >= 2 else []
                return it + [(lambda k=k: st.__setitem__(p, S.ld(f"ds_read_b128 {vr(rb[k])}, v{vRD} offset:{4096*k}"))) for k in range(8)]
            def Ad(p, pk):
                r = rb
                pairs = [(r[0], r[1]), (r[2], r[3]), (r[4], r[5]), (r[6], r[7]), (r[0], r[2]), (r[4], r[6]), (r[0], r[4])]
                ins = []
                for y, z in pairs:
                    if pk: ins += [f"v_pk_add_f32 {P(y+h)}, {P(y+h)}, {P(z+h)}" for h in (0, 2)]
                    else: ins += [f"v_add_f32 v{y+h}, v{y+h}, v{z+h}" for h in range(4)]
                ins += [f"v_cvt_pk_bf16_f32 v{r[1]+h}, v{r[0]+2*h}, v{r[0]+2*h+1}" for h in (0, 1)]
                return [lambda: S.wait_ld(st[p])] + [(lambda z=z: a(z)) for z in ins] + \
                       [lambda: S.vm(f"buffer_store_dwordx2 {P(r[1])}, v{vO}, {OS}, s{sT4} offen {self.opt.get('osc', 'nt')}"), lambda: a(f"s_add_u32 s{sT4}, s{sT4}, 32768")]
            la = int(self.opt.get('la7', 4))
            pb = {}
            ltxt = f"buffer_load_dword v{vPp}, v{vF8}, {WS}, s{sT0} offen sc1"
            def chkB():
                L0, Lr = S.lab("bchk"), S.lab("bre")
                S.wait_vm(pb[0])
                a.label(L0)
                a(f"v_cmp_ne_u32 vcc, 1, v{vPp}\n s_cbranch_vccnz {Lr}")
                S.ool.append((Lr, [f"s_add_u32 s{sCNT}, s{sCNT}, 1", f"s_cmp_gt_u32 s{sCNT}, {SPIN}", "s_cbranch_scc1 main_exit",
                                   ltxt, "s_waitcnt vmcnt(0)", f"s_branch {L0}"]))
            side = {6: bar, 8: Wr(0), 15: Wr(1), 16: bar, 22: Wr(2)}
            side[13 - 2*la] = side.get(13 - 2*la, []) + [lambda: pb.__setitem__(0, S.vm(ltxt))]
            side[13 - la] = side.get(13 - la, []) + [chkB]
            p0 = 0 if isC else 1
            ad = Ad(p0, False)
            side[17] = Rd(p0); side[18] = ad[:11]; side[19] = ad[11:22]; side[20] = ad[22:]
            for u in range(la): load(u)
            for u in range(28):
                p, i = u // 7, u % 7
                S.wait_vm(seq[u])
                items = list(side.get(u, []))
                per = -(-len(items) // 3)
                for m in range(4):
                    c0 = vr(self.hRES+4*p) if (m == 0 and not isC) else '0'
                    if not (self.opt.get('x7b') and m): a(f"v_mfma_f32_16x16x32_bf16 {vr(accx(p, m))}, {wreg(4*i+m)}, {vr(ring[u % NR])}, {c0 if i == 0 else vr(accx(p, m))}")
                    if m == 0:
                        if u + la < 28: load(u + la)
                    else:
                        for _ in range(per):
                            if items: items.pop(0)()
                if u % 7 == 6: S.ts("s7")
            S.run(Wr(3) + bar)
            S.ts()
            S.run(Rd(p0+2) + Ad(p0+2, True))
            S.ts("s7")
        self.sync_check()

    def dump_ts(self, S):
        a = S.a
        a("s_waitcnt vmcnt(0)")
        S.ts()
        a(f"""
    s_waitcnt lgkmcnt(0)
    s_lshl_b32 s{sT0}, s2, 3
    s_add_u32 s{sT0}, s{sT0}, s{sW8}
    s_lshl_b32 s{sT0}, s{sT0}, 7
    s_add_u32 s{sT0}, s{sT0}, {DBG:#x}
    v_mov_b32 v7, 0
    s_mov_b64 exec, 1""")
        assert S.nts <= 28
        for i in range(S.nts):
            a(f"v_mov_b32 v6, s{tsreg(i)}\n buffer_store_dword v6, v7, {WS}, s{sT0} offen offset:{4*i}")
        a(f"v_mov_b32 v6, s{sSLOW}\n buffer_store_dword v6, v7, {WS}, s{sT0} offen offset:124")
        a(f"v_mov_b32 v6, s{sXCC}\n buffer_store_dword v6, v7, {WS}, s{sT0} offen offset:120")

    def gen(self):
        C, H = self.C, self.H
        self.prologue(); self.qstage(); self.attention()
        for name in ("s3", "s4", "s5", "s6", "s7"): getattr(self, name)()
        for S in (C, H):
            S.a.label(f"M_{S.name}_{S.nmark}")
            if self.dbg: self.dump_ts(S)
            if S is C: S.a.label("main_exit")
            S.a("s_endpgm")
        tail = Asm()
        self.fallback()
        for S in (C, H):
            for L, body in S.ool:
                S.a.label(L)
                for x in body: S.a(x)
        C.a.label("main_end")
        H.a.lines = self.head + H.a.lines
        txt = H.a.finish() + C.a.finish()
        txt += """
.section .rodata,"a"
.p2align 6
.amdhsa_kernel """ + NAME + """_kernel
  .amdhsa_next_free_vgpr 256
  .amdhsa_next_free_sgpr 102
  .amdhsa_accum_offset 256
  .amdhsa_group_segment_fixed_size 0
  .amdhsa_kernarg_size 104
  .amdhsa_user_sgpr_count 2
  .amdhsa_user_sgpr_kernarg_segment_ptr 1
  .amdhsa_system_sgpr_workgroup_id_x 1
.end_amdhsa_kernel
"""
        return txt
```

```python
from asmlib import Asm
from layout import *
import struct, os

def f32(x):
    return "0x%08x" % struct.unpack('<I', struct.pack('<f', x))[0]

K2_LDS = 163840
LOG2E = 1.4426950408889634
QSCALE = 0.25 * LOG2E
GC1 = -2.0 * 0.7978845608028654 * LOG2E
SPIN = 0x40000
ACT = 65536
XST = ACT + 5*8192 + 256
HI = 131072
LA = 5

sW, sGRP, sMEM, sSLOW, sXCC, sW8 = 3, 16, 17, 18, 45, 44
WS, XS, OS = "s[4:7]", "s[8:11]", "s[12:15]"
sT0, sT1, sT2, sT3, sT4, sT5 = 20, 21, 22, 23, 24, 25
sG, sL, sPF, sCNT, sFLG, sAR = 26, 27, 28, 29, 30, 31
sU0, sU1 = 32, 33
sB = 34
sKVW, sTAG, sRND = 40, 41, 33
sTCH = 35
sNT, sORD = 38, 39
sVM = "s[40:41]"
sPL, sW4 = 42, 43
sPP, sPR, sPS, sPD = 46, 56, 60, 65
def tsreg(i): return 70 + 2*i if i < 16 else 46 + 2*(i-16)
vLANE, vL16, vB, vD, vMYF, vXO = 0, 1, 2, 3, 4, 5

def vr(b, n=4): return f"v[{b}:{b+n-1}]"
def V(b): return lambda ks: vr(b+4*ks)
def P(r): return f"v[{r}:{r+1}]"

class Stream:
    uid = 0
    def __init__(self, name, dbg, tags):
        self.name, self.dbg, self.tags = name, dbg, tags
        self.a = Asm(); self.nvm = self.nld = self.nts = self.nbar = 0
        self.ool = []; self.nmark = 0; self.seclen = {}
    def vm(self, text):
        self.a(text); self.nvm += 1; return self.nvm - 1
    def wait_vm(self, seq): self.a(f"s_waitcnt vmcnt({min(self.nvm - 1 - seq, 63)})")
    def ld(self, text):
        self.a(text); self.nld += 1; return self.nld - 1
    def wait_ld(self, seq): self.a(f"s_waitcnt lgkmcnt({min(self.nld - 1 - seq, 15)})")
    def bar(self): self.a("s_barrier"); self.nbar += 1
    def ts(self, tag="main"):
        if self.dbg and tag in self.tags:
            self.a(f"{'s_memtime' if self.dbg == 'cyc' else 's_memrealtime'} s[{tsreg(self.nts)}:{tsreg(self.nts)+1}]")
            self.nts += 1
    def lab(self, p):
        Stream.uid += 1; return f"L_{p}_{Stream.uid}"
    def mark(self):
        i = self.nmark; self.nmark += 1
        L = f"M_{self.name}_{i}"
        n = self.seclen.get(L)
        if n is not None and n < 4000:
            self.a(f"s_branch {L}"); self.a(f".p2align 12,,{n + 64}")
        self.a.label(L)
    def E(self, text): return [(lambda x=x: self.a(x)) for x in text.split("\n") if x.strip()]
    def set_wbase(self, base, ks, dst=sPF):
        self.a(f"s_mul_i32 s{dst}, s{sNT}, {ks*1024}\n s_add_u32 s{dst}, s{dst}, {base:#x}")
    def set_w3(self, slot):
        if slot < 3: self.a(f"s_mul_i32 s{sPF}, s{sW}, 3\n s_add_u32 s{sPF}, s{sPF}, {slot}")
        else: self.a(f"s_lshr_b32 s{sPF}, s{sW}, 1\n s_add_u32 s{sPF}, s{sPF}, 12")
        self.a(f"s_mul_i32 s{sT5}, s{sMEM}, 14\n s_add_u32 s{sPF}, s{sPF}, s{sT5}\n s_lshl_b32 s{sPF}, s{sPF}, 14\n s_add_u32 s{sPF}, s{sPF}, {W3:#x}")
    def set_act(self, base):
        self.a(f"s_lshl_b32 s{sL}, s{sW}, 11\n s_add_u32 s{sG}, s{sAR}, s{sL}\n s_add_u32 s{sG}, s{sG}, {base:#x}\n s_add_u32 s{sL}, s{sL}, {ACT}")
    def tile_soff(self, s, base):
        self.a(f"s_lshl_b32 s{s}, s{sNT}, 11\n s_add_u32 s{s}, s{s}, s{sAR}\n s_add_u32 s{s}, s{s}, {base:#x}")
    def xo_soff(self, s):
        self.a(f"s_lshl_b32 s{s}, s{sNT}, 5\n s_lshl_b32 s{sT5}, s{sGRP}, 16\n s_add_u32 s{s}, s{s}, s{sT5}")
    def act_issue(self, sc="sc1", pre=None, post=None):
        def issue(c):
            self.a(f"s_mov_b32 m0, s{sL}")
            if pre: pre(c)
            self.vm(f"buffer_load_dwordx4 v{vL16}, {WS}, s{sG} offen {sc} lds")
            last = self.vm(f"buffer_load_dwordx4 v{vL16}, {WS}, s{sG} offen offset:1024 {sc} lds")
            if post: post(c)
            self.a(f"s_add_u32 s{sG}, s{sG}, 8192\n s_add_u32 s{sL}, s{sL}, 8192")
            return last
        return issue
    def frags(self, n, sreg, dst=None, lds=None, sc="sc1"):
        def mk(i):
            def f():
                if dst is not None:
                    r = self.vm(f"buffer_load_dwordx4 {dst(i)}, v{vL16}, {WS}, s{sreg} offen offset:{1024*(i&3)} {sc}")
                else:
                    self.a(f"s_mov_b32 m0, s{lds}")
                    r = self.vm(f"buffer_load_dwordx4 v{vL16}, {WS}, s{sreg} offen offset:{1024*(i&3)} {sc} lds")
                if i & 3 == 3:
                    self.a(f"s_add_u32 s{sreg}, s{sreg}, 4096")
                    if lds is not None: self.a(f"s_add_u32 s{lds}, s{lds}, 4096")
                self.lastf = r
                return r
            return f
        return [mk(i) for i in range(n)]
    def run(self, items):
        for f in items: f()
    def setvcc(self): self.a(f"s_mov_b64 vcc, s[{sSLOW}:{sSLOW+1}]")
    NT = True
    def cstore(self, st, nt=True):
        Ls, Le = self.lab("cs"), self.lab("ce")
        self.a(f"s_cbranch_vccnz {Ls}")
        for x in st: self.vm(x + (" nt" if nt and self.NT else ""))
        self.a.label(Le)
        self.ool.append((Ls, [x + " sc1" for x in st] + [f"s_branch {Le}"]))
    def flag(self, stage, t, vf=vMYF, seq=None):
        self.a(f"s_add_u32 s{sT0}, s{sFLG}, {stage*8192}\n v_mov_b32 v{t}, 1")
        if seq is None: self.a("s_waitcnt vmcnt(0)")
        else: self.wait_vm(seq)
        self.a("s_mov_b64 exec, 1")
        self.cstore([f"buffer_store_dword v{t}, v{vf}, {WS}, s{sT0} offen"], nt=False)
        self.a("s_mov_b64 exec, -1")
    NP = 2
    def poll(self, stage, vf, p0, mid=(), np_=None):
        a = self.a; L, Ld = self.lab("poll"), self.lab("pdone")
        n = np_ or self.NP
        ld = lambda i: f"buffer_load_dword v{p0+i}, v{vf}, {WS}, s{sT0} offen sc1"
        a(f"s_add_u32 s{sT0}, s{sFLG}, {stage*8192}\n s_mov_b32 s{sCNT}, 0")
        q = self.vm(ld(0))
        self.run(mid)
        for i in range(1, n):
            self.vm(ld(i))
            if n > 2 and i < n - 1: a("s_nop 15")
        self.wait_vm(q)
        a(f"v_cmp_ne_u32 vcc, 1, v{p0}\n s_cbranch_vccz {Ld}")
        a.label(L)
        for i in range(n):
            a(ld(i))
            if i == n - 1: a(f"s_add_u32 s{sCNT}, s{sCNT}, 1\n s_cmp_gt_u32 s{sCNT}, {SPIN}\n s_cbranch_scc1 main_exit")
            a(f"s_waitcnt vmcnt({n-1})\n v_cmp_ne_u32 vcc, 1, v{p0 + (i+1) % n}")
            a(f"s_cbranch_vccz {Ld}" if i < n - 1 else f"s_cbranch_vccnz {L}")
        a.label(Ld)
        self.setvcc()
    def regcheck(self, r, z):
        a = self.a; L, L0 = self.lab("reg"), self.lab("reg0")
        a(f"s_mov_b32 s{sCNT}, 0")
        a.label(L0)
        a(f"""
    v_readfirstlane_b32 s{sT1}, v{r}
    s_and_b32 s{sT2}, s{sT1}, 0x0f0f0f0f
    s_lshr_b32 s{sT3}, s{sT1}, 4
    s_and_b32 s{sT3}, s{sT3}, 0x0f0f0f0f
    s_add_u32 s{sT2}, s{sT2}, s{sT3}
    s_mul_i32 s{sT2}, s{sT2}, 0x01010101
    s_lshr_b32 s{sT2}, s{sT2}, 24
    s_cmp_lg_u32 s{sT2}, 8
    s_cbranch_scc1 {L}
    s_lshl_b32 s{sT2}, s{sXCC}, 2
    s_lshl_b32 s{sT2}, 8, s{sT2}
    s_cmp_lg_u32 s{sT1}, s{sT2}
    s_cselect_b64 s[{sSLOW}:{sSLOW+1}], -1, 0""")
        self.ool.append((L, [f"s_add_u32 s{sT0}, s{sFLG}, {5*8192}", f"buffer_load_dword v{r}, v{z}, {WS}, s{sT0} offen sc1",
                             f"s_add_u32 s{sCNT}, s{sCNT}, 1", f"s_cmp_gt_u32 s{sCNT}, {SPIN}", "s_cbranch_scc1 main_exit",
                             "s_waitcnt vmcnt(0)", f"s_branch {L0}"]))
    def regload(self, r, z):
        self.a(f"s_add_u32 s{sT0}, s{sFLG}, {5*8192}\n v_mov_b32 v{z}, 0")
        return self.vm(f"buffer_load_dword v{r}, v{z}, {WS}, s{sT0} offen sc1")
    def load_gemm(self, issue, la=LA, side=None, tag=None, ramp=True):
        side = side or {}
        seqs = {}
        if tag: self.ts(tag)
        ni = 3
        for c in range(ni): seqs[c] = issue(c)
        self.run(side.get(-1, []))
        if tag: self.ts(tag)
        for c in range(8):
            self.wait_vm(seqs[c])
            self.run(side.get((c, 'pre'), []))
            if tag: self.ts(tag)
            self.bar()
            for _ in range(2 if (c < 2 and ramp) else 1):
                if ni < 8: seqs[ni] = issue(ni); ni += 1
            self.run(side.get(c, []))
    def cons_gemm(self, areg, ACC, BP, side=None, prewait=None, defer=None, tag=None, baddr=None, prebar=None, postbar=None, onebar=False):
        a = self.a
        side = {k: list(v) for k, v in (side or {}).items()}
        work = [[(2*c+s, jt) for s in range(2) for jt in range(4) if not (defer and defer(2*c+s) == jt)] for c in range(8)]
        if defer: work += [[(ks, defer(ks)) for ks in range(8)], [(ks, defer(ks)) for ks in range(8, 16)]]
        nch = len(work); rs = {}; started = set()
        def read(c, i):
            ks, jt = work[c][i]
            r, off = baddr(ks, jt) if baddr else (vB, 4096*ks + 256*jt)
            rs[(c, i)] = self.ld(f"ds_read_b128 {vr(BP+4*i)}, v{r} offset:{off}")
        if tag: self.ts(tag)
        if prebar: prebar(0)
        self.bar()
        if postbar: postbar(0)
        for i in range(len(work[0])): read(0, i)
        if tag: self.ts(tag)
        for c in range(nch):
            nxt = c + 1 < nch
            if c + 1 < 8 and prebar: prebar(c+1)
            if (c + 1 < 8 or (c + 1 == 8 and defer)) and not onebar: self.bar()
            if c + 1 < 8 and postbar: postbar(c+1)
            if prewait: prewait(c)
            items = side.pop(c, [])
            n = len(work[c]); nn = len(work[c+1]) if nxt else 0
            per = -(-len(items) // n)
            for i in range(n, nn): read(c+1, i)
            for i in range(n):
                ks, jt = work[c][i]
                if i % 2 == 0: self.wait_ld(rs[(c, min(i+1, n-1))])
                cc = vr(ACC+4*jt) if jt in started else "0"
                started.add(jt)
                a(f"v_mfma_f32_16x16x32_bf16 {vr(ACC+4*jt)}, {areg(ks)}, {vr(BP+4*i)}, {cc}")
                if i < nn: read(c+1, i)
                for _ in range(per):
                    if items: items.pop(0)()
            if tag: self.ts(tag)
        assert not side
    def gelu(self, acc, cs, S, out, t, pk):
        I = []
        if pk:
            for i in (0, 2): I.append(f"v_pk_fma_f32 {P(acc+i)}, {P(S)}, {P(cs+i)}, {P(acc+i)} op_sel_hi:[0,1,1] neg_lo:[1,0,0] neg_hi:[1,0,0]")
            for i in (0, 2): I.append(f"v_pk_mul_f32 {P(t+i)}, {P(acc+i)}, {P(acc+i)}")
            for i in (0, 2): I.append(f"v_pk_fma_f32 {P(t+i)}, {P(S+2)}, {P(t+i)}, {P(S+2)} op_sel:[1,0,0] op_sel_hi:[1,1,0]")
            for i in (0, 2): I.append(f"v_pk_mul_f32 {P(t+i)}, {P(t+i)}, {P(acc+i)}")
            for i in range(4): I.append(f"v_exp_f32 v{t+i}, v{t+i}")
            for i in (0, 2): I.append(f"v_pk_fma_f32 {P(t+i)}, {P(S)}, {P(t+i)}, {P(S)} op_sel:[1,0,1] op_sel_hi:[1,1,1]")
            for i in range(4): I.append(f"v_rcp_f32 v{t+i}, v{t+i}")
            for i in (0, 2): I.append(f"v_pk_mul_f32 {P(acc+i)}, {P(acc+i)}, {P(t+i)}")
        else:
            for i in range(4): I.append(f"v_fma_f32 v{acc+i}, -v{S}, v{cs+i}, v{acc+i}")
            for i in range(4): I.append(f"v_mul_f32 v{t+i}, v{acc+i}, v{acc+i}")
            for i in range(4): I.append(f"v_fma_f32 v{t+i}, v{t+i}, v{S+3}, v{S+2}")
            for i in range(4): I.append(f"v_mul_f32 v{t+i}, v{t+i}, v{acc+i}")
            for i in range(4): I.append(f"v_exp_f32 v{t+i}, v{t+i}")
            for i in range(4): I.append(f"v_fma_f32 v{t+i}, v{t+i}, v{S+1}, v{S+1}")
            for i in range(4): I.append(f"v_rcp_f32 v{t+i}, v{t+i}")
            for i in range(4): I.append(f"v_mul_f32 v{acc+i}, v{acc+i}, v{t+i}")
        return I + [f"v_cvt_pk_bf16_f32 v{out}, v{acc}, v{acc+1}", f"v_cvt_pk_bf16_f32 v{out+1}, v{acc+2}, v{acc+3}"]
    def gelu2(self, x, y, t, pk):
        p, q = self.gelu(*x, t, pk), self.gelu(*y, t+4, pk)
        return [z for pair in zip(p, q) for z in pair]
    def colsum(self, areg, dst, ones):
        for i in range(4): self.a(f"v_mov_b32 v{ones+i}, 0x3f803f80")
        for ks in range(16):
            self.a(f"v_mfma_f32_16x16x32_bf16 {vr(dst)}, {areg(ks)}, {vr(ones)}, {'0' if ks == 0 else vr(dst)}")
    def unpack(self, src, dst): self.a(f"v_lshlrev_b32 v{dst}, 16, v{src}\n v_and_b32 v{dst+1}, 0xffff0000, v{src}")
    def lds2reg(self, dst, n, va):
        for i in range(n): self.ld(f"ds_read_b128 {dst(i)}, v{va} offset:{1024*i}")
    def stat_reads(self, STAT, va, order, R1=None):
        it = []
        for jt in range(4):
            if order: x = f"ds_read_b128 {vr(STAT+4*jt)}, v{va+(jt&1)} offset:{512*(jt>>1)}"
            else: x = f"ds_read_b128 {vr(STAT+4*jt)}, v{va} offset:{256*jt}"
            it.append(lambda x=x: setattr(self, 'stseq', self.ld(x)))
        if R1 is not None:
            for jt in range(4):
                it.append(lambda jt=jt: setattr(self, 'stseq', self.ld(f"ds_read_b32 v{R1+jt}, v{va} offset:{1024 + 256*jt}")))
        return it

class Main:
    def __init__(self, dbg=False, tags=('main',), opt=None, seclen=None):
        self.dbg = dbg; self.opt = opt or {}
        Stream.NP = int(self.opt.get('np', 2))
        Stream.uid = 0; Stream.NT = not self.opt.get('nont')
        self.C = Stream('C', dbg, tags); self.H = Stream('H', dbg, tags)
        self.C.seclen = self.H.seclen = seclen or {}
    def sync_check(self): assert self.C.nbar == self.H.nbar, (self.C.nbar, self.H.nbar)

    def prologue(self):
        C, H = self.C, self.H; a = C.a
        a(f".text\n.globl {NAME}_kernel\n.p2align 12\n.type {NAME}_kernel,@function")
        a.label(f"{NAME}_kernel")
        a.label("main_kernel")
        a(f"""
    s_cmp_ge_u32 s2, 256
    s_cbranch_scc1 main_exit
    s_load_dwordx2 s[4:5], s[0:1], 96
    s_load_dwordx2 s[8:9], s[0:1], 0
    s_load_dwordx2 s[12:13], s[0:1], 80
    s_load_dwordx2 s[{sPR}:{sPR+1}], s[0:1], 8
    s_load_dwordx4 s[32:35], s[0:1], 16
    s_load_dwordx2 s[{sPP}:{sPP+1}], s[0:1], 32
    s_load_dwordx8 s[{sPP+2}:{sPP+9}], s[0:1], 48""")
        if self.dbg:
            a(f"{'s_memtime' if self.dbg == 'cyc' else 's_memrealtime'} s[70:71]"); C.nts = H.nts = 1
        a(f"""
    v_lshrrev_b32 v1, 6, v0
    v_and_b32 v{vLANE}, 63, v0
    v_readfirstlane_b32 s{sW8}, v1
    s_and_b32 s{sT0}, s2, 7
    s_lshr_b32 s{sT1}, s2, 3
    s_lshl_b32 s{sGRP}, s{sT0}, 2
    s_lshr_b32 s{sT2}, s{sT1}, 3
    s_add_u32 s{sGRP}, s{sGRP}, s{sT2}
    s_and_b32 s{sMEM}, s{sT1}, 7
    s_and_b32 s{sW}, s{sW8}, 3
    s_mul_i32 s{sAR}, s{sGRP}, {GA:#x}
    s_lshl_b32 s{sNT}, s{sMEM}, 2
    s_add_u32 s{sNT}, s{sNT}, s{sW}
    v_lshlrev_b32 v{vL16}, 4, v{vLANE}
    s_getpc_b64 s[42:43]""")
        a.label("L_pc0")
        a(f"""
    s_sub_u32 s42, s42, L_pc0-main_kernel
    s_subb_u32 s43, s43, 0
    s_lshl_b32 s{sT1}, s{sT1}, 3
    s_add_u32 s{sT1}, s{sT1}, s{sW8}
    s_lshl_b32 s{sT1}, s{sT1}, 8
    v_and_b32 v9, 1, v{vLANE}
    v_lshlrev_b32 v9, 7, v9
    v_add_u32 v9, s{sT1}, v9
    v_min_u32 v9, main_end-main_kernel-4, v9
    global_load_dword v255, v9, s[42:43]
    s_mov_b32 s6, {WS_USED:#x}
    s_mov_b32 s7, 0x20000
    v_lshrrev_b32 v8, 3, v{vLANE}
    s_mov_b32 s10, {2048*1024:#x}
    s_mov_b32 s11, 0x20000
    s_mov_b32 s{sPR+3}, 0x20000
    s_cmp_ge_u32 s{sW8}, 4
    s_cbranch_scc1 H_entry
    v_bfe_u32 v9, v{vLANE}, 4, 1
    s_and_b32 s{sT0}, s{sW}, 1
    s_lshl_b32 s{sT0}, s{sT0}, 1
    v_or_b32 v9, s{sT0}, v9
    v_bfe_u32 v10, v{vLANE}, 1, 2
    v_xor_b32 v9, v9, v10
    v_lshlrev_b32 v9, 5, v9
    v_and_b32 v10, 1, v{vLANE}
    v_lshl_add_u32 v9, v10, 4, v9
    v_lshl_add_u32 v134, v8, 10, v9
    s_mov_b32 s{sPR+2}, 0x80000
    s_lshl_b32 s{sG}, s{sW}, 13
    s_lshl_b32 s{sT0}, s{sMEM}, 7
    s_add_u32 s{sG}, s{sG}, s{sT0}
    s_lshl_b32 s{sL}, s{sW}, 10
    s_add_u32 s{sL}, s{sL}, 98304
    s_waitcnt lgkmcnt(0)
    s_and_b32 s{sPR+1}, s{sPR+1}, 0xffff""")
        a.label("L_wq")
        a(f"""
    s_mov_b32 m0, s{sL}
    s_add_u32 s{sL}, s{sL}, 4096
    buffer_load_dwordx4 v134, s[{sPR}:{sPR+3}], s{sG} offen lds
    s_add_u32 s{sG}, s{sG}, 32768
    s_cmp_lt_u32 s{sL}, 163840
    s_cbranch_scc1 L_wq
    s_branch C_entry""")
        C.nvm += 16
        a.label("H_entry")
        self.head = a.lines; a.lines = []
        a(".p2align 8"); a.label("C_entry")
    def setup_common(self, S, t):
        S.a(f"""
    s_mov_b32 s14, {2048*1024:#x}
    s_mov_b32 s15, 0x20000
    s_getreg_b32 s{sXCC}, hwreg(HW_REG_XCC_ID, 0, 3)
    v_and_b32 v{t}, 15, v{vLANE}                  ; t
    v_lshrrev_b32 v{t+1}, 4, v{vLANE}             ; g
    v_lshlrev_b32 v{vB}, 10, v{t+1}
    v_lshl_add_u32 v{vB}, v{t}, 4, v{vB}
    v_add_u32 v{vB}, {ACT}, v{vB}                 ; ACT + g*1024 + t*16
    v_lshrrev_b32 v{vD}, 1, v{t+1}
    v_lshlrev_b32 v{vD}, 10, v{vD}
    v_lshl_add_u32 v{vD}, v{t}, 4, v{vD}
    v_and_b32 v{t+2}, 1, v{t+1}
    v_lshl_add_u32 v{vD}, v{t+2}, 3, v{vD}        ; (g>>1)*1024 + t*16 + (g&1)*8
    s_lshl_b32 s{sT0}, s{sNT}, 2
    v_mov_b32 v{vMYF}, s{sT0}
    s_lshl_b32 s{sFLG}, s{sGRP}, 8
    s_add_u32 s{sFLG}, s{sFLG}, {FLAGS:#x}
    v_lshlrev_b32 v{t+2}, 10, v{t}
    v_lshl_add_u32 v{vXO}, v{t+1}, 3, v{t+2}      ; t*1024 + g*8
    s_and_b32 s{sORD}, s{sW}, 1
    s_lshl_b32 s{sORD}, s{sORD}, 8""")

    cT = 6
    S0, S1, NEGM, OA, OB, QA, QB, vIDX, vKA, vVA, vREG = 24, 40, 56, 72, 88, 16, 20, 13, 14, 15, 11
    KVR = 104
    NB = 1
    SCR = 16384
    def x_addr(self, S, dst, t, x):
        S.a(f"""
    v_lshrrev_b32 v{x}, 4, v{vLANE}
    v_and_b32 v{x+1}, 7, v{vLANE}
    v_xor_b32 v{x+1}, v{x+1}, v{x}
    v_lshlrev_b32 v{x+1}, 4, v{x+1}
    v_lshl_add_u32 v{dst}, v{t}, 7, v{x+1}
    v_add_u32 v{dst}, 32768, v{dst}""")
    def qstage(self):
        C, H = self.C, self.H; a = C.a; t = self.cT
        WQR, QACC, QBP = 192, 24, 40
        XB, WB = 32768, 98304
        QS = 144
        a("s_and_b32 s5, s5, 0xffff\n s_and_b32 s13, s13, 0xffff")
        wqseq = C.nvm - 1
        self.prep_setup(C, 152); self.prep_load(C, 152, 164)
        self.setup_common(C, t)
        self.x_addr(C, 130, t, t+1)
        a(f"""
    v_xor_b32 v131, 64, v130
    v_bfe_u32 v{t+2}, v{vLANE}, 2, 2
    v_lshl_add_u32 v132, v{t+1}, 3, v{t+2}
    v_lshlrev_b32 v132, 7, v132
    v_and_b32 v{t+1}, 1, v{t+1}
    v_lshrrev_b32 v{t+2}, 1, v{t+2}
    v_lshl_add_u32 v{t+1}, v{t+1}, 1, v{t+2}
    v_xor_b32 v{t+1}, s{sW}, v{t+1}
    v_lshl_add_u32 v132, v{t+1}, 5, v132
    v_and_b32 v{t+2}, 3, v{vLANE}
    v_lshl_add_u32 v132, v{t+2}, 3, v132
    v_add_u32 v132, {WB}, v132
    v_lshlrev_b32 v133, 3, v{t}""")
        ONE, CSQ = 136, 140
        for i in range(4): a(f"v_mov_b32 v{ONE+i}, 0x3f803f80")
        a(f"""
    s_mov_b32 s40, 0xffff
    s_mov_b32 s41, 0xffff
    v_mov_b32 v{self.vIDX}, 0xdddddddd
    v_mov_b32 v{self.vKA}, v{vL16}
    v_lshrrev_b32 v{t+2}, 5, v{vLANE}
    v_lshlrev_b32 v{t+2}, 8, v{t+2}
    v_and_b32 v{t+3}, 0xff, v{vL16}
    v_add_u32 v{self.vVA}, v{t+3}, v{t+2}   ; hA*256 + d*16""")
        for i in range(32): a(f"v_mov_b32 v{self.OA+i}, 0")
        a(f"v_and_b32 v{t+2}, 31, v{vLANE}\n v_cmp_eq_u32 vcc, 16, v{t+2}\n v_mov_b32 v{t+2}, 0x3f803f80")
        for b in range(2):
            for i in range(8): a(f"v_cndmask_b32 v{self.KVR+12*b+4+i}, 0, v{t+2}, vcc")
        C.wait_vm(wqseq)
        def postbar(c):
            for ks in (2*c, 2*c+1):
                C.ld(f"ds_read_b64_tr_b16 {P(WQR+4*ks)}, v132 offset:{4096*ks}")
                C.ld(f"ds_read_b64_tr_b16 {P(WQR+4*ks+2)}, v132 offset:{4096*ks+512}")
        side = {c: [(lambda ks=ks: a(f"v_mfma_f32_16x16x32_bf16 {vr(CSQ)}, {vr(WQR+4*ks)}, {vr(ONE)}, {'0' if ks == 0 else vr(CSQ)}")) for ks in (2*c, 2*c+1)] for c in range(8)}
        side[5] += [(lambda jt=jt: C.ld(f"ds_read_b64 {P(QS+2*jt)}, v133 offset:{self.SCR + 128*jt}")) for jt in range(4)]
        C.cons_gemm(V(WQR), QACC, QBP, side=side, baddr=lambda ks, jt: (130 + (ks & 1), 8192*(ks >> 1) + 2048*jt),
                    postbar=postbar, tag="q", onebar=True)
        C.ts()
        QA, QB = self.QA, self.QB
        for jt in range(4): a(f"v_mul_f32 v{QS+2*jt+1}, {f32(QSCALE)}, v{QS+2*jt+1}")
        for jt in range(4):
            for h in (0, 2): a(f"v_pk_fma_f32 {P(QACC+4*jt+h)}, {P(QS+2*jt)}, {P(CSQ+h)}, {P(QACC+4*jt+h)} op_sel_hi:[0,1,1] neg_lo:[1,0,0] neg_hi:[1,0,0]")
        for jt in range(4):
            for h in (0, 2): a(f"v_pk_mul_f32 {P(QACC+4*jt+h)}, {P(QS+2*jt)}, {P(QACC+4*jt+h)} op_sel:[1,0] op_sel_hi:[1,1]")
        for jt in range(4):
            a(f"v_cvt_pk_bf16_f32 v{QA+2*jt}, v{QACC+4*jt}, v{QACC+4*jt+1}")
            a(f"v_cvt_pk_bf16_f32 v{QA+2*jt+1}, v{QACC+4*jt+2}, v{QACC+4*jt+3}")
        a(f"v_mov_b32 v{t}, 0\n v_mov_b32 v{t+1}, 0")
        for q in (QA, QB): a(f"v_permlane16_swap_b32 v{q}, v{q+2}\n v_permlane16_swap_b32 v{q+1}, v{q+3}")
        for i in range(4): a(f"v_dot2_f32_bf16 v{t}, v{QA+i}, v{QA+i}, v{t}\n v_dot2_f32_bf16 v{t+1}, v{QB+i}, v{QB+i}, v{t+1}")
        a(f"""
    v_permlane32_swap_b32 v{t}, v{t+1}
    v_add_f32 v{t}, v{t}, v{t+1}
    v_mov_b32 v{t+1}, v{t}
    v_permlane32_swap_b32 v{t}, v{t+1}
    v_max_f32 v{t}, v{t}, v{t+1}
    v_sqrt_f32 v{t}, v{t}
    v_mov_b32 v133, {self.SCR + 512}""")
        a(f"s_mul_i32 s{sT0}, s{sW}, 5120\n s_add_u32 s{sT0}, s{sT0}, {HI}\n v_add_u32 v134, s{sT0}, v{vL16}\n s_waitcnt vmcnt(0)")
        C.ts("q"); C.bar(); C.ts("q")
        a(f"""
    ds_read_b64 v[128:129], v133""")
        for i in range(5): a(f"ds_write_b128 v134, {vr(164+4*i)} offset:{1024*i}")
        a(f"""
    s_waitcnt lgkmcnt(5)
    v_mul_f32 v{self.NEGM}, v{t}, v128
    v_readfirstlane_b32 s{sSLOW}, v129""")
        for i in range(1, 16): a(f"v_mov_b32 v{self.NEGM+i}, v{self.NEGM}")
        a(f"s_mov_b32 s{sSLOW+1}, s{sSLOW}\n s_waitcnt lgkmcnt(0)")

        a = H.a; v = self.PV
        XF, WF = 64, 128
        a(f"""
    s_setprio 3
    v_and_b32 v9, 7, v{vLANE}
    v_xor_b32 v9, v9, v8
    v_lshlrev_b32 v9, 4, v9
    v_lshl_add_u32 v19, v8, 10, v9
    s_lshl_b32 s{sPF}, s{sGRP}, 16
    s_lshl_b32 s{sT0}, s{sW}, 14
    s_add_u32 s{sPF}, s{sPF}, s{sT0}
    s_lshl_b32 s{sL}, s{sW}, 11
    s_add_u32 s{sL}, s{sL}, {XB}
    s_lshr_b32 s{sKVW}, s{sMEM}, 1
    s_mov_b32 s{sPR+2}, 16384
    v_mov_b32 v7, 0
    s_bitcmp1_b32 s{sMEM}, 0
    s_waitcnt lgkmcnt(0)
    s_cselect_b64 s[{sPR}:{sPR+1}], s[34:35], s[32:33]
    s_and_b32 s5, s5, 0xffff
    s_and_b32 s9, s9, 0xffff
    s_and_b32 s13, s13, 0xffff
    s_and_b32 s{sPR+1}, s{sPR+1}, 0xffff
    s_mov_b32 s{sT0}, {TAGW:#x}
    buffer_load_dword v47, v7, {WS}, s{sT0} offen sc1""")
        L = H.lab("nokv1")
        a(f"s_cmp_lg_u32 s{sKVW}, s{sW}\n s_cbranch_scc1 {L}\n s_mov_b32 s{sT0}, 0")
        a.label("L_wk")
        a(f"s_mov_b32 m0, s{sT0}\n s_nop 0")
        for k in range(4): a(f"buffer_load_dwordx4 v{vL16}, s[{sPR}:{sPR+3}], s{sT0} offen offset:{1024*k} lds")
        a(f"s_add_u32 s{sT0}, s{sT0}, 4096\n s_cmp_lt_u32 s{sT0}, 16384\n s_cbranch_scc1 L_wk")
        a.label(L)
        a(f"s_mov_b32 s{sT1}, s{sMEM}\n s_add_u32 s{sT2}, s{sMEM}, 8")
        a.label("L_x")
        a(f"""
    s_and_b32 s{sT0}, s{sT1}, 7
    s_lshl_b32 s{sG}, s{sT0}, 7
    s_add_u32 s{sG}, s{sG}, s{sPF}
    s_lshl_b32 s{sT0}, s{sT0}, 13
    s_add_u32 m0, s{sT0}, s{sL}
    s_add_u32 s{sT1}, s{sT1}, 1
    buffer_load_dwordx4 v19, {XS}, s{sG} offen lds
    s_add_u32 s{sG}, s{sG}, {8192 - 1024}
    s_cmp_lt_u32 s{sT1}, s{sT2}
    buffer_load_dwordx4 v19, {XS}, s{sG} offen offset:1024 lds
    s_cbranch_scc1 L_x""")
        H.nvm += 16
        self.setup_common(H, 16)
        self.x_addr(H, 40, 16, 42)
        a(f"s_lshl_b32 s{sT0}, s{sW}, 11\n v_add_u32 v40, s{sT0}, v40\n v_xor_b32 v41, 64, v40")
        a("v_mov_b32 v60, 0x3f803f80\n v_mov_b32 v61, 0x3f803f80\n v_mov_b32 v62, 0x3f803f80\n v_mov_b32 v63, 0x3f803f80")
        H.ts("q")
        L, L2 = H.lab("noinit"), H.lab("initd")
        a(f"s_cmp_lg_u32 s{sKVW}, s{sW}\n s_cbranch_scc1 {L}")
        a(f"""
    v_mov_b32 v48, 0
    v_mov_b32 v49, 0
    v_mov_b32 v50, 0
    v_mov_b32 v51, 0
    v_lshrrev_b32 v52, 1, v{vLANE}
    v_lshlrev_b32 v52, 13, v52
    v_and_b32 v53, 1, v{vLANE}
    v_lshl_add_u32 v52, v53, 4, v52
    s_lshl_b32 s{sT0}, s{sMEM}, 5
    s_add_u32 s{sT0}, s{sT0}, s{sFLG}
    s_mov_b64 exec, 0x3fff
    buffer_store_dwordx4 v[48:51], v52, {WS}, s{sT0} offen sc1
    s_lshl_b32 s{sT0}, s2, 7
    s_add_u32 s{sT0}, s{sT0}, {PFLAG:#x}
    s_mov_b64 exec, 1
    buffer_store_dword v48, v7, {WS}, s{sT0} offen sc1
    s_mov_b64 exec, -1
    v_mov_b32 v52, -1
    v_mov_b32 v53, -1
    v_mov_b32 v54, -1
    v_mov_b32 v55, -1
    s_lshl_b32 s{sT0}, s{sMEM}, 10
    s_add_u32 s{sT0}, s{sT0}, s{sAR}
    s_add_u32 s{sT0}, s{sT0}, {ST1:#x}
    buffer_store_dwordx4 v[52:55], v{vL16}, {WS}, s{sT0} offen sc1
    s_bfe_u32 s{sT1}, s{sMEM}, 0x10001
    s_mul_i32 s{sT1}, s{sT1}, 31
    s_cmp_eq_u32 s{sT1}, s{sGRP}
    s_cselect_b32 s{sT1}, 0, -1
    v_mov_b32 v56, s{sT1}
    v_mov_b32 v57, s{sT1}
    v_mov_b32 v58, s{sT1}
    v_mov_b32 v59, s{sT1}
    s_lshl_b32 s{sT0}, s{sMEM}, 8
    s_add_u32 s{sT0}, s{sT0}, s{sAR}
    s_add_u32 s{sT0}, s{sT0}, {HALO:#x}
    s_mov_b64 exec, 0xffff
    buffer_store_dwordx4 v[56:59], v{vL16}, {WS}, s{sT0} offen sc1
    s_mov_b64 exec, -1""")
        a(f"""
    v_bfe_u32 v42, v{vLANE}, 2, 2
    v_lshl_add_u32 v42, v17, 3, v42
    v_lshlrev_b32 v42, 5, v42
    v_and_b32 v43, 3, v{vLANE}
    v_lshl_add_u32 v42, v43, 3, v42
    s_waitcnt vmcnt(20)""")
        for ks in range(16):
            a(f"ds_read_b64_tr_b16 {P(WF+4*ks)}, v42 offset:{1024*ks}\n ds_read_b64_tr_b16 {P(WF+4*ks+2)}, v42 offset:{1024*ks+128}")
        a("s_waitcnt lgkmcnt(0)")
        for ks in range(16):
            a(f"v_mfma_f32_16x16x32_bf16 v[192:195], {vr(WF+4*ks)}, v[60:63], {'0' if ks == 0 else 'v[192:195]'}")
            a(f"v_mfma_f32_16x16x32_bf16 v[196:199], v[60:63], {vr(WF+4*ks)}, {'0' if ks == 0 else 'v[196:199]'}")
        a(f"s_waitcnt vmcnt(4)\n s_branch {L2}")
        a.label(L)
        a("s_waitcnt vmcnt(0)")
        a.label(L2)
        H.ts("q")
        rs = [H.ld(f"ds_read_b128 {vr(XF+4*ks)}, v{40 + (ks & 1)} offset:{8192*(ks >> 1)}") for ks in range(16)]
        Lo, Lj = H.lab("ori"), H.lab("orj")
        a(f"s_bitcmp1_b32 s{sMEM}, 0\n s_cbranch_scc1 {Lo}")
        for ori in range(2):
            for ks in range(16):
                if ks % 2 == 0: H.wait_ld(rs[ks+1])
                X, Wf = vr(XF+4*ks), vr(WF+4*ks)
                a(f"v_mfma_f32_16x16x32_bf16 v[36:39], v[60:63], {X}, {'0' if ks == 0 else 'v[36:39]'}")
                a(f"v_mfma_f32_16x16x32_bf16 v[32:35], {X}, {X}, {'0' if ks == 0 else 'v[32:35]'}")
                a(f"v_mfma_f32_16x16x32_bf16 v[48:51], {X if ori else Wf}, {Wf if ori else X}, {'0' if ks == 0 else 'v[48:51]'}")
            if ori == 0:
                a(f"s_branch {Lj}"); a.label(Lo)
        a.label(Lj)
        a("v_mov_b32 v45, 0")
        for i in range(4):
            a(f"s_mov_b32 vcc_lo, {0x00100001 << i:#x}\n s_mov_b32 vcc_hi, {0x10000100 << i:#x}\n v_cndmask_b32 v45, v45, v{32+i}, vcc")
        a(f"""
    v_mov_b32 v44, v45
    v_permlane32_swap_b32 v44, v45
    v_add_f32 v45, v44, v45
    v_mov_b32 v44, v45
    v_permlane16_swap_b32 v44, v45
    v_add_f32 v45, v44, v45
    v_mul_f32 v44, 0x3b000000, v36
    v_mul_f32 v45, 0x3b000000, v45
    v_fma_f32 v45, -v44, v44, v45
    v_max_f32 v45, 0, v45
    v_add_f32 v45, 0x3727c5ac, v45
    v_rsq_f32 v45, v45
    s_lshl_b32 s{sT0}, s{sW}, 7
    v_lshl_add_u32 v46, v16, 3, s{sT0}
    ds_write_b64 v46, v[44:45] offset:{self.SCR}""")
        a(f"v_readfirstlane_b32 s{sTAG}, v47\n s_add_u32 s{sTAG}, s{sTAG}, 1")
        L, Lv, Lp = H.lab("nokv3"), H.lab("isv"), H.lab("pub")
        a(f"""
    s_waitcnt lgkmcnt(0)
    s_cmp_lg_u32 s{sKVW}, s{sW}
    s_cbranch_scc1 {L}
    s_lshl_b32 s{sT1}, s{sGRP}, 1
    s_lshr_b32 s{sT2}, s{sW}, 1
    s_add_u32 s{sT1}, s{sT1}, s{sT2}
    s_lshl_b32 s{sT1}, s{sT1}, 11
    s_add_u32 s{sT1}, s{sT1}, {KV:#x}             ; tile32*2048
    v_lshrrev_b32 v42, 1, v17                     ; hA
    v_and_b32 v43, 0xff, v{vD}                    ; (t or d)*16 + (g&1)*8
    s_bitcmp1_b32 s{sMEM}, 0
    s_cbranch_scc1 {Lv}""")
        a(f"s_add_u32 s{sT1}, s{sT1}, s{sORD}\n v_lshl_add_u32 v43, v42, 9, v43")
        for i in range(4): a(f"v_fma_f32 v{48+i}, -v44, v{192+i}, v{48+i}")
        for i in range(4): a(f"v_mul_f32 v{48+i}, v{48+i}, v45")
        a(f"""
    v_cvt_pk_bf16_f32 v52, v48, v49
    v_cvt_pk_bf16_f32 v53, v50, v51
    v_mov_b32 v57, 0
    buffer_store_dwordx2 v[52:53], v43, {WS}, s{sT1} offen sc1
    v_dot2_f32_bf16 v57, v52, v52, v57
    v_dot2_f32_bf16 v57, v53, v53, v57
    v_mov_b32 v58, v57
    v_permlane32_swap_b32 v57, v58
    v_add_f32 v57, v57, v58
    v_mov_b32 v58, v57
    v_permlane16_swap_b32 v57, v58
    v_add_f32 v57, v57, v58""")
        for r in (8, 4, 2, 1): a(f"v_max_f32_dpp v57, v57, v57 row_ror:{r} row_mask:0xf bank_mask:0xf")
        a(f"s_branch {Lp}")
        a.label(Lv)
        a(f"v_lshl_add_u32 v46, v17, 5, s{sT0}\n ds_read_b128 v[32:35], v46 offset:{self.SCR}\n ds_read_b128 v[36:39], v46 offset:{self.SCR+16}")
        a(f"s_lshl_b32 s{sT2}, s{sORD}, 1\n s_add_u32 s{sT1}, s{sT1}, s{sT2}\n v_lshl_add_u32 v43, v42, 8, v43\n s_waitcnt lgkmcnt(0)")
        for i in range(4): a(f"v_fma_f32 v{48+i}, -v{32+2*i}, v{196+i}, v{48+i}")
        for i in range(4): a(f"v_mul_f32 v{48+i}, v{48+i}, v{33+2*i}")
        a(f"""
    v_cvt_pk_bf16_f32 v52, v48, v49
    v_cvt_pk_bf16_f32 v53, v50, v51
    v_mov_b32 v57, 0
    buffer_store_dwordx2 v[52:53], v43, {WS}, s{sT1} offen offset:1024 sc1""")
        a.label(Lp)
        a(f"""
    v_mov_b32 v56, s{sTAG}
    v_mov_b32 v58, s{sXCC}
    v_mov_b32 v59, s{sTAG}
    s_lshl_b32 s{sT0}, s{sGRP}, 3
    s_add_u32 s{sT0}, s{sT0}, s{sMEM}
    s_lshl_b32 s{sT0}, s{sT0}, 7
    s_add_u32 s{sT0}, s{sT0}, {KFLAG:#x}""")
        a.label(L)
        H.ts("q")
        H.bar()
        L = H.lab("nokv4")
        a(f"""
    s_cmp_lg_u32 s{sKVW}, s{sW}
    s_cbranch_scc1 {L}
    s_waitcnt vmcnt(0)
    s_mov_b64 exec, 1
    buffer_store_dwordx4 v[56:59], v7, {WS}, s{sT0} offen sc1
    s_mov_b64 exec, -1""")
        a.label(L)
        a("s_setprio 0")
        self.prep_setup(H, 200, HI)
        a(f"v_lshlrev_b32 v{self.TA}, 7, v{vLANE}\n v_and_b32 v46, 0xfff, v{self.TA}\n s_lshr_b32 s{sRND}, s{sGRP}, 2")
        L = H.lab("nopoll")
        a(f"s_cmp_lg_u32 s{sW}, 0\n s_cbranch_scc1 {L}")
        self.kpoll(46, True)
        a(f"s_lshl_b32 s{sW4}, s{sRND}, 14\n s_add_u32 s{sW4}, s{sW4}, {KV:#x}")
        for i in range(4):
            a(f"s_mov_b32 m0, {4096*i}\n s_nop 0")
            for k in range(4): a(f"buffer_load_dwordx4 v{vL16}, {WS}, s{sW4} offen offset:{1024*k} sc1 lds")
            a(f"s_add_u32 s{sW4}, s{sW4}, 4096")
        a(f"""
    s_and_b32 s{sT0}, s{sGRP}, 3
    s_lshl_b32 s{sT0}, s{sT0}, 3
    s_lshl_b32 s{sT0}, 0xff, s{sT0}
    v_cmp_ne_u32 vcc, s{sXCC}, v50
    s_and_b32 s{sT0}, s{sT0}, vcc_lo
    s_cselect_b64 s[{sSLOW}:{sSLOW+1}], -1, 0""")
        for r in (8, 4, 2, 1): a(f"v_max_f32_dpp v49, v49, v49 row_ror:{r} row_mask:0xf bank_mask:0xf")
        a(f"""
    v_mov_b32 v50, v49
    v_permlane16_swap_b32 v49, v50
    v_max_f32 v49, v49, v50
    v_sqrt_f32 v49, v49
    v_mov_b32 v51, s{sSLOW}
    v_mul_f32 v50, -1.0, v49
    v_mov_b32 v46, {self.SCR + 512}
    ds_write_b64 v46, v[50:51]
    s_waitcnt lgkmcnt(0)""")
        a.label(L)
        a(f"s_add_u32 s{sRND}, s{sRND}, 1\n s_and_b32 s{sRND}, s{sRND}, 7")
        self.nkv = 1
        H.ts("q")
        H.bar()
        a(f"v_mov_b32 v46, {self.SCR + 512}\n ds_read_b64 v[50:51], v46\n s_waitcnt lgkmcnt(0)\n v_readfirstlane_b32 s{sSLOW}, v51\n s_mov_b32 s{sSLOW+1}, s{sSLOW}")
        self.sync_check()
    TA = 18
    def kpoll(self, va, first=False):
        H = self.H; a = H.a; L = H.lab("kp")
        a(f"s_lshl_b32 s{sT0}, s{sRND}, 12\n s_add_u32 s{sT0}, s{sT0}, {KFLAG:#x}\n s_mov_b32 s{sCNT}, 0")
        a.label(L)
        a(f"""
    buffer_load_dwordx4 v[48:51], v{va}, {WS}, s{sT0} offen sc1
    s_add_u32 s{sCNT}, s{sCNT}, 1
    s_cmp_gt_u32 s{sCNT}, {SPIN}
    s_cbranch_scc1 main_exit
    s_waitcnt vmcnt(0)
    v_cmp_ne_u32 vcc, s{sTAG}, v48
    v_cmp_ne_u32 s[36:37], s{sTAG}, v51
    s_or_b64 vcc, vcc, s[36:37]
    s_cbranch_vccnz {L}""")
    nkv = 0
    def kv(self, n):
        H = self.H
        for r in range(n):
            H.a(f"""
    s_lshl_b32 s{sW4}, s{sRND}, 14
    s_lshl_b32 s{sPL}, s{sW}, 12
    s_add_u32 s{sW4}, s{sW4}, s{sPL}
    s_add_u32 s{sW4}, s{sW4}, {KV:#x}
    s_add_u32 m0, s{sPL}, {16384*self.nkv}
    s_add_u32 s{sRND}, s{sRND}, 1
    s_and_b32 s{sRND}, s{sRND}, 7""")
            self.nkv += 1
            for i in range(4): self.kvseq = H.vm(f"buffer_load_dwordx4 v{vL16}, {WS}, s{sW4} offen offset:{1024*i} sc1 lds")

    PV = 20
    def prep_setup(self, S, v, win=20480):
        a = S.a
        T0, T1, T2, T3 = sT0, sT1, sT2, sT3
        def dst(i, base): a(f"s_lshl_b32 s{sPD+i}, s{T2}, 10\n s_lshl_b32 s{T3}, s{sW}, 8\n s_add_u32 s{sPD+i}, s{sPD+i}, s{T3}\n s_add_u32 s{sPD+i}, s{sPD+i}, {base:#x}")
        def std(q, i, base, rows=True):
            a(f"""
    s_lshr_b32 s{T1}, s{q}, 3
    s_and_b32 s{T2}, s{q}, 7
    s_lshl_b32 s{sPS+i}, s{T1}, 15
    s_lshl_b32 s{T3}, s{T2}, 7
    s_add_u32 s{sPS+i}, s{sPS+i}, s{T3}""")
            if rows: a(f"s_lshl_b32 s{T3}, s{sW}, 13\n s_add_u32 s{sPS+i}, s{sPS+i}, s{T3}")
            if base is not None:
                a(f"s_lshl_b32 s{T2}, s{T2}, 6\n s_add_u32 s{T2}, s{T2}, s{T1}"); dst(i, base)
        def w4t(q, i, vd):
            std(q, i, None)
            a(f"""
    s_mul_i32 s{T2}, s{T2}, 56
    s_add_u32 s{T2}, s{T2}, s{T1}
    s_lshl_b32 s{T2}, s{T2}, 2
    s_mul_i32 s{T1}, s{T1}, 9363
    s_lshr_b32 s{T1}, s{T1}, 16
    v_subrev_u32 v{vd}, s{T1}, v{v+9}
    v_and_b32 v{vd}, 3, v{vd}
    v_lshl_add_u32 v{vd}, v{vd}, 10, v{v+10}""")
            dst(i, W4)
        def w3t(q, i):
            a(f"""
    s_mul_i32 s{T1}, s{q}, 2341
    s_lshr_b32 s{T1}, s{T1}, 16                   ; ks = q/28
    s_mul_i32 s{T2}, s{T1}, 28
    s_sub_u32 s{T2}, s{q}, s{T2}                  ; nb
    s_lshl_b32 s{T3}, s{T1}, 2
    s_add_u32 s{T3}, s{T3}, s{sW}
    s_mul_i32 s{sPS+i}, s{T3}, {8*3584}
    s_lshl_b32 s{T3}, s{T2}, 7
    s_add_u32 s{sPS+i}, s{sPS+i}, s{T3}
    s_lshl_b32 s{T2}, s{T2}, 6
    s_add_u32 s{T2}, s{T2}, s{T1}""")
            dst(i, W3)
        a(f"""
    v_lshrrev_b32 v{v+9}, 4, v{vLANE}             ; q
    v_and_b32 v{v+10}, 0xff, v{vL16}              ; i*16
    v_lshl_add_u32 v{v+4}, v{v+9}, 14, v{v+10}
    v_lshrrev_b32 v{v+7}, 3, v{vLANE}
    v_and_b32 v{v+8}, 0x7f, v{vL16}
    v_lshl_add_u32 v{v}, v{v+7}, 10, v{v+8}
    v_mul_u32_u24 v{v+1}, 3584, v{v+7}
    v_add_u32 v{v+1}, v{v+1}, v{v+8}""")
        w3t(2, 0); w4t(2, 1, v+5)
        L, Le = S.lab("pwo"), S.lab("pend")
        a(f"s_cmp_ge_u32 s2, 192\n s_cbranch_scc1 {L}\n s_add_u32 s{T0}, s2, 256")
        w3t(T0, 2); w4t(T0, 3, v+6)
        a(f"v_mov_b32 v{v+2}, v{v+1}\n v_mov_b32 v{v+3}, v{v}\n s_branch {Le}")
        a.label(L)
        a(f"s_sub_u32 s{T0}, s2, 192"); std(T0, 2, WO, rows=False)
        a(f"s_sub_u32 s{T0}, s2, 128"); std(T0, 3, WO, rows=False)
        a(f"""
    s_lshr_b32 s{T1}, s{sW}, 1
    s_lshl_b32 s{T1}, s{T1}, 4
    s_and_b32 s{T2}, s{sW}, 1
    s_lshl_b32 s{T2}, s{T2}, 2
    s_add_u32 s{T1}, s{T1}, s{T2}
    v_and_b32 v{v+2}, 4, v{v+7}
    v_add3_u32 v{v+2}, v{v+2}, v{v+7}, s{T1}
    v_lshl_add_u32 v{v+2}, v{v+2}, 10, v{v+8}
    v_mov_b32 v{v+3}, v{v+2}
    v_mov_b32 v{v+6}, v{v+4}""")
        a.label(Le)
        a(f"s_and_b32 s{T0}, s2, 127"); std(T0, 4, W1)
        a(f"""
    s_lshr_b32 s{T0}, s2, 7
    s_lshl_b32 s{T0}, s{T0}, 19
    s_add_u32 s{sPD+4}, s{sPD+4}, s{T0}
    s_mul_i32 s{T0}, s{sW}, 5120
    s_add_u32 s{T0}, s{T0}, {win}
    v_add_u32 v{v+7}, s{T0}, v{vL16}
    v_bfe_u32 v{v+8}, v{vLANE}, 2, 2
    v_lshlrev_b32 v{v+8}, 7, v{v+8}
    v_lshl_add_u32 v{v+8}, v{v+9}, 5, v{v+8}
    v_and_b32 v{v+9}, 3, v{vLANE}
    v_lshl_add_u32 v{v+8}, v{v+9}, 3, v{v+8}
    v_add_u32 v{v+8}, s{T0}, v{v+8}""")
    def prep_load(self, S, v, dst):
        a = S.a
        PR = f"s[{sPR}:{sPR+3}]"
        wo, w1, w2, w3, w4 = (f"s[{sPP+2*i}:{sPP+2*i+1}]" for i in range(5))
        big, small = 0x1c0000, 0x80000
        for i in range(5):
            if i < 2: a(f"s_mov_b64 s[{sPR}:{sPR+1}], {(w3, w4)[i]}\n s_mov_b32 s{sPR+2}, {big:#x}")
            elif i < 4:
                a(f"s_mov_b32 s{sT1}, {small:#x}\n s_cmp_ge_u32 s2, 192\n s_cselect_b64 s[{sPR}:{sPR+1}], {wo}, {(w3, w4)[i-2]}\n s_cselect_b32 s{sPR+2}, s{sT1}, {big:#x}")
            else: a(f"s_cmp_ge_u32 s2, 128\n s_cselect_b64 s[{sPR}:{sPR+1}], {w2}, {w1}\n s_mov_b32 s{sPR+2}, {small:#x}")
            a(f"s_and_b32 s{sPR+1}, s{sPR+1}, 0xffff")
            S.vm(f"buffer_load_dwordx4 {vr(dst+4*i)}, v{(v+1, v, v+2, v+3, v)[i]}, {PR}, s{sPS+i} offen")
    def prep_finish(self, S, v, d):
        for i in range(5):
            S.a(f"ds_read_b64_tr_b16 {P(d+4*i)}, v{v+8} offset:{1024*i}\n ds_read_b64_tr_b16 {P(d+4*i+2)}, v{v+8} offset:{1024*i+512}")
    def prep_store(self, S, v, d):
        S.a("s_waitcnt lgkmcnt(0)")
        for i in range(5): r = S.vm(f"buffer_store_dwordx4 {vr(d+4*i)}, v{(v+4, v+5, v+4, v+6, v+4)[i]}, {WS}, s{sPD+i} offen sc1")
        return r

    hXT, hACC, hBP = 8, 16, 32
    hRES, hSTAT, hCS1, hR1, hTMP, hCS3, hX = 64, 80, 96, 100, 104, 112, 120
    UB = tuple(int(x) for x in os.environ.get('UB', '28,72,86,98,104').split(','))
    UBK = int(os.environ.get('UBK', '12'))
    def attention(self):
        C, H = self.C, self.H; a = C.a
        S0, S1, NEGM, OA, OB, QA, QB, vIDX, vKA, vVA = self.S0, self.S1, self.NEGM, self.OA, self.OB, self.QA, self.QB, self.vIDX, self.vKA, self.vVA
        kf = lambda t: self.KVR + 12*(t & 1)
        C.ts("at"); C.bar(); C.ts("at")
        a("s_setprio 1")
        def rdK(t): a(f"ds_read_b128 {vr(kf(t))}, v{vKA} offset:{(t&31)*2048}")
        def rdV(t):
            a(f"s_mov_b64 exec, {sVM}")
            a(f"ds_read_b128 {vr(kf(t)+4)}, v{vVA} offset:{(t&31)*2048+1024}")
            a(f"ds_read_b128 {vr(kf(t)+8)}, v{vVA} offset:{(t&31)*2048+1536}")
            a("s_mov_b64 exec, -1")
        def qk(u): a(f"v_mfma_f32_32x32x16_bf16 {vr((S0,S1)[u&1],16)}, {vr(kf(u>>1))}, {vr((QA,QB)[u&1])}, {vr(NEGM,16)}")
        def pv(u, h): a(f"v_smfmac_f32_32x32x32_bf16 {vr((OA,OB)[u&1],16)}, {vr(kf(u>>1)+4+4*h)}, {vr((S0,S1)[u&1]+8*h,8)}, v{vIDX}")
        def ex(u, lo, hi):
            for i in range(lo, hi): a(f"v_exp_f32 v{(S0,S1)[u&1]+i}, v{(S0,S1)[u&1]+i}")
        x = self.cT
        a(f"s_lshl_b32 s{sT0}, s{sW}, 13\n s_add_u32 s{sT0}, s{sT0}, {HI}\n v_add_u32 v{x}, s{sT0}, v{vL16}\n s_lshl_b32 s{sT0}, s{sW}, 14\n v_add_u32 v{x+1}, s{sT0}, v{vL16}")
        plan = {}
        for ub, f0, n, va in ((self.UB[1], 0, 8, x), (self.UB[2], 8, 16, x+1), (self.UB[3], 24, 8, x)):
            for i in range(n): plan.setdefault(ub + 1 + 2*(i // 4), []).append(f"ds_read_b128 {vr(128+4*(f0+i))}, v{va} offset:{1024*i}")
        rdK(0); rdV(0); rdK(1)
        a("s_waitcnt lgkmcnt(3)")
        qk(0)
        for u in range(128):
            t, q = u >> 1, u & 1
            if u % 8 == 0: C.ts("at")
            ex(u, 0, 2)
            if u > 0: pv(u-1, 1)
            ex(u, 2, 5)
            if u + 1 < 128: qk(u+1)
            if u in self.UB or u == self.UBK: C.bar()
            if q == 0:
                if t + 1 < 64:
                    if t + 1 == 32: a(f"v_add_u32 v{vVA}, 0x10000, v{vVA}")
                    rdV(t+1)
                if t + 2 < 64:
                    if t + 2 == 32: a(f"v_add_u32 v{vKA}, 0x10000, v{vKA}")
                    rdK(t+2)
            for y in plan.pop(u, []): a(y)
            ex(u, 5, 10)
            if q == 0: a(f"s_waitcnt lgkmcnt({3 if t + 2 < 64 else (2 if t + 1 < 64 else 0)})")
            pv(u, 0)
            ex(u, 10, 16)
        assert not plan
        pv(127, 1)
        C.ts(); C.ts("at")
        t = self.cT
        a(f"""
    v_lshrrev_b32 v{t+1}, 5, v{vLANE}
    v_lshlrev_b32 v{t+1}, 10, v{t+1}
    v_and_b32 v{t+2}, 31, v{vLANE}
    v_lshl_add_u32 v{t+4}, v{t+2}, 4, v{t+1}""")
        C.tile_soff(sT1, O_)
        a(f"v_min_f32 v{t}, v{OA+8}, v{OB+8}\n v_max_f32 v{t+1}, v{OA+8}, v{OB+8}\n v_cmp_nle_f32 vcc, {f32(2.0**-80)}, v{t}\n s_mov_b32 s{sT2}, vcc_lo\n v_cmp_nge_f32 vcc, {f32(2.0**80)}, v{t+1}\n s_or_b32 s{sT2}, s{sT2}, vcc_lo\n s_cbranch_scc1 attn_redo")
        a.label("attn_done")
        a(f"v_mov_b32 v{OA+9}, v{OA+8}\n v_mov_b32 v{OB+9}, v{OB+8}\n v_permlane32_swap_b32 v{OA+8}, v{OA+9}\n v_permlane32_swap_b32 v{OB+8}, v{OB+9}")
        a(f"v_rcp_f32 v{t+2}, v{OA+8}\n v_rcp_f32 v{t+6}, v{OB+8}")
        for o, r in ((OA, t+2), (OB, t+6)):
            for i in range(4): a(f"v_pk_mul_f32 {P(o+2*i)}, {P(o+2*i)}, {P(r)} op_sel_hi:[1,0]")
            for i in range(4): a(f"v_cvt_pk_bf16_f32 v{o+i}, v{o+2*i}, v{o+2*i+1}")
        C.setvcc()
        C.cstore([f"buffer_store_dwordx4 {vr(OA)}, v{t+4}, {WS}, s{sT1} offen", f"buffer_store_dwordx4 {vr(OB)}, v{t+4}, {WS}, s{sT1} offen offset:512"])
        a("s_setprio 0")
        C.set_act(O_)
        a(f"v_and_b32 v{self.cF}, 31, v{vLANE}\n v_lshlrev_b32 v{self.cF}, 2, v{self.cF}")
        C.flag(0, t)
        C.ts()
        a = H.a; v = self.PV; d = v + 8
        CW = v + 7
        a(f"v_mov_b32 v{CW}, {HI + 32752}\n v_mov_b32 v6, 0\n ds_write_b64 v{CW}, v[6:7]\n ds_write_b32 v{CW}, v6 offset:8\n s_waitcnt lgkmcnt(0)")
        a("s_waitcnt vmcnt(0)"); H.bar()
        TA, TD = self.TA, 19
        def spin(n, off=0):
            L = H.lab("hs")
            a(f"s_mov_b32 s{sCNT}, 0")
            a.label(L)
            a(f"""
    s_sleep 1
    ds_read_b32 v6, v{CW} offset:{off}
    s_add_u32 s{sCNT}, s{sCNT}, 1
    s_cmp_gt_u32 s{sCNT}, {SPIN*16}
    s_cbranch_scc1 main_exit
    s_waitcnt lgkmcnt(0)
    v_cmp_gt_u32 vcc, {n}, v6
    s_cbranch_vccnz {L}""")
        def count(off=0): a(f"v_mov_b32 v6, 1\n s_mov_b64 exec, 1\n ds_add_u32 v{CW}, v6 offset:{off}\n s_mov_b64 exec, -1")
        def pub():
            L = H.lab("nopf")
            a(f"s_cmp_lg_u32 s{sW}, 3\n s_cbranch_scc1 {L}")
            a(f"""
    s_lshl_b32 s{sT0}, s2, 7
    s_add_u32 s{sT0}, s{sT0}, {PFLAG:#x}
    v_mov_b32 v6, 1
    s_mov_b64 exec, 1
    buffer_store_dword v6, v7, {WS}, s{sT0} offen sc1
    s_mov_b64 exec, -1""")
            a.label(L)
        def kall():
            L = H.lab("kall")
            a(f"s_mov_b32 s{sCNT}, 0\n s_lshl_b32 s{sT0}, s{sW}, 13\n s_add_u32 s{sT0}, s{sT0}, {KFLAG:#x}")
            a.label(L)
            a(f"""
    buffer_load_dword v48, v{TA}, {WS}, s{sT0} offen sc1
    s_add_u32 s{sCNT}, s{sCNT}, 1
    s_cmp_gt_u32 s{sCNT}, {SPIN}
    s_cbranch_scc1 main_exit
    s_waitcnt vmcnt(0)
    v_cmp_ne_u32 vcc, s{sTAG}, v48
    s_mov_b64 exec, vcc
    s_cbranch_vccnz {L}
    s_mov_b64 exec, -1""")
            count(8); spin(4, 8)
        a(f"v_and_b32 v46, 0xfff, v{TA}")
        self.prep_finish(H, 200, 224)
        self.kpoll(46); self.kv(1); k1 = self.kvseq
        self.prep_store(H, 200, 224)
        H.wait_vm(k1); H.bar()
        kall(); pub()
        self.kv(6)
        H.wait_vm(self.kvseq); H.ts("h"); H.bar()
        def code_touch():
            L = H.lab("pc")
            a(f"s_getpc_b64 s[36:37]")
            a.label(L)
            a(f"""
    s_sub_u32 s36, s36, {L}-main_kernel
    s_subb_u32 s37, s37, 0
    s_and_b32 s{sT1}, s{sGRP}, 3
    s_lshl_b32 s{sT1}, s{sT1}, 5
    s_add_u32 s{sT1}, s{sT1}, s{sNT}
    s_lshl_b32 s{sT1}, s{sT1}, 9
    v_and_b32 v{v+2}, 0x1ff, v{TA}
    v_add_u32 v{v+2}, s{sT1}, v{v+2}
    v_min_u32 v{v+2}, main_end-main_kernel-4, v{v+2}""")
            H.vm(f"global_load_dword v{TD}, v{v+2}, s[36:37]")
        def arena_touch():
            if self.opt.get("usc1"):
                a(f"""
    s_lshl_b32 s{sTCH}, s{sNT}, 12
    s_lshl_b32 s{sT1}, s{sNT}, 8
    s_sub_u32 s{sT1}, s{sT1}, s{sTCH}
    s_add_u32 s{sT1}, s{sT1}, {ST1 - 4096}
    s_add_u32 s{sTCH}, s{sTCH}, s{sAR}
    v_mov_b32 v6, v{TA}
    s_mov_b32 exec_lo, 0
    v_add_u32 v6, s{sT1}, v6
    s_mov_b32 exec_lo, -1
    s_mov_b32 exec_hi, 3""")
                H.vm(f"buffer_load_dword v{TD}, v6, {WS}, s{sTCH} offen")
                a("s_mov_b64 exec, -1")
                return
            a(f"s_mul_i32 s{sTCH}, s{sNT}, {TOUCHN*128}\n s_add_u32 s{sTCH}, s{sTCH}, s{sAR}\n s_add_u32 s{sTCH}, s{sTCH}, {TOUCH0:#x}")
            H.vm(f"buffer_load_dword v{TD}, v{TA}, {WS}, s{sTCH} offen")
            a(f"s_mov_b32 exec_lo, 0x7ff\n s_mov_b32 exec_hi, 0\n s_add_u32 s{sTCH}, s{sTCH}, 8192")
            H.vm(f"buffer_load_dword v{TD}, v{TA}, {WS}, s{sTCH} offen")
            a("s_mov_b64 exec, -1")
        hi = f"s_lshl_b32 s{sPL}, s{sW}, 13\n s_add_u32 s{sPL}, s{sPL}, {HI}"
        lo = f"s_lshl_b32 s{sPL}, s{sW}, 14"
        F = lambda *x, **k: H.run(H.frags(*x, **k))
        code_touch()
        AP = self.opt.get("ap", "none")
        if AP == "pre": arena_touch()
        L0 = H.lab("pchk")
        a(f"s_lshl_b32 s{sPS}, s{sW}, 13\n s_add_u32 s{sPS}, s{sPS}, {PFLAG:#x}\n s_mov_b32 s{sCNT}, 0")
        a.label(L0)
        a(f"""
    buffer_load_dword v{d}, v{TA}, {WS}, s{sPS} offen sc1
    s_add_u32 s{sCNT}, s{sCNT}, 1
    s_cmp_gt_u32 s{sCNT}, {SPIN}
    s_cbranch_scc1 main_exit
    s_waitcnt vmcnt(0)
    v_cmp_ne_u32 vcc, 1, v{d}
    s_mov_b64 exec, vcc
    s_sleep 2
    s_cbranch_vccnz {L0}
    s_mov_b64 exec, -1""")
        count(4); spin(4, 4); count(4)
        L = H.lab("notag")
        a(f"""
    s_or_b32 s{sT0}, s2, s{sW}
    s_cmp_lg_u32 s{sT0}, 0
    s_cbranch_scc1 {L}
    v_mov_b32 v6, s{sTAG}
    s_mov_b32 s{sT0}, {TAGW:#x}
    s_mov_b64 exec, 1
    buffer_store_dword v6, v7, {WS}, s{sT0} offen sc1
    s_mov_b64 exec, -1""")
        a.label(L)
        H.ts("h")
        for base, reg in ((WO, 64), (W1, 128), (W2, 192)):
            H.set_wbase(base, 16, sW4); F(16, sW4, dst=V(reg))
        L = H.lab("ack")
        a(f"s_cmp_lg_u32 s{sW}, 3\n s_cbranch_scc1 {L}")
        spin(8, 4)
        a.label(L)
        H.set_w3(0); a(hi)
        F(8, sPF, lds=sPL); r1 = H.lastf
        code_touch()
        H.xo_soff(sT1)
        for jt in range(4):
            H.vm(f"buffer_load_dwordx2 {P(self.hXT+2*jt)}, v{vXO}, {XS}, s{sT1} offen")
            if jt < 3: a(f"s_add_u32 s{sT1}, s{sT1}, 16384")
        a(f"s_and_b32 s{sT1}, s{sGRP}, 3\n s_mul_i32 s{sT1}, s{sT1}, 6144\n s_add_u32 s{sTCH}, s{sPF}, s{sT1}\n s_mov_b32 exec_hi, 0xffff")
        H.vm(f"buffer_load_dword v{TD}, v{TA}, {WS}, s{sTCH} offen")
        a("s_mov_b64 exec, -1")
        if AP == "mid": arena_touch()
        H.wait_vm(r1); H.ts("h"); H.bar()
        a(lo); F(16, sPF, lds=sPL); r2 = H.lastf
        code_touch()
        a(f"""
    s_and_b32 s{sT1}, s{sGRP}, 3
    s_lshl_b32 s{sTCH}, s{sT1}, 5
    s_add_u32 s{sTCH}, s{sTCH}, s{sNT}
    s_mul_i32 s{sTCH}, s{sTCH}, 14336
    s_add_u32 s{sTCH}, s{sTCH}, {W4:#x}""")
        H.vm(f"buffer_load_dword v{TD}, v{TA}, {WS}, s{sTCH} offen")
        H.wait_vm(r2); H.ts("h"); H.bar()
        a(hi); F(8, sPF, lds=sPL); r3 = H.lastf
        a(f"s_add_u32 s{sTCH}, s{sTCH}, 6144")
        H.vm(f"buffer_load_dword v{TD}, v{TA}, {WS}, s{sTCH} offen")
        H.wait_vm(r3); H.ts("h"); H.bar()
        H.bar()
        a(lo); F(16, sPF, lds=sPL)
        H.set_w3(3)
        a(f"s_lshl_b32 s{sT5}, s{sORD}, 5\n s_add_u32 s{sPF}, s{sPF}, s{sT5}"); a(hi)
        F(8, sPF, lds=sPL)
        arena_touch()
        code_touch()
        a("s_waitcnt vmcnt(0)")
        H.setvcc()
        H.tile_soff(sT4, H_)
        a("s_setprio 1")
        H.ts("h")
        self.sync_check()

    def fallback(self):
        C = self.C; a = C.a; t = self.cT
        S0, NEGM, KF, VF, vVA, vIDX = self.S0, self.NEGM, self.KVR, self.KVR+4, self.vVA, self.vIDX
        a.label("attn_redo")
        a(f"v_and_b32 v{vVA}, 0x3ff, v{vVA}")
        for (Q, O) in ((self.QA, self.OA), (self.QB, self.OB)):
            L1, L2 = C.lab("fb1"), C.lab("fb2")
            a(f"v_mov_b32 v{t}, 0xff800000\n s_mov_b32 s{sT2}, {KV:#x}")
            a.label(L1)
            a(f"""
    buffer_load_dwordx4 {vr(KF)}, v{vL16}, {WS}, s{sT2} offen sc1
    s_add_u32 s{sT2}, s{sT2}, 2048
    s_waitcnt vmcnt(0)
    v_mfma_f32_32x32x16_bf16 {vr(S0,16)}, {vr(KF)}, {vr(Q)}, 0""")
            for i in range(8): a(f"v_max3_f32 v{t}, v{t}, v{S0+2*i}, v{S0+2*i+1}")
            a(f"""
    s_cmp_lt_u32 s{sT2}, {KV+131072:#x}
    s_cbranch_scc1 {L1}
    v_mov_b32 v{t+1}, v{t}
    v_permlane32_swap_b32 v{t}, v{t+1}
    v_max_f32 v{t}, v{t}, v{t+1}
    v_sub_f32 v{t}, 0, v{t}""")
            for i in range(16): a(f"v_mov_b32 v{NEGM+i}, v{t}")
            for i in range(16): a(f"v_mov_b32 v{O+i}, 0")
            a(f"s_mov_b32 s{sT2}, {KV:#x}")
            a.label(L2)
            a(f"""
    buffer_load_dwordx4 {vr(KF)}, v{vL16}, {WS}, s{sT2} offen sc1
    s_mov_b64 exec, {sVM}
    buffer_load_dwordx4 {vr(VF)}, v{vVA}, {WS}, s{sT2} offen offset:1024 sc1
    buffer_load_dwordx4 {vr(VF+4)}, v{vVA}, {WS}, s{sT2} offen offset:1536 sc1
    s_mov_b64 exec, -1
    s_add_u32 s{sT2}, s{sT2}, 2048
    s_waitcnt vmcnt(0)
    v_mfma_f32_32x32x16_bf16 {vr(S0,16)}, {vr(KF)}, {vr(Q)}, {vr(NEGM,16)}""")
            for i in range(16): a(f"v_exp_f32 v{S0+i}, v{S0+i}")
            a(f"""
    v_smfmac_f32_32x32x32_bf16 {vr(O,16)}, {vr(VF)}, {vr(S0,8)}, v{vIDX}
    v_smfmac_f32_32x32x32_bf16 {vr(O,16)}, {vr(VF+4)}, {vr(S0+8,8)}, v{vIDX}
    s_nop 15
    s_cmp_lt_u32 s{sT2}, {KV+131072:#x}
    s_cbranch_scc1 {L2}""")
        a("s_nop 15\n s_branch attn_done")

    cF, cP = 120, 121
    cACC, cBP, cSTAT, cCS3, cTMP, cOUT = 16, 48, 80, 96, 104, 112
    def prod_stats(self, vals):
        H = self.H; a = H.a; t = self.hTMP; x = self.hBP
        for jt in range(4): a(f"v_pk_add_f32 {P(x+2*jt)}, {P(vals+4*jt)}, {P(vals+4*jt+2)}")
        for jt in range(4): a(f"v_pk_mul_f32 {P(x+8+2*jt)}, {P(vals+4*jt)}, {P(vals+4*jt)}")
        for jt in range(4): a(f"v_pk_fma_f32 {P(x+8+2*jt)}, {P(vals+4*jt+2)}, {P(vals+4*jt+2)}, {P(x+8+2*jt)}")
        for jt in range(8): a(f"v_add_f32 v{t+jt}, v{x+2*jt}, v{x+2*jt+1}")
        a(f"""
    s_lshl_b32 s{sT5}, s{sW}, 10
    s_add_u32 s{sT5}, s{sT5}, {XST}
    v_permlane32_swap_b32 v{t}, v{t+2}
    v_permlane32_swap_b32 v{t+1}, v{t+3}
    v_permlane32_swap_b32 v{t+4}, v{t+6}
    v_permlane32_swap_b32 v{t+5}, v{t+7}
    v_pk_add_f32 {P(t)}, {P(t)}, {P(t+2)}
    v_pk_add_f32 {P(t+4)}, {P(t+4)}, {P(t+6)}
    v_lshl_add_u32 v{x}, v{vLANE}, 3, s{sT5}
    v_permlane16_swap_b32 v{t}, v{t+1}
    v_permlane16_swap_b32 v{t+4}, v{t+5}
    v_add_f32 v{t}, v{t}, v{t+1}
    v_add_f32 v{t+1}, v{t+4}, v{t+5}
    ds_write_b64 v{x}, {P(t)}""")
    def stat_publish(self, base):
        C = self.C; a = C.a; t = self.cTMP; x = self.cT
        a(f"""
    v_lshlrev_b32 v{x}, 3, v{vLANE}
    v_add_u32 v{x}, {XST}, v{x}
    s_lshl_b32 s{sT2}, s{sMEM}, 3
    s_add_u32 s{sT2}, s{sT2}, s{sAR}
    s_add_u32 s{sT2}, s{sT2}, {base:#x}
    v_lshlrev_b32 v{x+1}, 6, v{vLANE}
    s_lshl_b32 s{sT5}, s{sW}, 4
    s_lshl_b64 s[36:37], 0xffff, s{sT5}""")
        C.bar()
        for p in range(4): a(f"ds_read_b64 {P(t+2*p)}, v{x} offset:{1024*p}")
        def fin():
            a(f"""
    s_waitcnt lgkmcnt(0)
    v_pk_add_f32 {P(t)}, {P(t)}, {P(t+2)}
    v_pk_add_f32 {P(t+4)}, {P(t+4)}, {P(t+6)}
    v_pk_add_f32 {P(t)}, {P(t)}, {P(t+4)}
    s_mov_b64 exec, s[36:37]""")
            C.cstore([f"buffer_store_dwordx2 {P(t)}, v{x+1}, {WS}, s{sT2} offen"], nt=False)
            a("s_mov_b64 exec, -1")
        self.pubfin = fin
    def cons_stats(self, gbase, scr, double):
        C = self.C; a = C.a; x = self.cT; o = self.cSTAT; S = o + 8
        st = {}
        ltxt = f"buffer_load_dwordx4 {vr(o)}, v{x+1}, {WS}, s{sT1} offen sc1"
        def load():
            a(f"""
    s_lshl_b32 s{sT1}, s{sW}, 10
    s_add_u32 s{sT1}, s{sT1}, s{sAR}
    s_add_u32 s{sT1}, s{sT1}, {gbase:#x}
    v_and_b32 v{x+3}, 0xff, v{vL16}
    v_and_b32 v{x+1}, 0x30, v{vLANE}
    v_lshl_add_u32 v{x+1}, v{x+3}, 2, v{x+1}
    s_lshl_b32 s{sT5}, s{sW}, 8
    s_add_u32 s{sT5}, s{sT5}, {scr}
    v_add_u32 v{x+2}, s{sT5}, v{x+3}""")
            st['g'] = C.vm(ltxt)
        def check():
            L0, Lr, L2 = C.lab("schk"), C.lab("sre"), C.lab("sok")
            C.wait_vm(st['g'])
            a.label(L0)
            a(f"v_max_u32 v{o+4}, v{o+1}, v{o+3}\n v_cmp_eq_u32 vcc, -1, v{o+4}\n s_cbranch_vccnz {Lr}")
            a.label(L2)
            C.ool.append((Lr, [f"s_add_u32 s{sCNT}, s{sCNT}, 1", f"s_cmp_gt_u32 s{sCNT}, {SPIN}", f"s_cbranch_scc1 {L2}",
                               ltxt, "s_waitcnt vmcnt(0)", f"s_branch {L0}"]))
            C.setvcc()
        txt = f"""
    v_add_f32 v{o}, v{o}, v{o+2}
    v_add_f32 v{o+1}, v{o+1}, v{o+3}
    v_permlane32_swap_b32 v{o}, v{o+1}
    v_add_f32 v{o}, v{o}, v{o+1}
    v_mov_b32 v{o+1}, v{o}
    v_permlane16_swap_b32 v{o}, v{o+1}
    v_add_f32 v{o}, v{o}, v{o+1}
    v_mul_f32 v{o}, 0x3b000000, v{o}
    v_mov_b32 v{o+1}, v{o}
    v_permlane32_swap_b32 v{o}, v{o+1}
    v_mov_b32 v{S}, v{o}
    v_fma_f32 v{o+1}, -v{o}, v{o}, v{o+1}
    v_max_f32 v{o+1}, 0, v{o+1}
    v_add_f32 v{o+2}, 0x3727c5ac, v{o+1}
    v_rsq_f32 v{o+3}, v{o+2}"""
        R = o+3
        if double:
            txt += f"""
    v_mul_f32 v{o+4}, v{o+3}, v{o+3}
    ds_write_b32 v{x+2}, v{o+3} offset:1024
    v_mul_f32 v{o+4}, v{o+4}, v{o+1}
    v_add_f32 v{o+4}, 0x3727c5ac, v{o+4}
    v_rsq_f32 v{o+4}, v{o+4}
    v_mul_f32 v{o+5}, v{o+3}, v{o+4}"""
            R = o+5
        txt += f"""
    v_rcp_f32 v{S+1}, v{R}
    v_mul_f32 v{S+2}, {f32(GC1)}, v{R}
    v_mul_f32 v{o+6}, v{R}, v{R}
    v_mul_f32 v{o+6}, {f32(0.044715)}, v{o+6}
    v_mul_f32 v{S+3}, v{S+2}, v{o+6}
    ds_write_b128 v{x+2}, {vr(S)}"""
        comp = [check]
        for y in txt.split("\n"):
            y = y.strip()
            if not y: continue
            if y.startswith("ds_"): comp.append(lambda y=y: setattr(C, 'wseq', C.ld(y)))
            else: comp.append(lambda y=y: a(y))
        return load, comp
    def tile_store(self, jt):
        return f"buffer_store_dwordx2 {P(self.hXT+2*jt)}, v{vD}, {WS}, s{sT4} offen offset:{256*jt}"
    def add_pack(self, jt, src):
        a = self.H.a; A_ = self.hACC
        for h in (0, 2): a(f"v_pk_add_f32 {P(A_+4*jt+h)}, {P(A_+4*jt+h)}, {P(src+h)}")
        for h in (0, 1): a(f"v_cvt_pk_bf16_f32 v{self.hXT+2*jt+h}, v{A_+4*jt+2*h}, v{A_+4*jt+2*h+1}")

    def s3(self):
        self.C.mark(); self.H.mark()
        C, H = self.C, self.H
        C.colsum(V(128), self.cCS3, self.cOUT)
        C.poll(0, self.cF, self.cP, mid=[lambda: C.colsum(V(192), self.cCS3+4, self.cOUT)]); C.ts()
        def w4ref():
            C.a(f"""
    v_lshlrev_b32 v118, 7, v{vLANE}
    s_and_b32 s{sTCH}, s{sGRP}, 3
    s_lshl_b32 s{sTCH}, s{sTCH}, 5
    s_add_u32 s{sTCH}, s{sTCH}, s{sNT}
    s_mul_i32 s{sTCH}, s{sTCH}, 14336
    s_add_u32 s{sTCH}, s{sTCH}, {W4:#x}""")
            C.vm(f"buffer_load_dword v119, v118, {WS}, s{sTCH} offen")
        def w4ref2():
            C.a(f"s_add_u32 s{sTCH}, s{sTCH}, 6144")
            C.vm(f"buffer_load_dword v119, v118, {WS}, s{sTCH} offen")
        C.load_gemm(C.act_issue(), side={3: [w4ref], 5: [w4ref2]} if self.opt.get('w4ref') else None, tag='s3')
        C.set_act(H_)
        self.stat_publish(ST1)
        H.cons_gemm(V(64), self.hACC, self.hBP, tag="s3"); H.ts()
        for i in range(8): H.unpack(self.hXT+i, self.hRES+2*i)
        for jt in range(4): self.add_pack(jt, self.hRES+4*jt)
        H.cstore([self.tile_store(jt) for jt in range(4)])
        self.prod_stats(self.hACC)
        for i in range(8): H.unpack(self.hXT+i, self.hRES+2*i)
        H.flag(1, 6); H.ts()
        H.a("s_waitcnt lgkmcnt(0)"); H.bar()
        self.sync_check()
    def s4(self):
        self.C.mark(); self.H.mark()
        C, H = self.C, self.H; a = H.a
        C.poll(1, self.cF, self.cP, mid=[self.pubfin]); C.ts()
        load, comp = self.cons_stats(ST1, ACT, True)
        C.load_gemm(C.act_issue(), side={-1: [load], 3: comp[:7], 4: comp[7:14], 5: comp[14:21], 6: comp[21:],
                                         (7, 'pre'): [lambda: C.wait_ld(C.wseq)]}, tag='s4')
        if self.opt.get('uref'):
            C.a(f"v_lshlrev_b32 v118, 7, v{vLANE}\n s_mul_i32 s{sTCH}, s{sNT}, {40*128}\n s_add_u32 s{sTCH}, s{sTCH}, s{sAR}\n s_add_u32 s{sTCH}, s{sTCH}, {U_ + 0x10000:#x}\n s_mov_b32 exec_hi, 0xff")
            C.vm(f"buffer_load_dword v119, v118, {WS}, s{sTCH} offen")
            C.a("s_mov_b64 exec, -1")
        H.colsum(V(128), self.hCS1, self.hX)
        H.tile_soff(sT4, T_)
        a(f"""
    v_lshrrev_b32 v6, 5, v{vLANE}
    v_lshlrev_b32 v6, 5, v6
    v_and_b32 v7, 0x1f, v{vD}
    v_add_u32 v{self.hX+4}, v6, v7                ; halo: (g>>1)*32 + (t&1)*16 + (g&1)*8
    s_lshl_b32 s{sT3}, s{sNT}, 6
    s_add_u32 s{sT3}, s{sT3}, s{sAR}
    v_and_b32 v7, 0xff, v{vL16}
    v_add_u32 v7, {ACT}, v7""")
        sr = H.stat_reads(self.hSTAT, 7, False, self.hR1)
        H.cons_gemm(V(128), self.hACC, self.hBP, side={6: sr[:4], 7: sr[4:]}, tag="s4"); H.ts()
        A_, XT, ST = self.hACC, self.hXT, self.hSTAT
        H.wait_ld(H.stseq)
        for x in H.gelu2((A_, self.hCS1, ST, XT), (A_+12, self.hCS1, ST+12, XT+6), self.hTMP, True): a(x)
        H.cstore([self.tile_store(0), self.tile_store(3)])
        for x in H.gelu2((A_+4, self.hCS1, ST+4, XT+2), (A_+8, self.hCS1, ST+8, XT+4), self.hTMP, True): a(x)
        H.cstore([self.tile_store(1), self.tile_store(2)])
        H.flag(2, 6); H.ts()
        Lh, L1 = H.lab("nohalo"), H.lab("side1")
        a(f"""
    s_bitcmp1_b32 s{sMEM}, 1
    s_cbranch_scc1 {L1}
    s_cmp_eq_u32 s{sGRP}, 31
    s_cbranch_scc1 {Lh}
    s_add_u32 s{sT3}, s{sT3}, {HALO+GA:#x}
    s_mov_b32 exec_lo, 0xc000c000
    s_mov_b32 exec_hi, 0xc000c000
    buffer_store_dwordx2 {P(XT+6)}, v{self.hX+4}, {WS}, s{sT3} offen sc1
    s_branch {Lh}""")
        a.label(L1)
        a(f"""
    s_cmp_eq_u32 s{sGRP}, 0
    s_cbranch_scc1 {Lh}
    s_sub_u32 s{sT3}, s{sT3}, {GA-HALO:#x}
    s_mov_b32 exec_lo, 0x00030003
    s_mov_b32 exec_hi, 0x00030003
    buffer_store_dwordx2 {P(XT)}, v{self.hX+4}, {WS}, s{sT3} offen sc1""")
        a.label(Lh)
        a("s_mov_b64 exec, -1")
        H.bar(); self.gate5 = True
    def s5(self):
        self.C.mark(); self.H.mark()
        C, H = self.C, self.H; a = C.a; x = self.cT; T = self.cTMP
        C.set_act(T_)
        a(f"""
    s_lshl_b32 s{sT1}, s{sW}, 9
    s_add_u32 s{sT1}, s{sT1}, s{sAR}
    s_add_u32 s{sT1}, s{sT1}, {HALO:#x}
    v_and_b32 v{x+2}, 0x1ff, v{vL16}
    s_cmp_eq_u32 s{sW}, 0
    s_cselect_b32 s{sT3}, -16, 0
    s_cselect_b32 s{sT4}, 0xaaaaaaaa, -1
    s_cmp_eq_u32 s{sW}, 1
    s_cselect_b32 s{sT3}, {63*16}, s{sT3}
    s_cselect_b32 s{sT4}, 0x55555555, s{sT4}
    s_cmp_eq_u32 s{sW}, 3
    s_cselect_b32 s{sT3}, {62*16}, s{sT3}
    s_lshl_b32 s{sT2}, s{sW}, 14
    s_add_u32 s{sT3}, s{sT3}, s{sT2}
    s_add_u32 s{sT3}, s{sT3}, {ACT}
    v_lshrrev_b32 v{x+1}, 1, v{vLANE}
    v_lshlrev_b32 v{x+1}, 10, v{x+1}
    v_and_b32 v{x+3}, 1, v{vLANE}
    v_lshl_add_u32 v{x+1}, v{x+3}, 4, v{x+1}
    v_add_u32 v{x+1}, s{sT3}, v{x+1}
    s_lshl_b32 s{sPF}, s{sMEM}, 3
    s_add_u32 s{sPF}, s{sPF}, s{sW}
    s_mul_i32 s{sPF}, s{sPF}, {28*1024}
    s_add_u32 s{sPF}, s{sPF}, {W4 + 20*1024:#x}
    s_lshl_b32 s{sPL}, s{sW}, 13""")
        C.bar()
        C.poll(2, self.cF, self.cP, mid=[]); C.ts()
        shifts = (1, -1, 2, -2)
        masks = ((0xfffffffe, 0xffffffff), (0xffffffff, 0x7fffffff), (0xfffffffc, 0xffffffff), (0xffffffff, 0x3fffffff))
        def pre(c):
            g = c >> 1
            if c & 1 == 0: a(f"s_add_i32 s{sG}, s{sG}, {-16*shifts[g] + (16*shifts[g-1] if g else 0)}")
            a(f"s_mov_b32 exec_lo, {masks[g][0]:#x}" if masks[g][0] != 0xffffffff else f"s_mov_b32 exec_hi, {masks[g][1]:#x}")
        hs = {}
        hload = f"buffer_load_dwordx4 {vr(T)}, v{x+2}, {WS}, s{sT1} offen sc1"
        stg = C.frags(8, sPF, lds=sPL) + C.E(f"s_add_u32 s{sPF}, s{sPF}, {4*28*1024 - 8192}\n s_add_u32 s{sPL}, s{sPL}, {32768 - 8192}") + C.frags(8, sPF, lds=sPL)
        def patch():
            L0, Lr, L2 = C.lab("hchk"), C.lab("hre"), C.lab("hok")
            C.wait_vm(hs[0])
            a.label(L0)
            a(f"v_max_u32 v{x}, v{T}, v{T+1}\n v_max3_u32 v{x}, v{x}, v{T+2}, v{T+3}\n v_cmp_eq_u32 vcc, -1, v{x}\n s_cbranch_vccnz {Lr}")
            a.label(L2)
            C.ool.append((Lr, [f"s_add_u32 s{sCNT}, s{sCNT}, 1", f"s_cmp_gt_u32 s{sCNT}, {SPIN}", f"s_cbranch_scc1 {L2}",
                               hload, "s_waitcnt vmcnt(0)", f"s_branch {L0}"]))
            C.setvcc()
            a(f"s_mov_b32 exec_lo, s{sT4}\n s_mov_b32 exec_hi, 0\n ds_write_b128 v{x+1}, {vr(T)}\n s_mov_b64 exec, -1\n s_waitcnt lgkmcnt(0)")
        HC = int(self.opt.get("hc", 3))
        side = {2: stg[:2], 3: stg[2:4]}
        side[HC] = side.get(HC, []) + [lambda: hs.__setitem__(0, C.vm(hload))]
        C.load_gemm(C.act_issue(pre=pre, post=lambda c: a("s_mov_b64 exec, -1")), side=side, tag='s5')
        patch(); C.bar()
        C.run(stg[4:12]); self.stg_rest = stg[12:]
        C.set_act(X1)
        self.stat_publish(ST3)
        a = H.a; ST, RES, R1 = self.hSTAT, self.hRES, self.hR1
        a(f"s_lshl_b32 s{sT1}, s{sW}, 14\n v_add_u32 v7, s{sT1}, v{vL16}")
        H.lds2reg(V(128), 16, 7)
        for jt in range(4):
            a(f"v_mul_f32 v6, v{ST+4*jt}, v{R1+jt}")
            for i in range(4): a(f"v_fma_f32 v{ST+4*jt+i}, v{RES+4*jt+i}, v{R1+jt}, -v6")
        H.tile_soff(sT4, X1)
        a("s_waitcnt lgkmcnt(0)")
        H.colsum(V(128), self.hCS3, self.hX)
        H.cons_gemm(V(192), self.hACC, self.hBP, defer=lambda ks: 3 if (ks >> 2) & 1 else 0, tag="s5"); H.ts()
        for jt in range(4): self.add_pack(jt, ST+4*jt)
        H.cstore([self.tile_store(jt) for jt in range(4)])
        self.prod_stats(self.hACC)
        for i in range(8): H.unpack(self.hXT+i, self.hACC+2*i)
        H.flag(3, 6)
        a("s_waitcnt lgkmcnt(0)"); H.bar()
        for i in range(8): a(f"v_pk_add_f32 {P(RES+2*i)}, {P(RES+2*i)}, {P(self.hACC+2*i)}")
        H.ts()
        self.sync_check()

    def capture(self, S, fn):
        keep = S.a.lines; S.a.lines = []
        fn()
        got = S.a.lines; S.a.lines = keep
        return [(lambda x=x: S.a(x)) for x in got]
    def s6(self):
        self.C.mark(); self.H.mark()
        C, H = self.C, self.H
        PK = bool(self.opt.get("s6pk"))
        for S in (C, H):
            isC = S is C; a = S.a
            vBa, vBb, vDa, vDb, vS = (124, 125, 126, 127, 14) if isC else (self.hCS1, self.hCS1+1, self.hCS1+2, self.hCS1+3, self.hR1)
            ACCS = [self.cACC + 4*i for i in range(8)] if isC else [self.hACC + 4*i for i in range(4)] + [self.hX, self.hX+4]
            BP = self.cBP if isC else self.hBP
            ST, CS, TMP, OUT = (self.cSTAT, self.cCS3, self.cTMP, self.cOUT) if isC else (self.hSTAT, self.hCS3, self.hTMP, self.hXT)
            W = (V(128), V(192))
            def setup():
                a(f"""
    v_xor_b32 v{vBa}, s{sORD}, v{vB}
    v_xor_b32 v{vBb}, 256, v{vBa}
    v_xor_b32 v{vDa}, s{sORD}, v{vD}
    v_xor_b32 v{vDb}, 256, v{vDa}
    v_and_b32 v{vS}, 0xff, v{vL16}
    v_add_u32 v{vS}, {HI}, v{vS}
    v_xor_b32 v{vS}, s{sORD}, v{vS}
    v_xor_b32 v{vS+1}, 256, v{vS}
    s_mul_i32 s{sU0}, s{sMEM}, {14*2048}
    s_add_u32 s{sU0}, s{sU0}, s{sAR}
    s_add_u32 s{sU0}, s{sU0}, {U_:#x}
    s_lshr_b32 s{sU1}, s{sW}, 1
    s_add_u32 s{sU1}, s{sU1}, 12
    s_lshl_b32 s{sU1}, s{sU1}, 11
    s_add_u32 s{sU1}, s{sU1}, s{sU0}
    s_mul_i32 s{sT3}, s{sW}, {3*2048}
    s_add_u32 s{sU0}, s{sU0}, s{sT3}
    s_lshl_b32 s{sW4}, s{sMEM}, 3
    s_add_u32 s{sW4}, s{sW4}, s{sW8}
    s_lshl_b32 s{sT3}, s{sW4}, 2
    v_mov_b32 v{vMYF}, s{sT3}
    s_mul_i32 s{sW4}, s{sW4}, {28*1024}
    s_add_u32 s{sW4}, s{sW4}, {W4:#x}
""")
                if isC: a(f"s_add_u32 s{sU1}, s{sU0}, 2048")
                else: a(f"s_add_u32 s{sU0}, s{sU0}, 4096")
            tilesA = [(j, n) for j in (0, 1) for n in ((0, 1) if isC or j == 0 else (0,))]
            tilesB = [(j, n) for j in (2, 3) for n in ((0, 1) if isC or j == 2 else (0,))]
            acc = {t: ACCS[i] for i, t in enumerate(tilesA + tilesB)}
            rs = {}
            slot = lambda s, j: BP + 16*(s & 1) + 4*j
            def rd(s, j): rs[(s, j)] = S.ld(f"ds_read_b128 {vr(slot(s, j))}, v{vBb if j & 1 else vBa} offset:{4096*s + 512*(j>>1)}")
            def mf(s, j, n): a(f"v_mfma_f32_16x16x32_bf16 {vr(acc[(j, n)])}, {W[n](s)}, {vr(slot(s, j))}, {'0' if s == 0 else vr(acc[(j, n)])}")
            wreg = lambda f: vr(128 + 4*(f >> 1) + 64*(f & 1))
            S.wreg = wreg
            w4 = S.frags(20, sW4, dst=wreg)
            stg = []
            sr = S.stat_reads(ST, vS, True)
            def ustore(j, n, r):
                return f"buffer_store_dwordx2 {P(r)}, v{vDb if j & 1 else vDa}, {WS}, s{(sU0, sU1)[n]} offen offset:{512*(j>>1)}"
            k2 = [0]
            def gel(ts_):
                o = OUT + 4*(k2[0] & 1); k2[0] += 1
                arg = [(acc[t], CS+4*t[1], ST+4*t[0], o+2*i) for i, t in enumerate(ts_)]
                z = S.gelu2(*arg, TMP, True) if len(ts_) == 2 else S.gelu(*arg[0], TMP, True)
                for y in z: a(y)
                if self.opt.get("usc1"):
                    for i, t in enumerate(ts_): S.vm(ustore(*t, o+2*i) + " sc1")
                else: S.cstore([ustore(*t, o+2*i) for i, t in enumerate(ts_)])
                return S.nvm - 1
            tiles = tilesA + tilesB
            if isC:
                S.poll(3, self.cF, self.cP, mid=[self.pubfin]); S.ts()
                load, comp = self.cons_stats(ST3, HI, False)
                issue = S.act_issue(); seqs = {}
                for c in range(3): seqs[c] = issue(c)
                load(); setup()
                S.wait_vm(seqs[0])
            else:
                a(f"s_and_b32 s{sT1}, s{sW}, 2\n s_lshl_b32 s{sT1}, s{sT1}, 13\n s_add_u32 s{sT1}, s{sT1}, {HI}\n v_add_u32 v7, s{sT1}, v{vL16}")
                S.lds2reg(V(192), 16, 7)
                setup()
                a("s_waitcnt lgkmcnt(0)")
                S.colsum(V(192), CS+4, self.hX)
                a("s_setprio 0")
            S.bar()
            for j in range(4): rd(0, j)
            BAR = {1: 1, 3: 3, 7: 7}
            nt = len(tiles)
            for s in range(16):
                items = []
                if isC:
                    if s == 0: items = [(lambda c=c: seqs.__setitem__(c, issue(c))) for c in (3, 4, 5)]
                    if s == 1: items = [(lambda c=c: seqs.__setitem__(c, issue(c))) for c in (6, 7)]
                    if s == 2: items = self.stg_rest + [lambda: seqs.__setitem__(7, S.lastf)]
                    items = items + {3: comp[:7], 4: comp[7:14], 5: comp[14:]}.get(s, [])
                if s == 8: items = items + sr
                if s == 13: items = S.E(f"s_lshl_b32 s{sT1}, s{sW8}, 13\n v_add_u32 v7, s{sT1}, v{vL16}")
                if s >= 14: items = [(lambda i=i: S.ld(f"ds_read_b128 {wreg(20+i)}, v7 offset:{1024*i}")) for i in range(4*(s-14), 4*(s-14)+4)]
                if 3 <= s < 13: items = [w4.pop(0)] + items[:len(items)//2] + [w4.pop(0)] + items[len(items)//2:]
                if s in BAR:
                    if isC:
                        S.wait_vm(seqs[BAR[s]])
                        if s == 7: S.wait_ld(S.wseq)
                    S.bar()
                for i, (j, n) in enumerate(tiles):
                    if n == 0: S.wait_ld(rs[(s, j)])
                    mf(s, j, n)
                    if n == 0 and s + 1 < 16: rd(s+1, j)
                    S.run(items[i*len(items)//nt:(i+1)*len(items)//nt])
                if s % 4 == 3: S.ts("s6")
            assert not w4
            vF8, vPp = (self.cF, self.cP) if isC else (vBa, self.hR1+2)
            S.f7 = (vF8, vPp)
            a(f"""
    s_setprio 1
    s_mul_i32 s{sB}, s{sW8}, {7*4096}
    s_add_u32 s{sB}, s{sB}, s{sAR}
    s_add_u32 s{sB}, s{sB}, {U_ - ACT:#x}
    v_and_b32 v{vF8}, 7, v{vLANE}
    v_lshlrev_b32 v{vF8}, 2, v{vF8}
    s_lshl_b32 s{sT1}, s{sW8}, 5
    v_add_u32 v{vF8}, s{sT1}, v{vF8}""")
            gel(tilesA[:2]); sa = gel(tilesA[2:])
            a("s_setprio 0")
            S.ts()
            gel(tilesB[:2])
            S.flag(4, 6, seq=sa)
            S.sb = gel(tilesB[2:])
            S.ts()
        self.sync_check()

    def s7(self):
        self.C.mark(); self.H.mark()
        C, H = self.C, self.H
        for S in (C, H):
            isC = S is C; a = S.a
            wreg = S.wreg
            vF8, vPp = S.f7
            if isC:
                vWr, vRD, vO = [8, 9, 10, 11], 12, 13
                ring = [self.cBP + 4*i for i in range(8)]
                accx = lambda p, m: self.cACC + 16*(p & 1) + 4*m
                rb = [80 + 4*k for k in range(8)]
            else:
                vWr, vRD, vO = [self.hX+4+i for i in range(4)], 7, vXO
                ring = [self.hBP + 4*i for i in range(8)]
                accx = lambda p, m: self.hACC + 4*m if p & 1 else (184, 188, 248, 252)[m]
                rb = [80, 84, 88, 92, 104, 108, 112, 116]
            NR = len(ring); x = rb[0]
            def setup():
                a(f"""
    v_and_b32 v{x}, 15, v{vLANE}
    v_lshrrev_b32 v{x+1}, 4, v{vLANE}
    v_xor_b32 v{x+2}, v{x}, v{x+1}                ; t ^ g""")
                for m in range(4):
                    a(f"""
    s_add_u32 s{sT1}, s{sW}, {m}
    s_and_b32 s{sT1}, s{sT1}, 3
    s_lshl_b32 s{sT2}, s{sT1}, 2
    v_xor_b32 v{vWr[m]}, s{sT2}, v{x+2}
    v_lshlrev_b32 v{vWr[m]}, 4, v{vWr[m]}
    v_lshl_add_u32 v{vWr[m]}, v{x+1}, 8, v{vWr[m]}
    s_lshl_b32 s{sT1}, s{sT1}, 10
    s_lshl_b32 s{sT2}, s{sW8}, 12
    s_add_u32 s{sT1}, s{sT1}, s{sT2}
    v_add_u32 v{vWr[m]}, s{sT1}, v{vWr[m]}""")
                a(f"""
    s_lshl_b32 s{sT1}, s{sW}, 2
    v_add_u32 v{x+1}, s{sT1}, v{x+1}
    v_xor_b32 v{vRD}, v{x+1}, v{x}
    v_lshlrev_b32 v{vRD}, 4, v{vRD}
    v_lshl_add_u32 v{vRD}, v{x}, 8, v{vRD}
    v_lshlrev_b32 v{vO}, 10, v{x+1}
    v_lshl_add_u32 v{vO}, v{x}, 3, v{vO}
    s_lshl_b32 s{sT4}, s{sGRP}, 16
    s_lshl_b32 s{sT1}, s{sMEM}, 7
    s_add_u32 s{sT4}, s{sT4}, s{sT1}""")
                if not isC: a(f"s_add_u32 s{sT4}, s{sT4}, 16384\n v_add_u32 v{vRD}, 32768, v{vRD}")
                a("s_waitcnt lgkmcnt(0)")
            S.poll(4, vF8, vPp, mid=[setup], np_=2)
            S.flag(6, 6, seq=S.sb)
            S.ts()
            seq = {}
            def load(u):
                p, i = u // 7, u % 7
                seq[u] = S.vm(f"buffer_load_dwordx4 {vr(ring[u % NR])}, v{vB}, {WS}, s{sB} offen offset:{256*p} sc1")
                a(f"s_add_u32 s{sB}, s{sB}, 4096" if i < 6 else f"s_sub_u32 s{sB}, s{sB}, {6*4096}")
            def Wr(p):
                it = []
                for m in range(4):
                    if p == 2: it.append(lambda m=m: a(f"v_add_u32 v{vWr[m]}, 0x10000, v{vWr[m]}"))
                    it.append(lambda m=m: S.ld(f"ds_write_b128 v{vWr[m]}, {vr(accx(p, m))} offset:{32768*(p&1)}"))
                return it
            bar = [lambda: (a("s_waitcnt lgkmcnt(0)"), S.bar())]
            st = {}
            def Rd(p):
                it = [lambda: a(f"v_add_u32 v{vRD}, 0x10000, v{vRD}")] if p >= 2 else []
                return it + [(lambda k=k: st.__setitem__(p, S.ld(f"ds_read_b128 {vr(rb[k])}, v{vRD} offset:{4096*k}"))) for k in range(8)]
            def Ad(p, pk):
                r = rb
                pairs = [(r[0], r[1]), (r[2], r[3]), (r[4], r[5]), (r[6], r[7]), (r[0], r[2]), (r[4], r[6]), (r[0], r[4])]
                ins = []
                for y, z in pairs:
                    if pk: ins += [f"v_pk_add_f32 {P(y+h)}, {P(y+h)}, {P(z+h)}" for h in (0, 2)]
                    else: ins += [f"v_add_f32 v{y+h}, v{y+h}, v{z+h}" for h in range(4)]
                ins += [f"v_cvt_pk_bf16_f32 v{r[1]+h}, v{r[0]+2*h}, v{r[0]+2*h+1}" for h in (0, 1)]
                return [lambda: S.wait_ld(st[p])] + [(lambda z=z: a(z)) for z in ins] + \
                       [lambda: S.vm(f"buffer_store_dwordx2 {P(r[1])}, v{vO}, {OS}, s{sT4} offen {self.opt.get('osc', 'nt')}"), lambda: a(f"s_add_u32 s{sT4}, s{sT4}, 32768")]
            la = int(self.opt.get('la7', 4))
            pb = {}
            ltxt = f"buffer_load_dword v{vPp}, v{vF8}, {WS}, s{sT0} offen sc1"
            def chkB():
                L0, Lr = S.lab("bchk"), S.lab("bre")
                S.wait_vm(pb[0])
                a.label(L0)
                a(f"v_cmp_ne_u32 vcc, 1, v{vPp}\n s_cbranch_vccnz {Lr}")
                S.ool.append((Lr, [f"s_add_u32 s{sCNT}, s{sCNT}, 1", f"s_cmp_gt_u32 s{sCNT}, {SPIN}", "s_cbranch_scc1 main_exit",
                                   ltxt, "s_waitcnt vmcnt(0)", f"s_branch {L0}"]))
            side = {6: bar, 8: Wr(0), 15: Wr(1), 16: bar, 22: Wr(2)}
            side[13 - 2*la] = side.get(13 - 2*la, []) + [lambda: pb.__setitem__(0, S.vm(ltxt))]
            side[13 - la] = side.get(13 - la, []) + [chkB]
            p0 = 0 if isC else 1
            ad = Ad(p0, False)
            side[17] = Rd(p0); side[18] = ad[:11]; side[19] = ad[11:22]; side[20] = ad[22:]
            for u in range(la): load(u)
            for u in range(28):
                p, i = u // 7, u % 7
                S.wait_vm(seq[u])
                items = list(side.get(u, []))
                per = -(-len(items) // 3)
                for m in range(4):
                    c0 = vr(self.hRES+4*p) if (m == 0 and not isC) else '0'
                    if not (self.opt.get('x7b') and m): a(f"v_mfma_f32_16x16x32_bf16 {vr(accx(p, m))}, {wreg(4*i+m)}, {vr(ring[u % NR])}, {c0 if i == 0 else vr(accx(p, m))}")
                    if m == 0:
                        if u + la < 28: load(u + la)
                    else:
                        for _ in range(per):
                            if items: items.pop(0)()
                if u % 7 == 6: S.ts("s7")
            S.run(Wr(3) + bar)
            S.ts()
            S.run(Rd(p0+2) + Ad(p0+2, True))
            S.ts("s7")
        self.sync_check()

    def dump_ts(self, S):
        a = S.a
        a("s_waitcnt vmcnt(0)")
        S.ts()
        a(f"""
    s_waitcnt lgkmcnt(0)
    s_lshl_b32 s{sT0}, s2, 3
    s_add_u32 s{sT0}, s{sT0}, s{sW8}
    s_lshl_b32 s{sT0}, s{sT0}, 7
    s_add_u32 s{sT0}, s{sT0}, {DBG:#x}
    v_mov_b32 v7, 0
    s_mov_b64 exec, 1""")
        assert S.nts <= 28
        for i in range(S.nts):
            a(f"v_mov_b32 v6, s{tsreg(i)}\n buffer_store_dword v6, v7, {WS}, s{sT0} offen offset:{4*i}")
        a(f"v_mov_b32 v6, s{sSLOW}\n buffer_store_dword v6, v7, {WS}, s{sT0} offen offset:124")
        a(f"v_mov_b32 v6, s{sXCC}\n buffer_store_dword v6, v7, {WS}, s{sT0} offen offset:120")

    def gen(self):
        C, H = self.C, self.H
        self.prologue(); self.qstage(); self.attention()
        for name in ("s3", "s4", "s5", "s6", "s7"): getattr(self, name)()
        for S in (C, H):
            S.a.label(f"M_{S.name}_{S.nmark}")
            if self.dbg: self.dump_ts(S)
            if S is C: S.a.label("main_exit")
            S.a("s_endpgm")
        tail = Asm()
        self.fallback()
        for S in (C, H):
            for L, body in S.ool:
                S.a.label(L)
                for x in body: S.a(x)
        C.a.label("main_end")
        H.a.lines = self.head + H.a.lines
        txt = H.a.finish() + C.a.finish()
        txt += """
.section .rodata,"a"
.p2align 6
.amdhsa_kernel """ + NAME + """_kernel
  .amdhsa_next_free_vgpr 256
  .amdhsa_next_free_sgpr 102
  .amdhsa_accum_offset 256
  .amdhsa_group_segment_fixed_size 0
  .amdhsa_kernarg_size 104
  .amdhsa_user_sgpr_count 2
  .amdhsa_user_sgpr_kernarg_segment_ptr 1
  .amdhsa_system_sgpr_workgroup_id_x 1
.end_amdhsa_kernel
"""
        return txt
```

```python
from asmlib import Asm
from layout import *
import struct, os

def f32(x):
    return "0x%08x" % struct.unpack('<I', struct.pack('<f', x))[0]

K2_LDS = 163840
LOG2E = 1.4426950408889634
QSCALE = 0.25 * LOG2E
GC1 = -2.0 * 0.7978845608028654 * LOG2E
SPIN = 0x40000
ACT = 65536
XST = ACT + 5*8192 + 256
HI = 131072
LA = 5

sW, sGRP, sMEM, sSLOW, sXCC, sW8 = 3, 16, 17, 18, 45, 44
WS, XS, OS = "s[4:7]", "s[8:11]", "s[12:15]"
sT0, sT1, sT2, sT3, sT4, sT5 = 20, 21, 22, 23, 24, 25
sG, sL, sPF, sCNT, sFLG, sAR = 26, 27, 28, 29, 30, 31
sU0, sU1 = 32, 33
sB = 34
sKVW, sTAG, sRND = 40, 41, 33
sTCH = 35
sNT, sORD = 38, 39
sVM = "s[40:41]"
sPL, sW4 = 42, 43
sPP, sPR, sPS, sPD = 46, 56, 60, 65
def tsreg(i): return 70 + 2*i if i < 16 else 46 + 2*(i-16)
vLANE, vL16, vB, vD, vMYF, vXO = 0, 1, 2, 3, 4, 5

def vr(b, n=4): return f"v[{b}:{b+n-1}]"
def V(b): return lambda ks: vr(b+4*ks)
def P(r): return f"v[{r}:{r+1}]"

class Stream:
    uid = 0
    def __init__(self, name, dbg, tags):
        self.name, self.dbg, self.tags = name, dbg, tags
        self.a = Asm(); self.nvm = self.nld = self.nts = self.nbar = 0
        self.ool = []; self.nmark = 0; self.seclen = {}
    def vm(self, text):
        self.a(text); self.nvm += 1; return self.nvm - 1
    def wait_vm(self, seq): self.a(f"s_waitcnt vmcnt({min(self.nvm - 1 - seq, 63)})")
    def ld(self, text):
        self.a(text); self.nld += 1; return self.nld - 1
    def wait_ld(self, seq): self.a(f"s_waitcnt lgkmcnt({min(self.nld - 1 - seq, 15)})")
    def bar(self): self.a("s_barrier"); self.nbar += 1
    def ts(self, tag="main"):
        if self.dbg and tag in self.tags:
            self.a(f"{'s_memtime' if self.dbg == 'cyc' else 's_memrealtime'} s[{tsreg(self.nts)}:{tsreg(self.nts)+1}]")
            self.nts += 1
    def lab(self, p):
        Stream.uid += 1; return f"L_{p}_{Stream.uid}"
    def mark(self):
        i = self.nmark; self.nmark += 1
        L = f"M_{self.name}_{i}"
        n = self.seclen.get(L)
        if n is not None and n < 4000:
            self.a(f"s_branch {L}"); self.a(f".p2align 12,,{n + 64}")
        self.a.label(L)
    def E(self, text): return [(lambda x=x: self.a(x)) for x in text.split("\n") if x.strip()]
    def set_wbase(self, base, ks, dst=sPF):
        self.a(f"s_mul_i32 s{dst}, s{sNT}, {ks*1024}\n s_add_u32 s{dst}, s{dst}, {base:#x}")
    def set_w3(self, slot):
        if slot < 3: self.a(f"s_mul_i32 s{sPF}, s{sW}, 3\n s_add_u32 s{sPF}, s{sPF}, {slot}")
        else: self.a(f"s_lshr_b32 s{sPF}, s{sW}, 1\n s_add_u32 s{sPF}, s{sPF}, 12")
        self.a(f"s_mul_i32 s{sT5}, s{sMEM}, 14\n s_add_u32 s{sPF}, s{sPF}, s{sT5}\n s_lshl_b32 s{sPF}, s{sPF}, 14\n s_add_u32 s{sPF}, s{sPF}, {W3:#x}")
    def set_act(self, base):
        self.a(f"s_lshl_b32 s{sL}, s{sW}, 11\n s_add_u32 s{sG}, s{sAR}, s{sL}\n s_add_u32 s{sG}, s{sG}, {base:#x}\n s_add_u32 s{sL}, s{sL}, {ACT}")
    def tile_soff(self, s, base):
        self.a(f"s_lshl_b32 s{s}, s{sNT}, 11\n s_add_u32 s{s}, s{s}, s{sAR}\n s_add_u32 s{s}, s{s}, {base:#x}")
    def xo_soff(self, s):
        self.a(f"s_lshl_b32 s{s}, s{sNT}, 5\n s_lshl_b32 s{sT5}, s{sGRP}, 16\n s_add_u32 s{s}, s{s}, s{sT5}")
    def act_issue(self, sc="sc1", pre=None, post=None):
        def issue(c):
            self.a(f"s_mov_b32 m0, s{sL}")
            if pre: pre(c)
            self.vm(f"buffer_load_dwordx4 v{vL16}, {WS}, s{sG} offen {sc} lds")
            last = self.vm(f"buffer_load_dwordx4 v{vL16}, {WS}, s{sG} offen offset:1024 {sc} lds")
            if post: post(c)
            self.a(f"s_add_u32 s{sG}, s{sG}, 8192\n s_add_u32 s{sL}, s{sL}, 8192")
            return last
        return issue
    def frags(self, n, sreg, dst=None, lds=None, sc="sc1"):
        def mk(i):
            def f():
                if dst is not None:
                    r = self.vm(f"buffer_load_dwordx4 {dst(i)}, v{vL16}, {WS}, s{sreg} offen offset:{1024*(i&3)} {sc}")
                else:
                    self.a(f"s_mov_b32 m0, s{lds}")
                    r = self.vm(f"buffer_load_dwordx4 v{vL16}, {WS}, s{sreg} offen offset:{1024*(i&3)} {sc} lds")
                if i & 3 == 3:
                    self.a(f"s_add_u32 s{sreg}, s{sreg}, 4096")
                    if lds is not None: self.a(f"s_add_u32 s{lds}, s{lds}, 4096")
                self.lastf = r
                return r
            return f
        return [mk(i) for i in range(n)]
    def run(self, items):
        for f in items: f()
    def setvcc(self): self.a(f"s_mov_b64 vcc, s[{sSLOW}:{sSLOW+1}]")
    NT = True
    def cstore(self, st, nt=True):
        Ls, Le = self.lab("cs"), self.lab("ce")
        self.a(f"s_cbranch_vccnz {Ls}")
        for x in st: self.vm(x + (" nt" if nt and self.NT else ""))
        self.a.label(Le)
        self.ool.append((Ls, [x + " sc1" for x in st] + [f"s_branch {Le}"]))
    def flag(self, stage, t, vf=vMYF, seq=None):
        self.a(f"s_add_u32 s{sT0}, s{sFLG}, {stage*8192}\n v_mov_b32 v{t}, 1")
        if seq is None: self.a("s_waitcnt vmcnt(0)")
        else: self.wait_vm(seq)
        self.a("s_mov_b64 exec, 1")
        self.cstore([f"buffer_store_dword v{t}, v{vf}, {WS}, s{sT0} offen"], nt=False)
        self.a("s_mov_b64 exec, -1")
    NP = 2
    def poll(self, stage, vf, p0, mid=(), np_=None):
        a = self.a; L, Ld = self.lab("poll"), self.lab("pdone")
        n = np_ or self.NP
        ld = lambda i: f"buffer_load_dword v{p0+i}, v{vf}, {WS}, s{sT0} offen sc1"
        a(f"s_add_u32 s{sT0}, s{sFLG}, {stage*8192}\n s_mov_b32 s{sCNT}, 0")
        q = self.vm(ld(0))
        self.run(mid)
        for i in range(1, n):
            self.vm(ld(i))
            if n > 2 and i < n - 1: a("s_nop 15")
        self.wait_vm(q)
        a(f"v_cmp_ne_u32 vcc, 1, v{p0}\n s_cbranch_vccz {Ld}")
        a.label(L)
        for i in range(n):
            a(ld(i))
            if i == n - 1: a(f"s_add_u32 s{sCNT}, s{sCNT}, 1\n s_cmp_gt_u32 s{sCNT}, {SPIN}\n s_cbranch_scc1 main_exit")
            a(f"s_waitcnt vmcnt({n-1})\n v_cmp_ne_u32 vcc, 1, v{p0 + (i+1) % n}")
            a(f"s_cbranch_vccz {Ld}" if i < n - 1 else f"s_cbranch_vccnz {L}")
        a.label(Ld)
        self.setvcc()
    def regcheck(self, r, z):
        a = self.a; L, L0 = self.lab("reg"), self.lab("reg0")
        a(f"s_mov_b32 s{sCNT}, 0")
        a.label(L0)
        a(f"""
    v_readfirstlane_b32 s{sT1}, v{r}
    s_and_b32 s{sT2}, s{sT1}, 0x0f0f0f0f
    s_lshr_b32 s{sT3}, s{sT1}, 4
    s_and_b32 s{sT3}, s{sT3}, 0x0f0f0f0f
    s_add_u32 s{sT2}, s{sT2}, s{sT3}
    s_mul_i32 s{sT2}, s{sT2}, 0x01010101
    s_lshr_b32 s{sT2}, s{sT2}, 24
    s_cmp_lg_u32 s{sT2}, 8
    s_cbranch_scc1 {L}
    s_lshl_b32 s{sT2}, s{sXCC}, 2
    s_lshl_b32 s{sT2}, 8, s{sT2}
    s_cmp_lg_u32 s{sT1}, s{sT2}
    s_cselect_b64 s[{sSLOW}:{sSLOW+1}], -1, 0""")
        self.ool.append((L, [f"s_add_u32 s{sT0}, s{sFLG}, {5*8192}", f"buffer_load_dword v{r}, v{z}, {WS}, s{sT0} offen sc1",
                             f"s_add_u32 s{sCNT}, s{sCNT}, 1", f"s_cmp_gt_u32 s{sCNT}, {SPIN}", "s_cbranch_scc1 main_exit",
                             "s_waitcnt vmcnt(0)", f"s_branch {L0}"]))
    def regload(self, r, z):
        self.a(f"s_add_u32 s{sT0}, s{sFLG}, {5*8192}\n v_mov_b32 v{z}, 0")
        return self.vm(f"buffer_load_dword v{r}, v{z}, {WS}, s{sT0} offen sc1")
    def load_gemm(self, issue, la=LA, side=None, tag=None, ramp=True):
        side = side or {}
        seqs = {}
        if tag: self.ts(tag)
        ni = 3
        for c in range(ni): seqs[c] = issue(c)
        self.run(side.get(-1, []))
        if tag: self.ts(tag)
        for c in range(8):
            self.wait_vm(seqs[c])
            self.run(side.get((c, 'pre'), []))
            if tag: self.ts(tag)
            self.bar()
            for _ in range(2 if (c < 2 and ramp) else 1):
                if ni < 8: seqs[ni] = issue(ni); ni += 1
            self.run(side.get(c, []))
    def cons_gemm(self, areg, ACC, BP, side=None, prewait=None, defer=None, tag=None, baddr=None, prebar=None, postbar=None, onebar=False):
        a = self.a
        side = {k: list(v) for k, v in (side or {}).items()}
        work = [[(2*c+s, jt) for s in range(2) for jt in range(4) if not (defer and defer(2*c+s) == jt)] for c in range(8)]
        if defer: work += [[(ks, defer(ks)) for ks in range(8)], [(ks, defer(ks)) for ks in range(8, 16)]]
        nch = len(work); rs = {}; started = set()
        def read(c, i):
            ks, jt = work[c][i]
            r, off = baddr(ks, jt) if baddr else (vB, 4096*ks + 256*jt)
            rs[(c, i)] = self.ld(f"ds_read_b128 {vr(BP+4*i)}, v{r} offset:{off}")
        if tag: self.ts(tag)
        if prebar: prebar(0)
        self.bar()
        if postbar: postbar(0)
        for i in range(len(work[0])): read(0, i)
        if tag: self.ts(tag)
        for c in range(nch):
            nxt = c + 1 < nch
            if c + 1 < 8 and prebar: prebar(c+1)
            if (c + 1 < 8 or (c + 1 == 8 and defer)) and not onebar: self.bar()
            if c + 1 < 8 and postbar: postbar(c+1)
            if prewait: prewait(c)
            items = side.pop(c, [])
            n = len(work[c]); nn = len(work[c+1]) if nxt else 0
            per = -(-len(items) // n)
            for i in range(n, nn): read(c+1, i)
            for i in range(n):
                ks, jt = work[c][i]
                if i % 2 == 0: self.wait_ld(rs[(c, min(i+1, n-1))])
                cc = vr(ACC+4*jt) if jt in started else "0"
                started.add(jt)
                a(f"v_mfma_f32_16x16x32_bf16 {vr(ACC+4*jt)}, {areg(ks)}, {vr(BP+4*i)}, {cc}")
                if i < nn: read(c+1, i)
                for _ in range(per):
                    if items: items.pop(0)()
            if tag: self.ts(tag)
        assert not side
    def gelu(self, acc, cs, S, out, t, pk):
        I = []
        if pk:
            for i in (0, 2): I.append(f"v_pk_fma_f32 {P(acc+i)}, {P(S)}, {P(cs+i)}, {P(acc+i)} op_sel_hi:[0,1,1] neg_lo:[1,0,0] neg_hi:[1,0,0]")
            for i in (0, 2): I.append(f"v_pk_mul_f32 {P(t+i)}, {P(acc+i)}, {P(acc+i)}")
            for i in (0, 2): I.append(f"v_pk_fma_f32 {P(t+i)}, {P(S+2)}, {P(t+i)}, {P(S+2)} op_sel:[1,0,0] op_sel_hi:[1,1,0]")
            for i in (0, 2): I.append(f"v_pk_mul_f32 {P(t+i)}, {P(t+i)}, {P(acc+i)}")
            for i in range(4): I.append(f"v_exp_f32 v{t+i}, v{t+i}")
            for i in (0, 2): I.append(f"v_pk_fma_f32 {P(t+i)}, {P(S)}, {P(t+i)}, {P(S)} op_sel:[1,0,1] op_sel_hi:[1,1,1]")
            for i in range(4): I.append(f"v_rcp_f32 v{t+i}, v{t+i}")
            for i in (0, 2): I.append(f"v_pk_mul_f32 {P(acc+i)}, {P(acc+i)}, {P(t+i)}")
        else:
            for i in range(4): I.append(f"v_fma_f32 v{acc+i}, -v{S}, v{cs+i}, v{acc+i}")
            for i in range(4): I.append(f"v_mul_f32 v{t+i}, v{acc+i}, v{acc+i}")
            for i in range(4): I.append(f"v_fma_f32 v{t+i}, v{t+i}, v{S+3}, v{S+2}")
            for i in range(4): I.append(f"v_mul_f32 v{t+i}, v{t+i}, v{acc+i}")
            for i in range(4): I.append(f"v_exp_f32 v{t+i}, v{t+i}")
            for i in range(4): I.append(f"v_fma_f32 v{t+i}, v{t+i}, v{S+1}, v{S+1}")
            for i in range(4): I.append(f"v_rcp_f32 v{t+i}, v{t+i}")
            for i in range(4): I.append(f"v_mul_f32 v{acc+i}, v{acc+i}, v{t+i}")
        return I + [f"v_cvt_pk_bf16_f32 v{out}, v{acc}, v{acc+1}", f"v_cvt_pk_bf16_f32 v{out+1}, v{acc+2}, v{acc+3}"]
    def gelu2(self, x, y, t, pk):
        p, q = self.gelu(*x, t, pk), self.gelu(*y, t+4, pk)
        return [z for pair in zip(p, q) for z in pair]
    def colsum(self, areg, dst, ones):
        for i in range(4): self.a(f"v_mov_b32 v{ones+i}, 0x3f803f80")
        for ks in range(16):
            self.a(f"v_mfma_f32_16x16x32_bf16 {vr(dst)}, {areg(ks)}, {vr(ones)}, {'0' if ks == 0 else vr(dst)}")
    def unpack(self, src, dst): self.a(f"v_lshlrev_b32 v{dst}, 16, v{src}\n v_and_b32 v{dst+1}, 0xffff0000, v{src}")
    def lds2reg(self, dst, n, va):
        for i in range(n): self.ld(f"ds_read_b128 {dst(i)}, v{va} offset:{1024*i}")
    def stat_reads(self, STAT, va, order, R1=None):
        it = []
        for jt in range(4):
            if order: x = f"ds_read_b128 {vr(STAT+4*jt)}, v{va+(jt&1)} offset:{512*(jt>>1)}"
            else: x = f"ds_read_b128 {vr(STAT+4*jt)}, v{va} offset:{256*jt}"
            it.append(lambda x=x: setattr(self, 'stseq', self.ld(x)))
        if R1 is not None:
            for jt in range(4):
                it.append(lambda jt=jt: setattr(self, 'stseq', self.ld(f"ds_read_b32 v{R1+jt}, v{va} offset:{1024 + 256*jt}")))
        return it

class Main:
    def __init__(self, dbg=False, tags=('main',), opt=None, seclen=None):
        self.dbg = dbg; self.opt = opt or {}
        Stream.NP = int(self.opt.get('np', 2))
        Stream.uid = 0; Stream.NT = not self.opt.get('nont')
        self.C = Stream('C', dbg, tags); self.H = Stream('H', dbg, tags)
        self.C.seclen = self.H.seclen = seclen or {}
    def sync_check(self): assert self.C.nbar == self.H.nbar, (self.C.nbar, self.H.nbar)

    def prologue(self):
        C, H = self.C, self.H; a = C.a
        a(f".text\n.globl {NAME}_kernel\n.p2align 12\n.type {NAME}_kernel,@function")
        a.label(f"{NAME}_kernel")
        a.label("main_kernel")
        a(f"""
    s_cmp_ge_u32 s2, 256
    s_cbranch_scc1 main_exit
    s_load_dwordx2 s[4:5], s[0:1], 96
    s_load_dwordx2 s[8:9], s[0:1], 0
    s_load_dwordx2 s[12:13], s[0:1], 80
    s_load_dwordx2 s[{sPR}:{sPR+1}], s[0:1], 8
    s_load_dwordx4 s[32:35], s[0:1], 16
    s_load_dwordx2 s[{sPP}:{sPP+1}], s[0:1], 32
    s_load_dwordx8 s[{sPP+2}:{sPP+9}], s[0:1], 48""")
        if self.dbg:
            a(f"{'s_memtime' if self.dbg == 'cyc' else 's_memrealtime'} s[70:71]"); C.nts = H.nts = 1
        a(f"""
    v_lshrrev_b32 v1, 6, v0
    v_and_b32 v{vLANE}, 63, v0
    v_readfirstlane_b32 s{sW8}, v1
    s_and_b32 s{sT0}, s2, 7
    s_lshr_b32 s{sT1}, s2, 3
    s_lshl_b32 s{sGRP}, s{sT0}, 2
    s_lshr_b32 s{sT2}, s{sT1}, 3
    s_add_u32 s{sGRP}, s{sGRP}, s{sT2}
    s_and_b32 s{sMEM}, s{sT1}, 7
    s_and_b32 s{sW}, s{sW8}, 3
    s_mul_i32 s{sAR}, s{sGRP}, {GA:#x}
    s_lshl_b32 s{sNT}, s{sMEM}, 2
    s_add_u32 s{sNT}, s{sNT}, s{sW}
    v_lshlrev_b32 v{vL16}, 4, v{vLANE}
    s_getpc_b64 s[42:43]""")
        a.label("L_pc0")
        a(f"""
    s_sub_u32 s42, s42, L_pc0-main_kernel
    s_subb_u32 s43, s43, 0
    s_lshl_b32 s{sT1}, s{sT1}, 3
    s_add_u32 s{sT1}, s{sT1}, s{sW8}
    s_lshl_b32 s{sT1}, s{sT1}, 8
    v_and_b32 v9, 1, v{vLANE}
    v_lshlrev_b32 v9, 7, v9
    v_add_u32 v9, s{sT1}, v9
    v_min_u32 v9, main_end-main_kernel-4, v9
    global_load_dword v255, v9, s[42:43]
    s_mov_b32 s6, {WS_USED:#x}
    s_mov_b32 s7, 0x20000
    v_lshrrev_b32 v8, 3, v{vLANE}
    s_mov_b32 s10, {2048*1024:#x}
    s_mov_b32 s11, 0x20000
    s_mov_b32 s{sPR+3}, 0x20000
    s_cmp_ge_u32 s{sW8}, 4
    s_cbranch_scc1 H_entry
    v_bfe_u32 v9, v{vLANE}, 4, 1
    s_and_b32 s{sT0}, s{sW}, 1
    s_lshl_b32 s{sT0}, s{sT0}, 1
    v_or_b32 v9, s{sT0}, v9
    v_bfe_u32 v10, v{vLANE}, 1, 2
    v_xor_b32 v9, v9, v10
    v_lshlrev_b32 v9, 5, v9
    v_and_b32 v10, 1, v{vLANE}
    v_lshl_add_u32 v9, v10, 4, v9
    v_lshl_add_u32 v134, v8, 10, v9
    s_mov_b32 s{sPR+2}, 0x80000
    s_lshl_b32 s{sG}, s{sW}, 13
    s_lshl_b32 s{sT0}, s{sMEM}, 7
    s_add_u32 s{sG}, s{sG}, s{sT0}
    s_lshl_b32 s{sL}, s{sW}, 10
    s_add_u32 s{sL}, s{sL}, 98304
    s_waitcnt lgkmcnt(0)
    s_and_b32 s{sPR+1}, s{sPR+1}, 0xffff""")
        a.label("L_wq")
        a(f"""
    s_mov_b32 m0, s{sL}
    s_add_u32 s{sL}, s{sL}, 4096
    buffer_load_dwordx4 v134, s[{sPR}:{sPR+3}], s{sG} offen lds
    s_add_u32 s{sG}, s{sG}, 32768
    s_cmp_lt_u32 s{sL}, 163840
    s_cbranch_scc1 L_wq
    s_branch C_entry""")
        C.nvm += 16
        a.label("H_entry")
        self.head = a.lines; a.lines = []
        a(".p2align 8"); a.label("C_entry")
    def setup_common(self, S, t):
        S.a(f"""
    s_mov_b32 s14, {2048*1024:#x}
    s_mov_b32 s15, 0x20000
    s_getreg_b32 s{sXCC}, hwreg(HW_REG_XCC_ID, 0, 3)
    v_and_b32 v{t}, 15, v{vLANE}                  ; t
    v_lshrrev_b32 v{t+1}, 4, v{vLANE}             ; g
    v_lshlrev_b32 v{vB}, 10, v{t+1}
    v_lshl_add_u32 v{vB}, v{t}, 4, v{vB}
    v_add_u32 v{vB}, {ACT}, v{vB}                 ; ACT + g*1024 + t*16
    v_lshrrev_b32 v{vD}, 1, v{t+1}
    v_lshlrev_b32 v{vD}, 10, v{vD}
    v_lshl_add_u32 v{vD}, v{t}, 4, v{vD}
    v_and_b32 v{t+2}, 1, v{t+1}
    v_lshl_add_u32 v{vD}, v{t+2}, 3, v{vD}        ; (g>>1)*1024 + t*16 + (g&1)*8
    s_lshl_b32 s{sT0}, s{sNT}, 2
    v_mov_b32 v{vMYF}, s{sT0}
    s_lshl_b32 s{sFLG}, s{sGRP}, 8
    s_add_u32 s{sFLG}, s{sFLG}, {FLAGS:#x}
    v_lshlrev_b32 v{t+2}, 10, v{t}
    v_lshl_add_u32 v{vXO}, v{t+1}, 3, v{t+2}      ; t*1024 + g*8
    s_and_b32 s{sORD}, s{sW}, 1
    s_lshl_b32 s{sORD}, s{sORD}, 8""")

    cT = 6
    S0, S1, NEGM, OA, OB, QA, QB, vIDX, vKA, vVA, vREG = 24, 40, 56, 72, 88, 16, 20, 13, 14, 15, 11
    KVR = 104
    NB = 1
    SCR = 16384
    def x_addr(self, S, dst, t, x):
        S.a(f"""
    v_lshrrev_b32 v{x}, 4, v{vLANE}
    v_and_b32 v{x+1}, 7, v{vLANE}
    v_xor_b32 v{x+1}, v{x+1}, v{x}
    v_lshlrev_b32 v{x+1}, 4, v{x+1}
    v_lshl_add_u32 v{dst}, v{t}, 7, v{x+1}
    v_add_u32 v{dst}, 32768, v{dst}""")
    def qstage(self):
        C, H = self.C, self.H; a = C.a; t = self.cT
        WQR, QACC, QBP = 192, 24, 40
        XB, WB = 32768, 98304
        QS = 144
        a("s_and_b32 s5, s5, 0xffff\n s_and_b32 s13, s13, 0xffff")
        wqseq = C.nvm - 1
        self.prep_setup(C, 152); self.prep_load(C, 152, 164)
        self.setup_common(C, t)
        self.x_addr(C, 130, t, t+1)
        a(f"""
    v_xor_b32 v131, 64, v130
    v_bfe_u32 v{t+2}, v{vLANE}, 2, 2
    v_lshl_add_u32 v132, v{t+1}, 3, v{t+2}
    v_lshlrev_b32 v132, 7, v132
    v_and_b32 v{t+1}, 1, v{t+1}
    v_lshrrev_b32 v{t+2}, 1, v{t+2}
    v_lshl_add_u32 v{t+1}, v{t+1}, 1, v{t+2}
    v_xor_b32 v{t+1}, s{sW}, v{t+1}
    v_lshl_add_u32 v132, v{t+1}, 5, v132
    v_and_b32 v{t+2}, 3, v{vLANE}
    v_lshl_add_u32 v132, v{t+2}, 3, v132
    v_add_u32 v132, {WB}, v132
    v_lshlrev_b32 v133, 3, v{t}""")
        ONE, CSQ = 136, 140
        for i in range(4): a(f"v_mov_b32 v{ONE+i}, 0x3f803f80")
        a(f"""
    s_mov_b32 s40, 0xffff
    s_mov_b32 s41, 0xffff
    v_mov_b32 v{self.vIDX}, 0xdddddddd
    v_mov_b32 v{self.vKA}, v{vL16}
    v_lshrrev_b32 v{t+2}, 5, v{vLANE}
    v_lshlrev_b32 v{t+2}, 8, v{t+2}
    v_and_b32 v{t+3}, 0xff, v{vL16}
    v_add_u32 v{self.vVA}, v{t+3}, v{t+2}   ; hA*256 + d*16""")
        for i in range(32): a(f"v_mov_b32 v{self.OA+i}, 0")
        a(f"v_and_b32 v{t+2}, 31, v{vLANE}\n v_cmp_eq_u32 vcc, 16, v{t+2}\n v_mov_b32 v{t+2}, 0x3f803f80")
        for b in range(2):
            for i in range(8): a(f"v_cndmask_b32 v{self.KVR+12*b+4+i}, 0, v{t+2}, vcc")
        C.wait_vm(wqseq)
        def postbar(c):
            for ks in (2*c, 2*c+1):
                C.ld(f"ds_read_b64_tr_b16 {P(WQR+4*ks)}, v132 offset:{4096*ks}")
                C.ld(f"ds_read_b64_tr_b16 {P(WQR+4*ks+2)}, v132 offset:{4096*ks+512}")
        side = {c: [(lambda ks=ks: a(f"v_mfma_f32_16x16x32_bf16 {vr(CSQ)}, {vr(WQR+4*ks)}, {vr(ONE)}, {'0' if ks == 0 else vr(CSQ)}")) for ks in (2*c, 2*c+1)] for c in range(8)}
        side[5] += [(lambda jt=jt: C.ld(f"ds_read_b64 {P(QS+2*jt)}, v133 offset:{self.SCR + 128*jt}")) for jt in range(4)]
        C.cons_gemm(V(WQR), QACC, QBP, side=side, baddr=lambda ks, jt: (130 + (ks & 1), 8192*(ks >> 1) + 2048*jt),
                    postbar=postbar, tag="q", onebar=True)
        C.ts()
        QA, QB = self.QA, self.QB
        for jt in range(4): a(f"v_mul_f32 v{QS+2*jt+1}, {f32(QSCALE)}, v{QS+2*jt+1}")
        for jt in range(4):
            for h in (0, 2): a(f"v_pk_fma_f32 {P(QACC+4*jt+h)}, {P(QS+2*jt)}, {P(CSQ+h)}, {P(QACC+4*jt+h)} op_sel_hi:[0,1,1] neg_lo:[1,0,0] neg_hi:[1,0,0]")
        for jt in range(4):
            for h in (0, 2): a(f"v_pk_mul_f32 {P(QACC+4*jt+h)}, {P(QS+2*jt)}, {P(QACC+4*jt+h)} op_sel:[1,0] op_sel_hi:[1,1]")
        for jt in range(4):
            a(f"v_cvt_pk_bf16_f32 v{QA+2*jt}, v{QACC+4*jt}, v{QACC+4*jt+1}")
            a(f"v_cvt_pk_bf16_f32 v{QA+2*jt+1}, v{QACC+4*jt+2}, v{QACC+4*jt+3}")
        a(f"v_mov_b32 v{t}, 0\n v_mov_b32 v{t+1}, 0")
        for q in (QA, QB): a(f"v_permlane16_swap_b32 v{q}, v{q+2}\n v_permlane16_swap_b32 v{q+1}, v{q+3}")
        for i in range(4): a(f"v_dot2_f32_bf16 v{t}, v{QA+i}, v{QA+i}, v{t}\n v_dot2_f32_bf16 v{t+1}, v{QB+i}, v{QB+i}, v{t+1}")
        a(f"""
    v_permlane32_swap_b32 v{t}, v{t+1}
    v_add_f32 v{t}, v{t}, v{t+1}
    v_mov_b32 v{t+1}, v{t}
    v_permlane32_swap_b32 v{t}, v{t+1}
    v_max_f32 v{t}, v{t}, v{t+1}
    v_sqrt_f32 v{t}, v{t}
    v_mov_b32 v133, {self.SCR + 512}""")
        a(f"s_mul_i32 s{sT0}, s{sW}, 5120\n s_add_u32 s{sT0}, s{sT0}, {HI}\n v_add_u32 v134, s{sT0}, v{vL16}\n s_waitcnt vmcnt(0)")
        C.ts("q"); C.bar(); C.ts("q")
        a(f"""
    ds_read_b64 v[128:129], v133""")
        for i in range(5): a(f"ds_write_b128 v134, {vr(164+4*i)} offset:{1024*i}")
        a(f"""
    s_waitcnt lgkmcnt(5)
    v_mul_f32 v{self.NEGM}, v{t}, v128
    v_readfirstlane_b32 s{sSLOW}, v129""")
        for i in range(1, 16): a(f"v_mov_b32 v{self.NEGM+i}, v{self.NEGM}")
        a(f"s_mov_b32 s{sSLOW+1}, s{sSLOW}\n s_waitcnt lgkmcnt(0)")

        a = H.a; v = self.PV
        XF, WF = 64, 128
        a(f"""
    s_setprio 3
    v_and_b32 v9, 7, v{vLANE}
    v_xor_b32 v9, v9, v8
    v_lshlrev_b32 v9, 4, v9
    v_lshl_add_u32 v19, v8, 10, v9
    s_lshl_b32 s{sPF}, s{sGRP}, 16
    s_lshl_b32 s{sT0}, s{sW}, 14
    s_add_u32 s{sPF}, s{sPF}, s{sT0}
    s_lshl_b32 s{sL}, s{sW}, 11
    s_add_u32 s{sL}, s{sL}, {XB}
    s_lshr_b32 s{sKVW}, s{sMEM}, 1
    s_mov_b32 s{sPR+2}, 16384
    v_mov_b32 v7, 0
    s_bitcmp1_b32 s{sMEM}, 0
    s_waitcnt lgkmcnt(0)
    s_cselect_b64 s[{sPR}:{sPR+1}], s[34:35], s[32:33]
    s_and_b32 s5, s5, 0xffff
    s_and_b32 s9, s9, 0xffff
    s_and_b32 s13, s13, 0xffff
    s_and_b32 s{sPR+1}, s{sPR+1}, 0xffff
    s_mov_b32 s{sT0}, {TAGW:#x}
    buffer_load_dword v47, v7, {WS}, s{sT0} offen sc1""")
        L = H.lab("nokv1")
        a(f"s_cmp_lg_u32 s{sKVW}, s{sW}\n s_cbranch_scc1 {L}\n s_mov_b32 s{sT0}, 0")
        a.label("L_wk")
        a(f"s_mov_b32 m0, s{sT0}\n s_nop 0")
        for k in range(4): a(f"buffer_load_dwordx4 v{vL16}, s[{sPR}:{sPR+3}], s{sT0} offen offset:{1024*k} lds")
        a(f"s_add_u32 s{sT0}, s{sT0}, 4096\n s_cmp_lt_u32 s{sT0}, 16384\n s_cbranch_scc1 L_wk")
        a.label(L)
        a(f"s_mov_b32 s{sT1}, s{sMEM}\n s_add_u32 s{sT2}, s{sMEM}, 8")
        a.label("L_x")
        a(f"""
    s_and_b32 s{sT0}, s{sT1}, 7
    s_lshl_b32 s{sG}, s{sT0}, 7
    s_add_u32 s{sG}, s{sG}, s{sPF}
    s_lshl_b32 s{sT0}, s{sT0}, 13
    s_add_u32 m0, s{sT0}, s{sL}
    s_add_u32 s{sT1}, s{sT1}, 1
    buffer_load_dwordx4 v19, {XS}, s{sG} offen lds
    s_add_u32 s{sG}, s{sG}, {8192 - 1024}
    s_cmp_lt_u32 s{sT1}, s{sT2}
    buffer_load_dwordx4 v19, {XS}, s{sG} offen offset:1024 lds
    s_cbranch_scc1 L_x""")
        H.nvm += 16
        self.setup_common(H, 16)
        self.x_addr(H, 40, 16, 42)
        a(f"s_lshl_b32 s{sT0}, s{sW}, 11\n v_add_u32 v40, s{sT0}, v40\n v_xor_b32 v41, 64, v40")
        a("v_mov_b32 v60, 0x3f803f80\n v_mov_b32 v61, 0x3f803f80\n v_mov_b32 v62, 0x3f803f80\n v_mov_b32 v63, 0x3f803f80")
        H.ts("q")
        L, L2 = H.lab("noinit"), H.lab("initd")
        a(f"s_cmp_lg_u32 s{sKVW}, s{sW}\n s_cbranch_scc1 {L}")
        a(f"""
    v_mov_b32 v48, 0
    v_mov_b32 v49, 0
    v_mov_b32 v50, 0
    v_mov_b32 v51, 0
    v_lshrrev_b32 v52, 1, v{vLANE}
    v_lshlrev_b32 v52, 13, v52
    v_and_b32 v53, 1, v{vLANE}
    v_lshl_add_u32 v52, v53, 4, v52
    s_lshl_b32 s{sT0}, s{sMEM}, 5
    s_add_u32 s{sT0}, s{sT0}, s{sFLG}
    s_mov_b64 exec, 0x3fff
    buffer_store_dwordx4 v[48:51], v52, {WS}, s{sT0} offen sc1
    s_lshl_b32 s{sT0}, s2, 7
    s_add_u32 s{sT0}, s{sT0}, {PFLAG:#x}
    s_mov_b64 exec, 1
    buffer_store_dword v48, v7, {WS}, s{sT0} offen sc1
    s_mov_b64 exec, -1
    v_mov_b32 v52, -1
    v_mov_b32 v53, -1
    v_mov_b32 v54, -1
    v_mov_b32 v55, -1
    s_lshl_b32 s{sT0}, s{sMEM}, 10
    s_add_u32 s{sT0}, s{sT0}, s{sAR}
    s_add_u32 s{sT0}, s{sT0}, {ST1:#x}
    buffer_store_dwordx4 v[52:55], v{vL16}, {WS}, s{sT0} offen sc1
    s_bfe_u32 s{sT1}, s{sMEM}, 0x10001
    s_mul_i32 s{sT1}, s{sT1}, 31
    s_cmp_eq_u32 s{sT1}, s{sGRP}
    s_cselect_b32 s{sT1}, 0, -1
    v_mov_b32 v56, s{sT1}
    v_mov_b32 v57, s{sT1}
    v_mov_b32 v58, s{sT1}
    v_mov_b32 v59, s{sT1}
    s_lshl_b32 s{sT0}, s{sMEM}, 8
    s_add_u32 s{sT0}, s{sT0}, s{sAR}
    s_add_u32 s{sT0}, s{sT0}, {HALO:#x}
    s_mov_b64 exec, 0xffff
    buffer_store_dwordx4 v[56:59], v{vL16}, {WS}, s{sT0} offen sc1
    s_mov_b64 exec, -1""")
        a(f"""
    v_bfe_u32 v42, v{vLANE}, 2, 2
    v_lshl_add_u32 v42, v17, 3, v42
    v_lshlrev_b32 v42, 5, v42
    v_and_b32 v43, 3, v{vLANE}
    v_lshl_add_u32 v42, v43, 3, v42
    s_waitcnt vmcnt(20)""")
        for ks in range(16):
            a(f"ds_read_b64_tr_b16 {P(WF+4*ks)}, v42 offset:{1024*ks}\n ds_read_b64_tr_b16 {P(WF+4*ks+2)}, v42 offset:{1024*ks+128}")
        a("s_waitcnt lgkmcnt(0)")
        for ks in range(16):
            a(f"v_mfma_f32_16x16x32_bf16 v[192:195], {vr(WF+4*ks)}, v[60:63], {'0' if ks == 0 else 'v[192:195]'}")
            a(f"v_mfma_f32_16x16x32_bf16 v[196:199], v[60:63], {vr(WF+4*ks)}, {'0' if ks == 0 else 'v[196:199]'}")
        a(f"s_waitcnt vmcnt(4)\n s_branch {L2}")
        a.label(L)
        a("s_waitcnt vmcnt(0)")
        a.label(L2)
        H.ts("q")
        rs = [H.ld(f"ds_read_b128 {vr(XF+4*ks)}, v{40 + (ks & 1)} offset:{8192*(ks >> 1)}") for ks in range(16)]
        Lo, Lj = H.lab("ori"), H.lab("orj")
        a(f"s_bitcmp1_b32 s{sMEM}, 0\n s_cbranch_scc1 {Lo}")
        for ori in range(2):
            for ks in range(16):
                if ks % 2 == 0: H.wait_ld(rs[ks+1])
                X, Wf = vr(XF+4*ks), vr(WF+4*ks)
                a(f"v_mfma_f32_16x16x32_bf16 v[36:39], v[60:63], {X}, {'0' if ks == 0 else 'v[36:39]'}")
                a(f"v_mfma_f32_16x16x32_bf16 v[32:35], {X}, {X}, {'0' if ks == 0 else 'v[32:35]'}")
                a(f"v_mfma_f32_16x16x32_bf16 v[48:51], {X if ori else Wf}, {Wf if ori else X}, {'0' if ks == 0 else 'v[48:51]'}")
            if ori == 0:
                a(f"s_branch {Lj}"); a.label(Lo)
        a.label(Lj)
        a("v_mov_b32 v45, 0")
        for i in range(4):
            a(f"s_mov_b32 vcc_lo, {0x00100001 << i:#x}\n s_mov_b32 vcc_hi, {0x10000100 << i:#x}\n v_cndmask_b32 v45, v45, v{32+i}, vcc")
        a(f"""
    v_mov_b32 v44, v45
    v_permlane32_swap_b32 v44, v45
    v_add_f32 v45, v44, v45
    v_mov_b32 v44, v45
    v_permlane16_swap_b32 v44, v45
    v_add_f32 v45, v44, v45
    v_mul_f32 v44, 0x3b000000, v36
    v_mul_f32 v45, 0x3b000000, v45
    v_fma_f32 v45, -v44, v44, v45
    v_max_f32 v45, 0, v45
    v_add_f32 v45, 0x3727c5ac, v45
    v_rsq_f32 v45, v45
    s_lshl_b32 s{sT0}, s{sW}, 7
    v_lshl_add_u32 v46, v16, 3, s{sT0}
    ds_write_b64 v46, v[44:45] offset:{self.SCR}""")
        a(f"v_readfirstlane_b32 s{sTAG}, v47\n s_add_u32 s{sTAG}, s{sTAG}, 1")
        L, Lv, Lp = H.lab("nokv3"), H.lab("isv"), H.lab("pub")
        a(f"""
    s_waitcnt lgkmcnt(0)
    s_cmp_lg_u32 s{sKVW}, s{sW}
    s_cbranch_scc1 {L}
    s_lshl_b32 s{sT1}, s{sGRP}, 1
    s_lshr_b32 s{sT2}, s{sW}, 1
    s_add_u32 s{sT1}, s{sT1}, s{sT2}
    s_lshl_b32 s{sT1}, s{sT1}, 11
    s_add_u32 s{sT1}, s{sT1}, {KV:#x}             ; tile32*2048
    v_lshrrev_b32 v42, 1, v17                     ; hA
    v_and_b32 v43, 0xff, v{vD}                    ; (t or d)*16 + (g&1)*8
    s_bitcmp1_b32 s{sMEM}, 0
    s_cbranch_scc1 {Lv}""")
        a(f"s_add_u32 s{sT1}, s{sT1}, s{sORD}\n v_lshl_add_u32 v43, v42, 9, v43")
        for i in range(4): a(f"v_fma_f32 v{48+i}, -v44, v{192+i}, v{48+i}")
        for i in range(4): a(f"v_mul_f32 v{48+i}, v{48+i}, v45")
        a(f"""
    v_cvt_pk_bf16_f32 v52, v48, v49
    v_cvt_pk_bf16_f32 v53, v50, v51
    v_mov_b32 v57, 0
    buffer_store_dwordx2 v[52:53], v43, {WS}, s{sT1} offen sc1
    v_dot2_f32_bf16 v57, v52, v52, v57
    v_dot2_f32_bf16 v57, v53, v53, v57
    v_mov_b32 v58, v57
    v_permlane32_swap_b32 v57, v58
    v_add_f32 v57, v57, v58
    v_mov_b32 v58, v57
    v_permlane16_swap_b32 v57, v58
    v_add_f32 v57, v57, v58""")
        for r in (8, 4, 2, 1): a(f"v_max_f32_dpp v57, v57, v57 row_ror:{r} row_mask:0xf bank_mask:0xf")
        a(f"s_branch {Lp}")
        a.label(Lv)
        a(f"v_lshl_add_u32 v46, v17, 5, s{sT0}\n ds_read_b128 v[32:35], v46 offset:{self.SCR}\n ds_read_b128 v[36:39], v46 offset:{self.SCR+16}")
        a(f"s_lshl_b32 s{sT2}, s{sORD}, 1\n s_add_u32 s{sT1}, s{sT1}, s{sT2}\n v_lshl_add_u32 v43, v42, 8, v43\n s_waitcnt lgkmcnt(0)")
        for i in range(4): a(f"v_fma_f32 v{48+i}, -v{32+2*i}, v{196+i}, v{48+i}")
        for i in range(4): a(f"v_mul_f32 v{48+i}, v{48+i}, v{33+2*i}")
        a(f"""
    v_cvt_pk_bf16_f32 v52, v48, v49
    v_cvt_pk_bf16_f32 v53, v50, v51
    v_mov_b32 v57, 0
    buffer_store_dwordx2 v[52:53], v43, {WS}, s{sT1} offen offset:1024 sc1""")
        a.label(Lp)
        a(f"""
    v_mov_b32 v56, s{sTAG}
    v_mov_b32 v58, s{sXCC}
    v_mov_b32 v59, s{sTAG}
    s_lshl_b32 s{sT0}, s{sGRP}, 3
    s_add_u32 s{sT0}, s{sT0}, s{sMEM}
    s_lshl_b32 s{sT0}, s{sT0}, 7
    s_add_u32 s{sT0}, s{sT0}, {KFLAG:#x}""")
        a.label(L)
        H.ts("q")
        H.bar()
        L = H.lab("nokv4")
        a(f"""
    s_cmp_lg_u32 s{sKVW}, s{sW}
    s_cbranch_scc1 {L}
    s_waitcnt vmcnt(0)
    s_mov_b64 exec, 1
    buffer_store_dwordx4 v[56:59], v7, {WS}, s{sT0} offen sc1
    s_mov_b64 exec, -1""")
        a.label(L)
        a("s_setprio 0")
        self.prep_setup(H, 200, HI)
        a(f"v_lshlrev_b32 v{self.TA}, 7, v{vLANE}\n v_and_b32 v46, 0xfff, v{self.TA}\n s_lshr_b32 s{sRND}, s{sGRP}, 2")
        L = H.lab("nopoll")
        a(f"s_cmp_lg_u32 s{sW}, 0\n s_cbranch_scc1 {L}")
        self.kpoll(46, True)
        a(f"s_lshl_b32 s{sW4}, s{sRND}, 14\n s_add_u32 s{sW4}, s{sW4}, {KV:#x}")
        for i in range(4):
            a(f"s_mov_b32 m0, {4096*i}\n s_nop 0")
            for k in range(4): a(f"buffer_load_dwordx4 v{vL16}, {WS}, s{sW4} offen offset:{1024*k} sc1 lds")
            a(f"s_add_u32 s{sW4}, s{sW4}, 4096")
        a(f"""
    s_and_b32 s{sT0}, s{sGRP}, 3
    s_lshl_b32 s{sT0}, s{sT0}, 3
    s_lshl_b32 s{sT0}, 0xff, s{sT0}
    v_cmp_ne_u32 vcc, s{sXCC}, v50
    s_and_b32 s{sT0}, s{sT0}, vcc_lo
    s_cselect_b64 s[{sSLOW}:{sSLOW+1}], -1, 0""")
        for r in (8, 4, 2, 1): a(f"v_max_f32_dpp v49, v49, v49 row_ror:{r} row_mask:0xf bank_mask:0xf")
        a(f"""
    v_mov_b32 v50, v49
    v_permlane16_swap_b32 v49, v50
    v_max_f32 v49, v49, v50
    v_sqrt_f32 v49, v49
    v_mov_b32 v51, s{sSLOW}
    v_mul_f32 v50, -1.0, v49
    v_mov_b32 v46, {self.SCR + 512}
    ds_write_b64 v46, v[50:51]
    s_waitcnt lgkmcnt(0)""")
        a.label(L)
        a(f"s_add_u32 s{sRND}, s{sRND}, 1\n s_and_b32 s{sRND}, s{sRND}, 7")
        self.nkv = 1
        H.ts("q")
        H.bar()
        a(f"v_mov_b32 v46, {self.SCR + 512}\n ds_read_b64 v[50:51], v46\n s_waitcnt lgkmcnt(0)\n v_readfirstlane_b32 s{sSLOW}, v51\n s_mov_b32 s{sSLOW+1}, s{sSLOW}")
        self.sync_check()
    TA = 18
    def kpoll(self, va, first=False):
        H = self.H; a = H.a; L = H.lab("kp")
        a(f"s_lshl_b32 s{sT0}, s{sRND}, 12\n s_add_u32 s{sT0}, s{sT0}, {KFLAG:#x}\n s_mov_b32 s{sCNT}, 0")
        a.label(L)
        a(f"""
    buffer_load_dwordx4 v[48:51], v{va}, {WS}, s{sT0} offen sc1
    s_add_u32 s{sCNT}, s{sCNT}, 1
    s_cmp_gt_u32 s{sCNT}, {SPIN}
    s_cbranch_scc1 main_exit
    s_waitcnt vmcnt(0)
    v_cmp_ne_u32 vcc, s{sTAG}, v48
    v_cmp_ne_u32 s[36:37], s{sTAG}, v51
    s_or_b64 vcc, vcc, s[36:37]
    s_cbranch_vccnz {L}""")
    nkv = 0
    def kv(self, n):
        H = self.H
        for r in range(n):
            H.a(f"""
    s_lshl_b32 s{sW4}, s{sRND}, 14
    s_lshl_b32 s{sPL}, s{sW}, 12
    s_add_u32 s{sW4}, s{sW4}, s{sPL}
    s_add_u32 s{sW4}, s{sW4}, {KV:#x}
    s_add_u32 m0, s{sPL}, {16384*self.nkv}
    s_add_u32 s{sRND}, s{sRND}, 1
    s_and_b32 s{sRND}, s{sRND}, 7""")
            self.nkv += 1
            for i in range(4): self.kvseq = H.vm(f"buffer_load_dwordx4 v{vL16}, {WS}, s{sW4} offen offset:{1024*i} sc1 lds")

    PV = 20
    def prep_setup(self, S, v, win=20480):
        a = S.a
        T0, T1, T2, T3 = sT0, sT1, sT2, sT3
        def dst(i, base): a(f"s_lshl_b32 s{sPD+i}, s{T2}, 10\n s_lshl_b32 s{T3}, s{sW}, 8\n s_add_u32 s{sPD+i}, s{sPD+i}, s{T3}\n s_add_u32 s{sPD+i}, s{sPD+i}, {base:#x}")
        def std(q, i, base, rows=True):
            a(f"""
    s_lshr_b32 s{T1}, s{q}, 3
    s_and_b32 s{T2}, s{q}, 7
    s_lshl_b32 s{sPS+i}, s{T1}, 15
    s_lshl_b32 s{T3}, s{T2}, 7
    s_add_u32 s{sPS+i}, s{sPS+i}, s{T3}""")
            if rows: a(f"s_lshl_b32 s{T3}, s{sW}, 13\n s_add_u32 s{sPS+i}, s{sPS+i}, s{T3}")
            if base is not None:
                a(f"s_lshl_b32 s{T2}, s{T2}, 6\n s_add_u32 s{T2}, s{T2}, s{T1}"); dst(i, base)
        def w4t(q, i, vd):
            std(q, i, None)
            a(f"""
    s_mul_i32 s{T2}, s{T2}, 56
    s_add_u32 s{T2}, s{T2}, s{T1}
    s_lshl_b32 s{T2}, s{T2}, 2
    s_mul_i32 s{T1}, s{T1}, 9363
    s_lshr_b32 s{T1}, s{T1}, 16
    v_subrev_u32 v{vd}, s{T1}, v{v+9}
    v_and_b32 v{vd}, 3, v{vd}
    v_lshl_add_u32 v{vd}, v{vd}, 10, v{v+10}""")
            dst(i, W4)
        def w3t(q, i):
            a(f"""
    s_mul_i32 s{T1}, s{q}, 2341
    s_lshr_b32 s{T1}, s{T1}, 16                   ; ks = q/28
    s_mul_i32 s{T2}, s{T1}, 28
    s_sub_u32 s{T2}, s{q}, s{T2}                  ; nb
    s_lshl_b32 s{T3}, s{T1}, 2
    s_add_u32 s{T3}, s{T3}, s{sW}
    s_mul_i32 s{sPS+i}, s{T3}, {8*3584}
    s_lshl_b32 s{T3}, s{T2}, 7
    s_add_u32 s{sPS+i}, s{sPS+i}, s{T3}
    s_lshl_b32 s{T2}, s{T2}, 6
    s_add_u32 s{T2}, s{T2}, s{T1}""")
            dst(i, W3)
        a(f"""
    v_lshrrev_b32 v{v+9}, 4, v{vLANE}             ; q
    v_and_b32 v{v+10}, 0xff, v{vL16}              ; i*16
    v_lshl_add_u32 v{v+4}, v{v+9}, 14, v{v+10}
    v_lshrrev_b32 v{v+7}, 3, v{vLANE}
    v_and_b32 v{v+8}, 0x7f, v{vL16}
    v_lshl_add_u32 v{v}, v{v+7}, 10, v{v+8}
    v_mul_u32_u24 v{v+1}, 3584, v{v+7}
    v_add_u32 v{v+1}, v{v+1}, v{v+8}""")
        w3t(2, 0); w4t(2, 1, v+5)
        L, Le = S.lab("pwo"), S.lab("pend")
        a(f"s_cmp_ge_u32 s2, 192\n s_cbranch_scc1 {L}\n s_add_u32 s{T0}, s2, 256")
        w3t(T0, 2); w4t(T0, 3, v+6)
        a(f"v_mov_b32 v{v+2}, v{v+1}\n v_mov_b32 v{v+3}, v{v}\n s_branch {Le}")
        a.label(L)
        a(f"s_sub_u32 s{T0}, s2, 192"); std(T0, 2, WO, rows=False)
        a(f"s_sub_u32 s{T0}, s2, 128"); std(T0, 3, WO, rows=False)
        a(f"""
    s_lshr_b32 s{T1}, s{sW}, 1
    s_lshl_b32 s{T1}, s{T1}, 4
    s_and_b32 s{T2}, s{sW}, 1
    s_lshl_b32 s{T2}, s{T2}, 2
    s_add_u32 s{T1}, s{T1}, s{T2}
    v_and_b32 v{v+2}, 4, v{v+7}
    v_add3_u32 v{v+2}, v{v+2}, v{v+7}, s{T1}
    v_lshl_add_u32 v{v+2}, v{v+2}, 10, v{v+8}
    v_mov_b32 v{v+3}, v{v+2}
    v_mov_b32 v{v+6}, v{v+4}""")
        a.label(Le)
        a(f"s_and_b32 s{T0}, s2, 127"); std(T0, 4, W1)
        a(f"""
    s_lshr_b32 s{T0}, s2, 7
    s_lshl_b32 s{T0}, s{T0}, 19
    s_add_u32 s{sPD+4}, s{sPD+4}, s{T0}
    s_mul_i32 s{T0}, s{sW}, 5120
    s_add_u32 s{T0}, s{T0}, {win}
    v_add_u32 v{v+7}, s{T0}, v{vL16}
    v_bfe_u32 v{v+8}, v{vLANE}, 2, 2
    v_lshlrev_b32 v{v+8}, 7, v{v+8}
    v_lshl_add_u32 v{v+8}, v{v+9}, 5, v{v+8}
    v_and_b32 v{v+9}, 3, v{vLANE}
    v_lshl_add_u32 v{v+8}, v{v+9}, 3, v{v+8}
    v_add_u32 v{v+8}, s{T0}, v{v+8}""")
    def prep_load(self, S, v, dst):
        a = S.a
        PR = f"s[{sPR}:{sPR+3}]"
        wo, w1, w2, w3, w4 = (f"s[{sPP+2*i}:{sPP+2*i+1}]" for i in range(5))
        big, small = 0x1c0000, 0x80000
        for i in range(5):
            if i < 2: a(f"s_mov_b64 s[{sPR}:{sPR+1}], {(w3, w4)[i]}\n s_mov_b32 s{sPR+2}, {big:#x}")
            elif i < 4:
                a(f"s_mov_b32 s{sT1}, {small:#x}\n s_cmp_ge_u32 s2, 192\n s_cselect_b64 s[{sPR}:{sPR+1}], {wo}, {(w3, w4)[i-2]}\n s_cselect_b32 s{sPR+2}, s{sT1}, {big:#x}")
            else: a(f"s_cmp_ge_u32 s2, 128\n s_cselect_b64 s[{sPR}:{sPR+1}], {w2}, {w1}\n s_mov_b32 s{sPR+2}, {small:#x}")
            a(f"s_and_b32 s{sPR+1}, s{sPR+1}, 0xffff")
            S.vm(f"buffer_load_dwordx4 {vr(dst+4*i)}, v{(v+1, v, v+2, v+3, v)[i]}, {PR}, s{sPS+i} offen")
    def prep_finish(self, S, v, d):
        for i in range(5):
            S.a(f"ds_read_b64_tr_b16 {P(d+4*i)}, v{v+8} offset:{1024*i}\n ds_read_b64_tr_b16 {P(d+4*i+2)}, v{v+8} offset:{1024*i+512}")
    def prep_store(self, S, v, d):
        S.a("s_waitcnt lgkmcnt(0)")
        for i in range(5): r = S.vm(f"buffer_store_dwordx4 {vr(d+4*i)}, v{(v+4, v+5, v+4, v+6, v+4)[i]}, {WS}, s{sPD+i} offen sc1")
        return r

    hXT, hACC, hBP = 8, 16, 32
    hRES, hSTAT, hCS1, hR1, hTMP, hCS3, hX = 64, 80, 96, 100, 104, 112, 120
    UB = tuple(int(x) for x in os.environ.get('UB', '28,72,86,98,104').split(','))
    UBK = int(os.environ.get('UBK', '12'))
    def attention(self):
        C, H = self.C, self.H; a = C.a
        S0, S1, NEGM, OA, OB, QA, QB, vIDX, vKA, vVA = self.S0, self.S1, self.NEGM, self.OA, self.OB, self.QA, self.QB, self.vIDX, self.vKA, self.vVA
        kf = lambda t: self.KVR + 12*(t & 1)
        C.ts("at"); C.bar(); C.ts("at")
        a("s_setprio 1")
        def rdK(t): a(f"ds_read_b128 {vr(kf(t))}, v{vKA} offset:{(t&31)*2048}")
        def rdV(t):
            a(f"s_mov_b64 exec, {sVM}")
            a(f"ds_read_b128 {vr(kf(t)+4)}, v{vVA} offset:{(t&31)*2048+1024}")
            a(f"ds_read_b128 {vr(kf(t)+8)}, v{vVA} offset:{(t&31)*2048+1536}")
            a("s_mov_b64 exec, -1")
        def qk(u): a(f"v_mfma_f32_32x32x16_bf16 {vr((S0,S1)[u&1],16)}, {vr(kf(u>>1))}, {vr((QA,QB)[u&1])}, {vr(NEGM,16)}")
        def pv(u, h): a(f"v_smfmac_f32_32x32x32_bf16 {vr((OA,OB)[u&1],16)}, {vr(kf(u>>1)+4+4*h)}, {vr((S0,S1)[u&1]+8*h,8)}, v{vIDX}")
        def ex(u, lo, hi):
            for i in range(lo, hi): a(f"v_exp_f32 v{(S0,S1)[u&1]+i}, v{(S0,S1)[u&1]+i}")
        x = self.cT
        a(f"s_lshl_b32 s{sT0}, s{sW}, 13\n s_add_u32 s{sT0}, s{sT0}, {HI}\n v_add_u32 v{x}, s{sT0}, v{vL16}\n s_lshl_b32 s{sT0}, s{sW}, 14\n v_add_u32 v{x+1}, s{sT0}, v{vL16}")
        plan = {}
        for ub, f0, n, va in ((self.UB[1], 0, 8, x), (self.UB[2], 8, 16, x+1), (self.UB[3], 24, 8, x)):
            for i in range(n): plan.setdefault(ub + 1 + 2*(i // 4), []).append(f"ds_read_b128 {vr(128+4*(f0+i))}, v{va} offset:{1024*i}")
        rdK(0); rdV(0); rdK(1)
        a("s_waitcnt lgkmcnt(3)")
        qk(0)
        for u in range(128):
            t, q = u >> 1, u & 1
            if u % 8 == 0: C.ts("at")
            ex(u, 0, 2)
            if u > 0: pv(u-1, 1)
            ex(u, 2, 5)
            if u + 1 < 128: qk(u+1)
            if u in self.UB or u == self.UBK: C.bar()
            if q == 0:
                if t + 1 < 64:
                    if t + 1 == 32: a(f"v_add_u32 v{vVA}, 0x10000, v{vVA}")
                    rdV(t+1)
                if t + 2 < 64:
                    if t + 2 == 32: a(f"v_add_u32 v{vKA}, 0x10000, v{vKA}")
                    rdK(t+2)
            for y in plan.pop(u, []): a(y)
            ex(u, 5, 10)
            if q == 0: a(f"s_waitcnt lgkmcnt({3 if t + 2 < 64 else (2 if t + 1 < 64 else 0)})")
            pv(u, 0)
            ex(u, 10, 16)
        assert not plan
        pv(127, 1)
        C.ts(); C.ts("at")
        t = self.cT
        a(f"""
    v_lshrrev_b32 v{t+1}, 5, v{vLANE}
    v_lshlrev_b32 v{t+1}, 10, v{t+1}
    v_and_b32 v{t+2}, 31, v{vLANE}
    v_lshl_add_u32 v{t+4}, v{t+2}, 4, v{t+1}""")
        C.tile_soff(sT1, O_)
        a(f"v_min_f32 v{t}, v{OA+8}, v{OB+8}\n v_max_f32 v{t+1}, v{OA+8}, v{OB+8}\n v_cmp_nle_f32 vcc, {f32(2.0**-80)}, v{t}\n s_mov_b32 s{sT2}, vcc_lo\n v_cmp_nge_f32 vcc, {f32(2.0**80)}, v{t+1}\n s_or_b32 s{sT2}, s{sT2}, vcc_lo\n s_cbranch_scc1 attn_redo")
        a.label("attn_done")
        a(f"v_mov_b32 v{OA+9}, v{OA+8}\n v_mov_b32 v{OB+9}, v{OB+8}\n v_permlane32_swap_b32 v{OA+8}, v{OA+9}\n v_permlane32_swap_b32 v{OB+8}, v{OB+9}")
        a(f"v_rcp_f32 v{t+2}, v{OA+8}\n v_rcp_f32 v{t+6}, v{OB+8}")
        for o, r in ((OA, t+2), (OB, t+6)):
            for i in range(4): a(f"v_pk_mul_f32 {P(o+2*i)}, {P(o+2*i)}, {P(r)} op_sel_hi:[1,0]")
            for i in range(4): a(f"v_cvt_pk_bf16_f32 v{o+i}, v{o+2*i}, v{o+2*i+1}")
        C.setvcc()
        C.cstore([f"buffer_store_dwordx4 {vr(OA)}, v{t+4}, {WS}, s{sT1} offen", f"buffer_store_dwordx4 {vr(OB)}, v{t+4}, {WS}, s{sT1} offen offset:512"])
        a("s_setprio 0")
        C.set_act(O_)
        a(f"v_and_b32 v{self.cF}, 31, v{vLANE}\n v_lshlrev_b32 v{self.cF}, 2, v{self.cF}")
        C.flag(0, t)
        C.ts()
        a = H.a; v = self.PV; d = v + 8
        CW = v + 7
        a(f"v_mov_b32 v{CW}, {HI + 32752}\n v_mov_b32 v6, 0\n ds_write_b64 v{CW}, v[6:7]\n ds_write_b32 v{CW}, v6 offset:8\n s_waitcnt lgkmcnt(0)")
        a("s_waitcnt vmcnt(0)"); H.bar()
        TA, TD = self.TA, 19
        def spin(n, off=0):
            L = H.lab("hs")
            a(f"s_mov_b32 s{sCNT}, 0")
            a.label(L)
            a(f"""
    s_sleep 1
    ds_read_b32 v6, v{CW} offset:{off}
    s_add_u32 s{sCNT}, s{sCNT}, 1
    s_cmp_gt_u32 s{sCNT}, {SPIN*16}
    s_cbranch_scc1 main_exit
    s_waitcnt lgkmcnt(0)
    v_cmp_gt_u32 vcc, {n}, v6
    s_cbranch_vccnz {L}""")
        def count(off=0): a(f"v_mov_b32 v6, 1\n s_mov_b64 exec, 1\n ds_add_u32 v{CW}, v6 offset:{off}\n s_mov_b64 exec, -1")
        def pub():
            L = H.lab("nopf")
            a(f"s_cmp_lg_u32 s{sW}, 3\n s_cbranch_scc1 {L}")
            a(f"""
    s_lshl_b32 s{sT0}, s2, 7
    s_add_u32 s{sT0}, s{sT0}, {PFLAG:#x}
    v_mov_b32 v6, 1
    s_mov_b64 exec, 1
    buffer_store_dword v6, v7, {WS}, s{sT0} offen sc1
    s_mov_b64 exec, -1""")
            a.label(L)
        def kall():
            L = H.lab("kall")
            a(f"s_mov_b32 s{sCNT}, 0\n s_lshl_b32 s{sT0}, s{sW}, 13\n s_add_u32 s{sT0}, s{sT0}, {KFLAG:#x}")
            a.label(L)
            a(f"""
    buffer_load_dword v48, v{TA}, {WS}, s{sT0} offen sc1
    s_add_u32 s{sCNT}, s{sCNT}, 1
    s_cmp_gt_u32 s{sCNT}, {SPIN}
    s_cbranch_scc1 main_exit
    s_waitcnt vmcnt(0)
    v_cmp_ne_u32 vcc, s{sTAG}, v48
    s_mov_b64 exec, vcc
    s_cbranch_vccnz {L}
    s_mov_b64 exec, -1""")
            count(8); spin(4, 8)
        a(f"v_and_b32 v46, 0xfff, v{TA}")
        self.prep_finish(H, 200, 224)
        if self.opt.get("k3"):
            def round_():
                self.kpoll(46)
                a(f"s_lshl_b32 s{sW4}, s{sRND}, 14\n s_add_u32 s{sW4}, s{sW4}, {KV:#x}")
                for i in range(4):
                    a(f"s_mov_b32 m0, s{sPL}\n s_add_u32 s{sPL}, s{sPL}, 4096")
                    for k in range(4): a(f"buffer_load_dwordx4 v{vL16}, {WS}, s{sW4} offen offset:{1024*k} sc1 lds")
                    a(f"s_add_u32 s{sW4}, s{sW4}, 4096")
            a(f"s_add_u32 s{sRND}, s{sRND}, s{sW}\n s_and_b32 s{sRND}, s{sRND}, 7\n s_lshl_b32 s{sPL}, s{sW}, 14\n s_add_u32 s{sPL}, s{sPL}, 16384")
            round_()
            self.prep_store(H, 200, 224)
            a("s_waitcnt vmcnt(5)"); H.bar()
            L = H.lab("nor2")
            a(f"s_waitcnt vmcnt(0)\n s_cmp_eq_u32 s{sW}, 3\n s_cbranch_scc1 {L}\n s_add_u32 s{sRND}, s{sRND}, 4\n s_and_b32 s{sRND}, s{sRND}, 7\n s_add_u32 s{sPL}, s{sPL}, {3*16384}")
            round_()
            a.label(L)
            count(8); spin(4, 8); pub()
            H.bar()
        else:
            self.kpoll(46); self.kv(1); k1 = self.kvseq
            self.prep_store(H, 200, 224)
            H.wait_vm(k1); H.bar()
            kall(); pub()
            self.kv(6)
            H.wait_vm(self.kvseq); H.ts("h"); H.bar()
        def code_touch():
            L = H.lab("pc")
            a(f"s_getpc_b64 s[36:37]")
            a.label(L)
            a(f"""
    s_sub_u32 s36, s36, {L}-main_kernel
    s_subb_u32 s37, s37, 0
    s_and_b32 s{sT1}, s{sGRP}, 3
    s_lshl_b32 s{sT1}, s{sT1}, 5
    s_add_u32 s{sT1}, s{sT1}, s{sNT}
    s_lshl_b32 s{sT1}, s{sT1}, 9
    v_and_b32 v{v+2}, 0x1ff, v{TA}
    v_add_u32 v{v+2}, s{sT1}, v{v+2}
    v_min_u32 v{v+2}, main_end-main_kernel-4, v{v+2}""")
            H.vm(f"global_load_dword v{TD}, v{v+2}, s[36:37]")
        def arena_touch():
            if self.opt.get("usc1"):
                a(f"""
    s_lshl_b32 s{sTCH}, s{sNT}, 12
    s_lshl_b32 s{sT1}, s{sNT}, 8
    s_sub_u32 s{sT1}, s{sT1}, s{sTCH}
    s_add_u32 s{sT1}, s{sT1}, {ST1 - 4096}
    s_add_u32 s{sTCH}, s{sTCH}, s{sAR}
    v_mov_b32 v6, v{TA}
    s_mov_b32 exec_lo, 0
    v_add_u32 v6, s{sT1}, v6
    s_mov_b32 exec_lo, -1
    s_mov_b32 exec_hi, 3""")
                H.vm(f"buffer_load_dword v{TD}, v6, {WS}, s{sTCH} offen")
                a("s_mov_b64 exec, -1")
                return
            a(f"s_mul_i32 s{sTCH}, s{sNT}, {TOUCHN*128}\n s_add_u32 s{sTCH}, s{sTCH}, s{sAR}\n s_add_u32 s{sTCH}, s{sTCH}, {TOUCH0:#x}")
            H.vm(f"buffer_load_dword v{TD}, v{TA}, {WS}, s{sTCH} offen")
            a(f"s_mov_b32 exec_lo, 0x7ff\n s_mov_b32 exec_hi, 0\n s_add_u32 s{sTCH}, s{sTCH}, 8192")
            H.vm(f"buffer_load_dword v{TD}, v{TA}, {WS}, s{sTCH} offen")
            a("s_mov_b64 exec, -1")
        hi = f"s_lshl_b32 s{sPL}, s{sW}, 13\n s_add_u32 s{sPL}, s{sPL}, {HI}"
        lo = f"s_lshl_b32 s{sPL}, s{sW}, 14"
        F = lambda *x, **k: H.run(H.frags(*x, **k))
        code_touch()
        AP = self.opt.get("ap", "none")
        if AP == "pre": arena_touch()
        L0 = H.lab("pchk")
        a(f"s_lshl_b32 s{sPS}, s{sW}, 13\n s_add_u32 s{sPS}, s{sPS}, {PFLAG:#x}\n s_mov_b32 s{sCNT}, 0")
        a.label(L0)
        a(f"""
    buffer_load_dword v{d}, v{TA}, {WS}, s{sPS} offen sc1
    s_add_u32 s{sCNT}, s{sCNT}, 1
    s_cmp_gt_u32 s{sCNT}, {SPIN}
    s_cbranch_scc1 main_exit
    s_waitcnt vmcnt(0)
    v_cmp_ne_u32 vcc, 1, v{d}
    s_mov_b64 exec, vcc
    s_sleep 2
    s_cbranch_vccnz {L0}
    s_mov_b64 exec, -1""")
        count(4); spin(4, 4); count(4)
        L = H.lab("notag")
        a(f"""
    s_or_b32 s{sT0}, s2, s{sW}
    s_cmp_lg_u32 s{sT0}, 0
    s_cbranch_scc1 {L}
    v_mov_b32 v6, s{sTAG}
    s_mov_b32 s{sT0}, {TAGW:#x}
    s_mov_b64 exec, 1
    buffer_store_dword v6, v7, {WS}, s{sT0} offen sc1
    s_mov_b64 exec, -1""")
        a.label(L)
        H.ts("h")
        for base, reg in ((WO, 64), (W1, 128), (W2, 192)):
            H.set_wbase(base, 16, sW4); F(16, sW4, dst=V(reg))
        L = H.lab("ack")
        a(f"s_cmp_lg_u32 s{sW}, 3\n s_cbranch_scc1 {L}")
        spin(8, 4)
        a.label(L)
        H.set_w3(0); a(hi)
        F(8, sPF, lds=sPL); r1 = H.lastf
        code_touch()
        H.xo_soff(sT1)
        for jt in range(4):
            H.vm(f"buffer_load_dwordx2 {P(self.hXT+2*jt)}, v{vXO}, {XS}, s{sT1} offen")
            if jt < 3: a(f"s_add_u32 s{sT1}, s{sT1}, 16384")
        a(f"s_and_b32 s{sT1}, s{sGRP}, 3\n s_mul_i32 s{sT1}, s{sT1}, 6144\n s_add_u32 s{sTCH}, s{sPF}, s{sT1}\n s_mov_b32 exec_hi, 0xffff")
        H.vm(f"buffer_load_dword v{TD}, v{TA}, {WS}, s{sTCH} offen")
        a("s_mov_b64 exec, -1")
        if AP == "mid": arena_touch()
        H.wait_vm(r1); H.ts("h"); H.bar()
        a(lo); F(16, sPF, lds=sPL); r2 = H.lastf
        code_touch()
        a(f"""
    s_and_b32 s{sT1}, s{sGRP}, 3
    s_lshl_b32 s{sTCH}, s{sT1}, 5
    s_add_u32 s{sTCH}, s{sTCH}, s{sNT}
    s_mul_i32 s{sTCH}, s{sTCH}, 14336
    s_add_u32 s{sTCH}, s{sTCH}, {W4:#x}""")
        H.vm(f"buffer_load_dword v{TD}, v{TA}, {WS}, s{sTCH} offen")
        H.wait_vm(r2); H.ts("h"); H.bar()
        a(hi); F(8, sPF, lds=sPL); r3 = H.lastf
        a(f"s_add_u32 s{sTCH}, s{sTCH}, 6144")
        H.vm(f"buffer_load_dword v{TD}, v{TA}, {WS}, s{sTCH} offen")
        H.wait_vm(r3); H.ts("h"); H.bar()
        H.bar()
        a(lo); F(16, sPF, lds=sPL)
        H.set_w3(3)
        a(f"s_lshl_b32 s{sT5}, s{sORD}, 5\n s_add_u32 s{sPF}, s{sPF}, s{sT5}"); a(hi)
        F(8, sPF, lds=sPL)
        arena_touch()
        code_touch()
        a("s_waitcnt vmcnt(0)")
        H.setvcc()
        H.tile_soff(sT4, H_)
        a("s_setprio 1")
        H.ts("h")
        self.sync_check()

    def fallback(self):
        C = self.C; a = C.a; t = self.cT
        S0, NEGM, KF, VF, vVA, vIDX = self.S0, self.NEGM, self.KVR, self.KVR+4, self.vVA, self.vIDX
        a.label("attn_redo")
        a(f"v_and_b32 v{vVA}, 0x3ff, v{vVA}")
        for (Q, O) in ((self.QA, self.OA), (self.QB, self.OB)):
            L1, L2 = C.lab("fb1"), C.lab("fb2")
            a(f"v_mov_b32 v{t}, 0xff800000\n s_mov_b32 s{sT2}, {KV:#x}")
            a.label(L1)
            a(f"""
    buffer_load_dwordx4 {vr(KF)}, v{vL16}, {WS}, s{sT2} offen sc1
    s_add_u32 s{sT2}, s{sT2}, 2048
    s_waitcnt vmcnt(0)
    v_mfma_f32_32x32x16_bf16 {vr(S0,16)}, {vr(KF)}, {vr(Q)}, 0""")
            for i in range(8): a(f"v_max3_f32 v{t}, v{t}, v{S0+2*i}, v{S0+2*i+1}")
            a(f"""
    s_cmp_lt_u32 s{sT2}, {KV+131072:#x}
    s_cbranch_scc1 {L1}
    v_mov_b32 v{t+1}, v{t}
    v_permlane32_swap_b32 v{t}, v{t+1}
    v_max_f32 v{t}, v{t}, v{t+1}
    v_sub_f32 v{t}, 0, v{t}""")
            for i in range(16): a(f"v_mov_b32 v{NEGM+i}, v{t}")
            for i in range(16): a(f"v_mov_b32 v{O+i}, 0")
            a(f"s_mov_b32 s{sT2}, {KV:#x}")
            a.label(L2)
            a(f"""
    buffer_load_dwordx4 {vr(KF)}, v{vL16}, {WS}, s{sT2} offen sc1
    s_mov_b64 exec, {sVM}
    buffer_load_dwordx4 {vr(VF)}, v{vVA}, {WS}, s{sT2} offen offset:1024 sc1
    buffer_load_dwordx4 {vr(VF+4)}, v{vVA}, {WS}, s{sT2} offen offset:1536 sc1
    s_mov_b64 exec, -1
    s_add_u32 s{sT2}, s{sT2}, 2048
    s_waitcnt vmcnt(0)
    v_mfma_f32_32x32x16_bf16 {vr(S0,16)}, {vr(KF)}, {vr(Q)}, {vr(NEGM,16)}""")
            for i in range(16): a(f"v_exp_f32 v{S0+i}, v{S0+i}")
            a(f"""
    v_smfmac_f32_32x32x32_bf16 {vr(O,16)}, {vr(VF)}, {vr(S0,8)}, v{vIDX}
    v_smfmac_f32_32x32x32_bf16 {vr(O,16)}, {vr(VF+4)}, {vr(S0+8,8)}, v{vIDX}
    s_nop 15
    s_cmp_lt_u32 s{sT2}, {KV+131072:#x}
    s_cbranch_scc1 {L2}""")
        a("s_nop 15\n s_branch attn_done")

    cF, cP = 120, 121
    cACC, cBP, cSTAT, cCS3, cTMP, cOUT = 16, 48, 80, 96, 104, 112
    def prod_stats(self, vals):
        H = self.H; a = H.a; t = self.hTMP; x = self.hBP
        for jt in range(4): a(f"v_pk_add_f32 {P(x+2*jt)}, {P(vals+4*jt)}, {P(vals+4*jt+2)}")
        for jt in range(4): a(f"v_pk_mul_f32 {P(x+8+2*jt)}, {P(vals+4*jt)}, {P(vals+4*jt)}")
        for jt in range(4): a(f"v_pk_fma_f32 {P(x+8+2*jt)}, {P(vals+4*jt+2)}, {P(vals+4*jt+2)}, {P(x+8+2*jt)}")
        for jt in range(8): a(f"v_add_f32 v{t+jt}, v{x+2*jt}, v{x+2*jt+1}")
        a(f"""
    s_lshl_b32 s{sT5}, s{sW}, 10
    s_add_u32 s{sT5}, s{sT5}, {XST}
    v_permlane32_swap_b32 v{t}, v{t+2}
    v_permlane32_swap_b32 v{t+1}, v{t+3}
    v_permlane32_swap_b32 v{t+4}, v{t+6}
    v_permlane32_swap_b32 v{t+5}, v{t+7}
    v_pk_add_f32 {P(t)}, {P(t)}, {P(t+2)}
    v_pk_add_f32 {P(t+4)}, {P(t+4)}, {P(t+6)}
    v_lshl_add_u32 v{x}, v{vLANE}, 3, s{sT5}
    v_permlane16_swap_b32 v{t}, v{t+1}
    v_permlane16_swap_b32 v{t+4}, v{t+5}
    v_add_f32 v{t}, v{t}, v{t+1}
    v_add_f32 v{t+1}, v{t+4}, v{t+5}
    ds_write_b64 v{x}, {P(t)}""")
    def stat_publish(self, base):
        C = self.C; a = C.a; t = self.cTMP; x = self.cT
        a(f"""
    v_lshlrev_b32 v{x}, 3, v{vLANE}
    v_add_u32 v{x}, {XST}, v{x}
    s_lshl_b32 s{sT2}, s{sMEM}, 3
    s_add_u32 s{sT2}, s{sT2}, s{sAR}
    s_add_u32 s{sT2}, s{sT2}, {base:#x}
    v_lshlrev_b32 v{x+1}, 6, v{vLANE}
    s_lshl_b32 s{sT5}, s{sW}, 4
    s_lshl_b64 s[36:37], 0xffff, s{sT5}""")
        C.bar()
        for p in range(4): a(f"ds_read_b64 {P(t+2*p)}, v{x} offset:{1024*p}")
        def fin():
            a(f"""
    s_waitcnt lgkmcnt(0)
    v_pk_add_f32 {P(t)}, {P(t)}, {P(t+2)}
    v_pk_add_f32 {P(t+4)}, {P(t+4)}, {P(t+6)}
    v_pk_add_f32 {P(t)}, {P(t)}, {P(t+4)}
    s_mov_b64 exec, s[36:37]""")
            C.cstore([f"buffer_store_dwordx2 {P(t)}, v{x+1}, {WS}, s{sT2} offen"], nt=False)
            a("s_mov_b64 exec, -1")
        self.pubfin = fin
    def cons_stats(self, gbase, scr, double):
        C = self.C; a = C.a; x = self.cT; o = self.cSTAT; S = o + 8
        st = {}
        ltxt = f"buffer_load_dwordx4 {vr(o)}, v{x+1}, {WS}, s{sT1} offen sc1"
        def load():
            a(f"""
    s_lshl_b32 s{sT1}, s{sW}, 10
    s_add_u32 s{sT1}, s{sT1}, s{sAR}
    s_add_u32 s{sT1}, s{sT1}, {gbase:#x}
    v_and_b32 v{x+3}, 0xff, v{vL16}
    v_and_b32 v{x+1}, 0x30, v{vLANE}
    v_lshl_add_u32 v{x+1}, v{x+3}, 2, v{x+1}
    s_lshl_b32 s{sT5}, s{sW}, 8
    s_add_u32 s{sT5}, s{sT5}, {scr}
    v_add_u32 v{x+2}, s{sT5}, v{x+3}""")
            st['g'] = C.vm(ltxt)
        def check():
            L0, Lr, L2 = C.lab("schk"), C.lab("sre"), C.lab("sok")
            C.wait_vm(st['g'])
            a.label(L0)
            a(f"v_max_u32 v{o+4}, v{o+1}, v{o+3}\n v_cmp_eq_u32 vcc, -1, v{o+4}\n s_cbranch_vccnz {Lr}")
            a.label(L2)
            C.ool.append((Lr, [f"s_add_u32 s{sCNT}, s{sCNT}, 1", f"s_cmp_gt_u32 s{sCNT}, {SPIN}", f"s_cbranch_scc1 {L2}",
                               ltxt, "s_waitcnt vmcnt(0)", f"s_branch {L0}"]))
            C.setvcc()
        txt = f"""
    v_add_f32 v{o}, v{o}, v{o+2}
    v_add_f32 v{o+1}, v{o+1}, v{o+3}
    v_permlane32_swap_b32 v{o}, v{o+1}
    v_add_f32 v{o}, v{o}, v{o+1}
    v_mov_b32 v{o+1}, v{o}
    v_permlane16_swap_b32 v{o}, v{o+1}
    v_add_f32 v{o}, v{o}, v{o+1}
    v_mul_f32 v{o}, 0x3b000000, v{o}
    v_mov_b32 v{o+1}, v{o}
    v_permlane32_swap_b32 v{o}, v{o+1}
    v_mov_b32 v{S}, v{o}
    v_fma_f32 v{o+1}, -v{o}, v{o}, v{o+1}
    v_max_f32 v{o+1}, 0, v{o+1}
    v_add_f32 v{o+2}, 0x3727c5ac, v{o+1}
    v_rsq_f32 v{o+3}, v{o+2}"""
        R = o+3
        if double:
            txt += f"""
    v_mul_f32 v{o+4}, v{o+3}, v{o+3}
    ds_write_b32 v{x+2}, v{o+3} offset:1024
    v_mul_f32 v{o+4}, v{o+4}, v{o+1}
    v_add_f32 v{o+4}, 0x3727c5ac, v{o+4}
    v_rsq_f32 v{o+4}, v{o+4}
    v_mul_f32 v{o+5}, v{o+3}, v{o+4}"""
            R = o+5
        txt += f"""
    v_rcp_f32 v{S+1}, v{R}
    v_mul_f32 v{S+2}, {f32(GC1)}, v{R}
    v_mul_f32 v{o+6}, v{R}, v{R}
    v_mul_f32 v{o+6}, {f32(0.044715)}, v{o+6}
    v_mul_f32 v{S+3}, v{S+2}, v{o+6}
    ds_write_b128 v{x+2}, {vr(S)}"""
        comp = [check]
        for y in txt.split("\n"):
            y = y.strip()
            if not y: continue
            if y.startswith("ds_"): comp.append(lambda y=y: setattr(C, 'wseq', C.ld(y)))
            else: comp.append(lambda y=y: a(y))
        return load, comp
    def tile_store(self, jt):
        return f"buffer_store_dwordx2 {P(self.hXT+2*jt)}, v{vD}, {WS}, s{sT4} offen offset:{256*jt}"
    def add_pack(self, jt, src):
        a = self.H.a; A_ = self.hACC
        for h in (0, 2): a(f"v_pk_add_f32 {P(A_+4*jt+h)}, {P(A_+4*jt+h)}, {P(src+h)}")
        for h in (0, 1): a(f"v_cvt_pk_bf16_f32 v{self.hXT+2*jt+h}, v{A_+4*jt+2*h}, v{A_+4*jt+2*h+1}")

    def s3(self):
        self.C.mark(); self.H.mark()
        C, H = self.C, self.H
        C.colsum(V(128), self.cCS3, self.cOUT)
        C.poll(0, self.cF, self.cP, mid=[lambda: C.colsum(V(192), self.cCS3+4, self.cOUT)]); C.ts()
        def w4ref():
            C.a(f"""
    v_lshlrev_b32 v118, 7, v{vLANE}
    s_and_b32 s{sTCH}, s{sGRP}, 3
    s_lshl_b32 s{sTCH}, s{sTCH}, 5
    s_add_u32 s{sTCH}, s{sTCH}, s{sNT}
    s_mul_i32 s{sTCH}, s{sTCH}, 14336
    s_add_u32 s{sTCH}, s{sTCH}, {W4:#x}""")
            C.vm(f"buffer_load_dword v119, v118, {WS}, s{sTCH} offen")
        def w4ref2():
            C.a(f"s_add_u32 s{sTCH}, s{sTCH}, 6144")
            C.vm(f"buffer_load_dword v119, v118, {WS}, s{sTCH} offen")
        C.load_gemm(C.act_issue(), side={3: [w4ref], 5: [w4ref2]} if self.opt.get('w4ref') else None, tag='s3')
        C.set_act(H_)
        self.stat_publish(ST1)
        H.cons_gemm(V(64), self.hACC, self.hBP, tag="s3"); H.ts()
        for i in range(8): H.unpack(self.hXT+i, self.hRES+2*i)
        for jt in range(4): self.add_pack(jt, self.hRES+4*jt)
        H.cstore([self.tile_store(jt) for jt in range(4)])
        self.prod_stats(self.hACC)
        for i in range(8): H.unpack(self.hXT+i, self.hRES+2*i)
        H.flag(1, 6); H.ts()
        H.a("s_waitcnt lgkmcnt(0)"); H.bar()
        self.sync_check()
    def s4(self):
        self.C.mark(); self.H.mark()
        C, H = self.C, self.H; a = H.a
        C.poll(1, self.cF, self.cP, mid=[self.pubfin]); C.ts()
        load, comp = self.cons_stats(ST1, ACT, True)
        C.load_gemm(C.act_issue(), side={-1: [load], 3: comp[:7], 4: comp[7:14], 5: comp[14:21], 6: comp[21:],
                                         (7, 'pre'): [lambda: C.wait_ld(C.wseq)]}, tag='s4')
        if self.opt.get('uref'):
            C.a(f"v_lshlrev_b32 v118, 7, v{vLANE}\n s_mul_i32 s{sTCH}, s{sNT}, {40*128}\n s_add_u32 s{sTCH}, s{sTCH}, s{sAR}\n s_add_u32 s{sTCH}, s{sTCH}, {U_ + 0x10000:#x}\n s_mov_b32 exec_hi, 0xff")
            C.vm(f"buffer_load_dword v119, v118, {WS}, s{sTCH} offen")
            C.a("s_mov_b64 exec, -1")
        H.colsum(V(128), self.hCS1, self.hX)
        H.tile_soff(sT4, T_)
        a(f"""
    v_lshrrev_b32 v6, 5, v{vLANE}
    v_lshlrev_b32 v6, 5, v6
    v_and_b32 v7, 0x1f, v{vD}
    v_add_u32 v{self.hX+4}, v6, v7                ; halo: (g>>1)*32 + (t&1)*16 + (g&1)*8
    s_lshl_b32 s{sT3}, s{sNT}, 6
    s_add_u32 s{sT3}, s{sT3}, s{sAR}
    v_and_b32 v7, 0xff, v{vL16}
    v_add_u32 v7, {ACT}, v7""")
        sr = H.stat_reads(self.hSTAT, 7, False, self.hR1)
        H.cons_gemm(V(128), self.hACC, self.hBP, side={6: sr[:4], 7: sr[4:]}, tag="s4"); H.ts()
        A_, XT, ST = self.hACC, self.hXT, self.hSTAT
        H.wait_ld(H.stseq)
        for x in H.gelu2((A_, self.hCS1, ST, XT), (A_+12, self.hCS1, ST+12, XT+6), self.hTMP, True): a(x)
        H.cstore([self.tile_store(0), self.tile_store(3)])
        for x in H.gelu2((A_+4, self.hCS1, ST+4, XT+2), (A_+8, self.hCS1, ST+8, XT+4), self.hTMP, True): a(x)
        H.cstore([self.tile_store(1), self.tile_store(2)])
        H.flag(2, 6); H.ts()
        Lh, L1 = H.lab("nohalo"), H.lab("side1")
        a(f"""
    s_bitcmp1_b32 s{sMEM}, 1
    s_cbranch_scc1 {L1}
    s_cmp_eq_u32 s{sGRP}, 31
    s_cbranch_scc1 {Lh}
    s_add_u32 s{sT3}, s{sT3}, {HALO+GA:#x}
    s_mov_b32 exec_lo, 0xc000c000
    s_mov_b32 exec_hi, 0xc000c000
    buffer_store_dwordx2 {P(XT+6)}, v{self.hX+4}, {WS}, s{sT3} offen sc1
    s_branch {Lh}""")
        a.label(L1)
        a(f"""
    s_cmp_eq_u32 s{sGRP}, 0
    s_cbranch_scc1 {Lh}
    s_sub_u32 s{sT3}, s{sT3}, {GA-HALO:#x}
    s_mov_b32 exec_lo, 0x00030003
    s_mov_b32 exec_hi, 0x00030003
    buffer_store_dwordx2 {P(XT)}, v{self.hX+4}, {WS}, s{sT3} offen sc1""")
        a.label(Lh)
        a("s_mov_b64 exec, -1")
        H.bar(); self.gate5 = True
    def s5(self):
        self.C.mark(); self.H.mark()
        C, H = self.C, self.H; a = C.a; x = self.cT; T = self.cTMP
        C.set_act(T_)
        a(f"""
    s_lshl_b32 s{sT1}, s{sW}, 9
    s_add_u32 s{sT1}, s{sT1}, s{sAR}
    s_add_u32 s{sT1}, s{sT1}, {HALO:#x}
    v_and_b32 v{x+2}, 0x1ff, v{vL16}
    s_cmp_eq_u32 s{sW}, 0
    s_cselect_b32 s{sT3}, -16, 0
    s_cselect_b32 s{sT4}, 0xaaaaaaaa, -1
    s_cmp_eq_u32 s{sW}, 1
    s_cselect_b32 s{sT3}, {63*16}, s{sT3}
    s_cselect_b32 s{sT4}, 0x55555555, s{sT4}
    s_cmp_eq_u32 s{sW}, 3
    s_cselect_b32 s{sT3}, {62*16}, s{sT3}
    s_lshl_b32 s{sT2}, s{sW}, 14
    s_add_u32 s{sT3}, s{sT3}, s{sT2}
    s_add_u32 s{sT3}, s{sT3}, {ACT}
    v_lshrrev_b32 v{x+1}, 1, v{vLANE}
    v_lshlrev_b32 v{x+1}, 10, v{x+1}
    v_and_b32 v{x+3}, 1, v{vLANE}
    v_lshl_add_u32 v{x+1}, v{x+3}, 4, v{x+1}
    v_add_u32 v{x+1}, s{sT3}, v{x+1}
    s_lshl_b32 s{sPF}, s{sMEM}, 3
    s_add_u32 s{sPF}, s{sPF}, s{sW}
    s_mul_i32 s{sPF}, s{sPF}, {28*1024}
    s_add_u32 s{sPF}, s{sPF}, {W4 + 20*1024:#x}
    s_lshl_b32 s{sPL}, s{sW}, 13""")
        C.bar()
        C.poll(2, self.cF, self.cP, mid=[]); C.ts()
        shifts = (1, -1, 2, -2)
        masks = ((0xfffffffe, 0xffffffff), (0xffffffff, 0x7fffffff), (0xfffffffc, 0xffffffff), (0xffffffff, 0x3fffffff))
        def pre(c):
            g = c >> 1
            if c & 1 == 0: a(f"s_add_i32 s{sG}, s{sG}, {-16*shifts[g] + (16*shifts[g-1] if g else 0)}")
            a(f"s_mov_b32 exec_lo, {masks[g][0]:#x}" if masks[g][0] != 0xffffffff else f"s_mov_b32 exec_hi, {masks[g][1]:#x}")
        hs = {}
        hload = f"buffer_load_dwordx4 {vr(T)}, v{x+2}, {WS}, s{sT1} offen sc1"
        stg = C.frags(8, sPF, lds=sPL) + C.E(f"s_add_u32 s{sPF}, s{sPF}, {4*28*1024 - 8192}\n s_add_u32 s{sPL}, s{sPL}, {32768 - 8192}") + C.frags(8, sPF, lds=sPL)
        def patch():
            L0, Lr, L2 = C.lab("hchk"), C.lab("hre"), C.lab("hok")
            C.wait_vm(hs[0])
            a.label(L0)
            a(f"v_max_u32 v{x}, v{T}, v{T+1}\n v_max3_u32 v{x}, v{x}, v{T+2}, v{T+3}\n v_cmp_eq_u32 vcc, -1, v{x}\n s_cbranch_vccnz {Lr}")
            a.label(L2)
            C.ool.append((Lr, [f"s_add_u32 s{sCNT}, s{sCNT}, 1", f"s_cmp_gt_u32 s{sCNT}, {SPIN}", f"s_cbranch_scc1 {L2}",
                               hload, "s_waitcnt vmcnt(0)", f"s_branch {L0}"]))
            C.setvcc()
            a(f"s_mov_b32 exec_lo, s{sT4}\n s_mov_b32 exec_hi, 0\n ds_write_b128 v{x+1}, {vr(T)}\n s_mov_b64 exec, -1\n s_waitcnt lgkmcnt(0)")
        HC = int(self.opt.get("hc", 3))
        side = {2: stg[:2], 3: stg[2:4]}
        side[HC] = side.get(HC, []) + [lambda: hs.__setitem__(0, C.vm(hload))]
        C.load_gemm(C.act_issue(pre=pre, post=lambda c: a("s_mov_b64 exec, -1")), side=side, tag='s5')
        patch(); C.bar()
        C.run(stg[4:12]); self.stg_rest = stg[12:]
        C.set_act(X1)
        self.stat_publish(ST3)
        a = H.a; ST, RES, R1 = self.hSTAT, self.hRES, self.hR1
        a(f"s_lshl_b32 s{sT1}, s{sW}, 14\n v_add_u32 v7, s{sT1}, v{vL16}")
        H.lds2reg(V(128), 16, 7)
        for jt in range(4):
            a(f"v_mul_f32 v6, v{ST+4*jt}, v{R1+jt}")
            for i in range(4): a(f"v_fma_f32 v{ST+4*jt+i}, v{RES+4*jt+i}, v{R1+jt}, -v6")
        H.tile_soff(sT4, X1)
        a("s_waitcnt lgkmcnt(0)")
        H.colsum(V(128), self.hCS3, self.hX)
        H.cons_gemm(V(192), self.hACC, self.hBP, defer=lambda ks: 3 if (ks >> 2) & 1 else 0, tag="s5"); H.ts()
        for jt in range(4): self.add_pack(jt, ST+4*jt)
        H.cstore([self.tile_store(jt) for jt in range(4)])
        self.prod_stats(self.hACC)
        for i in range(8): H.unpack(self.hXT+i, self.hACC+2*i)
        H.flag(3, 6)
        a("s_waitcnt lgkmcnt(0)"); H.bar()
        for i in range(8): a(f"v_pk_add_f32 {P(RES+2*i)}, {P(RES+2*i)}, {P(self.hACC+2*i)}")
        H.ts()
        self.sync_check()

    def capture(self, S, fn):
        keep = S.a.lines; S.a.lines = []
        fn()
        got = S.a.lines; S.a.lines = keep
        return [(lambda x=x: S.a(x)) for x in got]
    def s6(self):
        self.C.mark(); self.H.mark()
        C, H = self.C, self.H
        PK = bool(self.opt.get("s6pk"))
        for S in (C, H):
            isC = S is C; a = S.a
            vBa, vBb, vDa, vDb, vS = (124, 125, 126, 127, 14) if isC else (self.hCS1, self.hCS1+1, self.hCS1+2, self.hCS1+3, self.hR1)
            ACCS = [self.cACC + 4*i for i in range(8)] if isC else [self.hACC + 4*i for i in range(4)] + [self.hX, self.hX+4]
            BP = self.cBP if isC else self.hBP
            ST, CS, TMP, OUT = (self.cSTAT, self.cCS3, self.cTMP, self.cOUT) if isC else (self.hSTAT, self.hCS3, self.hTMP, self.hXT)
            W = (V(128), V(192))
            def setup():
                a(f"""
    v_xor_b32 v{vBa}, s{sORD}, v{vB}
    v_xor_b32 v{vBb}, 256, v{vBa}
    v_xor_b32 v{vDa}, s{sORD}, v{vD}
    v_xor_b32 v{vDb}, 256, v{vDa}
    v_and_b32 v{vS}, 0xff, v{vL16}
    v_add_u32 v{vS}, {HI}, v{vS}
    v_xor_b32 v{vS}, s{sORD}, v{vS}
    v_xor_b32 v{vS+1}, 256, v{vS}
    s_mul_i32 s{sU0}, s{sMEM}, {14*2048}
    s_add_u32 s{sU0}, s{sU0}, s{sAR}
    s_add_u32 s{sU0}, s{sU0}, {U_:#x}
    s_lshr_b32 s{sU1}, s{sW}, 1
    s_add_u32 s{sU1}, s{sU1}, 12
    s_lshl_b32 s{sU1}, s{sU1}, 11
    s_add_u32 s{sU1}, s{sU1}, s{sU0}
    s_mul_i32 s{sT3}, s{sW}, {3*2048}
    s_add_u32 s{sU0}, s{sU0}, s{sT3}
    s_lshl_b32 s{sW4}, s{sMEM}, 3
    s_add_u32 s{sW4}, s{sW4}, s{sW8}
    s_lshl_b32 s{sT3}, s{sW4}, 2
    v_mov_b32 v{vMYF}, s{sT3}
    s_mul_i32 s{sW4}, s{sW4}, {28*1024}
    s_add_u32 s{sW4}, s{sW4}, {W4:#x}
""")
                if isC: a(f"s_add_u32 s{sU1}, s{sU0}, 2048")
                else: a(f"s_add_u32 s{sU0}, s{sU0}, 4096")
            tilesA = [(j, n) for j in (0, 1) for n in ((0, 1) if isC or j == 0 else (0,))]
            tilesB = [(j, n) for j in (2, 3) for n in ((0, 1) if isC or j == 2 else (0,))]
            acc = {t: ACCS[i] for i, t in enumerate(tilesA + tilesB)}
            rs = {}
            slot = lambda s, j: BP + 16*(s & 1) + 4*j
            def rd(s, j): rs[(s, j)] = S.ld(f"ds_read_b128 {vr(slot(s, j))}, v{vBb if j & 1 else vBa} offset:{4096*s + 512*(j>>1)}")
            def mf(s, j, n): a(f"v_mfma_f32_16x16x32_bf16 {vr(acc[(j, n)])}, {W[n](s)}, {vr(slot(s, j))}, {'0' if s == 0 else vr(acc[(j, n)])}")
            wreg = lambda f: vr(128 + 4*(f >> 1) + 64*(f & 1))
            S.wreg = wreg
            w4 = S.frags(20, sW4, dst=wreg)
            stg = []
            sr = S.stat_reads(ST, vS, True)
            def ustore(j, n, r):
                return f"buffer_store_dwordx2 {P(r)}, v{vDb if j & 1 else vDa}, {WS}, s{(sU0, sU1)[n]} offen offset:{512*(j>>1)}"
            k2 = [0]
            def gel(ts_):
                o = OUT + 4*(k2[0] & 1); k2[0] += 1
                arg = [(acc[t], CS+4*t[1], ST+4*t[0], o+2*i) for i, t in enumerate(ts_)]
                z = S.gelu2(*arg, TMP, True) if len(ts_) == 2 else S.gelu(*arg[0], TMP, True)
                for y in z: a(y)
                if self.opt.get("usc1"):
                    for i, t in enumerate(ts_): S.vm(ustore(*t, o+2*i) + " sc1")
                else: S.cstore([ustore(*t, o+2*i) for i, t in enumerate(ts_)])
                return S.nvm - 1
            tiles = tilesA + tilesB
            if isC:
                S.poll(3, self.cF, self.cP, mid=[self.pubfin]); S.ts()
                load, comp = self.cons_stats(ST3, HI, False)
                issue = S.act_issue(); seqs = {}
                for c in range(3): seqs[c] = issue(c)
                load(); setup()
                S.wait_vm(seqs[0])
            else:
                a(f"s_and_b32 s{sT1}, s{sW}, 2\n s_lshl_b32 s{sT1}, s{sT1}, 13\n s_add_u32 s{sT1}, s{sT1}, {HI}\n v_add_u32 v7, s{sT1}, v{vL16}")
                S.lds2reg(V(192), 16, 7)
                setup()
                a("s_waitcnt lgkmcnt(0)")
                S.colsum(V(192), CS+4, self.hX)
                a("s_setprio 0")
            S.bar()
            for j in range(4): rd(0, j)
            BAR = {1: 1, 3: 3, 7: 7}
            nt = len(tiles)
            for s in range(16):
                items = []
                if isC:
                    if s == 0: items = [(lambda c=c: seqs.__setitem__(c, issue(c))) for c in (3, 4, 5)]
                    if s == 1: items = [(lambda c=c: seqs.__setitem__(c, issue(c))) for c in (6, 7)]
                    if s == 2: items = self.stg_rest + [lambda: seqs.__setitem__(7, S.lastf)]
                    items = items + {3: comp[:7], 4: comp[7:14], 5: comp[14:]}.get(s, [])
                if s == 8: items = items + sr
                if s == 13: items = S.E(f"s_lshl_b32 s{sT1}, s{sW8}, 13\n v_add_u32 v7, s{sT1}, v{vL16}")
                if s >= 14: items = [(lambda i=i: S.ld(f"ds_read_b128 {wreg(20+i)}, v7 offset:{1024*i}")) for i in range(4*(s-14), 4*(s-14)+4)]
                if 3 <= s < 13: items = [w4.pop(0)] + items[:len(items)//2] + [w4.pop(0)] + items[len(items)//2:]
                if s in BAR:
                    if isC:
                        S.wait_vm(seqs[BAR[s]])
                        if s == 7: S.wait_ld(S.wseq)
                    S.bar()
                for i, (j, n) in enumerate(tiles):
                    if n == 0: S.wait_ld(rs[(s, j)])
                    mf(s, j, n)
                    if n == 0 and s + 1 < 16: rd(s+1, j)
                    S.run(items[i*len(items)//nt:(i+1)*len(items)//nt])
                if s % 4 == 3: S.ts("s6")
            assert not w4
            vF8, vPp = (self.cF, self.cP) if isC else (vBa, self.hR1+2)
            S.f7 = (vF8, vPp)
            a(f"""
    s_setprio 1
    s_mul_i32 s{sB}, s{sW8}, {7*4096}
    s_add_u32 s{sB}, s{sB}, s{sAR}
    s_add_u32 s{sB}, s{sB}, {U_ - ACT:#x}
    v_and_b32 v{vF8}, 7, v{vLANE}
    v_lshlrev_b32 v{vF8}, 2, v{vF8}
    s_lshl_b32 s{sT1}, s{sW8}, 5
    v_add_u32 v{vF8}, s{sT1}, v{vF8}""")
            gel(tilesA[:2]); sa = gel(tilesA[2:])
            a("s_setprio 0")
            S.ts()
            gel(tilesB[:2])
            S.flag(4, 6, seq=sa)
            S.sb = gel(tilesB[2:])
            S.ts()
        self.sync_check()

    def s7(self):
        self.C.mark(); self.H.mark()
        C, H = self.C, self.H
        for S in (C, H):
            isC = S is C; a = S.a
            wreg = S.wreg
            vF8, vPp = S.f7
            if isC:
                vWr, vRD, vO = [8, 9, 10, 11], 12, 13
                ring = [self.cBP + 4*i for i in range(8)]
                accx = lambda p, m: self.cACC + 16*(p & 1) + 4*m
                rb = [80 + 4*k for k in range(8)]
            else:
                vWr, vRD, vO = [self.hX+4+i for i in range(4)], 7, vXO
                ring = [self.hBP + 4*i for i in range(8)]
                accx = lambda p, m: self.hACC + 4*m if p & 1 else (184, 188, 248, 252)[m]
                rb = [80, 84, 88, 92, 104, 108, 112, 116]
            NR = len(ring); x = rb[0]
            def setup():
                a(f"""
    v_and_b32 v{x}, 15, v{vLANE}
    v_lshrrev_b32 v{x+1}, 4, v{vLANE}
    v_xor_b32 v{x+2}, v{x}, v{x+1}                ; t ^ g""")
                for m in range(4):
                    a(f"""
    s_add_u32 s{sT1}, s{sW}, {m}
    s_and_b32 s{sT1}, s{sT1}, 3
    s_lshl_b32 s{sT2}, s{sT1}, 2
    v_xor_b32 v{vWr[m]}, s{sT2}, v{x+2}
    v_lshlrev_b32 v{vWr[m]}, 4, v{vWr[m]}
    v_lshl_add_u32 v{vWr[m]}, v{x+1}, 8, v{vWr[m]}
    s_lshl_b32 s{sT1}, s{sT1}, 10
    s_lshl_b32 s{sT2}, s{sW8}, 12
    s_add_u32 s{sT1}, s{sT1}, s{sT2}
    v_add_u32 v{vWr[m]}, s{sT1}, v{vWr[m]}""")
                a(f"""
    s_lshl_b32 s{sT1}, s{sW}, 2
    v_add_u32 v{x+1}, s{sT1}, v{x+1}
    v_xor_b32 v{vRD}, v{x+1}, v{x}
    v_lshlrev_b32 v{vRD}, 4, v{vRD}
    v_lshl_add_u32 v{vRD}, v{x}, 8, v{vRD}
    v_lshlrev_b32 v{vO}, 10, v{x+1}
    v_lshl_add_u32 v{vO}, v{x}, 3, v{vO}
    s_lshl_b32 s{sT4}, s{sGRP}, 16
    s_lshl_b32 s{sT1}, s{sMEM}, 7
    s_add_u32 s{sT4}, s{sT4}, s{sT1}""")
                if not isC: a(f"s_add_u32 s{sT4}, s{sT4}, 16384\n v_add_u32 v{vRD}, 32768, v{vRD}")
                a("s_waitcnt lgkmcnt(0)")
            S.poll(4, vF8, vPp, mid=[setup], np_=2)
            S.flag(6, 6, seq=S.sb)
            S.ts()
            seq = {}
            def load(u):
                p, i = u // 7, u % 7
                seq[u] = S.vm(f"buffer_load_dwordx4 {vr(ring[u % NR])}, v{vB}, {WS}, s{sB} offen offset:{256*p} sc1")
                a(f"s_add_u32 s{sB}, s{sB}, 4096" if i < 6 else f"s_sub_u32 s{sB}, s{sB}, {6*4096}")
            def Wr(p):
                it = []
                for m in range(4):
                    if p == 2: it.append(lambda m=m: a(f"v_add_u32 v{vWr[m]}, 0x10000, v{vWr[m]}"))
                    it.append(lambda m=m: S.ld(f"ds_write_b128 v{vWr[m]}, {vr(accx(p, m))} offset:{32768*(p&1)}"))
                return it
            bar = [lambda: (a("s_waitcnt lgkmcnt(0)"), S.bar())]
            st = {}
            def Rd(p):
                it = [lambda: a(f"v_add_u32 v{vRD}, 0x10000, v{vRD}")] if p >= 2 else []
                return it + [(lambda k=k: st.__setitem__(p, S.ld(f"ds_read_b128 {vr(rb[k])}, v{vRD} offset:{4096*k}"))) for k in range(8)]
            def Ad(p, pk):
                r = rb
                pairs = [(r[0], r[1]), (r[2], r[3]), (r[4], r[5]), (r[6], r[7]), (r[0], r[2]), (r[4], r[6]), (r[0], r[4])]
                ins = []
                for y, z in pairs:
                    if pk: ins += [f"v_pk_add_f32 {P(y+h)}, {P(y+h)}, {P(z+h)}" for h in (0, 2)]
                    else: ins += [f"v_add_f32 v{y+h}, v{y+h}, v{z+h}" for h in range(4)]
                ins += [f"v_cvt_pk_bf16_f32 v{r[1]+h}, v{r[0]+2*h}, v{r[0]+2*h+1}" for h in (0, 1)]
                return [lambda: S.wait_ld(st[p])] + [(lambda z=z: a(z)) for z in ins] + \
                       [lambda: S.vm(f"buffer_store_dwordx2 {P(r[1])}, v{vO}, {OS}, s{sT4} offen {self.opt.get('osc', 'nt')}"), lambda: a(f"s_add_u32 s{sT4}, s{sT4}, 32768")]
            la = int(self.opt.get('la7', 4))
            pb = {}
            ltxt = f"buffer_load_dword v{vPp}, v{vF8}, {WS}, s{sT0} offen sc1"
            def chkB():
                L0, Lr = S.lab("bchk"), S.lab("bre")
                S.wait_vm(pb[0])
                a.label(L0)
                a(f"v_cmp_ne_u32 vcc, 1, v{vPp}\n s_cbranch_vccnz {Lr}")
                S.ool.append((Lr, [f"s_add_u32 s{sCNT}, s{sCNT}, 1", f"s_cmp_gt_u32 s{sCNT}, {SPIN}", "s_cbranch_scc1 main_exit",
                                   ltxt, "s_waitcnt vmcnt(0)", f"s_branch {L0}"]))
            side = {6: bar, 8: Wr(0), 15: Wr(1), 16: bar, 22: Wr(2)}
            side[13 - 2*la] = side.get(13 - 2*la, []) + [lambda: pb.__setitem__(0, S.vm(ltxt))]
            side[13 - la] = side.get(13 - la, []) + [chkB]
            p0 = 0 if isC else 1
            ad = Ad(p0, False)
            side[17] = Rd(p0); side[18] = ad[:11]; side[19] = ad[11:22]; side[20] = ad[22:]
            if self.opt.get('p7') and not isC: a("s_setprio 1")
            for u in range(la): load(u)
            for u in range(28):
                p, i = u // 7, u % 7
                S.wait_vm(seq[u])
                items = list(side.get(u, []))
                per = -(-len(items) // 3)
                for m in range(4):
                    c0 = vr(self.hRES+4*p) if (m == 0 and not isC) else '0'
                    if not (self.opt.get('x7b') and m): a(f"v_mfma_f32_16x16x32_bf16 {vr(accx(p, m))}, {wreg(4*i+m)}, {vr(ring[u % NR])}, {c0 if i == 0 else vr(accx(p, m))}")
                    if m == 0:
                        if u + la < 28: load(u + la)
                    else:
                        for _ in range(per):
                            if items: items.pop(0)()
                if u % 7 == 6: S.ts("s7")
            S.run(Wr(3) + bar)
            S.ts()
            S.run(Rd(p0+2) + Ad(p0+2, True))
            S.ts("s7")
        self.sync_check()

    def dump_ts(self, S):
        a = S.a
        a("s_waitcnt vmcnt(0)")
        S.ts()
        a(f"""
    s_waitcnt lgkmcnt(0)
    s_lshl_b32 s{sT0}, s2, 3
    s_add_u32 s{sT0}, s{sT0}, s{sW8}
    s_lshl_b32 s{sT0}, s{sT0}, 7
    s_add_u32 s{sT0}, s{sT0}, {DBG:#x}
    v_mov_b32 v7, 0
    s_mov_b64 exec, 1""")
        assert S.nts <= 28
        for i in range(S.nts):
            a(f"v_mov_b32 v6, s{tsreg(i)}\n buffer_store_dword v6, v7, {WS}, s{sT0} offen offset:{4*i}")
        a(f"v_mov_b32 v6, s{sSLOW}\n buffer_store_dword v6, v7, {WS}, s{sT0} offen offset:124")
        a(f"v_mov_b32 v6, s{sXCC}\n buffer_store_dword v6, v7, {WS}, s{sT0} offen offset:120")

    def gen(self):
        C, H = self.C, self.H
        self.prologue(); self.qstage(); self.attention()
        for name in ("s3", "s4", "s5", "s6", "s7"): getattr(self, name)()
        for S in (C, H):
            S.a.label(f"M_{S.name}_{S.nmark}")
            if self.dbg: self.dump_ts(S)
            if S is C: S.a.label("main_exit")
            S.a("s_endpgm")
        tail = Asm()
        self.fallback()
        for S in (C, H):
            for L, body in S.ool:
                S.a.label(L)
                for x in body: S.a(x)
        C.a.label("main_end")
        H.a.lines = self.head + H.a.lines
        txt = H.a.finish() + C.a.finish()
        txt += """
.section .rodata,"a"
.p2align 6
.amdhsa_kernel """ + NAME + """_kernel
  .amdhsa_next_free_vgpr 256
  .amdhsa_next_free_sgpr 102
  .amdhsa_accum_offset 256
  .amdhsa_group_segment_fixed_size 0
  .amdhsa_kernarg_size 104
  .amdhsa_user_sgpr_count 2
  .amdhsa_user_sgpr_kernarg_segment_ptr 1
  .amdhsa_system_sgpr_workgroup_id_x 1
.end_amdhsa_kernel
"""
        return txt
```

```python
from asmlib import Asm
from layout import *
import struct, os

def f32(x):
    return "0x%08x" % struct.unpack('<I', struct.pack('<f', x))[0]

K2_LDS = 163840
LOG2E = 1.4426950408889634
QSCALE = 0.25 * LOG2E
GC1 = -2.0 * 0.7978845608028654 * LOG2E
SPIN = 0x40000
ACT = 65536
XST = ACT + 5*8192 + 256
HI = 131072
LA = 5

sW, sGRP, sMEM, sSLOW, sXCC, sW8 = 3, 16, 17, 18, 45, 44
WS, XS, OS = "s[4:7]", "s[8:11]", "s[12:15]"
sT0, sT1, sT2, sT3, sT4, sT5 = 20, 21, 22, 23, 24, 25
sG, sL, sPF, sCNT, sFLG, sAR = 26, 27, 28, 29, 30, 31
sU0, sU1 = 32, 33
sB = 34
sKVW, sTAG, sRND = 40, 41, 33
sTCH = 35
sNT, sORD = 38, 39
sVM = "s[40:41]"
sPL, sW4 = 42, 43
sPP, sPR, sPS, sPD = 46, 56, 60, 65
def tsreg(i): return 70 + 2*i if i < 16 else 46 + 2*(i-16)
vLANE, vL16, vB, vD, vMYF, vXO = 0, 1, 2, 3, 4, 5

def vr(b, n=4): return f"v[{b}:{b+n-1}]"
def V(b): return lambda ks: vr(b+4*ks)
def P(r): return f"v[{r}:{r+1}]"

class Stream:
    uid = 0
    def __init__(self, name, dbg, tags):
        self.name, self.dbg, self.tags = name, dbg, tags
        self.a = Asm(); self.nvm = self.nld = self.nts = self.nbar = 0
        self.ool = []; self.nmark = 0; self.seclen = {}
    def vm(self, text):
        self.a(text); self.nvm += 1; return self.nvm - 1
    def wait_vm(self, seq): self.a(f"s_waitcnt vmcnt({min(self.nvm - 1 - seq, 63)})")
    def ld(self, text):
        self.a(text); self.nld += 1; return self.nld - 1
    def wait_ld(self, seq): self.a(f"s_waitcnt lgkmcnt({min(self.nld - 1 - seq, 15)})")
    def bar(self): self.a("s_barrier"); self.nbar += 1
    def ts(self, tag="main"):
        if self.dbg and tag in self.tags:
            self.a(f"{'s_memtime' if self.dbg == 'cyc' else 's_memrealtime'} s[{tsreg(self.nts)}:{tsreg(self.nts)+1}]")
            self.nts += 1
    def lab(self, p):
        Stream.uid += 1; return f"L_{p}_{Stream.uid}"
    def mark(self):
        i = self.nmark; self.nmark += 1
        L = f"M_{self.name}_{i}"
        n = self.seclen.get(L)
        if n is not None and n < 4000:
            self.a(f"s_branch {L}"); self.a(f".p2align 12,,{n + 64}")
        self.a.label(L)
    def E(self, text): return [(lambda x=x: self.a(x)) for x in text.split("\n") if x.strip()]
    def set_wbase(self, base, ks, dst=sPF):
        self.a(f"s_mul_i32 s{dst}, s{sNT}, {ks*1024}\n s_add_u32 s{dst}, s{dst}, {base:#x}")
    def set_w3(self, slot):
        if slot < 3: self.a(f"s_mul_i32 s{sPF}, s{sW}, 3\n s_add_u32 s{sPF}, s{sPF}, {slot}")
        else: self.a(f"s_lshr_b32 s{sPF}, s{sW}, 1\n s_add_u32 s{sPF}, s{sPF}, 12")
        self.a(f"s_mul_i32 s{sT5}, s{sMEM}, 14\n s_add_u32 s{sPF}, s{sPF}, s{sT5}\n s_lshl_b32 s{sPF}, s{sPF}, 14\n s_add_u32 s{sPF}, s{sPF}, {W3:#x}")
    def set_act(self, base):
        self.a(f"s_lshl_b32 s{sL}, s{sW}, 11\n s_add_u32 s{sG}, s{sAR}, s{sL}\n s_add_u32 s{sG}, s{sG}, {base:#x}\n s_add_u32 s{sL}, s{sL}, {ACT}")
    def tile_soff(self, s, base):
        self.a(f"s_lshl_b32 s{s}, s{sNT}, 11\n s_add_u32 s{s}, s{s}, s{sAR}\n s_add_u32 s{s}, s{s}, {base:#x}")
    def xo_soff(self, s):
        self.a(f"s_lshl_b32 s{s}, s{sNT}, 5\n s_lshl_b32 s{sT5}, s{sGRP}, 16\n s_add_u32 s{s}, s{s}, s{sT5}")
    def act_issue(self, sc="sc1", pre=None, post=None):
        def issue(c):
            self.a(f"s_mov_b32 m0, s{sL}")
            if pre: pre(c)
            self.vm(f"buffer_load_dwordx4 v{vL16}, {WS}, s{sG} offen {sc} lds")
            last = self.vm(f"buffer_load_dwordx4 v{vL16}, {WS}, s{sG} offen offset:1024 {sc} lds")
            if post: post(c)
            self.a(f"s_add_u32 s{sG}, s{sG}, 8192\n s_add_u32 s{sL}, s{sL}, 8192")
            return last
        return issue
    def frags(self, n, sreg, dst=None, lds=None, sc="sc1"):
        def mk(i):
            def f():
                if dst is not None:
                    r = self.vm(f"buffer_load_dwordx4 {dst(i)}, v{vL16}, {WS}, s{sreg} offen offset:{1024*(i&3)} {sc}")
                else:
                    self.a(f"s_mov_b32 m0, s{lds}")
                    r = self.vm(f"buffer_load_dwordx4 v{vL16}, {WS}, s{sreg} offen offset:{1024*(i&3)} {sc} lds")
                if i & 3 == 3:
                    self.a(f"s_add_u32 s{sreg}, s{sreg}, 4096")
                    if lds is not None: self.a(f"s_add_u32 s{lds}, s{lds}, 4096")
                self.lastf = r
                return r
            return f
        return [mk(i) for i in range(n)]
    def run(self, items):
        for f in items: f()
    def setvcc(self): self.a(f"s_mov_b64 vcc, s[{sSLOW}:{sSLOW+1}]")
    NT = True
    def cstore(self, st, nt=True):
        Ls, Le = self.lab("cs"), self.lab("ce")
        self.a(f"s_cbranch_vccnz {Ls}")
        for x in st: self.vm(x + (" nt" if nt and self.NT else ""))
        self.a.label(Le)
        self.ool.append((Ls, [x + " sc1" for x in st] + [f"s_branch {Le}"]))
    def flag(self, stage, t, vf=vMYF, seq=None):
        self.a(f"s_add_u32 s{sT0}, s{sFLG}, {stage*8192}\n v_mov_b32 v{t}, 1")
        if seq is None: self.a("s_waitcnt vmcnt(0)")
        else: self.wait_vm(seq)
        self.a("s_mov_b64 exec, 1")
        self.cstore([f"buffer_store_dword v{t}, v{vf}, {WS}, s{sT0} offen"], nt=False)
        self.a("s_mov_b64 exec, -1")
    NP = 2
    def poll(self, stage, vf, p0, mid=(), np_=None):
        a = self.a; L, Ld = self.lab("poll"), self.lab("pdone")
        n = np_ or self.NP
        ld = lambda i: f"buffer_load_dword v{p0+i}, v{vf}, {WS}, s{sT0} offen sc1"
        a(f"s_add_u32 s{sT0}, s{sFLG}, {stage*8192}\n s_mov_b32 s{sCNT}, 0")
        q = self.vm(ld(0))
        self.run(mid)
        for i in range(1, n):
            self.vm(ld(i))
            if n > 2 and i < n - 1: a("s_nop 15")
        self.wait_vm(q)
        a(f"v_cmp_ne_u32 vcc, 1, v{p0}\n s_cbranch_vccz {Ld}")
        a.label(L)
        for i in range(n):
            a(ld(i))
            if i == n - 1: a(f"s_add_u32 s{sCNT}, s{sCNT}, 1\n s_cmp_gt_u32 s{sCNT}, {SPIN}\n s_cbranch_scc1 main_exit")
            a(f"s_waitcnt vmcnt({n-1})\n v_cmp_ne_u32 vcc, 1, v{p0 + (i+1) % n}")
            a(f"s_cbranch_vccz {Ld}" if i < n - 1 else f"s_cbranch_vccnz {L}")
        a.label(Ld)
        self.setvcc()
    def regcheck(self, r, z):
        a = self.a; L, L0 = self.lab("reg"), self.lab("reg0")
        a(f"s_mov_b32 s{sCNT}, 0")
        a.label(L0)
        a(f"""
    v_readfirstlane_b32 s{sT1}, v{r}
    s_and_b32 s{sT2}, s{sT1}, 0x0f0f0f0f
    s_lshr_b32 s{sT3}, s{sT1}, 4
    s_and_b32 s{sT3}, s{sT3}, 0x0f0f0f0f
    s_add_u32 s{sT2}, s{sT2}, s{sT3}
    s_mul_i32 s{sT2}, s{sT2}, 0x01010101
    s_lshr_b32 s{sT2}, s{sT2}, 24
    s_cmp_lg_u32 s{sT2}, 8
    s_cbranch_scc1 {L}
    s_lshl_b32 s{sT2}, s{sXCC}, 2
    s_lshl_b32 s{sT2}, 8, s{sT2}
    s_cmp_lg_u32 s{sT1}, s{sT2}
    s_cselect_b64 s[{sSLOW}:{sSLOW+1}], -1, 0""")
        self.ool.append((L, [f"s_add_u32 s{sT0}, s{sFLG}, {5*8192}", f"buffer_load_dword v{r}, v{z}, {WS}, s{sT0} offen sc1",
                             f"s_add_u32 s{sCNT}, s{sCNT}, 1", f"s_cmp_gt_u32 s{sCNT}, {SPIN}", "s_cbranch_scc1 main_exit",
                             "s_waitcnt vmcnt(0)", f"s_branch {L0}"]))
    def regload(self, r, z):
        self.a(f"s_add_u32 s{sT0}, s{sFLG}, {5*8192}\n v_mov_b32 v{z}, 0")
        return self.vm(f"buffer_load_dword v{r}, v{z}, {WS}, s{sT0} offen sc1")
    def load_gemm(self, issue, la=LA, side=None, tag=None, ramp=True):
        side = side or {}
        seqs = {}
        if tag: self.ts(tag)
        ni = 3
        for c in range(ni): seqs[c] = issue(c)
        self.run(side.get(-1, []))
        if tag: self.ts(tag)
        for c in range(8):
            self.wait_vm(seqs[c])
            self.run(side.get((c, 'pre'), []))
            if tag: self.ts(tag)
            self.bar()
            for _ in range(2 if (c < 2 and ramp) else 1):
                if ni < 8: seqs[ni] = issue(ni); ni += 1
            self.run(side.get(c, []))
    def cons_gemm(self, areg, ACC, BP, side=None, prewait=None, defer=None, tag=None, baddr=None, prebar=None, postbar=None, onebar=False, init=False):
        a = self.a
        side = {k: list(v) for k, v in (side or {}).items()}
        work = [[(2*c+s, jt) for s in range(2) for jt in range(4) if not (defer and defer(2*c+s) == jt)] for c in range(8)]
        if defer: work += [[(ks, defer(ks)) for ks in range(8)], [(ks, defer(ks)) for ks in range(8, 16)]]
        nch = len(work); rs = {}; started = set(range(4)) if init else set()
        def read(c, i):
            ks, jt = work[c][i]
            r, off = baddr(ks, jt) if baddr else (vB, 4096*ks + 256*jt)
            rs[(c, i)] = self.ld(f"ds_read_b128 {vr(BP+4*i)}, v{r} offset:{off}")
        if tag: self.ts(tag)
        if prebar: prebar(0)
        self.bar()
        if postbar: postbar(0)
        for i in range(len(work[0])): read(0, i)
        if tag: self.ts(tag)
        for c in range(nch):
            nxt = c + 1 < nch
            if c + 1 < 8 and prebar: prebar(c+1)
            if (c + 1 < 8 or (c + 1 == 8 and defer)) and not onebar: self.bar()
            if c + 1 < 8 and postbar: postbar(c+1)
            if prewait: prewait(c)
            items = side.pop(c, [])
            n = len(work[c]); nn = len(work[c+1]) if nxt else 0
            per = -(-len(items) // n)
            for i in range(n, nn): read(c+1, i)
            for i in range(n):
                ks, jt = work[c][i]
                if i % 2 == 0: self.wait_ld(rs[(c, min(i+1, n-1))])
                cc = vr(ACC+4*jt) if jt in started else "0"
                started.add(jt)
                a(f"v_mfma_f32_16x16x32_bf16 {vr(ACC+4*jt)}, {areg(ks)}, {vr(BP+4*i)}, {cc}")
                if i < nn: read(c+1, i)
                for _ in range(per):
                    if items: items.pop(0)()
            if tag: self.ts(tag)
        assert not side
    def gelu(self, acc, cs, S, out, t, pk):
        I = []
        if pk:
            for i in (0, 2): I.append(f"v_pk_fma_f32 {P(acc+i)}, {P(S)}, {P(cs+i)}, {P(acc+i)} op_sel_hi:[0,1,1] neg_lo:[1,0,0] neg_hi:[1,0,0]")
            for i in (0, 2): I.append(f"v_pk_mul_f32 {P(t+i)}, {P(acc+i)}, {P(acc+i)}")
            for i in (0, 2): I.append(f"v_pk_fma_f32 {P(t+i)}, {P(S+2)}, {P(t+i)}, {P(S+2)} op_sel:[1,0,0] op_sel_hi:[1,1,0]")
            for i in (0, 2): I.append(f"v_pk_mul_f32 {P(t+i)}, {P(t+i)}, {P(acc+i)}")
            for i in range(4): I.append(f"v_exp_f32 v{t+i}, v{t+i}")
            for i in (0, 2): I.append(f"v_pk_fma_f32 {P(t+i)}, {P(S)}, {P(t+i)}, {P(S)} op_sel:[1,0,1] op_sel_hi:[1,1,1]")
            for i in range(4): I.append(f"v_rcp_f32 v{t+i}, v{t+i}")
            for i in (0, 2): I.append(f"v_pk_mul_f32 {P(acc+i)}, {P(acc+i)}, {P(t+i)}")
        else:
            for i in range(4): I.append(f"v_fma_f32 v{acc+i}, -v{S}, v{cs+i}, v{acc+i}")
            for i in range(4): I.append(f"v_mul_f32 v{t+i}, v{acc+i}, v{acc+i}")
            for i in range(4): I.append(f"v_fma_f32 v{t+i}, v{t+i}, v{S+3}, v{S+2}")
            for i in range(4): I.append(f"v_mul_f32 v{t+i}, v{t+i}, v{acc+i}")
            for i in range(4): I.append(f"v_exp_f32 v{t+i}, v{t+i}")
            for i in range(4): I.append(f"v_fma_f32 v{t+i}, v{t+i}, v{S+1}, v{S+1}")
            for i in range(4): I.append(f"v_rcp_f32 v{t+i}, v{t+i}")
            for i in range(4): I.append(f"v_mul_f32 v{acc+i}, v{acc+i}, v{t+i}")
        return I + [f"v_cvt_pk_bf16_f32 v{out}, v{acc}, v{acc+1}", f"v_cvt_pk_bf16_f32 v{out+1}, v{acc+2}, v{acc+3}"]
    def gelu2(self, x, y, t, pk):
        p, q = self.gelu(*x, t, pk), self.gelu(*y, t+4, pk)
        return [z for pair in zip(p, q) for z in pair]
    def colsum(self, areg, dst, ones):
        for i in range(4): self.a(f"v_mov_b32 v{ones+i}, 0x3f803f80")
        for ks in range(16):
            self.a(f"v_mfma_f32_16x16x32_bf16 {vr(dst)}, {areg(ks)}, {vr(ones)}, {'0' if ks == 0 else vr(dst)}")
    def unpack(self, src, dst): self.a(f"v_lshlrev_b32 v{dst}, 16, v{src}\n v_and_b32 v{dst+1}, 0xffff0000, v{src}")
    def lds2reg(self, dst, n, va):
        for i in range(n): self.ld(f"ds_read_b128 {dst(i)}, v{va} offset:{1024*i}")
    def stat_reads(self, STAT, va, order, R1=None):
        it = []
        for jt in range(4):
            if order: x = f"ds_read_b128 {vr(STAT+4*jt)}, v{va+(jt&1)} offset:{512*(jt>>1)}"
            else: x = f"ds_read_b128 {vr(STAT+4*jt)}, v{va} offset:{256*jt}"
            it.append(lambda x=x: setattr(self, 'stseq', self.ld(x)))
        if R1 is not None:
            for jt in range(4):
                it.append(lambda jt=jt: setattr(self, 'stseq', self.ld(f"ds_read_b32 v{R1+jt}, v{va} offset:{1024 + 256*jt}")))
        return it

class Main:
    def __init__(self, dbg=False, tags=('main',), opt=None, seclen=None):
        self.dbg = dbg; self.opt = opt or {}
        Stream.NP = int(self.opt.get('np', 2))
        Stream.uid = 0; Stream.NT = not self.opt.get('nont')
        self.C = Stream('C', dbg, tags); self.H = Stream('H', dbg, tags)
        self.C.seclen = self.H.seclen = seclen or {}
    def sync_check(self): assert self.C.nbar == self.H.nbar, (self.C.nbar, self.H.nbar)

    def prologue(self):
        C, H = self.C, self.H; a = C.a
        a(f".text\n.globl {NAME}_kernel\n.p2align 12\n.type {NAME}_kernel,@function")
        a.label(f"{NAME}_kernel")
        a.label("main_kernel")
        a(f"""
    s_cmp_ge_u32 s2, 256
    s_cbranch_scc1 main_exit
    s_load_dwordx2 s[4:5], s[0:1], 96
    s_load_dwordx2 s[8:9], s[0:1], 0
    s_load_dwordx2 s[12:13], s[0:1], 80
    s_load_dwordx2 s[{sPR}:{sPR+1}], s[0:1], 8
    s_load_dwordx4 s[32:35], s[0:1], 16
    s_load_dwordx2 s[{sPP}:{sPP+1}], s[0:1], 32
    s_load_dwordx8 s[{sPP+2}:{sPP+9}], s[0:1], 48""")
        if self.dbg:
            a(f"{'s_memtime' if self.dbg == 'cyc' else 's_memrealtime'} s[70:71]"); C.nts = H.nts = 1
        a(f"""
    v_lshrrev_b32 v1, 6, v0
    v_and_b32 v{vLANE}, 63, v0
    v_readfirstlane_b32 s{sW8}, v1
    s_and_b32 s{sT0}, s2, 7
    s_lshr_b32 s{sT1}, s2, 3
    s_lshl_b32 s{sGRP}, s{sT0}, 2
    s_lshr_b32 s{sT2}, s{sT1}, 3
    s_add_u32 s{sGRP}, s{sGRP}, s{sT2}
    s_and_b32 s{sMEM}, s{sT1}, 7
    s_and_b32 s{sW}, s{sW8}, 3
    s_mul_i32 s{sAR}, s{sGRP}, {GA:#x}
    s_lshl_b32 s{sNT}, s{sMEM}, 2
    s_add_u32 s{sNT}, s{sNT}, s{sW}
    v_lshlrev_b32 v{vL16}, 4, v{vLANE}
    s_getpc_b64 s[42:43]""")
        a.label("L_pc0")
        a(f"""
    s_sub_u32 s42, s42, L_pc0-main_kernel
    s_subb_u32 s43, s43, 0
    s_lshl_b32 s{sT1}, s{sT1}, 3
    s_add_u32 s{sT1}, s{sT1}, s{sW8}
    s_lshl_b32 s{sT1}, s{sT1}, 8
    v_and_b32 v9, 1, v{vLANE}
    v_lshlrev_b32 v9, 7, v9
    v_add_u32 v9, s{sT1}, v9
    v_min_u32 v9, main_end-main_kernel-4, v9
    global_load_dword v255, v9, s[42:43]
    s_mov_b32 s6, {WS_USED:#x}
    s_mov_b32 s7, 0x20000
    v_lshrrev_b32 v8, 3, v{vLANE}
    s_mov_b32 s10, {2048*1024:#x}
    s_mov_b32 s11, 0x20000
    s_mov_b32 s{sPR+3}, 0x20000
    s_cmp_ge_u32 s{sW8}, 4
    s_cbranch_scc1 H_entry
    v_bfe_u32 v9, v{vLANE}, 4, 1
    s_and_b32 s{sT0}, s{sW}, 1
    s_lshl_b32 s{sT0}, s{sT0}, 1
    v_or_b32 v9, s{sT0}, v9
    v_bfe_u32 v10, v{vLANE}, 1, 2
    v_xor_b32 v9, v9, v10
    v_lshlrev_b32 v9, 5, v9
    v_and_b32 v10, 1, v{vLANE}
    v_lshl_add_u32 v9, v10, 4, v9
    v_lshl_add_u32 v134, v8, 10, v9
    s_mov_b32 s{sPR+2}, 0x80000
    s_lshl_b32 s{sG}, s{sW}, 13
    s_lshl_b32 s{sT0}, s{sMEM}, 7
    s_add_u32 s{sG}, s{sG}, s{sT0}
    s_lshl_b32 s{sL}, s{sW}, 10
    s_add_u32 s{sL}, s{sL}, 98304
    s_waitcnt lgkmcnt(0)
    s_and_b32 s{sPR+1}, s{sPR+1}, 0xffff""")
        a.label("L_wq")
        a(f"""
    s_mov_b32 m0, s{sL}
    s_add_u32 s{sL}, s{sL}, 4096
    buffer_load_dwordx4 v134, s[{sPR}:{sPR+3}], s{sG} offen lds
    s_add_u32 s{sG}, s{sG}, 32768
    s_cmp_lt_u32 s{sL}, 163840
    s_cbranch_scc1 L_wq
    s_branch C_entry""")
        C.nvm += 16
        a.label("H_entry")
        self.head = a.lines; a.lines = []
        a(".p2align 8"); a.label("C_entry")
    def setup_common(self, S, t):
        S.a(f"""
    s_mov_b32 s14, {2048*1024:#x}
    s_mov_b32 s15, 0x20000
    s_getreg_b32 s{sXCC}, hwreg(HW_REG_XCC_ID, 0, 3)
    v_and_b32 v{t}, 15, v{vLANE}                  ; t
    v_lshrrev_b32 v{t+1}, 4, v{vLANE}             ; g
    v_lshlrev_b32 v{vB}, 10, v{t+1}
    v_lshl_add_u32 v{vB}, v{t}, 4, v{vB}
    v_add_u32 v{vB}, {ACT}, v{vB}                 ; ACT + g*1024 + t*16
    v_lshrrev_b32 v{vD}, 1, v{t+1}
    v_lshlrev_b32 v{vD}, 10, v{vD}
    v_lshl_add_u32 v{vD}, v{t}, 4, v{vD}
    v_and_b32 v{t+2}, 1, v{t+1}
    v_lshl_add_u32 v{vD}, v{t+2}, 3, v{vD}        ; (g>>1)*1024 + t*16 + (g&1)*8
    s_lshl_b32 s{sT0}, s{sNT}, 2
    v_mov_b32 v{vMYF}, s{sT0}
    s_lshl_b32 s{sFLG}, s{sGRP}, 8
    s_add_u32 s{sFLG}, s{sFLG}, {FLAGS:#x}
    v_lshlrev_b32 v{t+2}, 10, v{t}
    v_lshl_add_u32 v{vXO}, v{t+1}, 3, v{t+2}      ; t*1024 + g*8
    s_and_b32 s{sORD}, s{sW}, 1
    s_lshl_b32 s{sORD}, s{sORD}, 8""")

    cT = 6
    S0, S1, NEGM, OA, OB, QA, QB, vIDX, vKA, vVA, vREG = 24, 40, 56, 72, 88, 16, 20, 13, 14, 15, 11
    KVR = 104
    NB = 1
    SCR = 16384
    def x_addr(self, S, dst, t, x):
        S.a(f"""
    v_lshrrev_b32 v{x}, 4, v{vLANE}
    v_and_b32 v{x+1}, 7, v{vLANE}
    v_xor_b32 v{x+1}, v{x+1}, v{x}
    v_lshlrev_b32 v{x+1}, 4, v{x+1}
    v_lshl_add_u32 v{dst}, v{t}, 7, v{x+1}
    v_add_u32 v{dst}, 32768, v{dst}""")
    def qstage(self):
        C, H = self.C, self.H; a = C.a; t = self.cT
        WQR, QACC, QBP = 192, 24, 40
        XB, WB = 32768, 98304
        QS = 144
        a("s_and_b32 s5, s5, 0xffff\n s_and_b32 s13, s13, 0xffff")
        wqseq = C.nvm - 1
        self.prep_setup(C, 152); self.prep_load(C, 152, 164)
        self.setup_common(C, t)
        self.x_addr(C, 130, t, t+1)
        a(f"""
    v_xor_b32 v131, 64, v130
    v_bfe_u32 v{t+2}, v{vLANE}, 2, 2
    v_lshl_add_u32 v132, v{t+1}, 3, v{t+2}
    v_lshlrev_b32 v132, 7, v132
    v_and_b32 v{t+1}, 1, v{t+1}
    v_lshrrev_b32 v{t+2}, 1, v{t+2}
    v_lshl_add_u32 v{t+1}, v{t+1}, 1, v{t+2}
    v_xor_b32 v{t+1}, s{sW}, v{t+1}
    v_lshl_add_u32 v132, v{t+1}, 5, v132
    v_and_b32 v{t+2}, 3, v{vLANE}
    v_lshl_add_u32 v132, v{t+2}, 3, v132
    v_add_u32 v132, {WB}, v132
    v_lshlrev_b32 v133, 3, v{t}""")
        ONE, CSQ = 136, 140
        for i in range(4): a(f"v_mov_b32 v{ONE+i}, 0x3f803f80")
        a(f"""
    s_mov_b32 s40, 0xffff
    s_mov_b32 s41, 0xffff
    v_mov_b32 v{self.vIDX}, 0xdddddddd
    v_mov_b32 v{self.vKA}, v{vL16}
    v_lshrrev_b32 v{t+2}, 5, v{vLANE}
    v_lshlrev_b32 v{t+2}, 8, v{t+2}
    v_and_b32 v{t+3}, 0xff, v{vL16}
    v_add_u32 v{self.vVA}, v{t+3}, v{t+2}   ; hA*256 + d*16""")
        for i in range(32): a(f"v_mov_b32 v{self.OA+i}, 0")
        a(f"v_and_b32 v{t+2}, 31, v{vLANE}\n v_cmp_eq_u32 vcc, 16, v{t+2}\n v_mov_b32 v{t+2}, 0x3f803f80")
        for b in range(2):
            for i in range(8): a(f"v_cndmask_b32 v{self.KVR+12*b+4+i}, 0, v{t+2}, vcc")
        C.wait_vm(wqseq)
        def postbar(c):
            for ks in (2*c, 2*c+1):
                C.ld(f"ds_read_b64_tr_b16 {P(WQR+4*ks)}, v132 offset:{4096*ks}")
                C.ld(f"ds_read_b64_tr_b16 {P(WQR+4*ks+2)}, v132 offset:{4096*ks+512}")
        side = {c: [(lambda ks=ks: a(f"v_mfma_f32_16x16x32_bf16 {vr(CSQ)}, {vr(WQR+4*ks)}, {vr(ONE)}, {'0' if ks == 0 else vr(CSQ)}")) for ks in (2*c, 2*c+1)] for c in range(8)}
        side[5] += [(lambda jt=jt: C.ld(f"ds_read_b64 {P(QS+2*jt)}, v133 offset:{self.SCR + 128*jt}")) for jt in range(4)]
        C.cons_gemm(V(WQR), QACC, QBP, side=side, baddr=lambda ks, jt: (130 + (ks & 1), 8192*(ks >> 1) + 2048*jt),
                    postbar=postbar, tag="q", onebar=True)
        C.ts()
        QA, QB = self.QA, self.QB
        for jt in range(4): a(f"v_mul_f32 v{QS+2*jt+1}, {f32(QSCALE)}, v{QS+2*jt+1}")
        for jt in range(4):
            for h in (0, 2): a(f"v_pk_fma_f32 {P(QACC+4*jt+h)}, {P(QS+2*jt)}, {P(CSQ+h)}, {P(QACC+4*jt+h)} op_sel_hi:[0,1,1] neg_lo:[1,0,0] neg_hi:[1,0,0]")
        for jt in range(4):
            for h in (0, 2): a(f"v_pk_mul_f32 {P(QACC+4*jt+h)}, {P(QS+2*jt)}, {P(QACC+4*jt+h)} op_sel:[1,0] op_sel_hi:[1,1]")
        for jt in range(4):
            a(f"v_cvt_pk_bf16_f32 v{QA+2*jt}, v{QACC+4*jt}, v{QACC+4*jt+1}")
            a(f"v_cvt_pk_bf16_f32 v{QA+2*jt+1}, v{QACC+4*jt+2}, v{QACC+4*jt+3}")
        a(f"v_mov_b32 v{t}, 0\n v_mov_b32 v{t+1}, 0")
        for q in (QA, QB): a(f"v_permlane16_swap_b32 v{q}, v{q+2}\n v_permlane16_swap_b32 v{q+1}, v{q+3}")
        for i in range(4): a(f"v_dot2_f32_bf16 v{t}, v{QA+i}, v{QA+i}, v{t}\n v_dot2_f32_bf16 v{t+1}, v{QB+i}, v{QB+i}, v{t+1}")
        a(f"""
    v_permlane32_swap_b32 v{t}, v{t+1}
    v_add_f32 v{t}, v{t}, v{t+1}
    v_mov_b32 v{t+1}, v{t}
    v_permlane32_swap_b32 v{t}, v{t+1}
    v_max_f32 v{t}, v{t}, v{t+1}
    v_sqrt_f32 v{t}, v{t}
    v_mov_b32 v133, {self.SCR + 512}""")
        a(f"s_mul_i32 s{sT0}, s{sW}, 5120\n s_add_u32 s{sT0}, s{sT0}, {HI}\n v_add_u32 v134, s{sT0}, v{vL16}\n s_waitcnt vmcnt(0)")
        C.ts("q"); C.bar(); C.ts("q")
        a(f"""
    ds_read_b64 v[128:129], v133""")
        for i in range(5): a(f"ds_write_b128 v134, {vr(164+4*i)} offset:{1024*i}")
        a(f"""
    s_waitcnt lgkmcnt(5)
    v_mul_f32 v{self.NEGM}, v{t}, v128
    v_readfirstlane_b32 s{sSLOW}, v129""")
        for i in range(1, 16): a(f"v_mov_b32 v{self.NEGM+i}, v{self.NEGM}")
        a(f"s_mov_b32 s{sSLOW+1}, s{sSLOW}\n s_waitcnt lgkmcnt(0)")

        a = H.a; v = self.PV
        XF, WF = 64, 128
        a(f"""
    s_setprio 3
    v_and_b32 v9, 7, v{vLANE}
    v_xor_b32 v9, v9, v8
    v_lshlrev_b32 v9, 4, v9
    v_lshl_add_u32 v19, v8, 10, v9
    s_lshl_b32 s{sPF}, s{sGRP}, 16
    s_lshl_b32 s{sT0}, s{sW}, 14
    s_add_u32 s{sPF}, s{sPF}, s{sT0}
    s_lshl_b32 s{sL}, s{sW}, 11
    s_add_u32 s{sL}, s{sL}, {XB}
    s_lshr_b32 s{sKVW}, s{sMEM}, 1
    s_mov_b32 s{sPR+2}, 16384
    v_mov_b32 v7, 0
    s_bitcmp1_b32 s{sMEM}, 0
    s_waitcnt lgkmcnt(0)
    s_cselect_b64 s[{sPR}:{sPR+1}], s[34:35], s[32:33]
    s_and_b32 s5, s5, 0xffff
    s_and_b32 s9, s9, 0xffff
    s_and_b32 s13, s13, 0xffff
    s_and_b32 s{sPR+1}, s{sPR+1}, 0xffff
    s_mov_b32 s{sT0}, {TAGW:#x}
    buffer_load_dword v47, v7, {WS}, s{sT0} offen sc1""")
        L = H.lab("nokv1")
        a(f"s_cmp_lg_u32 s{sKVW}, s{sW}\n s_cbranch_scc1 {L}\n s_mov_b32 s{sT0}, 0")
        a.label("L_wk")
        a(f"s_mov_b32 m0, s{sT0}\n s_nop 0")
        for k in range(4): a(f"buffer_load_dwordx4 v{vL16}, s[{sPR}:{sPR+3}], s{sT0} offen offset:{1024*k} lds")
        a(f"s_add_u32 s{sT0}, s{sT0}, 4096\n s_cmp_lt_u32 s{sT0}, 16384\n s_cbranch_scc1 L_wk")
        a.label(L)
        a(f"s_mov_b32 s{sT1}, s{sMEM}\n s_add_u32 s{sT2}, s{sMEM}, 8")
        a.label("L_x")
        a(f"""
    s_and_b32 s{sT0}, s{sT1}, 7
    s_lshl_b32 s{sG}, s{sT0}, 7
    s_add_u32 s{sG}, s{sG}, s{sPF}
    s_lshl_b32 s{sT0}, s{sT0}, 13
    s_add_u32 m0, s{sT0}, s{sL}
    s_add_u32 s{sT1}, s{sT1}, 1
    buffer_load_dwordx4 v19, {XS}, s{sG} offen lds
    s_add_u32 s{sG}, s{sG}, {8192 - 1024}
    s_cmp_lt_u32 s{sT1}, s{sT2}
    buffer_load_dwordx4 v19, {XS}, s{sG} offen offset:1024 lds
    s_cbranch_scc1 L_x""")
        H.nvm += 16
        self.setup_common(H, 16)
        self.x_addr(H, 40, 16, 42)
        a(f"s_lshl_b32 s{sT0}, s{sW}, 11\n v_add_u32 v40, s{sT0}, v40\n v_xor_b32 v41, 64, v40")
        a("v_mov_b32 v60, 0x3f803f80\n v_mov_b32 v61, 0x3f803f80\n v_mov_b32 v62, 0x3f803f80\n v_mov_b32 v63, 0x3f803f80")
        H.ts("q")
        L, L2 = H.lab("noinit"), H.lab("initd")
        a(f"s_cmp_lg_u32 s{sKVW}, s{sW}\n s_cbranch_scc1 {L}")
        a(f"""
    v_mov_b32 v48, 0
    v_mov_b32 v49, 0
    v_mov_b32 v50, 0
    v_mov_b32 v51, 0
    v_lshrrev_b32 v52, 1, v{vLANE}
    v_lshlrev_b32 v52, 13, v52
    v_and_b32 v53, 1, v{vLANE}
    v_lshl_add_u32 v52, v53, 4, v52
    s_lshl_b32 s{sT0}, s{sMEM}, 5
    s_add_u32 s{sT0}, s{sT0}, s{sFLG}
    s_mov_b64 exec, 0x3fff
    buffer_store_dwordx4 v[48:51], v52, {WS}, s{sT0} offen sc1
    s_lshl_b32 s{sT0}, s2, 7
    s_add_u32 s{sT0}, s{sT0}, {PFLAG:#x}
    s_mov_b64 exec, 1
    buffer_store_dword v48, v7, {WS}, s{sT0} offen sc1
    s_mov_b64 exec, -1
    v_mov_b32 v52, -1
    v_mov_b32 v53, -1
    v_mov_b32 v54, -1
    v_mov_b32 v55, -1
    s_lshl_b32 s{sT0}, s{sMEM}, 10
    s_add_u32 s{sT0}, s{sT0}, s{sAR}
    s_add_u32 s{sT0}, s{sT0}, {ST1:#x}
    buffer_store_dwordx4 v[52:55], v{vL16}, {WS}, s{sT0} offen sc1
    s_bfe_u32 s{sT1}, s{sMEM}, 0x10001
    s_mul_i32 s{sT1}, s{sT1}, 31
    s_cmp_eq_u32 s{sT1}, s{sGRP}
    s_cselect_b32 s{sT1}, 0, -1
    v_mov_b32 v56, s{sT1}
    v_mov_b32 v57, s{sT1}
    v_mov_b32 v58, s{sT1}
    v_mov_b32 v59, s{sT1}
    s_lshl_b32 s{sT0}, s{sMEM}, 8
    s_add_u32 s{sT0}, s{sT0}, s{sAR}
    s_add_u32 s{sT0}, s{sT0}, {HALO:#x}
    s_mov_b64 exec, 0xffff
    buffer_store_dwordx4 v[56:59], v{vL16}, {WS}, s{sT0} offen sc1
    s_mov_b64 exec, -1""")
        a(f"""
    v_bfe_u32 v42, v{vLANE}, 2, 2
    v_lshl_add_u32 v42, v17, 3, v42
    v_lshlrev_b32 v42, 5, v42
    v_and_b32 v43, 3, v{vLANE}
    v_lshl_add_u32 v42, v43, 3, v42
    s_waitcnt vmcnt(20)""")
        for ks in range(16):
            a(f"ds_read_b64_tr_b16 {P(WF+4*ks)}, v42 offset:{1024*ks}\n ds_read_b64_tr_b16 {P(WF+4*ks+2)}, v42 offset:{1024*ks+128}")
        a("s_waitcnt lgkmcnt(0)")
        for ks in range(16):
            a(f"v_mfma_f32_16x16x32_bf16 v[192:195], {vr(WF+4*ks)}, v[60:63], {'0' if ks == 0 else 'v[192:195]'}")
            a(f"v_mfma_f32_16x16x32_bf16 v[196:199], v[60:63], {vr(WF+4*ks)}, {'0' if ks == 0 else 'v[196:199]'}")
        a(f"s_waitcnt vmcnt(4)\n s_branch {L2}")
        a.label(L)
        a("s_waitcnt vmcnt(0)")
        a.label(L2)
        H.ts("q")
        rs = [H.ld(f"ds_read_b128 {vr(XF+4*ks)}, v{40 + (ks & 1)} offset:{8192*(ks >> 1)}") for ks in range(16)]
        Lo, Lj = H.lab("ori"), H.lab("orj")
        a(f"s_bitcmp1_b32 s{sMEM}, 0\n s_cbranch_scc1 {Lo}")
        for ori in range(2):
            for ks in range(16):
                if ks % 2 == 0: H.wait_ld(rs[ks+1])
                X, Wf = vr(XF+4*ks), vr(WF+4*ks)
                a(f"v_mfma_f32_16x16x32_bf16 v[36:39], v[60:63], {X}, {'0' if ks == 0 else 'v[36:39]'}")
                a(f"v_mfma_f32_16x16x32_bf16 v[32:35], {X}, {X}, {'0' if ks == 0 else 'v[32:35]'}")
                a(f"v_mfma_f32_16x16x32_bf16 v[48:51], {X if ori else Wf}, {Wf if ori else X}, {'0' if ks == 0 else 'v[48:51]'}")
            if ori == 0:
                a(f"s_branch {Lj}"); a.label(Lo)
        a.label(Lj)
        a("v_mov_b32 v45, 0")
        for i in range(4):
            a(f"s_mov_b32 vcc_lo, {0x00100001 << i:#x}\n s_mov_b32 vcc_hi, {0x10000100 << i:#x}\n v_cndmask_b32 v45, v45, v{32+i}, vcc")
        a(f"""
    v_mov_b32 v44, v45
    v_permlane32_swap_b32 v44, v45
    v_add_f32 v45, v44, v45
    v_mov_b32 v44, v45
    v_permlane16_swap_b32 v44, v45
    v_add_f32 v45, v44, v45
    v_mul_f32 v44, 0x3b000000, v36
    v_mul_f32 v45, 0x3b000000, v45
    v_fma_f32 v45, -v44, v44, v45
    v_max_f32 v45, 0, v45
    v_add_f32 v45, 0x3727c5ac, v45
    v_rsq_f32 v45, v45
    s_lshl_b32 s{sT0}, s{sW}, 7
    v_lshl_add_u32 v46, v16, 3, s{sT0}
    ds_write_b64 v46, v[44:45] offset:{self.SCR}""")
        a(f"v_readfirstlane_b32 s{sTAG}, v47\n s_add_u32 s{sTAG}, s{sTAG}, 1")
        L, Lv, Lp = H.lab("nokv3"), H.lab("isv"), H.lab("pub")
        a(f"""
    s_waitcnt lgkmcnt(0)
    s_cmp_lg_u32 s{sKVW}, s{sW}
    s_cbranch_scc1 {L}
    s_lshl_b32 s{sT1}, s{sGRP}, 1
    s_lshr_b32 s{sT2}, s{sW}, 1
    s_add_u32 s{sT1}, s{sT1}, s{sT2}
    s_lshl_b32 s{sT1}, s{sT1}, 11
    s_add_u32 s{sT1}, s{sT1}, {KV:#x}             ; tile32*2048
    v_lshrrev_b32 v42, 1, v17                     ; hA
    v_and_b32 v43, 0xff, v{vD}                    ; (t or d)*16 + (g&1)*8
    s_bitcmp1_b32 s{sMEM}, 0
    s_cbranch_scc1 {Lv}""")
        a(f"s_add_u32 s{sT1}, s{sT1}, s{sORD}\n v_lshl_add_u32 v43, v42, 9, v43")
        for i in range(4): a(f"v_fma_f32 v{48+i}, -v44, v{192+i}, v{48+i}")
        for i in range(4): a(f"v_mul_f32 v{48+i}, v{48+i}, v45")
        a(f"""
    v_cvt_pk_bf16_f32 v52, v48, v49
    v_cvt_pk_bf16_f32 v53, v50, v51
    v_mov_b32 v57, 0
    buffer_store_dwordx2 v[52:53], v43, {WS}, s{sT1} offen sc1
    v_dot2_f32_bf16 v57, v52, v52, v57
    v_dot2_f32_bf16 v57, v53, v53, v57
    v_mov_b32 v58, v57
    v_permlane32_swap_b32 v57, v58
    v_add_f32 v57, v57, v58
    v_mov_b32 v58, v57
    v_permlane16_swap_b32 v57, v58
    v_add_f32 v57, v57, v58""")
        for r in (8, 4, 2, 1): a(f"v_max_f32_dpp v57, v57, v57 row_ror:{r} row_mask:0xf bank_mask:0xf")
        a(f"s_branch {Lp}")
        a.label(Lv)
        a(f"v_lshl_add_u32 v46, v17, 5, s{sT0}\n ds_read_b128 v[32:35], v46 offset:{self.SCR}\n ds_read_b128 v[36:39], v46 offset:{self.SCR+16}")
        a(f"s_lshl_b32 s{sT2}, s{sORD}, 1\n s_add_u32 s{sT1}, s{sT1}, s{sT2}\n v_lshl_add_u32 v43, v42, 8, v43\n s_waitcnt lgkmcnt(0)")
        for i in range(4): a(f"v_fma_f32 v{48+i}, -v{32+2*i}, v{196+i}, v{48+i}")
        for i in range(4): a(f"v_mul_f32 v{48+i}, v{48+i}, v{33+2*i}")
        a(f"""
    v_cvt_pk_bf16_f32 v52, v48, v49
    v_cvt_pk_bf16_f32 v53, v50, v51
    v_mov_b32 v57, 0
    buffer_store_dwordx2 v[52:53], v43, {WS}, s{sT1} offen offset:1024 sc1""")
        a.label(Lp)
        a(f"""
    v_mov_b32 v56, s{sTAG}
    v_mov_b32 v58, s{sXCC}
    v_mov_b32 v59, s{sTAG}
    s_lshl_b32 s{sT0}, s{sGRP}, 3
    s_add_u32 s{sT0}, s{sT0}, s{sMEM}
    s_lshl_b32 s{sT0}, s{sT0}, 7
    s_add_u32 s{sT0}, s{sT0}, {KFLAG:#x}""")
        a.label(L)
        H.ts("q")
        H.bar()
        L = H.lab("nokv4")
        a(f"""
    s_cmp_lg_u32 s{sKVW}, s{sW}
    s_cbranch_scc1 {L}
    s_waitcnt vmcnt(0)
    s_mov_b64 exec, 1
    buffer_store_dwordx4 v[56:59], v7, {WS}, s{sT0} offen sc1
    s_mov_b64 exec, -1""")
        a.label(L)
        a("s_setprio 0")
        self.prep_setup(H, 200, HI)
        a(f"v_lshlrev_b32 v{self.TA}, 7, v{vLANE}\n v_and_b32 v46, 0xfff, v{self.TA}\n s_lshr_b32 s{sRND}, s{sGRP}, 2")
        L = H.lab("nopoll")
        a(f"s_cmp_lg_u32 s{sW}, 0\n s_cbranch_scc1 {L}")
        self.kpoll(46, True)
        a(f"s_lshl_b32 s{sW4}, s{sRND}, 14\n s_add_u32 s{sW4}, s{sW4}, {KV:#x}")
        for i in range(4):
            a(f"s_mov_b32 m0, {4096*i}\n s_nop 0")
            for k in range(4): a(f"buffer_load_dwordx4 v{vL16}, {WS}, s{sW4} offen offset:{1024*k} sc1 lds")
            a(f"s_add_u32 s{sW4}, s{sW4}, 4096")
        a(f"""
    s_and_b32 s{sT0}, s{sGRP}, 3
    s_lshl_b32 s{sT0}, s{sT0}, 3
    s_lshl_b32 s{sT0}, 0xff, s{sT0}
    v_cmp_ne_u32 vcc, s{sXCC}, v50
    s_and_b32 s{sT0}, s{sT0}, vcc_lo
    s_cselect_b64 s[{sSLOW}:{sSLOW+1}], -1, 0""")
        for r in (8, 4, 2, 1): a(f"v_max_f32_dpp v49, v49, v49 row_ror:{r} row_mask:0xf bank_mask:0xf")
        a(f"""
    v_mov_b32 v50, v49
    v_permlane16_swap_b32 v49, v50
    v_max_f32 v49, v49, v50
    v_sqrt_f32 v49, v49
    v_mov_b32 v51, s{sSLOW}
    v_mul_f32 v50, -1.0, v49
    v_mov_b32 v46, {self.SCR + 512}
    ds_write_b64 v46, v[50:51]
    s_waitcnt lgkmcnt(0)""")
        a.label(L)
        a(f"s_add_u32 s{sRND}, s{sRND}, 1\n s_and_b32 s{sRND}, s{sRND}, 7")
        self.nkv = 1
        H.ts("q")
        H.bar()
        a(f"v_mov_b32 v46, {self.SCR + 512}\n ds_read_b64 v[50:51], v46\n s_waitcnt lgkmcnt(0)\n v_readfirstlane_b32 s{sSLOW}, v51\n s_mov_b32 s{sSLOW+1}, s{sSLOW}")
        self.sync_check()
    TA = 18
    def kpoll(self, va, first=False):
        H = self.H; a = H.a; L = H.lab("kp")
        a(f"s_lshl_b32 s{sT0}, s{sRND}, 12\n s_add_u32 s{sT0}, s{sT0}, {KFLAG:#x}\n s_mov_b32 s{sCNT}, 0")
        a.label(L)
        a(f"""
    buffer_load_dwordx4 v[48:51], v{va}, {WS}, s{sT0} offen sc1
    s_add_u32 s{sCNT}, s{sCNT}, 1
    s_cmp_gt_u32 s{sCNT}, {SPIN}
    s_cbranch_scc1 main_exit
    s_waitcnt vmcnt(0)
    v_cmp_ne_u32 vcc, s{sTAG}, v48
    v_cmp_ne_u32 s[36:37], s{sTAG}, v51
    s_or_b64 vcc, vcc, s[36:37]
    s_cbranch_vccnz {L}""")
    nkv = 0
    def kv(self, n):
        H = self.H
        for r in range(n):
            H.a(f"""
    s_lshl_b32 s{sW4}, s{sRND}, 14
    s_lshl_b32 s{sPL}, s{sW}, 12
    s_add_u32 s{sW4}, s{sW4}, s{sPL}
    s_add_u32 s{sW4}, s{sW4}, {KV:#x}
    s_add_u32 m0, s{sPL}, {16384*self.nkv}
    s_add_u32 s{sRND}, s{sRND}, 1
    s_and_b32 s{sRND}, s{sRND}, 7""")
            self.nkv += 1
            for i in range(4): self.kvseq = H.vm(f"buffer_load_dwordx4 v{vL16}, {WS}, s{sW4} offen offset:{1024*i} sc1 lds")

    PV = 20
    def prep_setup(self, S, v, win=20480):
        a = S.a
        T0, T1, T2, T3 = sT0, sT1, sT2, sT3
        def dst(i, base): a(f"s_lshl_b32 s{sPD+i}, s{T2}, 10\n s_lshl_b32 s{T3}, s{sW}, 8\n s_add_u32 s{sPD+i}, s{sPD+i}, s{T3}\n s_add_u32 s{sPD+i}, s{sPD+i}, {base:#x}")
        def std(q, i, base, rows=True):
            a(f"""
    s_lshr_b32 s{T1}, s{q}, 3
    s_and_b32 s{T2}, s{q}, 7
    s_lshl_b32 s{sPS+i}, s{T1}, 15
    s_lshl_b32 s{T3}, s{T2}, 7
    s_add_u32 s{sPS+i}, s{sPS+i}, s{T3}""")
            if rows: a(f"s_lshl_b32 s{T3}, s{sW}, 13\n s_add_u32 s{sPS+i}, s{sPS+i}, s{T3}")
            if base is not None:
                a(f"s_lshl_b32 s{T2}, s{T2}, 6\n s_add_u32 s{T2}, s{T2}, s{T1}"); dst(i, base)
        def w4t(q, i, vd):
            std(q, i, None)
            a(f"""
    s_mul_i32 s{T2}, s{T2}, 56
    s_add_u32 s{T2}, s{T2}, s{T1}
    s_lshl_b32 s{T2}, s{T2}, 2
    s_mul_i32 s{T1}, s{T1}, 9363
    s_lshr_b32 s{T1}, s{T1}, 16
    v_subrev_u32 v{vd}, s{T1}, v{v+9}
    v_and_b32 v{vd}, 3, v{vd}
    v_lshl_add_u32 v{vd}, v{vd}, 10, v{v+10}""")
            dst(i, W4)
        def w3t(q, i):
            a(f"""
    s_mul_i32 s{T1}, s{q}, 2341
    s_lshr_b32 s{T1}, s{T1}, 16                   ; ks = q/28
    s_mul_i32 s{T2}, s{T1}, 28
    s_sub_u32 s{T2}, s{q}, s{T2}                  ; nb
    s_lshl_b32 s{T3}, s{T1}, 2
    s_add_u32 s{T3}, s{T3}, s{sW}
    s_mul_i32 s{sPS+i}, s{T3}, {8*3584}
    s_lshl_b32 s{T3}, s{T2}, 7
    s_add_u32 s{sPS+i}, s{sPS+i}, s{T3}
    s_lshl_b32 s{T2}, s{T2}, 6
    s_add_u32 s{T2}, s{T2}, s{T1}""")
            dst(i, W3)
        a(f"""
    v_lshrrev_b32 v{v+9}, 4, v{vLANE}             ; q
    v_and_b32 v{v+10}, 0xff, v{vL16}              ; i*16
    v_lshl_add_u32 v{v+4}, v{v+9}, 14, v{v+10}
    v_lshrrev_b32 v{v+7}, 3, v{vLANE}
    v_and_b32 v{v+8}, 0x7f, v{vL16}
    v_lshl_add_u32 v{v}, v{v+7}, 10, v{v+8}
    v_mul_u32_u24 v{v+1}, 3584, v{v+7}
    v_add_u32 v{v+1}, v{v+1}, v{v+8}""")
        w3t(2, 0); w4t(2, 1, v+5)
        L, Le = S.lab("pwo"), S.lab("pend")
        a(f"s_cmp_ge_u32 s2, 192\n s_cbranch_scc1 {L}\n s_add_u32 s{T0}, s2, 256")
        w3t(T0, 2); w4t(T0, 3, v+6)
        a(f"v_mov_b32 v{v+2}, v{v+1}\n v_mov_b32 v{v+3}, v{v}\n s_branch {Le}")
        a.label(L)
        a(f"s_sub_u32 s{T0}, s2, 192"); std(T0, 2, WO, rows=False)
        a(f"s_sub_u32 s{T0}, s2, 128"); std(T0, 3, WO, rows=False)
        a(f"""
    s_lshr_b32 s{T1}, s{sW}, 1
    s_lshl_b32 s{T1}, s{T1}, 4
    s_and_b32 s{T2}, s{sW}, 1
    s_lshl_b32 s{T2}, s{T2}, 2
    s_add_u32 s{T1}, s{T1}, s{T2}
    v_and_b32 v{v+2}, 4, v{v+7}
    v_add3_u32 v{v+2}, v{v+2}, v{v+7}, s{T1}
    v_lshl_add_u32 v{v+2}, v{v+2}, 10, v{v+8}
    v_mov_b32 v{v+3}, v{v+2}
    v_mov_b32 v{v+6}, v{v+4}""")
        a.label(Le)
        a(f"s_and_b32 s{T0}, s2, 127"); std(T0, 4, W1)
        a(f"""
    s_lshr_b32 s{T0}, s2, 7
    s_lshl_b32 s{T0}, s{T0}, 19
    s_add_u32 s{sPD+4}, s{sPD+4}, s{T0}
    s_mul_i32 s{T0}, s{sW}, 5120
    s_add_u32 s{T0}, s{T0}, {win}
    v_add_u32 v{v+7}, s{T0}, v{vL16}
    v_bfe_u32 v{v+8}, v{vLANE}, 2, 2
    v_lshlrev_b32 v{v+8}, 7, v{v+8}
    v_lshl_add_u32 v{v+8}, v{v+9}, 5, v{v+8}
    v_and_b32 v{v+9}, 3, v{vLANE}
    v_lshl_add_u32 v{v+8}, v{v+9}, 3, v{v+8}
    v_add_u32 v{v+8}, s{T0}, v{v+8}""")
    def prep_load(self, S, v, dst):
        a = S.a
        PR = f"s[{sPR}:{sPR+3}]"
        wo, w1, w2, w3, w4 = (f"s[{sPP+2*i}:{sPP+2*i+1}]" for i in range(5))
        big, small = 0x1c0000, 0x80000
        for i in range(5):
            if i < 2: a(f"s_mov_b64 s[{sPR}:{sPR+1}], {(w3, w4)[i]}\n s_mov_b32 s{sPR+2}, {big:#x}")
            elif i < 4:
                a(f"s_mov_b32 s{sT1}, {small:#x}\n s_cmp_ge_u32 s2, 192\n s_cselect_b64 s[{sPR}:{sPR+1}], {wo}, {(w3, w4)[i-2]}\n s_cselect_b32 s{sPR+2}, s{sT1}, {big:#x}")
            else: a(f"s_cmp_ge_u32 s2, 128\n s_cselect_b64 s[{sPR}:{sPR+1}], {w2}, {w1}\n s_mov_b32 s{sPR+2}, {small:#x}")
            a(f"s_and_b32 s{sPR+1}, s{sPR+1}, 0xffff")
            S.vm(f"buffer_load_dwordx4 {vr(dst+4*i)}, v{(v+1, v, v+2, v+3, v)[i]}, {PR}, s{sPS+i} offen")
    def prep_finish(self, S, v, d):
        for i in range(5):
            S.a(f"ds_read_b64_tr_b16 {P(d+4*i)}, v{v+8} offset:{1024*i}\n ds_read_b64_tr_b16 {P(d+4*i+2)}, v{v+8} offset:{1024*i+512}")
    def prep_store(self, S, v, d):
        S.a("s_waitcnt lgkmcnt(0)")
        for i in range(5): r = S.vm(f"buffer_store_dwordx4 {vr(d+4*i)}, v{(v+4, v+5, v+4, v+6, v+4)[i]}, {WS}, s{sPD+i} offen sc1")
        return r

    hXT, hACC, hBP = 8, 16, 32
    hRES, hSTAT, hCS1, hR1, hTMP, hCS3, hX = 64, 80, 96, 100, 104, 112, 120
    UB = tuple(int(x) for x in os.environ.get('UB', '28,72,86,98,104').split(','))
    UBK = int(os.environ.get('UBK', '12'))
    def attention(self):
        C, H = self.C, self.H; a = C.a
        S0, S1, NEGM, OA, OB, QA, QB, vIDX, vKA, vVA = self.S0, self.S1, self.NEGM, self.OA, self.OB, self.QA, self.QB, self.vIDX, self.vKA, self.vVA
        kf = lambda t: self.KVR + 12*(t & 1)
        C.ts("at"); C.bar(); C.ts("at")
        a("s_setprio 1")
        def rdK(t): a(f"ds_read_b128 {vr(kf(t))}, v{vKA} offset:{(t&31)*2048}")
        def rdV(t):
            a(f"s_mov_b64 exec, {sVM}")
            a(f"ds_read_b128 {vr(kf(t)+4)}, v{vVA} offset:{(t&31)*2048+1024}")
            a(f"ds_read_b128 {vr(kf(t)+8)}, v{vVA} offset:{(t&31)*2048+1536}")
            a("s_mov_b64 exec, -1")
        def qk(u): a(f"v_mfma_f32_32x32x16_bf16 {vr((S0,S1)[u&1],16)}, {vr(kf(u>>1))}, {vr((QA,QB)[u&1])}, {vr(NEGM,16)}")
        def pv(u, h): a(f"v_smfmac_f32_32x32x32_bf16 {vr((OA,OB)[u&1],16)}, {vr(kf(u>>1)+4+4*h)}, {vr((S0,S1)[u&1]+8*h,8)}, v{vIDX}")
        def ex(u, lo, hi):
            for i in range(lo, hi): a(f"v_exp_f32 v{(S0,S1)[u&1]+i}, v{(S0,S1)[u&1]+i}")
        x = self.cT
        a(f"s_lshl_b32 s{sT0}, s{sW}, 13\n s_add_u32 s{sT0}, s{sT0}, {HI}\n v_add_u32 v{x}, s{sT0}, v{vL16}\n s_lshl_b32 s{sT0}, s{sW}, 14\n v_add_u32 v{x+1}, s{sT0}, v{vL16}")
        plan = {}
        for ub, f0, n, va in ((self.UB[1], 0, 8, x), (self.UB[2], 8, 16, x+1), (self.UB[3], 24, 8, x)):
            for i in range(n): plan.setdefault(ub + 1 + 2*(i // 4), []).append(f"ds_read_b128 {vr(128+4*(f0+i))}, v{va} offset:{1024*i}")
        rdK(0); rdV(0); rdK(1)
        a("s_waitcnt lgkmcnt(3)")
        qk(0)
        for u in range(128):
            t, q = u >> 1, u & 1
            if u % 8 == 0: C.ts("at")
            ex(u, 0, 2)
            if u > 0: pv(u-1, 1)
            ex(u, 2, 5)
            if u + 1 < 128: qk(u+1)
            if u in self.UB or u == self.UBK: C.bar()
            if q == 0:
                if t + 1 < 64:
                    if t + 1 == 32: a(f"v_add_u32 v{vVA}, 0x10000, v{vVA}")
                    rdV(t+1)
                if t + 2 < 64:
                    if t + 2 == 32: a(f"v_add_u32 v{vKA}, 0x10000, v{vKA}")
                    rdK(t+2)
            for y in plan.pop(u, []): a(y)
            ex(u, 5, 10)
            if q == 0: a(f"s_waitcnt lgkmcnt({3 if t + 2 < 64 else (2 if t + 1 < 64 else 0)})")
            pv(u, 0)
            ex(u, 10, 16)
        assert not plan
        pv(127, 1)
        C.ts(); C.ts("at")
        t = self.cT
        a(f"""
    v_lshrrev_b32 v{t+1}, 5, v{vLANE}
    v_lshlrev_b32 v{t+1}, 10, v{t+1}
    v_and_b32 v{t+2}, 31, v{vLANE}
    v_lshl_add_u32 v{t+4}, v{t+2}, 4, v{t+1}""")
        C.tile_soff(sT1, O_)
        a(f"v_min_f32 v{t}, v{OA+8}, v{OB+8}\n v_max_f32 v{t+1}, v{OA+8}, v{OB+8}\n v_cmp_nle_f32 vcc, {f32(2.0**-80)}, v{t}\n s_mov_b32 s{sT2}, vcc_lo\n v_cmp_nge_f32 vcc, {f32(2.0**80)}, v{t+1}\n s_or_b32 s{sT2}, s{sT2}, vcc_lo\n s_cbranch_scc1 attn_redo")
        a.label("attn_done")
        a(f"v_mov_b32 v{OA+9}, v{OA+8}\n v_mov_b32 v{OB+9}, v{OB+8}\n v_permlane32_swap_b32 v{OA+8}, v{OA+9}\n v_permlane32_swap_b32 v{OB+8}, v{OB+9}")
        a(f"v_rcp_f32 v{t+2}, v{OA+8}\n v_rcp_f32 v{t+6}, v{OB+8}")
        for o, r in ((OA, t+2), (OB, t+6)):
            for i in range(4): a(f"v_pk_mul_f32 {P(o+2*i)}, {P(o+2*i)}, {P(r)} op_sel_hi:[1,0]")
            for i in range(4): a(f"v_cvt_pk_bf16_f32 v{o+i}, v{o+2*i}, v{o+2*i+1}")
        C.setvcc()
        C.cstore([f"buffer_store_dwordx4 {vr(OA)}, v{t+4}, {WS}, s{sT1} offen", f"buffer_store_dwordx4 {vr(OB)}, v{t+4}, {WS}, s{sT1} offen offset:512"])
        a("s_setprio 0")
        C.set_act(O_)
        a(f"v_and_b32 v{self.cF}, 31, v{vLANE}\n v_lshlrev_b32 v{self.cF}, 2, v{self.cF}")
        C.flag(0, t)
        C.ts()
        a = H.a; v = self.PV; d = v + 8
        CW = v + 7
        a(f"v_mov_b32 v{CW}, {HI + 32752}\n v_mov_b32 v6, 0\n ds_write_b64 v{CW}, v[6:7]\n ds_write_b32 v{CW}, v6 offset:8\n s_waitcnt lgkmcnt(0)")
        a("s_waitcnt vmcnt(0)"); H.bar()
        TA, TD = self.TA, 19
        def spin(n, off=0):
            L = H.lab("hs")
            a(f"s_mov_b32 s{sCNT}, 0")
            a.label(L)
            a(f"""
    s_sleep 1
    ds_read_b32 v6, v{CW} offset:{off}
    s_add_u32 s{sCNT}, s{sCNT}, 1
    s_cmp_gt_u32 s{sCNT}, {SPIN*16}
    s_cbranch_scc1 main_exit
    s_waitcnt lgkmcnt(0)
    v_cmp_gt_u32 vcc, {n}, v6
    s_cbranch_vccnz {L}""")
        def count(off=0): a(f"v_mov_b32 v6, 1\n s_mov_b64 exec, 1\n ds_add_u32 v{CW}, v6 offset:{off}\n s_mov_b64 exec, -1")
        def pub():
            L = H.lab("nopf")
            a(f"s_cmp_lg_u32 s{sW}, 3\n s_cbranch_scc1 {L}")
            a(f"""
    s_lshl_b32 s{sT0}, s2, 7
    s_add_u32 s{sT0}, s{sT0}, {PFLAG:#x}
    v_mov_b32 v6, 1
    s_mov_b64 exec, 1
    buffer_store_dword v6, v7, {WS}, s{sT0} offen sc1
    s_mov_b64 exec, -1""")
            a.label(L)
        def kall():
            L = H.lab("kall")
            a(f"s_mov_b32 s{sCNT}, 0\n s_lshl_b32 s{sT0}, s{sW}, 13\n s_add_u32 s{sT0}, s{sT0}, {KFLAG:#x}")
            a.label(L)
            a(f"""
    buffer_load_dword v48, v{TA}, {WS}, s{sT0} offen sc1
    s_add_u32 s{sCNT}, s{sCNT}, 1
    s_cmp_gt_u32 s{sCNT}, {SPIN}
    s_cbranch_scc1 main_exit
    s_waitcnt vmcnt(0)
    v_cmp_ne_u32 vcc, s{sTAG}, v48
    s_mov_b64 exec, vcc
    s_cbranch_vccnz {L}
    s_mov_b64 exec, -1""")
            count(8); spin(4, 8)
        a(f"v_and_b32 v46, 0xfff, v{TA}")
        self.prep_finish(H, 200, 224)
        self.kpoll(46); self.kv(1); k1 = self.kvseq
        self.prep_store(H, 200, 224)
        H.wait_vm(k1); H.bar()
        kall(); pub()
        self.kv(6)
        H.wait_vm(self.kvseq); H.ts("h"); H.bar()
        def code_touch():
            L = H.lab("pc")
            a(f"s_getpc_b64 s[36:37]")
            a.label(L)
            a(f"""
    s_sub_u32 s36, s36, {L}-main_kernel
    s_subb_u32 s37, s37, 0
    s_and_b32 s{sT1}, s{sGRP}, 3
    s_lshl_b32 s{sT1}, s{sT1}, 5
    s_add_u32 s{sT1}, s{sT1}, s{sNT}
    s_lshl_b32 s{sT1}, s{sT1}, 9
    v_and_b32 v{v+2}, 0x1ff, v{TA}
    v_add_u32 v{v+2}, s{sT1}, v{v+2}
    v_min_u32 v{v+2}, main_end-main_kernel-4, v{v+2}""")
            H.vm(f"global_load_dword v{TD}, v{v+2}, s[36:37]")
        def arena_touch():
            if self.opt.get("usc1"):
                a(f"""
    s_lshl_b32 s{sTCH}, s{sNT}, 12
    s_lshl_b32 s{sT1}, s{sNT}, 8
    s_sub_u32 s{sT1}, s{sT1}, s{sTCH}
    s_add_u32 s{sT1}, s{sT1}, {ST1 - 4096}
    s_add_u32 s{sTCH}, s{sTCH}, s{sAR}
    v_mov_b32 v6, v{TA}
    s_mov_b32 exec_lo, 0
    v_add_u32 v6, s{sT1}, v6
    s_mov_b32 exec_lo, -1
    s_mov_b32 exec_hi, 3""")
                H.vm(f"buffer_load_dword v{TD}, v6, {WS}, s{sTCH} offen")
                a("s_mov_b64 exec, -1")
                return
            a(f"s_mul_i32 s{sTCH}, s{sNT}, {TOUCHN*128}\n s_add_u32 s{sTCH}, s{sTCH}, s{sAR}\n s_add_u32 s{sTCH}, s{sTCH}, {TOUCH0:#x}")
            H.vm(f"buffer_load_dword v{TD}, v{TA}, {WS}, s{sTCH} offen")
            a(f"s_mov_b32 exec_lo, 0x7ff\n s_mov_b32 exec_hi, 0\n s_add_u32 s{sTCH}, s{sTCH}, 8192")
            H.vm(f"buffer_load_dword v{TD}, v{TA}, {WS}, s{sTCH} offen")
            a("s_mov_b64 exec, -1")
        hi = f"s_lshl_b32 s{sPL}, s{sW}, 13\n s_add_u32 s{sPL}, s{sPL}, {HI}"
        lo = f"s_lshl_b32 s{sPL}, s{sW}, 14"
        F = lambda *x, **k: H.run(H.frags(*x, **k))
        code_touch()
        AP = self.opt.get("ap", "none")
        if AP == "pre": arena_touch()
        L0 = H.lab("pchk")
        a(f"s_lshl_b32 s{sPS}, s{sW}, 13\n s_add_u32 s{sPS}, s{sPS}, {PFLAG:#x}\n s_mov_b32 s{sCNT}, 0")
        a.label(L0)
        a(f"""
    buffer_load_dword v{d}, v{TA}, {WS}, s{sPS} offen sc1
    s_add_u32 s{sCNT}, s{sCNT}, 1
    s_cmp_gt_u32 s{sCNT}, {SPIN}
    s_cbranch_scc1 main_exit
    s_waitcnt vmcnt(0)
    v_cmp_ne_u32 vcc, 1, v{d}
    s_mov_b64 exec, vcc
    s_sleep 2
    s_cbranch_vccnz {L0}
    s_mov_b64 exec, -1""")
        count(4); spin(4, 4); count(4)
        L = H.lab("notag")
        a(f"""
    s_or_b32 s{sT0}, s2, s{sW}
    s_cmp_lg_u32 s{sT0}, 0
    s_cbranch_scc1 {L}
    v_mov_b32 v6, s{sTAG}
    s_mov_b32 s{sT0}, {TAGW:#x}
    s_mov_b64 exec, 1
    buffer_store_dword v6, v7, {WS}, s{sT0} offen sc1
    s_mov_b64 exec, -1""")
        a.label(L)
        H.ts("h")
        for base, reg in ((WO, 64), (W1, 128), (W2, 192)):
            H.set_wbase(base, 16, sW4); F(16, sW4, dst=V(reg))
        L = H.lab("ack")
        a(f"s_cmp_lg_u32 s{sW}, 3\n s_cbranch_scc1 {L}")
        spin(8, 4)
        a.label(L)
        H.set_w3(0); a(hi)
        F(8, sPF, lds=sPL); r1 = H.lastf
        code_touch()
        H.xo_soff(sT1)
        for jt in range(4):
            H.vm(f"buffer_load_dwordx2 {P(self.hXT+2*jt)}, v{vXO}, {XS}, s{sT1} offen")
            if jt < 3: a(f"s_add_u32 s{sT1}, s{sT1}, 16384")
        a(f"s_and_b32 s{sT1}, s{sGRP}, 3\n s_mul_i32 s{sT1}, s{sT1}, 6144\n s_add_u32 s{sTCH}, s{sPF}, s{sT1}\n s_mov_b32 exec_hi, 0xffff")
        H.vm(f"buffer_load_dword v{TD}, v{TA}, {WS}, s{sTCH} offen")
        a("s_mov_b64 exec, -1")
        if AP == "mid": arena_touch()
        H.wait_vm(r1); H.ts("h"); H.bar()
        a(lo); F(16, sPF, lds=sPL); r2 = H.lastf
        code_touch()
        a(f"""
    s_and_b32 s{sT1}, s{sGRP}, 3
    s_lshl_b32 s{sTCH}, s{sT1}, 5
    s_add_u32 s{sTCH}, s{sTCH}, s{sNT}
    s_mul_i32 s{sTCH}, s{sTCH}, 14336
    s_add_u32 s{sTCH}, s{sTCH}, {W4:#x}""")
        H.vm(f"buffer_load_dword v{TD}, v{TA}, {WS}, s{sTCH} offen")
        H.wait_vm(r2); H.ts("h"); H.bar()
        a(hi); F(8, sPF, lds=sPL); r3 = H.lastf
        a(f"s_add_u32 s{sTCH}, s{sTCH}, 6144")
        H.vm(f"buffer_load_dword v{TD}, v{TA}, {WS}, s{sTCH} offen")
        H.wait_vm(r3); H.ts("h"); H.bar()
        H.bar()
        a(lo); F(16, sPF, lds=sPL)
        H.set_w3(3)
        a(f"s_lshl_b32 s{sT5}, s{sORD}, 5\n s_add_u32 s{sPF}, s{sPF}, s{sT5}"); a(hi)
        F(8, sPF, lds=sPL)
        arena_touch()
        code_touch()
        a("s_waitcnt vmcnt(0)")
        H.setvcc()
        H.tile_soff(sT4, H_)
        a("s_setprio 1")
        H.ts("h")
        self.sync_check()

    def fallback(self):
        C = self.C; a = C.a; t = self.cT
        S0, NEGM, KF, VF, vVA, vIDX = self.S0, self.NEGM, self.KVR, self.KVR+4, self.vVA, self.vIDX
        a.label("attn_redo")
        a(f"v_and_b32 v{vVA}, 0x3ff, v{vVA}")
        for (Q, O) in ((self.QA, self.OA), (self.QB, self.OB)):
            L1, L2 = C.lab("fb1"), C.lab("fb2")
            a(f"v_mov_b32 v{t}, 0xff800000\n s_mov_b32 s{sT2}, {KV:#x}")
            a.label(L1)
            a(f"""
    buffer_load_dwordx4 {vr(KF)}, v{vL16}, {WS}, s{sT2} offen sc1
    s_add_u32 s{sT2}, s{sT2}, 2048
    s_waitcnt vmcnt(0)
    v_mfma_f32_32x32x16_bf16 {vr(S0,16)}, {vr(KF)}, {vr(Q)}, 0""")
            for i in range(8): a(f"v_max3_f32 v{t}, v{t}, v{S0+2*i}, v{S0+2*i+1}")
            a(f"""
    s_cmp_lt_u32 s{sT2}, {KV+131072:#x}
    s_cbranch_scc1 {L1}
    v_mov_b32 v{t+1}, v{t}
    v_permlane32_swap_b32 v{t}, v{t+1}
    v_max_f32 v{t}, v{t}, v{t+1}
    v_sub_f32 v{t}, 0, v{t}""")
            for i in range(16): a(f"v_mov_b32 v{NEGM+i}, v{t}")
            for i in range(16): a(f"v_mov_b32 v{O+i}, 0")
            a(f"s_mov_b32 s{sT2}, {KV:#x}")
            a.label(L2)
            a(f"""
    buffer_load_dwordx4 {vr(KF)}, v{vL16}, {WS}, s{sT2} offen sc1
    s_mov_b64 exec, {sVM}
    buffer_load_dwordx4 {vr(VF)}, v{vVA}, {WS}, s{sT2} offen offset:1024 sc1
    buffer_load_dwordx4 {vr(VF+4)}, v{vVA}, {WS}, s{sT2} offen offset:1536 sc1
    s_mov_b64 exec, -1
    s_add_u32 s{sT2}, s{sT2}, 2048
    s_waitcnt vmcnt(0)
    v_mfma_f32_32x32x16_bf16 {vr(S0,16)}, {vr(KF)}, {vr(Q)}, {vr(NEGM,16)}""")
            for i in range(16): a(f"v_exp_f32 v{S0+i}, v{S0+i}")
            a(f"""
    v_smfmac_f32_32x32x32_bf16 {vr(O,16)}, {vr(VF)}, {vr(S0,8)}, v{vIDX}
    v_smfmac_f32_32x32x32_bf16 {vr(O,16)}, {vr(VF+4)}, {vr(S0+8,8)}, v{vIDX}
    s_nop 15
    s_cmp_lt_u32 s{sT2}, {KV+131072:#x}
    s_cbranch_scc1 {L2}""")
        a("s_nop 15\n s_branch attn_done")

    cF, cP = 120, 121
    cACC, cBP, cSTAT, cCS3, cTMP, cOUT = 16, 48, 80, 96, 104, 112
    def prod_stats(self, vals):
        H = self.H; a = H.a; t = self.hTMP; x = self.hBP
        for jt in range(4): a(f"v_pk_add_f32 {P(x+2*jt)}, {P(vals+4*jt)}, {P(vals+4*jt+2)}")
        for jt in range(4): a(f"v_pk_mul_f32 {P(x+8+2*jt)}, {P(vals+4*jt)}, {P(vals+4*jt)}")
        for jt in range(4): a(f"v_pk_fma_f32 {P(x+8+2*jt)}, {P(vals+4*jt+2)}, {P(vals+4*jt+2)}, {P(x+8+2*jt)}")
        for jt in range(8): a(f"v_add_f32 v{t+jt}, v{x+2*jt}, v{x+2*jt+1}")
        a(f"""
    s_lshl_b32 s{sT5}, s{sW}, 10
    s_add_u32 s{sT5}, s{sT5}, {XST}
    v_permlane32_swap_b32 v{t}, v{t+2}
    v_permlane32_swap_b32 v{t+1}, v{t+3}
    v_permlane32_swap_b32 v{t+4}, v{t+6}
    v_permlane32_swap_b32 v{t+5}, v{t+7}
    v_pk_add_f32 {P(t)}, {P(t)}, {P(t+2)}
    v_pk_add_f32 {P(t+4)}, {P(t+4)}, {P(t+6)}
    v_lshl_add_u32 v{x}, v{vLANE}, 3, s{sT5}
    v_permlane16_swap_b32 v{t}, v{t+1}
    v_permlane16_swap_b32 v{t+4}, v{t+5}
    v_add_f32 v{t}, v{t}, v{t+1}
    v_add_f32 v{t+1}, v{t+4}, v{t+5}
    ds_write_b64 v{x}, {P(t)}""")
    def stat_publish(self, base):
        C = self.C; a = C.a; t = self.cTMP; x = self.cT
        a(f"""
    v_lshlrev_b32 v{x}, 3, v{vLANE}
    v_add_u32 v{x}, {XST}, v{x}
    s_lshl_b32 s{sT2}, s{sMEM}, 3
    s_add_u32 s{sT2}, s{sT2}, s{sAR}
    s_add_u32 s{sT2}, s{sT2}, {base:#x}
    v_lshlrev_b32 v{x+1}, 6, v{vLANE}
    s_lshl_b32 s{sT5}, s{sW}, 4
    s_lshl_b64 s[36:37], 0xffff, s{sT5}""")
        C.bar()
        for p in range(4): a(f"ds_read_b64 {P(t+2*p)}, v{x} offset:{1024*p}")
        def fin():
            a(f"""
    s_waitcnt lgkmcnt(0)
    v_pk_add_f32 {P(t)}, {P(t)}, {P(t+2)}
    v_pk_add_f32 {P(t+4)}, {P(t+4)}, {P(t+6)}
    v_pk_add_f32 {P(t)}, {P(t)}, {P(t+4)}
    s_mov_b64 exec, s[36:37]""")
            C.cstore([f"buffer_store_dwordx2 {P(t)}, v{x+1}, {WS}, s{sT2} offen"], nt=False)
            a("s_mov_b64 exec, -1")
        self.pubfin = fin
    def cons_stats(self, gbase, scr, double):
        C = self.C; a = C.a; x = self.cT; o = self.cSTAT; S = o + 8
        st = {}
        ltxt = f"buffer_load_dwordx4 {vr(o)}, v{x+1}, {WS}, s{sT1} offen sc1"
        def load():
            a(f"""
    s_lshl_b32 s{sT1}, s{sW}, 10
    s_add_u32 s{sT1}, s{sT1}, s{sAR}
    s_add_u32 s{sT1}, s{sT1}, {gbase:#x}
    v_and_b32 v{x+3}, 0xff, v{vL16}
    v_and_b32 v{x+1}, 0x30, v{vLANE}
    v_lshl_add_u32 v{x+1}, v{x+3}, 2, v{x+1}
    s_lshl_b32 s{sT5}, s{sW}, 8
    s_add_u32 s{sT5}, s{sT5}, {scr}
    v_add_u32 v{x+2}, s{sT5}, v{x+3}""")
            st['g'] = C.vm(ltxt)
        def check():
            L0, Lr, L2 = C.lab("schk"), C.lab("sre"), C.lab("sok")
            C.wait_vm(st['g'])
            a.label(L0)
            a(f"v_max_u32 v{o+4}, v{o+1}, v{o+3}\n v_cmp_eq_u32 vcc, -1, v{o+4}\n s_cbranch_vccnz {Lr}")
            a.label(L2)
            C.ool.append((Lr, [f"s_add_u32 s{sCNT}, s{sCNT}, 1", f"s_cmp_gt_u32 s{sCNT}, {SPIN}", f"s_cbranch_scc1 {L2}",
                               ltxt, "s_waitcnt vmcnt(0)", f"s_branch {L0}"]))
            C.setvcc()
        txt = f"""
    v_add_f32 v{o}, v{o}, v{o+2}
    v_add_f32 v{o+1}, v{o+1}, v{o+3}
    v_permlane32_swap_b32 v{o}, v{o+1}
    v_add_f32 v{o}, v{o}, v{o+1}
    v_mov_b32 v{o+1}, v{o}
    v_permlane16_swap_b32 v{o}, v{o+1}
    v_add_f32 v{o}, v{o}, v{o+1}
    v_mul_f32 v{o}, 0x3b000000, v{o}
    v_mov_b32 v{o+1}, v{o}
    v_permlane32_swap_b32 v{o}, v{o+1}
    v_mov_b32 v{S}, v{o}
    v_fma_f32 v{o+1}, -v{o}, v{o}, v{o+1}
    v_max_f32 v{o+1}, 0, v{o+1}
    v_add_f32 v{o+2}, 0x3727c5ac, v{o+1}
    v_rsq_f32 v{o+3}, v{o+2}"""
        R = o+3
        if double:
            txt += f"""
    v_mul_f32 v{o+4}, v{o+3}, v{o+3}
    ds_write_b32 v{x+2}, v{o+3} offset:1024
    v_mul_f32 v{o+4}, v{o+4}, v{o+1}
    v_add_f32 v{o+4}, 0x3727c5ac, v{o+4}
    v_rsq_f32 v{o+4}, v{o+4}
    v_mul_f32 v{o+5}, v{o+3}, v{o+4}"""
            R = o+5
        txt += f"""
    v_rcp_f32 v{S+1}, v{R}
    v_mul_f32 v{S+2}, {f32(GC1)}, v{R}
    v_mul_f32 v{o+6}, v{R}, v{R}
    v_mul_f32 v{o+6}, {f32(0.044715)}, v{o+6}
    v_mul_f32 v{S+3}, v{S+2}, v{o+6}
    ds_write_b128 v{x+2}, {vr(S)}"""
        comp = [check]
        for y in txt.split("\n"):
            y = y.strip()
            if not y: continue
            if y.startswith("ds_"): comp.append(lambda y=y: setattr(C, 'wseq', C.ld(y)))
            else: comp.append(lambda y=y: a(y))
        return load, comp
    def tile_store(self, jt):
        return f"buffer_store_dwordx2 {P(self.hXT+2*jt)}, v{vD}, {WS}, s{sT4} offen offset:{256*jt}"
    def add_pack(self, jt, src=None):
        a = self.H.a; A_ = self.hACC
        if src is not None:
            for h in (0, 2): a(f"v_pk_add_f32 {P(A_+4*jt+h)}, {P(A_+4*jt+h)}, {P(src+h)}")
        for h in (0, 1): a(f"v_cvt_pk_bf16_f32 v{self.hXT+2*jt+h}, v{A_+4*jt+2*h}, v{A_+4*jt+2*h+1}")

    def s3(self):
        self.C.mark(); self.H.mark()
        C, H = self.C, self.H
        C.colsum(V(128), self.cCS3, self.cOUT)
        C.poll(0, self.cF, self.cP, mid=[lambda: C.colsum(V(192), self.cCS3+4, self.cOUT)]); C.ts()
        def w4ref():
            C.a(f"""
    v_lshlrev_b32 v118, 7, v{vLANE}
    s_and_b32 s{sTCH}, s{sGRP}, 3
    s_lshl_b32 s{sTCH}, s{sTCH}, 5
    s_add_u32 s{sTCH}, s{sTCH}, s{sNT}
    s_mul_i32 s{sTCH}, s{sTCH}, 14336
    s_add_u32 s{sTCH}, s{sTCH}, {W4:#x}""")
            C.vm(f"buffer_load_dword v119, v118, {WS}, s{sTCH} offen")
        def w4ref2():
            C.a(f"s_add_u32 s{sTCH}, s{sTCH}, 6144")
            C.vm(f"buffer_load_dword v119, v118, {WS}, s{sTCH} offen")
        C.load_gemm(C.act_issue(), side={3: [w4ref], 5: [w4ref2]} if self.opt.get('w4ref') else None, tag='s3')
        C.set_act(H_)
        self.stat_publish(ST1)
        for i in range(8): H.unpack(self.hXT+i, self.hACC+2*i)
        H.cons_gemm(V(64), self.hACC, self.hBP, tag="s3", init=True); H.ts()
        for jt in range(4): self.add_pack(jt)
        H.cstore([self.tile_store(jt) for jt in range(4)])
        self.prod_stats(self.hACC)
        for i in range(8): H.unpack(self.hXT+i, self.hRES+2*i)
        H.flag(1, 6); H.ts()
        H.a("s_waitcnt lgkmcnt(0)"); H.bar()
        self.sync_check()
    def s4(self):
        self.C.mark(); self.H.mark()
        C, H = self.C, self.H; a = H.a
        C.poll(1, self.cF, self.cP, mid=[self.pubfin]); C.ts()
        load, comp = self.cons_stats(ST1, ACT, True)
        C.load_gemm(C.act_issue(), side={-1: [load], 3: comp[:7], 4: comp[7:14], 5: comp[14:21], 6: comp[21:],
                                         (7, 'pre'): [lambda: C.wait_ld(C.wseq)]}, tag='s4')
        if self.opt.get('uref'):
            C.a(f"v_lshlrev_b32 v118, 7, v{vLANE}\n s_mul_i32 s{sTCH}, s{sNT}, {40*128}\n s_add_u32 s{sTCH}, s{sTCH}, s{sAR}\n s_add_u32 s{sTCH}, s{sTCH}, {U_ + 0x10000:#x}\n s_mov_b32 exec_hi, 0xff")
            C.vm(f"buffer_load_dword v119, v118, {WS}, s{sTCH} offen")
            C.a("s_mov_b64 exec, -1")
        H.colsum(V(128), self.hCS1, self.hX)
        H.tile_soff(sT4, T_)
        a(f"""
    v_lshrrev_b32 v6, 5, v{vLANE}
    v_lshlrev_b32 v6, 5, v6
    v_and_b32 v7, 0x1f, v{vD}
    v_add_u32 v{self.hX+4}, v6, v7                ; halo: (g>>1)*32 + (t&1)*16 + (g&1)*8
    s_lshl_b32 s{sT3}, s{sNT}, 6
    s_add_u32 s{sT3}, s{sT3}, s{sAR}
    v_and_b32 v7, 0xff, v{vL16}
    v_add_u32 v7, {ACT}, v7""")
        sr = H.stat_reads(self.hSTAT, 7, False, self.hR1)
        H.cons_gemm(V(128), self.hACC, self.hBP, side={6: sr[:4], 7: sr[4:]}, tag="s4"); H.ts()
        A_, XT, ST = self.hACC, self.hXT, self.hSTAT
        H.wait_ld(H.stseq)
        for x in H.gelu2((A_, self.hCS1, ST, XT), (A_+12, self.hCS1, ST+12, XT+6), self.hTMP, True): a(x)
        H.cstore([self.tile_store(0), self.tile_store(3)])
        for x in H.gelu2((A_+4, self.hCS1, ST+4, XT+2), (A_+8, self.hCS1, ST+8, XT+4), self.hTMP, True): a(x)
        H.cstore([self.tile_store(1), self.tile_store(2)])
        H.flag(2, 6); H.ts()
        Lh, L1 = H.lab("nohalo"), H.lab("side1")
        a(f"""
    s_bitcmp1_b32 s{sMEM}, 1
    s_cbranch_scc1 {L1}
    s_cmp_eq_u32 s{sGRP}, 31
    s_cbranch_scc1 {Lh}
    s_add_u32 s{sT3}, s{sT3}, {HALO+GA:#x}
    s_mov_b32 exec_lo, 0xc000c000
    s_mov_b32 exec_hi, 0xc000c000
    buffer_store_dwordx2 {P(XT+6)}, v{self.hX+4}, {WS}, s{sT3} offen sc1
    s_branch {Lh}""")
        a.label(L1)
        a(f"""
    s_cmp_eq_u32 s{sGRP}, 0
    s_cbranch_scc1 {Lh}
    s_sub_u32 s{sT3}, s{sT3}, {GA-HALO:#x}
    s_mov_b32 exec_lo, 0x00030003
    s_mov_b32 exec_hi, 0x00030003
    buffer_store_dwordx2 {P(XT)}, v{self.hX+4}, {WS}, s{sT3} offen sc1""")
        a.label(Lh)
        a("s_mov_b64 exec, -1")
        H.bar(); self.gate5 = True
    def s5(self):
        self.C.mark(); self.H.mark()
        C, H = self.C, self.H; a = C.a; x = self.cT; T = self.cTMP
        C.set_act(T_)
        a(f"""
    s_lshl_b32 s{sT1}, s{sW}, 9
    s_add_u32 s{sT1}, s{sT1}, s{sAR}
    s_add_u32 s{sT1}, s{sT1}, {HALO:#x}
    v_and_b32 v{x+2}, 0x1ff, v{vL16}
    s_cmp_eq_u32 s{sW}, 0
    s_cselect_b32 s{sT3}, -16, 0
    s_cselect_b32 s{sT4}, 0xaaaaaaaa, -1
    s_cmp_eq_u32 s{sW}, 1
    s_cselect_b32 s{sT3}, {63*16}, s{sT3}
    s_cselect_b32 s{sT4}, 0x55555555, s{sT4}
    s_cmp_eq_u32 s{sW}, 3
    s_cselect_b32 s{sT3}, {62*16}, s{sT3}
    s_lshl_b32 s{sT2}, s{sW}, 14
    s_add_u32 s{sT3}, s{sT3}, s{sT2}
    s_add_u32 s{sT3}, s{sT3}, {ACT}
    v_lshrrev_b32 v{x+1}, 1, v{vLANE}
    v_lshlrev_b32 v{x+1}, 10, v{x+1}
    v_and_b32 v{x+3}, 1, v{vLANE}
    v_lshl_add_u32 v{x+1}, v{x+3}, 4, v{x+1}
    v_add_u32 v{x+1}, s{sT3}, v{x+1}
    s_lshl_b32 s{sPF}, s{sMEM}, 3
    s_add_u32 s{sPF}, s{sPF}, s{sW}
    s_mul_i32 s{sPF}, s{sPF}, {28*1024}
    s_add_u32 s{sPF}, s{sPF}, {W4 + 20*1024:#x}
    s_lshl_b32 s{sPL}, s{sW}, 13""")
        C.bar()
        C.poll(2, self.cF, self.cP, mid=[]); C.ts()
        shifts = (1, -1, 2, -2)
        masks = ((0xfffffffe, 0xffffffff), (0xffffffff, 0x7fffffff), (0xfffffffc, 0xffffffff), (0xffffffff, 0x3fffffff))
        def pre(c):
            g = c >> 1
            if c & 1 == 0: a(f"s_add_i32 s{sG}, s{sG}, {-16*shifts[g] + (16*shifts[g-1] if g else 0)}")
            a(f"s_mov_b32 exec_lo, {masks[g][0]:#x}" if masks[g][0] != 0xffffffff else f"s_mov_b32 exec_hi, {masks[g][1]:#x}")
        hs = {}
        hload = f"buffer_load_dwordx4 {vr(T)}, v{x+2}, {WS}, s{sT1} offen sc1"
        stg = C.frags(8, sPF, lds=sPL) + C.E(f"s_add_u32 s{sPF}, s{sPF}, {4*28*1024 - 8192}\n s_add_u32 s{sPL}, s{sPL}, {32768 - 8192}") + C.frags(8, sPF, lds=sPL)
        def patch():
            L0, Lr, L2 = C.lab("hchk"), C.lab("hre"), C.lab("hok")
            C.wait_vm(hs[0])
            a.label(L0)
            a(f"v_max_u32 v{x}, v{T}, v{T+1}\n v_max3_u32 v{x}, v{x}, v{T+2}, v{T+3}\n v_cmp_eq_u32 vcc, -1, v{x}\n s_cbranch_vccnz {Lr}")
            a.label(L2)
            C.ool.append((Lr, [f"s_add_u32 s{sCNT}, s{sCNT}, 1", f"s_cmp_gt_u32 s{sCNT}, {SPIN}", f"s_cbranch_scc1 {L2}",
                               hload, "s_waitcnt vmcnt(0)", f"s_branch {L0}"]))
            C.setvcc()
            a(f"s_mov_b32 exec_lo, s{sT4}\n s_mov_b32 exec_hi, 0\n ds_write_b128 v{x+1}, {vr(T)}\n s_mov_b64 exec, -1\n s_waitcnt lgkmcnt(0)")
        HC = int(self.opt.get("hc", 3))
        side = {2: stg[:2], 3: stg[2:4]}
        side[HC] = side.get(HC, []) + [lambda: hs.__setitem__(0, C.vm(hload))]
        C.load_gemm(C.act_issue(pre=pre, post=lambda c: a("s_mov_b64 exec, -1")), side=side, tag='s5')
        patch(); C.bar()
        C.run(stg[4:12]); self.stg_rest = stg[12:]
        C.set_act(X1)
        self.stat_publish(ST3)
        a = H.a; ST, RES, R1 = self.hSTAT, self.hRES, self.hR1
        a(f"s_lshl_b32 s{sT1}, s{sW}, 14\n v_add_u32 v7, s{sT1}, v{vL16}")
        H.lds2reg(V(128), 16, 7)
        for jt in range(4):
            a(f"v_mul_f32 v6, v{ST+4*jt}, v{R1+jt}")
            for i in range(4): a(f"v_fma_f32 v{self.hACC+4*jt+i}, v{RES+4*jt+i}, v{R1+jt}, -v6")
        H.tile_soff(sT4, X1)
        a("s_waitcnt lgkmcnt(0)")
        H.colsum(V(128), self.hCS3, self.hX)
        H.cons_gemm(V(192), self.hACC, self.hBP, defer=lambda ks: 3 if (ks >> 2) & 1 else 0, tag="s5", init=True); H.ts()
        for jt in range(4): self.add_pack(jt)
        H.cstore([self.tile_store(jt) for jt in range(4)])
        self.prod_stats(self.hACC)
        for i in range(8): H.unpack(self.hXT+i, self.hACC+2*i)
        H.flag(3, 6)
        a("s_waitcnt lgkmcnt(0)"); H.bar()
        for i in range(8): a(f"v_pk_add_f32 {P(RES+2*i)}, {P(RES+2*i)}, {P(self.hACC+2*i)}")
        H.ts()
        self.sync_check()

    def capture(self, S, fn):
        keep = S.a.lines; S.a.lines = []
        fn()
        got = S.a.lines; S.a.lines = keep
        return [(lambda x=x: S.a(x)) for x in got]
    def s6(self):
        self.C.mark(); self.H.mark()
        C, H = self.C, self.H
        PK = bool(self.opt.get("s6pk"))
        for S in (C, H):
            isC = S is C; a = S.a
            vBa, vBb, vDa, vDb, vS = (124, 125, 126, 127, 14) if isC else (self.hCS1, self.hCS1+1, self.hCS1+2, self.hCS1+3, self.hR1)
            ACCS = [self.cACC + 4*i for i in range(8)] if isC else [self.hACC + 4*i for i in range(4)] + [self.hX, self.hX+4]
            BP = self.cBP if isC else self.hBP
            ST, CS, TMP, OUT = (self.cSTAT, self.cCS3, self.cTMP, self.cOUT) if isC else (self.hSTAT, self.hCS3, self.hTMP, self.hXT)
            W = (V(128), V(192))
            def setup():
                a(f"""
    v_xor_b32 v{vBa}, s{sORD}, v{vB}
    v_xor_b32 v{vBb}, 256, v{vBa}
    v_xor_b32 v{vDa}, s{sORD}, v{vD}
    v_xor_b32 v{vDb}, 256, v{vDa}
    v_and_b32 v{vS}, 0xff, v{vL16}
    v_add_u32 v{vS}, {HI}, v{vS}
    v_xor_b32 v{vS}, s{sORD}, v{vS}
    v_xor_b32 v{vS+1}, 256, v{vS}
    s_mul_i32 s{sU0}, s{sMEM}, {14*2048}
    s_add_u32 s{sU0}, s{sU0}, s{sAR}
    s_add_u32 s{sU0}, s{sU0}, {U_:#x}
    s_lshr_b32 s{sU1}, s{sW}, 1
    s_add_u32 s{sU1}, s{sU1}, 12
    s_lshl_b32 s{sU1}, s{sU1}, 11
    s_add_u32 s{sU1}, s{sU1}, s{sU0}
    s_mul_i32 s{sT3}, s{sW}, {3*2048}
    s_add_u32 s{sU0}, s{sU0}, s{sT3}
    s_lshl_b32 s{sW4}, s{sMEM}, 3
    s_add_u32 s{sW4}, s{sW4}, s{sW8}
    s_lshl_b32 s{sT3}, s{sW4}, 2
    v_mov_b32 v{vMYF}, s{sT3}
    s_mul_i32 s{sW4}, s{sW4}, {28*1024}
    s_add_u32 s{sW4}, s{sW4}, {W4:#x}
""")
                if isC: a(f"s_add_u32 s{sU1}, s{sU0}, 2048")
                else: a(f"s_add_u32 s{sU0}, s{sU0}, 4096")
            tilesA = [(j, n) for j in (0, 1) for n in ((0, 1) if isC or j == 0 else (0,))]
            tilesB = [(j, n) for j in (2, 3) for n in ((0, 1) if isC or j == 2 else (0,))]
            acc = {t: ACCS[i] for i, t in enumerate(tilesA + tilesB)}
            rs = {}
            slot = lambda s, j: BP + 16*(s & 1) + 4*j
            def rd(s, j): rs[(s, j)] = S.ld(f"ds_read_b128 {vr(slot(s, j))}, v{vBb if j & 1 else vBa} offset:{4096*s + 512*(j>>1)}")
            def mf(s, j, n): a(f"v_mfma_f32_16x16x32_bf16 {vr(acc[(j, n)])}, {W[n](s)}, {vr(slot(s, j))}, {'0' if s == 0 else vr(acc[(j, n)])}")
            wreg = lambda f: vr(128 + 4*(f >> 1) + 64*(f & 1))
            S.wreg = wreg
            w4 = S.frags(20, sW4, dst=wreg)
            stg = []
            sr = S.stat_reads(ST, vS, True)
            def ustore(j, n, r):
                return f"buffer_store_dwordx2 {P(r)}, v{vDb if j & 1 else vDa}, {WS}, s{(sU0, sU1)[n]} offen offset:{512*(j>>1)}"
            k2 = [0]
            def gel(ts_, mid=None):
                o = OUT + 4*(k2[0] & 1); k2[0] += 1
                arg = [(acc[t], CS+4*t[1], ST+4*t[0], o+2*i) for i, t in enumerate(ts_)]
                z = S.gelu2(*arg, TMP, True) if len(ts_) == 2 else S.gelu(*arg[0], TMP, True)
                for i, y in enumerate(z):
                    a(y)
                    if mid and i == int(self.opt.get('fa', 30)): mid()
                if self.opt.get("usc1"):
                    for i, t in enumerate(ts_): S.vm(ustore(*t, o+2*i) + " sc1")
                else: S.cstore([ustore(*t, o+2*i) for i, t in enumerate(ts_)])
                return S.nvm - 1
            tiles = tilesA + tilesB
            if isC:
                S.poll(3, self.cF, self.cP, mid=[self.pubfin]); S.ts()
                load, comp = self.cons_stats(ST3, HI, False)
                issue = S.act_issue(); seqs = {}
                for c in range(3): seqs[c] = issue(c)
                load(); setup()
                S.wait_vm(seqs[0])
            else:
                a(f"s_and_b32 s{sT1}, s{sW}, 2\n s_lshl_b32 s{sT1}, s{sT1}, 13\n s_add_u32 s{sT1}, s{sT1}, {HI}\n v_add_u32 v7, s{sT1}, v{vL16}")
                S.lds2reg(V(192), 16, 7)
                setup()
                a("s_waitcnt lgkmcnt(0)")
                S.colsum(V(192), CS+4, self.hX)
                a("s_setprio 0")
            S.bar()
            for j in range(4): rd(0, j)
            BAR = {1: 1, 3: 3, 7: 7}
            nt = len(tiles)
            for s in range(16):
                items = []
                if isC:
                    if s == 0: items = [(lambda c=c: seqs.__setitem__(c, issue(c))) for c in (3, 4, 5)]
                    if s == 1: items = [(lambda c=c: seqs.__setitem__(c, issue(c))) for c in (6, 7)]
                    if s == 2: items = self.stg_rest + [lambda: seqs.__setitem__(7, S.lastf)]
                    items = items + {3: comp[:7], 4: comp[7:14], 5: comp[14:]}.get(s, [])
                if s == 8: items = items + sr
                if s == 13: items = S.E(f"s_lshl_b32 s{sT1}, s{sW8}, 13\n v_add_u32 v7, s{sT1}, v{vL16}")
                if s >= 14: items = [(lambda i=i: S.ld(f"ds_read_b128 {wreg(20+i)}, v7 offset:{1024*i}")) for i in range(4*(s-14), 4*(s-14)+4)]
                if 3 <= s < 13: items = [w4.pop(0)] + items[:len(items)//2] + [w4.pop(0)] + items[len(items)//2:]
                if s in BAR:
                    if isC:
                        S.wait_vm(seqs[BAR[s]])
                        if s == 7: S.wait_ld(S.wseq)
                    S.bar()
                for i, (j, n) in enumerate(tiles):
                    if n == 0: S.wait_ld(rs[(s, j)])
                    mf(s, j, n)
                    if n == 0 and s + 1 < 16: rd(s+1, j)
                    S.run(items[i*len(items)//nt:(i+1)*len(items)//nt])
                if s % 4 == 3: S.ts("s6")
            assert not w4
            vF8, vPp = (self.cF, self.cP) if isC else (vBa, self.hR1+2)
            S.f7 = (vF8, vPp)
            a(f"""
    s_setprio 1
    s_mul_i32 s{sB}, s{sW8}, {7*4096}
    s_add_u32 s{sB}, s{sB}, s{sAR}
    s_add_u32 s{sB}, s{sB}, {U_ - ACT:#x}
    v_and_b32 v{vF8}, 7, v{vLANE}
    v_lshlrev_b32 v{vF8}, 2, v{vF8}
    s_lshl_b32 s{sT1}, s{sW8}, 5
    v_add_u32 v{vF8}, s{sT1}, v{vF8}""")
            gel(tilesA[:2]); sa = gel(tilesA[2:])
            a("s_setprio 0")
            S.ts()
            gel(tilesB[:2], mid=lambda: S.flag(4, 6, seq=sa))
            S.sb = gel(tilesB[2:])
            S.ts()
        self.sync_check()

    def s7(self):
        self.C.mark(); self.H.mark()
        C, H = self.C, self.H
        for S in (C, H):
            isC = S is C; a = S.a
            wreg = S.wreg
            vF8, vPp = S.f7
            if isC:
                vWr, vRD, vO = [8, 9, 10, 11], 12, 13
                ring = [self.cBP + 4*i for i in range(8)]
                accx = lambda p, m: self.cACC + 16*(p & 1) + 4*m
                rb = [80 + 4*k for k in range(8)]
            else:
                vWr, vRD, vO = [self.hX+4+i for i in range(4)], 7, vXO
                ring = [self.hBP + 4*i for i in range(8)]
                accx = lambda p, m: self.hACC + 4*m if p & 1 else (184, 188, 248, 252)[m]
                rb = [80, 84, 88, 92, 104, 108, 112, 116]
            NR = len(ring); x = rb[0]
            def setup():
                a(f"""
    v_and_b32 v{x}, 15, v{vLANE}
    v_lshrrev_b32 v{x+1}, 4, v{vLANE}
    v_xor_b32 v{x+2}, v{x}, v{x+1}                ; t ^ g""")
                for m in range(4):
                    a(f"""
    s_add_u32 s{sT1}, s{sW}, {m}
    s_and_b32 s{sT1}, s{sT1}, 3
    s_lshl_b32 s{sT2}, s{sT1}, 2
    v_xor_b32 v{vWr[m]}, s{sT2}, v{x+2}
    v_lshlrev_b32 v{vWr[m]}, 4, v{vWr[m]}
    v_lshl_add_u32 v{vWr[m]}, v{x+1}, 8, v{vWr[m]}
    s_lshl_b32 s{sT1}, s{sT1}, 10
    s_lshl_b32 s{sT2}, s{sW8}, 12
    s_add_u32 s{sT1}, s{sT1}, s{sT2}
    v_add_u32 v{vWr[m]}, s{sT1}, v{vWr[m]}""")
                a(f"""
    s_lshl_b32 s{sT1}, s{sW}, 2
    v_add_u32 v{x+1}, s{sT1}, v{x+1}
    v_xor_b32 v{vRD}, v{x+1}, v{x}
    v_lshlrev_b32 v{vRD}, 4, v{vRD}
    v_lshl_add_u32 v{vRD}, v{x}, 8, v{vRD}
    v_lshlrev_b32 v{vO}, 10, v{x+1}
    v_lshl_add_u32 v{vO}, v{x}, 3, v{vO}
    s_lshl_b32 s{sT4}, s{sGRP}, 16
    s_lshl_b32 s{sT1}, s{sMEM}, 7
    s_add_u32 s{sT4}, s{sT4}, s{sT1}""")
                if not isC: a(f"s_add_u32 s{sT4}, s{sT4}, 16384\n v_add_u32 v{vRD}, 32768, v{vRD}")
                a("s_waitcnt lgkmcnt(0)")
            S.poll(4, vF8, vPp, mid=[setup], np_=2)
            S.flag(6, 6, seq=S.sb)
            S.ts()
            seq = {}
            def load(u):
                p, i = u // 7, u % 7
                seq[u] = S.vm(f"buffer_load_dwordx4 {vr(ring[u % NR])}, v{vB}, {WS}, s{sB} offen offset:{256*p} sc1")
                a(f"s_add_u32 s{sB}, s{sB}, 4096" if i < 6 else f"s_sub_u32 s{sB}, s{sB}, {6*4096}")
            def Wr(p):
                it = []
                for m in range(4):
                    if p == 2: it.append(lambda m=m: a(f"v_add_u32 v{vWr[m]}, 0x10000, v{vWr[m]}"))
                    it.append(lambda m=m: S.ld(f"ds_write_b128 v{vWr[m]}, {vr(accx(p, m))} offset:{32768*(p&1)}"))
                return it
            bar = [lambda: (a("s_waitcnt lgkmcnt(0)"), S.bar())]
            st = {}
            def Rd(p):
                it = [lambda: a(f"v_add_u32 v{vRD}, 0x10000, v{vRD}")] if p >= 2 else []
                return it + [(lambda k=k: st.__setitem__(p, S.ld(f"ds_read_b128 {vr(rb[k])}, v{vRD} offset:{4096*k}"))) for k in range(8)]
            def Ad(p, pk):
                r = rb
                pairs = [(r[0], r[1]), (r[2], r[3]), (r[4], r[5]), (r[6], r[7]), (r[0], r[2]), (r[4], r[6]), (r[0], r[4])]
                ins = []
                for y, z in pairs:
                    if pk: ins += [f"v_pk_add_f32 {P(y+h)}, {P(y+h)}, {P(z+h)}" for h in (0, 2)]
                    else: ins += [f"v_add_f32 v{y+h}, v{y+h}, v{z+h}" for h in range(4)]
                ins += [f"v_cvt_pk_bf16_f32 v{r[1]+h}, v{r[0]+2*h}, v{r[0]+2*h+1}" for h in (0, 1)]
                return [lambda: S.wait_ld(st[p])] + [(lambda z=z: a(z)) for z in ins] + \
                       [lambda: S.vm(f"buffer_store_dwordx2 {P(r[1])}, v{vO}, {OS}, s{sT4} offen {self.opt.get('osc', 'nt')}"), lambda: a(f"s_add_u32 s{sT4}, s{sT4}, 32768")]
            la = int(self.opt.get('la7', 4))
            pb = {}
            ltxt = f"buffer_load_dword v{vPp}, v{vF8}, {WS}, s{sT0} offen sc1"
            def chkB():
                L0, Lr = S.lab("bchk"), S.lab("bre")
                S.wait_vm(pb[0])
                a.label(L0)
                a(f"v_cmp_ne_u32 vcc, 1, v{vPp}\n s_cbranch_vccnz {Lr}")
                S.ool.append((Lr, [f"s_add_u32 s{sCNT}, s{sCNT}, 1", f"s_cmp_gt_u32 s{sCNT}, {SPIN}", "s_cbranch_scc1 main_exit",
                                   ltxt, "s_waitcnt vmcnt(0)", f"s_branch {L0}"]))
            side = {6: bar, 8: Wr(0), 15: Wr(1), 16: bar, 22: Wr(2)}
            side[13 - 2*la] = side.get(13 - 2*la, []) + [lambda: pb.__setitem__(0, S.vm(ltxt))]
            side[13 - la] = side.get(13 - la, []) + [chkB]
            p0 = 0 if isC else 1
            ad = Ad(p0, False)
            side[17] = Rd(p0); side[18] = ad[:11]; side[19] = ad[11:22]; side[20] = ad[22:]
            for u in range(la): load(u)
            for u in range(28):
                p, i = u // 7, u % 7
                S.wait_vm(seq[u])
                items = list(side.get(u, []))
                per = -(-len(items) // 3)
                for m in range(4):
                    c0 = vr(self.hRES+4*p) if (m == 0 and not isC) else '0'
                    if not (self.opt.get('x7b') and m): a(f"v_mfma_f32_16x16x32_bf16 {vr(accx(p, m))}, {wreg(4*i+m)}, {vr(ring[u % NR])}, {c0 if i == 0 else vr(accx(p, m))}")
                    if m == 0:
                        if u + la < 28: load(u + la)
                    else:
                        for _ in range(per):
                            if items: items.pop(0)()
                if u % 7 == 6: S.ts("s7")
            S.run(Wr(3) + bar)
            S.ts()
            S.run(Rd(p0+2) + Ad(p0+2, True))
            S.ts("s7")
        self.sync_check()

    def dump_ts(self, S):
        a = S.a
        a("s_waitcnt vmcnt(0)")
        S.ts()
        a(f"""
    s_waitcnt lgkmcnt(0)
    s_lshl_b32 s{sT0}, s2, 3
    s_add_u32 s{sT0}, s{sT0}, s{sW8}
    s_lshl_b32 s{sT0}, s{sT0}, 7
    s_add_u32 s{sT0}, s{sT0}, {DBG:#x}
    v_mov_b32 v7, 0
    s_mov_b64 exec, 1""")
        assert S.nts <= 28
        for i in range(S.nts):
            a(f"v_mov_b32 v6, s{tsreg(i)}\n buffer_store_dword v6, v7, {WS}, s{sT0} offen offset:{4*i}")
        a(f"v_mov_b32 v6, s{sSLOW}\n buffer_store_dword v6, v7, {WS}, s{sT0} offen offset:124")
        a(f"v_mov_b32 v6, s{sXCC}\n buffer_store_dword v6, v7, {WS}, s{sT0} offen offset:120")

    def gen(self):
        C, H = self.C, self.H
        self.prologue(); self.qstage(); self.attention()
        for name in ("s3", "s4", "s5", "s6", "s7"): getattr(self, name)()
        for S in (C, H):
            S.a.label(f"M_{S.name}_{S.nmark}")
            if self.dbg: self.dump_ts(S)
            if S is C: S.a.label("main_exit")
            S.a("s_endpgm")
        tail = Asm()
        self.fallback()
        for S in (C, H):
            for L, body in S.ool:
                S.a.label(L)
                for x in body: S.a(x)
        C.a.label("main_end")
        H.a.lines = self.head + H.a.lines
        txt = H.a.finish() + C.a.finish()
        txt += """
.section .rodata,"a"
.p2align 6
.amdhsa_kernel """ + NAME + """_kernel
  .amdhsa_next_free_vgpr 256
  .amdhsa_next_free_sgpr 102
  .amdhsa_accum_offset 256
  .amdhsa_group_segment_fixed_size 0
  .amdhsa_kernarg_size 104
  .amdhsa_user_sgpr_count 2
  .amdhsa_user_sgpr_kernarg_segment_ptr 1
  .amdhsa_system_sgpr_workgroup_id_x 1
.end_amdhsa_kernel
"""
        return txt
```
